```python
import torch

def _softmax(x, axis=-1):
    return torch.softmax(x, dim=axis)
def _gelu(x):
    return torch.nn.functional.gelu(x, approximate="tanh")
def _silu(x):
    return torch.nn.functional.silu(x)
def _sigmoid(x):
    return torch.sigmoid(x)
def _layernorm(x, axis=-1, eps=1e-5):
    m = x.mean(dim=axis, keepdim=True)
    v = x.var(dim=axis, keepdim=True, unbiased=False)
    return (x - m) / torch.sqrt(v + eps)
def _scatter_add(tgt, idx, src, axis=0):
    return tgt.clone().index_add_(axis, idx, src)
def _segment_sum(src, seg, n):
    out = torch.zeros((n,) + src.shape[1:], dtype=src.dtype)
    return out.index_add_(0, seg, src)
def _pad(x, pw):
    flat = tuple(v for pair in reversed(pw) for v in pair)
    return torch.nn.functional.pad(x, flat)

kernel_name = 'recurrent_scan__grouped_kv_mqa__dense_activation_relu__prompt'

def setup_inputs():

    _w = (lambda a: (lambda t: t.to(torch.bfloat16) if t.is_floating_point() else t)(torch.as_tensor(a)))
    def _A_setup():
        B, S, D, H = 1, 2048, 512, 32
        Dh = D // H
        return {
            "x": _w((lambda *s: torch.randn(*s, dtype=torch.bfloat16) * 0.05)(B, S, D)),
            "wq": _w((lambda *s: torch.randn(*s, dtype=torch.bfloat16) * 0.05)(D, H * Dh)),
            "wk": _w((lambda *s: torch.randn(*s, dtype=torch.bfloat16) * 0.05)(D, Dh)),
            "wv": _w((lambda *s: torch.randn(*s, dtype=torch.bfloat16) * 0.05)(D, Dh)),
            "wo": _w((lambda *s: torch.randn(*s, dtype=torch.bfloat16) * 0.05)(H * Dh, D)),
        }
    _A_in = _A_setup()

    def _B_setup():
        B, S, D, Dff = 1, 2048, 512, 1792
        return {
            "x": _w((lambda *s: torch.randn(*s, dtype=torch.bfloat16) * 0.05)(B, S, D)),
            "w1": _w((lambda *s: torch.randn(*s, dtype=torch.bfloat16) * 0.05)(D, Dff)),
            "w2": _w((lambda *s: torch.randn(*s, dtype=torch.bfloat16) * 0.05)(Dff, D)),
        }
    _B_in = _B_setup()

    return {
        "A_x": _A_in["x"],
        "A_wq": _A_in["wq"],
        "A_wk": _A_in["wk"],
        "A_wv": _A_in["wv"],
        "A_wo": _A_in["wo"],
        "B_x": _B_in["x"],
        "B_w1": _B_in["w1"],
        "B_w2": _B_in["w2"],
    }

def reference(A_x, A_wq, A_wk, A_wv, A_wo, B_x, B_w1, B_w2):
    def _A_ref(x, wq, wk, wv, wo):
        B, S, D = x.shape
        H = 32
        Dh = D // H
        q = (lambda x, *d: x.permute(*d))((x @ wq).reshape(B, S, H, Dh), 0, 2, 1, 3)
        k = x @ wk
        v = x @ wv
        scores = torch.einsum("bhqd,bkd->bhqk", q, k) * (Dh ** -0.5)
        p = _softmax(scores, axis=-1)
        o = torch.einsum("bhqk,bkd->bhqd", p, v)
        return (lambda x, *d: x.permute(*d))(o, 0, 2, 1, 3).reshape(B, S, H * Dh) @ wo

    def _B_ref(x, w1, w2):
        h = torch.einsum("bsd,df->bsf", x, w1)
        zero = torch.zeros_like(h)
        h = torch.maximum(h, zero)
        return torch.einsum("bsf,fd->bsd", h, w2)

    x = A_x
    xn = _layernorm(x, axis=-1)
    s = _A_ref(xn, A_wq, A_wk, A_wv, A_wo)
    g = _silu(_B_ref(xn, B_w1, B_w2))
    return x + s * g
```

```python
import re

TRANS = ("v_exp_f32", "v_log_f32", "v_rcp_f32", "v_rsq_f32", "v_sqrt_f32", "v_sin_f32", "v_cos_f32")


def V(a, n=1):
    return f"v{a}" if n == 1 else f"v[{a}:{a+n-1}]"


def S(a, n=1):
    return f"s{a}" if n == 1 else f"s[{a}:{a+n-1}]"


class E:
    def __init__(self):
        self.lines = []
        self.vm = []
        self.lg = []

    def i(self, t):
        self.lines.append("    " + t)

    def c(self, t):
        self.lines.append("    ; " + t)

    def label(self, l):
        self.lines.append(l + ":")

    def raw(self, t):
        self.lines.append(t)

    def vmem(self, t, tag=None):
        if len(self.vm) >= 60:
            self.i("s_waitcnt vmcnt(56)")
            del self.vm[: len(self.vm) - 56]
        self.i(t)
        self.vm.append(tag)

    def lds(self, t, tag=None):
        if len(self.lg) >= 14:
            self.i("s_waitcnt lgkmcnt(8)")
            del self.lg[: len(self.lg) - 8]
        self.i(t)
        self.lg.append(tag)

    def _wait(self, q, tag, name, mx):
        idx = [k for k, t in enumerate(q) if t == tag]
        if not idx:
            return None
        last = idx[-1]
        n = len(q) - 1 - last
        n2 = min(n, mx)
        del q[: len(q) - n2]
        return f"{name}({n2})"

    def wait(self, vm=None, lg=None):
        parts = []
        if vm is not None:
            p = self._wait(self.vm, vm, "vmcnt", 63)
            if p:
                parts.append(p)
        if lg is not None:
            p = self._wait(self.lg, lg, "lgkmcnt", 15)
            if p:
                parts.append(p)
        if parts:
            self.i("s_waitcnt " + " ".join(parts))

    def wait_all(self, vm=False, lg=False):
        parts = []
        if vm:
            parts.append("vmcnt(0)")
            self.vm = []
        if lg:
            parts.append("lgkmcnt(0)")
            self.lg = []
        self.i("s_waitcnt " + " ".join(parts))

    def nop(self, n):
        while n > 0:
            k = min(n, 16)
            self.i(f"s_nop {k-1}")
            n -= k

    def text(self):
        return "\n".join(self.lines) + "\n"


_reg = re.compile(r"^(-|\|)?(abs\()?([vsa])(\d+|\[(\d+):(\d+)\])\)?\|?$")


def regs(tok):
    tok = tok.strip()
    if tok in ("vcc", "exec", "m0", "scc"):
        return {(tok, 0)}
    if tok in ("vcc_lo", "vcc_hi"):
        return {("vcc", 0)}
    if tok in ("exec_lo", "exec_hi"):
        return {("exec", 0)}
    m = _reg.match(tok)
    if not m:
        return set()
    k = m.group(3)
    if m.group(5) is not None:
        return {(k, r) for r in range(int(m.group(5)), int(m.group(6)) + 1)}
    return {(k, int(m.group(4)))}


def parse(line):
    t = line.split(";")[0].strip()
    if not t or t.endswith(":") or t.startswith("."):
        return None
    sp = t.split(None, 1)
    op = sp[0]
    rest = sp[1] if len(sp) > 1 else ""
    ops, cur, d = [], "", 0
    for ch in rest:
        if ch in "[(":
            d += 1
        if ch in "])":
            d -= 1
        if ch == "," and d == 0:
            ops.append(cur.strip())
            cur = ""
        else:
            cur += ch
    if cur.strip():
        ops.append(cur.strip())
    mods = ""
    if ops:
        last = ops[-1].split(None, 1)
        ops[-1] = last[0]
        mods = last[1] if len(last) > 1 else ""
    I = dict(op=op, ops=ops, mods=mods, text=t, w=set(), r=set(), kind="other", ws=1)
    R = [regs(o) for o in ops]
    if op == "s_nop":
        I["ws"] = int(ops[0], 0) + 1
    elif op.startswith("v_mfma"):
        I["kind"] = "mfma"
        I["passes"] = 8 if "32x32x16" in op else 4
        I["w"] = R[0]
        I["A"], I["B"], I["C"] = R[1], R[2], R[3]
        I["r"] = R[1] | R[2] | R[3]
    elif op.startswith("v_"):
        I["kind"] = "valu"
        if op.startswith("v_permlane") and "swap" in op:
            I["w"] = R[0] | R[1]
            I["r"] = R[0] | R[1]
        else:
            nd = 1
            if re.match(r"v_(add|sub|subrev|addc|subb)_co", op):
                nd = 2
            I["w"] = set().union(*R[:nd])
            I["r"] = set().union(*R[nd:]) if len(R) > nd else set()
            if op.startswith(("v_fmac", "v_dot2c", "v_writelane")) or "_dpp" in op or "UNUSED_PRESERVE" in mods:
                I["r"] |= R[0]
            if op.startswith("v_cmpx"):
                I["w"] |= {("exec", 0)}
        I["dpp"] = "_dpp" in op
        I["trans"] = op.replace("_e32", "").replace("_e64", "") in TRANS
    elif op.startswith("ds_"):
        I["kind"] = "mem"
        if op.startswith(("ds_read", "ds_bpermute", "ds_swizzle")) or "_rtn" in op:
            I["w"] = R[0]
            I["r"] = set().union(*R[1:])
        else:
            I["r"] = set().union(*R)
    elif op.startswith(("buffer_", "global_")):
        I["kind"] = "mem"
        I["vmem"] = True
        islds = " lds" in (" " + mods) or "load_lds" in op
        I["dma"] = islds
        if "load" in op and not islds:
            I["w"] = R[0]
            I["r"] = set().union(*R[1:])
        else:
            I["r"] = set().union(*R) if R else set()
            if "store" in op and ("x4" in op or "x3" in op):
                I["wide"] = R[0] if op.startswith("buffer") else R[1]
    elif op.startswith("s_"):
        I["kind"] = "salu"
        if op.startswith(("s_cmp", "s_cbranch", "s_branch", "s_waitcnt", "s_barrier", "s_sleep", "s_setprio", "s_endpgm")):
            I["r"] = set().union(*R) if R else set()
        else:
            I["w"] = R[0] if R else set()
            I["r"] = set().union(*R[1:]) if len(R) > 1 else set()
    return I


def vg(s):
    return {x for x in s if x[0] in "va"}


def sg(s):
    return {x for x in s if x[0] in ("s", "vcc")}


def need(P, C):
    n = 0
    pk, ck = P["kind"], C["kind"]
    if pk == "valu":
        wv = vg(P["w"])
        ws = sg(P["w"])
        if ck == "mfma" and wv & C["r"]:
            n = max(n, 2)
        if ck == "valu":
            if P["trans"] and wv & C["r"] and not C["trans"]:
                n = max(n, 1)
            if C["dpp"] and wv & C["r"]:
                n = max(n, 2)
            if C["op"].startswith("v_permlane") and wv & C["r"]:
                n = max(n, 2)
            if C["op"].startswith(("v_readlane", "v_readfirstlane")) and wv & C["r"]:
                n = max(n, 1)
            if ws & C["r"]:
                n = max(n, 4 if C["op"].startswith(("v_readlane", "v_writelane")) else 2)
            if C["op"].startswith("v_cndmask") and len(C["ops"]) == 4 and ws & regs(C["ops"][3]):
                n = max(n, 2)
            if ("sdwa" in P["op"] or "op_sel" in P["mods"]) and not P["op"].startswith("v_pk") and wv & (C["r"] | C["w"]):
                n = max(n, 1)
        if ck == "mem" and C.get("vmem") and ws & C["r"]:
            n = max(n, 5)
        if ("exec", 0) in P["w"]:
            if ck == "mfma":
                n = max(n, 4)
            if ck == "valu" and C["dpp"]:
                n = max(n, 5)
    if pk == "mfma":
        p8 = P["passes"] == 8
        D = P["w"]
        if ck == "mfma":
            if D & (C["A"] | C["B"]):
                n = max(n, 12 if p8 else 8)
            if D & C["C"] and not (D == C["C"] and P["passes"] == C["passes"]):
                n = max(n, 10 if p8 else 6)
            if D & C["w"] and not (D == C["w"]):
                n = max(n, 10 if p8 else 6)
        if ck == "valu":
            if D & (C["r"] | C["w"]):
                n = max(n, 12 if p8 else 8)
            if P["C"] & C["w"]:
                n = max(n, 7 if p8 else 3)
        if ck == "mem" and D & (C["r"] | C["w"]):
            n = max(n, 12 if p8 else 8)
    if pk == "salu" and ("m0", 0) in P["w"] and ck == "mem" and C.get("dma"):
        n = max(n, 1)
    if pk == "mem" and P.get("wide"):
        if P["wide"] & C["w"]:
            n = max(n, 2 if ck in ("valu", "mfma") else 1)
    return n


def check_seq(lines, name=""):
    ins = [x for x in (parse(l) for l in lines) if x]
    bad = 0
    for k, C in enumerate(ins):
        dist = 0
        for j in range(k - 1, max(-1, k - 24), -1):
            P = ins[j]
            n = need(P, C)
            if n > dist:
                print(f"HAZARD[{name}] need {n} have {dist}:\n   {P['text']}\n   {C['text']}")
                bad += 1
            dist += P["ws"]
            if dist >= 20:
                break
    return bad


def check_cfg(lines):
    bad = check_seq(lines, "linear")
    labels = {}
    for k, l in enumerate(lines):
        t = l.strip()
        if t.endswith(":") and not t.startswith(";"):
            labels[t[:-1]] = k
    for k, l in enumerate(lines):
        t = l.split(";")[0].strip()
        m = re.match(r"s_(cbranch_\w+|branch)\s+(\S+)", t)
        if m and m.group(2) in labels:
            tgt = labels[m.group(2)]
            seq = lines[max(0, k - 30): k + 1] + lines[tgt: tgt + 30]
            a = [x for x in (parse(z) for z in lines[max(0, k - 30): k + 1]) if x]
            b = [x for x in (parse(z) for z in lines[tgt: tgt + 30]) if x]
            for ci, C in enumerate(b):
                dist = sum(x["ws"] for x in b[:ci])
                for P in reversed(a):
                    if dist >= 20:
                        break
                    n = need(P, C)
                    if n > dist:
                        print(f"HAZARD[edge {m.group(2)}] need {n} have {dist}:\n   {P['text']}\n   {C['text']}")
                        bad += 1
                    dist += P["ws"]
    return bad
```

```python
import sys, math, struct
from asmlib import *

NAME = "recurrent_scan__grouped_kv_mqa__dense_activation_relu__prompt"
MF32 = "v_mfma_f32_32x32x16_bf16"
MF16 = "v_mfma_f32_16x16x32_bf16"

def f32bits(x):
    return struct.unpack("<I", struct.pack("<f", x))[0]

KVS = 2064
R0 = 0
R1 = 32 * KVS
XN_RH = 64 * 528
R2 = R1 + 2 * XN_RH
R3 = R2 + 16384
R4 = R3 + 8192
LDS_BYTES = R4 + 64
CQ, CA, CX, CH2, CR0, CF = 0, 4, 8, 12, 16, 20
WS_KV = 0
WS_FLG = 0x40000
WS_O = 0x100000
WS_H = 0x400000
WS_STAMP = 0x1000000
sX, sWQ, sWKV, sWO, sW1, sW2, sOUT, sDBG, sWS = 8, 12, 16, 20, 24, 28, 32, 36, 40
sWAVE, sRB, sCB, sT0, sT1, sT2, sOFF, sOFF2, sCNT, sSEG, sMASK, sF, sSPIN = 70, 71, 72, 73, 74, 75, 76, 77, 78, 79, 44, 45, 46
sSTAMP = 80

class Opt:
    stamps = False
    unr = 8
    prio_ffn = 1
    force_fallback = False
    thr = 40.0

def gen(opt):
    e = E()
    nst = [0]
    def stamp(k):
        if opt.stamps:
            e.i(f"s_memtime {S(sSTAMP+2*k,2)}")
    def dump_stamps():
        if not opt.stamps:
            return
        e.wait_all(vm=True, lg=True)
        e.i("v_mov_b32 v2, 0")
        for k in range(20):
            e.i(f"v_writelane_b32 v2, s{sSTAMP+k}, {k}")
        e.i(f"s_lshl_b32 s{sT0}, s2, 3")
        e.i(f"s_add_u32 s{sT0}, s{sT0}, s{sWAVE}")
        e.i(f"s_lshl_b32 s{sT0}, s{sT0}, 8")
        e.i(f"s_add_u32 s{sT0}, s{sT0}, {WS_STAMP}")
        e.i("v_lshlrev_b32 v3, 2, v1")
        e.i(f"buffer_store_dword v2, v3, {S(sWS,4)}, s{sT0} offen")

    uid = [0]
    def lbl(p):
        uid[0] += 1
        return f"L_{p}_{uid[0]}"

    def spin_init():
        e.i(f"s_mov_b32 s{sSPIN}, 0x20000")

    def spin_tail(top, done, sleep):
        e.i(f"s_sub_u32 s{sSPIN}, s{sSPIN}, 1")
        e.i(f"s_cbranch_scc1 {done}")
        if sleep:
            e.i(f"s_sleep {sleep}")
        e.i(f"s_branch {top}")

    def lds_signal(off, vaddr=6, vone=7):
        e.lds(f"ds_add_u32 v{vaddr}, v{vone} offset:{off}")

    def lds_poll(off, nwaves, vt, sleep=1, vaddr=6):
        top, done = lbl("lp"), lbl("lpd")
        spin_init()
        e.label(top)
        e.i(f"ds_read_b32 v{vt}, v{vaddr} offset:{off}")
        e.wait_all(lg=True)
        e.i(f"v_readfirstlane_b32 s{sT0}, v{vt}")
        e.i(f"s_cmp_ge_u32 s{sT0}, {64*nwaves}")
        e.i(f"s_cbranch_scc1 {done}")
        spin_tail(top, done, sleep)
        e.label(done)

    def flag_poll(voff, soff, vt, sleep=2):
        top, done = lbl("fp"), lbl("fpd")
        spin_init()
        e.label(top)
        e.i(f"buffer_load_dword v{vt}, v{voff}, {S(sWS,4)}, s{soff} offen sc1")
        e.wait_all(vm=True)
        e.i(f"v_cmp_eq_u32 vcc, 0, v{vt}")
        e.i(f"s_cbranch_vccz {done}")
        spin_tail(top, done, sleep)
        e.label(done)

    e.i("s_cmp_ge_u32 s2, 256")
    e.i("s_cbranch_scc1 L_end")
    e.i("s_load_dwordx16 s[48:63], s[0:1], 0")
    e.i("s_load_dwordx4 s[64:67], s[0:1], 64")
    e.i("s_load_dwordx2 s[68:69], s[0:1], 80")
    stamp(0)
    e.i("v_lshrrev_b32 v2, 6, v0")
    e.i("v_and_b32 v1, 63, v0")
    e.i(f"v_readfirstlane_b32 s{sWAVE}, v2")
    e.i(f"s_and_b32 s{sT0}, s2, 7")
    e.i(f"s_lshr_b32 s{sT1}, s2, 3")
    e.i(f"s_and_b32 s{sCB}, s{sT1}, 7")
    e.i(f"s_lshr_b32 s{sT1}, s{sT1}, 3")
    e.i(f"s_lshl_b32 s{sRB}, s{sT0}, 2")
    e.i(f"s_add_u32 s{sRB}, s{sRB}, s{sT1}")
    e.i(f"s_mov_b32 s{sMASK}, 0xffff0000")
    e.i(f"s_and_b32 s{sF}, s{sWAVE}, 3")
    e.i("v_lshrrev_b32 v2, 3, v1")
    e.i("v_and_b32 v3, 7, v1")
    e.i(f"v_mov_b32 v6, {R4}")
    e.i("v_mov_b32 v7, 1")
    e.i("v_lshlrev_b32 v4, 10, v2")
    e.i("v_lshl_add_u32 v4, v3, 4, v4")
    e.i(f"s_lshl_b32 s{sOFF}, s{sRB}, 3")
    e.i(f"s_add_u32 s{sOFF}, s{sOFF}, s{sWAVE}")
    e.i(f"s_lshl_b32 s{sOFF}, s{sOFF}, 13")
    for srd, size in ((sX, 2048*512*2), (sWQ, 512*512*2), (sWKV, 512*16*2), (sWO, 512*512*2), (sW1, 512*1792*2),
                      (sW2, 1792*512*2), (sOUT, 2048*512*2), (sDBG, 256), (sWS, 0x10000000)):
        e.i(f"s_mov_b32 s{srd+2}, {hex(size)}")
        e.i(f"s_mov_b32 s{srd+3}, 0x20000")
    e.i(f"s_bitcmp1_b32 s{sCB}, 0")
    e.i("s_waitcnt lgkmcnt(0)")
    e.i(f"s_mov_b64 {S(sX,2)}, s[48:49]")
    for i in range(8):
        e.vmem(f"buffer_load_dwordx4 {V(8+4*i,4)}, v4, {S(sX,4)}, s{sOFF} offen offset:{128*i}", "x")
    e.i(f"s_cselect_b64 {S(sWKV,2)}, s[54:55], s[52:53]")
    e.i(f"s_mov_b64 {S(sWQ,2)}, s[50:51]")
    e.i(f"s_mov_b64 {S(sWO,2)}, s[56:57]")
    e.i(f"s_mov_b64 {S(sW1,2)}, s[60:61]")
    e.i(f"s_mov_b64 {S(sW2,2)}, s[62:63]")
    e.i(f"s_mov_b64 {S(sOUT,2)}, s[64:65]")
    e.i(f"s_mov_b64 {S(sDBG,2)}, s[66:67]")
    e.i(f"s_mov_b64 {S(sWS,2)}, s[68:69]")
    e.i("v_lshrrev_b32 v5, 2, v1")
    e.i("v_and_b32 v5, 4, v5")
    e.i("v_xor_b32 v5, v5, v3")
    e.i(f"s_cmp_ge_u32 s{sWAVE}, 4")
    e.i("s_cbranch_scc1 L_pre_ffn")
    vm_x = list(e.vm)

    e.c("attention waves: wq slice -> LDS R0 by DMA")
    e.i("v_lshlrev_b32 v104, 10, v2")
    e.i("v_lshl_add_u32 v104, v5, 4, v104")
    e.i(f"s_lshl_b32 s{sOFF}, s{sWAVE}, 17")
    e.i(f"s_lshl_b32 s{sT0}, s{sCB}, 7")
    e.i(f"s_add_u32 s{sOFF}, s{sOFF}, s{sT0}")
    e.i(f"s_lshl_b32 s{sT1}, s{sWAVE}, 14")
    for i in range(16):
        e.i(f"s_mov_b32 m0, s{sT1}")
        e.i(f"s_add_u32 s{sT1}, s{sT1}, 1024")
        e.vmem(f"buffer_load_dwordx4 v104, {S(sWQ,4)}, s{sOFF} offen lds", "wq")
        e.i(f"s_add_u32 s{sOFF}, s{sOFF}, 8192")
    e.wait(vm="x")
    e.i("s_branch L_ln")

    e.label("L_pre_ffn")
    e.vm = list(vm_x)
    e.i(f"s_setprio {opt.prio_ffn}")
    e.i(f"s_mul_i32 s{sT0}, s{sCB}, 448")
    e.i(f"s_lshl_b32 s{sT1}, s{sF}, 7")
    e.i(f"s_add_u32 s{sOFF}, s{sT0}, s{sT1}")
    e.i(f"s_cmp_eq_u32 s{sWAVE}, 7")
    e.i("s_cbranch_scc1 L_pre_w7")
    e.i(f"v_mul_u32_u24 v104, 3584, v2")
    e.i("v_lshl_add_u32 v104, v3, 4, v104")
    PF = 16
    def w1_load2(ks):
        for a in range(2):
            r = 128 + 8 * (ks % PF) + 4 * a
            e.vmem(f"buffer_load_dwordx4 {V(r,4)}, v104, {S(sW1,4)}, s{sOFF} offen", ("w", ks))
            e.i(f"s_add_u32 s{sOFF}, s{sOFF}, {8*3584}")
    for ks in range(PF):
        w1_load2(ks)
    e.wait(vm="x")
    vm_f456 = list(e.vm)
    e.i("s_branch L_ln")

    e.label("L_pre_w7")
    e.vm = list(vm_x)
    e.c("wave 7: zero own hand-off flags + LDS counters, wk/wv -> LDS by DMA, w1 tile prefetch")
    e.i("v_mov_b32 v108, 0")
    e.i("v_mov_b32 v109, 0")
    e.i("v_mov_b32 v110, 0")
    e.i("v_mov_b32 v111, 0")
    e.i("v_and_b32 v105, 1, v1")
    e.i("v_lshlrev_b32 v105, 7, v105")
    e.i(f"s_lshl_b32 s{sT0}, s{sRB}, 8")
    e.i(f"s_lshl_b32 s{sT1}, s{sCB}, 4")
    e.i(f"s_add_u32 s{sT0}, s{sT0}, s{sT1}")
    e.i(f"s_add_u32 s{sT0}, s{sT0}, {WS_FLG}")
    e.i("s_mov_b64 exec, 3")
    e.vmem(f"buffer_store_dwordx4 v[108:111], v105, {S(sWS,4)}, s{sT0} offen sc1", "x")
    e.lds("ds_write_b128 v6, v[108:111]")
    e.lds("ds_write_b128 v6, v[108:111] offset:16")
    e.i("s_mov_b64 exec, -1")
    e.i("v_lshlrev_b32 v105, 4, v1")
    for i in range(4):
        e.i(f"s_mov_b32 m0, {R2 + 4096*i}")
        e.i(f"s_mov_b32 s{sT0}, {4096*i}")
        for k in range(4):
            e.vmem(f"buffer_load_dwordx4 v105, {S(sWKV,4)}, s{sT0} offen offset:{1024*k} lds", "wkv")
    e.i("v_lshrrev_b32 v104, 2, v1")
    e.i("v_mul_u32_u24 v104, 3584, v104")
    e.i("v_and_b32 v106, 3, v1")
    e.i("v_lshl_add_u32 v104, v106, 4, v104")
    for ks in range(32):
        e.vmem(f"buffer_load_dwordx4 {V(128+4*ks,4)}, v104, {S(sW1,4)}, s{sOFF} offen", ("w", ks))
        e.i(f"s_add_u32 s{sOFF}, s{sOFF}, {16*3584}")
    e.wait(vm="x")
    vm_w7 = list(e.vm)

    e.label("L_ln")
    stamp(1)
    X = 40
    for t in range(32):
        e.i(f"v_lshlrev_b32 v{X+2*t}, 16, v{8+t}")
        e.i(f"v_and_b32 v{X+2*t+1}, s{sMASK}, v{8+t}")
    A = 112
    for a in range(4):
        e.i(f"v_pk_add_f32 {V(A+2*a,2)}, {V(X+4*a,2)}, {V(X+4*a+2,2)}")
    for t in range(8, 32):
        a = t % 4
        e.i(f"v_pk_add_f32 {V(A+2*a,2)}, {V(A+2*a,2)}, {V(X+2*t,2)}")
    def reduce8():
        e.i(f"v_pk_add_f32 {V(A,2)}, {V(A,2)}, {V(A+2,2)}")
        e.i(f"v_pk_add_f32 {V(A+4,2)}, {V(A+4,2)}, {V(A+6,2)}")
        e.i(f"v_pk_add_f32 {V(A,2)}, {V(A,2)}, {V(A+4,2)}")
        e.i(f"v_add_f32 v{A}, v{A}, v{A+1}")
        for m in ("quad_perm:[1,0,3,2]", "quad_perm:[2,3,0,1]", "row_half_mirror"):
            e.nop(2)
            e.i(f"v_add_f32_dpp v{A}, v{A}, v{A} {m} row_mask:0xf bank_mask:0xf")
    reduce8()
    e.i(f"v_mul_f32 v120, {hex(f32bits(-1.0/512))}, v{A}")
    for t in range(32):
        e.i(f"v_pk_add_f32 {V(X+2*t,2)}, {V(X+2*t,2)}, v[120:121] op_sel_hi:[1,0]")
    for t in range(32):
        a = t % 4
        if t < 4:
            e.i(f"v_pk_mul_f32 {V(A+2*a,2)}, {V(X+2*t,2)}, {V(X+2*t,2)}")
        else:
            e.i(f"v_pk_fma_f32 {V(A+2*a,2)}, {V(X+2*t,2)}, {V(X+2*t,2)}, {V(A+2*a,2)}")
    reduce8()
    e.i(f"v_mov_b32 v121, {hex(f32bits(1e-5))}")
    e.i(f"v_fmac_f32 v121, {hex(f32bits(1.0/512))}, v{A}")
    e.i("v_rsq_f32 v120, v121")
    e.i(f"s_lshr_b32 s{sT0}, s{sWAVE}, 2")
    e.i(f"s_mul_i32 s{sT0}, s{sT0}, {XN_RH}")
    e.i(f"s_lshl_b32 s{sT1}, s{sF}, 7")
    e.i(f"s_add_u32 s{sT0}, s{sT0}, s{sT1}")
    e.i(f"s_add_u32 s{sT0}, s{sT0}, {R1}")
    e.i("v_mul_u32_u24 v122, 528, v3")
    e.i("v_lshl_add_u32 v122, v2, 4, v122")
    e.i(f"v_add_u32 v122, s{sT0}, v122")
    for i in range(8):
        for t in range(4*i, 4*i+4):
            e.i(f"v_pk_mul_f32 {V(X+2*t,2)}, {V(X+2*t,2)}, v[120:121] op_sel_hi:[1,0]")
        for t in range(4*i, 4*i+4):
            e.i(f"v_cvt_pk_bf16_f32 v{8+t}, v{X+2*t}, v{X+2*t+1}")
        e.lds(f"ds_write_b128 v122, {V(8+4*i,4)} offset:{4224*i}")
    e.i("v_lshrrev_b32 v2, 5, v1")
    e.i("v_bfe_u32 v3, v1, 4, 1")
    e.i("v_bfe_u32 v4, v1, 2, 2")
    e.i("v_and_b32 v5, 3, v1")
    e.i("v_lshrrev_b32 v124, 1, v5")
    e.i("v_lshl_add_u32 v124, v3, 1, v124")
    e.i("v_lshlrev_b32 v125, 1, v4")
    e.i("v_and_b32 v125, 4, v125")
    e.i("v_xor_b32 v124, v124, v125")
    e.i("v_lshlrev_b32 v123, 7, v4")
    e.i("v_lshl_add_u32 v123, v124, 4, v123")
    e.i("v_and_b32 v125, 1, v5")
    e.i("v_lshl_add_u32 v123, v125, 3, v123")
    e.i("v_and_b32 v125, 31, v1")
    e.i("v_mul_u32_u24 v124, 528, v2")
    e.i("v_lshl_add_u32 v124, v125, 4, v124")
    e.i(f"v_add_u32 v124, {R1}, v124")
    e.i(f"s_cmp_ge_u32 s{sWAVE}, 4")
    e.i("s_cbranch_scc1 L_ffn")

    e.wait_all(vm=True, lg=True)
    e.i("s_barrier")
    stamp(2)
    e.c("Q projection: wave w -> head pair hp=w&1, row half rh=w>>1")
    e.i(f"s_and_b32 s{sT0}, s{sWAVE}, 1")
    e.i(f"s_lshl_b32 s{sT0}, s{sT0}, 6")
    e.i("v_lshl_add_u32 v123, v2, 10, v123")
    e.i(f"v_xor_b32 v123, s{sT0}, v123")
    e.i(f"s_lshr_b32 s{sT0}, s{sWAVE}, 1")
    e.i(f"s_mul_i32 s{sT0}, s{sT0}, {XN_RH}")
    e.i(f"v_add_u32 v124, s{sT0}, v124")
    def qreads(ks):
        s = ks % 4
        e.lds(f"ds_read_b64_tr_b16 {V(32+8*s,2)}, v123 offset:{ks*2048}", ("q", ks))
        e.lds(f"ds_read_b64_tr_b16 {V(34+8*s,2)}, v123 offset:{ks*2048+512}", ("q", ks))
        e.lds(f"ds_read_b128 {V(36+8*s,4)}, v124 offset:{ks*1056}", ("q", ks))
    for ks in range(4):
        qreads(ks)
    for ks in range(32):
        s = ks % 4
        e.wait(lg=("q", ks))
        e.i(f"{MF32} v[8:23], {V(32+8*s,4)}, {V(36+8*s,4)}, {'0' if ks == 0 else 'v[8:23]'}")
        if ks + 4 < 32:
            qreads(ks + 4)
    lds_signal(CQ)
    S0, S1, P0, P1, OA, OB, NMA, NMB, QA, QB, KB, VB = 32, 48, 64, 72, 80, 96, 112, 128, 144, 148, 152, 168
    vK, vV0, vV1 = 200, 201, 202
    e.i(f"v_lshlrev_b32 v{vK}, 4, v1")
    e.i("v_and_b32 v24, 15, v1")
    e.i("v_lshl_add_u32 v24, v2, 4, v24")
    e.i("v_lshlrev_b32 v24, 4, v24")
    e.i("v_add_u32 v25, 1024, v24")
    e.i("v_add_u32 v26, 1536, v24")
    e.i("v_mov_b32 v27, 2048")
    e.i("v_cmp_eq_u32 vcc, 0, v3")
    e.i("v_lshlrev_b32 v203, 2, v1")
    e.i(f"s_mov_b32 s{sT1}, {hex(f32bits(0.25*math.log2(math.e)))}")
    e.i(f"v_cndmask_b32 v{vV0}, v27, v25, vcc")
    e.i(f"v_cndmask_b32 v{vV1}, v27, v26, vcc")
    e.nop(2)
    for r in range(16):
        e.i(f"v_mul_f32 v{8+r}, s{sT1}, v{8+r}")
    for hd in range(2):
        b = 8 + 8*hd
        e.i(f"v_mul_f32 v{24+hd}, v{b}, v{b}")
        for r in range(1, 8):
            e.i(f"v_fmac_f32 v{24+hd}, v{b+r}, v{b+r}")
    for hd in range(2):
        for j in range(4):
            e.i(f"v_cvt_pk_bf16_f32 v{QA+4*hd+j}, v{8+8*hd+2*j}, v{8+8*hd+2*j+1}")
    e.i("v_mov_b32 v26, v24")
    e.i("v_mov_b32 v27, v25")
    e.nop(2)
    e.i("v_permlane32_swap_b32 v24, v26")
    e.i("v_permlane32_swap_b32 v25, v27")
    e.i("v_add_f32 v24, v24, v26")
    e.i("v_add_f32 v25, v25, v27")
    stamp(3)
    e.c("wait for all 256 K/V producers (flag bytes in d_debug)")
    top, done = lbl("kv"), lbl("kvd")
    spin_init()
    e.label(top)
    e.i(f"buffer_load_dword v28, v203, {S(sDBG,4)}, 0 offen sc1")
    e.wait_all(vm=True)
    e.i("v_add_u32 v29, 0xfefefeff, v28")
    e.i("v_not_b32 v30, v28")
    e.i("v_and_b32 v29, v29, v30")
    e.i("v_and_b32 v29, 0x80808080, v29")
    e.i("v_cmp_ne_u32 vcc, 0, v29")
    e.i(f"s_cbranch_vccz {done}")
    spin_tail(top, done, 1)
    e.label(done)
    stamp(4)
    e.c("gather K/V half 1: wave w takes blocks 4i+w")
    e.i(f"s_lshl_b32 s{sOFF}, s{sWAVE}, 11")
    for i in range(8):
        for p in range(2):
            e.vmem(f"buffer_load_dwordx4 {V(32+8*i+4*p,4)}, v{vK}, {S(sWS,4)}, s{sOFF} offen offset:{1024*p} sc1", ("kv", i))
        e.i(f"s_add_u32 s{sOFF}, s{sOFF}, 8192")
    lds_signal(CX)
    e.i("v_and_b32 v29, 0xff, v28")
    e.i("v_bfe_u32 v30, v28, 16, 8")
    e.i("v_max_u32 v29, v29, v30")
    for m in ("row_ror:1", "row_ror:2", "row_ror:4", "row_ror:8"):
        e.nop(2)
        e.i(f"v_max_u32_dpp v29, v29, v29 {m} row_mask:0xf bank_mask:0xf")
    e.i("v_mov_b32 v30, v29")
    e.nop(2)
    e.i("v_permlane16_swap_b32 v29, v30")
    e.i("v_max_u32 v29, v29, v30")
    e.i("v_mov_b32 v30, v29")
    e.nop(2)
    e.i("v_permlane32_swap_b32 v29, v30")
    e.i("v_max_u32 v29, v29, v30")
    e.i("v_add_u32 v30, 128, v29")
    e.i("v_lshlrev_b32 v30, 22, v30")
    e.i("v_mul_f32 v24, v24, v30")
    e.i("v_mul_f32 v25, v25, v30")
    e.i("v_sqrt_f32 v24, v24")
    e.i("v_sqrt_f32 v25, v25")
    e.i(f"s_mov_b32 s{sT1}, {hex(f32bits(opt.thr))}")
    e.i("v_max_f32 v26, v24, v25")
    e.i(f"v_cmp_nge_f32 vcc, s{sT1}, v26")
    e.i(f"v_cmp_u_f32 s[4:5], v24, v25")
    e.i(f"v_cmp_eq_u32 s[6:7], v29, s{sSPIN}" if False else "v_cmp_lt_u32 s[6:7], s2, s2" if False else "s_nop 0")
    e.i("s_or_b64 s[4:5], s[4:5], vcc")
    e.i("v_cmp_lt_u32 vcc, 0xfe, v29")
    e.i("s_or_b64 s[4:5], s[4:5], vcc")
    lds_poll(CQ, 4, 26, sleep=0)
    e.i("v_and_b32 v26, 31, v1")
    e.i(f"v_mul_u32_u24 v26, {KVS}, v26")
    for r in range(4):
        e.i(f"v_mov_b32 v{100+r}, 0x3f803f80")
    e.lds("ds_write_b128 v26, v[100:103] offset:2048")
    e.i(f"s_mul_i32 s{sT0}, s{sWAVE}, {KVS}")
    e.i(f"v_add_u32 v27, s{sT0}, v{vK}")
    for i in range(8):
        e.wait(vm=("kv", i))
        for p in range(2):
            e.lds(f"ds_write_b128 v27, {V(32+8*i+4*p,4)} offset:{4*i*KVS+1024*p}")
    e.wait_all(lg=True)
    lds_signal(CA)
    for r in range(16):
        e.i(f"v_sub_f32 v{NMA+r}, 0, v24")
        e.i(f"v_sub_f32 v{NMB+r}, 0, v25")
    for r in range(0, 32, 2):
        e.i(f"v_mov_b64 {V(OA+r,2)}, 0")
    for r in range(0, 8, 2):
        e.i(f"v_mov_b64 {V(P1+r,2)}, 0")
        e.i(f"v_mov_b64 {V(VB+24+r,2)}, 0")
    e.i(f"v_mov_b64 {V(S1+14,2)}, 0")
    lds_poll(CA, 4, 26, sleep=0)
    if opt.force_fallback:
        e.i("s_branch L_fallback")
    else:
        e.i("s_cmp_lg_u64 s[4:5], 0")
        e.i("s_cbranch_scc1 L_fallback")
    e.label("L_att_start")
    stamp(5)
    for j in range(3):
        e.lds(f"ds_read_b128 {V(KB+4*j,4)}, v{vK} offset:{j*KVS}")
        e.lds(f"ds_read_b128 {V(VB+8*j,4)}, v{vV0} offset:{j*KVS}")
        e.lds(f"ds_read_b128 {V(VB+8*j+4,4)}, v{vV1} offset:{j*KVS}")
    U = opt.unr
    nit = 64 // U
    seg0 = (29 // U)
    e.i(f"s_mov_b32 s{sCNT}, {seg0-1}")
    e.i(f"s_mov_b32 s{sSEG}, 0")
    e.wait_all(lg=True)
    e.i(f"{MF32} {V(S0,16)}, {V(KB,4)}, {V(QA,4)}, {V(NMA,16)}")
    e.nop(12)
    def step(cur, nxt, pc, pp, K, Q, NM, O, Vb, after):
        for i in range(16):
            e.i(f"v_exp_f32 v{cur+i}, v{cur+i}")
            if i == 0:
                e.i(f"v_cvt_pk_bf16_f32 v{pp+7}, v{nxt+14}, v{nxt+15}")
                e.i(f"{MF32} {V(nxt,16)}, {V(K,4)}, {V(Q,4)}, {V(NM,16)}")
                for t in after[0]: e.i(t)
            if i >= 2 and i % 2 == 0:
                j = (i - 2) // 2
                e.i(f"v_cvt_pk_bf16_f32 v{pc+j}, v{cur+2*j}, v{cur+2*j+1}")
            if i == 5:
                e.i(f"{MF32} {V(O,16)}, {V(Vb,4)}, {V(pp,4)}, {V(O,16)}")
                for t in after[1]: e.i(t)
            if i == 10:
                e.i(f"{MF32} {V(O,16)}, {V(Vb+4,4)}, {V(pp+4,4)}, {V(O,16)}")
                for t in after[2]: e.i(t)
    e.raw(".p2align 6")
    e.label("L_att_loop")
    for u in range(U):
        b3 = (u + 3) % 4
        off = (u + 3) * KVS
        last = u == U - 1
        a0 = [f"ds_read_b128 {V(KB+4*b3,4)}, v{vK} offset:{off}"]
        a1 = [f"v_add_u32 v{vK}, {U*KVS}, v{vK}"] if last else []
        a2 = [f"s_sub_u32 s{sCNT}, s{sCNT}, 1"] if last else []
        step(S0, S1, P0, P1, KB+4*(u % 4), QB, NMB, OB, VB+8*((u-1) % 4), [a0, a1, a2])
        a0 = [f"ds_read_b128 {V(VB+8*b3,4)}, v{vV0} offset:{off}"]
        a1 = [f"ds_read_b128 {V(VB+8*b3+4,4)}, v{vV1} offset:{off}"]
        a2 = ["s_waitcnt lgkmcnt(2)"] if u % 2 == 1 else []
        if last:
            a2 += [f"v_add_u32 v{vV0}, {U*KVS}, v{vV0}", f"v_add_u32 v{vV1}, {U*KVS}, v{vV1}"]
        step(S1, S0, P1, P0, KB+4*((u+1) % 4), QA, NMA, OA, VB+8*(u % 4), [a0, a1, a2])
    e.i("s_cbranch_scc0 L_att_loop")
    e.i(f"s_cmp_eq_u32 s{sSEG}, 1")
    e.i("s_cbranch_scc1 L_att_seg2")
    e.i(f"s_cmp_eq_u32 s{sSEG}, 2")
    e.i("s_cbranch_scc1 L_att_done")
    e.c("segment 0 finished: K/V half 2 must be in LDS before continuing")
    stamp(6)
    lds_poll(CH2, 4, 26, sleep=1)
    e.i(f"s_mov_b32 s{sSEG}, 1")
    e.i(f"s_mov_b32 s{sCNT}, {32//U - seg0 - 1}")
    e.i("s_branch L_att_loop")
    e.label("L_att_seg2")
    e.i("ds_add_u32 v6, v7 offset:%d" % CR0)
    e.i("s_waitcnt lgkmcnt(0)")
    e.i(f"s_mov_b32 s{sSEG}, 2")
    e.i(f"s_mov_b32 s{sCNT}, {32//U - 1}")
    e.i("s_branch L_att_loop")
    e.label("L_att_done")
    stamp(7)
    e.lg = []
    e.i(f"v_cvt_pk_bf16_f32 v{P1+7}, v{S1+14}, v{S1+15}")
    e.i(f"{MF32} {V(OB,16)}, {V(VB+24,4)}, {V(P1,4)}, {V(OB,16)}")
    e.i(f"v_rcp_f32 v24, v{OA+8}")
    e.i(f"{MF32} {V(OB,16)}, {V(VB+28,4)}, {V(P1+4,4)}, {V(OB,16)}")
    e.i(f"s_lshl_b32 s{sT0}, s{sRB}, 5")
    e.i(f"s_lshl_b32 s{sT1}, s{sCB}, 2")
    e.i(f"s_add_u32 s{sT0}, s{sT0}, s{sT1}")
    e.i(f"s_and_b32 s{sT1}, s{sWAVE}, 1")
    e.i(f"s_lshl_b32 s{sT1}, s{sT1}, 1")
    e.i(f"s_add_u32 s{sT0}, s{sT0}, s{sT1}")
    e.i(f"s_lshl_b32 s{sT0}, s{sT0}, 1")
    e.i(f"s_lshr_b32 s{sT1}, s{sWAVE}, 1")
    e.i(f"s_add_u32 s{sT0}, s{sT0}, s{sT1}")
    e.i(f"s_lshl_b32 s{sT0}, s{sT0}, 10")
    e.i(f"s_add_u32 s{sOFF}, s{sT0}, {WS_O}")
    e.i("v_lshlrev_b32 v26, 4, v1")
    for hd, O in enumerate((OA, OB)):
        if hd == 1:
            e.i(f"v_rcp_f32 v24, v{OB+8}")
            e.nop(1)
        for r in range(8):
            e.i(f"v_mul_f32 v{O+r}, v{O+r}, v24")
        for j in range(4):
            e.i(f"v_cvt_pk_bf16_f32 v{8+4*hd+j}, v{O+2*j}, v{O+2*j+1}")
        e.vmem(f"buffer_store_dwordx4 {V(8+4*hd,4)}, v26, {S(sWS,4)}, s{sOFF} offen offset:{2048*hd} sc1")
    e.i(f"s_lshl_b32 s{sT0}, s{sRB}, 8")
    e.i(f"s_lshl_b32 s{sT1}, s{sCB}, 4")
    e.i(f"s_add_u32 s{sT0}, s{sT0}, s{sT1}")
    e.i(f"s_lshl_b32 s{sT1}, s{sWAVE}, 2")
    e.i(f"s_add_u32 s{sT0}, s{sT0}, s{sT1}")
    e.i(f"s_add_u32 s{sT0}, s{sT0}, {WS_FLG+128}")
    e.i("v_mov_b32 v26, 0")
    e.i("s_mov_b64 exec, 1")
    e.wait_all(vm=True)
    e.i(f"buffer_store_dword v7, v26, {S(sWS,4)}, s{sT0} offen sc1")
    e.i("s_mov_b64 exec, -1")
    stamp(8)
    dump_stamps()
    e.i("s_endpgm")

    e.label("L_fallback")
    lds_poll(CH2, 4, 26, sleep=1)
    e.i("v_mov_b32 v24, 0xff800000")
    e.i("v_mov_b32 v25, 0xff800000")
    e.i(f"v_mov_b32 v27, v{vK}")
    e.i(f"s_mov_b32 s{sCNT}, 63")
    e.label("L_fb_loop")
    e.i(f"ds_read_b128 {V(KB,4)}, v27")
    e.i(f"v_add_u32 v27, {KVS}, v27")
    e.i("s_waitcnt lgkmcnt(0)")
    e.i(f"{MF32} {V(S0,16)}, {V(KB,4)}, {V(QA,4)}, 0")
    e.i(f"{MF32} {V(NMB,16)}, {V(KB,4)}, {V(QB,4)}, 0")
    e.nop(12)
    for r in range(0, 16, 2):
        e.i(f"v_max3_f32 v24, v24, v{S0+r}, v{S0+r+1}")
    for r in range(0, 16, 2):
        e.i(f"v_max3_f32 v25, v25, v{NMB+r}, v{NMB+r+1}")
    e.i(f"s_sub_u32 s{sCNT}, s{sCNT}, 1")
    e.i("s_cbranch_scc0 L_fb_loop")
    e.i("v_mov_b32 v26, v24")
    e.i("v_mov_b32 v27, v25")
    e.nop(2)
    e.i("v_permlane32_swap_b32 v24, v26")
    e.i("v_permlane32_swap_b32 v25, v27")
    e.i("v_max_f32 v24, v24, v26")
    e.i("v_max_f32 v25, v25, v27")
    for r in range(16):
        e.i(f"v_sub_f32 v{NMA+r}, 0, v24")
        e.i(f"v_sub_f32 v{NMB+r}, 0, v25")
    e.i("s_branch L_att_start")

    e.label("L_ffn")
    e.wait_all(lg=True)
    e.i("s_barrier")
    stamp(2)
    ACC = 8
    AF, BF = 72, 88
    vWr, vT0, vT1, vXn, vL16 = 105, 106, 107, 124, 108
    e.i(f"s_lshl_b32 s{sT2}, s{sF}, 11")
    e.i(f"s_add_u32 s{sT2}, s{sT2}, {R3}")
    e.i(f"v_lshlrev_b32 v{vL16}, 4, v1")
    e.i("v_lshlrev_b32 v109, 6, v4")
    e.i("v_lshl_add_u32 v109, v3, 5, v109")
    e.i("v_lshl_add_u32 v109, v5, 3, v109")
    e.i(f"v_add_u32 v109, s{sT2}, v109")
    e.i(f"v_add_u32 v123, s{sT2}, v123")
    e.i("v_lshlrev_b32 v110, 6, v3")
    e.i(f"v_xor_b32 v110, v110, v{vL16}")
    e.i(f"v_add_u32 v110, s{sT2}, v110")
    e.i(f"v_add_u32 v111, s{sT2}, v{vL16}")
    e.i(f"s_cmp_eq_u32 s{sWAVE}, 7")
    e.i("s_cbranch_scc1 L_w7")

    def h_store(tiles):
        e.i(f"s_mul_i32 s{sT0}, s{sRB}, 112")
        e.i(f"s_mul_i32 s{sT1}, s{sCB}, 14")
        e.i(f"s_add_u32 s{sT0}, s{sT0}, s{sT1}")
        e.i(f"s_lshl_b32 s{sT1}, s{sF}, 2")
        e.i(f"s_add_u32 s{sT0}, s{sT0}, s{sT1}")
        e.i(f"s_lshl_b32 s{sT0}, s{sT0}, 11")
        e.i(f"s_add_u32 s{sOFF}, s{sT0}, {WS_H}")
        e.i(f"s_add_u32 s{sOFF2}, s{sOFF}, 4096")
        e.nop(6)
        for ct in tiles:
            for rh in range(2):
                a = ACC + 16 * (rh * 2 + ct)
                for j in range(8):
                    e.i(f"v_cvt_pk_bf16_f32 v{a+j}, v{a+2*j}, v{a+2*j+1}")
                for j in range(8):
                    e.i(f"v_pk_max_i16 v{a+j}, v{a+j}, 0")
                for s in range(2):
                    e.vmem(f"buffer_store_dwordx4 {V(a+4*s,4)}, v{vL16}, {S(sWS,4)}, s{sOFF2 if ct else sOFF} offen offset:{(2*s+rh)*1024} sc1", "hst")

    e.vm = list(vm_f456)
    e.i(f"v_lshl_add_u32 v{vT0}, v2, 10, v123")
    e.i(f"v_xor_b32 v{vT1}, 64, v{vT0}")
    def stage2(ks, wreg, tstride, bsrc):
        s = ks % 2
        e.wait(vm=("w", ks))
        for a in range(2):
            e.lds(f"ds_write_b128 v110, {V(wreg+4*a,4)} offset:{1024*a}", ("f", ks))
        for ct in range(2):
            for t in range(2):
                e.lds(f"ds_read_b64_tr_b16 {V(AF+8*s+4*ct+2*t,2)}, v{vT1 if ct else vT0} offset:{tstride*t}", ("f", ks))
        if bsrc:
            for rh in range(2):
                e.lds(f"ds_read_b128 {V(BF+8*s+4*rh,4)}, v{vXn} offset:{rh*XN_RH - (32768 if False else 0) + ks*1056}" if rh*XN_RH + ks*1056 < 65536 else
                      f"ds_read_b128 {V(BF+8*s+4*rh,4)}, v125 offset:{ks*1056}", ("f", ks))
    e.i(f"v_add_u32 v125, {XN_RH}, v{vXn}")
    stage2(0, 128, 512, True)
    for ks in range(32):
        s = ks % 2
        if ks + 1 < 32:
            stage2(ks + 1, 128 + 8 * ((ks + 1) % PF), 512, True)
        e.wait(lg=("f", ks))
        if ks + PF < 32:
            w1_load2(ks + PF)
        for rh in range(2):
            for ct in range(2):
                a = ACC + 16 * (rh * 2 + ct)
                e.i(f"{MF32} {V(a,16)}, {V(AF+8*s+4*ct,4)}, {V(BF+8*s+4*rh,4)}, {'0' if ks == 0 else V(a,16)}")
    lds_signal(CX)
    stamp(3)
    h_store([0, 1])
    e.i("s_branch L_ffn_join")

    e.label("L_w7")
    e.vm = list(vm_w7)
    e.lg = []
    e.c("K/V projection: 16 rows x 16 cols, rq = cb>>1, V if cb&1")
    e.i(f"s_lshr_b32 s{sT0}, s{sCB}, 2")
    e.i(f"s_mul_i32 s{sT0}, s{sT0}, {XN_RH}")
    e.i(f"s_bfe_u32 s{sT1}, s{sCB}, 0x10001")
    e.i(f"s_lshl_b32 s{sOFF2}, s{sT1}, 8")
    e.i(f"s_add_u32 s{sT0}, s{sT0}, s{sOFF2}")
    e.i(f"s_add_u32 s{sT0}, s{sT0}, {R1}")
    e.i("v_lshrrev_b32 v112, 4, v1")
    e.i("v_and_b32 v113, 15, v1")
    e.i("v_mul_u32_u24 v114, 528, v112")
    e.i("v_lshl_add_u32 v114, v113, 4, v114")
    e.i(f"v_add_u32 v114, s{sT0}, v114")
    e.i("v_lshlrev_b32 v115, 8, v112")
    e.i("v_lshl_add_u32 v115, v4, 5, v115")
    e.i("v_lshl_add_u32 v115, v5, 3, v115")
    e.i(f"v_add_u32 v115, {R2}, v115")
    e.wait(vm="wkv")
    def kvreads(ks):
        s = ks % 4
        e.lds(f"ds_read_b64_tr_b16 {V(24+8*s,2)}, v115 offset:{ks*1024}", ("k", ks))
        e.lds(f"ds_read_b64_tr_b16 {V(26+8*s,2)}, v115 offset:{ks*1024+128}", ("k", ks))
        e.lds(f"ds_read_b128 {V(28+8*s,4)}, v114 offset:{ks*2112}", ("k", ks))
    for ks in range(4):
        kvreads(ks)
    e.i(f"s_bitcmp1_b32 s{sCB}, 0")
    e.i("s_cbranch_scc1 L_w7_v")
    lg_save = list(e.lg)
    def kvloop(isV):
        for ks in range(16):
            s = ks % 4
            e.wait(lg=("k", ks))
            W, Xn = V(24+8*s, 4), V(28+8*s, 4)
            a, b = (Xn, W) if isV else (W, Xn)
            e.i(f"{MF16} v[8:11], {a}, {b}, {'0' if ks == 0 else 'v[8:11]'}")
            if ks + 4 < 16:
                kvreads(ks + 4)
    def kvaddr():
        e.i(f"s_lshl_b32 s{sT0}, s{sRB}, 1")
        e.i(f"s_lshr_b32 s{sOFF2}, s{sCB}, 2")
        e.i(f"s_add_u32 s{sT0}, s{sT0}, s{sOFF2}")
        e.i(f"s_lshl_b32 s{sT0}, s{sT0}, 11")
        e.i("v_lshlrev_b32 v116, 3, v2")
        e.i("v_lshl_add_u32 v116, v113, 4, v116")
    kvloop(False)
    kvaddr()
    e.i("v_lshl_add_u32 v116, v3, 9, v116")
    e.i(f"s_lshl_b32 s{sT1}, s{sT1}, 8")
    e.i(f"s_add_u32 s{sT0}, s{sT0}, s{sT1}")
    e.i("v_cvt_pk_bf16_f32 v12, v8, v9")
    e.i("v_cvt_pk_bf16_f32 v13, v10, v11")
    e.vmem(f"buffer_store_dwordx2 v[12:13], v116, {S(sWS,4)}, s{sT0} offen sc1", "kvst")
    e.i("v_mul_f32 v14, v8, v8")
    for r in range(1, 4):
        e.i(f"v_fmac_f32 v14, v{8+r}, v{8+r}")
    e.i("v_mov_b32 v15, v14")
    e.nop(2)
    e.i("v_permlane32_swap_b32 v14, v15")
    e.i("v_add_f32 v14, v14, v15")
    e.i("v_mov_b32 v15, v14")
    e.nop(2)
    e.i("v_permlane16_swap_b32 v14, v15")
    e.i("v_add_f32 v14, v14, v15")
    for m in ("row_ror:1", "row_ror:2", "row_ror:4", "row_ror:8"):
        e.nop(2)
        e.i(f"v_max_u32_dpp v14, v14, v14 {m} row_mask:0xf bank_mask:0xf")
    e.i("v_lshrrev_b32 v14, 22, v14")
    e.i("v_subrev_u32 v14, 127, v14")
    e.i("v_max_i32 v14, 1, v14")
    e.i("v_min_i32 v14, 0xff, v14")
    e.i("s_branch L_w7_pub")
    e.label("L_w7_v")
    e.lg = lg_save
    vm_keep = list(e.vm)
    kvloop(True)
    kvaddr()
    e.i("v_lshl_add_u32 v116, v3, 8, v116")
    e.i(f"s_lshl_b32 s{sT1}, s{sT1}, 9")
    e.i(f"s_add_u32 s{sT0}, s{sT0}, s{sT1}")
    e.i(f"s_add_u32 s{sT0}, s{sT0}, 1024")
    e.i("v_cvt_pk_bf16_f32 v12, v8, v9")
    e.i("v_cvt_pk_bf16_f32 v13, v10, v11")
    e.i(f"buffer_store_dwordx2 v[12:13], v116, {S(sWS,4)}, s{sT0} offen sc1")
    e.i("v_mov_b32 v14, 1")
    e.label("L_w7_pub")
    e.i(f"s_lshl_b32 s{sT0}, s{sRB}, 3")
    e.i(f"s_add_u32 s{sT0}, s{sT0}, s{sCB}")
    e.i("v_mov_b32 v15, 0")
    e.i("s_mov_b64 exec, 1")
    e.wait_all(vm=True)
    e.i(f"buffer_store_byte v14, v15, {S(sDBG,4)}, s{sT0} offen sc1")
    e.i("s_mov_b64 exec, -1")
    stamp(9)
    e.i(f"v_lshl_add_u32 v{vT0}, v2, 9, v109")
    e.i(f"v_add_u32 v125, {XN_RH}, v{vXn}")
    def stage1(ks):
        s = ks % 2
        e.lds(f"ds_write_b128 v111, {V(128+4*ks,4)}", ("f", ks))
        for t in range(2):
            e.lds(f"ds_read_b64_tr_b16 {V(AF+8*s+2*t,2)}, v{vT0} offset:{256*t}", ("f", ks))
        e.lds(f"ds_read_b128 {V(BF+8*s,4)}, v{vXn} offset:{ks*1056}", ("f", ks))
        e.lds(f"ds_read_b128 {V(BF+8*s+4,4)}, v125 offset:{ks*1056}", ("f", ks))
    stage1(0)
    for ks in range(32):
        s = ks % 2
        if ks + 1 < 32:
            stage1(ks + 1)
        e.wait(lg=("f", ks))
        for rh in range(2):
            a = ACC + 32 * rh
            e.i(f"{MF32} {V(a,16)}, {V(AF+8*s,4)}, {V(BF+8*s+4*rh,4)}, {'0' if ks == 0 else V(a,16)}")
    lds_signal(CX)
    stamp(3)
    h_store([0])

    e.label("L_ffn_join")
    e.i(f"s_lshl_b32 s{sT0}, s{sRB}, 8")
    e.i(f"s_add_u32 s47, s{sT0}, {WS_FLG}")
    e.i(f"s_lshl_b32 s{sT1}, s{sCB}, 4")
    e.i(f"s_add_u32 s{sT0}, s47, s{sT1}")
    e.i(f"s_lshl_b32 s{sT1}, s{sF}, 2")
    e.i(f"s_add_u32 s{sT0}, s{sT0}, s{sT1}")
    e.i("v_mov_b32 v112, 0")
    e.i("s_mov_b64 exec, 1")
    e.wait_all(vm=True, lg=True)
    e.vmem(f"buffer_store_dword v7, v112, {S(sWS,4)}, s{sT0} offen sc1")
    e.i("s_mov_b64 exec, -1")
    stamp(4)
    PW = 8
    e.i("v_lshrrev_b32 v104, 3, v1")
    e.i("v_lshlrev_b32 v104, 10, v104")
    e.i("v_and_b32 v112, 7, v1")
    e.i("v_lshl_add_u32 v104, v112, 4, v104")
    e.i(f"s_mul_i32 s{sOFF}, s{sF}, {448*1024}")
    e.i(f"s_lshl_b32 s{sT0}, s{sCB}, 7")
    e.i(f"s_add_u32 s{sOFF}, s{sOFF}, s{sT0}")
    def w2_load(ks):
        for a in range(2):
            r = 128 + 8 * (ks % PW) + 4 * a
            e.vmem(f"buffer_load_dwordx4 {V(r,4)}, v104, {S(sW2,4)}, s{sOFF} offen", ("w", ks))
            e.i(f"s_add_u32 s{sOFF}, s{sOFF}, 8192")
    e.c("K/V half 2 -> LDS (xn region) once xn is dead and the K/V flags were seen")
    lds_poll(CX, 8, 113, sleep=2)
    e.i(f"s_lshl_b32 s{sOFF2}, s{sF}, 11")
    e.i(f"s_add_u32 s{sOFF2}, s{sOFF2}, 0x10000")
    for i in range(8):
        for p in range(2):
            e.vmem(f"buffer_load_dwordx4 {V(192+8*i+4*p,4)}, v{vL16}, {S(sWS,4)}, s{sOFF2} offen offset:{1024*p} sc1", ("kv", i))
        e.i(f"s_add_u32 s{sOFF2}, s{sOFF2}, 8192")
    for ks in range(PW):
        w2_load(ks)
    e.i("v_and_b32 v113, 31, v1")
    e.i(f"v_mul_u32_u24 v113, {KVS}, v113")
    e.i(f"v_add_u32 v113, {R1}, v113")
    for r in range(4):
        e.i(f"v_mov_b32 v{116+r}, 0x3f803f80")
    e.lds("ds_write_b128 v113, v[116:119] offset:2048")
    e.i(f"s_mul_i32 s{sT0}, s{sF}, {KVS}")
    e.i(f"s_add_u32 s{sT0}, s{sT0}, {R1}")
    e.i(f"v_add_u32 v113, s{sT0}, v{vL16}")
    for i in range(8):
        e.wait(vm=("kv", i))
        for p in range(2):
            e.lds(f"ds_write_b128 v113, {V(192+8*i+4*p,4)} offset:{4*i*KVS+1024*p}")
    e.wait_all(lg=True)
    lds_signal(CH2)
    stamp(5)
    e.c("wait for h of producers 2f, 2f+1")
    e.i("v_lshlrev_b32 v112, 2, v112")
    e.i(f"s_lshl_b32 s{sT1}, s{sF}, 5")
    e.i(f"s_add_u32 s{sT1}, s{sT1}, s47")
    flag_poll(112, sT1, 113)
    stamp(6)
    e.i(f"s_mul_i32 s{sT0}, s{sRB}, 112")
    e.i(f"s_mul_i32 s{sT1}, s{sF}, 28")
    e.i(f"s_add_u32 s{sT0}, s{sT0}, s{sT1}")
    e.i(f"s_lshl_b32 s{sT0}, s{sT0}, 11")
    e.i(f"s_add_u32 s{sOFF2}, s{sT0}, {WS_H}")
    def h_load(ks):
        for rh in range(2):
            r = 192 + 8 * (ks % PW) + 4 * rh
            e.vmem(f"buffer_load_dwordx4 {V(r,4)}, v{vL16}, {S(sWS,4)}, s{sOFF2} offen offset:{1024*rh} sc1", ("h", ks))
        e.i(f"s_add_u32 s{sOFF2}, s{sOFF2}, 2048")
    for ks in range(PW):
        h_load(ks)
    e.i(f"v_lshl_add_u32 v{vT0}, v2, 9, v123")
    e.i(f"v_xor_b32 v{vT1}, 64, v{vT0}")
    stage2(0, 128, 1024, False)
    for ks in range(28):
        s = ks % 2
        if ks + 1 < 28:
            stage2(ks + 1, 128 + 8 * ((ks + 1) % PW), 1024, False)
        e.wait(lg=("f", ks), vm=("h", ks))
        if ks + PW < 28:
            w2_load(ks + PW)
        for rh in range(2):
            for ct in range(2):
                a = ACC + 16 * (rh * 2 + ct)
                e.i(f"{MF32} {V(a,16)}, {V(AF+8*s+4*ct,4)}, {V(192+8*(ks%PW)+4*rh,4)}, {'0' if ks == 0 else V(a,16)}")
        if ks + PW < 28:
            h_load(ks + PW)
    stamp(7)
    e.c("wo slice (own 32 columns) + residual x prefetch")
    e.i("v_lshrrev_b32 v104, 2, v1")
    e.i("v_lshlrev_b32 v104, 10, v104")
    e.i("v_lshl_add_u32 v104, v5, 4, v104")
    e.i(f"s_lshl_b32 s{sOFF}, s{sCB}, 7")
    e.i(f"s_and_b32 s{sT0}, s{sF}, 1")
    e.i(f"s_lshl_b32 s{sT0}, s{sT0}, 6")
    e.i(f"s_add_u32 s{sOFF}, s{sOFF}, s{sT0}")
    e.i(f"s_mov_b32 s{sOFF2}, s{sOFF}")
    for ks in range(32):
        e.vmem(f"buffer_load_dwordx4 {V(128+4*ks,4)}, v104, {S(sWO,4)}, s{sOFF} offen", ("wo", ks))
        e.i(f"s_add_u32 s{sOFF}, s{sOFF}, 16384")
    e.i("v_and_b32 v3, 31, v1")
    e.i("v_lshlrev_b32 v3, 10, v3")
    e.i("v_lshl_add_u32 v3, v2, 3, v3")
    e.i(f"s_lshl_b32 s{sT0}, s{sRB}, 1")
    e.i(f"s_lshr_b32 s{sT1}, s{sF}, 1")
    e.i(f"s_add_u32 s{sT0}, s{sT0}, s{sT1}")
    e.i(f"s_lshl_b32 s{sT0}, s{sT0}, 15")
    e.i(f"s_add_u32 s{sOFF2}, s{sOFF2}, s{sT0}")
    G, XR = 104, 120
    e.c("reduce f partials through R0")
    lds_poll(CR0, 4, 113, sleep=4)
    e.i(f"s_lshl_b32 s{sT0}, s{sF}, 12")
    e.i(f"v_add_u32 v113, s{sT0}, v{vL16}")
    for t in range(4):
        for q in range(4):
            e.lds(f"ds_write_b128 v113, {V(ACC+16*t+4*q,4)} offset:{t*16384+q*1024}")
    e.wait_all(lg=True)
    lds_signal(CF)
    e.i(f"s_lshl_b32 s{sT0}, s{sF}, 14")
    e.i(f"v_add_u32 v113, s{sT0}, v{vL16}")
    e.i(f"v_lshl_add_u32 v4, v2, 8, v109")
    e.i("v_mov_b32 v5, v111")
    e.i(f"v_mov_b32 v2, v{vL16}")
    for ks in range(32):
        e.wait(vm=("wo", ks))
        e.lds(f"ds_write_b128 v5, {V(128+4*ks,4)}", "wo")
        for t in range(2):
            e.lds(f"ds_read_b64_tr_b16 {V(128+4*ks+2*t,2)}, v4 offset:{512*t}", "wo")
    lds_poll(CF, 4, 72, sleep=1)
    for src in range(4):
        for q in range(4):
            e.lds(f"ds_read_b128 {V(ACC+16*src+4*q,4)}, v113 offset:{src*4096+q*1024}", ("r", src))
    for q in range(4):
        e.vmem(f"buffer_load_dwordx2 {V(XR+2*q,2)}, v3, {S(sX,4)}, s{sOFF2} offen offset:{16*q}", "xr")
    e.wait_all(lg=True)
    e.i(f"s_mov_b32 s{sT1}, {hex(f32bits(-math.log2(math.e)))}")
    for r in range(16):
        e.i(f"v_add_f32 v{ACC+r}, v{ACC+r}, v{ACC+16+r}")
        e.i(f"v_add_f32 v{ACC+32+r}, v{ACC+32+r}, v{ACC+48+r}")
    for r in range(16):
        e.i(f"v_add_f32 v{ACC+r}, v{ACC+r}, v{ACC+32+r}")
    for r in range(16):
        e.i(f"v_mul_f32 v{ACC+16+r}, s{sT1}, v{ACC+r}")
    for r in range(16):
        e.i(f"v_exp_f32 v{ACC+16+r}, v{ACC+16+r}")
    for r in range(16):
        e.i(f"v_add_f32 v{ACC+16+r}, 1.0, v{ACC+16+r}")
    for r in range(16):
        e.i(f"v_rcp_f32 v{ACC+16+r}, v{ACC+16+r}")
    for r in range(16):
        e.i(f"v_mul_f32 v{G+r}, v{ACC+r}, v{ACC+16+r}")
    stamp(8)
    e.c("wait for o of the whole row group")
    e.i("v_and_b32 v4, 31, v1")
    e.i("v_lshlrev_b32 v4, 2, v4")
    e.i(f"s_add_u32 s{sT1}, s47, 128")
    e.i(f"s_lshl_b32 s{sT0}, s{sRB}, 6")
    e.i(f"s_lshr_b32 s{sOFF}, s{sF}, 1")
    e.i(f"s_add_u32 s{sT0}, s{sT0}, s{sOFF}")
    e.i(f"s_lshl_b32 s{sT0}, s{sT0}, 10")
    e.i(f"s_add_u32 s{sOFF}, s{sT0}, {WS_O}")
    flag_poll(4, sT1, 5, sleep=4)
    NO = 20
    def o_load(ks):
        e.vmem(f"buffer_load_dwordx4 {V(24+4*(ks%NO),4)}, v2, {S(sWS,4)}, s{sOFF} offen offset:{2048*(ks%2)} sc1", ("o", ks))
        if ks % 2 == 1:
            e.i(f"s_add_u32 s{sOFF}, s{sOFF}, 4096")
    for ks in range(NO):
        o_load(ks)
    for ks in range(32):
        e.wait(vm=("o", ks))
        e.i(f"{MF32} v[8:23], {V(128+4*ks,4)}, {V(24+4*(ks%NO),4)}, {'0' if ks == 0 else 'v[8:23]'}")
        if ks + NO < 32:
            o_load(ks + NO)
    for t in range(8):
        e.i(f"v_lshlrev_b32 v{128+2*t}, 16, v{XR+t}")
        e.i(f"v_and_b32 v{129+2*t}, s{sMASK}, v{XR+t}")
    for r in range(16):
        e.i(f"v_fmac_f32 v{128+r}, v{8+r}, v{G+r}")
    for q in range(4):
        for j in range(2):
            e.i(f"v_cvt_pk_bf16_f32 v{XR+2*q+j}, v{128+4*q+2*j}, v{128+4*q+2*j+1}")
        e.vmem(f"buffer_store_dwordx2 {V(XR+2*q,2)}, v3, {S(sOUT,4)}, s{sOFF2} offen offset:{16*q}")
    if opt.stamps:
        e.wait_all(vm=True)
        e.i(f"s_memtime {S(sSTAMP+2,2)}")
    dump_stamps()
    e.label("L_end")
    e.i("s_endpgm")
    return e

def wrap(e):
    hdr = open("cdna_kernels/%s.s.ref" % NAME).read().split("\n")
    top = [l for l in hdr if l.startswith(";") and "@launch" not in l]
    out = "\n".join(top) + f"\n; @launch grid=(256,1,1) block=(512,1,1) lds={LDS_BYTES}\n"
    out += f""".amdgcn_target "amdgcn-amd-amdhsa--gfx950"
.text
.globl {NAME}_kernel
.p2align 8
.type {NAME}_kernel,@function
{NAME}_kernel:
"""
    out += e.text()
    out += f""".section .rodata,"a"
.p2align 6
.amdhsa_kernel {NAME}_kernel
  .amdhsa_next_free_vgpr 256
  .amdhsa_next_free_sgpr 102
  .amdhsa_accum_offset 256
  .amdhsa_group_segment_fixed_size 0
  .amdhsa_kernarg_size 88
  .amdhsa_user_sgpr_count 2
  .amdhsa_user_sgpr_kernarg_segment_ptr 1
  .amdhsa_system_sgpr_workgroup_id_x 1
.end_amdhsa_kernel
"""
    return out

if __name__ == "__main__":
    opt = Opt()
    outp = sys.argv[1]
    for a in sys.argv[2:]:
        k, v = a.split("=")
        setattr(opt, k, type(getattr(opt, k))(eval(v)))
    e = gen(opt)
    bad = check_cfg(e.lines)
    print("hazards:", bad, "lines:", len(e.lines))
    open(outp, "w").write(wrap(e))
```

```python
import re

TRANS = ("v_exp_f32", "v_log_f32", "v_rcp_f32", "v_rsq_f32", "v_sqrt_f32", "v_sin_f32", "v_cos_f32")


def V(a, n=1):
    return f"v{a}" if n == 1 else f"v[{a}:{a+n-1}]"


def S(a, n=1):
    return f"s{a}" if n == 1 else f"s[{a}:{a+n-1}]"


class E:
    def __init__(self):
        self.lines = []
        self.vm = []
        self.lg = []

    def i(self, t):
        self.lines.append("    " + t)

    def c(self, t):
        self.lines.append("    ; " + t)

    def label(self, l):
        self.lines.append(l + ":")

    def raw(self, t):
        self.lines.append(t)

    def vmem(self, t, tag=None):
        if len(self.vm) >= 60:
            self.i("s_waitcnt vmcnt(56)")
            del self.vm[: len(self.vm) - 56]
        self.i(t)
        self.vm.append(tag)

    def lds(self, t, tag=None, guard=True):
        if guard and len(self.lg) >= 14:
            self.i("s_waitcnt lgkmcnt(8)")
            del self.lg[: len(self.lg) - 8]
        if len(self.lg) >= 15:
            self.i("s_waitcnt lgkmcnt(14)")
            del self.lg[: len(self.lg) - 14]
        self.i(t)
        self.lg.append(tag)

    def _wait(self, q, tag, name, mx):
        idx = [k for k, t in enumerate(q) if t == tag]
        if not idx:
            return None
        last = idx[-1]
        n = len(q) - 1 - last
        n2 = min(n, mx)
        del q[: len(q) - n2]
        return f"{name}({n2})"

    def wait(self, vm=None, lg=None):
        parts = []
        if vm is not None:
            p = self._wait(self.vm, vm, "vmcnt", 63)
            if p:
                parts.append(p)
        if lg is not None:
            p = self._wait(self.lg, lg, "lgkmcnt", 15)
            if p:
                parts.append(p)
        if parts:
            self.i("s_waitcnt " + " ".join(parts))

    def wait_all(self, vm=False, lg=False):
        parts = []
        if vm:
            parts.append("vmcnt(0)")
            self.vm = []
        if lg:
            parts.append("lgkmcnt(0)")
            self.lg = []
        self.i("s_waitcnt " + " ".join(parts))

    def nop(self, n):
        while n > 0:
            k = min(n, 16)
            self.i(f"s_nop {k-1}")
            n -= k

    def text(self):
        return "\n".join(self.lines) + "\n"


_reg = re.compile(r"^(-|\|)?(abs\()?([vsa])(\d+|\[(\d+):(\d+)\])\)?\|?$")


def regs(tok):
    tok = tok.strip()
    if tok in ("vcc", "exec", "m0", "scc"):
        return {(tok, 0)}
    if tok in ("vcc_lo", "vcc_hi"):
        return {("vcc", 0)}
    if tok in ("exec_lo", "exec_hi"):
        return {("exec", 0)}
    m = _reg.match(tok)
    if not m:
        return set()
    k = m.group(3)
    if m.group(5) is not None:
        return {(k, r) for r in range(int(m.group(5)), int(m.group(6)) + 1)}
    return {(k, int(m.group(4)))}


def parse(line):
    t = line.split(";")[0].strip()
    if not t or t.endswith(":") or t.startswith("."):
        return None
    sp = t.split(None, 1)
    op = sp[0]
    rest = sp[1] if len(sp) > 1 else ""
    ops, cur, d = [], "", 0
    for ch in rest:
        if ch in "[(":
            d += 1
        if ch in "])":
            d -= 1
        if ch == "," and d == 0:
            ops.append(cur.strip())
            cur = ""
        else:
            cur += ch
    if cur.strip():
        ops.append(cur.strip())
    mods = ""
    if ops:
        last = ops[-1].split(None, 1)
        ops[-1] = last[0]
        mods = last[1] if len(last) > 1 else ""
    I = dict(op=op, ops=ops, mods=mods, text=t, w=set(), r=set(), kind="other", ws=1)
    R = [regs(o) for o in ops]
    if op == "s_nop":
        I["ws"] = int(ops[0], 0) + 1
    elif op.startswith("v_mfma"):
        I["kind"] = "mfma"
        I["passes"] = 8 if "32x32x16" in op else 4
        I["w"] = R[0]
        I["A"], I["B"], I["C"] = R[1], R[2], R[3]
        I["r"] = R[1] | R[2] | R[3]
    elif op.startswith("v_"):
        I["kind"] = "valu"
        if op.startswith("v_permlane") and "swap" in op:
            I["w"] = R[0] | R[1]
            I["r"] = R[0] | R[1]
        else:
            nd = 1
            if re.match(r"v_(add|sub|subrev|addc|subb)_co", op):
                nd = 2
            I["w"] = set().union(*R[:nd])
            I["r"] = set().union(*R[nd:]) if len(R) > nd else set()
            if op.startswith(("v_fmac", "v_dot2c", "v_writelane")) or "_dpp" in op or "UNUSED_PRESERVE" in mods:
                I["r"] |= R[0]
            if op.startswith("v_cmpx"):
                I["w"] |= {("exec", 0)}
        I["dpp"] = "_dpp" in op
        I["trans"] = op.replace("_e32", "").replace("_e64", "") in TRANS
    elif op.startswith("ds_"):
        I["kind"] = "mem"
        if op.startswith(("ds_read", "ds_bpermute", "ds_swizzle")) or "_rtn" in op:
            I["w"] = R[0]
            I["r"] = set().union(*R[1:])
        else:
            I["r"] = set().union(*R)
    elif op.startswith(("buffer_", "global_")):
        I["kind"] = "mem"
        I["vmem"] = True
        islds = " lds" in (" " + mods) or "load_lds" in op
        I["dma"] = islds
        if "load" in op and not islds:
            I["w"] = R[0]
            I["r"] = set().union(*R[1:])
        else:
            I["r"] = set().union(*R) if R else set()
            if "store" in op and ("x4" in op or "x3" in op):
                I["wide"] = R[0] if op.startswith("buffer") else R[1]
    elif op.startswith("s_"):
        I["kind"] = "salu"
        if op.startswith(("s_cmp", "s_cbranch", "s_branch", "s_waitcnt", "s_barrier", "s_sleep", "s_setprio", "s_endpgm")):
            I["r"] = set().union(*R) if R else set()
        else:
            I["w"] = R[0] if R else set()
            I["r"] = set().union(*R[1:]) if len(R) > 1 else set()
    return I


def vg(s):
    return {x for x in s if x[0] in "va"}


def sg(s):
    return {x for x in s if x[0] in ("s", "vcc")}


def need(P, C):
    n = 0
    pk, ck = P["kind"], C["kind"]
    if pk == "valu":
        wv = vg(P["w"])
        ws = sg(P["w"])
        if ck == "mfma" and wv & C["r"]:
            n = max(n, 2)
        if ck == "valu":
            if P["trans"] and wv & C["r"] and not C["trans"]:
                n = max(n, 1)
            if C["dpp"] and wv & C["r"]:
                n = max(n, 2)
            if C["op"].startswith("v_permlane") and wv & C["r"]:
                n = max(n, 2)
            if C["op"].startswith(("v_readlane", "v_readfirstlane")) and wv & C["r"]:
                n = max(n, 1)
            if ws & C["r"]:
                n = max(n, 4 if C["op"].startswith(("v_readlane", "v_writelane")) else 2)
            if C["op"].startswith("v_cndmask") and len(C["ops"]) == 4 and ws & regs(C["ops"][3]):
                n = max(n, 2)
            if ("sdwa" in P["op"] or "op_sel" in P["mods"]) and not P["op"].startswith("v_pk") and wv & (C["r"] | C["w"]):
                n = max(n, 1)
        if ck == "mem" and C.get("vmem") and ws & C["r"]:
            n = max(n, 5)
        if ("exec", 0) in P["w"]:
            if ck == "mfma":
                n = max(n, 4)
            if ck == "valu" and C["dpp"]:
                n = max(n, 5)
    if pk == "mfma":
        p8 = P["passes"] == 8
        D = P["w"]
        if ck == "mfma":
            if D & (C["A"] | C["B"]):
                n = max(n, 12 if p8 else 8)
            if D & C["C"] and not (D == C["C"] and P["passes"] == C["passes"]):
                n = max(n, 10 if p8 else 6)
            if D & C["w"] and not (D == C["w"]):
                n = max(n, 10 if p8 else 6)
        if ck == "valu":
            if D & (C["r"] | C["w"]):
                n = max(n, 12 if p8 else 8)
            if P["C"] & C["w"]:
                n = max(n, 7 if p8 else 3)
        if ck == "mem" and D & (C["r"] | C["w"]):
            n = max(n, 12 if p8 else 8)
    if pk == "salu" and ("m0", 0) in P["w"] and ck == "mem" and C.get("dma"):
        n = max(n, 1)
    if pk == "mem" and P.get("wide"):
        if P["wide"] & C["w"]:
            n = max(n, 2 if ck in ("valu", "mfma") else 1)
    return n


def check_seq(lines, name=""):
    ins = [x for x in (parse(l) for l in lines) if x]
    bad = 0
    for k, C in enumerate(ins):
        dist = 0
        for j in range(k - 1, max(-1, k - 24), -1):
            P = ins[j]
            n = need(P, C)
            if n > dist:
                print(f"HAZARD[{name}] need {n} have {dist}:\n   {P['text']}\n   {C['text']}")
                bad += 1
            dist += P["ws"]
            if dist >= 20:
                break
    return bad


def check_cfg(lines):
    bad = check_seq(lines, "linear")
    labels = {}
    for k, l in enumerate(lines):
        t = l.strip()
        if t.endswith(":") and not t.startswith(";"):
            labels[t[:-1]] = k
    for k, l in enumerate(lines):
        t = l.split(";")[0].strip()
        m = re.match(r"s_(cbranch_\w+|branch)\s+(\S+)", t)
        if m and m.group(2) in labels:
            tgt = labels[m.group(2)]
            seq = lines[max(0, k - 30): k + 1] + lines[tgt: tgt + 30]
            a = [x for x in (parse(z) for z in lines[max(0, k - 30): k + 1]) if x]
            b = [x for x in (parse(z) for z in lines[tgt: tgt + 30]) if x]
            for ci, C in enumerate(b):
                dist = sum(x["ws"] for x in b[:ci])
                for P in reversed(a):
                    if dist >= 20:
                        break
                    n = need(P, C)
                    if n > dist:
                        print(f"HAZARD[edge {m.group(2)}] need {n} have {dist}:\n   {P['text']}\n   {C['text']}")
                        bad += 1
                    dist += P["ws"]
    return bad
```

```python
import sys, math, struct
from asmlib import *

NAME = "recurrent_scan__grouped_kv_mqa__dense_activation_relu__prompt"
MF32 = "v_mfma_f32_32x32x16_bf16"
MF16 = "v_mfma_f32_16x16x32_bf16"

def f32bits(x):
    return struct.unpack("<I", struct.pack("<f", x))[0]

KVS = 2080
R0 = 0
R1 = 32 * KVS
XN_RH = 64 * 528
R2 = R1 + 2 * XN_RH
R3 = R2 + 16384
R4 = R3 + 8192
LDS_BYTES = R4 + 64
CXN, C6, CQ, CA, CX, CH2, CR0, CWO, CAD, CF, CKV, CKM, CTAG = [4 * i for i in range(13)]
assert R2 % 128 == 0 and R3 % 128 == 0
WS_KV = 0
WS_EPOCH = 0x30000
WS_KVF = 0x38000
WS_HF = 0x40000
WS_OF = 0x50000
WS_O = 0x100000
WS_H = 0x400000
WS_STAMP = 0x1000000
sX, sWQ, sWKV, sWO, sW1, sW2, sOUT, sDBG, sWS = 8, 12, 16, 20, 24, 28, 32, 36, 40
sMASK, sF, sSPIN, sFLG = 44, 45, 46, 47
sWAVE, sRB, sCB, sT0, sT1, sT2, sOFF, sOFF2, sCNT, sSEG = 70, 71, 72, 73, 74, 75, 76, 77, 78, 79
sRG, sJ, sTAG = 48, 49, 50
sSTAMP = 80

class Opt:
    stamps = False
    unr = 8
    force_fallback = False
    thr = 40.0
    exit_at = 0
    spin = 0x20000
    warm = True
    look = 2
    pace = True
    kvsleep = 4
    front = False
    early_w = 0
    nowait = False
    pf0 = 8
    nowr = False
    map24 = False
    noload = False
    lsleep = 1
    mid = False

def gen(opt):
    e = E()
    def stamp(k, late=False):
        if late and opt.front:
            return
        if opt.stamps:
            e.i(f"s_memrealtime {S(sSTAMP+2*k,2)}")
    def cstamp(k):
        if opt.stamps:
            e.i(f"s_memtime {S(sSTAMP+2*k,2)}")
    def dump_stamps():
        if not opt.stamps:
            return
        e.wait_all(vm=True, lg=True)
        e.i("v_mov_b32 v2, 0")
        for k in range(22):
            e.i(f"v_writelane_b32 v2, s{sSTAMP+k}, {k}")
        e.i(f"s_lshl_b32 s{sT0}, s2, 3")
        e.i(f"s_add_u32 s{sT0}, s{sT0}, s{sWAVE}")
        e.i(f"s_lshl_b32 s{sT0}, s{sT0}, 8")
        e.i(f"s_add_u32 s{sT0}, s{sT0}, {WS_STAMP}")
        e.i("v_lshlrev_b32 v3, 2, v1")
        e.i(f"buffer_store_dword v2, v3, {S(sWS,4)}, s{sT0} offen")
    def exit_if(k):
        if opt.exit_at == k:
            dump_stamps()
            e.i("s_endpgm")

    uid = [0]
    def lbl(p):
        uid[0] += 1
        return f"L_{p}_{uid[0]}"
    def spin_init():
        e.i(f"s_mov_b32 s{sSPIN}, {hex(opt.spin)}")
    def spin_tail(top, done, sleep):
        e.i(f"s_sub_u32 s{sSPIN}, s{sSPIN}, 1")
        e.i(f"s_cbranch_scc1 {done}")
        if sleep:
            e.i(f"s_sleep {sleep}")
        e.i(f"s_branch {top}")
    def lds_signal(off):
        e.i("s_mov_b64 exec, 1")
        e.lds(f"ds_add_u32 v6, v7 offset:{off}")
        e.i("s_mov_b64 exec, -1")
    def lds_poll(off, n, vt, sleep=1, mult=16):
        top, done = lbl("lp"), lbl("lpd")
        e.i(f"s_mov_b32 s{sSPIN}, {hex(opt.spin*mult)}")
        e.label(top)
        e.i(f"ds_read_b32 v{vt}, v6 offset:{off}")
        e.wait_all(lg=True)
        e.i(f"v_readfirstlane_b32 s{sT0}, v{vt}")
        e.i(f"s_cmp_ge_u32 s{sT0}, {n}")
        e.i(f"s_cbranch_scc1 {done}")
        spin_tail(top, done, sleep)
        e.label(done)
    def flag_poll(voff, soff, vt, sleep=2):
        top, done = lbl("fp"), lbl("fpd")
        spin_init()
        e.label(top)
        e.i(f"buffer_load_dword v{vt}, v{voff}, {S(sWS,4)}, s{soff} offen sc1")
        e.wait_all(vm=True)
        e.i(f"v_cmp_ne_u32 vcc, s{sTAG}, v{vt}")
        e.i(f"s_cbranch_vccz {done}")
        spin_tail(top, done, sleep)
        e.label(done)
    def get_tag(vt):
        e.i(f"ds_read_b32 v{vt}, v6 offset:{CTAG}")
        e.wait_all(lg=True)
        e.i(f"v_readfirstlane_b32 s{sTAG}, v{vt}")
    def slice_dma(srd, wave_s, vsw, tag):
        e.i(f"s_lshl_b32 s{sOFF}, s{wave_s}, 17")
        e.i(f"s_lshl_b32 s{sT0}, s{sCB}, 7")
        e.i(f"s_add_u32 s{sOFF}, s{sOFF}, s{sT0}")
        e.i(f"s_lshl_b32 s{sT1}, s{wave_s}, 14")
        for i in range(16):
            e.i(f"s_mov_b32 m0, s{sT1}")
            e.i(f"s_add_u32 s{sT1}, s{sT1}, 1024")
            e.vmem(f"buffer_load_dwordx4 v{vsw}, {S(srd,4)}, s{sOFF} offen lds", tag)
            e.i(f"s_add_u32 s{sOFF}, s{sOFF}, 8192")
    def kv_dma(wave_s, half, vl16, soff):
        e.i(f"s_lshl_b32 s{soff}, s{wave_s}, 11")
        if half:
            e.i(f"s_add_u32 s{soff}, s{soff}, 0x10000")
        e.i(f"s_mul_i32 s{sT1}, s{wave_s}, {KVS}")
        if half:
            e.i(f"s_add_u32 s{sT1}, s{sT1}, {R1}")
        for i in range(8):
            e.i(f"s_mov_b32 m0, s{sT1}")
            e.i(f"s_add_u32 s{sT1}, s{sT1}, {4*KVS}")
            for p in range(2):
                e.vmem(f"buffer_load_dwordx4 v{vl16}, {S(sWS,4)}, s{soff} offen offset:{1024*p} sc1 lds", "kv")
            e.i(f"s_add_u32 s{soff}, s{soff}, 8192")
    def const_spots(base, va, vd):
        e.i(f"v_and_b32 v{va}, 31, v1")
        e.i(f"v_mul_u32_u24 v{va}, {KVS}, v{va}")
        e.i(f"v_lshl_add_u32 v{va}, v2, 4, v{va}")
        if base:
            e.i(f"v_add_u32 v{va}, {base}, v{va}")
        e.i(f"v_subrev_u32 v{vd}, 1, v2")
        e.i(f"v_and_b32 v{vd}, 0x3f803f80, v{vd}")
        for r in range(1, 4):
            e.i(f"v_mov_b32 v{vd+r}, v{vd}")

    e.i("s_cmp_ge_u32 s2, 256")
    e.i("s_cbranch_scc1 L_end")
    e.i("s_load_dwordx16 s[48:63], s[0:1], 0")
    e.i("s_load_dwordx4 s[64:67], s[0:1], 64")
    e.i("s_load_dwordx2 s[68:69], s[0:1], 80")
    stamp(0)
    e.i("v_lshrrev_b32 v2, 6, v0")
    e.i("v_and_b32 v1, 63, v0")
    e.i(f"v_readfirstlane_b32 s{sWAVE}, v2")
    e.i(f"s_and_b32 s{sT0}, s2, 7")
    e.i(f"s_lshr_b32 s{sT1}, s2, 3")
    if not opt.map24:
        e.i(f"s_and_b32 s{sCB}, s{sT1}, 7")
        e.i(f"s_lshr_b32 s{sT1}, s{sT1}, 3")
        e.i(f"s_lshl_b32 s{sRB}, s{sT0}, 2")
        e.i(f"s_add_u32 s{sRB}, s{sRB}, s{sT1}")
    else:
        e.i(f"s_and_b32 s{sCB}, s{sT1}, 3")
        e.i(f"s_and_b32 s{sRB}, s{sT0}, 1")
        e.i(f"s_lshl_b32 s{sRB}, s{sRB}, 2")
        e.i(f"s_add_u32 s{sCB}, s{sCB}, s{sRB}")
        e.i(f"s_lshr_b32 s{sT1}, s{sT1}, 2")
        e.i(f"s_lshr_b32 s{sRB}, s{sT0}, 1")
        e.i(f"s_lshl_b32 s{sRB}, s{sRB}, 3")
        e.i(f"s_add_u32 s{sRB}, s{sRB}, s{sT1}")
    e.i(f"s_mov_b32 s{sMASK}, 0xffff0000")
    e.i(f"s_and_b32 s{sF}, s{sWAVE}, 3")
    e.i(f"s_and_b32 s{sT2}, s{sCB}, 6")
    e.i(f"s_add_u32 s{sT2}, s{sT2}, s{sWAVE}")
    e.i(f"s_add_u32 s{sT2}, s{sT2}, 2")
    e.i(f"s_and_b32 s{sT2}, s{sT2}, 7")
    e.i("v_lshrrev_b32 v2, 3, v1")
    e.i("v_and_b32 v3, 7, v1")
    e.i("v_lshlrev_b32 v4, 10, v2")
    e.i("v_lshl_add_u32 v4, v3, 4, v4")
    e.i(f"s_lshl_b32 s{sOFF}, s{sRB}, 3")
    e.i(f"s_add_u32 s{sOFF}, s{sOFF}, s{sT2}")
    e.i(f"s_lshl_b32 s{sOFF}, s{sOFF}, 13")
    for srd, size in ((sX, 2048*512*2), (sWQ, 512*512*2), (sWKV, 512*16*2), (sWO, 512*512*2), (sW1, 512*1792*2),
                      (sW2, 1792*512*2), (sOUT, 2048*512*2), (sDBG, 256), (sWS, 0x10000000)):
        e.i(f"s_mov_b32 s{srd+2}, {hex(size)}")
        e.i(f"s_mov_b32 s{srd+3}, 0x20000")
    e.i(f"v_mov_b32 v6, {R4}")
    e.i("v_mov_b32 v7, 1")
    e.i("v_mov_b32 v108, 0")
    e.i("v_mov_b32 v109, 0")
    e.i("v_and_b32 v105, 7, v1")
    e.i("v_lshl_add_u32 v105, v105, 3, v6")
    e.i("ds_write_b64 v105, v[108:109]")
    e.i(f"s_bitcmp1_b32 s{sCB}, 0")
    e.i("s_waitcnt lgkmcnt(0)")
    e.i(f"s_mov_b64 {S(sX,2)}, s[48:49]")
    for i in range(8):
        e.vmem(f"buffer_load_dwordx4 {V(8+4*i,4)}, v4, {S(sX,4)}, s{sOFF} offen offset:{128*i}", "x")
    e.i("s_barrier")
    e.i(f"s_cselect_b64 {S(sWKV,2)}, s[54:55], s[52:53]")
    e.i(f"s_mov_b64 {S(sWQ,2)}, s[50:51]")
    e.i(f"s_mov_b64 {S(sWO,2)}, s[56:57]")
    e.i(f"s_mov_b64 {S(sW1,2)}, s[60:61]")
    e.i(f"s_mov_b64 {S(sW2,2)}, s[62:63]")
    e.i(f"s_mov_b64 {S(sOUT,2)}, s[64:65]")
    e.i(f"s_mov_b64 {S(sDBG,2)}, s[66:67]")
    e.i(f"s_mov_b64 {S(sWS,2)}, s[68:69]")
    e.i(f"s_mov_b32 s{sRG}, s{sT2}")
    e.i(f"s_lshr_b32 s{sJ}, s2, 3")
    e.i(f"s_lshl_b32 s{sFLG}, s{sRB}, 10")
    e.i("v_lshrrev_b32 v5, 2, v1")
    e.i("v_and_b32 v5, 4, v5")
    e.i("v_xor_b32 v5, v5, v3")
    e.i("v_lshlrev_b32 v126, 10, v2")
    e.i("v_lshl_add_u32 v126, v5, 4, v126")
    e.i(f"s_cmp_ge_u32 s{sWAVE}, 4")
    e.i("s_cbranch_scc1 L_pre_ffn")
    vm_x = list(e.vm)
    e.i("s_setprio 1")
    slice_dma(sWQ, sWAVE, 126, "wq")
    e.wait(vm="x")
    e.i("s_branch L_ln")

    e.label("L_pre_ffn")
    e.vm = list(vm_x)
    e.i(f"s_cmp_ge_u32 s{sWAVE}, 6")
    e.i("s_cbranch_scc1 L_pre_67")
    e.c("waves 4,5: touch this workgroup's share of w1 so that it is L2 resident when FFN1 starts")
    e.i("v_lshlrev_b32 v105, 7, v1")
    e.i(f"s_lshl_b32 s{sT0}, s{sJ}, 1")
    e.i(f"s_add_u32 s{sT0}, s{sT0}, s{sF}")
    e.i(f"s_mul_i32 s{sT0}, s{sT0}, {4*7168}")
    if opt.warm:
        for i in range(4):
            e.vmem(f"buffer_load_dword v127, v105, {S(sW1,4)}, s{sT0} offen", "warm")
            e.i(f"s_add_u32 s{sT0}, s{sT0}, 7168")
    e.wait(vm="x")
    e.i("s_branch L_ln")

    e.label("L_pre_67")
    e.vm = list(vm_x)
    e.i("s_setprio 3")
    e.i(f"s_cmp_eq_u32 s{sWAVE}, 7")
    e.i("s_cbranch_scc1 L_pre_7")
    e.wait(vm="x")
    e.i("s_branch L_ln")
    e.label("L_pre_7")
    e.vm = list(vm_x)
    e.c("wave 7: epoch word (tells this launch's hand-offs from earlier ones), wk/wv -> LDS by DMA")
    e.i(f"s_load_dword s{sTAG}, s[68:69], {hex(WS_EPOCH)}")
    e.i("v_lshlrev_b32 v105, 4, v1")
    for i in range(4):
        e.i(f"s_mov_b32 m0, {R2 + 4096*i}")
        e.i(f"s_mov_b32 s{sT0}, {4096*i}")
        for k in range(4):
            e.vmem(f"buffer_load_dwordx4 v105, {S(sWKV,4)}, s{sT0} offen offset:{1024*k} lds", "wkv")
    e.wait(vm="x")
    vm_w7 = list(e.vm)

    e.label("L_ln")
    stamp(1)
    X = 40
    for t in range(32):
        e.i(f"v_lshlrev_b32 v{X+2*t}, 16, v{8+t}")
        e.i(f"v_and_b32 v{X+2*t+1}, s{sMASK}, v{8+t}")
    A = 112
    for a in range(4):
        e.i(f"v_pk_add_f32 {V(A+2*a,2)}, {V(X+4*a,2)}, {V(X+4*a+2,2)}")
    for t in range(8, 32):
        a = t % 4
        e.i(f"v_pk_add_f32 {V(A+2*a,2)}, {V(A+2*a,2)}, {V(X+2*t,2)}")
    def reduce8():
        e.i(f"v_pk_add_f32 {V(A,2)}, {V(A,2)}, {V(A+2,2)}")
        e.i(f"v_pk_add_f32 {V(A+4,2)}, {V(A+4,2)}, {V(A+6,2)}")
        e.i(f"v_pk_add_f32 {V(A,2)}, {V(A,2)}, {V(A+4,2)}")
        e.i(f"v_add_f32 v{A}, v{A}, v{A+1}")
        for m in ("quad_perm:[1,0,3,2]", "quad_perm:[2,3,0,1]", "row_half_mirror"):
            e.nop(2)
            e.i(f"v_add_f32_dpp v{A}, v{A}, v{A} {m} row_mask:0xf bank_mask:0xf")
    reduce8()
    e.i(f"v_mul_f32 v120, {hex(f32bits(-1.0/512))}, v{A}")
    for t in range(32):
        e.i(f"v_pk_add_f32 {V(X+2*t,2)}, {V(X+2*t,2)}, v[120:121] op_sel_hi:[1,0]")
    for t in range(32):
        a = t % 4
        if t < 4:
            e.i(f"v_pk_mul_f32 {V(A+2*a,2)}, {V(X+2*t,2)}, {V(X+2*t,2)}")
        else:
            e.i(f"v_pk_fma_f32 {V(A+2*a,2)}, {V(X+2*t,2)}, {V(X+2*t,2)}, {V(A+2*a,2)}")
    reduce8()
    e.i(f"v_mov_b32 v121, {hex(f32bits(1e-5))}")
    e.i(f"v_fmac_f32 v121, {hex(f32bits(1.0/512))}, v{A}")
    e.i("v_rsq_f32 v120, v121")
    e.i(f"s_lshr_b32 s{sT0}, s{sRG}, 2")
    e.i(f"s_mul_i32 s{sT0}, s{sT0}, {XN_RH}")
    e.i(f"s_and_b32 s{sT1}, s{sRG}, 3")
    e.i(f"s_lshl_b32 s{sT1}, s{sT1}, 7")
    e.i(f"s_add_u32 s{sT0}, s{sT0}, s{sT1}")
    e.i(f"s_add_u32 s{sT0}, s{sT0}, {R1}")
    e.i("v_mul_u32_u24 v122, 528, v3")
    e.i("v_lshl_add_u32 v122, v2, 4, v122")
    e.i(f"v_add_u32 v122, s{sT0}, v122")
    e.lg = []
    for i in range(8):
        for t in range(4*i, 4*i+4):
            e.i(f"v_pk_mul_f32 {V(X+2*t,2)}, {V(X+2*t,2)}, v[120:121] op_sel_hi:[1,0]")
        for t in range(4*i, 4*i+4):
            e.i(f"v_cvt_pk_bf16_f32 v{8+t}, v{X+2*t}, v{X+2*t+1}")
        e.lds(f"ds_write_b128 v122, {V(8+4*i,4)} offset:{4224*i}")
    if opt.front: stamp(8)
    e.i(f"s_cmp_lg_u32 s{sWAVE}, 6")
    e.i("s_cbranch_scc1 L_not6")
    lds_signal(C6)
    e.i("s_setprio 0")
    e.label("L_not6")
    e.i("v_mul_u32_u24 v104, 3584, v2")
    e.i("v_lshl_add_u32 v104, v3, 4, v104")
    e.i("v_lshrrev_b32 v2, 5, v1")
    e.i("v_bfe_u32 v3, v1, 4, 1")
    e.i("v_bfe_u32 v4, v1, 2, 2")
    e.i("v_and_b32 v5, 3, v1")
    e.i(f"s_cmp_eq_u32 s{sWAVE}, 7")
    e.i("s_cbranch_scc1 L_w7")
    def common_addr():
        e.i("v_lshrrev_b32 v124, 1, v5")
        e.i("v_lshl_add_u32 v124, v3, 1, v124")
        e.i("v_lshlrev_b32 v125, 1, v4")
        e.i("v_and_b32 v125, 4, v125")
        e.i("v_xor_b32 v124, v124, v125")
        e.i("v_lshlrev_b32 v123, 7, v4")
        e.i("v_lshl_add_u32 v123, v124, 4, v123")
        e.i("v_and_b32 v125, 1, v5")
        e.i("v_lshl_add_u32 v123, v125, 3, v123")
        e.i("v_and_b32 v125, 31, v1")
        e.i("v_mul_u32_u24 v124, 528, v2")
        e.i("v_lshl_add_u32 v124, v125, 4, v124")
        e.i(f"v_add_u32 v124, {R1}, v124")
        e.i(f"v_add_u32 v125, {XN_RH}, v124")
    e.i(f"s_cmp_ge_u32 s{sWAVE}, 4")
    e.i("s_cbranch_scc1 L_ffn")

    e.wait_all(vm=True)
    lds_signal(CXN)
    common_addr()
    e.i(f"s_and_b32 s{sT0}, s{sWAVE}, 1")
    e.i(f"s_lshl_b32 s{sT0}, s{sT0}, 6")
    e.i("v_lshl_add_u32 v123, v2, 10, v123")
    e.i(f"v_xor_b32 v123, s{sT0}, v123")
    e.i(f"s_lshr_b32 s{sT0}, s{sWAVE}, 1")
    e.i(f"s_mul_i32 s{sT0}, s{sT0}, {XN_RH}")
    e.i(f"v_add_u32 v124, s{sT0}, v124")
    S0, S1, P0, P1, OA, OB, NMA, NMB, QA, QB, KB, VB = 32, 48, 64, 72, 80, 96, 112, 128, 144, 148, 152, 168
    vK, vV0, vV1, vFl = 200, 201, 202, 203
    e.i(f"v_lshlrev_b32 v{vK}, 4, v1")
    e.i("v_and_b32 v24, 15, v1")
    e.i("v_lshl_add_u32 v24, v2, 4, v24")
    e.i("v_lshlrev_b32 v24, 4, v24")
    e.i("v_add_u32 v25, 1024, v24")
    e.i("v_add_u32 v26, 1536, v24")
    e.i("v_and_b32 v27, 11, v1")
    e.i("v_cmp_ne_u32 vcc, 0, v27")
    e.i("v_mov_b32 v27, 2048")
    e.i("v_mov_b32 v28, 2064")
    e.i("v_cndmask_b32 v27, v27, v28, vcc")
    e.i("v_cmp_eq_u32 vcc, 0, v3")
    e.i(f"v_lshrrev_b32 v{vFl}, 2, v1")
    e.i(f"v_lshlrev_b32 v{vFl}, 7, v{vFl}")
    e.i(f"v_lshl_add_u32 v{vFl}, v5, 4, v{vFl}")
    e.i(f"v_cndmask_b32 v{vV0}, v27, v25, vcc")
    e.i(f"v_cndmask_b32 v{vV1}, v27, v26, vcc")
    const_spots(0, 205, 208)
    for r in range(0, 32, 2):
        e.i(f"v_mov_b64 {V(OA+r,2)}, 0")
    for r in range(0, 8, 2):
        e.i(f"v_mov_b64 {V(P1+r,2)}, 0")
        e.i(f"v_mov_b64 {V(VB+24+r,2)}, 0")
    lds_poll(CXN, 8, 26, sleep=0)
    stamp(2)
    e.c("Q projection: wave w -> head pair hp=w&1, row half rh=w>>1")
    def qreads(ks):
        s = ks % 4
        e.lds(f"ds_read_b64_tr_b16 {V(32+8*s,2)}, v123 offset:{ks*2048}", ("q", ks))
        e.lds(f"ds_read_b64_tr_b16 {V(34+8*s,2)}, v123 offset:{ks*2048+512}", ("q", ks))
        e.lds(f"ds_read_b128 {V(36+8*s,4)}, v124 offset:{ks*1056}", ("q", ks))
    for ks in range(4):
        qreads(ks)
    for ks in range(32):
        s = ks % 4
        e.wait(lg=("q", ks))
        e.i(f"{MF32} v[8:23], {V(32+8*s,4)}, {V(36+8*s,4)}, {'0' if ks == 0 else 'v[8:23]'}")
        if ks + 4 < 32:
            qreads(ks + 4)
    lds_signal(CQ)
    e.i(f"s_mov_b32 s{sT1}, {hex(f32bits(0.25*math.log2(math.e)))}")
    e.i(f"v_mov_b64 {V(S1+14,2)}, 0")
    e.nop(8)
    for r in range(16):
        e.i(f"v_mul_f32 v{8+r}, s{sT1}, v{8+r}")
    for hd in range(2):
        b = 8 + 8*hd
        e.i(f"v_mul_f32 v{24+hd}, v{b}, v{b}")
        for r in range(1, 8):
            e.i(f"v_fmac_f32 v{24+hd}, v{b+r}, v{b+r}")
    for hd in range(2):
        for j in range(4):
            e.i(f"v_cvt_pk_bf16_f32 v{QA+4*hd+j}, v{8+8*hd+2*j}, v{8+8*hd+2*j+1}")
    e.i("v_mov_b32 v26, v24")
    e.i("v_mov_b32 v27, v25")
    e.nop(2)
    e.i("v_permlane32_swap_b32 v24, v26")
    e.i("v_permlane32_swap_b32 v25, v27")
    e.i("v_add_f32 v24, v24, v26")
    e.i("v_add_f32 v25, v25, v27")
    lds_poll(CQ, 4, 26, sleep=0)
    e.lds("ds_write_b128 v205, v[208:211] offset:2048")
    stamp(3)
    e.c("wait for all 256 K/V producers: wave 0 polls the tagged flags and tells the others through LDS")
    get_tag(26)
    e.i(f"s_cmp_lg_u32 s{sWAVE}, 0")
    e.i("s_cbranch_scc1 L_kv_other")
    top, done = lbl("kv"), lbl("kvd")
    e.i(f"s_mov_b32 s{sT1}, {hex(WS_KVF)}")
    spin_init()
    e.label(top)
    e.i(f"buffer_load_dwordx4 v[32:35], v{vFl}, {S(sWS,4)}, s{sT1} offen sc1")
    e.i(f"buffer_load_dwordx4 v[36:39], v{vFl}, {S(sWS,4)}, s{sT1} offen offset:2048 sc1")
    e.wait_all(vm=True)
    e.i(f"v_xor_b32 v32, s{sTAG}, v32")
    e.i(f"v_xor_b32 v34, s{sTAG}, v34")
    e.i(f"v_xor_b32 v36, s{sTAG}, v36")
    e.i(f"v_xor_b32 v38, s{sTAG}, v38")
    e.i("v_or3_b32 v32, v32, v34, v36")
    e.i("v_or_b32 v32, v32, v38")
    e.i("v_cmp_ne_u32 vcc, 0, v32")
    e.i(f"s_cbranch_vccz {done}")
    spin_tail(top, done, opt.kvsleep)
    e.label(done)
    lds_signal(CKV)
    stamp(4)
    kv_dma(sWAVE, 0, vK, sOFF)
    e.i("v_max_u32 v30, v33, v37")
    for m in ("row_ror:1", "row_ror:2", "row_ror:4", "row_ror:8"):
        e.nop(2)
        e.i(f"v_max_u32_dpp v30, v30, v30 {m} row_mask:0xf bank_mask:0xf")
    e.i("v_mov_b32 v29, v30")
    e.nop(2)
    e.i("v_permlane16_swap_b32 v29, v30")
    e.i("v_max_u32 v30, v29, v30")
    e.i("v_mov_b32 v29, v30")
    e.nop(2)
    e.i("v_permlane32_swap_b32 v29, v30")
    e.i("v_max_u32 v30, v29, v30")
    e.lds(f"ds_write_b32 v6, v30 offset:{CKM}")
    lds_signal(CKV)
    e.c("workgroup 0 renews the epoch word: every producer has read it by now")
    e.i("s_cmp_lg_u32 s2, 0")
    e.i("s_cbranch_scc1 L_kv_seen")
    e.i(f"v_mov_b32 v28, s{sTAG}")
    e.i(f"v_mov_b32 v29, {hex(WS_EPOCH)}")
    e.i("s_mov_b64 exec, 1")
    e.i(f"buffer_store_dword v28, v29, {S(sWS,4)}, 0 offen sc1")
    e.i("s_mov_b64 exec, -1")
    e.i("s_branch L_kv_seen")
    e.label("L_kv_other")
    lds_poll(CKV, 1, 26, sleep=opt.lsleep, mult=16)
    stamp(4)
    e.vm = []
    kv_dma(sWAVE, 0, vK, sOFF)
    lds_poll(CKV, 2, 26, sleep=0)
    e.i(f"ds_read_b32 v30, v6 offset:{CKM}")
    e.wait_all(lg=True)
    e.label("L_kv_seen")
    lds_signal(CX)
    e.i("v_mul_f32 v24, v24, v30")
    e.i("v_mul_f32 v25, v25, v30")
    e.i("v_sqrt_f32 v24, v24")
    e.i("v_sqrt_f32 v25, v25")
    e.i(f"s_mov_b32 s{sT1}, {hex(f32bits(opt.thr))}")
    e.i("v_max_f32 v26, v24, v25")
    e.i(f"v_cmp_nge_f32 vcc, s{sT1}, v26")
    e.i("v_cmp_u_f32 s[4:5], v24, v25")
    e.i("s_or_b64 s[4:5], s[4:5], vcc")
    for r in range(16):
        e.i(f"v_sub_f32 v{NMA+r}, 0, v24")
        e.i(f"v_sub_f32 v{NMB+r}, 0, v25")
    e.wait_all(vm=True)
    lds_signal(CA)
    lds_poll(CA, 4, 26, sleep=0)
    if opt.force_fallback:
        e.i("s_branch L_fallback")
    else:
        e.i("s_cmp_lg_u64 s[4:5], 0")
        e.i("s_cbranch_scc1 L_fallback")
    e.label("L_att_start")
    stamp(5)
    for j in range(3):
        e.lds(f"ds_read_b128 {V(KB+4*j,4)}, v{vK} offset:{j*KVS}")
        e.lds(f"ds_read_b128 {V(VB+8*j,4)}, v{vV0} offset:{j*KVS}")
        e.lds(f"ds_read_b128 {V(VB+8*j+4,4)}, v{vV1} offset:{j*KVS}")
    U = opt.unr
    seg0 = (29 // U)
    e.i(f"s_mov_b32 s{sCNT}, {seg0-1}")
    e.i(f"s_mov_b32 s{sSEG}, 0")
    e.wait_all(lg=True)
    e.i(f"{MF32} {V(S0,16)}, {V(KB,4)}, {V(QA,4)}, {V(NMA,16)}")
    e.nop(12)
    def step(cur, nxt, pc, pp, K, Q, NM, O, Vb, after):
        for i in range(16):
            e.i(f"v_exp_f32 v{cur+i}, v{cur+i}")
            if i == 0:
                e.i(f"v_cvt_pk_bf16_f32 v{pp+7}, v{nxt+14}, v{nxt+15}")
                e.i(f"{MF32} {V(nxt,16)}, {V(K,4)}, {V(Q,4)}, {V(NM,16)}")
                for t in after[0]: e.i(t)
            if i >= 2 and i % 2 == 0:
                j = (i - 2) // 2
                e.i(f"v_cvt_pk_bf16_f32 v{pc+j}, v{cur+2*j}, v{cur+2*j+1}")
            if i == 5:
                e.i(f"{MF32} {V(O,16)}, {V(Vb,4)}, {V(pp,4)}, {V(O,16)}")
                for t in after[1]: e.i(t)
            if i == 10:
                e.i(f"{MF32} {V(O,16)}, {V(Vb+4,4)}, {V(pp+4,4)}, {V(O,16)}")
                for t in after[2]: e.i(t)
    e.raw(".p2align 6")
    e.label("L_att_loop")
    for u in range(U):
        b3 = (u + 3) % 4
        off = (u + 3) * KVS
        last = u == U - 1
        a0 = [f"ds_read_b128 {V(KB+4*b3,4)}, v{vK} offset:{off}"]
        a1 = [f"v_add_u32 v{vK}, {U*KVS}, v{vK}"] if last else []
        a2 = [f"s_sub_u32 s{sCNT}, s{sCNT}, 1"] if last else []
        step(S0, S1, P0, P1, KB+4*(u % 4), QB, NMB, OB, VB+8*((u-1) % 4), [a0, a1, a2])
        a0 = [f"ds_read_b128 {V(VB+8*b3,4)}, v{vV0} offset:{off}"]
        a1 = [f"ds_read_b128 {V(VB+8*b3+4,4)}, v{vV1} offset:{off}"]
        a2 = ["s_waitcnt lgkmcnt(2)"] if u % 2 == 1 else []
        if last:
            a2 += [f"v_add_u32 v{vV0}, {U*KVS}, v{vV0}", f"v_add_u32 v{vV1}, {U*KVS}, v{vV1}"]
        step(S1, S0, P1, P0, KB+4*((u+1) % 4), QA, NMA, OA, VB+8*(u % 4), [a0, a1, a2])
    e.i("s_cbranch_scc0 L_att_loop")
    e.i(f"s_cmp_eq_u32 s{sSEG}, 1")
    e.i("s_cbranch_scc1 L_att_seg2")
    e.i(f"s_cmp_eq_u32 s{sSEG}, 2")
    e.i("s_cbranch_scc1 L_att_done")
    stamp(6)
    cstamp(9)
    lds_poll(CH2, 4, 26, sleep=1)
    e.i(f"s_mov_b32 s{sSEG}, 1")
    e.i(f"s_mov_b32 s{sCNT}, {32//U - seg0 - 1}")
    e.i("s_branch L_att_loop")
    e.label("L_att_seg2")
    lds_signal(CR0)
    e.i(f"s_mov_b32 s{sSEG}, 2")
    e.i(f"s_mov_b32 s{sCNT}, {32//U - 1}")
    e.i("s_branch L_att_loop")
    e.label("L_att_done")
    stamp(7)
    cstamp(10)
    e.i(f"v_cvt_pk_bf16_f32 v{P1+7}, v{S1+14}, v{S1+15}")
    e.i(f"{MF32} {V(OB,16)}, {V(VB+24,4)}, {V(P1,4)}, {V(OB,16)}")
    e.i(f"v_rcp_f32 v24, v{OA+8}")
    e.i(f"{MF32} {V(OB,16)}, {V(VB+28,4)}, {V(P1+4,4)}, {V(OB,16)}")
    lds_signal(CAD)
    e.i(f"s_lshl_b32 s{sT0}, s{sRB}, 5")
    e.i(f"s_lshl_b32 s{sT1}, s{sCB}, 2")
    e.i(f"s_add_u32 s{sT0}, s{sT0}, s{sT1}")
    e.i(f"s_and_b32 s{sT1}, s{sWAVE}, 1")
    e.i(f"s_lshl_b32 s{sT1}, s{sT1}, 1")
    e.i(f"s_add_u32 s{sT0}, s{sT0}, s{sT1}")
    e.i(f"s_lshl_b32 s{sT0}, s{sT0}, 1")
    e.i(f"s_lshr_b32 s{sT1}, s{sWAVE}, 1")
    e.i(f"s_add_u32 s{sT0}, s{sT0}, s{sT1}")
    e.i(f"s_lshl_b32 s{sT0}, s{sT0}, 10")
    e.i(f"s_add_u32 s{sOFF}, s{sT0}, {WS_O}")
    e.i("v_lshlrev_b32 v26, 4, v1")
    for hd, O in enumerate((OA, OB)):
        if hd == 1:
            e.i(f"v_rcp_f32 v24, v{OB+8}")
            e.nop(1)
        for r in range(8):
            e.i(f"v_mul_f32 v{O+r}, v{O+r}, v24")
        for j in range(4):
            e.i(f"v_cvt_pk_bf16_f32 v{8+4*hd+j}, v{O+2*j}, v{O+2*j+1}")
        e.vmem(f"buffer_store_dwordx4 {V(8+4*hd,4)}, v26, {S(sWS,4)}, s{sOFF} offen offset:{2048*hd} sc1")
    e.i(f"s_lshl_b32 s{sT0}, s{sCB}, 7")
    e.i(f"s_lshl_b32 s{sT1}, s{sWAVE}, 2")
    e.i(f"s_add_u32 s{sT0}, s{sT0}, s{sT1}")
    e.i(f"s_add_u32 s{sT0}, s{sT0}, s{sFLG}")
    e.i(f"v_mov_b32 v26, {hex(WS_OF)}")
    e.i(f"v_mov_b32 v27, s{sTAG}")
    e.i("s_mov_b64 exec, 1")
    e.wait_all(vm=True)
    e.i(f"buffer_store_dword v27, v26, {S(sWS,4)}, s{sT0} offen sc1")
    e.i("s_mov_b64 exec, -1")
    stamp(8, True)
    dump_stamps()
    e.i("s_endpgm")

    e.label("L_fallback")
    lds_poll(CH2, 4, 26, sleep=1)
    e.i("v_mov_b32 v24, 0xff800000")
    e.i("v_mov_b32 v25, 0xff800000")
    e.i(f"v_mov_b32 v27, v{vK}")
    e.i(f"s_mov_b32 s{sCNT}, 63")
    e.label("L_fb_loop")
    e.i(f"ds_read_b128 {V(KB,4)}, v27")
    e.i(f"v_add_u32 v27, {KVS}, v27")
    e.i("s_waitcnt lgkmcnt(0)")
    e.i(f"{MF32} {V(S0,16)}, {V(KB,4)}, {V(QA,4)}, 0")
    e.i(f"{MF32} {V(NMB,16)}, {V(KB,4)}, {V(QB,4)}, 0")
    e.nop(12)
    for r in range(0, 16, 2):
        e.i(f"v_max3_f32 v24, v24, v{S0+r}, v{S0+r+1}")
    for r in range(0, 16, 2):
        e.i(f"v_max3_f32 v25, v25, v{NMB+r}, v{NMB+r+1}")
    e.i(f"s_sub_u32 s{sCNT}, s{sCNT}, 1")
    e.i("s_cbranch_scc0 L_fb_loop")
    e.i("v_mov_b32 v26, v24")
    e.i("v_mov_b32 v27, v25")
    e.nop(2)
    e.i("v_permlane32_swap_b32 v24, v26")
    e.i("v_permlane32_swap_b32 v25, v27")
    e.i("v_max_f32 v24, v24, v26")
    e.i("v_max_f32 v25, v25, v27")
    for r in range(16):
        e.i(f"v_sub_f32 v{NMA+r}, 0, v24")
        e.i(f"v_sub_f32 v{NMB+r}, 0, v25")
    e.i("s_branch L_att_start")

    ACC = 8
    NS = opt.look + 1
    AF, BF = 72, 72 + 8 * NS
    assert BF + 8 * NS <= 120
    vW, vT0, vT1, vL16, vWr = 120, 121, 122, 0, 5
    PF = 16
    def ffn_head():
        e.i(f"s_lshl_b32 s{sT2}, s{sF}, 11")
        e.i(f"s_add_u32 s{sT2}, s{sT2}, {R3}")
        e.i(f"v_lshlrev_b32 v{vL16}, 4, v1")
    def h_store(tiles):
        e.i("s_setprio 3")
        e.i(f"s_mul_i32 s{sT0}, s{sRB}, 112")
        e.i(f"s_mul_i32 s{sT1}, s{sCB}, 14")
        e.i(f"s_add_u32 s{sT0}, s{sT0}, s{sT1}")
        e.i(f"s_lshl_b32 s{sT1}, s{sF}, 2")
        e.i(f"s_add_u32 s{sT0}, s{sT0}, s{sT1}")
        e.i(f"s_lshl_b32 s{sT0}, s{sT0}, 11")
        e.i(f"s_add_u32 s{sOFF}, s{sT0}, {WS_H}")
        e.i(f"s_add_u32 s{sOFF2}, s{sOFF}, 4096")
        e.nop(2)
        for ct in tiles:
            for rh in range(2):
                a = ACC + 16 * (rh * 2 + ct)
                for j in range(8):
                    e.i(f"v_cvt_pk_bf16_f32 v{a+j}, v{a+2*j}, v{a+2*j+1}")
                for j in range(8):
                    e.i(f"v_pk_max_i16 v{a+j}, v{a+j}, 0")
                for s in range(2):
                    e.vmem(f"buffer_store_dwordx4 {V(a+4*s,4)}, v{vL16}, {S(sWS,4)}, s{sOFF2 if ct else sOFF} offen offset:{(2*s+rh)*1024} sc1", "hst")

    e.label("L_ffn")
    e.vm = []
    lds_signal(CXN)
    e.i(f"v_mov_b32 v{vW}, v104")
    e.i(f"s_mul_i32 s{sT0}, s{sCB}, 448")
    e.i(f"s_lshl_b32 s{sT1}, s{sF}, 7")
    e.i(f"s_add_u32 s{sOFF}, s{sT0}, s{sT1}")
    def w1_load2(ks):
        for a in range(2):
            r = 128 + 8 * (ks % PF) + 4 * a
            e.vmem(f"buffer_load_dwordx4 {V(r,4)}, v{vW}, {S(sW1,4)}, s{sOFF} offen", ("w", ks))
            e.i(f"s_add_u32 s{sOFF}, s{sOFF}, {8*3584}")
    PF0 = opt.pf0
    for ks in range(PF0):
        w1_load2(ks)
    common_addr()
    ffn_head()
    e.i(f"v_lshl_add_u32 v{vT0}, v2, 10, v123")
    e.i(f"v_add_u32 v{vT0}, s{sT2}, v{vT0}")
    e.i(f"v_xor_b32 v{vT1}, 64, v{vT0}")
    e.i(f"v_lshlrev_b32 v{vWr}, 6, v3")
    e.i(f"v_xor_b32 v{vWr}, v{vWr}, v{vL16}")
    e.i(f"v_add_u32 v{vWr}, s{sT2}, v{vWr}")
    lds_poll(CXN, 8, 72, sleep=0)
    stamp(2)
    def st2(ks, part):
        s = ks % NS
        wreg = 128 + 8 * (ks % PF)
        if part < 2:
            if part == 0 and not opt.nowait:
                e.wait(vm=("w", ks))
            if not opt.nowr:
                e.lds(f"ds_write_b128 v{vWr}, {V(wreg+4*part,4)} offset:{1024*part}", ("f", ks), guard=False)
            e.lds(f"ds_read_b128 {V(BF+8*s+4*part,4)}, v{124+part} offset:{ks*1056}", ("f", ks), guard=False)
        else:
            ct = part - 2
            for t in range(2):
                e.lds(f"ds_read_b64_tr_b16 {V(AF+8*s+4*ct+2*t,2)}, v{vT1 if ct else vT0} offset:{512*t}", ("f", ks), guard=False)
    def w1_load_half(ks, a):
        r = 128 + 8 * (ks % PF) + 4 * a
        e.vmem(f"buffer_load_dwordx4 {V(r,4)}, v{vW}, {S(sW1,4)}, s{sOFF} offen", ("w", ks))
        e.i(f"s_add_u32 s{sOFF}, s{sOFF}, {8*3584}")
    for ks in range(opt.look):
        for p in range(4):
            st2(ks, p)
    for ks in range(32):
        s = ks % NS
        e.wait(lg=("f", ks))
        for i in range(4):
            rh, ct = i >> 1, i & 1
            a = ACC + 16 * i
            e.i(f"{MF32} {V(a,16)}, {V(AF+8*s+4*ct,4)}, {V(BF+8*s+4*rh,4)}, {'0' if ks == 0 else V(a,16)}")
            if ks + opt.look < 32:
                st2(ks + opt.look, i)
            if i >= 2 and ks + PF0 < 32 and not opt.noload:
                w1_load_half(ks + PF0, i - 2)
        if opt.mid and ks in (7, 15, 23):
            stamp({7: 5, 15: 6, 23: 7}[ks])
    lds_signal(CX)
    stamp(3)
    h_store([0, 1])
    e.i("s_branch L_ffn_join")

    e.label("L_w7")
    e.vm = list(vm_w7)
    e.wait_all(lg=True)
    e.i(f"s_mul_i32 s{sTAG}, s{sTAG}, 0x9e3779b1")
    e.i(f"s_add_u32 s{sTAG}, s{sTAG}, 0x7f4a7c15")
    e.i(f"v_mov_b32 v16, s{sTAG}")
    e.lds(f"ds_write_b32 v6, v16 offset:{CTAG}")
    lds_signal(CXN)
    e.c("K/V projection: 16 rows x 16 cols, rq = cb>>1, V if cb&1")
    e.i(f"s_lshr_b32 s{sT2}, s{sCB}, 2")
    e.i(f"s_mul_i32 s{sT2}, s{sT2}, {XN_RH}")
    e.i(f"s_bfe_u32 s{sT1}, s{sCB}, 0x10001")
    e.i(f"s_lshl_b32 s{sOFF2}, s{sT1}, 8")
    e.i(f"s_add_u32 s{sT2}, s{sT2}, s{sOFF2}")
    e.i(f"s_add_u32 s{sT2}, s{sT2}, {R1}")
    e.i("v_lshrrev_b32 v112, 4, v1")
    e.i("v_and_b32 v113, 15, v1")
    e.i("v_mul_u32_u24 v114, 528, v112")
    e.i("v_lshl_add_u32 v114, v113, 4, v114")
    e.i(f"v_add_u32 v114, s{sT2}, v114")
    e.i("v_lshlrev_b32 v115, 8, v112")
    e.i("v_lshl_add_u32 v115, v4, 5, v115")
    e.i("v_lshl_add_u32 v115, v5, 3, v115")
    e.i(f"v_add_u32 v115, {R2}, v115")
    e.wait(vm="wkv")
    for ks in range(16):
        e.lds(f"ds_read_b64_tr_b16 {V(128+4*ks,2)}, v115 offset:{ks*1024}")
        e.lds(f"ds_read_b64_tr_b16 {V(130+4*ks,2)}, v115 offset:{ks*1024+128}")
    lds_poll(C6, 1, 72, sleep=0)
    for ks in range(16):
        e.lds(f"ds_read_b128 {V(192+4*ks,4)}, v114 offset:{ks*2112}", ("k", ks), guard=False)
        if ks == 7:
            e.i(f"s_lshl_b32 s{sT0}, s{sRB}, 1")
            e.i(f"s_lshr_b32 s{sOFF2}, s{sCB}, 2")
            e.i(f"s_add_u32 s{sT0}, s{sT0}, s{sOFF2}")
            e.i(f"s_lshl_b32 s{sT0}, s{sT0}, 11")
            e.i("v_lshlrev_b32 v116, 3, v2")
            e.i("v_lshl_add_u32 v116, v113, 4, v116")
            e.wait(lg=("k", 3))
    e.i(f"s_bitcmp1_b32 s{sCB}, 0")
    e.i("s_cbranch_scc1 L_w7_v")
    lg_save = list(e.lg)
    def kvloop(isV):
        for ks in range(16):
            e.wait(lg=("k", ks))
            W, Xn = V(128+4*ks, 4), V(192+4*ks, 4)
            a, b = (Xn, W) if isV else (W, Xn)
            e.i(f"{MF16} v[8:11], {a}, {b}, {'0' if ks == 0 else 'v[8:11]'}")
    kvloop(False)
    e.i("v_lshl_add_u32 v116, v3, 9, v116")
    e.i(f"s_lshl_b32 s{sT1}, s{sT1}, 8")
    e.i(f"s_add_u32 s{sT0}, s{sT0}, s{sT1}")
    e.nop(5)
    e.i("v_cvt_pk_bf16_f32 v12, v8, v9")
    e.i("v_cvt_pk_bf16_f32 v13, v10, v11")
    e.vmem(f"buffer_store_dwordx2 v[12:13], v116, {S(sWS,4)}, s{sT0} offen sc1", "kvst")
    e.i("v_mul_f32 v14, v8, v8")
    for r in range(1, 4):
        e.i(f"v_fmac_f32 v14, v{8+r}, v{8+r}")
    e.i("v_mov_b32 v15, v14")
    e.nop(2)
    e.i("v_permlane32_swap_b32 v14, v15")
    e.i("v_add_f32 v14, v14, v15")
    e.i("v_mov_b32 v15, v14")
    e.nop(2)
    e.i("v_permlane16_swap_b32 v14, v15")
    e.i("v_add_f32 v14, v14, v15")
    for m in ("row_ror:1", "row_ror:2", "row_ror:4", "row_ror:8"):
        e.nop(2)
        e.i(f"v_max_u32_dpp v14, v14, v14 {m} row_mask:0xf bank_mask:0xf")
    e.i("v_mov_b32 v17, v14")
    e.i("s_branch L_w7_pub")
    e.label("L_w7_v")
    e.lg = lg_save
    kvloop(True)
    e.i("v_lshl_add_u32 v116, v3, 8, v116")
    e.i(f"s_lshl_b32 s{sT1}, s{sT1}, 9")
    e.i(f"s_add_u32 s{sT0}, s{sT0}, s{sT1}")
    e.i(f"s_add_u32 s{sT0}, s{sT0}, 1024")
    e.nop(4)
    e.i("v_cvt_pk_bf16_f32 v12, v8, v9")
    e.i("v_cvt_pk_bf16_f32 v13, v10, v11")
    e.i(f"buffer_store_dwordx2 v[12:13], v116, {S(sWS,4)}, s{sT0} offen sc1")
    e.i("v_mov_b32 v17, 0")
    e.label("L_w7_pub")
    e.i(f"s_lshl_b32 s{sT0}, s{sRB}, 7")
    e.i(f"s_lshl_b32 s{sT1}, s{sCB}, 3")
    e.i(f"s_add_u32 s{sT0}, s{sT0}, s{sT1}")
    e.i(f"v_mov_b32 v15, {hex(WS_KVF)}")
    e.i(f"v_lshrrev_b32 v{vW}, 2, v1")
    e.i(f"v_mul_u32_u24 v{vW}, 3584, v{vW}")
    e.i(f"v_lshl_add_u32 v{vW}, v5, 4, v{vW}")
    e.i(f"s_mul_i32 s{sOFF}, s{sCB}, 448")
    e.i(f"s_add_u32 s{sOFF}, s{sOFF}, 384")
    e.i(f"v_lshlrev_b32 v{vT0}, 6, v4")
    e.i(f"v_lshl_add_u32 v{vT0}, v3, 5, v{vT0}")
    e.i(f"v_lshl_add_u32 v{vT0}, v5, 3, v{vT0}")
    e.i(f"v_lshl_add_u32 v{vT0}, v2, 9, v{vT0}")
    common_addr()
    ffn_head()
    e.i(f"v_add_u32 v{vT0}, s{sT2}, v{vT0}")
    e.i(f"v_add_u32 v{vWr}, s{sT2}, v{vL16}")
    stamp(2)
    e.i("s_mov_b64 exec, 1")
    e.wait_all(vm=True)
    e.i(f"buffer_store_dwordx2 v[16:17], v15, {S(sWS,4)}, s{sT0} offen sc1")
    e.i("s_mov_b64 exec, -1")
    e.i("s_setprio 0")
    stamp(9)
    def w1_load1(ks):
        e.vmem(f"buffer_load_dwordx4 {V(128+4*ks,4)}, v{vW}, {S(sW1,4)}, s{sOFF} offen", ("w", ks))
        e.i(f"s_add_u32 s{sOFF}, s{sOFF}, {16*3584}")
    for ks in range(12):
        w1_load1(ks)
    lds_poll(CXN, 8, 72, sleep=0)
    def st1(ks, part):
        s = ks % NS
        if part == 0:
            e.wait(vm=("w", ks))
            e.lds(f"ds_write_b128 v{vWr}, {V(128+4*ks,4)}", ("f", ks))
            e.lds(f"ds_read_b128 {V(BF+8*s,4)}, v124 offset:{ks*1056}", ("f", ks))
        else:
            for t in range(2):
                e.lds(f"ds_read_b64_tr_b16 {V(AF+8*s+2*t,2)}, v{vT0} offset:{256*t}", ("f", ks))
            e.lds(f"ds_read_b128 {V(BF+8*s+4,4)}, v125 offset:{ks*1056}", ("f", ks))
    for ks in range(opt.look):
        st1(ks, 0)
        st1(ks, 1)
    for ks in range(32):
        s = ks % NS
        e.wait(lg=("f", ks))
        for rh in range(2):
            a = ACC + 32 * rh
            e.i(f"{MF32} {V(a,16)}, {V(AF+8*s,4)}, {V(BF+8*s+4*rh,4)}, {'0' if ks == 0 else V(a,16)}")
            if ks + opt.look < 32:
                st1(ks + opt.look, rh)
        if ks + 12 < 32:
            w1_load1(ks + 12)
    lds_signal(CX)
    stamp(3)
    h_store([0])

    e.label("L_ffn_join")
    get_tag(74)
    e.i(f"s_lshl_b32 s{sT0}, s{sCB}, 7")
    e.i(f"s_lshl_b32 s{sT1}, s{sF}, 2")
    e.i(f"s_add_u32 s{sT0}, s{sT0}, s{sT1}")
    e.i(f"s_add_u32 s{sT0}, s{sT0}, s{sFLG}")
    e.i(f"v_mov_b32 v72, {hex(WS_HF)}")
    const_spots(R1, 73, 76)
    e.i(f"s_mul_i32 s{sT2}, s{sF}, 6144")
    e.i(f"s_add_u32 s{sT2}, s{sT2}, {R2}")
    e.i("v_lshl_add_u32 v123, v2, 9, v123")
    e.i(f"v_add_u32 v{vT0}, s{sT2}, v123")
    e.i(f"v_xor_b32 v{vT1}, 64, v{vT0}")
    e.i(f"s_and_b32 s{sT1}, s{sF}, 1")
    e.i(f"s_lshl_b32 s{sT1}, s{sT1}, 6")
    e.i(f"v_xor_b32 v123, s{sT1}, v123")
    e.i("v_and_b32 v124, 3, v1")
    e.i("v_lshlrev_b32 v124, 2, v124")
    e.i("v_bfe_u32 v4, v1, 2, 1")
    e.i("v_lshl_add_u32 v124, v4, 7, v124")
    e.i("v_bfe_u32 v4, v1, 1, 3")
    e.i("v_lshlrev_b32 v4, 7, v4")
    e.i("v_and_b32 v3, 1, v1")
    e.i("v_lshl_add_u32 v4, v3, 2, v4")
    e.i("v_and_b32 v3, 31, v1")
    e.i("v_lshlrev_b32 v3, 10, v3")
    e.i("v_lshl_add_u32 v3, v2, 3, v3")
    e.i("v_lshlrev_b32 v125, 7, v1")
    e.i(f"s_lshl_b32 s{sT1}, s{sF}, 12")
    e.i(f"s_add_u32 s{sT1}, s{sT1}, {R1}")
    e.i(f"v_add_u32 v{vW}, s{sT1}, v{vL16}")
    e.i(f"s_lshl_b32 s{sT1}, s{sF}, 14")
    e.i(f"s_add_u32 s{sT1}, s{sT1}, {R1}")
    e.i(f"v_add_u32 v{vWr}, s{sT1}, v{vL16}")
    e.i("s_mov_b64 exec, 1")
    e.wait_all(vm=True, lg=True)
    e.vmem(f"buffer_store_dword v74, v72, {S(sWS,4)}, s{sT0} offen sc1")
    e.i("s_mov_b64 exec, -1")
    stamp(4)
    if opt.warm:
        e.c("L2 warm-up of w2 (2 x 56+ lines per wave) and wo (32 lines per wave)")
        e.i(f"s_lshl_b32 s{sT0}, s{sJ}, 2")
        e.i(f"s_add_u32 s{sT0}, s{sT0}, s{sF}")
        e.i(f"s_mul_i32 s{sT1}, s{sT0}, {2*7168}")
        e.vmem(f"buffer_load_dword v127, v125, {S(sW2,4)}, s{sT1} offen")
        e.i(f"s_add_u32 s{sT1}, s{sT1}, 7168")
        e.vmem(f"buffer_load_dword v127, v125, {S(sW2,4)}, s{sT1} offen")
        e.i(f"s_lshl_b32 s{sT1}, s{sT0}, 12")
        e.i("s_mov_b64 exec, 0xffffffff")
        e.vmem(f"buffer_load_dword v127, v125, {S(sWO,4)}, s{sT1} offen")
        e.i("s_mov_b64 exec, -1")
    e.c("K/V half 2 -> LDS (xn region) once xn is dead and the K/V flags were seen")
    lds_poll(CX, 8, 72, sleep=2)
    kv_dma(sF, 1, vL16, sOFF2)
    e.lds("ds_write_b128 v73, v[76:79] offset:2048")
    e.i(f"s_mul_i32 s{sOFF}, s{sF}, {448*1024}")
    e.i(f"s_lshl_b32 s{sT0}, s{sCB}, 7")
    e.i(f"s_add_u32 s{sOFF}, s{sOFF}, s{sT0}")
    def w2_dma(ks):
        for a in range(2):
            e.i(f"s_add_u32 m0, s{sT2}, {(ks % 3) * 2048 + a * 1024}")
            e.i("s_nop 0")
            e.vmem(f"buffer_load_dwordx4 v126, {S(sW2,4)}, s{sOFF} offen lds", ("w", ks))
            e.i(f"s_add_u32 s{sOFF}, s{sOFF}, 8192")
    for ks in range(3):
        w2_dma(ks)
    e.wait(vm="kv")
    e.wait_all(lg=True)
    lds_signal(CH2)
    if opt.mid:
        dump_stamps()
        e.i("s_endpgm")
    stamp(5)
    exit_if(5)
    e.c("wait for h of producers 2f, 2f+1")
    e.i(f"s_lshl_b32 s{sT1}, s{sF}, 8")
    e.i(f"s_add_u32 s{sT1}, s{sT1}, s{sFLG}")
    e.i(f"s_add_u32 s{sT1}, s{sT1}, {hex(WS_HF)}")
    flag_poll(124, sT1, 72)
    stamp(6)
    e.i("s_setprio 0")
    e.i(f"s_mul_i32 s{sT0}, s{sRB}, 112")
    e.i(f"s_mul_i32 s{sT1}, s{sF}, 28")
    e.i(f"s_add_u32 s{sT0}, s{sT0}, s{sT1}")
    e.i(f"s_lshl_b32 s{sT0}, s{sT0}, 11")
    e.i(f"s_add_u32 s{sOFF2}, s{sT0}, {WS_H}")
    PH = 4
    def h_load(ks):
        for rh in range(2):
            r = 88 + 8 * (ks % PH) + 4 * rh
            e.vmem(f"buffer_load_dwordx4 {V(r,4)}, v{vL16}, {S(sWS,4)}, s{sOFF2} offen offset:{1024*rh} sc1", ("h", ks))
        e.i(f"s_add_u32 s{sOFF2}, s{sOFF2}, 2048")
    def tr2(ks, i):
        ct, t = i >> 1, i & 1
        e.lds(f"ds_read_b64_tr_b16 {V(72+8*(ks%2)+4*ct+2*t,2)}, v{vT1 if ct else vT0} offset:{(ks%3)*2048+1024*t}", ("f", ks))
    for ks in range(PH - 1):
        h_load(ks)
    for i in range(4):
        tr2(0, i)
    e.wait_all(lg=True)
    for ks in range(28):
        s = ks % 2
        if ks + 3 < 28:
            w2_dma(ks + 3)
        if ks + PH - 1 < 28:
            h_load(ks + PH - 1)
        e.wait(vm=("h", ks))
        if ks + 1 < 28:
            e.wait(vm=("w", ks + 1))
        for i in range(4):
            rh, ct = i >> 1, i & 1
            a = ACC + 16 * i
            e.i(f"{MF32} {V(a,16)}, {V(72+8*s+4*ct,4)}, {V(88+8*(ks%PH)+4*rh,4)}, {'0' if ks == 0 else V(a,16)}")
            if ks + 1 < 28:
                tr2(ks + 1, i)
                if opt.pace or i == 3:
                    e.wait_all(lg=True)
    stamp(7)
    exit_if(7)
    e.c("wo slice -> R0 by DMA once attention has left it; fragments -> registers")
    e.i("s_setprio 3")
    lds_poll(CR0, 4, 72, sleep=8)
    slice_dma(sWO, sF, 126, "wo")
    e.i(f"s_lshl_b32 s{sOFF2}, s{sCB}, 7")
    e.i(f"s_and_b32 s{sT0}, s{sF}, 1")
    e.i(f"s_lshl_b32 s{sT0}, s{sT0}, 6")
    e.i(f"s_add_u32 s{sOFF2}, s{sOFF2}, s{sT0}")
    e.i(f"s_lshl_b32 s{sT0}, s{sRB}, 1")
    e.i(f"s_lshr_b32 s{sT1}, s{sF}, 1")
    e.i(f"s_add_u32 s{sT0}, s{sT0}, s{sT1}")
    e.i(f"s_lshl_b32 s{sT0}, s{sT0}, 15")
    e.i(f"s_add_u32 s{sOFF2}, s{sOFF2}, s{sT0}")
    G, XR = 104, 112
    XR = 96
    for q in range(4):
        e.vmem(f"buffer_load_dwordx2 {V(XR+2*q,2)}, v3, {S(sX,4)}, s{sOFF2} offen offset:{16*q}", "xr")
    e.wait_all(vm=True)
    lds_signal(CWO)
    lds_poll(CWO, 4, 72, sleep=4)
    for ks in range(32):
        for t in range(2):
            e.lds(f"ds_read_b64_tr_b16 {V(128+4*ks+2*t,2)}, v123 offset:{ks*2048+1024*t}")
    e.i(f"s_lshl_b32 s{sT0}, s{sRB}, 6")
    e.i(f"s_lshr_b32 s{sOFF}, s{sF}, 1")
    e.i(f"s_add_u32 s{sT0}, s{sT0}, s{sOFF}")
    e.i(f"s_lshl_b32 s{sT0}, s{sT0}, 10")
    e.i(f"s_add_u32 s{sOFF}, s{sT0}, {WS_O}")
    e.i(f"s_and_b32 s{sT2}, s{sF}, 2")
    e.i(f"s_lshl_b32 s{sT2}, s{sT2}, 2")
    e.i(f"s_add_u32 s{sT2}, s{sT2}, s{sFLG}")
    e.i(f"s_add_u32 s{sT2}, s{sT2}, {hex(WS_OF)}")
    e.i(f"s_mov_b32 s{sT1}, {hex(f32bits(-math.log2(math.e)))}")
    stamp(8, True)
    e.c("attention finished in this workgroup: reduce f partials through R1")
    lds_poll(CAD, 4, 72, sleep=4)
    for t in range(4):
        for q in range(4):
            e.lds(f"ds_write_b128 v{vW}, {V(ACC+16*t+4*q,4)} offset:{t*16384+q*1024}")
    lds_signal(CF)
    lds_poll(CF, 4, 72, sleep=0)
    for src in range(4):
        for q in range(4):
            e.lds(f"ds_read_b128 {V(ACC+16*src+4*q,4)}, v{vWr} offset:{src*4096+q*1024}", ("r", src))
    e.wait(lg=("r", 1))
    for r in range(16):
        e.i(f"v_add_f32 v{ACC+r}, v{ACC+r}, v{ACC+16+r}")
    e.wait_all(lg=True)
    for r in range(16):
        e.i(f"v_add_f32 v{ACC+32+r}, v{ACC+32+r}, v{ACC+48+r}")
    for r in range(16):
        e.i(f"v_add_f32 v{ACC+r}, v{ACC+r}, v{ACC+32+r}")
    for r in range(16):
        e.i(f"v_mul_f32 v{ACC+16+r}, s{sT1}, v{ACC+r}")
    for r in range(16):
        e.i(f"v_exp_f32 v{ACC+16+r}, v{ACC+16+r}")
    for r in range(16):
        e.i(f"v_add_f32 v{ACC+16+r}, 1.0, v{ACC+16+r}")
    for r in range(16):
        e.i(f"v_rcp_f32 v{ACC+16+r}, v{ACC+16+r}")
    for r in range(16):
        e.i(f"v_mul_f32 v{G+r}, v{ACC+r}, v{ACC+16+r}")
    stamp(9) if False else None
    e.c("wait for o of the whole row group")
    flag_poll(4, sT2, 72, sleep=1)
    stamp(1, True)
    NO = 18
    def o_load(ks):
        e.vmem(f"buffer_load_dwordx4 {V(24+4*(ks%NO),4)}, v{vL16}, {S(sWS,4)}, s{sOFF} offen offset:{2048*(ks%2)} sc1", ("o", ks))
        if ks % 2 == 1:
            e.i(f"s_add_u32 s{sOFF}, s{sOFF}, 4096")
    for ks in range(NO):
        o_load(ks)
    for ks in range(32):
        e.wait(vm=("o", ks))
        e.i(f"{MF32} v[8:23], {V(128+4*ks,4)}, {V(24+4*(ks%NO),4)}, {'0' if ks == 0 else 'v[8:23]'}")
        if ks + NO < 32:
            o_load(ks + NO)
    for t in range(8):
        e.i(f"v_lshlrev_b32 v{128+2*t}, 16, v{XR+t}")
        e.i(f"v_and_b32 v{129+2*t}, s{sMASK}, v{XR+t}")
    for r in range(16):
        e.i(f"v_fmac_f32 v{128+r}, v{8+r}, v{G+r}")
    for q in range(4):
        for j in range(2):
            e.i(f"v_cvt_pk_bf16_f32 v{XR+2*q+j}, v{128+4*q+2*j}, v{128+4*q+2*j+1}")
        e.vmem(f"buffer_store_dwordx2 {V(XR+2*q,2)}, v3, {S(sOUT,4)}, s{sOFF2} offen offset:{16*q}")
    if opt.stamps:
        e.wait_all(vm=True)
        stamp(10)
    dump_stamps()
    e.label("L_end")
    e.i("s_endpgm")
    return e

def wrap(e):
    hdr = open("cdna_kernels/%s.s.ref" % NAME).read().split("\n")
    top = [l for l in hdr if l.startswith(";") and "@launch" not in l]
    out = "\n".join(top) + f"\n; @launch grid=(256,1,1) block=(512,1,1) lds={LDS_BYTES}\n"
    out += f""".amdgcn_target "amdgcn-amd-amdhsa--gfx950"
.text
.globl {NAME}_kernel
.p2align 8
.type {NAME}_kernel,@function
{NAME}_kernel:
"""
    out += e.text()
    out += f""".section .rodata,"a"
.p2align 6
.amdhsa_kernel {NAME}_kernel
  .amdhsa_next_free_vgpr 256
  .amdhsa_next_free_sgpr 102
  .amdhsa_accum_offset 256
  .amdhsa_group_segment_fixed_size 0
  .amdhsa_kernarg_size 88
  .amdhsa_user_sgpr_count 2
  .amdhsa_user_sgpr_kernarg_segment_ptr 1
  .amdhsa_system_sgpr_workgroup_id_x 1
.end_amdhsa_kernel
"""
    return out

if __name__ == "__main__":
    opt = Opt()
    outp = sys.argv[1]
    for a in sys.argv[2:]:
        k, v = a.split("=")
        setattr(opt, k, type(getattr(opt, k))(eval(v)))
    e = gen(opt)
    bad = check_cfg(e.lines)
    print("hazards:", bad, "lines:", len(e.lines), "lds", LDS_BYTES)
    open(outp, "w").write(wrap(e))
```

```python
import sys, math, struct
from asmlib import *

NAME = "recurrent_scan__grouped_kv_mqa__dense_activation_relu__prompt"
MF32 = "v_mfma_f32_32x32x16_bf16"
MF16 = "v_mfma_f32_16x16x32_bf16"

def f32bits(x):
    return struct.unpack("<I", struct.pack("<f", x))[0]

KVS = 2080
R0 = 0
R1 = 32 * KVS
XN_RH = 64 * 528
R2 = R1 + 2 * XN_RH
R3 = R2 + 16384
R4 = R3 + 8192
LDS_BYTES = R4 + 64
CXN, C6, CQ, CA, CX, CH2, CR0, CWO, CAD, CF, CKV, CKM, CTAG = [4 * i for i in range(13)]
assert R2 % 128 == 0 and R3 % 128 == 0
WS_KV = 0
WS_EPOCH = 0x30000
WS_KVF = 0x38000
WS_HF = 0x40000
WS_OF = 0x50000
WS_O = 0x100000
WS_H = 0x400000
WS_STAMP = 0x1000000
sX, sWQ, sWKV, sWO, sW1, sW2, sOUT, sDBG, sWS = 8, 12, 16, 20, 24, 28, 32, 36, 40
sMASK, sF, sSPIN, sFLG = 44, 45, 46, 47
sWAVE, sRB, sCB, sT0, sT1, sT2, sOFF, sOFF2, sCNT, sSEG = 70, 71, 72, 73, 74, 75, 76, 77, 78, 79
sRG, sJ, sTAG = 48, 49, 50
sSTAMP = 80

class Opt:
    stamps = False
    unr = 8
    force_fallback = False
    thr = 40.0
    exit_at = 0
    spin = 0x20000
    warm = True
    look = 2
    pace = True
    kvsleep = 4
    front = False
    early_w = 0
    nowait = False
    pf0 = 8
    nowr = False
    map24 = False
    noload = False
    lsleep = 1
    mid = False
    dbgst = False

def gen(opt):
    e = E()
    def stamp(k, late=False):
        if late and opt.front:
            return
        if opt.stamps:
            e.i(f"s_memrealtime {S(sSTAMP+2*k,2)}")
    def cstamp(k):
        if opt.stamps:
            e.i(f"s_memtime {S(sSTAMP+2*k,2)}")
    def dump_stamps(att=False):
        if not opt.stamps:
            return
        e.wait_all(vm=True, lg=True)
        e.i("v_mov_b32 v2, 0")
        if opt.dbgst:
            l0 = lbl("dbgskip")
            order = [0,1,2,3,4,5,6,7] if att else [9,3,5,6,7,1,10,0]
            e.i(f"s_cmp_lg_u32 s{sWAVE}, {0 if att else 7}")
            e.i(f"s_cbranch_scc1 {l0}")
            if att:
                e.i(f"s_not_b32 s{sSTAMP}, s{sSTAMP}")
            for i, k in enumerate(order):
                e.i(f"v_writelane_b32 v2, s{sSTAMP+2*k}, {i}")
            e.i("v_lshlrev_b32 v3, 2, v1")
            e.i("s_mov_b64 exec, 0xff")
            e.i(f"buffer_atomic_umax v2, v3, {S(sDBG,4)}, 0 offen offset:{0 if att else 32}")
            e.i("s_mov_b64 exec, -1")
            e.label(l0)
            return
        for k in range(22):
            e.i(f"v_writelane_b32 v2, s{sSTAMP+k}, {k}")
        e.i(f"s_lshl_b32 s{sT0}, s2, 3")
        e.i(f"s_add_u32 s{sT0}, s{sT0}, s{sWAVE}")
        e.i(f"s_lshl_b32 s{sT0}, s{sT0}, 8")
        e.i(f"s_add_u32 s{sT0}, s{sT0}, {WS_STAMP}")
        e.i("v_lshlrev_b32 v3, 2, v1")
        e.i(f"buffer_store_dword v2, v3, {S(sWS,4)}, s{sT0} offen")
    def exit_if(k):
        if opt.exit_at == k:
            dump_stamps()
            e.i("s_endpgm")

    uid = [0]
    def lbl(p):
        uid[0] += 1
        return f"L_{p}_{uid[0]}"
    def spin_init():
        e.i(f"s_mov_b32 s{sSPIN}, {hex(opt.spin)}")
    def spin_tail(top, done, sleep):
        e.i(f"s_sub_u32 s{sSPIN}, s{sSPIN}, 1")
        e.i(f"s_cbranch_scc1 {done}")
        if sleep:
            e.i(f"s_sleep {sleep}")
        e.i(f"s_branch {top}")
    def lds_signal(off):
        e.i("s_mov_b64 exec, 1")
        e.lds(f"ds_add_u32 v6, v7 offset:{off}")
        e.i("s_mov_b64 exec, -1")
    def lds_poll(off, n, vt, sleep=1, mult=16):
        top, done = lbl("lp"), lbl("lpd")
        e.i(f"s_mov_b32 s{sSPIN}, {hex(opt.spin*mult)}")
        e.label(top)
        e.i(f"ds_read_b32 v{vt}, v6 offset:{off}")
        e.wait_all(lg=True)
        e.i(f"v_readfirstlane_b32 s{sT0}, v{vt}")
        e.i(f"s_cmp_ge_u32 s{sT0}, {n}")
        e.i(f"s_cbranch_scc1 {done}")
        spin_tail(top, done, sleep)
        e.label(done)
    def flag_poll(voff, soff, vt, sleep=2):
        top, done = lbl("fp"), lbl("fpd")
        spin_init()
        e.label(top)
        e.i(f"buffer_load_dword v{vt}, v{voff}, {S(sWS,4)}, s{soff} offen sc1")
        e.wait_all(vm=True)
        e.i(f"v_cmp_ne_u32 vcc, s{sTAG}, v{vt}")
        e.i(f"s_cbranch_vccz {done}")
        spin_tail(top, done, sleep)
        e.label(done)
    def get_tag(vt):
        e.i(f"ds_read_b32 v{vt}, v6 offset:{CTAG}")
        e.wait_all(lg=True)
        e.i(f"v_readfirstlane_b32 s{sTAG}, v{vt}")
    def slice_dma(srd, wave_s, vsw, tag):
        e.i(f"s_lshl_b32 s{sOFF}, s{wave_s}, 17")
        e.i(f"s_lshl_b32 s{sT0}, s{sCB}, 7")
        e.i(f"s_add_u32 s{sOFF}, s{sOFF}, s{sT0}")
        e.i(f"s_lshl_b32 s{sT1}, s{wave_s}, 14")
        for i in range(16):
            e.i(f"s_mov_b32 m0, s{sT1}")
            e.i(f"s_add_u32 s{sT1}, s{sT1}, 1024")
            e.vmem(f"buffer_load_dwordx4 v{vsw}, {S(srd,4)}, s{sOFF} offen lds", tag)
            e.i(f"s_add_u32 s{sOFF}, s{sOFF}, 8192")
    def kv_dma(wave_s, half, vl16, soff):
        e.i(f"s_lshl_b32 s{soff}, s{wave_s}, 11")
        if half:
            e.i(f"s_add_u32 s{soff}, s{soff}, 0x10000")
        e.i(f"s_mul_i32 s{sT1}, s{wave_s}, {KVS}")
        if half:
            e.i(f"s_add_u32 s{sT1}, s{sT1}, {R1}")
        for i in range(8):
            e.i(f"s_mov_b32 m0, s{sT1}")
            e.i(f"s_add_u32 s{sT1}, s{sT1}, {4*KVS}")
            for p in range(2):
                e.vmem(f"buffer_load_dwordx4 v{vl16}, {S(sWS,4)}, s{soff} offen offset:{1024*p} sc1 lds", "kv")
            e.i(f"s_add_u32 s{soff}, s{soff}, 8192")
    def const_spots(base, va, vd):
        e.i(f"v_and_b32 v{va}, 31, v1")
        e.i(f"v_mul_u32_u24 v{va}, {KVS}, v{va}")
        e.i(f"v_lshl_add_u32 v{va}, v2, 4, v{va}")
        if base:
            e.i(f"v_add_u32 v{va}, {base}, v{va}")
        e.i(f"v_subrev_u32 v{vd}, 1, v2")
        e.i(f"v_and_b32 v{vd}, 0x3f803f80, v{vd}")
        for r in range(1, 4):
            e.i(f"v_mov_b32 v{vd+r}, v{vd}")

    e.i("s_cmp_ge_u32 s2, 256")
    e.i("s_cbranch_scc1 L_end")
    e.i("s_load_dwordx16 s[48:63], s[0:1], 0")
    e.i("s_load_dwordx4 s[64:67], s[0:1], 64")
    e.i("s_load_dwordx2 s[68:69], s[0:1], 80")
    stamp(0)
    e.i("v_lshrrev_b32 v2, 6, v0")
    e.i("v_and_b32 v1, 63, v0")
    e.i(f"v_readfirstlane_b32 s{sWAVE}, v2")
    e.i(f"s_and_b32 s{sT0}, s2, 7")
    e.i(f"s_lshr_b32 s{sT1}, s2, 3")
    if not opt.map24:
        e.i(f"s_and_b32 s{sCB}, s{sT1}, 7")
        e.i(f"s_lshr_b32 s{sT1}, s{sT1}, 3")
        e.i(f"s_lshl_b32 s{sRB}, s{sT0}, 2")
        e.i(f"s_add_u32 s{sRB}, s{sRB}, s{sT1}")
    else:
        e.i(f"s_and_b32 s{sCB}, s{sT1}, 3")
        e.i(f"s_and_b32 s{sRB}, s{sT0}, 1")
        e.i(f"s_lshl_b32 s{sRB}, s{sRB}, 2")
        e.i(f"s_add_u32 s{sCB}, s{sCB}, s{sRB}")
        e.i(f"s_lshr_b32 s{sT1}, s{sT1}, 2")
        e.i(f"s_lshr_b32 s{sRB}, s{sT0}, 1")
        e.i(f"s_lshl_b32 s{sRB}, s{sRB}, 3")
        e.i(f"s_add_u32 s{sRB}, s{sRB}, s{sT1}")
    e.i(f"s_mov_b32 s{sMASK}, 0xffff0000")
    e.i(f"s_and_b32 s{sF}, s{sWAVE}, 3")
    e.i(f"s_and_b32 s{sT2}, s{sCB}, 6")
    e.i(f"s_add_u32 s{sT2}, s{sT2}, s{sWAVE}")
    e.i(f"s_add_u32 s{sT2}, s{sT2}, 2")
    e.i(f"s_and_b32 s{sT2}, s{sT2}, 7")
    e.i("v_lshrrev_b32 v2, 3, v1")
    e.i("v_and_b32 v3, 7, v1")
    e.i("v_lshlrev_b32 v4, 10, v2")
    e.i("v_lshl_add_u32 v4, v3, 4, v4")
    e.i(f"s_lshl_b32 s{sOFF}, s{sRB}, 3")
    e.i(f"s_add_u32 s{sOFF}, s{sOFF}, s{sT2}")
    e.i(f"s_lshl_b32 s{sOFF}, s{sOFF}, 13")
    for srd, size in ((sX, 2048*512*2), (sWQ, 512*512*2), (sWKV, 512*16*2), (sWO, 512*512*2), (sW1, 512*1792*2),
                      (sW2, 1792*512*2), (sOUT, 2048*512*2), (sDBG, 256), (sWS, 0x10000000)):
        e.i(f"s_mov_b32 s{srd+2}, {hex(size)}")
        e.i(f"s_mov_b32 s{srd+3}, 0x20000")
    e.i(f"v_mov_b32 v6, {R4}")
    e.i("v_mov_b32 v7, 1")
    e.i("v_mov_b32 v108, 0")
    e.i("v_mov_b32 v109, 0")
    e.i("v_and_b32 v105, 7, v1")
    e.i("v_lshl_add_u32 v105, v105, 3, v6")
    e.i("ds_write_b64 v105, v[108:109]")
    e.i(f"s_bitcmp1_b32 s{sCB}, 0")
    e.i("s_waitcnt lgkmcnt(0)")
    e.i(f"s_mov_b64 {S(sX,2)}, s[48:49]")
    for i in range(8):
        e.vmem(f"buffer_load_dwordx4 {V(8+4*i,4)}, v4, {S(sX,4)}, s{sOFF} offen offset:{128*i}", "x")
    e.i("s_barrier")
    e.i(f"s_cselect_b64 {S(sWKV,2)}, s[54:55], s[52:53]")
    e.i(f"s_mov_b64 {S(sWQ,2)}, s[50:51]")
    e.i(f"s_mov_b64 {S(sWO,2)}, s[56:57]")
    e.i(f"s_mov_b64 {S(sW1,2)}, s[60:61]")
    e.i(f"s_mov_b64 {S(sW2,2)}, s[62:63]")
    e.i(f"s_mov_b64 {S(sOUT,2)}, s[64:65]")
    e.i(f"s_mov_b64 {S(sDBG,2)}, s[66:67]")
    e.i(f"s_mov_b64 {S(sWS,2)}, s[68:69]")
    e.i(f"s_mov_b32 s{sRG}, s{sT2}")
    e.i(f"s_lshr_b32 s{sJ}, s2, 3")
    e.i(f"s_lshl_b32 s{sFLG}, s{sRB}, 10")
    e.i("v_lshrrev_b32 v5, 2, v1")
    e.i("v_and_b32 v5, 4, v5")
    e.i("v_xor_b32 v5, v5, v3")
    e.i("v_lshlrev_b32 v126, 10, v2")
    e.i("v_lshl_add_u32 v126, v5, 4, v126")
    e.i(f"s_cmp_ge_u32 s{sWAVE}, 4")
    e.i("s_cbranch_scc1 L_pre_ffn")
    vm_x = list(e.vm)
    e.i("s_setprio 1")
    slice_dma(sWQ, sWAVE, 126, "wq")
    e.wait(vm="x")
    e.i("s_branch L_ln")

    e.label("L_pre_ffn")
    e.vm = list(vm_x)
    e.i(f"s_cmp_ge_u32 s{sWAVE}, 6")
    e.i("s_cbranch_scc1 L_pre_67")
    e.c("waves 4,5: touch this workgroup's share of w1 so that it is L2 resident when FFN1 starts")
    e.i("v_lshlrev_b32 v105, 7, v1")
    e.i(f"s_lshl_b32 s{sT0}, s{sJ}, 1")
    e.i(f"s_add_u32 s{sT0}, s{sT0}, s{sF}")
    e.i(f"s_mul_i32 s{sT0}, s{sT0}, {4*7168}")
    if opt.warm:
        for i in range(4):
            e.vmem(f"buffer_load_dword v127, v105, {S(sW1,4)}, s{sT0} offen", "warm")
            e.i(f"s_add_u32 s{sT0}, s{sT0}, 7168")
    e.wait(vm="x")
    e.i("s_branch L_ln")

    e.label("L_pre_67")
    e.vm = list(vm_x)
    e.i("s_setprio 3")
    e.i(f"s_cmp_eq_u32 s{sWAVE}, 7")
    e.i("s_cbranch_scc1 L_pre_7")
    e.wait(vm="x")
    e.i("s_branch L_ln")
    e.label("L_pre_7")
    e.vm = list(vm_x)
    e.c("wave 7: epoch word (tells this launch's hand-offs from earlier ones), wk/wv -> LDS by DMA")
    e.i(f"s_load_dword s{sTAG}, s[68:69], {hex(WS_EPOCH)}")
    e.i("v_lshlrev_b32 v105, 4, v1")
    for i in range(4):
        e.i(f"s_mov_b32 m0, {R2 + 4096*i}")
        e.i(f"s_mov_b32 s{sT0}, {4096*i}")
        for k in range(4):
            e.vmem(f"buffer_load_dwordx4 v105, {S(sWKV,4)}, s{sT0} offen offset:{1024*k} lds", "wkv")
    e.wait(vm="x")
    vm_w7 = list(e.vm)

    e.label("L_ln")
    stamp(1)
    X = 40
    for t in range(32):
        e.i(f"v_lshlrev_b32 v{X+2*t}, 16, v{8+t}")
        e.i(f"v_and_b32 v{X+2*t+1}, s{sMASK}, v{8+t}")
    A = 112
    for a in range(4):
        e.i(f"v_pk_add_f32 {V(A+2*a,2)}, {V(X+4*a,2)}, {V(X+4*a+2,2)}")
    for t in range(8, 32):
        a = t % 4
        e.i(f"v_pk_add_f32 {V(A+2*a,2)}, {V(A+2*a,2)}, {V(X+2*t,2)}")
    def reduce8():
        e.i(f"v_pk_add_f32 {V(A,2)}, {V(A,2)}, {V(A+2,2)}")
        e.i(f"v_pk_add_f32 {V(A+4,2)}, {V(A+4,2)}, {V(A+6,2)}")
        e.i(f"v_pk_add_f32 {V(A,2)}, {V(A,2)}, {V(A+4,2)}")
        e.i(f"v_add_f32 v{A}, v{A}, v{A+1}")
        for m in ("quad_perm:[1,0,3,2]", "quad_perm:[2,3,0,1]", "row_half_mirror"):
            e.nop(2)
            e.i(f"v_add_f32_dpp v{A}, v{A}, v{A} {m} row_mask:0xf bank_mask:0xf")
    reduce8()
    e.i(f"v_mul_f32 v120, {hex(f32bits(-1.0/512))}, v{A}")
    for t in range(32):
        e.i(f"v_pk_add_f32 {V(X+2*t,2)}, {V(X+2*t,2)}, v[120:121] op_sel_hi:[1,0]")
    for t in range(32):
        a = t % 4
        if t < 4:
            e.i(f"v_pk_mul_f32 {V(A+2*a,2)}, {V(X+2*t,2)}, {V(X+2*t,2)}")
        else:
            e.i(f"v_pk_fma_f32 {V(A+2*a,2)}, {V(X+2*t,2)}, {V(X+2*t,2)}, {V(A+2*a,2)}")
    reduce8()
    e.i(f"v_mov_b32 v121, {hex(f32bits(1e-5))}")
    e.i(f"v_fmac_f32 v121, {hex(f32bits(1.0/512))}, v{A}")
    e.i("v_rsq_f32 v120, v121")
    e.i(f"s_lshr_b32 s{sT0}, s{sRG}, 2")
    e.i(f"s_mul_i32 s{sT0}, s{sT0}, {XN_RH}")
    e.i(f"s_and_b32 s{sT1}, s{sRG}, 3")
    e.i(f"s_lshl_b32 s{sT1}, s{sT1}, 7")
    e.i(f"s_add_u32 s{sT0}, s{sT0}, s{sT1}")
    e.i(f"s_add_u32 s{sT0}, s{sT0}, {R1}")
    e.i("v_mul_u32_u24 v122, 528, v3")
    e.i("v_lshl_add_u32 v122, v2, 4, v122")
    e.i(f"v_add_u32 v122, s{sT0}, v122")
    e.lg = []
    for i in range(8):
        for t in range(4*i, 4*i+4):
            e.i(f"v_pk_mul_f32 {V(X+2*t,2)}, {V(X+2*t,2)}, v[120:121] op_sel_hi:[1,0]")
        for t in range(4*i, 4*i+4):
            e.i(f"v_cvt_pk_bf16_f32 v{8+t}, v{X+2*t}, v{X+2*t+1}")
        e.lds(f"ds_write_b128 v122, {V(8+4*i,4)} offset:{4224*i}")
    if opt.front: stamp(8)
    e.i(f"s_cmp_lg_u32 s{sWAVE}, 6")
    e.i("s_cbranch_scc1 L_not6")
    lds_signal(C6)
    e.i("s_setprio 0")
    e.label("L_not6")
    e.i("v_mul_u32_u24 v104, 3584, v2")
    e.i("v_lshl_add_u32 v104, v3, 4, v104")
    e.i("v_lshrrev_b32 v2, 5, v1")
    e.i("v_bfe_u32 v3, v1, 4, 1")
    e.i("v_bfe_u32 v4, v1, 2, 2")
    e.i("v_and_b32 v5, 3, v1")
    e.i(f"s_cmp_eq_u32 s{sWAVE}, 7")
    e.i("s_cbranch_scc1 L_w7")
    def common_addr():
        e.i("v_lshrrev_b32 v124, 1, v5")
        e.i("v_lshl_add_u32 v124, v3, 1, v124")
        e.i("v_lshlrev_b32 v125, 1, v4")
        e.i("v_and_b32 v125, 4, v125")
        e.i("v_xor_b32 v124, v124, v125")
        e.i("v_lshlrev_b32 v123, 7, v4")
        e.i("v_lshl_add_u32 v123, v124, 4, v123")
        e.i("v_and_b32 v125, 1, v5")
        e.i("v_lshl_add_u32 v123, v125, 3, v123")
        e.i("v_and_b32 v125, 31, v1")
        e.i("v_mul_u32_u24 v124, 528, v2")
        e.i("v_lshl_add_u32 v124, v125, 4, v124")
        e.i(f"v_add_u32 v124, {R1}, v124")
        e.i(f"v_add_u32 v125, {XN_RH}, v124")
    e.i(f"s_cmp_ge_u32 s{sWAVE}, 4")
    e.i("s_cbranch_scc1 L_ffn")

    e.wait_all(vm=True)
    lds_signal(CXN)
    common_addr()
    e.i(f"s_and_b32 s{sT0}, s{sWAVE}, 1")
    e.i(f"s_lshl_b32 s{sT0}, s{sT0}, 6")
    e.i("v_lshl_add_u32 v123, v2, 10, v123")
    e.i(f"v_xor_b32 v123, s{sT0}, v123")
    e.i(f"s_lshr_b32 s{sT0}, s{sWAVE}, 1")
    e.i(f"s_mul_i32 s{sT0}, s{sT0}, {XN_RH}")
    e.i(f"v_add_u32 v124, s{sT0}, v124")
    S0, S1, P0, P1, OA, OB, NMA, NMB, QA, QB, KB, VB = 32, 48, 64, 72, 80, 96, 112, 128, 144, 148, 152, 168
    vK, vV0, vV1, vFl = 200, 201, 202, 203
    e.i(f"v_lshlrev_b32 v{vK}, 4, v1")
    e.i("v_and_b32 v24, 15, v1")
    e.i("v_lshl_add_u32 v24, v2, 4, v24")
    e.i("v_lshlrev_b32 v24, 4, v24")
    e.i("v_add_u32 v25, 1024, v24")
    e.i("v_add_u32 v26, 1536, v24")
    e.i("v_and_b32 v27, 11, v1")
    e.i("v_cmp_ne_u32 vcc, 0, v27")
    e.i("v_mov_b32 v27, 2048")
    e.i("v_mov_b32 v28, 2064")
    e.i("v_cndmask_b32 v27, v27, v28, vcc")
    e.i("v_cmp_eq_u32 vcc, 0, v3")
    e.i(f"v_lshrrev_b32 v{vFl}, 2, v1")
    e.i(f"v_lshlrev_b32 v{vFl}, 7, v{vFl}")
    e.i(f"v_lshl_add_u32 v{vFl}, v5, 4, v{vFl}")
    e.i(f"v_cndmask_b32 v{vV0}, v27, v25, vcc")
    e.i(f"v_cndmask_b32 v{vV1}, v27, v26, vcc")
    const_spots(0, 205, 208)
    for r in range(0, 32, 2):
        e.i(f"v_mov_b64 {V(OA+r,2)}, 0")
    for r in range(0, 8, 2):
        e.i(f"v_mov_b64 {V(P1+r,2)}, 0")
        e.i(f"v_mov_b64 {V(VB+24+r,2)}, 0")
    lds_poll(CXN, 8, 26, sleep=0)
    stamp(2)
    e.c("Q projection: wave w -> head pair hp=w&1, row half rh=w>>1")
    def qreads(ks):
        s = ks % 4
        e.lds(f"ds_read_b64_tr_b16 {V(32+8*s,2)}, v123 offset:{ks*2048}", ("q", ks))
        e.lds(f"ds_read_b64_tr_b16 {V(34+8*s,2)}, v123 offset:{ks*2048+512}", ("q", ks))
        e.lds(f"ds_read_b128 {V(36+8*s,4)}, v124 offset:{ks*1056}", ("q", ks))
    for ks in range(4):
        qreads(ks)
    for ks in range(32):
        s = ks % 4
        e.wait(lg=("q", ks))
        e.i(f"{MF32} v[8:23], {V(32+8*s,4)}, {V(36+8*s,4)}, {'0' if ks == 0 else 'v[8:23]'}")
        if ks + 4 < 32:
            qreads(ks + 4)
    lds_signal(CQ)
    e.i(f"s_mov_b32 s{sT1}, {hex(f32bits(0.25*math.log2(math.e)))}")
    e.i(f"v_mov_b64 {V(S1+14,2)}, 0")
    e.nop(8)
    for r in range(16):
        e.i(f"v_mul_f32 v{8+r}, s{sT1}, v{8+r}")
    for hd in range(2):
        b = 8 + 8*hd
        e.i(f"v_mul_f32 v{24+hd}, v{b}, v{b}")
        for r in range(1, 8):
            e.i(f"v_fmac_f32 v{24+hd}, v{b+r}, v{b+r}")
    for hd in range(2):
        for j in range(4):
            e.i(f"v_cvt_pk_bf16_f32 v{QA+4*hd+j}, v{8+8*hd+2*j}, v{8+8*hd+2*j+1}")
    e.i("v_mov_b32 v26, v24")
    e.i("v_mov_b32 v27, v25")
    e.nop(2)
    e.i("v_permlane32_swap_b32 v24, v26")
    e.i("v_permlane32_swap_b32 v25, v27")
    e.i("v_add_f32 v24, v24, v26")
    e.i("v_add_f32 v25, v25, v27")
    lds_poll(CQ, 4, 26, sleep=0)
    e.lds("ds_write_b128 v205, v[208:211] offset:2048")
    stamp(3)
    e.c("wait for all 256 K/V producers: wave 0 polls the tagged flags and tells the others through LDS")
    get_tag(26)
    e.i(f"s_cmp_lg_u32 s{sWAVE}, 0")
    e.i("s_cbranch_scc1 L_kv_other")
    top, done = lbl("kv"), lbl("kvd")
    e.i(f"s_mov_b32 s{sT1}, {hex(WS_KVF)}")
    spin_init()
    e.label(top)
    e.i(f"buffer_load_dwordx4 v[32:35], v{vFl}, {S(sWS,4)}, s{sT1} offen sc1")
    e.i(f"buffer_load_dwordx4 v[36:39], v{vFl}, {S(sWS,4)}, s{sT1} offen offset:2048 sc1")
    e.wait_all(vm=True)
    e.i(f"v_xor_b32 v32, s{sTAG}, v32")
    e.i(f"v_xor_b32 v34, s{sTAG}, v34")
    e.i(f"v_xor_b32 v36, s{sTAG}, v36")
    e.i(f"v_xor_b32 v38, s{sTAG}, v38")
    e.i("v_or3_b32 v32, v32, v34, v36")
    e.i("v_or_b32 v32, v32, v38")
    e.i("v_cmp_ne_u32 vcc, 0, v32")
    e.i(f"s_cbranch_vccz {done}")
    spin_tail(top, done, opt.kvsleep)
    e.label(done)
    lds_signal(CKV)
    stamp(4)
    kv_dma(sWAVE, 0, vK, sOFF)
    e.i("v_max_u32 v30, v33, v37")
    for m in ("row_ror:1", "row_ror:2", "row_ror:4", "row_ror:8"):
        e.nop(2)
        e.i(f"v_max_u32_dpp v30, v30, v30 {m} row_mask:0xf bank_mask:0xf")
    e.i("v_mov_b32 v29, v30")
    e.nop(2)
    e.i("v_permlane16_swap_b32 v29, v30")
    e.i("v_max_u32 v30, v29, v30")
    e.i("v_mov_b32 v29, v30")
    e.nop(2)
    e.i("v_permlane32_swap_b32 v29, v30")
    e.i("v_max_u32 v30, v29, v30")
    e.lds(f"ds_write_b32 v6, v30 offset:{CKM}")
    lds_signal(CKV)
    e.c("workgroup 0 renews the epoch word: every producer has read it by now")
    e.i("s_cmp_lg_u32 s2, 0")
    e.i("s_cbranch_scc1 L_kv_seen")
    e.i(f"v_mov_b32 v28, s{sTAG}")
    e.i(f"v_mov_b32 v29, {hex(WS_EPOCH)}")
    e.i("s_mov_b64 exec, 1")
    e.i(f"buffer_store_dword v28, v29, {S(sWS,4)}, 0 offen sc1")
    e.i("s_mov_b64 exec, -1")
    e.i("s_branch L_kv_seen")
    e.label("L_kv_other")
    lds_poll(CKV, 1, 26, sleep=opt.lsleep, mult=16)
    stamp(4)
    e.vm = []
    kv_dma(sWAVE, 0, vK, sOFF)
    lds_poll(CKV, 2, 26, sleep=0)
    e.i(f"ds_read_b32 v30, v6 offset:{CKM}")
    e.wait_all(lg=True)
    e.label("L_kv_seen")
    lds_signal(CX)
    e.i("v_mul_f32 v24, v24, v30")
    e.i("v_mul_f32 v25, v25, v30")
    e.i("v_sqrt_f32 v24, v24")
    e.i("v_sqrt_f32 v25, v25")
    e.i(f"s_mov_b32 s{sT1}, {hex(f32bits(opt.thr))}")
    e.i("v_max_f32 v26, v24, v25")
    e.i(f"v_cmp_nge_f32 vcc, s{sT1}, v26")
    e.i("v_cmp_u_f32 s[4:5], v24, v25")
    e.i("s_or_b64 s[4:5], s[4:5], vcc")
    for r in range(16):
        e.i(f"v_sub_f32 v{NMA+r}, 0, v24")
        e.i(f"v_sub_f32 v{NMB+r}, 0, v25")
    e.wait_all(vm=True)
    lds_signal(CA)
    lds_poll(CA, 4, 26, sleep=0)
    if opt.force_fallback:
        e.i("s_branch L_fallback")
    else:
        e.i("s_cmp_lg_u64 s[4:5], 0")
        e.i("s_cbranch_scc1 L_fallback")
    e.label("L_att_start")
    stamp(5)
    for j in range(3):
        e.lds(f"ds_read_b128 {V(KB+4*j,4)}, v{vK} offset:{j*KVS}")
        e.lds(f"ds_read_b128 {V(VB+8*j,4)}, v{vV0} offset:{j*KVS}")
        e.lds(f"ds_read_b128 {V(VB+8*j+4,4)}, v{vV1} offset:{j*KVS}")
    U = opt.unr
    seg0 = (29 // U)
    e.i(f"s_mov_b32 s{sCNT}, {seg0-1}")
    e.i(f"s_mov_b32 s{sSEG}, 0")
    e.wait_all(lg=True)
    e.i(f"{MF32} {V(S0,16)}, {V(KB,4)}, {V(QA,4)}, {V(NMA,16)}")
    e.nop(12)
    def step(cur, nxt, pc, pp, K, Q, NM, O, Vb, after):
        for i in range(16):
            e.i(f"v_exp_f32 v{cur+i}, v{cur+i}")
            if i == 0:
                e.i(f"v_cvt_pk_bf16_f32 v{pp+7}, v{nxt+14}, v{nxt+15}")
                e.i(f"{MF32} {V(nxt,16)}, {V(K,4)}, {V(Q,4)}, {V(NM,16)}")
                for t in after[0]: e.i(t)
            if i >= 2 and i % 2 == 0:
                j = (i - 2) // 2
                e.i(f"v_cvt_pk_bf16_f32 v{pc+j}, v{cur+2*j}, v{cur+2*j+1}")
            if i == 5:
                e.i(f"{MF32} {V(O,16)}, {V(Vb,4)}, {V(pp,4)}, {V(O,16)}")
                for t in after[1]: e.i(t)
            if i == 10:
                e.i(f"{MF32} {V(O,16)}, {V(Vb+4,4)}, {V(pp+4,4)}, {V(O,16)}")
                for t in after[2]: e.i(t)
    e.raw(".p2align 6")
    e.label("L_att_loop")
    for u in range(U):
        b3 = (u + 3) % 4
        off = (u + 3) * KVS
        last = u == U - 1
        a0 = [f"ds_read_b128 {V(KB+4*b3,4)}, v{vK} offset:{off}"]
        a1 = [f"v_add_u32 v{vK}, {U*KVS}, v{vK}"] if last else []
        a2 = [f"s_sub_u32 s{sCNT}, s{sCNT}, 1"] if last else []
        step(S0, S1, P0, P1, KB+4*(u % 4), QB, NMB, OB, VB+8*((u-1) % 4), [a0, a1, a2])
        a0 = [f"ds_read_b128 {V(VB+8*b3,4)}, v{vV0} offset:{off}"]
        a1 = [f"ds_read_b128 {V(VB+8*b3+4,4)}, v{vV1} offset:{off}"]
        a2 = ["s_waitcnt lgkmcnt(2)"] if u % 2 == 1 else []
        if last:
            a2 += [f"v_add_u32 v{vV0}, {U*KVS}, v{vV0}", f"v_add_u32 v{vV1}, {U*KVS}, v{vV1}"]
        step(S1, S0, P1, P0, KB+4*((u+1) % 4), QA, NMA, OA, VB+8*(u % 4), [a0, a1, a2])
    e.i("s_cbranch_scc0 L_att_loop")
    e.i(f"s_cmp_eq_u32 s{sSEG}, 1")
    e.i("s_cbranch_scc1 L_att_seg2")
    e.i(f"s_cmp_eq_u32 s{sSEG}, 2")
    e.i("s_cbranch_scc1 L_att_done")
    stamp(6)
    cstamp(9)
    lds_poll(CH2, 4, 26, sleep=1)
    e.i(f"s_mov_b32 s{sSEG}, 1")
    e.i(f"s_mov_b32 s{sCNT}, {32//U - seg0 - 1}")
    e.i("s_branch L_att_loop")
    e.label("L_att_seg2")
    lds_signal(CR0)
    e.i(f"s_mov_b32 s{sSEG}, 2")
    e.i(f"s_mov_b32 s{sCNT}, {32//U - 1}")
    e.i("s_branch L_att_loop")
    e.label("L_att_done")
    stamp(7)
    cstamp(10)
    e.i(f"v_cvt_pk_bf16_f32 v{P1+7}, v{S1+14}, v{S1+15}")
    e.i(f"{MF32} {V(OB,16)}, {V(VB+24,4)}, {V(P1,4)}, {V(OB,16)}")
    e.i(f"v_rcp_f32 v24, v{OA+8}")
    e.i(f"{MF32} {V(OB,16)}, {V(VB+28,4)}, {V(P1+4,4)}, {V(OB,16)}")
    lds_signal(CAD)
    e.i(f"s_lshl_b32 s{sT0}, s{sRB}, 5")
    e.i(f"s_lshl_b32 s{sT1}, s{sCB}, 2")
    e.i(f"s_add_u32 s{sT0}, s{sT0}, s{sT1}")
    e.i(f"s_and_b32 s{sT1}, s{sWAVE}, 1")
    e.i(f"s_lshl_b32 s{sT1}, s{sT1}, 1")
    e.i(f"s_add_u32 s{sT0}, s{sT0}, s{sT1}")
    e.i(f"s_lshl_b32 s{sT0}, s{sT0}, 1")
    e.i(f"s_lshr_b32 s{sT1}, s{sWAVE}, 1")
    e.i(f"s_add_u32 s{sT0}, s{sT0}, s{sT1}")
    e.i(f"s_lshl_b32 s{sT0}, s{sT0}, 10")
    e.i(f"s_add_u32 s{sOFF}, s{sT0}, {WS_O}")
    e.i("v_lshlrev_b32 v26, 4, v1")
    for hd, O in enumerate((OA, OB)):
        if hd == 1:
            e.i(f"v_rcp_f32 v24, v{OB+8}")
            e.nop(1)
        for r in range(8):
            e.i(f"v_mul_f32 v{O+r}, v{O+r}, v24")
        for j in range(4):
            e.i(f"v_cvt_pk_bf16_f32 v{8+4*hd+j}, v{O+2*j}, v{O+2*j+1}")
        e.vmem(f"buffer_store_dwordx4 {V(8+4*hd,4)}, v26, {S(sWS,4)}, s{sOFF} offen offset:{2048*hd} sc1")
    e.i(f"s_lshl_b32 s{sT0}, s{sCB}, 7")
    e.i(f"s_lshl_b32 s{sT1}, s{sWAVE}, 2")
    e.i(f"s_add_u32 s{sT0}, s{sT0}, s{sT1}")
    e.i(f"s_add_u32 s{sT0}, s{sT0}, s{sFLG}")
    e.i(f"v_mov_b32 v26, {hex(WS_OF)}")
    e.i(f"v_mov_b32 v27, s{sTAG}")
    e.i("s_mov_b64 exec, 1")
    e.wait_all(vm=True)
    e.i(f"buffer_store_dword v27, v26, {S(sWS,4)}, s{sT0} offen sc1")
    e.i("s_mov_b64 exec, -1")
    stamp(8, True)
    dump_stamps(True)
    e.i("s_endpgm")

    e.label("L_fallback")
    lds_poll(CH2, 4, 26, sleep=1)
    e.i("v_mov_b32 v24, 0xff800000")
    e.i("v_mov_b32 v25, 0xff800000")
    e.i(f"v_mov_b32 v27, v{vK}")
    e.i(f"s_mov_b32 s{sCNT}, 63")
    e.label("L_fb_loop")
    e.i(f"ds_read_b128 {V(KB,4)}, v27")
    e.i(f"v_add_u32 v27, {KVS}, v27")
    e.i("s_waitcnt lgkmcnt(0)")
    e.i(f"{MF32} {V(S0,16)}, {V(KB,4)}, {V(QA,4)}, 0")
    e.i(f"{MF32} {V(NMB,16)}, {V(KB,4)}, {V(QB,4)}, 0")
    e.nop(12)
    for r in range(0, 16, 2):
        e.i(f"v_max3_f32 v24, v24, v{S0+r}, v{S0+r+1}")
    for r in range(0, 16, 2):
        e.i(f"v_max3_f32 v25, v25, v{NMB+r}, v{NMB+r+1}")
    e.i(f"s_sub_u32 s{sCNT}, s{sCNT}, 1")
    e.i("s_cbranch_scc0 L_fb_loop")
    e.i("v_mov_b32 v26, v24")
    e.i("v_mov_b32 v27, v25")
    e.nop(2)
    e.i("v_permlane32_swap_b32 v24, v26")
    e.i("v_permlane32_swap_b32 v25, v27")
    e.i("v_max_f32 v24, v24, v26")
    e.i("v_max_f32 v25, v25, v27")
    for r in range(16):
        e.i(f"v_sub_f32 v{NMA+r}, 0, v24")
        e.i(f"v_sub_f32 v{NMB+r}, 0, v25")
    e.i("s_branch L_att_start")

    ACC = 8
    NS = opt.look + 1
    AF, BF = 72, 72 + 8 * NS
    assert BF + 8 * NS <= 120
    vW, vT0, vT1, vL16, vWr = 120, 121, 122, 0, 5
    PF = 16
    def ffn_head():
        e.i(f"s_lshl_b32 s{sT2}, s{sF}, 11")
        e.i(f"s_add_u32 s{sT2}, s{sT2}, {R3}")
        e.i(f"v_lshlrev_b32 v{vL16}, 4, v1")
    def h_store(tiles):
        e.i("s_setprio 3")
        e.i(f"s_mul_i32 s{sT0}, s{sRB}, 112")
        e.i(f"s_mul_i32 s{sT1}, s{sCB}, 14")
        e.i(f"s_add_u32 s{sT0}, s{sT0}, s{sT1}")
        e.i(f"s_lshl_b32 s{sT1}, s{sF}, 2")
        e.i(f"s_add_u32 s{sT0}, s{sT0}, s{sT1}")
        e.i(f"s_lshl_b32 s{sT0}, s{sT0}, 11")
        e.i(f"s_add_u32 s{sOFF}, s{sT0}, {WS_H}")
        e.i(f"s_add_u32 s{sOFF2}, s{sOFF}, 4096")
        e.nop(2)
        for ct in tiles:
            for rh in range(2):
                a = ACC + 16 * (rh * 2 + ct)
                for j in range(8):
                    e.i(f"v_cvt_pk_bf16_f32 v{a+j}, v{a+2*j}, v{a+2*j+1}")
                for j in range(8):
                    e.i(f"v_pk_max_i16 v{a+j}, v{a+j}, 0")
                for s in range(2):
                    e.vmem(f"buffer_store_dwordx4 {V(a+4*s,4)}, v{vL16}, {S(sWS,4)}, s{sOFF2 if ct else sOFF} offen offset:{(2*s+rh)*1024} sc1", "hst")

    e.label("L_ffn")
    e.vm = []
    lds_signal(CXN)
    e.i(f"v_mov_b32 v{vW}, v104")
    e.i(f"s_mul_i32 s{sT0}, s{sCB}, 448")
    e.i(f"s_lshl_b32 s{sT1}, s{sF}, 7")
    e.i(f"s_add_u32 s{sOFF}, s{sT0}, s{sT1}")
    def w1_load2(ks):
        for a in range(2):
            r = 128 + 8 * (ks % PF) + 4 * a
            e.vmem(f"buffer_load_dwordx4 {V(r,4)}, v{vW}, {S(sW1,4)}, s{sOFF} offen", ("w", ks))
            e.i(f"s_add_u32 s{sOFF}, s{sOFF}, {8*3584}")
    PF0 = opt.pf0
    for ks in range(PF0):
        w1_load2(ks)
    common_addr()
    ffn_head()
    e.i(f"v_lshl_add_u32 v{vT0}, v2, 10, v123")
    e.i(f"v_add_u32 v{vT0}, s{sT2}, v{vT0}")
    e.i(f"v_xor_b32 v{vT1}, 64, v{vT0}")
    e.i(f"v_lshlrev_b32 v{vWr}, 6, v3")
    e.i(f"v_xor_b32 v{vWr}, v{vWr}, v{vL16}")
    e.i(f"v_add_u32 v{vWr}, s{sT2}, v{vWr}")
    lds_poll(CXN, 8, 72, sleep=0)
    stamp(2)
    def st2(ks, part):
        s = ks % NS
        wreg = 128 + 8 * (ks % PF)
        if part < 2:
            if part == 0 and not opt.nowait:
                e.wait(vm=("w", ks))
            if not opt.nowr:
                e.lds(f"ds_write_b128 v{vWr}, {V(wreg+4*part,4)} offset:{1024*part}", ("f", ks), guard=False)
            e.lds(f"ds_read_b128 {V(BF+8*s+4*part,4)}, v{124+part} offset:{ks*1056}", ("f", ks), guard=False)
        else:
            ct = part - 2
            for t in range(2):
                e.lds(f"ds_read_b64_tr_b16 {V(AF+8*s+4*ct+2*t,2)}, v{vT1 if ct else vT0} offset:{512*t}", ("f", ks), guard=False)
    def w1_load_half(ks, a):
        r = 128 + 8 * (ks % PF) + 4 * a
        e.vmem(f"buffer_load_dwordx4 {V(r,4)}, v{vW}, {S(sW1,4)}, s{sOFF} offen", ("w", ks))
        e.i(f"s_add_u32 s{sOFF}, s{sOFF}, {8*3584}")
    for ks in range(opt.look):
        for p in range(4):
            st2(ks, p)
    for ks in range(32):
        s = ks % NS
        e.wait(lg=("f", ks))
        for i in range(4):
            rh, ct = i >> 1, i & 1
            a = ACC + 16 * i
            e.i(f"{MF32} {V(a,16)}, {V(AF+8*s+4*ct,4)}, {V(BF+8*s+4*rh,4)}, {'0' if ks == 0 else V(a,16)}")
            if ks + opt.look < 32:
                st2(ks + opt.look, i)
            if i >= 2 and ks + PF0 < 32 and not opt.noload:
                w1_load_half(ks + PF0, i - 2)
        if opt.mid and ks in (7, 15, 23):
            stamp({7: 5, 15: 6, 23: 7}[ks])
    lds_signal(CX)
    stamp(3)
    h_store([0, 1])
    e.i("s_branch L_ffn_join")

    e.label("L_w7")
    e.vm = list(vm_w7)
    e.wait_all(lg=True)
    e.i(f"s_mul_i32 s{sTAG}, s{sTAG}, 0x9e3779b1")
    e.i(f"s_add_u32 s{sTAG}, s{sTAG}, 0x7f4a7c15")
    e.i(f"v_mov_b32 v16, s{sTAG}")
    e.lds(f"ds_write_b32 v6, v16 offset:{CTAG}")
    lds_signal(CXN)
    e.c("K/V projection: 16 rows x 16 cols, rq = cb>>1, V if cb&1")
    e.i(f"s_lshr_b32 s{sT2}, s{sCB}, 2")
    e.i(f"s_mul_i32 s{sT2}, s{sT2}, {XN_RH}")
    e.i(f"s_bfe_u32 s{sT1}, s{sCB}, 0x10001")
    e.i(f"s_lshl_b32 s{sOFF2}, s{sT1}, 8")
    e.i(f"s_add_u32 s{sT2}, s{sT2}, s{sOFF2}")
    e.i(f"s_add_u32 s{sT2}, s{sT2}, {R1}")
    e.i("v_lshrrev_b32 v112, 4, v1")
    e.i("v_and_b32 v113, 15, v1")
    e.i("v_mul_u32_u24 v114, 528, v112")
    e.i("v_lshl_add_u32 v114, v113, 4, v114")
    e.i(f"v_add_u32 v114, s{sT2}, v114")
    e.i("v_lshlrev_b32 v115, 8, v112")
    e.i("v_lshl_add_u32 v115, v4, 5, v115")
    e.i("v_lshl_add_u32 v115, v5, 3, v115")
    e.i(f"v_add_u32 v115, {R2}, v115")
    e.wait(vm="wkv")
    for ks in range(16):
        e.lds(f"ds_read_b64_tr_b16 {V(128+4*ks,2)}, v115 offset:{ks*1024}")
        e.lds(f"ds_read_b64_tr_b16 {V(130+4*ks,2)}, v115 offset:{ks*1024+128}")
    lds_poll(C6, 1, 72, sleep=0)
    for ks in range(16):
        e.lds(f"ds_read_b128 {V(192+4*ks,4)}, v114 offset:{ks*2112}", ("k", ks), guard=False)
        if ks == 7:
            e.i(f"s_lshl_b32 s{sT0}, s{sRB}, 1")
            e.i(f"s_lshr_b32 s{sOFF2}, s{sCB}, 2")
            e.i(f"s_add_u32 s{sT0}, s{sT0}, s{sOFF2}")
            e.i(f"s_lshl_b32 s{sT0}, s{sT0}, 11")
            e.i("v_lshlrev_b32 v116, 3, v2")
            e.i("v_lshl_add_u32 v116, v113, 4, v116")
            e.wait(lg=("k", 3))
    e.i(f"s_bitcmp1_b32 s{sCB}, 0")
    e.i("s_cbranch_scc1 L_w7_v")
    lg_save = list(e.lg)
    def kvloop(isV):
        for ks in range(16):
            e.wait(lg=("k", ks))
            W, Xn = V(128+4*ks, 4), V(192+4*ks, 4)
            a, b = (Xn, W) if isV else (W, Xn)
            e.i(f"{MF16} v[8:11], {a}, {b}, {'0' if ks == 0 else 'v[8:11]'}")
    kvloop(False)
    e.i("v_lshl_add_u32 v116, v3, 9, v116")
    e.i(f"s_lshl_b32 s{sT1}, s{sT1}, 8")
    e.i(f"s_add_u32 s{sT0}, s{sT0}, s{sT1}")
    e.nop(5)
    e.i("v_cvt_pk_bf16_f32 v12, v8, v9")
    e.i("v_cvt_pk_bf16_f32 v13, v10, v11")
    e.vmem(f"buffer_store_dwordx2 v[12:13], v116, {S(sWS,4)}, s{sT0} offen sc1", "kvst")
    e.i("v_mul_f32 v14, v8, v8")
    for r in range(1, 4):
        e.i(f"v_fmac_f32 v14, v{8+r}, v{8+r}")
    e.i("v_mov_b32 v15, v14")
    e.nop(2)
    e.i("v_permlane32_swap_b32 v14, v15")
    e.i("v_add_f32 v14, v14, v15")
    e.i("v_mov_b32 v15, v14")
    e.nop(2)
    e.i("v_permlane16_swap_b32 v14, v15")
    e.i("v_add_f32 v14, v14, v15")
    for m in ("row_ror:1", "row_ror:2", "row_ror:4", "row_ror:8"):
        e.nop(2)
        e.i(f"v_max_u32_dpp v14, v14, v14 {m} row_mask:0xf bank_mask:0xf")
    e.i("v_mov_b32 v17, v14")
    e.i("s_branch L_w7_pub")
    e.label("L_w7_v")
    e.lg = lg_save
    kvloop(True)
    e.i("v_lshl_add_u32 v116, v3, 8, v116")
    e.i(f"s_lshl_b32 s{sT1}, s{sT1}, 9")
    e.i(f"s_add_u32 s{sT0}, s{sT0}, s{sT1}")
    e.i(f"s_add_u32 s{sT0}, s{sT0}, 1024")
    e.nop(4)
    e.i("v_cvt_pk_bf16_f32 v12, v8, v9")
    e.i("v_cvt_pk_bf16_f32 v13, v10, v11")
    e.i(f"buffer_store_dwordx2 v[12:13], v116, {S(sWS,4)}, s{sT0} offen sc1")
    e.i("v_mov_b32 v17, 0")
    e.label("L_w7_pub")
    e.i(f"s_lshl_b32 s{sT0}, s{sRB}, 7")
    e.i(f"s_lshl_b32 s{sT1}, s{sCB}, 3")
    e.i(f"s_add_u32 s{sT0}, s{sT0}, s{sT1}")
    e.i(f"v_mov_b32 v15, {hex(WS_KVF)}")
    e.i(f"v_lshrrev_b32 v{vW}, 2, v1")
    e.i(f"v_mul_u32_u24 v{vW}, 3584, v{vW}")
    e.i(f"v_lshl_add_u32 v{vW}, v5, 4, v{vW}")
    e.i(f"s_mul_i32 s{sOFF}, s{sCB}, 448")
    e.i(f"s_add_u32 s{sOFF}, s{sOFF}, 384")
    e.i(f"v_lshlrev_b32 v{vT0}, 6, v4")
    e.i(f"v_lshl_add_u32 v{vT0}, v3, 5, v{vT0}")
    e.i(f"v_lshl_add_u32 v{vT0}, v5, 3, v{vT0}")
    e.i(f"v_lshl_add_u32 v{vT0}, v2, 9, v{vT0}")
    common_addr()
    ffn_head()
    e.i(f"v_add_u32 v{vT0}, s{sT2}, v{vT0}")
    e.i(f"v_add_u32 v{vWr}, s{sT2}, v{vL16}")
    stamp(2)
    e.i("s_mov_b64 exec, 1")
    e.wait_all(vm=True)
    e.i(f"buffer_store_dwordx2 v[16:17], v15, {S(sWS,4)}, s{sT0} offen sc1")
    e.i("s_mov_b64 exec, -1")
    e.i("s_setprio 0")
    stamp(9)
    def w1_load1(ks):
        e.vmem(f"buffer_load_dwordx4 {V(128+4*ks,4)}, v{vW}, {S(sW1,4)}, s{sOFF} offen", ("w", ks))
        e.i(f"s_add_u32 s{sOFF}, s{sOFF}, {16*3584}")
    for ks in range(12):
        w1_load1(ks)
    lds_poll(CXN, 8, 72, sleep=0)
    def st1(ks, part):
        s = ks % NS
        if part == 0:
            e.wait(vm=("w", ks))
            e.lds(f"ds_write_b128 v{vWr}, {V(128+4*ks,4)}", ("f", ks))
            e.lds(f"ds_read_b128 {V(BF+8*s,4)}, v124 offset:{ks*1056}", ("f", ks))
        else:
            for t in range(2):
                e.lds(f"ds_read_b64_tr_b16 {V(AF+8*s+2*t,2)}, v{vT0} offset:{256*t}", ("f", ks))
            e.lds(f"ds_read_b128 {V(BF+8*s+4,4)}, v125 offset:{ks*1056}", ("f", ks))
    for ks in range(opt.look):
        st1(ks, 0)
        st1(ks, 1)
    for ks in range(32):
        s = ks % NS
        e.wait(lg=("f", ks))
        for rh in range(2):
            a = ACC + 32 * rh
            e.i(f"{MF32} {V(a,16)}, {V(AF+8*s,4)}, {V(BF+8*s+4*rh,4)}, {'0' if ks == 0 else V(a,16)}")
            if ks + opt.look < 32:
                st1(ks + opt.look, rh)
        if ks + 12 < 32:
            w1_load1(ks + 12)
    lds_signal(CX)
    stamp(3)
    h_store([0])

    e.label("L_ffn_join")
    get_tag(74)
    e.i(f"s_lshl_b32 s{sT0}, s{sCB}, 7")
    e.i(f"s_lshl_b32 s{sT1}, s{sF}, 2")
    e.i(f"s_add_u32 s{sT0}, s{sT0}, s{sT1}")
    e.i(f"s_add_u32 s{sT0}, s{sT0}, s{sFLG}")
    e.i(f"v_mov_b32 v72, {hex(WS_HF)}")
    const_spots(R1, 73, 76)
    e.i(f"s_mul_i32 s{sT2}, s{sF}, 6144")
    e.i(f"s_add_u32 s{sT2}, s{sT2}, {R2}")
    e.i("v_lshl_add_u32 v123, v2, 9, v123")
    e.i(f"v_add_u32 v{vT0}, s{sT2}, v123")
    e.i(f"v_xor_b32 v{vT1}, 64, v{vT0}")
    e.i(f"s_and_b32 s{sT1}, s{sF}, 1")
    e.i(f"s_lshl_b32 s{sT1}, s{sT1}, 6")
    e.i(f"v_xor_b32 v123, s{sT1}, v123")
    e.i("v_and_b32 v124, 3, v1")
    e.i("v_lshlrev_b32 v124, 2, v124")
    e.i("v_bfe_u32 v4, v1, 2, 1")
    e.i("v_lshl_add_u32 v124, v4, 7, v124")
    e.i("v_bfe_u32 v4, v1, 1, 3")
    e.i("v_lshlrev_b32 v4, 7, v4")
    e.i("v_and_b32 v3, 1, v1")
    e.i("v_lshl_add_u32 v4, v3, 2, v4")
    e.i("v_and_b32 v3, 31, v1")
    e.i("v_lshlrev_b32 v3, 10, v3")
    e.i("v_lshl_add_u32 v3, v2, 3, v3")
    e.i("v_lshlrev_b32 v125, 7, v1")
    e.i(f"s_lshl_b32 s{sT1}, s{sF}, 12")
    e.i(f"s_add_u32 s{sT1}, s{sT1}, {R1}")
    e.i(f"v_add_u32 v{vW}, s{sT1}, v{vL16}")
    e.i(f"s_lshl_b32 s{sT1}, s{sF}, 14")
    e.i(f"s_add_u32 s{sT1}, s{sT1}, {R1}")
    e.i(f"v_add_u32 v{vWr}, s{sT1}, v{vL16}")
    e.i("s_mov_b64 exec, 1")
    e.wait_all(vm=True, lg=True)
    e.vmem(f"buffer_store_dword v74, v72, {S(sWS,4)}, s{sT0} offen sc1")
    e.i("s_mov_b64 exec, -1")
    stamp(4)
    if opt.warm:
        e.c("L2 warm-up of w2 (2 x 56+ lines per wave) and wo (32 lines per wave)")
        e.i(f"s_lshl_b32 s{sT0}, s{sJ}, 2")
        e.i(f"s_add_u32 s{sT0}, s{sT0}, s{sF}")
        e.i(f"s_mul_i32 s{sT1}, s{sT0}, {2*7168}")
        e.vmem(f"buffer_load_dword v127, v125, {S(sW2,4)}, s{sT1} offen")
        e.i(f"s_add_u32 s{sT1}, s{sT1}, 7168")
        e.vmem(f"buffer_load_dword v127, v125, {S(sW2,4)}, s{sT1} offen")
        e.i(f"s_lshl_b32 s{sT1}, s{sT0}, 12")
        e.i("s_mov_b64 exec, 0xffffffff")
        e.vmem(f"buffer_load_dword v127, v125, {S(sWO,4)}, s{sT1} offen")
        e.i("s_mov_b64 exec, -1")
    e.c("K/V half 2 -> LDS (xn region) once xn is dead and the K/V flags were seen")
    lds_poll(CX, 8, 72, sleep=2)
    kv_dma(sF, 1, vL16, sOFF2)
    e.lds("ds_write_b128 v73, v[76:79] offset:2048")
    e.i(f"s_mul_i32 s{sOFF}, s{sF}, {448*1024}")
    e.i(f"s_lshl_b32 s{sT0}, s{sCB}, 7")
    e.i(f"s_add_u32 s{sOFF}, s{sOFF}, s{sT0}")
    def w2_dma(ks):
        for a in range(2):
            e.i(f"s_add_u32 m0, s{sT2}, {(ks % 3) * 2048 + a * 1024}")
            e.i("s_nop 0")
            e.vmem(f"buffer_load_dwordx4 v126, {S(sW2,4)}, s{sOFF} offen lds", ("w", ks))
            e.i(f"s_add_u32 s{sOFF}, s{sOFF}, 8192")
    for ks in range(3):
        w2_dma(ks)
    e.wait(vm="kv")
    e.wait_all(lg=True)
    lds_signal(CH2)
    if opt.mid:
        dump_stamps()
        e.i("s_endpgm")
    stamp(5)
    exit_if(5)
    e.c("wait for h of producers 2f, 2f+1")
    e.i(f"s_lshl_b32 s{sT1}, s{sF}, 8")
    e.i(f"s_add_u32 s{sT1}, s{sT1}, s{sFLG}")
    e.i(f"s_add_u32 s{sT1}, s{sT1}, {hex(WS_HF)}")
    flag_poll(124, sT1, 72)
    stamp(6)
    e.i("s_setprio 0")
    e.i(f"s_mul_i32 s{sT0}, s{sRB}, 112")
    e.i(f"s_mul_i32 s{sT1}, s{sF}, 28")
    e.i(f"s_add_u32 s{sT0}, s{sT0}, s{sT1}")
    e.i(f"s_lshl_b32 s{sT0}, s{sT0}, 11")
    e.i(f"s_add_u32 s{sOFF2}, s{sT0}, {WS_H}")
    PH = 4
    def h_load(ks):
        for rh in range(2):
            r = 88 + 8 * (ks % PH) + 4 * rh
            e.vmem(f"buffer_load_dwordx4 {V(r,4)}, v{vL16}, {S(sWS,4)}, s{sOFF2} offen offset:{1024*rh} sc1", ("h", ks))
        e.i(f"s_add_u32 s{sOFF2}, s{sOFF2}, 2048")
    def tr2(ks, i):
        ct, t = i >> 1, i & 1
        e.lds(f"ds_read_b64_tr_b16 {V(72+8*(ks%2)+4*ct+2*t,2)}, v{vT1 if ct else vT0} offset:{(ks%3)*2048+1024*t}", ("f", ks))
    for ks in range(PH - 1):
        h_load(ks)
    for i in range(4):
        tr2(0, i)
    e.wait_all(lg=True)
    for ks in range(28):
        s = ks % 2
        if ks + 3 < 28:
            w2_dma(ks + 3)
        if ks + PH - 1 < 28:
            h_load(ks + PH - 1)
        e.wait(vm=("h", ks))
        if ks + 1 < 28:
            e.wait(vm=("w", ks + 1))
        for i in range(4):
            rh, ct = i >> 1, i & 1
            a = ACC + 16 * i
            e.i(f"{MF32} {V(a,16)}, {V(72+8*s+4*ct,4)}, {V(88+8*(ks%PH)+4*rh,4)}, {'0' if ks == 0 else V(a,16)}")
            if ks + 1 < 28:
                tr2(ks + 1, i)
                if opt.pace or i == 3:
                    e.wait_all(lg=True)
    stamp(7)
    exit_if(7)
    e.c("wo slice -> R0 by DMA once attention has left it; fragments -> registers")
    e.i("s_setprio 3")
    lds_poll(CR0, 4, 72, sleep=8)
    slice_dma(sWO, sF, 126, "wo")
    e.i(f"s_lshl_b32 s{sOFF2}, s{sCB}, 7")
    e.i(f"s_and_b32 s{sT0}, s{sF}, 1")
    e.i(f"s_lshl_b32 s{sT0}, s{sT0}, 6")
    e.i(f"s_add_u32 s{sOFF2}, s{sOFF2}, s{sT0}")
    e.i(f"s_lshl_b32 s{sT0}, s{sRB}, 1")
    e.i(f"s_lshr_b32 s{sT1}, s{sF}, 1")
    e.i(f"s_add_u32 s{sT0}, s{sT0}, s{sT1}")
    e.i(f"s_lshl_b32 s{sT0}, s{sT0}, 15")
    e.i(f"s_add_u32 s{sOFF2}, s{sOFF2}, s{sT0}")
    G, XR = 104, 112
    XR = 96
    for q in range(4):
        e.vmem(f"buffer_load_dwordx2 {V(XR+2*q,2)}, v3, {S(sX,4)}, s{sOFF2} offen offset:{16*q}", "xr")
    e.wait_all(vm=True)
    lds_signal(CWO)
    lds_poll(CWO, 4, 72, sleep=4)
    for ks in range(32):
        for t in range(2):
            e.lds(f"ds_read_b64_tr_b16 {V(128+4*ks+2*t,2)}, v123 offset:{ks*2048+1024*t}")
    e.i(f"s_lshl_b32 s{sT0}, s{sRB}, 6")
    e.i(f"s_lshr_b32 s{sOFF}, s{sF}, 1")
    e.i(f"s_add_u32 s{sT0}, s{sT0}, s{sOFF}")
    e.i(f"s_lshl_b32 s{sT0}, s{sT0}, 10")
    e.i(f"s_add_u32 s{sOFF}, s{sT0}, {WS_O}")
    e.i(f"s_and_b32 s{sT2}, s{sF}, 2")
    e.i(f"s_lshl_b32 s{sT2}, s{sT2}, 2")
    e.i(f"s_add_u32 s{sT2}, s{sT2}, s{sFLG}")
    e.i(f"s_add_u32 s{sT2}, s{sT2}, {hex(WS_OF)}")
    e.i(f"s_mov_b32 s{sT1}, {hex(f32bits(-math.log2(math.e)))}")
    stamp(8, True)
    e.c("attention finished in this workgroup: reduce f partials through R1")
    lds_poll(CAD, 4, 72, sleep=4)
    for t in range(4):
        for q in range(4):
            e.lds(f"ds_write_b128 v{vW}, {V(ACC+16*t+4*q,4)} offset:{t*16384+q*1024}")
    lds_signal(CF)
    lds_poll(CF, 4, 72, sleep=0)
    for src in range(4):
        for q in range(4):
            e.lds(f"ds_read_b128 {V(ACC+16*src+4*q,4)}, v{vWr} offset:{src*4096+q*1024}", ("r", src))
    e.wait(lg=("r", 1))
    for r in range(16):
        e.i(f"v_add_f32 v{ACC+r}, v{ACC+r}, v{ACC+16+r}")
    e.wait_all(lg=True)
    for r in range(16):
        e.i(f"v_add_f32 v{ACC+32+r}, v{ACC+32+r}, v{ACC+48+r}")
    for r in range(16):
        e.i(f"v_add_f32 v{ACC+r}, v{ACC+r}, v{ACC+32+r}")
    for r in range(16):
        e.i(f"v_mul_f32 v{ACC+16+r}, s{sT1}, v{ACC+r}")
    for r in range(16):
        e.i(f"v_exp_f32 v{ACC+16+r}, v{ACC+16+r}")
    for r in range(16):
        e.i(f"v_add_f32 v{ACC+16+r}, 1.0, v{ACC+16+r}")
    for r in range(16):
        e.i(f"v_rcp_f32 v{ACC+16+r}, v{ACC+16+r}")
    for r in range(16):
        e.i(f"v_mul_f32 v{G+r}, v{ACC+r}, v{ACC+16+r}")
    stamp(9) if False else None
    e.c("wait for o of the whole row group")
    flag_poll(4, sT2, 72, sleep=1)
    stamp(1, True)
    NO = 18
    def o_load(ks):
        e.vmem(f"buffer_load_dwordx4 {V(24+4*(ks%NO),4)}, v{vL16}, {S(sWS,4)}, s{sOFF} offen offset:{2048*(ks%2)} sc1", ("o", ks))
        if ks % 2 == 1:
            e.i(f"s_add_u32 s{sOFF}, s{sOFF}, 4096")
    for ks in range(NO):
        o_load(ks)
    for ks in range(32):
        e.wait(vm=("o", ks))
        e.i(f"{MF32} v[8:23], {V(128+4*ks,4)}, {V(24+4*(ks%NO),4)}, {'0' if ks == 0 else 'v[8:23]'}")
        if ks + NO < 32:
            o_load(ks + NO)
    for t in range(8):
        e.i(f"v_lshlrev_b32 v{128+2*t}, 16, v{XR+t}")
        e.i(f"v_and_b32 v{129+2*t}, s{sMASK}, v{XR+t}")
    for r in range(16):
        e.i(f"v_fmac_f32 v{128+r}, v{8+r}, v{G+r}")
    for q in range(4):
        for j in range(2):
            e.i(f"v_cvt_pk_bf16_f32 v{XR+2*q+j}, v{128+4*q+2*j}, v{128+4*q+2*j+1}")
        e.vmem(f"buffer_store_dwordx2 {V(XR+2*q,2)}, v3, {S(sOUT,4)}, s{sOFF2} offen offset:{16*q}")
    if opt.stamps:
        e.wait_all(vm=True)
        stamp(10)
    dump_stamps()
    e.label("L_end")
    e.i("s_endpgm")
    return e

def wrap(e):
    hdr = open("cdna_kernels/%s.s.ref" % NAME).read().split("\n")
    top = [l for l in hdr if l.startswith(";") and "@launch" not in l]
    out = "\n".join(top) + f"\n; @launch grid=(256,1,1) block=(512,1,1) lds={LDS_BYTES}\n"
    out += f""".amdgcn_target "amdgcn-amd-amdhsa--gfx950"
.text
.globl {NAME}_kernel
.p2align 8
.type {NAME}_kernel,@function
{NAME}_kernel:
"""
    out += e.text()
    out += f""".section .rodata,"a"
.p2align 6
.amdhsa_kernel {NAME}_kernel
  .amdhsa_next_free_vgpr 256
  .amdhsa_next_free_sgpr 102
  .amdhsa_accum_offset 256
  .amdhsa_group_segment_fixed_size 0
  .amdhsa_kernarg_size 88
  .amdhsa_user_sgpr_count 2
  .amdhsa_user_sgpr_kernarg_segment_ptr 1
  .amdhsa_system_sgpr_workgroup_id_x 1
.end_amdhsa_kernel
"""
    return out

if __name__ == "__main__":
    opt = Opt()
    outp = sys.argv[1]
    for a in sys.argv[2:]:
        k, v = a.split("=")
        setattr(opt, k, type(getattr(opt, k))(eval(v)))
    e = gen(opt)
    bad = check_cfg(e.lines)
    print("hazards:", bad, "lines:", len(e.lines), "lds", LDS_BYTES)
    open(outp, "w").write(wrap(e))
```

```python
import re

TRANS = ("v_exp_f32", "v_log_f32", "v_rcp_f32", "v_rsq_f32", "v_sqrt_f32", "v_sin_f32", "v_cos_f32")


def V(a, n=1):
    return f"v{a}" if n == 1 else f"v[{a}:{a+n-1}]"


def S(a, n=1):
    return f"s{a}" if n == 1 else f"s[{a}:{a+n-1}]"


class E:
    def __init__(self):
        self.lines = []
        self.vm = []
        self.lg = []

    def i(self, t):
        self.lines.append("    " + t)

    def c(self, t):
        self.lines.append("    ; " + t)

    def label(self, l):
        self.lines.append(l + ":")

    def raw(self, t):
        self.lines.append(t)

    def vmem(self, t, tag=None):
        if len(self.vm) >= 60:
            self.i("s_waitcnt vmcnt(56)")
            del self.vm[: len(self.vm) - 56]
        self.i(t)
        self.vm.append(tag)

    def lds(self, t, tag=None, guard=True):
        if guard and len(self.lg) >= 14:
            self.i("s_waitcnt lgkmcnt(8)")
            del self.lg[: len(self.lg) - 8]
        if len(self.lg) >= 15:
            self.i("s_waitcnt lgkmcnt(14)")
            del self.lg[: len(self.lg) - 14]
        self.i(t)
        self.lg.append(tag)

    def _wait(self, q, tag, name, mx):
        idx = [k for k, t in enumerate(q) if t == tag]
        if not idx:
            return None
        last = idx[-1]
        n = len(q) - 1 - last
        n2 = min(n, mx)
        del q[: len(q) - n2]
        return f"{name}({n2})"

    def wait(self, vm=None, lg=None):
        parts = []
        if vm is not None:
            p = self._wait(self.vm, vm, "vmcnt", 63)
            if p:
                parts.append(p)
        if lg is not None:
            p = self._wait(self.lg, lg, "lgkmcnt", 15)
            if p:
                parts.append(p)
        if parts:
            self.i("s_waitcnt " + " ".join(parts))

    def wait_all(self, vm=False, lg=False):
        parts = []
        if vm:
            parts.append("vmcnt(0)")
            self.vm = []
        if lg:
            parts.append("lgkmcnt(0)")
            self.lg = []
        self.i("s_waitcnt " + " ".join(parts))

    def nop(self, n):
        while n > 0:
            k = min(n, 16)
            self.i(f"s_nop {k-1}")
            n -= k

    def text(self):
        return "\n".join(self.lines) + "\n"


_reg = re.compile(r"^(-|\|)?(abs\()?([vsa])(\d+|\[(\d+):(\d+)\])\)?\|?$")


def regs(tok):
    tok = tok.strip()
    if tok in ("vcc", "exec", "m0", "scc"):
        return {(tok, 0)}
    if tok in ("vcc_lo", "vcc_hi"):
        return {("vcc", 0)}
    if tok in ("exec_lo", "exec_hi"):
        return {("exec", 0)}
    m = _reg.match(tok)
    if not m:
        return set()
    k = m.group(3)
    if m.group(5) is not None:
        return {(k, r) for r in range(int(m.group(5)), int(m.group(6)) + 1)}
    return {(k, int(m.group(4)))}


def parse(line):
    t = line.split(";")[0].strip()
    if not t or t.endswith(":") or t.startswith("."):
        return None
    sp = t.split(None, 1)
    op = sp[0]
    rest = sp[1] if len(sp) > 1 else ""
    ops, cur, d = [], "", 0
    for ch in rest:
        if ch in "[(":
            d += 1
        if ch in "])":
            d -= 1
        if ch == "," and d == 0:
            ops.append(cur.strip())
            cur = ""
        else:
            cur += ch
    if cur.strip():
        ops.append(cur.strip())
    mods = ""
    if ops:
        last = ops[-1].split(None, 1)
        ops[-1] = last[0]
        mods = last[1] if len(last) > 1 else ""
    I = dict(op=op, ops=ops, mods=mods, text=t, w=set(), r=set(), kind="other", ws=1)
    R = [regs(o) for o in ops]
    if op == "s_nop":
        I["ws"] = int(ops[0], 0) + 1
    elif op.startswith("v_mfma"):
        I["kind"] = "mfma"
        I["passes"] = 8 if "32x32x16" in op else 4
        I["w"] = R[0]
        I["A"], I["B"], I["C"] = R[1], R[2], R[3]
        I["r"] = R[1] | R[2] | R[3]
    elif op.startswith("v_"):
        I["kind"] = "valu"
        if op.startswith("v_permlane") and "swap" in op:
            I["w"] = R[0] | R[1]
            I["r"] = R[0] | R[1]
        else:
            nd = 1
            if re.match(r"v_(add|sub|subrev|addc|subb)_co", op):
                nd = 2
            I["w"] = set().union(*R[:nd])
            I["r"] = set().union(*R[nd:]) if len(R) > nd else set()
            if op.startswith(("v_fmac", "v_dot2c", "v_writelane")) or "_dpp" in op or "UNUSED_PRESERVE" in mods:
                I["r"] |= R[0]
            if op.startswith("v_cmpx"):
                I["w"] |= {("exec", 0)}
        I["dpp"] = "_dpp" in op
        I["trans"] = op.replace("_e32", "").replace("_e64", "") in TRANS
    elif op.startswith("ds_"):
        I["kind"] = "mem"
        if op.startswith(("ds_read", "ds_bpermute", "ds_swizzle")) or "_rtn" in op:
            I["w"] = R[0]
            I["r"] = set().union(*R[1:])
        else:
            I["r"] = set().union(*R)
    elif op.startswith(("buffer_", "global_")):
        I["kind"] = "mem"
        I["vmem"] = True
        islds = " lds" in (" " + mods) or "load_lds" in op
        I["dma"] = islds
        if "load" in op and not islds:
            I["w"] = R[0]
            I["r"] = set().union(*R[1:])
        else:
            I["r"] = set().union(*R) if R else set()
            if "store" in op and ("x4" in op or "x3" in op):
                I["wide"] = R[0] if op.startswith("buffer") else R[1]
    elif op.startswith("s_"):
        I["kind"] = "salu"
        if op.startswith(("s_cmp", "s_cbranch", "s_branch", "s_waitcnt", "s_barrier", "s_sleep", "s_setprio", "s_endpgm")):
            I["r"] = set().union(*R) if R else set()
        else:
            I["w"] = R[0] if R else set()
            I["r"] = set().union(*R[1:]) if len(R) > 1 else set()
    return I


def vg(s):
    return {x for x in s if x[0] in "va"}


def sg(s):
    return {x for x in s if x[0] in ("s", "vcc")}


def need(P, C):
    n = 0
    pk, ck = P["kind"], C["kind"]
    if pk == "valu":
        wv = vg(P["w"])
        ws = sg(P["w"])
        if ck == "mfma" and wv & C["r"]:
            n = max(n, 2)
        if ck == "valu":
            if P["trans"] and wv & C["r"] and not C["trans"]:
                n = max(n, 1)
            if C["dpp"] and wv & C["r"]:
                n = max(n, 2)
            if C["op"].startswith("v_permlane") and wv & C["r"]:
                n = max(n, 2)
            if C["op"].startswith(("v_readlane", "v_readfirstlane")) and wv & C["r"]:
                n = max(n, 1)
            if ws & C["r"]:
                n = max(n, 4 if C["op"].startswith(("v_readlane", "v_writelane")) else 2)
            if C["op"].startswith("v_cndmask") and len(C["ops"]) == 4 and ws & regs(C["ops"][3]):
                n = max(n, 2)
            if ("sdwa" in P["op"] or "op_sel" in P["mods"]) and not P["op"].startswith("v_pk") and wv & (C["r"] | C["w"]):
                n = max(n, 1)
        if P["op"].startswith("v_dot"):
            same = P["op"] == C["op"]
            if ck in ("valu", "mfma", "mem"):
                if not same and wv & (C["r"] | C["w"]):
                    n = max(n, 3)
                if same:
                    ab = set().union(*[regs(o) for o in C["ops"][1:3]])
                    if wv & ab:
                        n = max(n, 3)
        if ck == "mem" and C.get("vmem") and ws & C["r"]:
            n = max(n, 5)
        if ("exec", 0) in P["w"]:
            if ck == "mfma":
                n = max(n, 4)
            if ck == "valu" and C["dpp"]:
                n = max(n, 5)
    if pk == "mfma":
        p8 = P["passes"] == 8
        D = P["w"]
        if ck == "mfma":
            if D & (C["A"] | C["B"]):
                n = max(n, 12 if p8 else 8)
            if D & C["C"] and not (D == C["C"] and P["passes"] == C["passes"]):
                n = max(n, 10 if p8 else 6)
            if D & C["w"] and not (D == C["w"]):
                n = max(n, 10 if p8 else 6)
        if ck == "valu":
            if D & (C["r"] | C["w"]):
                n = max(n, 12 if p8 else 8)
            if P["C"] & C["w"]:
                n = max(n, 7 if p8 else 3)
        if ck == "mem" and D & (C["r"] | C["w"]):
            n = max(n, 12 if p8 else 8)
    if pk == "salu" and ("m0", 0) in P["w"] and ck == "mem" and C.get("dma"):
        n = max(n, 1)
    if pk == "mem" and P.get("wide"):
        if P["wide"] & C["w"]:
            n = max(n, 2 if ck in ("valu", "mfma") else 1)
    return n


def check_seq(lines, name=""):
    ins = [x for x in (parse(l) for l in lines) if x]
    bad = 0
    for k, C in enumerate(ins):
        dist = 0
        for j in range(k - 1, max(-1, k - 24), -1):
            P = ins[j]
            n = need(P, C)
            if n > dist:
                print(f"HAZARD[{name}] need {n} have {dist}:\n   {P['text']}\n   {C['text']}")
                bad += 1
            dist += P["ws"]
            if dist >= 20:
                break
    return bad


def check_cfg(lines):
    bad = check_seq(lines, "linear")
    labels = {}
    for k, l in enumerate(lines):
        t = l.strip()
        if t.endswith(":") and not t.startswith(";"):
            labels[t[:-1]] = k
    for k, l in enumerate(lines):
        t = l.split(";")[0].strip()
        m = re.match(r"s_(cbranch_\w+|branch)\s+(\S+)", t)
        if m and m.group(2) in labels:
            tgt = labels[m.group(2)]
            seq = lines[max(0, k - 30): k + 1] + lines[tgt: tgt + 30]
            a = [x for x in (parse(z) for z in lines[max(0, k - 30): k + 1]) if x]
            b = [x for x in (parse(z) for z in lines[tgt: tgt + 30]) if x]
            for ci, C in enumerate(b):
                dist = sum(x["ws"] for x in b[:ci])
                for P in reversed(a):
                    if dist >= 20:
                        break
                    n = need(P, C)
                    if n > dist:
                        print(f"HAZARD[edge {m.group(2)}] need {n} have {dist}:\n   {P['text']}\n   {C['text']}")
                        bad += 1
                    dist += P["ws"]
    return bad
```

```python
import sys, math, struct
from asmlib import *

NAME = "recurrent_scan__grouped_kv_mqa__dense_activation_relu__prompt"
MF32 = "v_mfma_f32_32x32x16_bf16"
MF16 = "v_mfma_f32_16x16x32_bf16"

def f32bits(x):
    return struct.unpack("<I", struct.pack("<f", x))[0]

KVS = 2080
R0 = 0
R1 = 32 * KVS
XN_RH = 64 * 528
R2 = R1 + 2 * XN_RH
R4 = R2 + 24576
LDS_BYTES = R4 + 256
(CXN, CST, CWQ, CQ, CKV, CKM, CTAG, CA, CA2, CX, CH2, CR0, CWO, CAD, CF, CE0, CE1) = [4 * i for i in range(17)]
STAT = 128
assert R2 % 128 == 0
WS_KV = 0
WS_EPOCH = 0x30000
WS_KVF = 0x38000
WS_HF = 0x40000
WS_O = 0x100000
WS_H = 0x400000
WS_STAMP = 0x1000000
sX, sWQ, sWKV, sWO, sW1, sW2, sOUT, sDBG, sWS = 8, 12, 16, 20, 24, 28, 32, 36, 40
sMASK, sF, sSPIN, sFLG = 44, 45, 46, 47
sWAVE, sRB, sCB, sT0, sT1, sT2, sOFF, sOFF2, sCNT, sSEG = 70, 71, 72, 73, 74, 75, 76, 77, 78, 79
sRG, sOB, sTAG = 3, 6, 7
sTILE = 6
sOA = 52
sSTAMP = 80

class Opt:
    stamps = False
    front = False
    dbgst = False
    unr = 8
    force_fallback = False
    thr = 40.0
    exit_at = 0
    spin = 0x20000
    pace = True
    kvsleep = 2
    pf0 = 8
    map24 = True
    warm2 = True
    touch = True
    kvtouch = True
    kvdelay = 16
    wqlate = 0

def gen(opt):
    e = E()
    uid = [0]
    def lbl(p):
        uid[0] += 1
        return f"L_{p}_{uid[0]}"
    def stamp(k, when=None):
        if when == "front" and not opt.front: return
        if when == "late" and opt.front: return
        if opt.stamps:
            e.i(f"s_memrealtime {S(sSTAMP+2*k,2)}")
    def cstamp(k):
        if opt.stamps:
            e.i(f"s_memtime {S(sSTAMP+2*k,2)}")
    def dump_stamps(att=False):
        if not opt.stamps:
            return
        e.wait_all(vm=True, lg=True)
        e.i("v_mov_b32 v2, 0")
        e.i("v_mbcnt_lo_u32_b32 v1, -1, 0")
        e.i("v_mbcnt_hi_u32_b32 v1, -1, v1")
        for k in range(22):
            e.i(f"v_writelane_b32 v2, s{sSTAMP+k}, {k}")
        e.i(f"s_lshl_b32 s{sT0}, s2, 3")
        e.i(f"s_add_u32 s{sT0}, s{sT0}, s{sWAVE}")
        e.i(f"s_lshl_b32 s{sT0}, s{sT0}, 8")
        e.i(f"s_add_u32 s{sT0}, s{sT0}, {WS_STAMP}")
        e.i("v_lshlrev_b32 v3, 2, v1")
        e.i(f"buffer_store_dword v2, v3, {S(sWS,4)}, s{sT0} offen")
    def exit_if(k):
        if opt.exit_at == k:
            dump_stamps()
            e.i("s_endpgm")
    def spin_init(mult=1):
        e.i(f"s_mov_b32 s{sSPIN}, {hex(opt.spin*mult)}")
    def spin_tail(top, done, sleep):
        e.i(f"s_sub_u32 s{sSPIN}, s{sSPIN}, 1")
        e.i(f"s_cbranch_scc1 {done}")
        if sleep:
            e.i(f"s_sleep {sleep}")
        e.i(f"s_branch {top}")
    def lds_signal(off, va=6):
        e.i("s_mov_b64 exec, 1")
        e.lds(f"ds_add_u32 v{va}, v7 offset:{off}")
        e.i("s_mov_b64 exec, -1")
    def lds_poll(off, n, vt, sleep=1, va=6):
        top, done = lbl("lp"), lbl("lpd")
        spin_init(16)
        e.label(top)
        e.i(f"ds_read_b32 v{vt}, v{va} offset:{off}")
        e.wait_all(lg=True)
        e.i(f"v_readfirstlane_b32 s{sT0}, v{vt}")
        e.i(f"s_cmp_ge_u32 s{sT0}, {n}")
        e.i(f"s_cbranch_scc1 {done}")
        spin_tail(top, done, sleep)
        e.label(done)
    def get_tag(vt):
        e.i(f"ds_read_b32 v{vt}, v6 offset:{CTAG}")
        e.wait_all(lg=True)
        e.i(f"v_readfirstlane_b32 s{sTAG}, v{vt}")
    def slice_dma(srd, wave_s, vsw, tag):
        e.i(f"s_lshl_b32 s{sOFF}, s{wave_s}, 17")
        e.i(f"s_lshl_b32 s{sT0}, s{sCB}, 7")
        e.i(f"s_add_u32 s{sOFF}, s{sOFF}, s{sT0}")
        e.i(f"s_lshl_b32 s{sT1}, s{wave_s}, 14")
        for i in range(16):
            e.i(f"s_mov_b32 m0, s{sT1}")
            e.i(f"s_add_u32 s{sT1}, s{sT1}, 1024")
            e.vmem(f"buffer_load_dwordx4 v{vsw}, {S(srd,4)}, s{sOFF} offen lds", tag)
            e.i(f"s_add_u32 s{sOFF}, s{sOFF}, 8192")
    def kv_dma(wave_s, half, vl16, soff):
        e.i(f"s_lshl_b32 s{soff}, s{wave_s}, 11")
        if half:
            e.i(f"s_add_u32 s{soff}, s{soff}, 0x10000")
        e.i(f"s_mul_i32 s{sT1}, s{wave_s}, {KVS}")
        if half:
            e.i(f"s_add_u32 s{sT1}, s{sT1}, {R1}")
        for i in range(8):
            e.i(f"s_mov_b32 m0, s{sT1}")
            e.i(f"s_add_u32 s{sT1}, s{sT1}, {4*KVS}")
            for p in range(2):
                e.vmem(f"buffer_load_dwordx4 v{vl16}, {S(sWS,4)}, s{soff} offen offset:{1024*p} sc1 lds", ("kv", i))
            e.i(f"s_add_u32 s{soff}, s{soff}, 8192")
    def const_spots(base, va, vd):
        e.i(f"v_and_b32 v{va}, 31, v1")
        e.i(f"v_mul_u32_u24 v{va}, {KVS}, v{va}")
        e.i(f"v_lshl_add_u32 v{va}, v2, 4, v{va}")
        if base:
            e.i(f"v_add_u32 v{va}, {base}, v{va}")
        e.i(f"v_subrev_u32 v{vd}, 1, v2")
        e.i(f"v_and_b32 v{vd}, 0x3f803f80, v{vd}")
        for r in range(1, 4):
            e.i(f"v_mov_b32 v{vd+r}, v{vd}")
    def lane_fields():
        e.i("v_lshrrev_b32 v2, 5, v1")
        e.i("v_bfe_u32 v3, v1, 4, 1")
        e.i("v_bfe_u32 v4, v1, 2, 2")
        e.i("v_and_b32 v5, 3, v1")
    def common_addr():
        e.i("v_lshrrev_b32 v124, 1, v5")
        e.i("v_lshl_add_u32 v124, v3, 1, v124")
        e.i("v_lshlrev_b32 v125, 1, v4")
        e.i("v_and_b32 v125, 4, v125")
        e.i("v_xor_b32 v124, v124, v125")
        e.i("v_lshlrev_b32 v123, 7, v4")
        e.i("v_lshl_add_u32 v123, v124, 4, v123")
        e.i("v_and_b32 v125, 1, v5")
        e.i("v_lshl_add_u32 v123, v125, 3, v123")
        e.i("v_and_b32 v125, 31, v1")
        e.i("v_mul_u32_u24 v124, 528, v2")
        e.i("v_lshl_add_u32 v124, v125, 4, v124")
        e.i(f"v_add_u32 v124, {R1}, v124")
        e.i(f"v_add_u32 v125, {XN_RH}, v124")
    def copy_ptrs(w7=False):
        e.i(f"s_mov_b64 {S(sWQ,2)}, s[50:51]")
        e.i(f"s_mov_b64 {S(sWO,2)}, s[56:57]")
        e.i(f"s_mov_b64 {S(sW1,2)}, s[60:61]")
        e.i(f"s_mov_b64 {S(sW2,2)}, s[62:63]")
        e.i(f"s_mov_b64 {S(sOUT,2)}, s[64:65]")
        e.i(f"s_mov_b64 {S(sDBG,2)}, s[66:67]")
        e.i(f"s_mov_b64 {S(sWS,2)}, s[68:69]")
        e.i(f"s_lshl_b32 s{sFLG}, s{sRB}, 10")
        e.i(f"s_add_u32 s{sFLG}, s{sFLG}, {hex(WS_HF)}")
        e.i("v_lshrrev_b32 v5, 2, v1")
        e.i("v_and_b32 v5, 4, v5")
        e.i("v_xor_b32 v5, v5, v3")
        e.i("v_lshlrev_b32 v126, 10, v2")
        e.i("v_lshl_add_u32 v126, v5, 4, v126")
        if not w7:
            e.i("v_mul_u32_u24 v127, 3584, v2")
            e.i("v_lshl_add_u32 v127, v3, 4, v127")
            e.i("v_lshlrev_b32 v200, 4, v1")

    vW, vT0, vT1, vL16, vWr = 127, 121, 122, 0, 5
    PF = 16
    PF0 = opt.pf0
    def w1_load_half(ks, a):
        r = 128 + 8 * (ks % PF) + 4 * a
        e.vmem(f"buffer_load_dwordx4 {V(r,4)}, v{vW}, {S(sW1,4)}, s{sOFF} offen", ("w", ks))
        e.i(f"s_add_u32 s{sOFF}, s{sOFF}, {8*3584}")
    def w1_first():
        for ks in range(PF0):
            for a in range(2):
                w1_load_half(ks, a)

    e.i("s_cmp_ge_u32 s2, 256")
    e.i("s_cbranch_scc1 L_end")
    e.i("s_load_dwordx16 s[48:63], s[0:1], 0")
    e.i("s_load_dwordx4 s[64:67], s[0:1], 64")
    e.i("s_load_dwordx2 s[68:69], s[0:1], 80")
    stamp(0)
    e.i("v_lshrrev_b32 v2, 6, v0")
    e.i("v_and_b32 v1, 63, v0")
    e.i(f"v_readfirstlane_b32 s{sWAVE}, v2")
    e.i(f"s_and_b32 s{sT0}, s2, 7")
    e.i(f"s_lshr_b32 s{sT1}, s2, 3")
    if not opt.map24:
        e.i(f"s_and_b32 s{sCB}, s{sT1}, 7")
        e.i(f"s_lshr_b32 s{sT1}, s{sT1}, 3")
        e.i(f"s_lshl_b32 s{sRB}, s{sT0}, 2")
        e.i(f"s_add_u32 s{sRB}, s{sRB}, s{sT1}")
    else:
        e.i(f"s_and_b32 s{sCB}, s{sT1}, 3")
        e.i(f"s_lshl_b32 s{sCB}, s{sCB}, 1")
        e.i(f"s_and_b32 s{sRB}, s{sT0}, 1")
        e.i(f"s_add_u32 s{sCB}, s{sCB}, s{sRB}")
        e.i(f"s_lshr_b32 s{sT1}, s{sT1}, 2")
        e.i(f"s_lshr_b32 s{sRB}, s{sT0}, 1")
        e.i(f"s_lshl_b32 s{sRB}, s{sRB}, 3")
        e.i(f"s_add_u32 s{sRB}, s{sRB}, s{sT1}")
    e.i(f"s_mov_b32 s{sMASK}, 0xffff0000")
    e.i(f"s_and_b32 s{sF}, s{sWAVE}, 3")
    e.i(f"s_and_b32 s{sRG}, s{sCB}, 6")
    e.i(f"s_add_u32 s{sRG}, s{sRG}, s{sWAVE}")
    e.i(f"s_add_u32 s{sRG}, s{sRG}, 3")
    e.i(f"s_and_b32 s{sRG}, s{sRG}, 7")
    e.i("v_lshrrev_b32 v2, 3, v1")
    e.i("v_and_b32 v3, 7, v1")
    e.i("v_lshlrev_b32 v4, 10, v2")
    e.i("v_lshl_add_u32 v4, v3, 4, v4")
    e.i(f"s_lshl_b32 s{sOFF}, s{sRB}, 3")
    e.i(f"s_add_u32 s{sOFF}, s{sOFF}, s{sRG}")
    e.i(f"s_lshl_b32 s{sOFF}, s{sOFF}, 13")
    for srd, size in ((sX, 2048*512*2), (sWQ, 512*512*2), (sWKV, 512*16*2), (sWO, 512*512*2), (sW1, 512*1792*2),
                      (sW2, 1792*512*2), (sOUT, 2048*512*2), (sDBG, 256), (sWS, 0x10000000)):
        e.i(f"s_mov_b32 s{srd+2}, {hex(size)}")
        e.i(f"s_mov_b32 s{srd+3}, 0x20000")
    e.i(f"v_mov_b32 v6, {R4}")
    e.i("v_mov_b32 v7, 1")
    e.i("v_mov_b64 v[108:109], 0")
    e.i("v_and_b32 v105, 15, v1")
    e.i("v_lshl_add_u32 v105, v105, 3, v6")
    e.i("ds_write_b64 v105, v[108:109]")
    e.i(f"s_cmp_eq_u32 s{sWAVE}, 7")
    e.i("s_cbranch_scc1 L_pre_7")
    e.i("s_waitcnt lgkmcnt(0)")
    e.i(f"s_mov_b64 {S(sX,2)}, s[48:49]")
    e.i(f"s_cmp_ge_u32 s{sWAVE}, 5")
    e.i("s_cbranch_scc1 L_pre_first")
    e.i("s_barrier")
    e.label("L_pre_first")
    for i in range(8):
        e.vmem(f"buffer_load_dwordx4 {V(8+4*i,4)}, v4, {S(sX,4)}, s{sOFF} offen offset:{128*i}", "x")
    e.i("s_cbranch_scc0 L_pre_second")
    e.i("s_barrier")
    e.label("L_pre_second")
    e.i(f"s_mov_b32 s{sSEG}, 0")
    e.i(f"s_cmp_lg_u32 s{sWAVE}, 3")
    e.i("s_cbranch_scc1 L_pre_n3")
    e.c("wave 3 also normalises the rows wave 7 would have had (row group ^ 4)")
    e.i(f"s_xor_b32 s{sOFF}, s{sOFF}, 0x8000")
    for i in range(8):
        e.i(f"buffer_load_dwordx4 {V(128+4*i,4)}, v4, {S(sX,4)}, s{sOFF} offen offset:{128*i}")
    e.i(f"s_mov_b32 s{sSEG}, 1")
    e.label("L_pre_n3")
    copy_ptrs()
    e.i(f"s_cmp_ge_u32 s{sWAVE}, 4")
    e.i("s_cbranch_scc1 L_pre_ffn")
    e.i("s_setprio 1")
    e.i(f"s_lshl_b32 s{sT0}, s{sRB}, 5")
    e.i(f"s_lshl_b32 s{sT1}, s{sCB}, 2")
    e.i(f"s_add_u32 s{sT0}, s{sT0}, s{sT1}")
    e.i(f"s_and_b32 s{sT1}, s{sWAVE}, 1")
    e.i(f"s_lshl_b32 s{sT1}, s{sT1}, 1")
    e.i(f"s_add_u32 s{sT0}, s{sT0}, s{sT1}")
    e.i(f"s_lshl_b32 s{sT0}, s{sT0}, 1")
    e.i(f"s_lshr_b32 s{sT1}, s{sWAVE}, 1")
    e.i(f"s_add_u32 s{sT0}, s{sT0}, s{sT1}")
    e.i(f"s_lshl_b32 s{sT0}, s{sT0}, 10")
    e.i(f"s_add_u32 s{sOB}, s{sT0}, {WS_O}")
    e.c("wq slice -> R0 by DMA once x is here (L2 hits by then): waves 0,1 take 192 rows, wave 2 takes 128")
    e.i(f"s_mul_i32 s{sOFF}, s{sWAVE}, {192*1024}")
    e.i(f"s_lshl_b32 s{sT0}, s{sCB}, 7")
    e.i(f"s_add_u32 s{sOFF}, s{sOFF}, s{sT0}")
    e.i(f"s_mul_i32 s{sT1}, s{sWAVE}, {192*128}")
    e.i(f"s_cmp_eq_u32 s{sWAVE}, 2")
    e.i(f"s_cselect_b32 s{sCNT}, 1, 2")
    e.i(f"s_cmp_eq_u32 s{sWAVE}, 3")
    e.wait_all(vm=True)
    e.i("s_cbranch_scc1 L_ln")
    e.label("L_wq_loop")
    for i in range(8):
        e.i(f"s_mov_b32 m0, s{sT1}")
        e.i(f"s_add_u32 s{sT1}, s{sT1}, 1024")
        e.i(f"buffer_load_dwordx4 v126, {S(sWQ,4)}, s{sOFF} offen lds")
        e.i(f"s_add_u32 s{sOFF}, s{sOFF}, 8192")
    e.i(f"s_sub_u32 s{sCNT}, s{sCNT}, 1")
    e.i("s_cbranch_scc0 L_wq_loop")
    e.i("s_branch L_ln")

    e.label("L_pre_ffn")
    e.i(f"s_and_b32 s{sTILE}, s{sCB}, 1")
    e.i(f"s_lshl_b32 s{sT1}, s{sF}, 1")
    e.i(f"s_add_u32 s{sTILE}, s{sTILE}, s{sT1}")
    e.i(f"s_mul_i32 s{sT0}, s{sCB}, 448")
    e.i(f"s_lshl_b32 s{sT1}, s{sTILE}, 6")
    e.i(f"s_add_u32 s{sOFF}, s{sT0}, s{sT1}")
    e.i("s_setprio 3")
    e.i(f"s_cmp_eq_u32 s{sWAVE}, 4")
    e.i("s_cbranch_scc1 L_pre_4")
    e.i("s_waitcnt vmcnt(0)")
    e.i("s_branch L_ln")
    e.label("L_pre_4")
    e.c("wave 4: touch 1/8 of the wq and w1 slices (8 workgroups of an XCD share them) -> L2")
    ntouch = 0
    if opt.touch:
        e.i(f"s_and_b32 s{sT1}, s{sRB}, 7")
        e.i("v_lshlrev_b32 v105, 10, v1")
        e.i(f"s_lshl_b32 s{sT2}, s{sT1}, 16")
        e.i(f"s_lshl_b32 s{sOFF2}, s{sCB}, 7")
        e.i(f"s_add_u32 s{sT2}, s{sT2}, s{sOFF2}")
        e.i(f"buffer_load_dword v106, v105, {S(sWQ,4)}, s{sT2} offen")
        e.i("v_mul_u32_u24 v105, 3584, v1")
        e.i(f"s_mul_i32 s{sT2}, s{sT1}, {64*3584}")
        e.i(f"s_add_u32 s{sT2}, s{sT2}, s{sT0}")
        for o in (0, 128, 256, 384):
            e.i(f"buffer_load_dword v106, v105, {S(sW1,4)}, s{sT2} offen offset:{o}")
        ntouch = 5
    e.i(f"s_waitcnt vmcnt({ntouch})")

    e.label("L_ln")
    stamp(1, "front")
    X = 40
    A = 112
    e.i("v_mov_b32 v110, 0x3f803f80")
    e.i("v_mov_b64 v[112:113], 0")
    e.i("v_mov_b32 v108, 0x3f80")
    e.i("v_mov_b32 v109, 0x3f800000")
    for t in range(32):
        e.i(f"v_dot2c_f32_bf16 v{A+(t&1)}, v{8+t}, v110")
    def reduce_lanes():
        for m in ("quad_perm:[1,0,3,2]", "quad_perm:[2,3,0,1]", "row_half_mirror"):
            e.nop(2)
            e.i(f"v_add_f32_dpp v{A}, v{A}, v{A} {m} row_mask:0xf bank_mask:0xf")
    e.i(f"s_lshr_b32 s{sT0}, s{sRG}, 2")
    e.i(f"s_mul_i32 s{sT0}, s{sT0}, {XN_RH}")
    e.i(f"s_and_b32 s{sT1}, s{sRG}, 3")
    e.i(f"v_add_f32 v{A}, v{A}, v{A+1}")
    reduce_lanes()
    e.i(f"v_mul_f32 v120, {hex(f32bits(-1.0/512))}, v{A}")
    for t in range(32):
        e.i(f"v_dot2_f32_bf16 v{X+2*t}, v{8+t}, v108, v120")
        e.i(f"v_dot2_f32_bf16 v{X+2*t+1}, v{8+t}, v109, v120")
    for t in range(32):
        a = t % 4
        if t < 4:
            e.i(f"v_pk_mul_f32 {V(A+2*a,2)}, {V(X+2*t,2)}, {V(X+2*t,2)}")
        else:
            e.i(f"v_pk_fma_f32 {V(A+2*a,2)}, {V(X+2*t,2)}, {V(X+2*t,2)}, {V(A+2*a,2)}")
    e.i(f"v_pk_add_f32 {V(A,2)}, {V(A,2)}, {V(A+2,2)}")
    e.i(f"v_pk_add_f32 {V(A+4,2)}, {V(A+4,2)}, {V(A+6,2)}")
    e.i(f"v_pk_add_f32 {V(A,2)}, {V(A,2)}, {V(A+4,2)}")
    e.i(f"v_add_f32 v{A}, v{A}, v{A+1}")
    reduce_lanes()
    e.i(f"v_mov_b32 v119, {hex(f32bits(1e-5))}")
    e.i(f"v_fmac_f32 v119, {hex(f32bits(1.0/512))}, v{A}")
    e.i("v_rsq_f32 v118, v119")
    e.i(f"s_lshl_b32 s{sT1}, s{sT1}, 7")
    e.i(f"s_add_u32 s{sT0}, s{sT0}, s{sT1}")
    e.i(f"s_add_u32 s{sT0}, s{sT0}, {R1}")
    e.i("v_mul_u32_u24 v122, 528, v3")
    e.i("v_lshl_add_u32 v122, v2, 4, v122")
    e.i(f"v_add_u32 v122, s{sT0}, v122")
    e.i(f"s_cmp_lt_u32 s{sWAVE}, 5")
    e.i("s_cbranch_scc1 L_ln_b")
    e.c("waves 5,6: hand the row statistics to the K/V wave, then start the w1 stream")
    e.i(f"s_lshl_b32 s{sT0}, s{sWAVE}, 5")
    e.i(f"s_add_u32 s{sT0}, s{sT0}, {R4 + STAT - 160}")
    e.i(f"v_lshl_add_u32 v111, v2, 2, s{sT0}")
    e.i("ds_write2_b32 v111, v120, v118 offset1:16")
    lds_signal(CST)
    e.label("L_ln_b")
    e.lg = []
    for i in range(8):
        for t in range(4*i, 4*i+4):
            e.i(f"v_pk_mul_f32 {V(X+2*t,2)}, {V(X+2*t,2)}, v[118:119] op_sel_hi:[1,0]")
        for t in range(4*i, 4*i+4):
            e.i(f"v_cvt_pk_bf16_f32 v{8+t}, v{X+2*t}, v{X+2*t+1}")
        e.lds(f"ds_write_b128 v122, {V(8+4*i,4)} offset:{4224*i}")
    lds_signal(CXN)
    e.i(f"s_cmp_eq_u32 s{sSEG}, 0")
    e.i("s_cbranch_scc1 L_ln_done")
    e.i(f"s_mov_b32 s{sSEG}, 0")
    e.i(f"s_xor_b32 s{sRG}, s{sRG}, 4")
    for t in range(0, 32, 2):
        e.i(f"v_mov_b64 {V(8+t,2)}, {V(128+t,2)}")
    e.i("s_branch L_ln")
    e.label("L_ln_done")
    stamp(8, "front")
    e.i(f"s_cmp_ge_u32 s{sWAVE}, 4")
    e.i("s_cbranch_scc1 L_ffn")
    lane_fields()
    common_addr()

    e.wait_all(vm=True)
    lds_signal(CWQ)
    e.i(f"s_and_b32 s{sT0}, s{sWAVE}, 1")
    e.i(f"s_lshl_b32 s{sT0}, s{sT0}, 6")
    e.i("v_lshl_add_u32 v123, v2, 10, v123")
    e.i(f"v_xor_b32 v123, s{sT0}, v123")
    e.i(f"s_lshr_b32 s{sT0}, s{sWAVE}, 1")
    e.i(f"s_mul_i32 s{sT0}, s{sT0}, {XN_RH}")
    e.i(f"v_add_u32 v124, s{sT0}, v124")
    lds_poll(CWQ, 4, 26, sleep=0)
    lds_poll(CXN, 9, 26, sleep=0)
    stamp(2)
    S0, S1, P0, P1, OA, OB, NMA, NMB, QA, QB, KB, VB = 32, 48, 64, 72, 80, 96, 112, 128, 144, 148, 152, 168
    vK, vV0, vV1 = 200, 201, 202
    fill = []
    class Cap:
        def __enter__(self):
            self.keep = e.lines; e.lines = []
        def __exit__(self, *a):
            fill.extend(e.lines); e.lines = self.keep
    with Cap():
        e.i("v_and_b32 v24, 15, v1")
        e.i("v_lshl_add_u32 v24, v2, 4, v24")
        e.i("v_lshlrev_b32 v24, 4, v24")
        e.i("v_add_u32 v25, 1024, v24")
        e.i("v_add_u32 v26, 1536, v24")
        e.i("v_and_b32 v27, 11, v1")
        e.i("v_cmp_ne_u32 vcc, 0, v27")
        e.i("v_mov_b32 v27, 2048")
        e.i("v_mov_b32 v28, 2064")
        e.i("v_cndmask_b32 v27, v27, v28, vcc")
        e.i("v_cmp_eq_u32 vcc, 0, v3")
        for r in range(0, 8, 2):
            e.i(f"v_mov_b64 {V(P1+r,2)}, 0")
        e.i(f"v_cndmask_b32 v{vV0}, v27, v25, vcc")
        e.i(f"v_cndmask_b32 v{vV1}, v27, v26, vcc")
        const_spots(0, 203, 208)
        for r in range(0, 32, 2):
            e.i(f"v_mov_b64 {V(OA+r,2)}, 0")
        for r in range(0, 8, 2):
            e.i(f"v_mov_b64 {V(VB+24+r,2)}, 0")
    e.c("Q projection: wave w -> head pair hp=w&1, row half rh=w>>1")
    def qreads(ks):
        s = ks % 4
        e.lds(f"ds_read_b64_tr_b16 {V(32+8*s,2)}, v123 offset:{ks*2048}", ("q", ks))
        e.lds(f"ds_read_b64_tr_b16 {V(34+8*s,2)}, v123 offset:{ks*2048+512}", ("q", ks))
        e.lds(f"ds_read_b128 {V(36+8*s,4)}, v124 offset:{ks*1056}", ("q", ks))
    for ks in range(4):
        qreads(ks)
    for ks in range(32):
        s = ks % 4
        e.wait(lg=("q", ks))
        e.i(f"{MF32} v[8:23], {V(32+8*s,4)}, {V(36+8*s,4)}, {'0' if ks == 0 else 'v[8:23]'}")
        if ks + 4 < 32:
            qreads(ks + 4)
        if ks == 27:
            lds_signal(CQ)
        for _ in range(2):
            if fill:
                e.lines.append(fill.pop(0))
    assert not fill
    lds_poll(CQ, 4, 26, sleep=0)
    e.lds("ds_write_b128 v203, v[208:211] offset:2048")
    stamp(3)
    lds_poll(CKV, 1, 26, sleep=0)
    stamp(4)
    kv_dma(sWAVE, 0, vK, sOFF)
    lds_signal(CX)
    e.c("mark this wave's o fragments as not yet written")
    e.i("v_mov_b64 v[204:205], -1")
    e.i("v_mov_b64 v[206:207], -1")
    for hd in range(2):
        e.vmem(f"buffer_store_dwordx4 v[204:207], v200, {S(sWS,4)}, s{sOB} offen offset:{2048*hd} sc1", "clr")
    e.lds(f"ds_read_b32 v30, v6 offset:{CKM}")
    e.i(f"s_mov_b32 s{sT1}, {hex(f32bits(0.25*math.log2(math.e)))}")
    e.i(f"v_mov_b64 {V(S1+14,2)}, 0")
    for r in range(16):
        e.i(f"v_mul_f32 v{8+r}, s{sT1}, v{8+r}")
    for hd in range(2):
        b = 8 + 8*hd
        e.i(f"v_mul_f32 v{24+hd}, v{b}, v{b}")
        for r in range(1, 8):
            e.i(f"v_fmac_f32 v{24+hd}, v{b+r}, v{b+r}")
    e.i("v_mov_b32 v26, v24")
    e.i("v_mov_b32 v27, v25")
    for hd in range(2):
        for j in range(4):
            e.i(f"v_cvt_pk_bf16_f32 v{QA+4*hd+j}, v{8+8*hd+2*j}, v{8+8*hd+2*j+1}")
    e.i("v_permlane32_swap_b32 v24, v26")
    e.i("v_permlane32_swap_b32 v25, v27")
    e.i("v_add_f32 v24, v24, v26")
    e.i("v_add_f32 v25, v25, v27")
    e.wait_all(lg=True)
    e.c("stand-in for the row max: |q| * max|k| >= max_k q.k ; used only while it cannot be far above the true max")
    e.i("v_mul_f32 v24, v24, v30")
    e.i("v_mul_f32 v25, v25, v30")
    e.i("v_sqrt_f32 v24, v24")
    e.i("v_sqrt_f32 v25, v25")
    e.i(f"s_mov_b32 s{sT1}, {hex(f32bits(opt.thr))}")
    e.i("v_max_f32 v26, v24, v25")
    e.i(f"v_cmp_nge_f32 vcc, s{sT1}, v26")
    e.i("v_cmp_u_f32 s[4:5], v24, v25")
    e.i("s_or_b64 s[4:5], s[4:5], vcc")
    for r in range(16):
        e.i(f"v_sub_f32 v{NMA+r}, 0, v24")
        e.i(f"v_sub_f32 v{NMB+r}, 0, v25")
    U = opt.unr
    assert U == 8
    e.i(f"s_mov_b32 s{sCNT}, 0")
    e.i(f"s_mov_b32 s{sSEG}, 0")
    e.wait(vm=("kv", 2))
    lds_signal(CA)
    lds_poll(CA, 4, 26, sleep=0)
    if opt.force_fallback:
        e.i("s_branch L_fallback")
    else:
        e.i("s_cmp_lg_u64 s[4:5], 0")
        e.i("s_cbranch_scc1 L_fallback")
    e.label("L_att_start")
    stamp(5)
    for j in range(3):
        e.lds(f"ds_read_b128 {V(KB+4*j,4)}, v{vK} offset:{j*KVS}", ("a", j))
        e.lds(f"ds_read_b128 {V(VB+8*j,4)}, v{vV0} offset:{j*KVS}")
        e.lds(f"ds_read_b128 {V(VB+8*j+4,4)}, v{vV1} offset:{j*KVS}")
    e.wait(lg=("a", 0))
    e.i(f"{MF32} {V(S0,16)}, {V(KB,4)}, {V(QA,4)}, {V(NMA,16)}")
    e.nop(11)
    e.wait_all(lg=True)
    def step(cur, nxt, pc, pp, K, Q, NM, O, Vb, after):
        for i in range(16):
            e.i(f"v_exp_f32 v{cur+i}, v{cur+i}")
            if i == 0:
                e.i(f"v_cvt_pk_bf16_f32 v{pp+7}, v{nxt+14}, v{nxt+15}")
                e.i(f"{MF32} {V(nxt,16)}, {V(K,4)}, {V(Q,4)}, {V(NM,16)}")
                for t in after[0]: e.i(t)
            if i >= 2 and i % 2 == 0:
                j = (i - 2) // 2
                e.i(f"v_cvt_pk_bf16_f32 v{pc+j}, v{cur+2*j}, v{cur+2*j+1}")
            if i == 5:
                e.i(f"{MF32} {V(O,16)}, {V(Vb,4)}, {V(pp,4)}, {V(O,16)}")
                for t in after[1]: e.i(t)
            if i == 10:
                e.i(f"{MF32} {V(O,16)}, {V(Vb+4,4)}, {V(pp+4,4)}, {V(O,16)}")
                for t in after[2]: e.i(t)
    e.raw(".p2align 6")
    e.label("L_att_loop")
    for u in range(U):
        b3 = (u + 3) % 4
        off = (u + 3) * KVS
        last = u == U - 1
        a0 = [f"ds_read_b128 {V(KB+4*b3,4)}, v{vK} offset:{off}"]
        a1 = [f"v_add_u32 v{vK}, {U*KVS}, v{vK}"] if last else []
        a2 = [f"s_sub_u32 s{sCNT}, s{sCNT}, 1"] if last else []
        step(S0, S1, P0, P1, KB+4*(u % 4), QB, NMB, OB, VB+8*((u-1) % 4), [a0, a1, a2])
        a0 = [f"ds_read_b128 {V(VB+8*b3,4)}, v{vV0} offset:{off}"]
        a1 = [f"ds_read_b128 {V(VB+8*b3+4,4)}, v{vV1} offset:{off}"]
        a2 = ["s_waitcnt lgkmcnt(2)"] if u % 2 == 1 else []
        if last:
            a2 += [f"v_add_u32 v{vV0}, {U*KVS}, v{vV0}", f"v_add_u32 v{vV1}, {U*KVS}, v{vV1}"]
        step(S1, S0, P1, P0, KB+4*((u+1) % 4), QA, NMA, OA, VB+8*(u % 4), [a0, a1, a2])
    e.i("s_cbranch_scc0 L_att_loop")
    e.i(f"s_cmp_eq_u32 s{sSEG}, 3")
    e.i("s_cbranch_scc1 L_att_done")
    e.i(f"s_cmp_eq_u32 s{sSEG}, 2")
    e.i("s_cbranch_scc1 L_att_seg3")
    e.i(f"s_cmp_eq_u32 s{sSEG}, 1")
    e.i("s_cbranch_scc1 L_att_seg2")
    e.c("blocks 0..7 done: the rest of K/V half 1 must have landed")
    e.wait_all(vm=True)
    lds_signal(CA2)
    lds_poll(CA2, 4, 26, sleep=0)
    e.i(f"s_mov_b32 s{sSEG}, 1")
    e.i(f"s_mov_b32 s{sCNT}, 1")
    e.i("s_branch L_att_loop")
    e.label("L_att_seg2")
    e.c("blocks 0..23 done: K/V half 2 must be in LDS")
    stamp(6)
    cstamp(9)
    lds_poll(CH2, 4, 26, sleep=1)
    e.i(f"s_mov_b32 s{sSEG}, 2")
    e.i(f"s_mov_b32 s{sCNT}, 0")
    e.i("s_branch L_att_loop")
    e.label("L_att_seg3")
    lds_signal(CR0)
    e.i(f"s_mov_b32 s{sSEG}, 3")
    e.i(f"s_mov_b32 s{sCNT}, 3")
    e.i("s_branch L_att_loop")
    e.label("L_att_done")
    stamp(7)
    cstamp(10)
    e.i(f"v_cvt_pk_bf16_f32 v{P1+7}, v{S1+14}, v{S1+15}")
    e.i(f"{MF32} {V(OB,16)}, {V(VB+24,4)}, {V(P1,4)}, {V(OB,16)}")
    e.i(f"v_rcp_f32 v24, v{OA+8}")
    e.i(f"{MF32} {V(OB,16)}, {V(VB+28,4)}, {V(P1+4,4)}, {V(OB,16)}")
    e.i("v_lshlrev_b32 v26, 4, v1")
    lds_signal(CAD)
    for hd, O in enumerate((OA, OB)):
        if hd == 1:
            e.i(f"v_rcp_f32 v24, v{OB+8}")
            e.nop(1)
        for r in range(8):
            e.i(f"v_mul_f32 v{O+r}, v{O+r}, v24")
        for j in range(4):
            e.i(f"v_cvt_pk_bf16_f32 v{8+4*hd+j}, v{O+2*j}, v{O+2*j+1}")
        for j in range(4):
            e.i(f"v_min_u32 v{8+4*hd+j}, -2, v{8+4*hd+j}")
        e.vmem(f"buffer_store_dwordx4 {V(8+4*hd,4)}, v26, {S(sWS,4)}, s{sOB} offen offset:{2048*hd} sc1")
    stamp(8, "late")
    dump_stamps(True)
    e.i("s_endpgm")

    e.label("L_fallback")
    e.wait_all(vm=True)
    lds_signal(CA2)
    lds_poll(CA2, 4, 26, sleep=1)
    lds_poll(CH2, 4, 26, sleep=1)
    e.i("v_mov_b32 v24, 0xff800000")
    e.i("v_mov_b32 v25, 0xff800000")
    e.i(f"v_mov_b32 v27, v{vK}")
    e.i(f"s_mov_b32 s{sCNT}, 63")
    e.label("L_fb_loop")
    e.i(f"ds_read_b128 {V(KB,4)}, v27")
    e.i(f"v_add_u32 v27, {KVS}, v27")
    e.i("s_waitcnt lgkmcnt(0)")
    e.i(f"{MF32} {V(S0,16)}, {V(KB,4)}, {V(QA,4)}, 0")
    e.i(f"{MF32} {V(NMB,16)}, {V(KB,4)}, {V(QB,4)}, 0")
    e.nop(12)
    for r in range(0, 16, 2):
        e.i(f"v_max3_f32 v24, v24, v{S0+r}, v{S0+r+1}")
    for r in range(0, 16, 2):
        e.i(f"v_max3_f32 v25, v25, v{NMB+r}, v{NMB+r+1}")
    e.i(f"s_sub_u32 s{sCNT}, s{sCNT}, 1")
    e.i("s_cbranch_scc0 L_fb_loop")
    e.i("v_mov_b32 v26, v24")
    e.i("v_mov_b32 v27, v25")
    e.nop(2)
    e.i("v_permlane32_swap_b32 v24, v26")
    e.i("v_permlane32_swap_b32 v25, v27")
    e.i("v_max_f32 v24, v24, v26")
    e.i("v_max_f32 v25, v25, v27")
    for r in range(16):
        e.i(f"v_sub_f32 v{NMA+r}, 0, v24")
        e.i(f"v_sub_f32 v{NMB+r}, 0, v25")
    e.i(f"s_mov_b32 s{sSEG}, 1")
    e.i(f"s_mov_b32 s{sCNT}, 2")
    e.i("s_branch L_att_start")

    e.label("L_pre_7")
    e.vm = []
    e.lg = []
    e.i("s_setprio 3")
    e.i(f"s_bitcmp1_b32 s{sCB}, 0")
    e.i("v_lshlrev_b32 v105, 4, v1")
    e.i("v_lshrrev_b32 v112, 4, v1")
    e.i("v_and_b32 v113, 15, v1")
    e.i("v_lshlrev_b32 v114, 10, v113")
    e.i("v_lshl_add_u32 v114, v112, 4, v114")
    e.i("s_waitcnt lgkmcnt(0)")
    e.i(f"s_cselect_b64 {S(sWKV,2)}, s[54:55], s[52:53]")
    e.i(f"s_load_dword s{sTAG}, s[68:69], {hex(WS_EPOCH)}")
    e.i(f"s_mov_b64 {S(sX,2)}, s[48:49]")
    for i in range(4):
        e.i(f"s_mov_b32 m0, {R2 + 4096*i}")
        e.i(f"s_mov_b32 s{sT0}, {4096*i}")
        for k in range(4):
            e.vmem(f"buffer_load_dwordx4 v105, {S(sWKV,4)}, s{sT0} offen offset:{1024*k} lds", "wkv")
    e.i(f"s_lshl_b32 s{sT0}, s{sRB}, 2")
    e.i(f"s_lshr_b32 s{sT1}, s{sCB}, 1")
    e.i(f"s_add_u32 s{sT0}, s{sT0}, s{sT1}")
    e.i(f"s_lshl_b32 s{sT0}, s{sT0}, 14")
    for ks in range(16):
        e.vmem(f"buffer_load_dwordx4 {V(192+4*ks,4)}, v114, {S(sX,4)}, s{sT0} offen offset:{64*ks}", ("xf", ks))
    e.i("s_barrier")
    copy_ptrs(True)
    lane_fields()
    common_addr()
    e.i("v_lshlrev_b32 v115, 8, v112")
    e.i("v_lshl_add_u32 v115, v4, 5, v115")
    e.i("v_lshl_add_u32 v115, v5, 3, v115")
    e.i(f"v_add_u32 v115, {R2}, v115")
    for r in range(4):
        e.i(f"v_mov_b32 v{20+r}, 0x3f803f80")
    e.i(f"s_bfe_u32 s{sT1}, s{sCB}, 0x10001")
    e.i(f"s_lshl_b32 s{sT2}, s{sRB}, 1")
    e.i(f"s_lshr_b32 s{sOFF2}, s{sCB}, 2")
    e.i(f"s_add_u32 s{sT2}, s{sT2}, s{sOFF2}")
    e.i(f"s_lshl_b32 s{sT2}, s{sT2}, 11")
    e.i("v_lshlrev_b32 v116, 3, v2")
    e.i("v_lshl_add_u32 v116, v113, 4, v116")
    e.i(f"s_lshl_b32 s{sOFF2}, s{sRB}, 7")
    e.i(f"s_lshl_b32 s{sOFF}, s{sCB}, 3")
    e.i(f"s_add_u32 s{sOFF2}, s{sOFF2}, s{sOFF}")
    e.i(f"v_mov_b32 v18, {hex(WS_KVF)}")
    e.i(f"v_lshrrev_b32 v{vW}, 2, v1")
    e.i(f"v_lshlrev_b32 v19, 7, v{vW}")
    e.i("v_lshl_add_u32 v19, v5, 4, v19")
    e.i(f"v_mul_u32_u24 v{vW}, 3584, v{vW}")
    e.i(f"v_lshl_add_u32 v{vW}, v5, 4, v{vW}")
    e.i(f"s_bitcmp1_b32 s{sCB}, 0")
    e.i(f"s_cselect_b32 s{sTILE}, 0, 6")
    e.i(f"s_mul_i32 s{sOFF}, s{sCB}, 448")
    e.i(f"s_lshl_b32 s{sT0}, s{sTILE}, 6")
    e.i(f"s_add_u32 s{sOFF}, s{sOFF}, s{sT0}")
    e.i(f"v_lshlrev_b32 v{vT0}, 6, v4")
    e.i(f"v_lshl_add_u32 v{vT0}, v3, 5, v{vT0}")
    e.i(f"v_lshl_add_u32 v{vT0}, v5, 3, v{vT0}")
    e.i(f"v_lshl_add_u32 v{vT0}, v2, 9, v{vT0}")
    e.i(f"v_add_u32 v{vT0}, {R2 + 3*6144}, v{vT0}")
    e.i(f"v_lshlrev_b32 v{vL16}, 4, v1")
    e.i(f"v_add_u32 v{vWr}, {R2 + 3*6144}, v{vL16}")
    e.i("s_waitcnt lgkmcnt(0)")
    e.i(f"s_mul_i32 s{sTAG}, s{sTAG}, 0x9e3779b1")
    e.i(f"s_add_u32 s{sTAG}, s{sTAG}, 0x7f4a7c15")
    e.i(f"v_mov_b32 v16, s{sTAG}")
    e.lds(f"ds_write_b32 v6, v16 offset:{CTAG}")
    e.wait(vm="wkv")
    stamp(1, "front")
    for ks in range(16):
        e.lds(f"ds_read_b64_tr_b16 {V(128+4*ks,2)}, v115 offset:{ks*1024}", ("k", ks))
        e.lds(f"ds_read_b64_tr_b16 {V(130+4*ks,2)}, v115 offset:{ks*1024+128}", ("k", ks))
    lds_signal(CXN)
    e.i(f"s_bitcmp1_b32 s{sCB}, 0")
    e.i("s_cbranch_scc1 L_w7_v")
    lg_save, vm_save = list(e.lg), list(e.vm)
    def kvloop(isV):
        for ks in range(16):
            e.wait(lg=("k", ks))
            W = V(128+4*ks, 4)
            a, b = ("v[20:23]", W) if isV else (W, "v[20:23]")
            e.i(f"{MF16} v[12:15], {a}, {b}, {'0' if ks == 0 else 'v[12:15]'}")
        for ks in range(16):
            e.wait(vm=("xf", ks))
            W, Xf = V(128+4*ks, 4), V(192+4*ks, 4)
            a, b = (Xf, W) if isV else (W, Xf)
            e.i(f"{MF16} v[8:11], {a}, {b}, {'0' if ks == 0 else 'v[8:11]'}")
    kvloop(False)
    stamp(8, "front")
    e.i("v_lshl_add_u32 v116, v3, 9, v116")
    e.i(f"s_lshl_b32 s{sT1}, s{sT1}, 8")
    e.i(f"s_add_u32 s{sT2}, s{sT2}, s{sT1}")
    e.i("v_lshl_add_u32 v117, v113, 2, v6")
    lds_poll(CST, 2, 24, sleep=0)
    e.i(f"ds_read2_b32 v[24:25], v117 offset0:{STAT//4} offset1:{STAT//4+16}")
    e.wait_all(lg=True)
    for r in range(4):
        e.i(f"v_fmac_f32 v{8+r}, v24, v{12+r}")
    for r in range(4):
        e.i(f"v_mul_f32 v{8+r}, v25, v{8+r}")
    e.i("v_cvt_pk_bf16_f32 v12, v8, v9")
    e.i("v_cvt_pk_bf16_f32 v13, v10, v11")
    e.i(f"buffer_store_dwordx2 v[12:13], v116, {S(sWS,4)}, s{sT2} offen sc1")
    e.i("v_mul_f32 v17, v8, v8")
    for r in range(1, 4):
        e.i(f"v_fmac_f32 v17, v{8+r}, v{8+r}")
    e.i("v_mov_b32 v15, v17")
    e.nop(2)
    e.i("v_permlane32_swap_b32 v17, v15")
    e.i("v_add_f32 v17, v17, v15")
    e.i("v_mov_b32 v15, v17")
    e.nop(2)
    e.i("v_permlane16_swap_b32 v17, v15")
    e.i("v_add_f32 v17, v17, v15")
    for m in ("row_ror:1", "row_ror:2", "row_ror:4", "row_ror:8"):
        e.nop(2)
        e.i(f"v_max_u32_dpp v17, v17, v17 {m} row_mask:0xf bank_mask:0xf")
    e.i("s_branch L_w7_pub")
    e.label("L_w7_v")
    e.lg, e.vm = lg_save, vm_save
    kvloop(True)
    stamp(8, "front")
    e.i("v_lshl_add_u32 v116, v3, 8, v116")
    e.i(f"s_lshl_b32 s{sT1}, s{sT1}, 9")
    e.i(f"s_add_u32 s{sT2}, s{sT2}, s{sT1}")
    e.i(f"s_add_u32 s{sT2}, s{sT2}, 1024")
    e.i("v_lshl_add_u32 v117, v112, 4, v6")
    lds_poll(CST, 2, 24, sleep=0)
    e.i(f"ds_read_b128 v[24:27], v117 offset:{STAT}")
    e.i(f"ds_read_b128 v[28:31], v117 offset:{STAT+64}")
    e.wait_all(lg=True)
    for r in range(4):
        e.i(f"v_fmac_f32 v{8+r}, v{24+r}, v{12+r}")
    for r in range(4):
        e.i(f"v_mul_f32 v{8+r}, v{28+r}, v{8+r}")
    e.i("v_cvt_pk_bf16_f32 v12, v8, v9")
    e.i("v_cvt_pk_bf16_f32 v13, v10, v11")
    e.i(f"buffer_store_dwordx2 v[12:13], v116, {S(sWS,4)}, s{sT2} offen sc1")
    e.i("v_mov_b32 v17, 0")
    e.label("L_w7_pub")
    stamp(2)
    e.i("s_mov_b64 exec, 1")
    e.wait_all(vm=True)
    e.i(f"buffer_store_dwordx2 v[16:17], v18, {S(sWS,4)}, s{sOFF2} offen sc1")
    e.i("s_mov_b64 exec, -1")
    stamp(9)
    def w1_load1(ks):
        e.vmem(f"buffer_load_dwordx4 {V(128+4*ks,4)}, v{vW}, {S(sW1,4)}, s{sOFF} offen", ("w", ks))
        e.i(f"s_add_u32 s{sOFF}, s{sOFF}, {16*3584}")
    PW7 = 16
    e.c("wait for all 256 K/V producers, pass max |k|^2 on through LDS")
    top, done = lbl("kv"), lbl("kvd")
    e.i(f"s_mov_b32 s{sT1}, {hex(WS_KVF)}")
    if opt.kvdelay:
        e.i(f"s_sleep {opt.kvdelay}")
    spin_init()
    e.label(top)
    e.i(f"buffer_load_dwordx4 v[32:35], v19, {S(sWS,4)}, s{sT1} offen sc1")
    e.i(f"buffer_load_dwordx4 v[36:39], v19, {S(sWS,4)}, s{sT1} offen offset:2048 sc1")
    e.wait_all(vm=True)
    e.i("v_xor_b32 v32, v16, v32")
    e.i("v_xor_b32 v34, v16, v34")
    e.i("v_xor_b32 v36, v16, v36")
    e.i("v_xor_b32 v38, v16, v38")
    e.i("v_or3_b32 v32, v32, v34, v36")
    e.i("v_or_b32 v32, v32, v38")
    e.i("v_cmp_ne_u32 vcc, 0, v32")
    e.i("v_max_u32 v30, v33, v37")
    e.i(f"s_cbranch_vccz {done}")
    spin_tail(top, done, opt.kvsleep)
    e.label(done)
    if opt.kvtouch:
        e.c("touch 64 of the 1024 K/V lines -> L2 (the workgroups of an XCD cover all of them)")
        e.i(f"s_bfe_u32 s{sT1}, s2, 0x40003")
        e.i(f"s_lshl_b32 s{sT1}, s{sT1}, 7")
        e.i("v_lshlrev_b32 v31, 11, v1")
        e.i(f"buffer_load_dword v28, v31, {S(sWS,4)}, s{sT1} offen sc1")
    for m in ("row_ror:1", "row_ror:2", "row_ror:4", "row_ror:8"):
        e.nop(2)
        e.i(f"v_max_u32_dpp v30, v30, v30 {m} row_mask:0xf bank_mask:0xf")
    e.i("v_mov_b32 v29, v30")
    e.nop(2)
    e.i("v_permlane16_swap_b32 v29, v30")
    e.i("v_max_u32 v30, v29, v30")
    e.i("v_mov_b32 v29, v30")
    e.nop(2)
    e.i("v_permlane32_swap_b32 v29, v30")
    e.i("v_max_u32 v30, v29, v30")
    e.lds(f"ds_write_b32 v6, v30 offset:{CKM}")
    lds_signal(CKV)
    e.i("s_setprio 0")
    stamp(4, "front")
    e.c("workgroup 0 renews the epoch word: every producer has read it by now")
    e.i("s_cmp_lg_u32 s2, 0")
    e.i("s_cbranch_scc1 L_w7_ffn")
    e.i(f"v_mov_b32 v29, {hex(WS_EPOCH)}")
    e.i("s_mov_b64 exec, 1")
    e.i(f"buffer_store_dword v16, v29, {S(sWS,4)}, 0 offen sc1")
    e.i("s_mov_b64 exec, -1")
    e.label("L_w7_ffn")
    for ks in range(PW7):
        w1_load1(ks)

    ACC = 8
    NS = 3
    AF, BF = 72, 96
    def h_store(tiles):
        e.i("s_setprio 3")
        e.i(f"s_mul_i32 s{sT0}, s{sRB}, 112")
        e.i(f"s_mul_i32 s{sT1}, s{sCB}, 14")
        e.i(f"s_add_u32 s{sT0}, s{sT0}, s{sT1}")
        e.i(f"s_lshl_b32 s{sT1}, s{sTILE}, 1")
        e.i(f"s_add_u32 s{sT0}, s{sT0}, s{sT1}")
        e.i(f"s_lshl_b32 s{sT0}, s{sT0}, 11")
        e.i(f"s_add_u32 s{sOFF}, s{sT0}, {WS_H}")
        e.i(f"s_add_u32 s{sOFF2}, s{sOFF}, 4096")
        e.nop(2)
        for ct in tiles:
            for rh in range(2):
                a = ACC + 16 * (rh * 2 + ct)
                for j in range(8):
                    e.i(f"v_cvt_pk_bf16_f32 v{a+j}, v{a+2*j}, v{a+2*j+1}")
                for j in range(8):
                    e.i(f"v_pk_max_i16 v{a+j}, v{a+j}, 0")
                for s in range(2):
                    e.vmem(f"buffer_store_dwordx4 {V(a+4*s,4)}, v{vL16}, {S(sWS,4)}, s{sOFF2 if ct else sOFF} offen offset:{(2*s+rh)*1024} sc1", "hst")
    def bread(ks, rh):
        e.lds(f"ds_read_b128 {V(BF+8*(ks%NS)+4*rh,4)}, v{124+rh} offset:{ks*1056}", ("f", ks), guard=False)

    lds_poll(CXN, 9, 72, sleep=0)
    def w7_wr(ks):
        e.wait(vm=("w", ks))
        e.lds(f"ds_write_b128 v{vWr}, {V(128+4*ks,4)} offset:{(ks%2)*1024}", ("wr", ks))
    def w7_tr(ks):
        for t in range(2):
            e.lds(f"ds_read_b64_tr_b16 {V(AF+8*(ks%NS)+2*t,2)}, v{vT0} offset:{(ks%2)*1024+256*t}", ("f", ks))
    for ks in range(2):
        w7_wr(ks); bread(ks, 0); bread(ks, 1); w7_tr(ks)
    w7_wr(2)
    for ks in range(32):
        s = ks % NS
        e.wait(lg=("f", ks))
        for rh in range(2):
            a = ACC + 32 * rh
            e.i(f"{MF32} {V(a,16)}, {V(AF+8*s,4)}, {V(BF+8*s+4*rh,4)}, {'0' if ks == 0 else V(a,16)}")
            if rh == 0:
                if ks + 2 < 32:
                    w7_tr(ks + 2)
                    bread(ks + 2, 0)
                if ks + PW7 < 32:
                    w1_load1(ks + PW7)
            else:
                if ks + 2 < 32:
                    bread(ks + 2, 1)
                if ks + 3 < 32:
                    w7_wr(ks + 3)
    lds_signal(CX)
    stamp(3)
    h_store([0])
    e.i("s_branch L_ffn_join")

    e.label("L_ffn")
    e.vm = []
    e.lg = []
    e.i("s_setprio 0")
    w1_first()
    lane_fields()
    common_addr()
    e.i(f"s_mul_i32 s{sT2}, s{sF}, 6144")
    e.i(f"s_add_u32 s{sT2}, s{sT2}, {R2}")
    e.i(f"v_lshlrev_b32 v{vL16}, 4, v1")
    e.i(f"v_lshl_add_u32 v{vT0}, v2, 10, v123")
    e.i(f"v_add_u32 v{vT0}, s{sT2}, v{vT0}")
    e.i(f"v_xor_b32 v{vT1}, 64, v{vT0}")
    e.i(f"v_lshlrev_b32 v{vWr}, 6, v3")
    e.i(f"v_xor_b32 v{vWr}, v{vWr}, v{vL16}")
    e.i(f"v_add_u32 v{vWr}, s{sT2}, v{vWr}")
    lds_poll(CXN, 9, 72, sleep=0)
    stamp(2)
    def f_wr(ks, a):
        if a == 0:
            e.wait(vm=("w", ks))
        e.lds(f"ds_write_b128 v{vWr}, {V(128+8*(ks%PF)+4*a,4)} offset:{(ks%2)*2048+1024*a}", ("wr", ks), guard=False)
    def f_tr(ks, ct):
        for t in range(2):
            e.lds(f"ds_read_b64_tr_b16 {V(AF+8*(ks%NS)+4*ct+2*t,2)}, v{vT1 if ct else vT0} offset:{(ks%2)*2048+512*t}", ("f", ks), guard=False)
    for ks in range(2):
        f_wr(ks, 0); f_wr(ks, 1); bread(ks, 0); bread(ks, 1); f_tr(ks, 0); f_tr(ks, 1)
    f_wr(2, 0); f_wr(2, 1)
    for ks in range(32):
        s = ks % NS
        e.wait(lg=("f", ks))
        for i in range(4):
            rh, ct = i >> 1, i & 1
            a = ACC + 16 * i
            e.i(f"{MF32} {V(a,16)}, {V(AF+8*s+4*ct,4)}, {V(BF+8*s+4*rh,4)}, {'0' if ks == 0 else V(a,16)}")
            if ct == 0:
                if ks + PF0 < 32:
                    w1_load_half(ks + PF0, rh)
                if ks + 2 < 32:
                    bread(ks + 2, rh)
            else:
                if ks + 2 < 32:
                    f_tr(ks + 2, rh)
                if ks + 3 < 32:
                    f_wr(ks + 3, rh)
    lds_signal(CX)
    stamp(3)
    h_store([0, 1])

    e.label("L_ffn_join")
    get_tag(74)
    lds_poll(CA2, 4, 72, sleep=4)
    e.i(f"s_lshl_b32 s{sOFF}, s{sCB}, 7")
    e.i(f"s_lshl_b32 s{sT1}, s{sF}, 2")
    e.i(f"s_add_u32 s{sOFF}, s{sOFF}, s{sT1}")
    e.i(f"s_add_u32 s{sOFF}, s{sOFF}, s{sFLG}")
    e.i("v_mov_b32 v72, 0")
    const_spots(R1, 73, 76)
    e.i(f"s_mul_i32 s{sT2}, s{sF}, 6144")
    e.i(f"s_add_u32 s{sT2}, s{sT2}, {R2}")
    e.i("v_lshl_add_u32 v123, v2, 9, v123")
    e.i(f"v_add_u32 v{vT0}, s{sT2}, v123")
    e.i(f"v_xor_b32 v{vT1}, 64, v{vT0}")
    e.i(f"s_and_b32 s{sT1}, s{sF}, 1")
    e.i(f"s_mul_i32 s{sT1}, s{sT1}, {32768+64}")
    e.i(f"v_xor_b32 v123, s{sT1}, v123")
    e.i("v_xor_b32 v120, 64, v123")
    e.i("v_bfe_u32 v124, v1, 2, 3")
    e.i("v_lshlrev_b32 v124, 7, v124")
    e.i("v_and_b32 v4, 3, v1")
    e.i("v_lshl_add_u32 v124, v4, 2, v124")
    e.i("v_and_b32 v3, 31, v1")
    e.i("v_lshlrev_b32 v3, 10, v3")
    e.i("v_lshl_add_u32 v3, v2, 3, v3")
    e.i("v_lshlrev_b32 v125, 7, v1")
    e.i(f"s_lshl_b32 s{sT1}, s{sF}, 12")
    e.i(f"s_add_u32 s{sT1}, s{sT1}, {R1}")
    e.i(f"v_add_u32 v4, s{sT1}, v{vL16}")
    e.i(f"s_lshl_b32 s{sT1}, s{sF}, 14")
    e.i(f"s_add_u32 s{sT1}, s{sT1}, {R1}")
    e.i(f"v_add_u32 v5, s{sT1}, v{vL16}")
    e.i("s_mov_b64 exec, 1")
    e.wait_all(vm=True, lg=True)
    e.vmem(f"buffer_store_dword v74, v72, {S(sWS,4)}, s{sOFF} offen sc1")
    e.i("s_mov_b64 exec, -1")
    stamp(4, "late")
    if opt.warm2:
        e.c("touch this wave's w2 slice (448 lines) so that the slow-paced DMA ring finds it in L2")
        e.i("v_lshlrev_b32 v125, 3, v125")
        e.i(f"s_mul_i32 s{sT1}, s{sF}, {448*1024}")
        e.i(f"s_lshl_b32 s{sT0}, s{sCB}, 7")
        e.i(f"s_add_u32 s{sT1}, s{sT1}, s{sT0}")
        e.i(f"s_and_b32 s{sT0}, s{sRB}, 7")
        e.i(f"s_min_u32 s{sT0}, s{sT0}, 6")
        e.i(f"s_lshl_b32 s{sT0}, s{sT0}, 16")
        e.i(f"s_add_u32 s{sT1}, s{sT1}, s{sT0}")
        e.vmem(f"buffer_load_dword v127, v125, {S(sW2,4)}, s{sT1} offen")
    e.c("K/V half 2 -> LDS (xn region) once xn is dead and the K/V flags were seen")
    lds_poll(CX, 8, 72, sleep=2)
    kv_dma(sF, 1, vL16, sOFF2)
    e.lds("ds_write_b128 v73, v[76:79] offset:2048")
    e.i(f"s_mul_i32 s{sOFF}, s{sF}, {448*1024}")
    e.i(f"s_lshl_b32 s{sT0}, s{sCB}, 7")
    e.i(f"s_add_u32 s{sOFF}, s{sOFF}, s{sT0}")
    def w2_dma(ks):
        for a in range(2):
            e.i(f"s_add_u32 m0, s{sT2}, {(ks % 3) * 2048 + a * 1024}")
            e.i("s_nop 0")
            e.vmem(f"buffer_load_dwordx4 v126, {S(sW2,4)}, s{sOFF} offen lds", ("w", ks))
            e.i(f"s_add_u32 s{sOFF}, s{sOFF}, 8192")
    for ks in range(3):
        w2_dma(ks)
    e.wait(vm=("kv", 7))
    e.wait_all(lg=True)
    lds_signal(CH2)
    stamp(5)
    exit_if(5)
    e.c("wait for h of the whole row group")
    top, done = lbl("fp"), lbl("fpd")
    spin_init()
    e.label(top)
    e.i(f"buffer_load_dword v72, v124, {S(sWS,4)}, s{sFLG} offen sc1")
    e.wait_all(vm=True)
    e.i(f"v_cmp_ne_u32 vcc, s{sTAG}, v72")
    e.i(f"s_cbranch_vccz {done}")
    spin_tail(top, done, 4)
    e.label(done)
    stamp(6)
    e.i("s_setprio 0")
    e.i(f"s_mul_i32 s{sT0}, s{sRB}, 112")
    e.i(f"s_mul_i32 s{sT1}, s{sF}, 28")
    e.i(f"s_add_u32 s{sT0}, s{sT0}, s{sT1}")
    e.i(f"s_lshl_b32 s{sT0}, s{sT0}, 11")
    e.i(f"s_add_u32 s{sOFF2}, s{sT0}, {WS_H}")
    PH = 4
    def h_load(ks):
        for rh in range(2):
            r = 88 + 8 * (ks % PH) + 4 * rh
            e.vmem(f"buffer_load_dwordx4 {V(r,4)}, v{vL16}, {S(sWS,4)}, s{sOFF2} offen offset:{1024*rh} sc1", ("h", ks))
        e.i(f"s_add_u32 s{sOFF2}, s{sOFF2}, 2048")
    def tr2(ks, i):
        ct, t = i >> 1, i & 1
        e.lds(f"ds_read_b64_tr_b16 {V(72+8*(ks%2)+4*ct+2*t,2)}, v{vT1 if ct else vT0} offset:{(ks%3)*2048+1024*t}", ("f", ks))
    for ks in range(PH - 1):
        h_load(ks)
    for i in range(4):
        tr2(0, i)
    e.wait_all(lg=True)
    for ks in range(28):
        s = ks % 2
        if ks + 3 < 28:
            w2_dma(ks + 3)
        if ks + PH - 1 < 28:
            h_load(ks + PH - 1)
        e.wait(vm=("h", ks))
        if ks + 1 < 28:
            e.wait(vm=("w", ks + 1))
        for i in range(4):
            rh, ct = i >> 1, i & 1
            a = ACC + 16 * i
            e.i(f"{MF32} {V(a,16)}, {V(72+8*s+4*ct,4)}, {V(88+8*(ks%PH)+4*rh,4)}, {'0' if ks == 0 else V(a,16)}")
            if ks + 1 < 28:
                tr2(ks + 1, i)
                if opt.pace or i == 3:
                    e.wait_all(lg=True)
    stamp(7)
    exit_if(7)
    e.c("wo slice -> R0 by DMA once attention has left it; fragments -> registers")
    e.i("s_setprio 3")
    lds_poll(CR0, 4, 72, sleep=8)
    slice_dma(sWO, sF, 126, "wo")
    e.i(f"s_lshl_b32 s{sOFF2}, s{sCB}, 7")
    e.i(f"s_and_b32 s{sT0}, s{sF}, 1")
    e.i(f"s_lshl_b32 s{sT0}, s{sT0}, 6")
    e.i(f"s_add_u32 s{sOFF2}, s{sOFF2}, s{sT0}")
    e.i(f"s_lshl_b32 s{sT0}, s{sRB}, 1")
    e.i(f"s_lshr_b32 s{sT1}, s{sF}, 1")
    e.i(f"s_add_u32 s{sT0}, s{sT0}, s{sT1}")
    e.i(f"s_lshl_b32 s{sT0}, s{sT0}, 15")
    e.i(f"s_add_u32 s{sOFF2}, s{sOFF2}, s{sT0}")
    G, XR, OF = 104, 120, 40
    e.wait_all(vm=True)
    lds_signal(CWO)
    lds_poll(CWO, 4, 72, sleep=4)
    for i in range(16):
        for c2 in range(2):
            for t in range(2):
                e.lds(f"ds_read_b64_tr_b16 {V(128+8*i+4*c2+2*t,2)}, v{120 if c2 else 123} offset:{i*2048+1024*t}")
    e.wait_all(lg=True)
    for q in range(4):
        e.vmem(f"buffer_load_dwordx2 {V(XR+2*q,2)}, v3, {S(sX,4)}, s{sOFF2} offen offset:{16*q}", "xr")
    e.i(f"s_lshl_b32 s{sT0}, s{sRB}, 6")
    e.i(f"s_lshr_b32 s{sT1}, s{sF}, 1")
    e.i(f"s_add_u32 s{sT0}, s{sT0}, s{sT1}")
    e.i(f"s_and_b32 s{sT1}, s{sF}, 1")
    e.i(f"s_lshl_b32 s{sT1}, s{sT1}, 5")
    e.i(f"s_add_u32 s{sT0}, s{sT0}, s{sT1}")
    e.i(f"s_lshl_b32 s{sT0}, s{sT0}, 10")
    for k in range(8):
        e.i(f"s_add_u32 s{sOA+k}, s{sT0}, {WS_O + 4096*k}")
    e.i(f"s_lshl_b32 s{sT0}, s{sF}, 12")
    e.i(f"s_add_u32 s{sT1}, s{sT0}, {R2}")
    e.i(f"v_add_u32 v1, s{sT1}, v{vL16}")
    e.i(f"s_xor_b32 s{sT0}, s{sT0}, 4096")
    e.i(f"s_add_u32 s{sT1}, s{sT0}, {R2}")
    e.i(f"v_add_u32 v2, s{sT1}, v{vL16}")
    e.i(f"s_mov_b32 s{sT1}, {hex(f32bits(-math.log2(math.e)))}")
    stamp(8, "late")
    e.c("attention finished in this workgroup: reduce f partials through R1")
    lds_poll(CAD, 4, 72, sleep=2)
    for t in range(4):
        for q in range(4):
            e.lds(f"ds_write_b128 v4, {V(ACC+16*t+4*q,4)} offset:{t*16384+q*1024}")
    lds_signal(CF)
    lds_poll(CF, 4, 72, sleep=0)
    for src in range(4):
        for q in range(4):
            e.lds(f"ds_read_b128 {V(ACC+16*src+4*q,4)}, v5 offset:{src*4096+q*1024}", ("r", src))
    e.i(f"s_and_b32 s{sT0}, s{sF}, 2")
    e.i(f"s_lshl_b32 s{sT0}, s{sT0}, 1")
    e.i(f"v_add_u32 v4, s{sT0}, v6")
    e.wait(lg=("r", 1))
    for r in range(0, 16, 2):
        e.i(f"v_pk_add_f32 {V(ACC+r,2)}, {V(ACC+r,2)}, {V(ACC+16+r,2)}")
    e.wait_all(lg=True)
    for r in range(0, 16, 2):
        e.i(f"v_pk_add_f32 {V(ACC+32+r,2)}, {V(ACC+32+r,2)}, {V(ACC+48+r,2)}")
    for r in range(0, 16, 2):
        e.i(f"v_pk_add_f32 {V(G+r,2)}, {V(ACC+r,2)}, {V(ACC+32+r,2)}")
    stamp(1, "late")
    e.i(f"s_mov_b32 s{sSEG}, 4")
    spin_init()
    e.wait_all(vm=True)
    e.c("o fragments: load, check that every dword was written, retry the rest if not")
    for g in range(4):
        e.label(f"L_oload_{g}")
        for i in range(4):
            e.i(f"buffer_load_dwordx4 {V(OF+16*g+4*i,4)}, v{vL16}, {S(sWS,4)}, s{sOA+2*g+(i>>1)} offen offset:{2048*(i&1)} sc1")
    for g in range(4):
        e.i(f"s_cmp_eq_u32 s{sSEG}, {g}")
        e.i(f"s_cbranch_scc1 L_ochk_{g}")
    e.c("first pass only: g = silu(f) under the load latency")
    for r in range(16):
        e.i(f"v_mul_f32 v{ACC+r}, s{sT1}, v{G+r}")
    for r in range(16):
        e.i(f"v_exp_f32 v{ACC+r}, v{ACC+r}")
    for r in range(16):
        e.i(f"v_add_f32 v{ACC+r}, 1.0, v{ACC+r}")
    for r in range(16):
        e.i(f"v_rcp_f32 v{ACC+r}, v{ACC+r}")
    for r in range(16):
        e.i(f"v_mul_f32 v{G+r}, v{G+r}, v{ACC+r}")
    for g in range(4):
        e.label(f"L_ochk_{g}")
        e.i(f"s_waitcnt vmcnt({12-4*g})")
        b = OF + 16 * g
        e.i(f"v_max3_u32 v5, v{b}, v{b+1}, v{b+2}")
        for k in range(3, 15, 2):
            e.i(f"v_max3_u32 v5, v5, v{b+k}, v{b+k+1}")
        e.i(f"v_max_u32 v5, v5, v{b+15}")
        e.i("v_cmp_eq_u32 vcc, -1, v5")
        e.i(f"s_cbranch_vccnz L_oretry_{g}")
        e.label(f"L_ogo_{g}")
        for i in range(4):
            for c2 in range(2):
                a = 8 + 16 * c2
                k = 4 * g + i
                e.i(f"{MF32} {V(a,16)}, {V(128+8*k+4*c2,4)}, {V(b+4*i,4)}, {'0' if k == 0 else V(a,16)}")
    for t in range(8):
        e.i(f"v_lshlrev_b32 v{128+2*t}, 16, v{XR+t}")
        e.i(f"v_and_b32 v{129+2*t}, s{sMASK}, v{XR+t}")
    e.lg = []
    for q in range(4):
        e.lds(f"ds_write_b128 v1, {V(24+4*q,4)} offset:{q*1024}")
    lds_signal(CE0, va=4)
    lds_poll(CE0, 2, 5, sleep=0, va=4)
    for q in range(4):
        e.lds(f"ds_read_b128 {V(24+4*q,4)}, v2 offset:{q*1024}", ("e", q))
    for q in range(4):
        e.wait(lg=("e", q))
        for r in range(4*q, 4*q+4):
            e.i(f"v_add_f32 v{8+r}, v{8+r}, v{24+r}")
        for r in range(4*q, 4*q+4):
            e.i(f"v_fmac_f32 v{128+r}, v{8+r}, v{G+r}")
        for j in range(2):
            e.i(f"v_cvt_pk_bf16_f32 v{XR+2*q+j}, v{128+4*q+2*j}, v{128+4*q+2*j+1}")
        e.vmem(f"buffer_store_dwordx2 {V(XR+2*q,2)}, v3, {S(sOUT,4)}, s{sOFF2} offen offset:{16*q}")
    if opt.stamps:
        e.wait_all(vm=True)
        stamp(10)
    dump_stamps()
    e.label("L_end")
    e.i("s_endpgm")
    for g in range(4):
        e.label(f"L_oretry_{g}")
        e.i(f"s_mov_b32 s{sSEG}, {g}")
        e.i(f"s_sub_u32 s{sSPIN}, s{sSPIN}, 1")
        e.i(f"s_cbranch_scc1 L_ogo_{g}")
        e.i("s_sleep 1")
        e.i(f"s_branch L_oload_{g}")
    return e

def wrap(e):
    hdr = open("cdna_kernels/%s.s.ref" % NAME).read().split("\n")
    top = [l for l in hdr if l.startswith(";") and "@launch" not in l]
    out = "\n".join(top) + f"\n; @launch grid=(256,1,1) block=(512,1,1) lds={LDS_BYTES}\n"
    out += f""".amdgcn_target "amdgcn-amd-amdhsa--gfx950"
.text
.globl {NAME}_kernel
.p2align 8
.type {NAME}_kernel,@function
{NAME}_kernel:
"""
    out += e.text()
    out += f""".section .rodata,"a"
.p2align 6
.amdhsa_kernel {NAME}_kernel
  .amdhsa_next_free_vgpr 256
  .amdhsa_next_free_sgpr 102
  .amdhsa_accum_offset 256
  .amdhsa_group_segment_fixed_size 0
  .amdhsa_kernarg_size 88
  .amdhsa_user_sgpr_count 2
  .amdhsa_user_sgpr_kernarg_segment_ptr 1
  .amdhsa_system_sgpr_workgroup_id_x 1
.end_amdhsa_kernel
"""
    return out

if __name__ == "__main__":
    opt = Opt()
    outp = sys.argv[1]
    for a in sys.argv[2:]:
        k, v = a.split("=")
        setattr(opt, k, type(getattr(opt, k))(eval(v)))
    e = gen(opt)
    bad = check_cfg(e.lines)
    print("hazards:", bad, "lines:", len(e.lines), "lds", LDS_BYTES)
    open(outp, "w").write(wrap(e))
```

```python
import sys, math, struct
from asmlib import *

NAME = "recurrent_scan__grouped_kv_mqa__dense_activation_relu__prompt"
MF32 = "v_mfma_f32_32x32x16_bf16"
MF16 = "v_mfma_f32_16x16x32_bf16"

def f32bits(x):
    return struct.unpack("<I", struct.pack("<f", x))[0]

KVS = 2080
R0 = 0
R1 = 32 * KVS
XN_RH = 64 * 528
R2 = R1 + 2 * XN_RH
R4 = R2 + 24576
LDS_BYTES = R4 + 256
(CXN, CST, CWQ, CQ, CKV, CKM, CTAG, CA, CA2, CX, CH2, CR0, CWO, CAD, CF, CE0, CE1, CRW, CRC, CXI, CP1, CL1, CG) = [4 * i for i in range(23)]
STAT = 128
assert R2 % 128 == 0
WS_KV = 0
WS_EPOCH = 0x30000
WS_KVF = 0x38000
WS_HF = 0x40000
WS_O = 0x100000
WS_H = 0x400000
WS_STAMP = 0x1000000
sX, sWQ, sWKV, sWO, sW1, sW2, sOUT, sWS = 8, 12, 16, 20, 24, 28, 32, 40
sMASK, sF, sSPIN, sFLG = 44, 45, 46, 47
sWAVE, sRB, sCB, sT0, sT1, sT2, sOFF, sOFF2, sCNT, sSEG = 70, 71, 72, 73, 74, 75, 76, 77, 78, 79
sRG, sOB, sTAG, sTILE, sRING = 3, 6, 7, 36, 37
sOA = 52
sSTAMP = 80
vH, vCG, vR, vC, vTR, vXN0, vXN1, vSW, vW1, vL16, vT0, vT1, vSP = 212, 213, 214, 215, 216, 217, 218, 219, 220, 221, 222, 223, 224
vSD = 228

class Opt:
    stamps = False
    front = False
    force_fallback = False
    thr = 40.0
    exit_at = 0
    spin = 0x20000
    pace1 = 1
    pace2 = 1
    kvsleep = 4
    kvdelay = 16
    kvtouch = True
    warm2 = True
    touch = 2
    fstart = 2
    twq = False
    wqdepth = 40
    fprio = 0
    outf = ''
    echo = ()

def gen(opt):
    e = E()
    uid = [0]
    def lbl(p):
        uid[0] += 1
        return f"L_{p}_{uid[0]}"
    def stamp(k, when=None):
        if when == "front" and not opt.front: return
        if when == "late" and opt.front: return
        if opt.stamps:
            e.i(f"s_memrealtime {S(sSTAMP+2*k,2)}")
    def cstamp(k):
        if opt.stamps:
            e.i(f"s_memtime {S(sSTAMP+2*k,2)}")
    def dump_stamps():
        if not opt.stamps or opt.echo:
            return
        e.wait_all(vm=True, lg=True)
        e.i("v_mov_b32 v2, 0")
        e.i("v_mbcnt_lo_u32_b32 v1, -1, 0")
        e.i("v_mbcnt_hi_u32_b32 v1, -1, v1")
        for k in range(22):
            e.i(f"v_writelane_b32 v2, s{sSTAMP+k}, {k}")
        e.i(f"s_lshl_b32 s{sT0}, s2, 3")
        e.i(f"s_add_u32 s{sT0}, s{sT0}, s{sWAVE}")
        e.i(f"s_lshl_b32 s{sT0}, s{sT0}, 8")
        e.i(f"s_add_u32 s{sT0}, s{sT0}, {WS_STAMP}")
        e.i("v_lshlrev_b32 v3, 2, v1")
        e.i(f"buffer_store_dword v2, v3, {S(sWS,4)}, s{sT0} offen")
    def exit_if(k):
        if opt.exit_at == k:
            dump_stamps()
            e.i("s_endpgm")
    def spin_init(mult=1):
        e.i(f"s_mov_b32 s{sSPIN}, {hex(opt.spin*mult)}")
    def spin_tail(top, done, sleep):
        e.i(f"s_sub_u32 s{sSPIN}, s{sSPIN}, 1")
        e.i(f"s_cbranch_scc1 {done}")
        if sleep:
            e.i(f"s_sleep {sleep}")
        e.i(f"s_branch {top}")
    def lds_signal(off, va=6):
        e.i("s_mov_b64 exec, 1")
        e.lds(f"ds_add_u32 v{va}, v7 offset:{off}")
        e.i("s_mov_b64 exec, -1")
    def lds_poll(off, n, vt=5, sleep=1, va=6):
        top, done = lbl("lp"), lbl("lpd")
        spin_init(16)
        e.label(top)
        e.i(f"ds_read_b32 v{vt}, v{va} offset:{off}")
        e.wait_all(lg=True)
        e.i(f"v_readfirstlane_b32 s{sT0}, v{vt}")
        e.i(f"s_cmp_ge_u32 s{sT0}, {n}")
        e.i(f"s_cbranch_scc1 {done}")
        spin_tail(top, done, sleep)
        e.label(done)
    def kv_dma(n, soff, sl, gstep, lstep):
        for i in range(n):
            e.i(f"s_mov_b32 m0, s{sl}")
            e.i(f"s_add_u32 s{sl}, s{sl}, {lstep*KVS}")
            for p in range(2):
                e.vmem(f"buffer_load_dwordx4 v{vL16}, {S(sWS,4)}, s{soff} offen offset:{1024*p} sc1 lds", ("kv", i))
            e.i(f"s_add_u32 s{soff}, s{soff}, {gstep*2048}")
    def setup():
        e.i(f"s_mov_b64 {S(sWQ,2)}, s[50:51]")
        e.i(f"s_mov_b64 {S(sWO,2)}, s[56:57]")
        e.i(f"s_mov_b64 {S(sW1,2)}, s[60:61]")
        e.i(f"s_mov_b64 {S(sW2,2)}, s[62:63]")
        e.i(f"s_mov_b64 {S(sOUT,2)}, s[64:65]")
        e.i(f"s_mov_b64 {S(sWS,2)}, s[68:69]")
        e.i(f"s_lshl_b32 s{sFLG}, s{sRB}, 10")
        e.i(f"s_add_u32 s{sFLG}, s{sFLG}, {hex(WS_HF)}")
        e.i(f"s_mul_i32 s{sRING}, s{sF}, 6144")
        e.i(f"s_add_u32 s{sRING}, s{sRING}, {R2}")
        e.i("v_lshrrev_b32 v5, 2, v1")
        e.i("v_and_b32 v5, 4, v5")
        e.i("v_xor_b32 v5, v5, v3")
        e.i("v_lshlrev_b32 v5, 4, v5")
        e.i(f"v_lshl_add_u32 v{vSW}, v2, 10, v5")
        e.i(f"v_mul_u32_u24 v{vW1}, 3584, v2")
        e.i(f"v_add_u32 v{vW1}, v{vW1}, v5")
        e.i(f"v_lshlrev_b32 v{vL16}, 4, v1")
        e.i(f"v_lshrrev_b32 v{vH}, 5, v1")
        e.i(f"v_bfe_u32 v{vCG}, v1, 4, 1")
        e.i(f"v_bfe_u32 v{vR}, v1, 2, 2")
        e.i(f"v_and_b32 v{vC}, 3, v1")
        e.i(f"v_lshrrev_b32 v4, 1, v{vC}")
        e.i(f"v_lshl_add_u32 v4, v{vCG}, 1, v4")
        e.i(f"v_lshlrev_b32 v5, 1, v{vR}")
        e.i("v_and_b32 v5, 4, v5")
        e.i("v_xor_b32 v4, v4, v5")
        e.i(f"v_lshlrev_b32 v{vTR}, 7, v{vR}")
        e.i(f"v_lshl_add_u32 v{vTR}, v4, 4, v{vTR}")
        e.i(f"v_and_b32 v5, 1, v{vC}")
        e.i(f"v_lshl_add_u32 v{vTR}, v5, 3, v{vTR}")
        e.i("v_and_b32 v5, 31, v1")
        e.i(f"v_mul_u32_u24 v{vXN0}, 528, v{vH}")
        e.i(f"v_lshl_add_u32 v{vXN0}, v5, 4, v{vXN0}")
        e.i(f"v_add_u32 v{vXN0}, {R1}, v{vXN0}")
        e.i(f"v_add_u32 v{vXN1}, {XN_RH}, v{vXN0}")
        e.i(f"v_mul_u32_u24 v{vSP}, {KVS}, v5")
        e.i(f"v_lshl_add_u32 v{vSP}, v{vH}, 4, v{vSP}")
        e.i(f"v_subrev_u32 v{vSD}, 1, v{vH}")
        e.i(f"v_and_b32 v{vSD}, 0x3f803f80, v{vSD}")
        for r in range(1, 4):
            e.i(f"v_mov_b32 v{vSD+r}, v{vSD}")
        e.i("v_and_b32 v4, 15, v1")
        e.i(f"v_lshl_add_u32 v4, v{vH}, 4, v4")
        e.i("v_lshlrev_b32 v203, 4, v4")
        e.i(f"v_lshl_add_u32 v{vT0}, v{vH}, 10, v{vTR}")

    e.i("s_cmp_ge_u32 s2, 256")
    e.i("s_cbranch_scc1 L_end")
    e.i("s_load_dwordx16 s[48:63], s[0:1], 0")
    e.i("s_load_dwordx2 s[64:65], s[0:1], 64")
    e.i("s_load_dwordx2 s[68:69], s[0:1], 80")
    stamp(0)
    e.i("v_lshrrev_b32 v2, 6, v0")
    e.i("v_and_b32 v1, 63, v0")
    e.i(f"v_readfirstlane_b32 s{sWAVE}, v2")
    e.c("workgroup -> (row block rb, column block cb); ids that share id&7 share half of the columns and 1/4 of the rows")
    e.i(f"s_and_b32 s{sT0}, s2, 7")
    e.i(f"s_lshr_b32 s{sT1}, s2, 3")
    e.i(f"s_and_b32 s{sCB}, s{sT1}, 3")
    e.i(f"s_lshl_b32 s{sCB}, s{sCB}, 1")
    e.i(f"s_and_b32 s{sRB}, s{sT0}, 1")
    e.i(f"s_add_u32 s{sCB}, s{sCB}, s{sRB}")
    e.i(f"s_lshr_b32 s{sT1}, s{sT1}, 2")
    e.i(f"s_lshr_b32 s{sRB}, s{sT0}, 1")
    e.i(f"s_lshl_b32 s{sRB}, s{sRB}, 3")
    e.i(f"s_add_u32 s{sRB}, s{sRB}, s{sT1}")
    e.i(f"s_mov_b32 s{sMASK}, 0xffff0000")
    e.i(f"s_and_b32 s{sF}, s{sWAVE}, 3")
    e.c("row group of this wave: (w + 2*rq + 3) & 7 -> waves 5,6 hold the 16 rows of this workgroup's K/V tile")
    e.i(f"s_and_b32 s{sRG}, s{sCB}, 6")
    e.i(f"s_add_u32 s{sRG}, s{sRG}, s{sWAVE}")
    e.i(f"s_add_u32 s{sRG}, s{sRG}, 3")
    e.i(f"s_and_b32 s{sRG}, s{sRG}, 7")
    e.i("v_lshrrev_b32 v2, 3, v1")
    e.i("v_and_b32 v3, 7, v1")
    e.i("v_lshlrev_b32 v4, 10, v2")
    e.i("v_lshl_add_u32 v4, v3, 4, v4")
    e.i(f"s_lshl_b32 s{sOFF}, s{sRB}, 3")
    e.i(f"s_add_u32 s{sOFF}, s{sOFF}, s{sRG}")
    e.i(f"s_lshl_b32 s{sOFF}, s{sOFF}, 13")
    for srd, size in ((sX, 2048*512*2), (sWQ, 512*512*2), (sWKV, 512*16*2), (sWO, 512*512*2), (sW1, 512*1792*2),
                      (sW2, 1792*512*2), (sOUT, 2048*512*2), (sWS, 0x10000000)):
        e.i(f"s_mov_b32 s{srd+2}, {hex(size)}")
        e.i(f"s_mov_b32 s{srd+3}, 0x20000")
    e.i(f"v_mov_b32 v6, {R4}")
    e.i("v_mov_b32 v7, 1")
    e.i("v_mov_b64 v[108:109], 0")
    e.i("v_and_b32 v105, 15, v1")
    e.i("v_lshl_add_u32 v105, v105, 3, v6")
    e.i("ds_write_b64 v105, v[108:109]")
    e.i(f"s_mov_b32 s{sSEG}, 0")
    e.i(f"s_cmp_eq_u32 s{sWAVE}, 7")
    e.i("s_cbranch_scc1 L_pre_7")
    e.i("s_waitcnt lgkmcnt(0)")
    e.i(f"s_mov_b64 {S(sX,2)}, s[48:49]")
    e.i(f"s_cmp_eq_u32 s{sWAVE}, 4")
    e.i("s_cbranch_scc1 L_pre_4")
    e.i(f"s_cmp_ge_u32 s{sWAVE}, 5")
    e.i("s_cbranch_scc1 L_pre_first")
    e.i("s_barrier")
    e.label("L_pre_first")
    for i in range(8):
        e.i(f"buffer_load_dwordx4 {V(8+4*i,4)}, v4, {S(sX,4)}, s{sOFF} offen offset:{128*i}")
    e.i("s_cbranch_scc0 L_pre_second")
    e.i("s_barrier")
    e.label("L_pre_second")
    e.i(f"s_cmp_eq_u32 s{sWAVE}, 0")
    e.i("s_cbranch_scc1 L_pre_dbl")
    e.i(f"s_cmp_lg_u32 s{sWAVE}, 3")
    e.i("s_cbranch_scc1 L_pre_n3")
    e.label("L_pre_dbl")
    e.c("waves 0,3 also normalise the rows waves 4,7 would have had (row group ^ 4)")
    e.i(f"s_xor_b32 s{sOFF}, s{sOFF}, 0x8000")
    for i in range(8):
        e.i(f"buffer_load_dwordx4 {V(128+4*i,4)}, v4, {S(sX,4)}, s{sOFF} offen offset:{128*i}")
    e.i(f"s_mov_b32 s{sSEG}, 1")
    e.label("L_pre_n3")
    lds_signal(CXI)
    setup()
    e.i(f"s_cmp_ge_u32 s{sWAVE}, 4")
    e.i("s_cbranch_scc1 L_pre_56")
    S0, S1, P0, P1, OA, OB, NMA, NMB, QA, QB, KB, VB = 32, 48, 64, 72, 80, 96, 112, 128, 144, 148, 152, 168
    vK, vV0, vV1, vVG, vVC = 200, 201, 202, 203, 204
    e.i("s_setprio 1")
    e.i(f"s_lshl_b32 s{sT0}, s{sRB}, 5")
    e.i(f"s_lshl_b32 s{sT1}, s{sCB}, 2")
    e.i(f"s_add_u32 s{sT0}, s{sT0}, s{sT1}")
    e.i(f"s_and_b32 s{sT1}, s{sWAVE}, 1")
    e.i(f"s_lshl_b32 s{sT2}, s{sT1}, 6")
    e.i(f"v_xor_b32 v{vT0}, s{sT2}, v{vT0}")
    e.i(f"s_lshl_b32 s{sT1}, s{sT1}, 1")
    e.i(f"s_add_u32 s{sT0}, s{sT0}, s{sT1}")
    e.i(f"s_lshl_b32 s{sT0}, s{sT0}, 1")
    e.i(f"s_lshr_b32 s{sT1}, s{sWAVE}, 1")
    e.i(f"s_add_u32 s{sT0}, s{sT0}, s{sT1}")
    e.i(f"s_lshl_b32 s{sT0}, s{sT0}, 10")
    e.i(f"s_add_u32 s{sOB}, s{sT0}, {WS_O}")
    e.i(f"s_mul_i32 s{sT1}, s{sT1}, {XN_RH}")
    e.i(f"v_add_u32 v{vXN0}, s{sT1}, v{vXN0}")
    e.i(f"v_mov_b32 v{vK}, v{vL16}")
    e.i("v_and_b32 v5, 11, v1")
    e.i("v_cmp_ne_u32 vcc, 0, v5")
    e.i("v_mov_b32 v4, 2048")
    e.i("v_mov_b32 v5, 2064")
    e.i(f"v_mov_b32 v{vVC}, 0x3f803f80")
    e.i("v_cndmask_b32 v4, v4, v5, vcc")
    e.i(f"v_cndmask_b32 v{vVC}, v{vVC}, v108, vcc")
    e.i(f"v_cmp_eq_u32 vcc, 0, v{vCG}")
    e.i(f"v_add_u32 v{vV0}, 1024, v{vVG}")
    e.i(f"v_add_u32 v{vV1}, 1536, v{vVG}")
    e.i(f"v_cndmask_b32 v{vV0}, v4, v{vV0}, vcc")
    e.i(f"v_cndmask_b32 v{vV1}, v4, v{vV1}, vcc")
    for r in range(24):
        e.i(f"v_mov_b32 v{VB+r}, v{vVC}")
    for r in range(0, 8, 2):
        e.i(f"v_mov_b64 {V(VB+24+r,2)}, 0")
    e.i("v_mov_b64 v[208:209], -1")
    e.i("v_mov_b64 v[210:211], -1")
    e.i(f"s_cmp_eq_u32 s{sSEG}, 1")
    e.i("s_cbranch_scc1 L_pre_w8")
    e.i("s_waitcnt vmcnt(0)")
    e.label("L_pre_w8")
    e.i("s_waitcnt vmcnt(8)")
    e.i("s_branch L_ln")

    def ffn_setup():
        e.i(f"s_and_b32 s{sTILE}, s{sCB}, 1")
        e.i(f"s_lshl_b32 s{sT1}, s{sF}, 1")
        e.i(f"s_add_u32 s{sTILE}, s{sTILE}, s{sT1}")
        e.i(f"v_add_u32 v{vT0}, s{sRING}, v{vT0}")
        e.i(f"v_xor_b32 v{vT1}, 64, v{vT0}")
    e.label("L_pre_4")
    e.c("wave 4: loader.  wq slice -> R0 by DMA behind the x loads; touches 1/8 of the w1 slice -> L2")
    setup()
    ffn_setup()
    e.i(f"s_lshl_b32 s{sOFF}, s{sCB}, 7")
    e.i(f"s_mov_b32 s{sT1}, 0")
    e.i(f"s_mov_b32 s{sCNT}, 7")
    e.i("v_mul_u32_u24 v105, 3584, v1")
    e.i(f"s_and_b32 s{sT2}, s{sRB}, 7")
    e.i(f"s_mul_i32 s{sT2}, s{sT2}, {64*3584}")
    e.i(f"s_mul_i32 s{sT0}, s{sCB}, 448")
    e.i(f"s_add_u32 s{sT2}, s{sT2}, s{sT0}")
    def touches():
        for o in (0, 128, 256, 384):
            e.i(f"buffer_load_dword v106, v105, {S(sW1,4)}, s{sT2} offen offset:{o}")
    if opt.twq:
        e.i("v_lshlrev_b32 v104, 10, v1")
        e.i(f"s_and_b32 s{sT0}, s{sRB}, 7")
        e.i(f"s_lshl_b32 s{sT0}, s{sT0}, 16")
        e.i(f"s_add_u32 s{sT0}, s{sT0}, s{sOFF}")
    e.i("s_barrier")
    if opt.twq:
        e.i(f"buffer_load_dword v106, v104, {S(sWQ,4)}, s{sT0} offen")
    lds_poll(CXI, 6, sleep=0)
    e.label("L_wq_loop")
    for i in range(8):
        e.i(f"s_mov_b32 m0, s{sT1}")
        e.i(f"s_add_u32 s{sT1}, s{sT1}, 1024")
        e.i(f"buffer_load_dwordx4 v{vSW}, {S(sWQ,4)}, s{sOFF} offen lds")
        e.i(f"s_add_u32 s{sOFF}, s{sOFF}, 8192")
    e.i(f"s_waitcnt vmcnt({opt.wqdepth})")
    e.i(f"s_sub_u32 s{sCNT}, s{sCNT}, 1")
    e.i("s_cbranch_scc0 L_wq_loop")
    stamp(1, "front")
    if opt.touch == 1:
        touches()
    e.i(f"s_waitcnt vmcnt({4 if opt.touch == 1 else 0})")
    lds_signal(CWQ)
    stamp(8, "front")
    if opt.touch == 2:
        lds_poll(CG, 4, sleep=2)
        touches()
    e.i("s_branch L_ffn")

    e.label("L_pre_56")
    ffn_setup()
    e.i("s_setprio 3")
    e.i("s_waitcnt vmcnt(0)")

    e.label("L_ln")
    stamp(1, "front")
    X = 40
    A = 112
    e.i(f"s_lshr_b32 s{sT0}, s{sRG}, 2")
    e.i(f"s_mul_i32 s{sT0}, s{sT0}, {XN_RH}")
    e.i(f"s_and_b32 s{sT1}, s{sRG}, 3")
    e.i(f"s_lshl_b32 s{sT1}, s{sT1}, 7")
    e.i(f"s_add_u32 s{sT0}, s{sT0}, s{sT1}")
    e.i(f"s_add_u32 s{sT0}, s{sT0}, {R1}")
    e.i("v_mul_u32_u24 v122, 528, v3")
    e.i("v_lshl_add_u32 v122, v2, 4, v122")
    e.i(f"v_add_u32 v122, s{sT0}, v122")
    e.i(f"s_cmp_lt_u32 s{sWAVE}, 5")
    e.i("s_cbranch_scc1 L_ln_a")
    e.c("waves 5,6: raw rows -> LDS for the K/V wave")
    for i in range(8):
        e.i(f"ds_write_b128 v122, {V(8+4*i,4)} offset:{4224*i}")
    lds_signal(CRW)
    e.label("L_ln_a")
    e.i("v_mov_b32 v110, 0x3f803f80")
    e.i("v_mov_b64 v[112:113], 0")
    e.i("v_mov_b32 v108, 0x3f80")
    e.i("v_mov_b32 v109, 0x3f800000")
    for t in range(32):
        e.i(f"v_dot2c_f32_bf16 v{A+(t&1)}, v{8+t}, v110")
    def reduce_lanes():
        for m in ("quad_perm:[1,0,3,2]", "quad_perm:[2,3,0,1]", "row_half_mirror"):
            e.nop(2)
            e.i(f"v_add_f32_dpp v{A}, v{A}, v{A} {m} row_mask:0xf bank_mask:0xf")
    e.nop(3)
    e.i(f"v_add_f32 v{A}, v{A}, v{A+1}")
    reduce_lanes()
    e.i(f"v_mul_f32 v120, {hex(f32bits(-1.0/512))}, v{A}")
    for t in range(32):
        e.i(f"v_dot2_f32_bf16 v{X+2*t}, v{8+t}, v108, v120")
        e.i(f"v_dot2_f32_bf16 v{X+2*t+1}, v{8+t}, v109, v120")
    for t in range(32):
        a = t % 4
        if t < 4:
            e.i(f"v_pk_mul_f32 {V(A+2*a,2)}, {V(X+2*t,2)}, {V(X+2*t,2)}")
        else:
            e.i(f"v_pk_fma_f32 {V(A+2*a,2)}, {V(X+2*t,2)}, {V(X+2*t,2)}, {V(A+2*a,2)}")
    e.i(f"v_pk_add_f32 {V(A,2)}, {V(A,2)}, {V(A+2,2)}")
    e.i(f"v_pk_add_f32 {V(A+4,2)}, {V(A+4,2)}, {V(A+6,2)}")
    e.i(f"v_pk_add_f32 {V(A,2)}, {V(A,2)}, {V(A+4,2)}")
    e.i(f"v_add_f32 v{A}, v{A}, v{A+1}")
    reduce_lanes()
    e.i(f"v_mov_b32 v119, {hex(f32bits(1e-5))}")
    e.i(f"v_fmac_f32 v119, {hex(f32bits(1.0/512))}, v{A}")
    e.i("v_rsq_f32 v118, v119")
    e.i(f"s_cmp_lt_u32 s{sWAVE}, 5")
    e.i("s_cbranch_scc1 L_ln_b")
    e.c("waves 5,6: hand the row statistics to the K/V wave")
    e.i(f"s_lshl_b32 s{sT0}, s{sWAVE}, 5")
    e.i(f"s_add_u32 s{sT0}, s{sT0}, {R4 + STAT - 160}")
    e.i(f"v_lshl_add_u32 v111, v2, 2, s{sT0}")
    e.i("ds_write2_b32 v111, v120, v118 offset1:16")
    lds_signal(CST)
    lds_poll(CRC, 1, sleep=0)
    e.label("L_ln_b")
    e.lg = []
    for i in range(8):
        for t in range(4*i, 4*i+4):
            e.i(f"v_pk_mul_f32 {V(X+2*t,2)}, {V(X+2*t,2)}, v[118:119] op_sel_hi:[1,0]")
        for t in range(4*i, 4*i+4):
            e.i(f"v_cvt_pk_bf16_f32 v{8+t}, v{X+2*t}, v{X+2*t+1}")
        e.lds(f"ds_write_b128 v122, {V(8+4*i,4)} offset:{4224*i}")
    lds_signal(CXN)
    e.i(f"s_cmp_eq_u32 s{sSEG}, 0")
    e.i("s_cbranch_scc1 L_ln_done")
    e.i(f"s_mov_b32 s{sSEG}, 0")
    e.i(f"s_xor_b32 s{sRG}, s{sRG}, 4")
    e.i("s_waitcnt vmcnt(0)")
    for t in range(0, 32, 2):
        e.i(f"v_mov_b64 {V(8+t,2)}, {V(128+t,2)}")
    e.i("s_branch L_ln")
    e.label("L_ln_done")
    stamp(8, "front")
    e.i(f"s_cmp_ge_u32 s{sWAVE}, 4")
    e.i("s_cbranch_scc1 L_ffn")

    e.vm = []
    lds_poll(CWQ, 1, sleep=0)
    lds_poll(CXN, 9, sleep=0)
    stamp(2)
    fill = [f"v_mov_b64 {V(OA+r,2)}, 0" for r in range(0, 32, 2)] + [f"v_mov_b64 {V(P1+r,2)}, 0" for r in range(0, 8, 2)]
    e.c("Q projection: wave w -> head pair hp=w&1, row half rh=w>>1")
    def qreads(ks):
        s = ks % 4
        e.lds(f"ds_read_b64_tr_b16 {V(32+8*s,2)}, v{vT0} offset:{ks*2048}", ("q", ks))
        e.lds(f"ds_read_b64_tr_b16 {V(34+8*s,2)}, v{vT0} offset:{ks*2048+512}", ("q", ks))
        e.lds(f"ds_read_b128 {V(36+8*s,4)}, v{vXN0} offset:{ks*1056}", ("q", ks))
    for ks in range(4):
        qreads(ks)
    for ks in range(32):
        s = ks % 4
        e.wait(lg=("q", ks))
        e.i(f"{MF32} v[8:23], {V(32+8*s,4)}, {V(36+8*s,4)}, {'0' if ks == 0 else 'v[8:23]'}")
        if ks + 4 < 32:
            qreads(ks + 4)
        if ks == 27:
            lds_signal(CQ)
        if fill:
            e.i(fill.pop(0))
    lds_poll(CQ, 4, sleep=0)
    e.lds(f"ds_write_b128 v{vSP}, {V(vSD,4)} offset:2048")
    e.i(f"s_mov_b32 s{sT1}, {hex(f32bits(0.25*math.log2(math.e)))}")
    e.i(f"v_mov_b64 {V(S1+14,2)}, 0")
    e.nop(3)
    for r in range(16):
        e.i(f"v_mul_f32 v{8+r}, s{sT1}, v{8+r}")
    for hd in range(2):
        b = 8 + 8*hd
        e.i(f"v_mul_f32 v{24+hd}, v{b}, v{b}")
        for r in range(1, 8):
            e.i(f"v_fmac_f32 v{24+hd}, v{b+r}, v{b+r}")
    e.i("v_mov_b32 v26, v24")
    e.i("v_mov_b32 v27, v25")
    for hd in range(2):
        for j in range(4):
            e.i(f"v_cvt_pk_bf16_f32 v{QA+4*hd+j}, v{8+8*hd+2*j}, v{8+8*hd+2*j+1}")
    e.i("v_permlane32_swap_b32 v24, v26")
    e.i("v_permlane32_swap_b32 v25, v27")
    e.i("v_add_f32 v24, v24, v26")
    e.i("v_add_f32 v25, v25, v27")
    e.i(f"s_lshl_b32 s{sOFF}, s{sWAVE}, 11")
    e.i(f"s_add_u32 s{sOFF}, s{sOFF}, {3*2048}")
    e.i(f"s_mul_i32 s{sT1}, s{sWAVE}, {KVS}")
    e.i(f"s_mov_b32 s{sT2}, 4096")
    e.i("s_mov_b32 s4, 0xffff")
    e.i("s_mov_b32 s5, 0xffff")
    stamp(3)
    lds_poll(CKV, 1, sleep=0)
    stamp(4)
    e.c("blocks 0..2 straight into registers, blocks 3..34 -> slots 0..31")
    def direct(j):
        so, o = ("0", 2048*j) if j < 2 else (f"s{sT2}", 0)
        e.vmem(f"buffer_load_dwordx4 {V(KB+4*j,4)}, v{vL16}, {S(sWS,4)}, {so} offen offset:{o} sc1", "d")
        e.i("s_mov_b64 exec, s[4:5]")
        e.vmem(f"buffer_load_dwordx4 {V(VB+8*j,4)}, v{vVG}, {S(sWS,4)}, {so} offen offset:{o+1024} sc1", "d")
        e.vmem(f"buffer_load_dwordx4 {V(VB+8*j+4,4)}, v{vVG}, {S(sWS,4)}, {so} offen offset:{o+1536} sc1", "d")
        e.i("s_mov_b64 exec, -1")
    kv_dma(2, sOFF, sT1, 4, 4)
    for j in range(3):
        direct(j)
    kv_dma(6, sOFF, sT1, 4, 4)
    e.c("mark this wave's o fragments as not yet written")
    for hd in range(2):
        e.vmem(f"buffer_store_dwordx4 v[208:211], v{vL16}, {S(sWS,4)}, s{sOB} offen offset:{2048*hd} sc1", "clr")
    lds_signal(CG)
    e.lds(f"ds_read_b32 v30, v6 offset:{CKM}")
    e.wait_all(lg=True)
    e.c("stand-in for the row max: |q| * max|k| >= max_k q.k ; used only while it cannot be far above the true max")
    e.i("v_mul_f32 v24, v24, v30")
    e.i("v_mul_f32 v25, v25, v30")
    e.i("v_sqrt_f32 v24, v24")
    e.i("v_sqrt_f32 v25, v25")
    e.i(f"s_mov_b32 s{sT1}, {hex(f32bits(opt.thr))}")
    e.i("v_max_f32 v26, v24, v25")
    e.i(f"v_cmp_nge_f32 vcc, s{sT1}, v26")
    e.i("v_cmp_u_f32 s[4:5], v24, v25")
    e.i("s_or_b64 s[4:5], s[4:5], vcc")
    if opt.force_fallback:
        e.i("s_branch L_fallback")
    else:
        e.i("s_cbranch_scc1 L_fallback")
    e.label("L_att_start")
    for r in range(16):
        e.i(f"v_sub_f32 v{NMA+r}, 0, v24")
        e.i(f"v_sub_f32 v{NMB+r}, 0, v25")
    U = 8
    e.i(f"s_mov_b32 s{sCNT}, 0")
    e.i(f"s_mov_b32 s{sSEG}, 0")
    e.wait(vm="d")
    lds_signal(CA)
    e.i(f"{MF32} {V(S0,16)}, {V(KB,4)}, {V(QA,4)}, {V(NMA,16)}")
    e.nop(6)
    lds_poll(CA, 4, sleep=0)
    stamp(5)
    def step(cur, nxt, pc, pp, K, Q, NM, O, Vb, after):
        for i in range(16):
            e.i(f"v_exp_f32 v{cur+i}, v{cur+i}")
            if i == 0:
                e.i(f"v_cvt_pk_bf16_f32 v{pp+7}, v{nxt+14}, v{nxt+15}")
                e.i(f"{MF32} {V(nxt,16)}, {V(K,4)}, {V(Q,4)}, {V(NM,16)}")
                for t in after[0]: e.i(t)
            if i >= 2 and i % 2 == 0:
                j = (i - 2) // 2
                e.i(f"v_cvt_pk_bf16_f32 v{pc+j}, v{cur+2*j}, v{cur+2*j+1}")
            if i == 5:
                e.i(f"{MF32} {V(O,16)}, {V(Vb,4)}, {V(pp,4)}, {V(O,16)}")
                for t in after[1]: e.i(t)
            if i == 10:
                e.i(f"{MF32} {V(O,16)}, {V(Vb+4,4)}, {V(pp+4,4)}, {V(O,16)}")
                for t in after[2]: e.i(t)
    e.raw(".p2align 6")
    e.label("L_att_loop")
    for u in range(U):
        b3 = (u + 3) % 4
        off = u * KVS
        last = u == U - 1
        a0 = [f"ds_read_b128 {V(KB+4*b3,4)}, v{vK} offset:{off}"]
        a1 = [f"v_add_u32 v{vK}, {U*KVS}, v{vK}"] if last else []
        a2 = [f"s_sub_u32 s{sCNT}, s{sCNT}, 1"] if last else []
        step(S0, S1, P0, P1, KB+4*(u % 4), QB, NMB, OB, VB+8*((u-1) % 4), [a0, a1, a2])
        a0 = [f"ds_read_b128 {V(VB+8*b3,4)}, v{vV0} offset:{off}"]
        a1 = [f"ds_read_b128 {V(VB+8*b3+4,4)}, v{vV1} offset:{off}"]
        a2 = ["s_waitcnt lgkmcnt(2)"] if u % 2 == 1 else []
        if last:
            a2 += [f"v_add_u32 v{vV0}, {U*KVS}, v{vV0}", f"v_add_u32 v{vV1}, {U*KVS}, v{vV1}"]
        step(S1, S0, P1, P0, KB+4*((u+1) % 4), QA, NMA, OA, VB+8*(u % 4), [a0, a1, a2])
    e.i("s_cbranch_scc0 L_att_loop")
    e.i(f"s_cmp_eq_u32 s{sSEG}, 4")
    e.i("s_cbranch_scc1 L_att_done")
    e.i(f"s_add_u32 s{sSEG}, s{sSEG}, 1")
    e.i(f"s_mov_b32 s{sCNT}, 1")
    e.i(f"s_cmp_eq_u32 s{sSEG}, 2")
    e.i("s_cbranch_scc1 L_att_b1")
    e.i(f"s_cmp_eq_u32 s{sSEG}, 3")
    e.i("s_cbranch_scc1 L_att_b3")
    e.i(f"s_cmp_eq_u32 s{sSEG}, 4")
    e.i("s_cbranch_scc1 L_att_b5")
    e.c("slots 0..7 read: the other slots must have landed")
    e.wait_all(vm=True)
    lds_signal(CA2)
    lds_poll(CA2, 4, sleep=0)
    e.i(f"s_mov_b32 s{sCNT}, 0")
    e.i("s_branch L_att_loop")
    e.label("L_att_b1")
    e.c("slots 0..15 read: they may be refilled")
    lds_signal(CP1)
    e.i("s_branch L_att_loop")
    def shift(d):
        for v in (vK, vV0, vV1):
            e.i(f"v_add_u32 v{v}, {hex(d & 0xffffffff)}, v{v}")
    e.label("L_att_b3")
    e.c("slots 0..31 read: continue with the refilled slots 0..15")
    stamp(6)
    cstamp(9)
    shift(-32 * KVS)
    lds_poll(CL1, 1, sleep=1)
    e.i("s_branch L_att_loop")
    e.label("L_att_b5")
    e.c("R0 is done with: continue with the slots in R1")
    lds_signal(CR0)
    shift(R1 - 16 * KVS)
    lds_poll(CH2, 4, sleep=1)
    e.i("s_branch L_att_loop")
    e.label("L_att_done")
    stamp(7)
    cstamp(10)
    e.i(f"v_cvt_pk_bf16_f32 v{P1+7}, v{S1+14}, v{S1+15}")
    e.i(f"{MF32} {V(OB,16)}, {V(VB+24,4)}, {V(P1,4)}, {V(OB,16)}")
    e.i(f"v_rcp_f32 v24, v{OA+8}")
    e.i(f"{MF32} {V(OB,16)}, {V(VB+28,4)}, {V(P1+4,4)}, {V(OB,16)}")
    lds_signal(CAD)
    for hd, O in enumerate((OA, OB)):
        if hd == 1:
            e.i(f"v_rcp_f32 v24, v{OB+8}")
            e.nop(1)
        for r in range(8):
            e.i(f"v_mul_f32 v{O+r}, v{O+r}, v24")
        for j in range(4):
            e.i(f"v_cvt_pk_bf16_f32 v{8+4*hd+j}, v{O+2*j}, v{O+2*j+1}")
        for j in range(4):
            e.i(f"v_min_u32 v{8+4*hd+j}, -2, v{8+4*hd+j}")
        e.vmem(f"buffer_store_dwordx4 {V(8+4*hd,4)}, v{vL16}, {S(sWS,4)}, s{sOB} offen offset:{2048*hd} sc1")
    stamp(8, "late")
    dump_stamps()
    e.i("s_endpgm")

    e.label("L_fallback")
    e.i("v_mov_b32 v24, 0xff800000")
    e.i("v_mov_b32 v25, 0xff800000")
    e.i(f"s_mov_b32 s{sT1}, 0")
    e.i(f"s_mov_b32 s{sCNT}, 31")
    e.label("L_fb_loop")
    e.i(f"buffer_load_dwordx4 v[8:11], v{vL16}, {S(sWS,4)}, s{sT1} offen sc1")
    e.i(f"buffer_load_dwordx4 v[12:15], v{vL16}, {S(sWS,4)}, s{sT1} offen offset:2048 sc1")
    e.i(f"s_add_u32 s{sT1}, s{sT1}, 4096")
    e.i("s_waitcnt vmcnt(0)")
    for k in range(2):
        e.i(f"{MF32} {V(NMA,16)}, {V(8+4*k,4)}, {V(QA,4)}, 0")
        e.i(f"{MF32} {V(NMB,16)}, {V(8+4*k,4)}, {V(QB,4)}, 0")
        e.nop(12)
        for r in range(0, 16, 2):
            e.i(f"v_max3_f32 v24, v24, v{NMA+r}, v{NMA+r+1}")
        for r in range(0, 16, 2):
            e.i(f"v_max3_f32 v25, v25, v{NMB+r}, v{NMB+r+1}")
    e.i(f"s_sub_u32 s{sCNT}, s{sCNT}, 1")
    e.i("s_cbranch_scc0 L_fb_loop")
    e.i("v_mov_b32 v26, v24")
    e.i("v_mov_b32 v27, v25")
    e.nop(2)
    e.i("v_permlane32_swap_b32 v24, v26")
    e.i("v_permlane32_swap_b32 v25, v27")
    e.i("v_max_f32 v24, v24, v26")
    e.i("v_max_f32 v25, v25, v27")
    e.i("s_branch L_att_start")

    e.label("L_pre_7")
    e.vm = []
    e.lg = []
    e.i("s_setprio 3")
    e.i(f"s_bitcmp1_b32 s{sCB}, 0")
    e.i("v_lshlrev_b32 v40, 4, v1")
    e.i("s_waitcnt lgkmcnt(0)")
    e.i(f"s_cselect_b64 {S(sWKV,2)}, s[54:55], s[52:53]")
    e.i(f"s_cselect_b32 s{sTILE}, 0, 6")
    e.i(f"s_load_dword s{sTAG}, s[68:69], {hex(WS_EPOCH)}")
    e.i(f"s_mov_b64 {S(sX,2)}, s[48:49]")
    for i in range(4):
        e.i(f"s_mov_b32 m0, {R2 + 4096*i}")
        e.i(f"s_mov_b32 s{sT0}, {4096*i}")
        for k in range(4):
            e.vmem(f"buffer_load_dwordx4 v40, {S(sWKV,4)}, s{sT0} offen offset:{1024*k} lds", "wkv")
    e.i("s_barrier")
    setup()
    e.i("v_lshrrev_b32 v42, 4, v1")
    e.i("v_and_b32 v43, 15, v1")
    e.i(f"s_lshr_b32 s{sT0}, s{sCB}, 2")
    e.i(f"s_mul_i32 s{sT0}, s{sT0}, {XN_RH}")
    e.i(f"s_bfe_u32 s{sT1}, s{sCB}, 0x10001")
    e.i(f"s_lshl_b32 s{sT1}, s{sT1}, 8")
    e.i(f"s_add_u32 s{sT0}, s{sT0}, s{sT1}")
    e.i(f"s_add_u32 s{sT0}, s{sT0}, {R1}")
    e.i("v_mul_u32_u24 v44, 528, v42")
    e.i("v_lshl_add_u32 v44, v43, 4, v44")
    e.i(f"v_add_u32 v44, s{sT0}, v44")
    e.i("v_lshlrev_b32 v45, 8, v42")
    e.i(f"v_lshl_add_u32 v45, v{vR}, 5, v45")
    e.i(f"v_lshl_add_u32 v45, v{vC}, 3, v45")
    e.i(f"v_add_u32 v45, {R2}, v45")
    for r in range(4):
        e.i(f"v_mov_b32 v{20+r}, 0x3f803f80")
    e.i(f"s_lshl_b32 s{sT2}, s{sRB}, 1")
    e.i(f"s_lshr_b32 s{sOFF2}, s{sCB}, 2")
    e.i(f"s_add_u32 s{sT2}, s{sT2}, s{sOFF2}")
    e.i(f"s_lshl_b32 s{sT2}, s{sT2}, 11")
    e.i(f"s_add_u32 s{sT2}, s{sT2}, s{sT1}")
    e.i(f"v_lshlrev_b32 v46, 3, v{vH}")
    e.i("v_lshl_add_u32 v46, v43, 4, v46")
    e.i(f"s_lshl_b32 s{sOFF2}, s{sRB}, 7")
    e.i(f"s_lshl_b32 s{sOFF}, s{sCB}, 3")
    e.i(f"s_add_u32 s{sOFF2}, s{sOFF2}, s{sOFF}")
    e.i(f"v_mov_b32 v18, {hex(WS_KVF)}")
    e.i(f"v_lshrrev_b32 v{vW1}, 2, v1")
    e.i(f"v_lshlrev_b32 v19, 7, v{vW1}")
    e.i(f"v_lshl_add_u32 v19, v{vC}, 4, v19")
    e.i("v_lshlrev_b32 v31, 11, v1")
    e.i(f"v_mul_u32_u24 v{vW1}, 3584, v{vW1}")
    e.i(f"v_lshl_add_u32 v{vW1}, v{vC}, 4, v{vW1}")
    e.i(f"v_lshlrev_b32 v{vT0}, 6, v{vR}")
    e.i(f"v_lshl_add_u32 v{vT0}, v{vCG}, 5, v{vT0}")
    e.i(f"v_lshl_add_u32 v{vT0}, v{vC}, 3, v{vT0}")
    e.i(f"v_lshl_add_u32 v{vT0}, v{vH}, 9, v{vT0}")
    e.i(f"v_add_u32 v{vT0}, s{sRING}, v{vT0}")
    e.i("s_waitcnt lgkmcnt(0)")
    e.i(f"s_mul_i32 s{sTAG}, s{sTAG}, 0x9e3779b1")
    e.i(f"s_add_u32 s{sTAG}, s{sTAG}, 0x7f4a7c15")
    e.i(f"v_mov_b32 v16, s{sTAG}")
    e.lds(f"ds_write_b32 v6, v16 offset:{CTAG}")
    e.wait(vm="wkv")
    stamp(1, "front")
    for ks in range(16):
        e.lds(f"ds_read_b64_tr_b16 {V(128+4*ks,2)}, v45 offset:{ks*1024}")
        e.lds(f"ds_read_b64_tr_b16 {V(130+4*ks,2)}, v45 offset:{ks*1024+128}")
    lds_signal(CXN)
    lds_poll(CRW, 2, sleep=0)
    for ks in range(16):
        e.lds(f"ds_read_b128 {V(64+4*ks,4)}, v44 offset:{ks*2112}", ("k", ks), guard=False)
    lds_signal(CRC)
    e.i(f"s_bitcmp1_b32 s{sCB}, 0")
    e.i("s_cbranch_scc1 L_w7_v")
    lg_save = list(e.lg)
    def kvloop(isV):
        for ks in range(16):
            W, Xf = V(128+4*ks, 4), V(64+4*ks, 4)
            a, b = ("v[20:23]", W) if isV else (W, "v[20:23]")
            e.i(f"{MF16} v[12:15], {a}, {b}, {'0' if ks == 0 else 'v[12:15]'}")
            e.wait(lg=("k", ks))
            a, b = (Xf, W) if isV else (W, Xf)
            e.i(f"{MF16} v[8:11], {a}, {b}, {'0' if ks == 0 else 'v[8:11]'}")
    kvloop(False)
    stamp(8, "front")
    e.i(f"v_lshl_add_u32 v46, v{vCG}, 9, v46")
    e.i("v_lshl_add_u32 v47, v43, 2, v6")
    lds_poll(CST, 2, sleep=0)
    e.i(f"ds_read2_b32 v[24:25], v47 offset0:{STAT//4} offset1:{STAT//4+16}")
    e.wait_all(lg=True)
    for r in range(4):
        e.i(f"v_fmac_f32 v{8+r}, v24, v{12+r}")
    for r in range(4):
        e.i(f"v_mul_f32 v{8+r}, v25, v{8+r}")
    e.i("v_cvt_pk_bf16_f32 v12, v8, v9")
    e.i("v_cvt_pk_bf16_f32 v13, v10, v11")
    e.i(f"buffer_store_dwordx2 v[12:13], v46, {S(sWS,4)}, s{sT2} offen sc1")
    e.i("v_mul_f32 v17, v8, v8")
    for r in range(1, 4):
        e.i(f"v_fmac_f32 v17, v{8+r}, v{8+r}")
    e.i("v_mov_b32 v15, v17")
    e.nop(2)
    e.i("v_permlane32_swap_b32 v17, v15")
    e.i("v_add_f32 v17, v17, v15")
    e.i("v_mov_b32 v15, v17")
    e.nop(2)
    e.i("v_permlane16_swap_b32 v17, v15")
    e.i("v_add_f32 v17, v17, v15")
    for m in ("row_ror:1", "row_ror:2", "row_ror:4", "row_ror:8"):
        e.nop(2)
        e.i(f"v_max_u32_dpp v17, v17, v17 {m} row_mask:0xf bank_mask:0xf")
    e.i("s_branch L_w7_pub")
    e.label("L_w7_v")
    e.lg = lg_save
    kvloop(True)
    stamp(8, "front")
    e.i(f"v_lshl_add_u32 v46, v{vCG}, 8, v46")
    e.i(f"s_add_u32 s{sT2}, s{sT2}, s{sT1}")
    e.i(f"s_add_u32 s{sT2}, s{sT2}, 1024")
    e.i("v_lshl_add_u32 v47, v42, 4, v6")
    lds_poll(CST, 2, sleep=0)
    e.i(f"ds_read_b128 v[24:27], v47 offset:{STAT}")
    e.i(f"ds_read_b128 v[32:35], v47 offset:{STAT+64}")
    e.wait_all(lg=True)
    for r in range(4):
        e.i(f"v_fmac_f32 v{8+r}, v{24+r}, v{12+r}")
    for r in range(4):
        e.i(f"v_mul_f32 v{8+r}, v{32+r}, v{8+r}")
    e.i("v_cvt_pk_bf16_f32 v12, v8, v9")
    e.i("v_cvt_pk_bf16_f32 v13, v10, v11")
    e.i(f"buffer_store_dwordx2 v[12:13], v46, {S(sWS,4)}, s{sT2} offen sc1")
    e.i("v_mov_b32 v17, 0")
    e.label("L_w7_pub")
    stamp(2)
    e.i("s_mov_b64 exec, 1")
    e.wait_all(vm=True)
    e.i(f"buffer_store_dwordx2 v[16:17], v18, {S(sWS,4)}, s{sOFF2} offen sc1")
    e.i("s_mov_b64 exec, -1")
    stamp(9)
    e.c("wait for all 256 K/V producers, pass max |k|^2 on through LDS")
    top, done = lbl("kv"), lbl("kvd")
    e.i(f"s_mov_b32 s{sT1}, {hex(WS_KVF)}")
    e.i(f"s_bfe_u32 s{sT2}, s2, 0x40003")
    e.i(f"s_lshl_b32 s{sT2}, s{sT2}, 7")
    if opt.kvdelay:
        e.i(f"s_sleep {opt.kvdelay}")
    spin_init()
    e.label(top)
    e.i(f"buffer_load_dwordx4 v[32:35], v19, {S(sWS,4)}, s{sT1} offen sc1")
    e.i(f"buffer_load_dwordx4 v[36:39], v19, {S(sWS,4)}, s{sT1} offen offset:2048 sc1")
    e.wait_all(vm=True)
    e.i("v_xor_b32 v32, v16, v32")
    e.i("v_xor_b32 v34, v16, v34")
    e.i("v_xor_b32 v36, v16, v36")
    e.i("v_xor_b32 v38, v16, v38")
    e.i("v_or3_b32 v32, v32, v34, v36")
    e.i("v_or_b32 v32, v32, v38")
    e.i("v_cmp_ne_u32 vcc, 0, v32")
    e.i("v_max_u32 v30, v33, v37")
    e.i(f"s_cbranch_vccz {done}")
    spin_tail(top, done, opt.kvsleep)
    e.label(done)
    if opt.kvtouch:
        e.c("touch 64 of the 1024 K/V lines -> L2 (the workgroups of an XCD cover all of them)")
        e.i(f"buffer_load_dword v106, v31, {S(sWS,4)}, s{sT2} offen sc1")
    for m in ("row_ror:1", "row_ror:2", "row_ror:4", "row_ror:8"):
        e.nop(2)
        e.i(f"v_max_u32_dpp v30, v30, v30 {m} row_mask:0xf bank_mask:0xf")
    e.i("v_mov_b32 v29, v30")
    e.nop(2)
    e.i("v_permlane16_swap_b32 v29, v30")
    e.i("v_max_u32 v30, v29, v30")
    e.i("v_mov_b32 v29, v30")
    e.nop(2)
    e.i("v_permlane32_swap_b32 v29, v30")
    e.i("v_max_u32 v30, v29, v30")
    e.lds(f"ds_write_b32 v6, v30 offset:{CKM}")
    lds_signal(CKV)
    stamp(4, "front")
    e.c("workgroup 0 renews the epoch word: every producer has read it by now")
    e.i("s_cmp_lg_u32 s2, 0")
    e.i("s_cbranch_scc1 L_ffn")
    e.i(f"v_mov_b32 v29, {hex(WS_EPOCH)}")
    e.i("s_mov_b64 exec, 1")
    e.i(f"buffer_store_dword v16, v29, {S(sWS,4)}, 0 offen sc1")
    e.i("s_mov_b64 exec, -1")

    ACC = 8
    AF, BF = 72, 88
    e.label("L_ffn")
    e.vm = []
    e.lg = []
    e.i("s_setprio 3")
    e.i(f"s_mul_i32 s{sOFF}, s{sCB}, 448")
    e.i(f"s_lshl_b32 s{sT1}, s{sTILE}, 6")
    e.i(f"s_add_u32 s{sOFF}, s{sOFF}, s{sT1}")
    lds_poll(CXN, 9, sleep=1)
    e.i(f"ds_read_b32 v4, v6 offset:{CTAG}")
    if opt.fstart == 2:
        lds_poll(CG, 4, sleep=2)
    else:
        lds_poll(CWQ, 1, sleep=1)
    e.i(f"v_readfirstlane_b32 s{sTAG}, v4")
    e.i(f"s_setprio {opt.fprio}")
    stamp(2, "late")
    e.i(f"s_cmp_eq_u32 s{sWAVE}, 7")
    e.i("s_cbranch_scc1 L_ffn1_w7")

    def paced(n):
        if n == 0:
            e.wait_all(lg=True)
        elif len(e.lg) > n:
            e.i(f"s_waitcnt lgkmcnt({n})")
            del e.lg[: len(e.lg) - n]
    def bread(ks, rh):
        e.lds(f"ds_read_b128 {V(BF+8*(ks%2)+4*rh,4)}, v{vXN1 if rh else vXN0} offset:{ks*1056}", ("f", ks))
    def h_store(tiles):
        lds_signal(CX)
        stamp(3)
        e.i("s_setprio 3")
        e.i(f"s_mul_i32 s{sT0}, s{sRB}, 112")
        e.i(f"s_mul_i32 s{sT1}, s{sCB}, 14")
        e.i(f"s_add_u32 s{sT0}, s{sT0}, s{sT1}")
        e.i(f"s_lshl_b32 s{sT1}, s{sTILE}, 1")
        e.i(f"s_add_u32 s{sT0}, s{sT0}, s{sT1}")
        e.i(f"s_lshl_b32 s{sT0}, s{sT0}, 11")
        e.i(f"s_add_u32 s{sOFF}, s{sT0}, {WS_H}")
        e.i(f"s_add_u32 s{sOFF2}, s{sOFF}, 4096")
        for ct in tiles:
            for rh in range(2):
                a = ACC + 16 * (rh * 2 + ct)
                for j in range(8):
                    e.i(f"v_cvt_pk_bf16_f32 v{a+j}, v{a+2*j}, v{a+2*j+1}")
                for j in range(8):
                    e.i(f"v_pk_max_i16 v{a+j}, v{a+j}, 0")
                for s in range(2):
                    e.vmem(f"buffer_store_dwordx4 {V(a+4*s,4)}, v{vL16}, {S(sWS,4)}, s{sOFF2 if ct else sOFF} offen offset:{(2*s+rh)*1024} sc1", "hst")
    def ring_dma(ks, srd, v, step):
        for a in range(2):
            e.i(f"s_add_u32 m0, s{sRING}, {(ks % 3) * 2048 + a * 1024}")
            e.i("s_nop 0")
            e.vmem(f"buffer_load_dwordx4 v{v}, {S(srd,4)}, s{sOFF} offen lds", ("w", ks))
            e.i(f"s_add_u32 s{sOFF}, s{sOFF}, {step}")
    def tr2(ks, i, tstride):
        ct, t = i >> 1, i & 1
        e.lds(f"ds_read_b64_tr_b16 {V(AF+8*(ks%2)+4*ct+2*t,2)}, v{vT1 if ct else vT0} offset:{(ks%3)*2048+tstride*t}", ("f", ks))

    e.c("FFN1, waves 4..6: two column tiles x two row halves")
    for ks in range(3):
        ring_dma(ks, sW1, vW1, 8*3584)
    bread(0, 0); bread(0, 1)
    e.wait(vm=("w", 0))
    for i in range(4):
        tr2(0, i, 512)
    for ks in range(32):
        s = ks % 2
        e.wait(lg=("f", ks))
        if ks + 3 < 32:
            ring_dma(ks + 3, sW1, vW1, 8*3584)
        if ks + 1 < 32:
            e.wait(vm=("w", ks + 1))
        for i in range(4):
            rh, ct = i >> 1, i & 1
            a = ACC + 16 * i
            e.i(f"{MF32} {V(a,16)}, {V(AF+8*s+4*ct,4)}, {V(BF+8*s+4*rh,4)}, {'0' if ks == 0 else V(a,16)}")
            if ks + 1 < 32:
                if ct == 0:
                    bread(ks + 1, rh)
                tr2(ks + 1, i, 512)
                if i < 3:
                    paced(opt.pace1)
    h_store([0, 1])
    e.i("s_branch L_ffn_join")

    e.label("L_ffn1_w7")
    e.vm = []
    e.lg = []
    e.c("FFN1, wave 7: one column tile")
    def dma7(ks):
        e.i(f"s_add_u32 m0, s{sRING}, {(ks % 6) * 1024}")
        e.i("s_nop 0")
        e.vmem(f"buffer_load_dwordx4 v{vW1}, {S(sW1,4)}, s{sOFF} offen lds", ("w", ks))
        e.i(f"s_add_u32 s{sOFF}, s{sOFF}, {16*3584}")
    def tr7(ks, t):
        e.lds(f"ds_read_b64_tr_b16 {V(AF+8*(ks%2)+2*t,2)}, v{vT0} offset:{(ks%6)*1024+256*t}", ("f", ks))
    for ks in range(6):
        dma7(ks)
    bread(0, 0); bread(0, 1)
    e.wait(vm=("w", 0))
    tr7(0, 0); tr7(0, 1)
    for ks in range(32):
        s = ks % 2
        e.wait(lg=("f", ks))
        if ks + 6 < 32:
            dma7(ks + 6)
        if ks + 1 < 32:
            e.wait(vm=("w", ks + 1))
        for rh in range(2):
            a = ACC + 32 * rh
            e.i(f"{MF32} {V(a,16)}, {V(AF+8*s,4)}, {V(BF+8*s+4*rh,4)}, {'0' if ks == 0 else V(a,16)}")
            if ks + 1 < 32:
                bread(ks + 1, rh)
                tr7(ks + 1, rh)
                if rh == 0:
                    paced(opt.pace1)
    h_store([0])

    e.label("L_ffn_join")
    e.i(f"s_lshl_b32 s{sT2}, s{sCB}, 7")
    e.i(f"s_lshl_b32 s{sT1}, s{sF}, 2")
    e.i(f"s_add_u32 s{sT2}, s{sT2}, s{sT1}")
    e.i(f"s_add_u32 s{sT2}, s{sT2}, s{sFLG}")
    e.i("v_mov_b32 v72, 0")
    e.i(f"v_mov_b32 v73, s{sTAG}")
    e.i(f"v_add_u32 v{vSP}, {R1}, v{vSP}")
    e.i(f"v_lshl_add_u32 v{vTR}, v{vH}, 9, v{vTR}")
    e.i(f"v_add_u32 v{vT0}, s{sRING}, v{vTR}")
    e.i(f"v_xor_b32 v{vT1}, 64, v{vT0}")
    e.i(f"s_and_b32 s{sT1}, s{sF}, 1")
    e.i(f"s_mul_i32 s{sT1}, s{sT1}, {32768+64}")
    e.i(f"v_xor_b32 v120, s{sT1}, v{vTR}")
    e.i("v_xor_b32 v121, 64, v120")
    e.i("v_bfe_u32 v122, v1, 2, 3")
    e.i("v_lshlrev_b32 v122, 7, v122")
    e.i(f"v_lshl_add_u32 v122, v{vC}, 2, v122")
    e.i("v_and_b32 v3, 31, v1")
    e.i("v_lshlrev_b32 v3, 10, v3")
    e.i(f"v_lshl_add_u32 v3, v{vH}, 3, v3")
    e.i("v_lshlrev_b32 v123, 10, v1")
    e.i(f"v_mov_b32 v0, v{vL16}")
    e.i(f"s_lshl_b32 s{sT1}, s{sF}, 12")
    e.i(f"s_add_u32 s{sT1}, s{sT1}, {R1}")
    e.i(f"v_add_u32 v4, s{sT1}, v0")
    e.i(f"s_lshl_b32 s{sT1}, s{sF}, 14")
    e.i(f"s_add_u32 s{sT1}, s{sT1}, {R1}")
    e.i(f"v_add_u32 v2, s{sT1}, v0")
    lds_poll(CA2, 4, sleep=4)
    e.i("s_mov_b64 exec, 1")
    e.wait_all(vm=True)
    e.vmem(f"buffer_store_dword v73, v72, {S(sWS,4)}, s{sT2} offen sc1")
    e.i("s_mov_b64 exec, -1")
    stamp(4, "late")
    e.i(f"s_mul_i32 s{sOFF}, s{sF}, {448*1024}")
    e.i(f"s_lshl_b32 s{sT0}, s{sCB}, 7")
    e.i(f"s_add_u32 s{sOFF}, s{sOFF}, s{sT0}")
    if opt.warm2:
        e.c("touch 1/7 of this wave's w2 slice (8 workgroups of an XCD share it) -> L2")
        e.i(f"s_and_b32 s{sT0}, s{sRB}, 7")
        e.i(f"s_min_u32 s{sT0}, s{sT0}, 6")
        e.i(f"s_lshl_b32 s{sT0}, s{sT0}, 16")
        e.i(f"s_add_u32 s{sT1}, s{sOFF}, s{sT0}")
        e.vmem(f"buffer_load_dword v124, v123, {S(sW2,4)}, s{sT1} offen")
    e.i(f"s_cmp_lg_u32 s{sWAVE}, 7")
    e.i("s_cbranch_scc1 L_no_e1")
    e.c("wave 7: blocks 35..50 -> slots 0..15 once attention has read them")
    lds_poll(CP1, 4, sleep=4)
    e.i(f"s_mov_b32 s{sOFF2}, {35*2048}")
    e.i(f"s_mov_b32 s{sT1}, 0")
    kv_dma(16, sOFF2, sT1, 1, 1)
    e.wait_all(vm=True)
    lds_signal(CL1)
    e.label("L_no_e1")
    e.c("blocks 51..63 -> R1 once xn is dead")
    lds_poll(CX, 4, sleep=4)
    e.i(f"s_lshl_b32 s{sOFF2}, s{sF}, 11")
    e.i(f"s_add_u32 s{sOFF2}, s{sOFF2}, {51*2048}")
    e.i(f"s_mul_i32 s{sT1}, s{sF}, {KVS}")
    e.i(f"s_add_u32 s{sT1}, s{sT1}, {R1}")
    e.vm = []
    kv_dma(4, sOFF2, sT1, 4, 4)
    e.lds(f"ds_write_b128 v{vSP}, {V(vSD,4)} offset:2048")
    for ks in range(3):
        ring_dma(ks, sW2, vSW, 8192)
    e.wait(vm=("kv", 3))
    lds_signal(CH2)
    stamp(5)
    exit_if(5)
    e.c("wait for h of the whole row group")
    top, done = lbl("fp"), lbl("fpd")
    spin_init()
    e.label(top)
    e.i(f"buffer_load_dword v72, v122, {S(sWS,4)}, s{sFLG} offen sc1")
    e.wait_all(vm=True)
    e.i(f"v_cmp_ne_u32 vcc, s{sTAG}, v72")
    e.i(f"s_cbranch_vccz {done}")
    spin_tail(top, done, 4)
    e.label(done)
    stamp(6)
    e.i(f"s_setprio {opt.fprio}")
    e.i(f"s_mul_i32 s{sT0}, s{sRB}, 112")
    e.i(f"s_mul_i32 s{sT1}, s{sF}, 28")
    e.i(f"s_add_u32 s{sT0}, s{sT0}, s{sT1}")
    e.i(f"s_lshl_b32 s{sT0}, s{sT0}, 11")
    e.i(f"s_add_u32 s{sOFF2}, s{sT0}, {WS_H}")
    PH = 4
    def h_load(ks):
        for rh in range(2):
            r = BF + 8 * (ks % PH) + 4 * rh
            e.vmem(f"buffer_load_dwordx4 {V(r,4)}, v0, {S(sWS,4)}, s{sOFF2} offen offset:{1024*rh} sc1", ("h", ks))
        e.i(f"s_add_u32 s{sOFF2}, s{sOFF2}, 2048")
    for ks in range(PH - 1):
        h_load(ks)
    for i in range(4):
        tr2(0, i, 1024)
    for ks in range(28):
        s = ks % 2
        e.wait(lg=("f", ks))
        if ks + 3 < 28:
            ring_dma(ks + 3, sW2, vSW, 8192)
        if ks + PH - 1 < 28:
            h_load(ks + PH - 1)
        e.wait(vm=("h", ks))
        if ks + 1 < 28:
            e.wait(vm=("w", ks + 1))
        for i in range(4):
            rh, ct = i >> 1, i & 1
            a = ACC + 16 * i
            e.i(f"{MF32} {V(a,16)}, {V(AF+8*s+4*ct,4)}, {V(BF+8*(ks%PH)+4*rh,4)}, {'0' if ks == 0 else V(a,16)}")
            if ks + 1 < 28:
                tr2(ks + 1, i, 1024)
                if i < 3:
                    paced(opt.pace2)
    stamp(7)
    exit_if(7)
    e.c("wo slice -> R0 by DMA once attention has left it; fragments -> registers")
    e.i("s_setprio 3")
    lds_poll(CR0, 4, sleep=8)
    e.i(f"s_lshl_b32 s{sOFF}, s{sF}, 17")
    e.i(f"s_lshl_b32 s{sOFF2}, s{sCB}, 7")
    e.i(f"s_add_u32 s{sOFF}, s{sOFF}, s{sOFF2}")
    e.i(f"s_lshl_b32 s{sT1}, s{sF}, 14")
    for i in range(16):
        e.i(f"s_mov_b32 m0, s{sT1}")
        e.i(f"s_add_u32 s{sT1}, s{sT1}, 1024")
        e.vmem(f"buffer_load_dwordx4 v{vSW}, {S(sWO,4)}, s{sOFF} offen lds", "wo")
        e.i(f"s_add_u32 s{sOFF}, s{sOFF}, 8192")
    e.i(f"s_and_b32 s{sT0}, s{sF}, 1")
    e.i(f"s_lshl_b32 s{sT0}, s{sT0}, 6")
    e.i(f"s_add_u32 s{sOFF2}, s{sOFF2}, s{sT0}")
    e.i(f"s_lshl_b32 s{sT0}, s{sRB}, 1")
    e.i(f"s_lshr_b32 s{sT1}, s{sF}, 1")
    e.i(f"s_add_u32 s{sT0}, s{sT0}, s{sT1}")
    e.i(f"s_lshl_b32 s{sT0}, s{sT0}, 15")
    e.i(f"s_add_u32 s{sOFF2}, s{sOFF2}, s{sT0}")
    G, XR, OF = 104, 120, 40
    e.wait_all(vm=True)
    lds_signal(CWO)
    lds_poll(CWO, 4, sleep=4)
    for i in range(16):
        for c2 in range(2):
            for t in range(2):
                e.lds(f"ds_read_b64_tr_b16 {V(128+8*i+4*c2+2*t,2)}, v{120+c2} offset:{i*2048+1024*t}")
    e.wait_all(lg=True)
    for q in range(4):
        e.vmem(f"buffer_load_dwordx2 {V(XR+2*q,2)}, v3, {S(sX,4)}, s{sOFF2} offen offset:{16*q}", "xr")
    e.i(f"s_lshl_b32 s{sT0}, s{sRB}, 6")
    e.i(f"s_lshr_b32 s{sT1}, s{sF}, 1")
    e.i(f"s_add_u32 s{sT0}, s{sT0}, s{sT1}")
    e.i(f"s_and_b32 s{sT1}, s{sF}, 1")
    e.i(f"s_lshl_b32 s{sT1}, s{sT1}, 5")
    e.i(f"s_add_u32 s{sT0}, s{sT0}, s{sT1}")
    e.i(f"s_lshl_b32 s{sT0}, s{sT0}, 10")
    for k in range(8):
        e.i(f"s_add_u32 s{sOA+k}, s{sT0}, {WS_O + 4096*k}")
    e.i(f"s_lshl_b32 s{sT2}, s{sF}, 12")
    e.i(f"s_add_u32 s{sT1}, s{sT2}, {R2}")
    e.i(f"v_add_u32 v1, s{sT1}, v0")
    e.i(f"s_xor_b32 s{sT2}, s{sT2}, 4096")
    e.i(f"s_add_u32 s{sT2}, s{sT2}, {R2}")
    e.i(f"s_mov_b32 s{sT1}, {hex(f32bits(-math.log2(math.e)))}")
    stamp(8, "late")
    e.c("attention finished in this workgroup: reduce f partials through R1")
    lds_poll(CAD, 4, sleep=2)
    for t in range(4):
        for q in range(4):
            e.lds(f"ds_write_b128 v4, {V(ACC+16*t+4*q,4)} offset:{t*16384+q*1024}")
    lds_signal(CF)
    lds_poll(CF, 4, sleep=0)
    for src in range(4):
        for q in range(4):
            e.lds(f"ds_read_b128 {V(ACC+16*src+4*q,4)}, v2 offset:{src*4096+q*1024}", ("r", src))
    e.i(f"s_and_b32 s{sT0}, s{sF}, 2")
    e.i(f"s_lshl_b32 s{sT0}, s{sT0}, 1")
    e.i(f"v_add_u32 v4, s{sT0}, v6")
    e.i(f"v_add_u32 v2, s{sT2}, v0")
    e.wait(lg=("r", 1))
    for r in range(0, 16, 2):
        e.i(f"v_pk_add_f32 {V(ACC+r,2)}, {V(ACC+r,2)}, {V(ACC+16+r,2)}")
    e.wait_all(lg=True)
    for r in range(0, 16, 2):
        e.i(f"v_pk_add_f32 {V(ACC+32+r,2)}, {V(ACC+32+r,2)}, {V(ACC+48+r,2)}")
    for r in range(0, 16, 2):
        e.i(f"v_pk_add_f32 {V(G+r,2)}, {V(ACC+r,2)}, {V(ACC+32+r,2)}")
    stamp(1, "late")
    e.i(f"s_mov_b32 s{sSEG}, 4")
    spin_init()
    e.wait_all(vm=True)
    e.c("o fragments: load, check that every dword was written, retry the rest if not")
    for g in range(4):
        e.label(f"L_oload_{g}")
        for i in range(4):
            e.i(f"buffer_load_dwordx4 {V(OF+16*g+4*i,4)}, v0, {S(sWS,4)}, s{sOA+2*g+(i>>1)} offen offset:{2048*(i&1)} sc1")
    for g in range(4):
        e.i(f"s_cmp_eq_u32 s{sSEG}, {g}")
        e.i(f"s_cbranch_scc1 L_ochk_{g}")
    e.c("first pass only: g = silu(f) under the load latency")
    for r in range(16):
        e.i(f"v_mul_f32 v{ACC+r}, s{sT1}, v{G+r}")
    for r in range(16):
        e.i(f"v_exp_f32 v{ACC+r}, v{ACC+r}")
    for r in range(16):
        e.i(f"v_add_f32 v{ACC+r}, 1.0, v{ACC+r}")
    for r in range(16):
        e.i(f"v_rcp_f32 v{ACC+r}, v{ACC+r}")
    for r in range(16):
        e.i(f"v_mul_f32 v{G+r}, v{G+r}, v{ACC+r}")
    for g in range(4):
        e.label(f"L_ochk_{g}")
        e.i(f"s_waitcnt vmcnt({12-4*g})")
        b = OF + 16 * g
        e.i(f"v_max3_u32 v5, v{b}, v{b+1}, v{b+2}")
        for k in range(3, 15, 2):
            e.i(f"v_max3_u32 v5, v5, v{b+k}, v{b+k+1}")
        e.i(f"v_max_u32 v5, v5, v{b+15}")
        e.i("v_cmp_eq_u32 vcc, -1, v5")
        e.i(f"s_cbranch_vccnz L_oretry_{g}")
        e.label(f"L_ogo_{g}")
        for i in range(4):
            for c2 in range(2):
                a = 8 + 16 * c2
                k = 4 * g + i
                e.i(f"{MF32} {V(a,16)}, {V(128+8*k+4*c2,4)}, {V(b+4*i,4)}, {'0' if k == 0 else V(a,16)}")
    stamp(9, "late")
    for t in range(8):
        e.i(f"v_lshlrev_b32 v{128+2*t}, 16, v{XR+t}")
        e.i(f"v_and_b32 v{129+2*t}, s{sMASK}, v{XR+t}")
    e.lg = []
    for q in range(4):
        e.lds(f"ds_write_b128 v1, {V(24+4*q,4)} offset:{q*1024}")
    lds_signal(CE0, va=4)
    lds_poll(CE0, 2, sleep=0, va=4)
    for q in range(4):
        e.lds(f"ds_read_b128 {V(24+4*q,4)}, v2 offset:{q*1024}", ("e", q))
    for q in range(4):
        e.wait(lg=("e", q))
        for r in range(4*q, 4*q+4):
            e.i(f"v_add_f32 v{8+r}, v{8+r}, v{24+r}")
        for r in range(4*q, 4*q+4):
            e.i(f"v_fmac_f32 v{128+r}, v{8+r}, v{G+r}")
        for j in range(2):
            e.i(f"v_cvt_pk_bf16_f32 v{XR+2*q+j}, v{128+4*q+2*j}, v{128+4*q+2*j+1}")
        e.vmem(f"buffer_store_dwordx2 {V(XR+2*q,2)}, v3, {S(sOUT,4)}, s{sOFF2} offen offset:{16*q} {opt.outf}")
    if opt.stamps:
        e.wait_all(vm=True)
        stamp(10)
    if opt.echo:
        a, b = opt.echo
        e.i("s_waitcnt lgkmcnt(0)")
        e.i(f"s_sub_u32 s{sT0}, s{sSTAMP+2*b}, s{sSTAMP+2*a}")
        e.i(f"s_min_u32 s{sT0}, s{sT0}, 10000")
        e.i(f"s_add_u32 s{sT0}, s{sT0}, s{sSTAMP+20}")
        e.label("L_echo")
        e.i("s_memrealtime s[4:5]")
        e.i("s_waitcnt lgkmcnt(0)")
        e.i(f"s_sub_u32 s{sT1}, s4, s{sT0}")
        e.i(f"s_cmp_lt_i32 s{sT1}, 0")
        e.i("s_cbranch_scc1 L_echo")
    dump_stamps()
    e.label("L_end")
    e.i("s_endpgm")
    for g in range(4):
        e.label(f"L_oretry_{g}")
        e.i(f"s_mov_b32 s{sSEG}, {g}")
        e.i(f"s_sub_u32 s{sSPIN}, s{sSPIN}, 1")
        e.i(f"s_cbranch_scc1 L_ogo_{g}")
        e.i("s_sleep 1")
        e.i(f"s_branch L_oload_{g}")
    return e

def wrap(e):
    hdr = open("cdna_kernels/%s.s.ref" % NAME).read().split("\n")
    top = [l for l in hdr if l.startswith(";") and "@launch" not in l]
    out = "\n".join(top) + f"\n; @launch grid=(256,1,1) block=(512,1,1) lds={LDS_BYTES}\n"
    out += f""".amdgcn_target "amdgcn-amd-amdhsa--gfx950"
.text
.globl {NAME}_kernel
.p2align 8
.type {NAME}_kernel,@function
{NAME}_kernel:
"""
    out += e.text()
    out += f""".section .rodata,"a"
.p2align 6
.amdhsa_kernel {NAME}_kernel
  .amdhsa_next_free_vgpr 256
  .amdhsa_next_free_sgpr 102
  .amdhsa_accum_offset 256
  .amdhsa_group_segment_fixed_size 0
  .amdhsa_kernarg_size 88
  .amdhsa_user_sgpr_count 2
  .amdhsa_user_sgpr_kernarg_segment_ptr 1
  .amdhsa_system_sgpr_workgroup_id_x 1
.end_amdhsa_kernel
"""
    return out

if __name__ == "__main__":
    opt = Opt()
    outp = sys.argv[1]
    for a in sys.argv[2:]:
        k, v = a.split("=")
        assert hasattr(opt, k), k
        setattr(opt, k, type(getattr(opt, k))(eval(v)))
    e = gen(opt)
    bad = check_cfg(e.lines)
    print("hazards:", bad, "lines:", len(e.lines), "lds", LDS_BYTES)
    open(outp, "w").write(wrap(e))
```

```python
import sys, math, struct
from asmlib import *

NAME = "recurrent_scan__grouped_kv_mqa__dense_activation_relu__prompt"
MF32 = "v_mfma_f32_32x32x16_bf16"
MF16 = "v_mfma_f32_16x16x32_bf16"

def f32bits(x):
    return struct.unpack("<I", struct.pack("<f", x))[0]

KVS = 2080
R0 = 0
R1 = 32 * KVS
XN_RH = 64 * 528
R2 = R1 + 2 * XN_RH
R4 = R2 + 28672
LDS_BYTES = R4 + 256
(CXN, CST, CWQ, CQ, CKV, CKM, CTAG, CA, CA2, CX, CH2, CR0, CWO, CAD, CF, CE0, CE1, CRW, CRC, CXI, CP1, CL1, CG, CTL, CWI) = [4 * i for i in range(25)]
RB2 = R1 + 16 * KVS
assert RB2 % 128 == 0 and RB2 + 32768 <= R2
STAT = 128
assert R2 % 128 == 0
WS_KV = 0
WS_EPOCH = 0x30000
WS_KVF = 0x38000
WS_HF = 0x40000
WS_O = 0x100000
WS_H = 0x400000
WS_STAMP = 0x1000000
sX, sWQ, sWKV, sWO, sW1, sW2, sOUT, sWS = 8, 12, 16, 20, 24, 28, 32, 40
sMASK, sF, sSPIN, sFLG = 44, 45, 46, 47
sWAVE, sRB, sCB, sT0, sT1, sT2, sOFF, sOFF2, sCNT, sSEG = 70, 71, 72, 73, 74, 75, 76, 77, 78, 79
sRG, sOB, sTAG, sTILE, sRING, sW2T, sU0, sU1 = 3, 6, 7, 36, 37, 38, 39, 60
sOA = 52
sSTAMP = 80
vH, vCG, vR, vC, vTR, vXN0, vXN1, vSW, vW1, vL16, vT0, vT1, vSP = 212, 213, 214, 215, 216, 217, 218, 219, 220, 221, 222, 223, 224
vTCH = 225
vSD = 228

class Opt:
    stamps = False
    front = False
    force_fallback = False
    thr = 40.0
    exit_at = 0
    spin = 0x20000
    pace1 = 0
    pace2 = 0
    kvsleep = 1
    kvdelay = 32
    kvtouch = True
    warm2 = True
    touch = 2
    fstart = 2
    twq = False
    wqdepth = 40
    fprio = 0
    outf = ''
    echo = ()
    NR = 4
    dense = 32
    twait = 1
    nomf2 = False
    nold2 = 0
    ctouch = True
    mid = False
    wo_at = 23
    ntouch = 4
    early_o = True
    dense2 = 0
    htouch = False
    lnclk = False

def gen(opt):
    e = E()
    uid = [0]
    def lbl(p):
        uid[0] += 1
        return f"L_{p}_{uid[0]}"
    def stamp(k, when=None):
        if when == "front" and not opt.front: return
        if when == "late" and opt.front: return
        if opt.stamps:
            e.i(f"s_memrealtime {S(sSTAMP+2*k,2)}")
    def cstamp(k):
        if opt.stamps:
            e.i(f"s_memtime {S(sSTAMP+2*k,2)}")
    def dump_stamps():
        if not opt.stamps or opt.echo:
            return
        e.wait_all(vm=True, lg=True)
        e.i("v_mov_b32 v2, 0")
        e.i("v_mbcnt_lo_u32_b32 v1, -1, 0")
        e.i("v_mbcnt_hi_u32_b32 v1, -1, v1")
        for k in range(22):
            e.i(f"v_writelane_b32 v2, s{sSTAMP+k}, {k}")
        e.i(f"s_getreg_b32 s{sT0}, hwreg(HW_REG_XCC_ID)")
        e.i(f"v_writelane_b32 v2, s{sT0}, 22")
        e.i(f"s_lshl_b32 s{sT0}, s2, 3")
        e.i(f"s_add_u32 s{sT0}, s{sT0}, s{sWAVE}")
        e.i(f"s_lshl_b32 s{sT0}, s{sT0}, 8")
        e.i(f"s_add_u32 s{sT0}, s{sT0}, {WS_STAMP}")
        e.i("v_lshlrev_b32 v3, 2, v1")
        e.i(f"buffer_store_dword v2, v3, {S(sWS,4)}, s{sT0} offen")
    def exit_if(k):
        if opt.exit_at == k:
            dump_stamps()
            e.i("s_endpgm")
    def spin_init(mult=1):
        e.i(f"s_mov_b32 s{sSPIN}, {hex(opt.spin*mult)}")
    def spin_tail(top, done, sleep):
        e.i(f"s_sub_u32 s{sSPIN}, s{sSPIN}, 1")
        e.i(f"s_cbranch_scc1 {done}")
        if sleep:
            e.i(f"s_sleep {sleep}")
        e.i(f"s_branch {top}")
    def lds_signal(off, va=6):
        e.i("s_mov_b64 exec, 1")
        e.lds(f"ds_add_u32 v{va}, v7 offset:{off}")
        e.i("s_mov_b64 exec, -1")
    def lds_poll(off, n, vt=5, sleep=1, va=6):
        top, done = lbl("lp"), lbl("lpd")
        spin_init(16)
        e.label(top)
        e.i(f"ds_read_b32 v{vt}, v{va} offset:{off}")
        e.wait_all(lg=True)
        e.i(f"v_readfirstlane_b32 s{sT0}, v{vt}")
        e.i(f"s_cmp_ge_u32 s{sT0}, {n}")
        e.i(f"s_cbranch_scc1 {done}")
        spin_tail(top, done, sleep)
        e.label(done)
    def kv_dma(n, soff, sl, gstep, lstep):
        for i in range(n):
            e.i(f"s_mov_b32 m0, s{sl}")
            e.i(f"s_add_u32 s{sl}, s{sl}, {lstep*KVS}")
            for p in range(2):
                e.vmem(f"buffer_load_dwordx4 v{vL16}, {S(sWS,4)}, s{soff} offen offset:{1024*p} sc1 lds", ("kv", i))
            e.i(f"s_add_u32 s{soff}, s{soff}, {gstep*2048}")
    def setup():
        e.i(f"s_mov_b64 {S(sWQ,2)}, s[50:51]")
        e.i(f"s_mov_b64 {S(sWO,2)}, s[56:57]")
        e.i(f"s_mov_b64 {S(sW1,2)}, s[60:61]")
        e.i(f"s_mov_b64 {S(sW2,2)}, s[62:63]")
        e.i(f"s_mov_b64 {S(sOUT,2)}, s[64:65]")
        e.i(f"s_mov_b64 {S(sWS,2)}, s[68:69]")
        e.i(f"s_lshl_b32 s{sFLG}, s{sRB}, 10")
        e.i(f"s_add_u32 s{sFLG}, s{sFLG}, {hex(WS_HF)}")
        e.i(f"s_lshl_b32 s{sRING}, s{sF}, 13")
        e.i(f"s_add_u32 s{sRING}, s{sRING}, {R2}")
        e.i("v_lshrrev_b32 v5, 2, v1")
        e.i("v_and_b32 v5, 4, v5")
        e.i("v_xor_b32 v5, v5, v3")
        e.i("v_lshlrev_b32 v5, 4, v5")
        e.i(f"v_lshl_add_u32 v{vSW}, v2, 10, v5")
        e.i(f"v_mul_u32_u24 v{vW1}, 3584, v2")
        e.i(f"v_add_u32 v{vW1}, v{vW1}, v5")
        e.i(f"v_lshlrev_b32 v{vL16}, 4, v1")
        e.i(f"v_lshrrev_b32 v{vH}, 5, v1")
        e.i(f"v_bfe_u32 v{vCG}, v1, 4, 1")
        e.i(f"v_bfe_u32 v{vR}, v1, 2, 2")
        e.i(f"v_and_b32 v{vC}, 3, v1")
        e.i(f"v_lshrrev_b32 v4, 1, v{vC}")
        e.i(f"v_lshl_add_u32 v4, v{vCG}, 1, v4")
        e.i(f"v_lshlrev_b32 v5, 1, v{vR}")
        e.i("v_and_b32 v5, 4, v5")
        e.i("v_xor_b32 v4, v4, v5")
        e.i(f"v_lshlrev_b32 v{vTR}, 7, v{vR}")
        e.i(f"v_lshl_add_u32 v{vTR}, v4, 4, v{vTR}")
        e.i(f"v_and_b32 v5, 1, v{vC}")
        e.i(f"v_lshl_add_u32 v{vTR}, v5, 3, v{vTR}")
        e.i("v_and_b32 v5, 31, v1")
        e.i(f"v_mul_u32_u24 v{vXN0}, 528, v{vH}")
        e.i(f"v_lshl_add_u32 v{vXN0}, v5, 4, v{vXN0}")
        e.i(f"v_add_u32 v{vXN0}, {R1}, v{vXN0}")
        e.i(f"v_add_u32 v{vXN1}, {XN_RH}, v{vXN0}")
        e.i(f"v_mul_u32_u24 v{vSP}, {KVS}, v5")
        e.i(f"v_lshl_add_u32 v{vSP}, v{vH}, 4, v{vSP}")
        e.i(f"v_subrev_u32 v{vSD}, 1, v{vH}")
        e.i(f"v_and_b32 v{vSD}, 0x3f803f80, v{vSD}")
        for r in range(1, 4):
            e.i(f"v_mov_b32 v{vSD+r}, v{vSD}")
        e.i("v_and_b32 v4, 15, v1")
        e.i(f"v_lshl_add_u32 v4, v{vH}, 4, v4")
        e.i("v_lshlrev_b32 v203, 4, v4")
        e.i(f"v_lshl_add_u32 v{vT0}, v{vH}, 10, v{vTR}")

    e.i("s_cmp_ge_u32 s2, 256")
    e.i("s_cbranch_scc1 L_end")
    e.i("s_load_dwordx16 s[48:63], s[0:1], 0")
    e.i("s_load_dwordx2 s[64:65], s[0:1], 64")
    e.i("s_load_dwordx2 s[68:69], s[0:1], 80")
    stamp(0)
    e.i("v_lshrrev_b32 v2, 6, v0")
    e.i("v_and_b32 v1, 63, v0")
    e.i(f"v_readfirstlane_b32 s{sWAVE}, v2")
    e.c("workgroup -> (row block rb, column block cb); ids that share id&7 share half of the columns and 1/4 of the rows")
    e.i(f"s_and_b32 s{sT0}, s2, 7")
    e.i(f"s_lshr_b32 s{sT1}, s2, 3")
    e.i(f"s_and_b32 s{sCB}, s{sT1}, 3")
    e.i(f"s_lshl_b32 s{sCB}, s{sCB}, 1")
    e.i(f"s_and_b32 s{sRB}, s{sT0}, 1")
    e.i(f"s_add_u32 s{sCB}, s{sCB}, s{sRB}")
    e.i(f"s_lshr_b32 s{sT1}, s{sT1}, 2")
    e.i(f"s_lshr_b32 s{sRB}, s{sT0}, 1")
    e.i(f"s_lshl_b32 s{sRB}, s{sRB}, 3")
    e.i(f"s_add_u32 s{sRB}, s{sRB}, s{sT1}")
    e.i(f"s_mov_b32 s{sMASK}, 0xffff0000")
    e.i(f"s_and_b32 s{sF}, s{sWAVE}, 3")
    e.c("row group of this wave: (w + 2*rq + 3) & 7 -> waves 5,6 hold the 16 rows of this workgroup's K/V tile")
    e.i(f"s_and_b32 s{sRG}, s{sCB}, 6")
    e.i(f"s_add_u32 s{sRG}, s{sRG}, s{sWAVE}")
    e.i(f"s_add_u32 s{sRG}, s{sRG}, 3")
    e.i(f"s_and_b32 s{sRG}, s{sRG}, 7")
    e.i("v_lshrrev_b32 v2, 3, v1")
    e.i("v_and_b32 v3, 7, v1")
    e.i("v_lshlrev_b32 v4, 10, v2")
    e.i("v_lshl_add_u32 v4, v3, 4, v4")
    e.i(f"s_lshl_b32 s{sOFF}, s{sRB}, 3")
    e.i(f"s_add_u32 s{sOFF}, s{sOFF}, s{sRG}")
    e.i(f"s_lshl_b32 s{sOFF}, s{sOFF}, 13")
    for srd, size in ((sX, 2048*512*2), (sWQ, 512*512*2), (sWKV, 512*16*2), (sWO, 512*512*2), (sW1, 512*1792*2),
                      (sW2, 1792*512*2), (sOUT, 2048*512*2), (sWS, 0x10000000)):
        e.i(f"s_mov_b32 s{srd+2}, {hex(size)}")
        e.i(f"s_mov_b32 s{srd+3}, 0x20000")
    e.i(f"v_mov_b32 v6, {R4}")
    e.i("v_mov_b32 v7, 1")
    e.i("v_mov_b64 v[108:109], 0")
    e.i("v_and_b32 v105, 15, v1")
    e.i("v_lshl_add_u32 v105, v105, 3, v6")
    e.i("ds_write_b64 v105, v[108:109]")
    e.i(f"s_mov_b32 s{sSEG}, 0")
    e.i(f"s_cmp_eq_u32 s{sWAVE}, 7")
    e.i("s_cbranch_scc1 L_pre_7")
    e.i("s_waitcnt lgkmcnt(0)")
    e.i(f"s_mov_b64 {S(sX,2)}, s[48:49]")
    e.i(f"s_cmp_eq_u32 s{sWAVE}, 4")
    e.i("s_cbranch_scc1 L_pre_4")
    e.i(f"s_cmp_ge_u32 s{sWAVE}, 5")
    e.i("s_cbranch_scc1 L_pre_first")
    e.i("s_barrier")
    e.label("L_pre_first")
    for i in range(8):
        e.i(f"buffer_load_dwordx4 {V(8+4*i,4)}, v4, {S(sX,4)}, s{sOFF} offen offset:{128*i}")
    e.i("s_cbranch_scc0 L_pre_second")
    e.i("s_barrier")
    e.label("L_pre_second")
    e.i(f"s_cmp_eq_u32 s{sWAVE}, 0")
    e.i("s_cbranch_scc1 L_pre_dbl")
    e.i(f"s_cmp_lg_u32 s{sWAVE}, 3")
    e.i("s_cbranch_scc1 L_pre_n3")
    e.label("L_pre_dbl")
    e.c("waves 0,3 also normalise the rows waves 4,7 would have had (row group ^ 4)")
    e.i(f"s_xor_b32 s{sOFF}, s{sOFF}, 0x8000")
    for i in range(8):
        e.i(f"buffer_load_dwordx4 {V(128+4*i,4)}, v4, {S(sX,4)}, s{sOFF} offen offset:{128*i}")
    e.i(f"s_mov_b32 s{sSEG}, 1")
    e.label("L_pre_n3")
    lds_signal(CXI)
    setup()
    e.i(f"s_cmp_ge_u32 s{sWAVE}, 4")
    e.i("s_cbranch_scc1 L_pre_56")
    S0, S1, P0, P1, OA, OB, NMA, NMB, QA, QB, KB, VB = 32, 48, 64, 72, 80, 96, 112, 128, 144, 148, 152, 168
    vK, vV0, vV1, vVG, vVC = 200, 201, 202, 203, 204
    e.i("s_setprio 1")
    e.i(f"s_lshl_b32 s{sT0}, s{sRB}, 5")
    e.i(f"s_lshl_b32 s{sT1}, s{sCB}, 2")
    e.i(f"s_add_u32 s{sT0}, s{sT0}, s{sT1}")
    e.i(f"s_and_b32 s{sT1}, s{sWAVE}, 1")
    e.i(f"s_lshl_b32 s{sT2}, s{sT1}, 6")
    e.i(f"v_xor_b32 v{vT0}, s{sT2}, v{vT0}")
    e.i(f"s_lshl_b32 s{sT1}, s{sT1}, 1")
    e.i(f"s_add_u32 s{sT0}, s{sT0}, s{sT1}")
    e.i(f"s_lshl_b32 s{sT0}, s{sT0}, 1")
    e.i(f"s_lshr_b32 s{sT1}, s{sWAVE}, 1")
    e.i(f"s_add_u32 s{sT0}, s{sT0}, s{sT1}")
    e.i(f"s_lshl_b32 s{sT0}, s{sT0}, 10")
    e.i(f"s_add_u32 s{sOB}, s{sT0}, {WS_O}")
    e.i(f"s_mul_i32 s{sT1}, s{sT1}, {XN_RH}")
    e.i(f"v_add_u32 v{vXN0}, s{sT1}, v{vXN0}")
    e.i(f"v_mov_b32 v{vK}, v{vL16}")
    e.i("v_and_b32 v5, 11, v1")
    e.i("v_cmp_ne_u32 vcc, 0, v5")
    e.i("v_mov_b32 v4, 2048")
    e.i("v_mov_b32 v5, 2064")
    e.i(f"v_mov_b32 v{vVC}, 0x3f803f80")
    e.i("v_cndmask_b32 v4, v4, v5, vcc")
    e.i(f"v_cndmask_b32 v{vVC}, v{vVC}, v108, vcc")
    e.i(f"v_cmp_eq_u32 vcc, 0, v{vCG}")
    e.i(f"v_add_u32 v{vV0}, 1024, v{vVG}")
    e.i(f"v_add_u32 v{vV1}, 1536, v{vVG}")
    e.i(f"v_cndmask_b32 v{vV0}, v4, v{vV0}, vcc")
    e.i(f"v_cndmask_b32 v{vV1}, v4, v{vV1}, vcc")
    for r in range(24):
        e.i(f"v_mov_b32 v{VB+r}, v{vVC}")
    for r in range(0, 8, 2):
        e.i(f"v_mov_b64 {V(VB+24+r,2)}, 0")
    e.i("v_mov_b64 v[208:209], -1")
    e.i("v_mov_b64 v[210:211], -1")
    e.i(f"s_cmp_eq_u32 s{sSEG}, 1")
    e.i("s_cbranch_scc1 L_pre_w8")
    e.i("s_waitcnt vmcnt(0)")
    e.label("L_pre_w8")
    e.i("s_waitcnt vmcnt(8)")
    e.i("s_branch L_ln")

    def ffn_setup():
        e.i(f"s_and_b32 s{sTILE}, s{sCB}, 1")
        e.i(f"s_lshl_b32 s{sT1}, s{sF}, 1")
        e.i(f"s_add_u32 s{sTILE}, s{sTILE}, s{sT1}")
        e.i(f"v_add_u32 v{vT0}, s{sRING}, v{vT0}")
        e.i(f"v_xor_b32 v{vT1}, 64, v{vT0}")
    e.label("L_pre_4")
    if opt.ctouch:
        e.c("pull this kernel's code into L2: 16 lines per workgroup, the workgroups of an XCD cover all of it")
        e.i(f"s_getpc_b64 {S(sWKV,2)}")
        e.label("L_pc")
        e.i(f"s_mov_b32 s{sWKV+2}, L_code_end-L_pc")
        e.i(f"s_lshr_b32 s{sT0}, s2, 3")
        e.i(f"s_lshl_b32 s{sT0}, s{sT0}, 11")
        e.i("v_lshlrev_b32 v104, 7, v1")
        e.i("s_mov_b64 exec, 0xffff")
        e.i(f"buffer_load_dword v106, v104, {S(sWKV,4)}, s{sT0} offen")
        e.i("s_mov_b64 exec, -1")
    e.c("wave 4: loader.  wq slice -> R0 by DMA behind the x loads; touches 1/8 of the w1 slice -> L2")
    setup()
    ffn_setup()
    e.i(f"s_lshl_b32 s{sOFF}, s{sCB}, 7")
    e.i(f"s_mov_b32 s{sT1}, 0")
    e.i(f"s_mov_b32 s{sCNT}, 7")
    def touch_setup(so):
        e.i("v_lshrrev_b32 v105, 2, v1")
        e.i("v_mul_u32_u24 v105, 3584, v105")
        e.i(f"v_lshl_add_u32 v105, v{vC}, 7, v105")
        e.i(f"s_and_b32 s{so}, s{sRB}, 7")
        e.i(f"s_mul_i32 s{so}, s{so}, {16*3584}")
        e.i(f"s_mul_i32 s{sT0}, s{sCB}, 448")
        e.i(f"s_add_u32 s{so}, s{so}, s{sT0}")
    def touches(so=sT2, a=0, b=4):
        for i in range(a, b):
            e.i(f"s_add_u32 s{sT0}, s{so}, {i*128*3584}")
            e.i(f"buffer_load_dword v106, v105, {S(sW1,4)}, s{sT0} offen")
    touch_setup(sT2)
    if opt.twq:
        e.i("v_lshlrev_b32 v104, 10, v1")
        e.i(f"s_and_b32 s{sT0}, s{sRB}, 7")
        e.i(f"s_lshl_b32 s{sT0}, s{sT0}, 16")
        e.i(f"s_add_u32 s{sT0}, s{sT0}, s{sOFF}")
    e.i("s_barrier")
    if opt.twq:
        e.i(f"buffer_load_dword v106, v104, {S(sWQ,4)}, s{sT0} offen")
    if opt.touch == 4:
        touches()
    lds_poll(CXI, 6, sleep=0)
    if opt.touch == 5:
        touches()
    e.label("L_wq_loop")
    for i in range(8):
        e.i(f"s_mov_b32 m0, s{sT1}")
        e.i(f"s_add_u32 s{sT1}, s{sT1}, 1024")
        e.i(f"buffer_load_dwordx4 v{vSW}, {S(sWQ,4)}, s{sOFF} offen lds")
        e.i(f"s_add_u32 s{sOFF}, s{sOFF}, 8192")
    e.i(f"s_waitcnt vmcnt({opt.wqdepth})")
    e.i(f"s_sub_u32 s{sCNT}, s{sCNT}, 1")
    e.i("s_cbranch_scc0 L_wq_loop")
    lds_signal(CWI)
    stamp(1, "front")
    if opt.touch == 1:
        touches()
    e.i(f"s_waitcnt vmcnt({4 if opt.touch == 1 else 0})")
    lds_signal(CWQ)
    stamp(8, "front")
    if opt.touch == 2 or (opt.touch == 3 and opt.ntouch < 4):
        lds_poll(CG, 4, sleep=2)
        touches(sT2, opt.ntouch if opt.touch == 3 else 0, 4)
    e.i("s_branch L_ffn")

    e.label("L_pre_56")
    ffn_setup()
    e.i("s_setprio 3")
    e.i("s_waitcnt vmcnt(0)")

    e.label("L_ln")
    stamp(1, "front")
    if opt.lnclk:
        stamp(6); cstamp(9)
    X = 40
    A = 112
    e.i(f"s_lshr_b32 s{sT0}, s{sRG}, 2")
    e.i(f"s_mul_i32 s{sT0}, s{sT0}, {XN_RH}")
    e.i(f"s_and_b32 s{sT1}, s{sRG}, 3")
    e.i(f"s_lshl_b32 s{sT1}, s{sT1}, 7")
    e.i(f"s_add_u32 s{sT0}, s{sT0}, s{sT1}")
    e.i(f"s_add_u32 s{sT0}, s{sT0}, {R1}")
    e.i("v_mul_u32_u24 v122, 528, v3")
    e.i("v_lshl_add_u32 v122, v2, 4, v122")
    e.i(f"v_add_u32 v122, s{sT0}, v122")
    e.i(f"s_cmp_lt_u32 s{sWAVE}, 5")
    e.i("s_cbranch_scc1 L_ln_a")
    e.c("waves 5,6: raw rows -> LDS for the K/V wave")
    for i in range(8):
        e.i(f"ds_write_b128 v122, {V(8+4*i,4)} offset:{4224*i}")
    lds_signal(CRW)
    e.label("L_ln_a")
    e.i("v_mov_b32 v110, 0x3f803f80")
    e.i("v_mov_b64 v[112:113], 0")
    e.i("v_mov_b32 v108, 0x3f80")
    e.i("v_mov_b32 v109, 0x3f800000")
    for t in range(32):
        e.i(f"v_dot2c_f32_bf16 v{A+(t&1)}, v{8+t}, v110")
    def reduce_lanes():
        for m in ("quad_perm:[1,0,3,2]", "quad_perm:[2,3,0,1]", "row_half_mirror"):
            e.nop(2)
            e.i(f"v_add_f32_dpp v{A}, v{A}, v{A} {m} row_mask:0xf bank_mask:0xf")
    e.nop(3)
    e.i(f"v_add_f32 v{A}, v{A}, v{A+1}")
    reduce_lanes()
    e.i(f"v_mul_f32 v120, {hex(f32bits(-1.0/512))}, v{A}")
    for t in range(32):
        e.i(f"v_dot2_f32_bf16 v{X+2*t}, v{8+t}, v108, v120")
        e.i(f"v_dot2_f32_bf16 v{X+2*t+1}, v{8+t}, v109, v120")
    for t in range(32):
        a = t % 4
        if t < 4:
            e.i(f"v_pk_mul_f32 {V(A+2*a,2)}, {V(X+2*t,2)}, {V(X+2*t,2)}")
        else:
            e.i(f"v_pk_fma_f32 {V(A+2*a,2)}, {V(X+2*t,2)}, {V(X+2*t,2)}, {V(A+2*a,2)}")
    e.i(f"v_pk_add_f32 {V(A,2)}, {V(A,2)}, {V(A+2,2)}")
    e.i(f"v_pk_add_f32 {V(A+4,2)}, {V(A+4,2)}, {V(A+6,2)}")
    e.i(f"v_pk_add_f32 {V(A,2)}, {V(A,2)}, {V(A+4,2)}")
    e.i(f"v_add_f32 v{A}, v{A}, v{A+1}")
    reduce_lanes()
    e.i(f"v_mov_b32 v119, {hex(f32bits(1e-5))}")
    e.i(f"v_fmac_f32 v119, {hex(f32bits(1.0/512))}, v{A}")
    e.i("v_rsq_f32 v118, v119")
    e.i(f"s_cmp_lt_u32 s{sWAVE}, 5")
    e.i("s_cbranch_scc1 L_ln_b")
    e.c("waves 5,6: hand the row statistics to the K/V wave")
    e.i(f"s_lshl_b32 s{sT0}, s{sWAVE}, 5")
    e.i(f"s_add_u32 s{sT0}, s{sT0}, {R4 + STAT - 160}")
    e.i(f"v_lshl_add_u32 v111, v2, 2, s{sT0}")
    e.i("ds_write2_b32 v111, v120, v118 offset1:16")
    lds_signal(CST)
    lds_poll(CRC, 1, sleep=0)
    e.label("L_ln_b")
    e.lg = []
    for i in range(8):
        for t in range(4*i, 4*i+4):
            e.i(f"v_pk_mul_f32 {V(X+2*t,2)}, {V(X+2*t,2)}, v[118:119] op_sel_hi:[1,0]")
        for t in range(4*i, 4*i+4):
            e.i(f"v_cvt_pk_bf16_f32 v{8+t}, v{X+2*t}, v{X+2*t+1}")
        e.lds(f"ds_write_b128 v122, {V(8+4*i,4)} offset:{4224*i}")
    lds_signal(CXN)
    e.i(f"s_cmp_eq_u32 s{sSEG}, 0")
    e.i("s_cbranch_scc1 L_ln_done")
    e.i(f"s_mov_b32 s{sSEG}, 0")
    e.i(f"s_xor_b32 s{sRG}, s{sRG}, 4")
    e.i("s_waitcnt vmcnt(0)")
    for t in range(0, 32, 2):
        e.i(f"v_mov_b64 {V(8+t,2)}, {V(128+t,2)}")
    e.i("s_branch L_ln")
    e.label("L_ln_done")
    stamp(8, "front")
    if opt.lnclk:
        stamp(7); cstamp(10)
    e.i(f"s_cmp_ge_u32 s{sWAVE}, 4")
    e.i("s_cbranch_scc1 L_ffn")

    e.vm = []
    lds_poll(CWQ, 1, sleep=0)
    lds_poll(CXN, 9, sleep=0)
    stamp(2)
    fill = [f"v_mov_b64 {V(OA+r,2)}, 0" for r in range(0, 32, 2)] + [f"v_mov_b64 {V(P1+r,2)}, 0" for r in range(0, 8, 2)]
    e.c("Q projection: wave w -> head pair hp=w&1, row half rh=w>>1")
    def qreads(ks):
        s = ks % 4
        e.lds(f"ds_read_b64_tr_b16 {V(32+8*s,2)}, v{vT0} offset:{ks*2048}", ("q", ks))
        e.lds(f"ds_read_b64_tr_b16 {V(34+8*s,2)}, v{vT0} offset:{ks*2048+512}", ("q", ks))
        e.lds(f"ds_read_b128 {V(36+8*s,4)}, v{vXN0} offset:{ks*1056}", ("q", ks))
    for ks in range(4):
        qreads(ks)
    for ks in range(32):
        s = ks % 4
        e.wait(lg=("q", ks))
        e.i(f"{MF32} v[8:23], {V(32+8*s,4)}, {V(36+8*s,4)}, {'0' if ks == 0 else 'v[8:23]'}")
        if ks + 4 < 32:
            qreads(ks + 4)
        if ks == 27:
            lds_signal(CQ)
        if fill:
            e.i(fill.pop(0))
    lds_poll(CQ, 4, sleep=0)
    e.lds(f"ds_write_b128 v{vSP}, {V(vSD,4)} offset:2048")
    e.i(f"s_mov_b32 s{sT1}, {hex(f32bits(0.25*math.log2(math.e)))}")
    e.i(f"v_mov_b64 {V(S1+14,2)}, 0")
    e.nop(3)
    for r in range(16):
        e.i(f"v_mul_f32 v{8+r}, s{sT1}, v{8+r}")
    for hd in range(2):
        b = 8 + 8*hd
        e.i(f"v_mul_f32 v{24+hd}, v{b}, v{b}")
        for r in range(1, 8):
            e.i(f"v_fmac_f32 v{24+hd}, v{b+r}, v{b+r}")
    e.i("v_mov_b32 v26, v24")
    e.i("v_mov_b32 v27, v25")
    for hd in range(2):
        for j in range(4):
            e.i(f"v_cvt_pk_bf16_f32 v{QA+4*hd+j}, v{8+8*hd+2*j}, v{8+8*hd+2*j+1}")
    e.i("v_permlane32_swap_b32 v24, v26")
    e.i("v_permlane32_swap_b32 v25, v27")
    e.i("v_add_f32 v24, v24, v26")
    e.i("v_add_f32 v25, v25, v27")
    e.i(f"s_lshl_b32 s{sOFF}, s{sWAVE}, 11")
    e.i(f"s_add_u32 s{sOFF}, s{sOFF}, {3*2048}")
    e.i(f"s_mul_i32 s{sT1}, s{sWAVE}, {KVS}")
    e.i(f"s_mov_b32 s{sT2}, 4096")
    e.i("s_mov_b32 s4, 0xffff")
    e.i("s_mov_b32 s5, 0xffff")
    stamp(3)
    lds_poll(CKV, 1, sleep=0)
    stamp(4)
    e.c("blocks 0..2 straight into registers, blocks 3..34 -> slots 0..31")
    def direct(j):
        so, o = ("0", 2048*j) if j < 2 else (f"s{sT2}", 0)
        e.vmem(f"buffer_load_dwordx4 {V(KB+4*j,4)}, v{vL16}, {S(sWS,4)}, {so} offen offset:{o} sc1", "d")
        e.i("s_mov_b64 exec, s[4:5]")
        e.vmem(f"buffer_load_dwordx4 {V(VB+8*j,4)}, v{vVG}, {S(sWS,4)}, {so} offen offset:{o+1024} sc1", "d")
        e.vmem(f"buffer_load_dwordx4 {V(VB+8*j+4,4)}, v{vVG}, {S(sWS,4)}, {so} offen offset:{o+1536} sc1", "d")
        e.i("s_mov_b64 exec, -1")
    kv_dma(2, sOFF, sT1, 4, 4)
    for j in range(3):
        direct(j)
    kv_dma(6, sOFF, sT1, 4, 4)
    e.c("mark this wave's o fragments as not yet written")
    for hd in range(2):
        e.vmem(f"buffer_store_dwordx4 v[208:211], v{vL16}, {S(sWS,4)}, s{sOB} offen offset:{2048*hd} sc1", "clr")
    lds_signal(CG)
    e.lds(f"ds_read_b32 v30, v6 offset:{CKM}")
    e.wait_all(lg=True)
    e.c("stand-in for the row max: |q| * max|k| >= max_k q.k ; used only while it cannot be far above the true max")
    e.i("v_mul_f32 v24, v24, v30")
    e.i("v_mul_f32 v25, v25, v30")
    e.i("v_sqrt_f32 v24, v24")
    e.i("v_sqrt_f32 v25, v25")
    e.i(f"s_mov_b32 s{sT1}, {hex(f32bits(opt.thr))}")
    e.i("v_max_f32 v26, v24, v25")
    e.i(f"v_cmp_nge_f32 vcc, s{sT1}, v26")
    e.i("v_cmp_u_f32 s[4:5], v24, v25")
    e.i("s_or_b64 s[4:5], s[4:5], vcc")
    if opt.force_fallback:
        e.i("s_branch L_fallback")
    else:
        e.i("s_cbranch_scc1 L_fallback")
    e.label("L_att_start")
    for r in range(16):
        e.i(f"v_sub_f32 v{NMA+r}, 0, v24")
        e.i(f"v_sub_f32 v{NMB+r}, 0, v25")
    U = 8
    e.i(f"s_mov_b32 s{sCNT}, 0")
    e.i(f"s_mov_b32 s{sSEG}, 0")
    e.wait(vm="d")
    lds_signal(CA)
    e.i(f"{MF32} {V(S0,16)}, {V(KB,4)}, {V(QA,4)}, {V(NMA,16)}")
    e.nop(6)
    lds_poll(CA, 4, sleep=0)
    stamp(5)
    def step(cur, nxt, pc, pp, K, Q, NM, O, Vb, after):
        for i in range(16):
            e.i(f"v_exp_f32 v{cur+i}, v{cur+i}")
            if i == 0:
                e.i(f"v_cvt_pk_bf16_f32 v{pp+7}, v{nxt+14}, v{nxt+15}")
                e.i(f"{MF32} {V(nxt,16)}, {V(K,4)}, {V(Q,4)}, {V(NM,16)}")
                for t in after[0]: e.i(t)
            if i >= 2 and i % 2 == 0:
                j = (i - 2) // 2
                e.i(f"v_cvt_pk_bf16_f32 v{pc+j}, v{cur+2*j}, v{cur+2*j+1}")
            if i == 5:
                e.i(f"{MF32} {V(O,16)}, {V(Vb,4)}, {V(pp,4)}, {V(O,16)}")
                for t in after[1]: e.i(t)
            if i == 10:
                e.i(f"{MF32} {V(O,16)}, {V(Vb+4,4)}, {V(pp+4,4)}, {V(O,16)}")
                for t in after[2]: e.i(t)
    e.raw(".p2align 6")
    e.label("L_att_loop")
    for u in range(U):
        b3 = (u + 3) % 4
        off = u * KVS
        last = u == U - 1
        a0 = [f"ds_read_b128 {V(KB+4*b3,4)}, v{vK} offset:{off}"]
        a1 = [f"v_add_u32 v{vK}, {U*KVS}, v{vK}"] if last else []
        a2 = [f"s_sub_u32 s{sCNT}, s{sCNT}, 1"] if last else []
        step(S0, S1, P0, P1, KB+4*(u % 4), QB, NMB, OB, VB+8*((u-1) % 4), [a0, a1, a2])
        a0 = [f"ds_read_b128 {V(VB+8*b3,4)}, v{vV0} offset:{off}"]
        a1 = [f"ds_read_b128 {V(VB+8*b3+4,4)}, v{vV1} offset:{off}"]
        a2 = ["s_waitcnt lgkmcnt(2)"] if u % 2 == 1 else []
        if last:
            a2 += [f"v_add_u32 v{vV0}, {U*KVS}, v{vV0}", f"v_add_u32 v{vV1}, {U*KVS}, v{vV1}"]
        step(S1, S0, P1, P0, KB+4*((u+1) % 4), QA, NMA, OA, VB+8*(u % 4), [a0, a1, a2])
    e.i("s_cbranch_scc0 L_att_loop")
    e.i(f"s_cmp_eq_u32 s{sSEG}, 4")
    e.i("s_cbranch_scc1 L_att_done")
    e.i(f"s_add_u32 s{sSEG}, s{sSEG}, 1")
    e.i(f"s_mov_b32 s{sCNT}, 1")
    e.i(f"s_cmp_eq_u32 s{sSEG}, 2")
    e.i("s_cbranch_scc1 L_att_b1")
    e.i(f"s_cmp_eq_u32 s{sSEG}, 3")
    e.i("s_cbranch_scc1 L_att_b3")
    e.i(f"s_cmp_eq_u32 s{sSEG}, 4")
    e.i("s_cbranch_scc1 L_att_b5")
    e.c("slots 0..7 read: the other slots must have landed")
    e.wait_all(vm=True)
    lds_signal(CA2)
    lds_poll(CA2, 4, sleep=0)
    e.i(f"s_mov_b32 s{sCNT}, 0")
    e.i("s_branch L_att_loop")
    e.label("L_att_b1")
    e.c("slots 0..15 read: they may be refilled")
    lds_signal(CP1)
    e.i("s_branch L_att_loop")
    def shift(d):
        for v in (vK, vV0, vV1):
            e.i(f"v_add_u32 v{v}, {hex(d & 0xffffffff)}, v{v}")
    e.label("L_att_b3")
    e.c("slots 0..31 read: continue with the refilled slots 0..15")
    if not opt.lnclk:
        stamp(6)
        cstamp(9)
    shift(-32 * KVS)
    lds_poll(CL1, 1, sleep=1)
    e.i("s_branch L_att_loop")
    e.label("L_att_b5")
    e.c("R0 is done with: continue with the slots in R1")
    lds_signal(CR0)
    shift(R1 - 16 * KVS)
    lds_poll(CH2, 4, sleep=1)
    e.i("s_branch L_att_loop")
    e.label("L_att_done")
    if not opt.lnclk:
        stamp(7)
        cstamp(10)
    e.i(f"v_cvt_pk_bf16_f32 v{P1+7}, v{S1+14}, v{S1+15}")
    e.i(f"{MF32} {V(OB,16)}, {V(VB+24,4)}, {V(P1,4)}, {V(OB,16)}")
    e.i(f"v_rcp_f32 v24, v{OA+8}")
    e.i(f"{MF32} {V(OB,16)}, {V(VB+28,4)}, {V(P1+4,4)}, {V(OB,16)}")
    lds_signal(CAD)
    for hd, O in enumerate((OA, OB)):
        if hd == 1:
            e.i(f"v_rcp_f32 v24, v{OB+8}")
            e.nop(1)
        for r in range(8):
            e.i(f"v_mul_f32 v{O+r}, v{O+r}, v24")
        for j in range(4):
            e.i(f"v_cvt_pk_bf16_f32 v{8+4*hd+j}, v{O+2*j}, v{O+2*j+1}")
        for j in range(4):
            e.i(f"v_min_u32 v{8+4*hd+j}, -2, v{8+4*hd+j}")
        e.vmem(f"buffer_store_dwordx4 {V(8+4*hd,4)}, v{vL16}, {S(sWS,4)}, s{sOB} offen offset:{2048*hd} sc1")
    stamp(8, "late")
    dump_stamps()
    e.i("s_endpgm")

    e.label("L_fallback")
    e.i("v_mov_b32 v24, 0xff800000")
    e.i("v_mov_b32 v25, 0xff800000")
    e.i(f"s_mov_b32 s{sT1}, 0")
    e.i(f"s_mov_b32 s{sCNT}, 31")
    e.label("L_fb_loop")
    e.i(f"buffer_load_dwordx4 v[8:11], v{vL16}, {S(sWS,4)}, s{sT1} offen sc1")
    e.i(f"buffer_load_dwordx4 v[12:15], v{vL16}, {S(sWS,4)}, s{sT1} offen offset:2048 sc1")
    e.i(f"s_add_u32 s{sT1}, s{sT1}, 4096")
    e.i("s_waitcnt vmcnt(0)")
    for k in range(2):
        e.i(f"{MF32} {V(NMA,16)}, {V(8+4*k,4)}, {V(QA,4)}, 0")
        e.i(f"{MF32} {V(NMB,16)}, {V(8+4*k,4)}, {V(QB,4)}, 0")
        e.nop(12)
        for r in range(0, 16, 2):
            e.i(f"v_max3_f32 v24, v24, v{NMA+r}, v{NMA+r+1}")
        for r in range(0, 16, 2):
            e.i(f"v_max3_f32 v25, v25, v{NMB+r}, v{NMB+r+1}")
    e.i(f"s_sub_u32 s{sCNT}, s{sCNT}, 1")
    e.i("s_cbranch_scc0 L_fb_loop")
    e.i("v_mov_b32 v26, v24")
    e.i("v_mov_b32 v27, v25")
    e.nop(2)
    e.i("v_permlane32_swap_b32 v24, v26")
    e.i("v_permlane32_swap_b32 v25, v27")
    e.i("v_max_f32 v24, v24, v26")
    e.i("v_max_f32 v25, v25, v27")
    e.i("s_branch L_att_start")

    e.label("L_pre_7")
    e.vm = []
    e.lg = []
    e.i("s_setprio 3")
    e.i(f"s_bitcmp1_b32 s{sCB}, 0")
    e.i("v_lshlrev_b32 v40, 4, v1")
    e.i("s_waitcnt lgkmcnt(0)")
    e.i(f"s_cselect_b64 {S(sWKV,2)}, s[54:55], s[52:53]")
    e.i(f"s_cselect_b32 s{sTILE}, 0, 6")
    e.i(f"s_load_dword s{sTAG}, s[68:69], {hex(WS_EPOCH)}")
    e.i(f"s_mov_b64 {S(sX,2)}, s[48:49]")
    for i in range(4):
        e.i(f"s_mov_b32 m0, {R2 + 4096*i}")
        e.i(f"s_mov_b32 s{sT0}, {4096*i}")
        for k in range(4):
            e.vmem(f"buffer_load_dwordx4 v40, {S(sWKV,4)}, s{sT0} offen offset:{1024*k} lds", "wkv")
    e.i("s_barrier")
    setup()
    e.i("v_lshrrev_b32 v42, 4, v1")
    e.i("v_and_b32 v43, 15, v1")
    e.i(f"s_lshr_b32 s{sT0}, s{sCB}, 2")
    e.i(f"s_mul_i32 s{sT0}, s{sT0}, {XN_RH}")
    e.i(f"s_bfe_u32 s{sT1}, s{sCB}, 0x10001")
    e.i(f"s_lshl_b32 s{sT1}, s{sT1}, 8")
    e.i(f"s_add_u32 s{sT0}, s{sT0}, s{sT1}")
    e.i(f"s_add_u32 s{sT0}, s{sT0}, {R1}")
    e.i("v_mul_u32_u24 v44, 528, v42")
    e.i("v_lshl_add_u32 v44, v43, 4, v44")
    e.i(f"v_add_u32 v44, s{sT0}, v44")
    e.i("v_lshlrev_b32 v45, 8, v42")
    e.i(f"v_lshl_add_u32 v45, v{vR}, 5, v45")
    e.i(f"v_lshl_add_u32 v45, v{vC}, 3, v45")
    e.i(f"v_add_u32 v45, {R2}, v45")
    for r in range(4):
        e.i(f"v_mov_b32 v{20+r}, 0x3f803f80")
    e.i(f"s_lshl_b32 s{sT2}, s{sRB}, 1")
    e.i(f"s_lshr_b32 s{sOFF2}, s{sCB}, 2")
    e.i(f"s_add_u32 s{sT2}, s{sT2}, s{sOFF2}")
    e.i(f"s_lshl_b32 s{sT2}, s{sT2}, 11")
    e.i(f"s_add_u32 s{sT2}, s{sT2}, s{sT1}")
    e.i(f"v_lshlrev_b32 v46, 3, v{vH}")
    e.i("v_lshl_add_u32 v46, v43, 4, v46")
    e.i(f"s_lshl_b32 s{sOFF2}, s{sRB}, 7")
    e.i(f"s_lshl_b32 s{sOFF}, s{sCB}, 3")
    e.i(f"s_add_u32 s{sOFF2}, s{sOFF2}, s{sOFF}")
    e.i(f"v_mov_b32 v18, {hex(WS_KVF)}")
    e.i(f"v_lshrrev_b32 v{vW1}, 2, v1")
    e.i(f"v_lshlrev_b32 v19, 7, v{vW1}")
    e.i(f"v_lshl_add_u32 v19, v{vC}, 4, v19")
    e.i("v_lshlrev_b32 v31, 11, v1")
    e.i(f"v_mul_u32_u24 v{vW1}, 3584, v{vW1}")
    e.i(f"v_lshl_add_u32 v{vW1}, v{vC}, 4, v{vW1}")
    e.i(f"v_lshlrev_b32 v{vT0}, 6, v{vR}")
    e.i(f"v_lshl_add_u32 v{vT0}, v{vCG}, 5, v{vT0}")
    e.i(f"v_lshl_add_u32 v{vT0}, v{vC}, 3, v{vT0}")
    e.i(f"v_lshl_add_u32 v{vT0}, v{vH}, 9, v{vT0}")
    e.i(f"v_add_u32 v{vT0}, s{sRING}, v{vT0}")
    e.i("s_waitcnt lgkmcnt(0)")
    e.i(f"s_mul_i32 s{sTAG}, s{sTAG}, 0x9e3779b1")
    e.i(f"s_add_u32 s{sTAG}, s{sTAG}, 0x7f4a7c15")
    e.i(f"v_mov_b32 v16, s{sTAG}")
    e.lds(f"ds_write_b32 v6, v16 offset:{CTAG}")
    e.wait(vm="wkv")
    stamp(1, "front")
    for ks in range(16):
        e.lds(f"ds_read_b64_tr_b16 {V(128+4*ks,2)}, v45 offset:{ks*1024}")
        e.lds(f"ds_read_b64_tr_b16 {V(130+4*ks,2)}, v45 offset:{ks*1024+128}")
    lds_signal(CXN)
    lds_poll(CRW, 2, sleep=0)
    for ks in range(16):
        e.lds(f"ds_read_b128 {V(64+4*ks,4)}, v44 offset:{ks*2112}", ("k", ks), guard=False)
    lds_signal(CRC)
    e.i(f"s_bitcmp1_b32 s{sCB}, 0")
    e.i("s_cbranch_scc1 L_w7_v")
    lg_save = list(e.lg)
    def kvloop(isV):
        for ks in range(16):
            W, Xf = V(128+4*ks, 4), V(64+4*ks, 4)
            a, b = ("v[20:23]", W) if isV else (W, "v[20:23]")
            e.i(f"{MF16} v[12:15], {a}, {b}, {'0' if ks == 0 else 'v[12:15]'}")
            e.wait(lg=("k", ks))
            a, b = (Xf, W) if isV else (W, Xf)
            e.i(f"{MF16} v[8:11], {a}, {b}, {'0' if ks == 0 else 'v[8:11]'}")
    kvloop(False)
    stamp(8, "front")
    e.i(f"v_lshl_add_u32 v46, v{vCG}, 9, v46")
    e.i("v_lshl_add_u32 v47, v43, 2, v6")
    lds_poll(CST, 2, sleep=0)
    e.i(f"ds_read2_b32 v[24:25], v47 offset0:{STAT//4} offset1:{STAT//4+16}")
    e.wait_all(lg=True)
    for r in range(4):
        e.i(f"v_fmac_f32 v{8+r}, v24, v{12+r}")
    for r in range(4):
        e.i(f"v_mul_f32 v{8+r}, v25, v{8+r}")
    e.i("v_cvt_pk_bf16_f32 v12, v8, v9")
    e.i("v_cvt_pk_bf16_f32 v13, v10, v11")
    e.i(f"buffer_store_dwordx2 v[12:13], v46, {S(sWS,4)}, s{sT2} offen sc1")
    e.i("v_mul_f32 v17, v8, v8")
    for r in range(1, 4):
        e.i(f"v_fmac_f32 v17, v{8+r}, v{8+r}")
    e.i("v_mov_b32 v15, v17")
    e.nop(2)
    e.i("v_permlane32_swap_b32 v17, v15")
    e.i("v_add_f32 v17, v17, v15")
    e.i("v_mov_b32 v15, v17")
    e.nop(2)
    e.i("v_permlane16_swap_b32 v17, v15")
    e.i("v_add_f32 v17, v17, v15")
    for m in ("row_ror:1", "row_ror:2", "row_ror:4", "row_ror:8"):
        e.nop(2)
        e.i(f"v_max_u32_dpp v17, v17, v17 {m} row_mask:0xf bank_mask:0xf")
    e.i("s_branch L_w7_pub")
    e.label("L_w7_v")
    e.lg = lg_save
    kvloop(True)
    stamp(8, "front")
    e.i(f"v_lshl_add_u32 v46, v{vCG}, 8, v46")
    e.i(f"s_add_u32 s{sT2}, s{sT2}, s{sT1}")
    e.i(f"s_add_u32 s{sT2}, s{sT2}, 1024")
    e.i("v_lshl_add_u32 v47, v42, 4, v6")
    lds_poll(CST, 2, sleep=0)
    e.i(f"ds_read_b128 v[24:27], v47 offset:{STAT}")
    e.i(f"ds_read_b128 v[32:35], v47 offset:{STAT+64}")
    e.wait_all(lg=True)
    for r in range(4):
        e.i(f"v_fmac_f32 v{8+r}, v{24+r}, v{12+r}")
    for r in range(4):
        e.i(f"v_mul_f32 v{8+r}, v{32+r}, v{8+r}")
    e.i("v_cvt_pk_bf16_f32 v12, v8, v9")
    e.i("v_cvt_pk_bf16_f32 v13, v10, v11")
    e.i(f"buffer_store_dwordx2 v[12:13], v46, {S(sWS,4)}, s{sT2} offen sc1")
    e.i("v_mov_b32 v17, 0")
    e.label("L_w7_pub")
    stamp(2)
    e.i("s_mov_b64 exec, 1")
    e.wait_all(vm=True)
    e.i(f"buffer_store_dwordx2 v[16:17], v18, {S(sWS,4)}, s{sOFF2} offen sc1")
    e.i("s_mov_b64 exec, -1")
    stamp(9)
    e.c("wait for all 256 K/V producers, pass max |k|^2 on through LDS")
    top, done = lbl("kv"), lbl("kvd")
    e.i(f"s_mov_b32 s{sT1}, {hex(WS_KVF)}")
    e.i(f"s_bfe_u32 s{sT2}, s2, 0x40003")
    e.i(f"s_lshl_b32 s{sT2}, s{sT2}, 7")
    if opt.touch == 3:
        e.c("touch 1/8 of the w1 slice -> L2; the first poll queues behind it")
        if opt.twait == 1:
            lds_poll(CWQ, 1, sleep=1)
        if opt.twait == 2:
            lds_poll(CWI, 1, sleep=1)
        touch_setup(sOFF)
        touches(sOFF, 0, opt.ntouch)
    if opt.kvdelay:
        e.i(f"s_sleep {opt.kvdelay}")
    spin_init()
    e.label(top)
    e.i(f"buffer_load_dwordx4 v[32:35], v19, {S(sWS,4)}, s{sT1} offen sc1")
    e.i(f"buffer_load_dwordx4 v[36:39], v19, {S(sWS,4)}, s{sT1} offen offset:2048 sc1")
    e.wait_all(vm=True)
    if opt.fstart == 3:
        lds_signal(CTL)
    e.i("v_xor_b32 v32, v16, v32")
    e.i("v_xor_b32 v34, v16, v34")
    e.i("v_xor_b32 v36, v16, v36")
    e.i("v_xor_b32 v38, v16, v38")
    e.i("v_or3_b32 v32, v32, v34, v36")
    e.i("v_or_b32 v32, v32, v38")
    e.i("v_cmp_ne_u32 vcc, 0, v32")
    e.i("v_max_u32 v30, v33, v37")
    e.i(f"s_cbranch_vccz {done}")
    spin_tail(top, done, opt.kvsleep)
    e.label(done)
    if opt.kvtouch:
        e.c("touch 64 of the 1024 K/V lines -> L2 (the workgroups of an XCD cover all of them)")
        e.i(f"buffer_load_dword v106, v31, {S(sWS,4)}, s{sT2} offen sc1")
    for m in ("row_ror:1", "row_ror:2", "row_ror:4", "row_ror:8"):
        e.nop(2)
        e.i(f"v_max_u32_dpp v30, v30, v30 {m} row_mask:0xf bank_mask:0xf")
    e.i("v_mov_b32 v29, v30")
    e.nop(2)
    e.i("v_permlane16_swap_b32 v29, v30")
    e.i("v_max_u32 v30, v29, v30")
    e.i("v_mov_b32 v29, v30")
    e.nop(2)
    e.i("v_permlane32_swap_b32 v29, v30")
    e.i("v_max_u32 v30, v29, v30")
    e.lds(f"ds_write_b32 v6, v30 offset:{CKM}")
    lds_signal(CKV)
    stamp(4, "front")
    e.c("workgroup 0 renews the epoch word: every producer has read it by now")
    e.i("s_cmp_lg_u32 s2, 0")
    e.i("s_cbranch_scc1 L_ffn")
    e.i(f"v_mov_b32 v29, {hex(WS_EPOCH)}")
    e.i("s_mov_b64 exec, 1")
    e.i(f"buffer_store_dword v16, v29, {S(sWS,4)}, 0 offen sc1")
    e.i("s_mov_b64 exec, -1")

    ACC = 8
    NR = opt.NR
    AF, BF = 72, 88
    e.label("L_ffn")
    e.vm = []
    e.lg = []
    e.i("s_setprio 3")
    e.i(f"s_mul_i32 s{sOFF}, s{sCB}, 448")
    e.i(f"s_lshl_b32 s{sT1}, s{sTILE}, 6")
    e.i(f"s_add_u32 s{sOFF}, s{sOFF}, s{sT1}")
    e.i(f"s_mul_i32 s{sW2T}, s{sF}, {448*1024}")
    e.i(f"s_lshl_b32 s{sT0}, s{sCB}, 7")
    e.i(f"s_add_u32 s{sW2T}, s{sW2T}, s{sT0}")
    e.i(f"s_and_b32 s{sT0}, s{sRB}, 7")
    e.i(f"s_min_u32 s{sT0}, s{sT0}, 6")
    e.i(f"s_lshl_b32 s{sT0}, s{sT0}, 16")
    e.i(f"s_add_u32 s{sW2T}, s{sW2T}, s{sT0}")
    e.i(f"v_lshlrev_b32 v{vTCH}, 10, v1")
    lds_poll(CXN, 9, sleep=1)
    e.i(f"ds_read_b32 v4, v6 offset:{CTAG}")
    if opt.fstart == 2:
        lds_poll(CG, 4, sleep=2)
    elif opt.fstart == 3:
        lds_poll(CTL, 1, sleep=2)
    elif opt.fstart == 4:
        lds_poll(CKV, 1, sleep=2)
    else:
        lds_poll(CWQ, 1, sleep=1)
    e.i(f"v_readfirstlane_b32 s{sTAG}, v4")
    e.i(f"s_setprio {opt.fprio}")
    stamp(2, "late")
    e.i(f"s_cmp_eq_u32 s{sWAVE}, 7")
    e.i("s_cbranch_scc1 L_ffn1_w7")

    def paced(n):
        if n == 0:
            e.wait_all(lg=True)
        elif len(e.lg) > n:
            e.i(f"s_waitcnt lgkmcnt({n})")
            del e.lg[: len(e.lg) - n]
    def bread(ks, rh):
        e.lds(f"ds_read_b128 {V(BF+8*(ks%2)+4*rh,4)}, v{vXN1 if rh else vXN0} offset:{ks*1056}", ("f", ks))
    def w2_touch():
        if opt.warm2:
            e.c("touch 1/7 of this wave's w2 slice (8 workgroups of an XCD share it) -> L2")
            e.vmem(f"buffer_load_dword v124, v{vTCH}, {S(sW2,4)}, s{sW2T} offen")
    def h_store(tiles):
        lds_signal(CX)
        stamp(3)
        e.i("s_setprio 3")
        e.i(f"s_mul_i32 s{sT0}, s{sRB}, 112")
        e.i(f"s_mul_i32 s{sT1}, s{sCB}, 14")
        e.i(f"s_add_u32 s{sT0}, s{sT0}, s{sT1}")
        e.i(f"s_lshl_b32 s{sT1}, s{sTILE}, 1")
        e.i(f"s_add_u32 s{sT0}, s{sT0}, s{sT1}")
        e.i(f"s_lshl_b32 s{sT0}, s{sT0}, 11")
        e.i(f"s_add_u32 s{sOFF}, s{sT0}, {WS_H}")
        e.i(f"s_add_u32 s{sOFF2}, s{sOFF}, 4096")
        for ct in tiles:
            for rh in range(2):
                a = ACC + 16 * (rh * 2 + ct)
                for j in range(8):
                    e.i(f"v_cvt_pk_bf16_f32 v{a+j}, v{a+2*j}, v{a+2*j+1}")
                for j in range(8):
                    e.i(f"v_pk_max_i16 v{a+j}, v{a+j}, 0")
                for s in range(2):
                    e.vmem(f"buffer_store_dwordx4 {V(a+4*s,4)}, v{vL16}, {S(sWS,4)}, s{sOFF2 if ct else sOFF} offen offset:{(2*s+rh)*1024} sc1", "hst")
    def ring_dma(ks, srd, v, step):
        for a in range(2):
            e.i(f"s_add_u32 m0, s{sRING}, {(ks % NR) * 2048 + a * 1024}")
            e.i("s_nop 0")
            e.vmem(f"buffer_load_dwordx4 v{v}, {S(srd,4)}, s{sOFF} offen lds", ("w", ks))
            e.i(f"s_add_u32 s{sOFF}, s{sOFF}, {step}")
    def tr2(ks, i, tstride):
        ct, t = i >> 1, i & 1
        e.lds(f"ds_read_b64_tr_b16 {V(AF+8*(ks%2)+4*ct+2*t,2)}, v{vT1 if ct else vT0} offset:{(ks%NR)*2048+tstride*t}", ("f", ks))

    e.c("FFN1, waves 4..6: two column tiles x two row halves")
    A3, B3 = 72, 96
    def dma1(ks, a):
        e.i(f"s_add_u32 m0, s{sRING}, {(ks % 4) * 2048 + a * 1024}")
        e.i(f"s_add_u32 s{sOFF}, s{sOFF}, {8*3584}")
        e.vmem(f"buffer_load_dwordx4 v{vW1}, {S(sW1,4)}, s{sOFF} offen lds", ("w", ks))
    def br3(ks, rh):
        e.lds(f"ds_read_b128 {V(B3+8*(ks%3)+4*rh,4)}, v{vXN1 if rh else vXN0} offset:{ks*1056}", ("f", ks))
    def tr3(ks, i):
        ct, t = i >> 1, i & 1
        e.lds(f"ds_read_b64_tr_b16 {V(A3+8*(ks%3)+4*ct+2*t,2)}, v{vT1 if ct else vT0} offset:{(ks%4)*2048+512*t}", ("f", ks))
    e.i(f"s_sub_u32 s{sOFF}, s{sOFF}, {8*3584}")
    for ks in range(4):
        dma1(ks, 0); dma1(ks, 1)
    for ks in range(2):
        br3(ks, 0); br3(ks, 1)
        e.wait(vm=("w", ks))
        for i in range(4):
            tr3(ks, i)
    for ks in range(32):
        s = ks % 3
        e.wait(lg=("f", ks), vm=("w", ks + 2))
        for i in range(4):
            rh, ct = i >> 1, i & 1
            a = ACC + 16 * i
            e.i(f"{MF32} {V(a,16)}, {V(A3+8*s+4*ct,4)}, {V(B3+8*s+4*rh,4)}, {'0' if ks == 0 else V(a,16)}")
            if ct == 0:
                if ks + 4 < 32:
                    dma1(ks + 4, rh)
                if ks + 2 < 32:
                    br3(ks + 2, rh)
            elif ks + 2 < 32:
                tr3(ks + 2, 2 * rh)
                tr3(ks + 2, 2 * rh + 1)
            if ks >= opt.dense and ks + 2 < 32:
                paced(opt.pace1)
        if ks == 27:
            w2_touch()
        if opt.mid and ks in (0, 4, 8, 12, 16, 20):
            stamp(4 + ks // 4)
    if opt.mid:
        lds_signal(CX)
        stamp(3)
        dump_stamps()
        e.i("s_endpgm")
    h_store([0, 1])
    e.i("s_branch L_ffn_join")

    e.label("L_ffn1_w7")
    e.vm = []
    e.lg = []
    e.c("FFN1, wave 7: one column tile")
    def dma7(ks):
        e.i(f"s_add_u32 m0, s{sRING}, {(ks % 4) * 1024}")
        e.i("s_nop 0")
        e.vmem(f"buffer_load_dwordx4 v{vW1}, {S(sW1,4)}, s{sOFF} offen lds", ("w", ks))
        e.i(f"s_add_u32 s{sOFF}, s{sOFF}, {16*3584}")
    def tr7(ks, t):
        e.lds(f"ds_read_b64_tr_b16 {V(AF+8*(ks%2)+2*t,2)}, v{vT0} offset:{(ks%4)*1024+256*t}", ("f", ks))
    for ks in range(4):
        dma7(ks)
    bread(0, 0); bread(0, 1)
    e.wait(vm=("w", 0))
    tr7(0, 0); tr7(0, 1)
    for ks in range(32):
        s = ks % 2
        e.wait(lg=("f", ks))
        if ks + 4 < 32:
            dma7(ks + 4)
        if ks + 1 < 32:
            e.wait(vm=("w", ks + 1))
        for rh in range(2):
            a = ACC + 32 * rh
            e.i(f"{MF32} {V(a,16)}, {V(AF+8*s,4)}, {V(BF+8*s+4*rh,4)}, {'0' if ks == 0 else V(a,16)}")
            if ks + 1 < 32:
                bread(ks + 1, rh)
                tr7(ks + 1, rh)
                if rh == 0:
                    paced(opt.pace1)
        if ks == 27:
            w2_touch()
    h_store([0])

    e.label("L_ffn_join")
    e.i(f"s_lshl_b32 s{sT2}, s{sCB}, 7")
    e.i(f"s_lshl_b32 s{sT1}, s{sF}, 2")
    e.i(f"s_add_u32 s{sT2}, s{sT2}, s{sT1}")
    e.i(f"s_add_u32 s{sT2}, s{sT2}, s{sFLG}")
    e.i("v_mov_b32 v72, 0")
    e.i(f"v_mov_b32 v73, s{sTAG}")
    e.i(f"v_add_u32 v{vSP}, {R1}, v{vSP}")
    e.i(f"s_add_u32 s{sRING}, s{sRING}, {hex((RB2 - R2) & 0xffffffff)}")
    e.i(f"v_lshl_add_u32 v{vTR}, v{vH}, 9, v{vTR}")
    e.i(f"v_add_u32 v{vT0}, s{sRING}, v{vTR}")
    e.i(f"v_xor_b32 v{vT1}, 64, v{vT0}")
    e.i(f"s_and_b32 s{sT1}, s{sF}, 1")
    e.i(f"s_mul_i32 s{sT1}, s{sT1}, {32768+64}")
    e.i(f"v_xor_b32 v120, s{sT1}, v{vTR}")
    e.i("v_xor_b32 v121, 64, v120")
    e.i("v_bfe_u32 v122, v1, 2, 3")
    e.i("v_lshlrev_b32 v122, 7, v122")
    e.i(f"v_lshl_add_u32 v122, v{vC}, 2, v122")
    e.i("v_and_b32 v3, 31, v1")
    e.i("v_lshlrev_b32 v3, 10, v3")
    e.i(f"v_lshl_add_u32 v3, v{vH}, 3, v3")
    e.i(f"v_mov_b32 v0, v{vL16}")
    e.i("v_lshlrev_b32 v123, 9, v1")
    e.i(f"s_lshl_b32 s{sT1}, s{sF}, 12")
    e.i(f"s_add_u32 s{sT1}, s{sT1}, {R1}")
    e.i(f"v_add_u32 v4, s{sT1}, v0")
    e.i(f"s_lshl_b32 s{sT1}, s{sF}, 14")
    e.i(f"s_add_u32 s{sT1}, s{sT1}, {R1}")
    e.i(f"v_add_u32 v2, s{sT1}, v0")
    lds_poll(CA2, 4, sleep=4)
    e.i("s_mov_b64 exec, 1")
    e.wait_all(vm=True)
    e.vmem(f"buffer_store_dword v73, v72, {S(sWS,4)}, s{sT2} offen sc1")
    e.i("s_mov_b64 exec, -1")
    stamp(4, "late")
    e.i(f"s_mul_i32 s{sOFF}, s{sF}, {448*1024}")
    e.i(f"s_lshl_b32 s{sT0}, s{sCB}, 7")
    e.i(f"s_add_u32 s{sOFF}, s{sOFF}, s{sT0}")
    e.i(f"s_cmp_lg_u32 s{sWAVE}, 7")
    e.i("s_cbranch_scc1 L_no_e1")
    e.c("wave 7: blocks 35..50 -> slots 0..15 once attention has read them")
    lds_poll(CP1, 4, sleep=4)
    e.i(f"s_mov_b32 s{sOFF2}, {35*2048}")
    e.i(f"s_mov_b32 s{sT1}, 0")
    kv_dma(16, sOFF2, sT1, 1, 1)
    e.wait_all(vm=True)
    lds_signal(CL1)
    e.label("L_no_e1")
    e.c("blocks 51..63 -> R1 once xn is dead")
    lds_poll(CX, 4, sleep=4)
    e.i(f"s_lshl_b32 s{sOFF2}, s{sF}, 11")
    e.i(f"s_add_u32 s{sOFF2}, s{sOFF2}, {51*2048}")
    e.i(f"s_mul_i32 s{sT1}, s{sF}, {KVS}")
    e.i(f"s_add_u32 s{sT1}, s{sT1}, {R1}")
    e.vm = []
    kv_dma(4, sOFF2, sT1, 4, 4)
    e.i("s_mov_b32 exec_lo, 0xffff")
    e.i("s_mov_b32 exec_hi, 0xffff")
    e.lds(f"ds_write_b128 v{vSP}, {V(vSD,4)} offset:2048")
    e.i("s_mov_b64 exec, -1")
    for ks in range(NR):
        ring_dma(ks, sW2, vSW, 8192)
    stamp(5)
    if opt.exit_at == 5:
        e.wait_all(vm=True)
        lds_signal(CH2)
    exit_if(5)
    e.c("wait for h of the whole row group")
    top, done = lbl("fp"), lbl("fpd")
    spin_init()
    e.label(top)
    e.i(f"buffer_load_dword v72, v122, {S(sWS,4)}, s{sFLG} offen sc1")
    e.wait_all(vm=True)
    e.i(f"v_cmp_ne_u32 vcc, s{sTAG}, v72")
    e.i(f"s_cbranch_vccz {done}")
    spin_tail(top, done, 4)
    e.label(done)
    lds_signal(CH2)
    stamp(6)
    e.i(f"s_setprio {opt.fprio}")
    e.i(f"s_mul_i32 s{sT0}, s{sRB}, 112")
    e.i(f"s_mul_i32 s{sT1}, s{sF}, 28")
    e.i(f"s_add_u32 s{sT0}, s{sT0}, s{sT1}")
    e.i(f"s_lshl_b32 s{sT0}, s{sT0}, 11")
    e.i(f"s_add_u32 s{sOFF2}, s{sT0}, {WS_H}")
    if opt.htouch:
        e.c("touch 1/4 of this wave's h slice (4 workgroups of an XCD share it) -> L2")
        e.i(f"s_lshr_b32 s{sT0}, s{sCB}, 1")
        e.i(f"s_lshl_b32 s{sT0}, s{sT0}, 7")
        e.i(f"s_add_u32 s{sT0}, s{sT0}, s{sOFF2}")
        e.vmem(f"buffer_load_dword v124, v123, {S(sWS,4)}, s{sT0} offen sc1")
        e.i(f"s_add_u32 s{sT0}, s{sT0}, {48*512}")
        e.vmem(f"buffer_load_dword v124, v123, {S(sWS,4)}, s{sT0} offen sc1")
    PH = NR + 1
    HB = 128
    def h_load(ks):
        for rh in range(2):
            r = HB + 8 * (ks % PH) + 4 * rh
            e.vmem(f"buffer_load_dwordx4 {V(r,4)}, v0, {S(sWS,4)}, s{sOFF2} offen offset:{1024*rh} sc1", ("h", ks))
        e.i(f"s_add_u32 s{sOFF2}, s{sOFF2}, 2048")
    def wo_dma():
        e.c("wo slice -> R0 by DMA once attention has left it")
        e.i("s_setprio 3")
        lds_poll(CR0, 4, sleep=8)
        e.i(f"s_lshl_b32 s{sU0}, s{sF}, 17")
        e.i(f"s_lshl_b32 s{sU1}, s{sCB}, 7")
        e.i(f"s_add_u32 s{sU0}, s{sU0}, s{sU1}")
        e.i(f"s_lshl_b32 s{sU1}, s{sF}, 14")
        for i in range(16):
            e.i(f"s_mov_b32 m0, s{sU1}")
            e.i(f"s_add_u32 s{sU1}, s{sU1}, 1024")
            e.vmem(f"buffer_load_dwordx4 v{vSW}, {S(sWO,4)}, s{sU0} offen lds", "wo")
            e.i(f"s_add_u32 s{sU0}, s{sU0}, 8192")
    for ks in range(PH - 1):
        h_load(ks)
    for i in range(4):
        tr2(0, i, 1024)
    for ks in range(28):
        s = ks % 2
        e.wait(lg=("f", ks))
        if ks + NR < 28 and not (opt.nold2 & 1):
            ring_dma(ks + NR, sW2, vSW, 8192)
        if ks + PH - 1 < 28 and not (opt.nold2 & 2):
            h_load(ks + PH - 1)
        e.wait(vm=("h", ks))
        if ks + 1 < 28:
            e.wait(vm=("w", ks + 1))
        for i in range(4):
            rh, ct = i >> 1, i & 1
            a = ACC + 16 * i
            if not opt.nomf2:
                e.i(f"{MF32} {V(a,16)}, {V(AF+8*s+4*ct,4)}, {V(HB+8*(ks%PH)+4*rh,4)}, {'0' if ks == 0 else V(a,16)}")
            if ks + 1 < 28:
                tr2(ks + 1, i, 1024)
                if i < 3 and ks >= opt.dense2:
                    paced(opt.pace2)
        if ks == opt.wo_at:
            wo_dma()
            e.i(f"s_setprio {opt.fprio}")
    stamp(7)
    exit_if(7)
    e.i("s_setprio 3")
    if opt.wo_at >= 28:
        wo_dma()
    e.i(f"s_lshl_b32 s{sOFF2}, s{sCB}, 7")
    e.i(f"s_and_b32 s{sT0}, s{sF}, 1")
    e.i(f"s_lshl_b32 s{sT0}, s{sT0}, 6")
    e.i(f"s_add_u32 s{sOFF2}, s{sOFF2}, s{sT0}")
    e.i(f"s_lshl_b32 s{sT0}, s{sRB}, 1")
    e.i(f"s_lshr_b32 s{sT1}, s{sF}, 1")
    e.i(f"s_add_u32 s{sT0}, s{sT0}, s{sT1}")
    e.i(f"s_lshl_b32 s{sT0}, s{sT0}, 15")
    e.i(f"s_add_u32 s{sOFF2}, s{sOFF2}, s{sT0}")
    G, XR, OF = 104, 120, 40
    e.wait_all(vm=True)
    lds_signal(CWO)
    lds_poll(CWO, 4, sleep=4)
    for i in range(16):
        for c2 in range(2):
            for t in range(2):
                e.lds(f"ds_read_b64_tr_b16 {V(128+8*i+4*c2+2*t,2)}, v{120+c2} offset:{i*2048+1024*t}")
    e.wait_all(lg=True)
    for q in range(4):
        e.vmem(f"buffer_load_dwordx2 {V(XR+2*q,2)}, v3, {S(sX,4)}, s{sOFF2} offen offset:{16*q}", "xr")
    e.i(f"s_lshl_b32 s{sT0}, s{sRB}, 6")
    e.i(f"s_lshr_b32 s{sT1}, s{sF}, 1")
    e.i(f"s_add_u32 s{sT0}, s{sT0}, s{sT1}")
    e.i(f"s_and_b32 s{sT1}, s{sF}, 1")
    e.i(f"s_lshl_b32 s{sT1}, s{sT1}, 5")
    e.i(f"s_add_u32 s{sT0}, s{sT0}, s{sT1}")
    e.i(f"s_lshl_b32 s{sT0}, s{sT0}, 10")
    for k in range(8):
        e.i(f"s_add_u32 s{sOA+k}, s{sT0}, {WS_O + 4096*k}")
    e.i(f"s_lshl_b32 s{sT2}, s{sF}, 12")
    e.i(f"s_add_u32 s{sT1}, s{sT2}, {R2}")
    e.i(f"v_add_u32 v1, s{sT1}, v0")
    e.i(f"s_xor_b32 s{sT2}, s{sT2}, 4096")
    e.i(f"s_add_u32 s{sT2}, s{sT2}, {R2}")
    e.i(f"s_mov_b32 s{sT1}, {hex(f32bits(-math.log2(math.e)))}")
    stamp(8, "late")
    e.c("attention finished in this workgroup: reduce f partials through R1")
    lds_poll(CAD, 4, sleep=2)
    for t in range(4):
        for q in range(4):
            e.lds(f"ds_write_b128 v4, {V(ACC+16*t+4*q,4)} offset:{t*16384+q*1024}")
    lds_signal(CF)
    e.i(f"s_mov_b32 s{sSEG}, 4")
    e.i(f"s_mov_b32 s{sCNT}, {hex(opt.spin)}")
    def freduce():
        lds_poll(CF, 4, sleep=0)
        for src, dst in enumerate((G, 8, 24)):
            for q in range(4):
                e.lds(f"ds_read_b128 {V(dst+4*q,4)}, v2 offset:{src*4096+q*1024}", ("r", src))
        e.wait(lg=("r", 1))
        for r in range(0, 16, 2):
            e.i(f"v_pk_add_f32 {V(G+r,2)}, {V(G+r,2)}, {V(8+r,2)}")
        for q in range(4):
            e.lds(f"ds_read_b128 {V(8+4*q,4)}, v2 offset:{3*4096+q*1024}", ("r", 3))
        e.i(f"s_and_b32 s{sT0}, s{sF}, 2")
        e.i(f"s_lshl_b32 s{sT0}, s{sT0}, 1")
        e.i(f"v_add_u32 v4, s{sT0}, v6")
        e.i(f"v_add_u32 v2, s{sT2}, v0")
        e.wait(lg=("r", 2))
        for r in range(0, 16, 2):
            e.i(f"v_pk_add_f32 {V(G+r,2)}, {V(G+r,2)}, {V(24+r,2)}")
        e.wait_all(lg=True)
        for r in range(0, 16, 2):
            e.i(f"v_pk_add_f32 {V(G+r,2)}, {V(G+r,2)}, {V(8+r,2)}")
        stamp(1, "late")
    if not opt.early_o:
        freduce()
    e.wait_all(vm=True, lg=True)
    e.c("o fragments: load, check that every dword was written, retry the rest if not")
    for g in range(4):
        e.label(f"L_oload_{g}")
        for i in range(4):
            e.i(f"buffer_load_dwordx4 {V(OF+16*g+4*i,4)}, v0, {S(sWS,4)}, s{sOA+2*g+(i>>1)} offen offset:{2048*(i&1)} sc1")
    for g in range(4):
        e.i(f"s_cmp_eq_u32 s{sSEG}, {g}")
        e.i(f"s_cbranch_scc1 L_ochk_{g}")
    e.c("first pass only: g = silu(f) under the load latency")
    if opt.early_o:
        freduce()
    for r in range(16):
        e.i(f"v_mul_f32 v{ACC+r}, s{sT1}, v{G+r}")
    for r in range(16):
        e.i(f"v_exp_f32 v{ACC+r}, v{ACC+r}")
    for r in range(16):
        e.i(f"v_add_f32 v{ACC+r}, 1.0, v{ACC+r}")
    for r in range(16):
        e.i(f"v_rcp_f32 v{ACC+r}, v{ACC+r}")
    for r in range(16):
        e.i(f"v_mul_f32 v{G+r}, v{G+r}, v{ACC+r}")
    for g in range(4):
        e.label(f"L_ochk_{g}")
        e.i(f"s_waitcnt vmcnt({12-4*g})")
        b = OF + 16 * g
        e.i(f"v_max3_u32 v5, v{b}, v{b+1}, v{b+2}")
        for k in range(3, 15, 2):
            e.i(f"v_max3_u32 v5, v5, v{b+k}, v{b+k+1}")
        e.i(f"v_max_u32 v5, v5, v{b+15}")
        e.i("v_cmp_eq_u32 vcc, -1, v5")
        e.i(f"s_cbranch_vccnz L_oretry_{g}")
        e.label(f"L_ogo_{g}")
        for i in range(4):
            for c2 in range(2):
                a = 8 + 16 * c2
                k = 4 * g + i
                e.i(f"{MF32} {V(a,16)}, {V(128+8*k+4*c2,4)}, {V(b+4*i,4)}, {'0' if k == 0 else V(a,16)}")
    stamp(9, "late")
    for t in range(8):
        e.i(f"v_lshlrev_b32 v{128+2*t}, 16, v{XR+t}")
        e.i(f"v_and_b32 v{129+2*t}, s{sMASK}, v{XR+t}")
    e.lg = []
    for q in range(4):
        e.lds(f"ds_write_b128 v1, {V(24+4*q,4)} offset:{q*1024}")
    lds_signal(CE0, va=4)
    lds_poll(CE0, 2, sleep=0, va=4)
    for q in range(4):
        e.lds(f"ds_read_b128 {V(24+4*q,4)}, v2 offset:{q*1024}", ("e", q))
    for q in range(4):
        e.wait(lg=("e", q))
        for r in range(4*q, 4*q+4):
            e.i(f"v_add_f32 v{8+r}, v{8+r}, v{24+r}")
        for r in range(4*q, 4*q+4):
            e.i(f"v_fmac_f32 v{128+r}, v{8+r}, v{G+r}")
        for j in range(2):
            e.i(f"v_cvt_pk_bf16_f32 v{XR+2*q+j}, v{128+4*q+2*j}, v{128+4*q+2*j+1}")
        e.vmem(f"buffer_store_dwordx2 {V(XR+2*q,2)}, v3, {S(sOUT,4)}, s{sOFF2} offen offset:{16*q} {opt.outf}")
    if opt.stamps:
        e.wait_all(vm=True)
        stamp(10)
    if opt.echo:
        a, b = opt.echo
        e.i("s_waitcnt lgkmcnt(0)")
        e.i(f"s_sub_u32 s{sT0}, s{sSTAMP+2*b}, s{sSTAMP+2*a}")
        e.i(f"s_min_u32 s{sT0}, s{sT0}, 10000")
        e.i(f"s_add_u32 s{sT0}, s{sT0}, s{sSTAMP+20}")
        e.label("L_echo")
        e.i("s_memrealtime s[4:5]")
        e.i("s_waitcnt lgkmcnt(0)")
        e.i(f"s_sub_u32 s{sT1}, s4, s{sT0}")
        e.i(f"s_cmp_lt_i32 s{sT1}, 0")
        e.i("s_cbranch_scc1 L_echo")
    dump_stamps()
    e.label("L_end")
    e.i("s_endpgm")
    for g in range(4):
        e.label(f"L_oretry_{g}")
        e.i(f"s_mov_b32 s{sSEG}, {g}")
        e.i(f"s_sub_u32 s{sCNT}, s{sCNT}, 1")
        e.i(f"s_cbranch_scc1 L_ogo_{g}")
        e.i("s_sleep 1")
        e.i(f"s_branch L_oload_{g}")
    e.label("L_code_end")
    return e

def wrap(e):
    hdr = open("cdna_kernels/%s.s.ref" % NAME).read().split("\n")
    top = [l for l in hdr if l.startswith(";") and "@launch" not in l]
    out = "\n".join(top) + f"\n; @launch grid=(256,1,1) block=(512,1,1) lds={LDS_BYTES}\n"
    out += f""".amdgcn_target "amdgcn-amd-amdhsa--gfx950"
.text
.globl {NAME}_kernel
.p2align 8
.type {NAME}_kernel,@function
{NAME}_kernel:
"""
    out += e.text()
    out += f""".section .rodata,"a"
.p2align 6
.amdhsa_kernel {NAME}_kernel
  .amdhsa_next_free_vgpr 256
  .amdhsa_next_free_sgpr 102
  .amdhsa_accum_offset 256
  .amdhsa_group_segment_fixed_size 0
  .amdhsa_kernarg_size 88
  .amdhsa_user_sgpr_count 2
  .amdhsa_user_sgpr_kernarg_segment_ptr 1
  .amdhsa_system_sgpr_workgroup_id_x 1
.end_amdhsa_kernel
"""
    return out

if __name__ == "__main__":
    opt = Opt()
    outp = sys.argv[1]
    for a in sys.argv[2:]:
        k, v = a.split("=")
        assert hasattr(opt, k), k
        setattr(opt, k, type(getattr(opt, k))(eval(v)))
    e = gen(opt)
    bad = check_cfg(e.lines)
    print("hazards:", bad, "lines:", len(e.lines), "lds", LDS_BYTES)
    open(outp, "w").write(wrap(e))
```

```python
import sys, math, struct
from asmlib import *

NAME = "recurrent_scan__grouped_kv_mqa__dense_activation_relu__prompt"
MF32 = "v_mfma_f32_32x32x16_bf16"
MF16 = "v_mfma_f32_16x16x32_bf16"

def f32bits(x):
    return struct.unpack("<I", struct.pack("<f", x))[0]

KVS = 2080
R0 = 0
R1 = 32 * KVS
XN_RH = 64 * 528
R2 = R1 + 2 * XN_RH
R4 = R2 + 28672
LDS_BYTES = R4 + 256
(CXN, CST, CWQ, CQ, CKV, CKM, CTAG, CA, CA2, CX, CH2, CR0, CWO, CAD, CF, CE0, CE1, CRW, CRC, CXI, CP1, CL1, CG, CTL, CWI, CGD, CGD1, CGD2, CGD3, CE7) = [4 * i for i in range(30)]
NE = 7
RB2 = R1 + 16 * KVS
assert RB2 % 128 == 0 and RB2 + 32768 <= R2
STAT = 128
assert R2 % 128 == 0
WS_KV = 0
WS_EPOCH = 0x30000
WS_KVF = 0x38000
WS_HF = 0x40000
WS_O = 0x100000
WS_H = 0x400000
WS_STAMP = 0x1000000
sX, sWQ, sWKV, sWO, sW1, sW2, sOUT, sWS = 8, 12, 16, 20, 24, 28, 32, 40
sMASK, sF, sSPIN, sFLG = 44, 45, 46, 47
sWAVE, sRB, sCB, sT0, sT1, sT2, sOFF, sOFF2, sCNT, sSEG = 70, 71, 72, 73, 74, 75, 76, 77, 78, 79
sRG, sOB, sTAG, sTILE, sRING, sW2T, sU0, sU1, sE1, sE2, sXO = 3, 6, 7, 36, 37, 38, 39, 60, 61, 62, 63
sCH = 64
sOA = 52
sSTAMP = 80
vH, vCG, vR, vC, vTR, vXN0, vXN1, vSW, vW1, vL16, vT0, vT1, vSP = 212, 213, 214, 215, 216, 217, 218, 219, 220, 221, 222, 223, 224
vTCH = 225
vSD = 228

class Opt:
    stamps = False
    front = False
    force_fallback = False
    thr = 40.0
    exit_at = 0
    spin = 0x20000
    pace1 = 0
    pace2 = 0
    kvsleep = 1
    kvdelay = 32
    kvtouch = True
    warm2 = True
    touch = 0
    fstart = 2
    twq = False
    wqdepth = 40
    fprio = 0
    outf = ''
    echo = ()
    NR = 4
    dense = 32
    twait = 1
    nomf2 = False
    nold2 = 0
    ctouch = True
    mid = False
    wo_at = 16
    ntouch = 4
    full = True
    stouch = 0
    late2 = 28
    xr_early = True
    fprio1 = 0
    rot = 14
    la1 = False
    dyn = True
    osleep = 2
    hfl = 'sc1'
    t2at = 99
    wot = True
    dense2 = 0
    htouch = False
    lnclk = False

def gen(opt):
    e = E()
    uid = [0]
    def lbl(p):
        uid[0] += 1
        return f"L_{p}_{uid[0]}"
    def stamp(k, when=None):
        if when == "front" and not opt.front: return
        if when == "late" and opt.front: return
        if opt.stamps:
            e.i(f"s_memrealtime {S(sSTAMP+2*k,2)}")
    def cstamp(k):
        if opt.stamps:
            e.i(f"s_memtime {S(sSTAMP+2*k,2)}")
    def dump_stamps():
        if not opt.stamps or opt.echo:
            return
        e.wait_all(vm=True, lg=True)
        e.i("v_mov_b32 v2, 0")
        e.i("v_mbcnt_lo_u32_b32 v1, -1, 0")
        e.i("v_mbcnt_hi_u32_b32 v1, -1, v1")
        for k in range(22):
            e.i(f"v_writelane_b32 v2, s{sSTAMP+k}, {k}")
        e.i(f"s_getreg_b32 s{sT0}, hwreg(HW_REG_XCC_ID)")
        e.i(f"v_writelane_b32 v2, s{sT0}, 22")
        e.i(f"s_lshl_b32 s{sT0}, s2, 3")
        e.i(f"s_add_u32 s{sT0}, s{sT0}, s{sWAVE}")
        e.i(f"s_lshl_b32 s{sT0}, s{sT0}, 8")
        e.i(f"s_add_u32 s{sT0}, s{sT0}, {WS_STAMP}")
        e.i("v_lshlrev_b32 v3, 2, v1")
        e.i(f"buffer_store_dword v2, v3, {S(sWS,4)}, s{sT0} offen")
    def exit_if(k):
        if opt.exit_at == k:
            dump_stamps()
            e.i("s_endpgm")
    def spin_init(mult=1):
        e.i(f"s_mov_b32 s{sSPIN}, {hex(opt.spin*mult)}")
    def spin_tail(top, done, sleep):
        e.i(f"s_sub_u32 s{sSPIN}, s{sSPIN}, 1")
        e.i(f"s_cbranch_scc1 {done}")
        if sleep:
            e.i(f"s_sleep {sleep}")
        e.i(f"s_branch {top}")
    def lds_signal(off, va=6):
        e.i("s_mov_b64 exec, 1")
        e.lds(f"ds_add_u32 v{va}, v7 offset:{off}")
        e.i("s_mov_b64 exec, -1")
    def lds_poll(off, n, vt=5, sleep=1, va=6):
        top, done = lbl("lp"), lbl("lpd")
        spin_init(16)
        e.label(top)
        e.i(f"ds_read_b32 v{vt}, v{va} offset:{off}")
        e.wait_all(lg=True)
        e.i(f"v_readfirstlane_b32 s{sT0}, v{vt}")
        e.i(f"s_cmp_ge_u32 s{sT0}, {n}")
        e.i(f"s_cbranch_scc1 {done}")
        spin_tail(top, done, sleep)
        e.label(done)
    def kv_dma(n, soff, sl, gstep, lstep):
        for i in range(n):
            e.i(f"s_mov_b32 m0, s{sl}")
            e.i(f"s_add_u32 s{sl}, s{sl}, {lstep*KVS}")
            for p in range(2):
                e.vmem(f"buffer_load_dwordx4 v{vL16}, {S(sWS,4)}, s{soff} offen offset:{1024*p} sc1 lds", ("kv", i))
            e.i(f"s_add_u32 s{soff}, s{soff}, {gstep*2048}")
    def setup():
        e.i(f"s_mov_b64 {S(sWQ,2)}, s[50:51]")
        e.i(f"s_mov_b64 {S(sWO,2)}, s[56:57]")
        e.i(f"s_mov_b64 {S(sW1,2)}, s[60:61]")
        e.i(f"s_mov_b64 {S(sW2,2)}, s[62:63]")
        e.i(f"s_mov_b64 {S(sOUT,2)}, s[64:65]")
        e.i(f"s_mov_b64 {S(sWS,2)}, s[68:69]")
        e.i(f"s_lshl_b32 s{sFLG}, s{sRB}, 10")
        e.i(f"s_add_u32 s{sFLG}, s{sFLG}, {hex(WS_HF)}")
        e.i(f"s_lshl_b32 s{sRING}, s{sF}, 13")
        e.i(f"s_add_u32 s{sRING}, s{sRING}, {R2}")
        e.i(f"s_lshl_b32 s{sT0}, s{sRB}, 5")
        e.i(f"s_lshl_b32 s{sT1}, s{sCB}, 2")
        e.i(f"s_add_u32 s{sT0}, s{sT0}, s{sT1}")
        e.i(f"s_and_b32 s{sT1}, s{sF}, 1")
        e.i(f"s_lshl_b32 s{sXO}, s{sT1}, 6")
        e.i(f"s_lshl_b32 s{sT1}, s{sT1}, 1")
        e.i(f"s_add_u32 s{sT0}, s{sT0}, s{sT1}")
        e.i(f"s_lshl_b32 s{sT0}, s{sT0}, 1")
        e.i(f"s_lshr_b32 s{sT1}, s{sF}, 1")
        e.i(f"s_add_u32 s{sT0}, s{sT0}, s{sT1}")
        e.i(f"s_lshl_b32 s{sT0}, s{sT0}, 10")
        e.i(f"s_add_u32 s{sOB}, s{sT0}, {WS_O}")
        e.i(f"s_lshl_b32 s{sT0}, s{sRB}, 1")
        e.i(f"s_add_u32 s{sT0}, s{sT0}, s{sT1}")
        e.i(f"s_lshl_b32 s{sT0}, s{sT0}, 15")
        e.i(f"s_add_u32 s{sXO}, s{sXO}, s{sT0}")
        e.i(f"s_lshl_b32 s{sT0}, s{sCB}, 7")
        e.i(f"s_add_u32 s{sXO}, s{sXO}, s{sT0}")
        e.i("v_lshrrev_b32 v5, 2, v1")
        e.i("v_and_b32 v5, 4, v5")
        e.i("v_xor_b32 v5, v5, v3")
        e.i("v_lshlrev_b32 v5, 4, v5")
        e.i(f"v_lshl_add_u32 v{vSW}, v2, 10, v5")
        e.i(f"v_mul_u32_u24 v{vW1}, 3584, v2")
        e.i(f"v_add_u32 v{vW1}, v{vW1}, v5")
        e.i(f"v_lshlrev_b32 v{vL16}, 4, v1")
        e.i(f"v_lshrrev_b32 v{vH}, 5, v1")
        e.i(f"v_bfe_u32 v{vCG}, v1, 4, 1")
        e.i(f"v_bfe_u32 v{vR}, v1, 2, 2")
        e.i(f"v_and_b32 v{vC}, 3, v1")
        e.i(f"v_lshrrev_b32 v4, 1, v{vC}")
        e.i(f"v_lshl_add_u32 v4, v{vCG}, 1, v4")
        e.i(f"v_lshlrev_b32 v5, 1, v{vR}")
        e.i("v_and_b32 v5, 4, v5")
        e.i("v_xor_b32 v4, v4, v5")
        e.i(f"v_lshlrev_b32 v{vTR}, 7, v{vR}")
        e.i(f"v_lshl_add_u32 v{vTR}, v4, 4, v{vTR}")
        e.i(f"v_and_b32 v5, 1, v{vC}")
        e.i(f"v_lshl_add_u32 v{vTR}, v5, 3, v{vTR}")
        e.i("v_and_b32 v5, 31, v1")
        e.i(f"v_mul_u32_u24 v{vXN0}, 528, v{vH}")
        e.i(f"v_lshl_add_u32 v{vXN0}, v5, 4, v{vXN0}")
        e.i(f"v_add_u32 v{vXN0}, {R1}, v{vXN0}")
        e.i(f"v_add_u32 v{vXN1}, {XN_RH}, v{vXN0}")
        e.i("v_lshlrev_b32 v205, 10, v5")
        e.i(f"v_lshl_add_u32 v205, v{vH}, 3, v205")
        e.i(f"v_mul_u32_u24 v{vSP}, {KVS}, v5")
        e.i(f"v_lshl_add_u32 v{vSP}, v{vH}, 4, v{vSP}")
        e.i(f"v_subrev_u32 v{vSD}, 1, v{vH}")
        e.i(f"v_and_b32 v{vSD}, 0x3f803f80, v{vSD}")
        for r in range(1, 4):
            e.i(f"v_mov_b32 v{vSD+r}, v{vSD}")
        e.i("v_and_b32 v4, 15, v1")
        e.i(f"v_lshl_add_u32 v4, v{vH}, 4, v4")
        e.i("v_lshlrev_b32 v203, 4, v4")
        e.i(f"v_lshl_add_u32 v{vT0}, v{vH}, 10, v{vTR}")

    e.i("s_cmp_ge_u32 s2, 256")
    e.i("s_cbranch_scc1 L_end")
    e.i("s_load_dwordx16 s[48:63], s[0:1], 0")
    e.i("s_load_dwordx2 s[64:65], s[0:1], 64")
    e.i("s_load_dwordx2 s[68:69], s[0:1], 80")
    stamp(0)
    e.i("v_lshrrev_b32 v2, 6, v0")
    e.i("v_and_b32 v1, 63, v0")
    e.i(f"v_readfirstlane_b32 s{sWAVE}, v2")
    e.c("workgroup -> (row block rb, column block cb); ids that share id&7 share half of the columns and 1/4 of the rows")
    e.i(f"s_and_b32 s{sT0}, s2, 7")
    e.i(f"s_lshr_b32 s{sT1}, s2, 3")
    e.i(f"s_and_b32 s{sCB}, s{sT1}, 3")
    e.i(f"s_lshl_b32 s{sCB}, s{sCB}, 1")
    e.i(f"s_and_b32 s{sRB}, s{sT0}, 1")
    e.i(f"s_add_u32 s{sCB}, s{sCB}, s{sRB}")
    e.i(f"s_lshr_b32 s{sT1}, s{sT1}, 2")
    e.i(f"s_lshr_b32 s{sRB}, s{sT0}, 1")
    e.i(f"s_lshl_b32 s{sRB}, s{sRB}, 3")
    e.i(f"s_add_u32 s{sRB}, s{sRB}, s{sT1}")
    e.i(f"s_mov_b32 s{sMASK}, 0xffff0000")
    e.i(f"s_and_b32 s{sF}, s{sWAVE}, 3")
    e.c("row group of this wave: (w + 2*rq + 3) & 7 -> waves 5,6 hold the 16 rows of this workgroup's K/V tile")
    e.i(f"s_and_b32 s{sRG}, s{sCB}, 6")
    e.i(f"s_add_u32 s{sRG}, s{sRG}, s{sWAVE}")
    e.i(f"s_add_u32 s{sRG}, s{sRG}, 3")
    e.i(f"s_and_b32 s{sRG}, s{sRG}, 7")
    e.i("v_lshrrev_b32 v2, 3, v1")
    e.i("v_and_b32 v3, 7, v1")
    e.i("v_lshlrev_b32 v4, 10, v2")
    e.i("v_lshl_add_u32 v4, v3, 4, v4")
    e.i(f"s_lshl_b32 s{sOFF}, s{sRB}, 3")
    e.i(f"s_add_u32 s{sOFF}, s{sOFF}, s{sRG}")
    e.i(f"s_lshl_b32 s{sOFF}, s{sOFF}, 13")
    for srd, size in ((sX, 2048*512*2), (sWQ, 512*512*2), (sWKV, 512*16*2), (sWO, 512*512*2), (sW1, 512*1792*2),
                      (sW2, 1792*512*2), (sOUT, 2048*512*2), (sWS, 0x10000000)):
        e.i(f"s_mov_b32 s{srd+2}, {hex(size)}")
        e.i(f"s_mov_b32 s{srd+3}, 0x20000")
    e.i(f"v_mov_b32 v6, {R4}")
    e.i("v_mov_b32 v7, 1")
    e.i("v_mov_b64 v[108:109], 0")
    e.i("v_and_b32 v105, 15, v1")
    e.i("v_lshl_add_u32 v105, v105, 3, v6")
    e.i("ds_write_b64 v105, v[108:109]")
    e.i(f"s_mov_b32 s{sSEG}, 0")
    e.i(f"s_cmp_eq_u32 s{sWAVE}, 7")
    e.i("s_cbranch_scc1 L_pre_7")
    e.i("s_waitcnt lgkmcnt(0)")
    e.i(f"s_mov_b64 {S(sX,2)}, s[48:49]")
    e.i(f"s_cmp_eq_u32 s{sWAVE}, 4")
    e.i("s_cbranch_scc1 L_pre_4")
    e.i(f"s_cmp_ge_u32 s{sWAVE}, 5")
    e.i("s_cbranch_scc1 L_pre_first")
    e.i("s_barrier")
    e.label("L_pre_first")
    for i in range(8):
        e.i(f"buffer_load_dwordx4 {V(8+4*i,4)}, v4, {S(sX,4)}, s{sOFF} offen offset:{128*i}")
    e.i("s_cbranch_scc0 L_pre_second")
    e.i("s_barrier")
    e.label("L_pre_second")
    e.i(f"s_cmp_eq_u32 s{sWAVE}, 0")
    e.i("s_cbranch_scc1 L_pre_dbl")
    e.i(f"s_cmp_lg_u32 s{sWAVE}, 3")
    e.i("s_cbranch_scc1 L_pre_n3")
    e.label("L_pre_dbl")
    e.c("waves 0,3 also normalise the rows waves 4,7 would have had (row group ^ 4)")
    e.i(f"s_xor_b32 s{sOFF}, s{sOFF}, 0x8000")
    for i in range(8):
        e.i(f"buffer_load_dwordx4 {V(128+4*i,4)}, v4, {S(sX,4)}, s{sOFF} offen offset:{128*i}")
    e.i(f"s_mov_b32 s{sSEG}, 1")
    e.label("L_pre_n3")
    lds_signal(CXI)
    setup()
    e.i(f"s_cmp_ge_u32 s{sWAVE}, 4")
    e.i("s_cbranch_scc1 L_pre_56")
    S0, S1, P0, P1, OA, OB, NMA, NMB, QA, QB, KB, VB = 32, 48, 64, 72, 80, 96, 112, 128, 144, 148, 152, 168
    vK, vV0, vV1, vVG, vVC = 200, 201, 202, 203, 204
    e.i("s_setprio 1")
    e.i(f"s_and_b32 s{sT1}, s{sWAVE}, 1")
    e.i(f"s_lshl_b32 s{sT2}, s{sT1}, 6")
    e.i(f"v_xor_b32 v{vT0}, s{sT2}, v{vT0}")
    e.i(f"s_lshr_b32 s{sT1}, s{sWAVE}, 1")
    e.i(f"s_mul_i32 s{sT1}, s{sT1}, {XN_RH}")
    e.i(f"v_add_u32 v{vXN0}, s{sT1}, v{vXN0}")
    e.i(f"v_add_u32 v{vK}, {R2}, v{vL16}")
    e.i("v_and_b32 v5, 11, v1")
    e.i("v_cmp_ne_u32 vcc, 0, v5")
    e.i(f"v_mov_b32 v4, {R2+2048}")
    e.i(f"v_mov_b32 v5, {R2+2064}")
    e.i(f"v_add_u32 v{vV0}, {R2+1024}, v{vVG}")
    e.i("v_cndmask_b32 v4, v4, v5, vcc")
    e.i(f"v_cmp_eq_u32 vcc, 0, v{vCG}")
    e.i(f"v_add_u32 v{vV1}, {R2+1536}, v{vVG}")
    for r in range(0, 8, 2):
        e.i(f"v_mov_b64 {V(VB+24+r,2)}, 0")
    e.i(f"v_cndmask_b32 v{vV0}, v4, v{vV0}, vcc")
    e.i(f"v_cndmask_b32 v{vV1}, v4, v{vV1}, vcc")
    if opt.stouch:
        e.c("scalar touches of w1 -> L2: wave w takes line column w, rows (rb&7) + 8i")
        e.i(f"s_and_b32 s{sT0}, s{sRB}, 7")
        e.i(f"s_mul_i32 s{sT0}, s{sT0}, 3584")
        e.i(f"s_mul_i32 s{sT1}, s{sCB}, 448")
        e.i(f"s_add_u32 s{sT0}, s{sT0}, s{sT1}")
        e.i(f"s_lshl_b32 s{sT1}, s{sWAVE}, 7")
        e.i(f"s_add_u32 s{sT0}, s{sT0}, s{sT1}")
        e.i(f"s_add_u32 s4, s60, s{sT0}")
        e.i("s_addc_u32 s5, s61, 0")
        for i in range(opt.stouch):
            e.i(f"s_load_dword s{sU0}, s[4:5], {hex(i*8*3584)}")
    e.i(f"s_cmp_eq_u32 s{sSEG}, 1")
    e.i("s_cbranch_scc1 L_pre_w8")
    e.i("s_waitcnt vmcnt(0)")
    e.label("L_pre_w8")
    e.i("s_waitcnt vmcnt(8)")
    e.i("s_branch L_ln")

    def ffn_setup():
        e.i(f"s_and_b32 s{sTILE}, s{sCB}, 1")
        e.i(f"s_lshl_b32 s{sT1}, s{sF}, 1")
        e.i(f"s_add_u32 s{sTILE}, s{sTILE}, s{sT1}")
        e.i(f"v_add_u32 v{vT0}, s{sRING}, v{vT0}")
        e.i(f"v_xor_b32 v{vT1}, 64, v{vT0}")
    e.label("L_pre_4")
    if opt.ctouch:
        e.c("pull this kernel's code into L2: 16 lines per workgroup, the workgroups of an XCD cover all of it")
        e.i(f"s_getpc_b64 {S(sWKV,2)}")
        e.label("L_pc")
        e.i(f"s_mov_b32 s{sWKV+2}, L_code_end-L_pc")
        e.i(f"s_lshr_b32 s{sT0}, s2, 3")
        e.i(f"s_lshl_b32 s{sT0}, s{sT0}, 11")
        e.i("v_lshlrev_b32 v104, 7, v1")
        e.i("s_mov_b64 exec, 0xffff")
        e.i(f"buffer_load_dword v106, v104, {S(sWKV,4)}, s{sT0} offen")
        e.i("s_mov_b64 exec, -1")
    e.c("wave 4: loader.  wq slice -> R0 by DMA behind the x loads; touches 1/8 of the w1 slice -> L2")
    setup()
    ffn_setup()
    e.i(f"s_lshl_b32 s{sOFF}, s{sCB}, 7")
    e.i(f"s_mov_b32 s{sT1}, 0")
    if opt.rot & 1:
        e.i(f"s_and_b32 s{sT1}, s{sRB}, 7")
        e.i(f"s_lshl_b32 s{sT0}, s{sT1}, 16")
        e.i(f"s_add_u32 s{sOFF}, s{sOFF}, s{sT0}")
        e.i(f"s_lshl_b32 s{sT1}, s{sT1}, 13")
    e.i(f"s_mov_b32 s{sCNT}, 7")
    def touch_setup(so):
        e.i("v_lshrrev_b32 v105, 2, v1")
        e.i("v_mul_u32_u24 v105, 3584, v105")
        e.i(f"v_lshl_add_u32 v105, v{vC}, 7, v105")
        e.i(f"s_and_b32 s{so}, s{sRB}, 7")
        e.i(f"s_mul_i32 s{so}, s{so}, {16*3584}")
        e.i(f"s_mul_i32 s{sT0}, s{sCB}, 448")
        e.i(f"s_add_u32 s{so}, s{so}, s{sT0}")
    def touches(so=sT2, a=0, b=4):
        for i in range(a, b):
            e.i(f"s_add_u32 s{sU0}, s{so}, {i*128*3584}")
            e.i(f"buffer_load_dword v106, v105, {S(sW1,4)}, s{sU0} offen")
    touch_setup(sT2)
    if opt.twq:
        e.i("v_lshlrev_b32 v104, 10, v1")
        e.i(f"s_and_b32 s{sT0}, s{sRB}, 7")
        e.i(f"s_lshl_b32 s{sT0}, s{sT0}, 16")
        e.i(f"s_add_u32 s{sT0}, s{sT0}, s{sOFF}")
    e.i("s_barrier")
    if opt.twq:
        e.i(f"buffer_load_dword v106, v104, {S(sWQ,4)}, s{sT0} offen")
    if opt.touch == 4:
        touches()
    lds_poll(CXI, 6, sleep=0)
    if opt.touch == 5:
        touches()
    e.label("L_wq_loop")
    for i in range(8):
        e.i(f"s_mov_b32 m0, s{sT1}")
        e.i(f"s_add_u32 s{sT1}, s{sT1}, 1024")
        e.i(f"buffer_load_dwordx4 v{vSW}, {S(sWQ,4)}, s{sOFF} offen lds")
        e.i(f"s_add_u32 s{sOFF}, s{sOFF}, 8192")
    e.i(f"s_and_b32 s{sOFF}, s{sOFF}, 0x7ffff")
    e.i(f"s_and_b32 s{sT1}, s{sT1}, 0xffff")
    e.i(f"s_waitcnt vmcnt({opt.wqdepth})")
    e.i(f"s_sub_u32 s{sCNT}, s{sCNT}, 1")
    e.i("s_cbranch_scc0 L_wq_loop")
    lds_signal(CWI)
    stamp(1, "front")
    if opt.touch == 1:
        touches()
    e.i(f"s_waitcnt vmcnt({4 if opt.touch == 1 else 0})")
    lds_signal(CWQ)
    stamp(8, "front")
    if opt.touch == 2 or (opt.touch == 3 and opt.ntouch < 4):
        lds_poll(CG, 4, sleep=2)
        touches(sT2, opt.ntouch if opt.touch == 3 else opt.stouch // 16, 4)
    e.i("s_branch L_ffn")

    e.label("L_pre_56")
    ffn_setup()
    e.i("s_setprio 3")
    e.i("s_waitcnt vmcnt(0)")

    e.label("L_ln")
    stamp(1, "front")
    if opt.lnclk:
        stamp(6); cstamp(9)
    X = 40
    A = 112
    e.i(f"s_lshr_b32 s{sT0}, s{sRG}, 2")
    e.i(f"s_mul_i32 s{sT0}, s{sT0}, {XN_RH}")
    e.i(f"s_and_b32 s{sT1}, s{sRG}, 3")
    e.i(f"s_lshl_b32 s{sT1}, s{sT1}, 7")
    e.i(f"s_add_u32 s{sT0}, s{sT0}, s{sT1}")
    e.i(f"s_add_u32 s{sT0}, s{sT0}, {R1}")
    e.i("v_mul_u32_u24 v122, 528, v3")
    e.i("v_lshl_add_u32 v122, v2, 4, v122")
    e.i(f"v_add_u32 v122, s{sT0}, v122")
    e.i(f"s_cmp_lt_u32 s{sWAVE}, 5")
    e.i("s_cbranch_scc1 L_ln_a")
    e.c("waves 5,6: raw rows -> LDS for the K/V wave")
    for i in range(8):
        e.i(f"ds_write_b128 v122, {V(8+4*i,4)} offset:{4224*i}")
    lds_signal(CRW)
    e.label("L_ln_a")
    e.i("v_mov_b32 v110, 0x3f803f80")
    e.i("v_mov_b64 v[112:113], 0")
    e.i("v_mov_b32 v108, 0x3f80")
    e.i("v_mov_b32 v109, 0x3f800000")
    for t in range(32):
        e.i(f"v_dot2c_f32_bf16 v{A+(t&1)}, v{8+t}, v110")
    def reduce_lanes():
        for m in ("quad_perm:[1,0,3,2]", "quad_perm:[2,3,0,1]", "row_half_mirror"):
            e.nop(2)
            e.i(f"v_add_f32_dpp v{A}, v{A}, v{A} {m} row_mask:0xf bank_mask:0xf")
    e.nop(3)
    e.i(f"v_add_f32 v{A}, v{A}, v{A+1}")
    reduce_lanes()
    e.i(f"v_mul_f32 v120, {hex(f32bits(-1.0/512))}, v{A}")
    for t in range(32):
        e.i(f"v_dot2_f32_bf16 v{X+2*t}, v{8+t}, v108, v120")
        e.i(f"v_dot2_f32_bf16 v{X+2*t+1}, v{8+t}, v109, v120")
    for t in range(32):
        a = t % 4
        if t < 4:
            e.i(f"v_pk_mul_f32 {V(A+2*a,2)}, {V(X+2*t,2)}, {V(X+2*t,2)}")
        else:
            e.i(f"v_pk_fma_f32 {V(A+2*a,2)}, {V(X+2*t,2)}, {V(X+2*t,2)}, {V(A+2*a,2)}")
    e.i(f"v_pk_add_f32 {V(A,2)}, {V(A,2)}, {V(A+2,2)}")
    e.i(f"v_pk_add_f32 {V(A+4,2)}, {V(A+4,2)}, {V(A+6,2)}")
    e.i(f"v_pk_add_f32 {V(A,2)}, {V(A,2)}, {V(A+4,2)}")
    e.i(f"v_add_f32 v{A}, v{A}, v{A+1}")
    reduce_lanes()
    e.i(f"v_mov_b32 v119, {hex(f32bits(1e-5))}")
    e.i(f"v_fmac_f32 v119, {hex(f32bits(1.0/512))}, v{A}")
    e.i("v_rsq_f32 v118, v119")
    e.i(f"s_cmp_lt_u32 s{sWAVE}, 5")
    e.i("s_cbranch_scc1 L_ln_b")
    e.c("waves 5,6: hand the row statistics to the K/V wave")
    e.i(f"s_lshl_b32 s{sT0}, s{sWAVE}, 5")
    e.i(f"s_add_u32 s{sT0}, s{sT0}, {R4 + STAT - 160}")
    e.i(f"v_lshl_add_u32 v111, v2, 2, s{sT0}")
    e.i("ds_write2_b32 v111, v120, v118 offset1:16")
    lds_signal(CST)
    lds_poll(CRC, 1, sleep=0)
    e.label("L_ln_b")
    e.lg = []
    for i in range(8):
        for t in range(4*i, 4*i+4):
            e.i(f"v_pk_mul_f32 {V(X+2*t,2)}, {V(X+2*t,2)}, v[118:119] op_sel_hi:[1,0]")
        for t in range(4*i, 4*i+4):
            e.i(f"v_cvt_pk_bf16_f32 v{8+t}, v{X+2*t}, v{X+2*t+1}")
        e.lds(f"ds_write_b128 v122, {V(8+4*i,4)} offset:{4224*i}")
    lds_signal(CXN)
    e.i(f"s_cmp_eq_u32 s{sSEG}, 0")
    e.i("s_cbranch_scc1 L_ln_done")
    e.i(f"s_mov_b32 s{sSEG}, 0")
    e.i(f"s_xor_b32 s{sRG}, s{sRG}, 4")
    e.i("s_waitcnt vmcnt(0)")
    for t in range(0, 32, 2):
        e.i(f"v_mov_b64 {V(8+t,2)}, {V(128+t,2)}")
    e.i("s_branch L_ln")
    e.label("L_ln_done")
    stamp(8, "front")
    if opt.lnclk:
        stamp(7); cstamp(10)
    e.i(f"s_cmp_ge_u32 s{sWAVE}, 4")
    e.i("s_cbranch_scc1 L_ffn")

    e.vm = []
    lds_poll(CWQ, 1, sleep=0)
    for q in range(4):
        e.i(f"buffer_load_dwordx2 {V(232+2*q,2)}, v205, {S(sX,4)}, s{sXO} offen offset:{16*q}")
    lds_poll(CXN, 9, sleep=0)
    stamp(2, "front")
    fill = [f"v_mov_b64 {V(OA+r,2)}, 0" for r in range(0, 32, 2)] + [f"v_mov_b64 {V(P1+r,2)}, 0" for r in range(0, 8, 2)]
    e.c("Q projection: wave w -> head pair hp=w&1, row half rh=w>>1")
    def qreads(ks):
        s = ks % 4
        e.lds(f"ds_read_b64_tr_b16 {V(32+8*s,2)}, v{vT0} offset:{ks*2048}", ("q", ks))
        e.lds(f"ds_read_b64_tr_b16 {V(34+8*s,2)}, v{vT0} offset:{ks*2048+512}", ("q", ks))
        e.lds(f"ds_read_b128 {V(36+8*s,4)}, v{vXN0} offset:{ks*1056}", ("q", ks))
    for ks in range(4):
        qreads(ks)
    for ks in range(32):
        s = ks % 4
        e.wait(lg=("q", ks))
        e.i(f"{MF32} v[8:23], {V(32+8*s,4)}, {V(36+8*s,4)}, {'0' if ks == 0 else 'v[8:23]'}")
        if ks + 4 < 32:
            qreads(ks + 4)
        if ks == 27:
            lds_signal(CQ)
        if fill:
            e.i(fill.pop(0))
    e.i(f"s_mov_b32 s{sT1}, {hex(f32bits(0.25*math.log2(math.e)))}")
    e.i(f"v_mov_b64 {V(S1+14,2)}, 0")
    e.nop(10)
    for r in range(16):
        e.i(f"v_mul_f32 v{8+r}, s{sT1}, v{8+r}")
    for hd in range(2):
        b = 8 + 8*hd
        e.i(f"v_mul_f32 v{24+hd}, v{b}, v{b}")
        for r in range(1, 8):
            e.i(f"v_fmac_f32 v{24+hd}, v{b+r}, v{b+r}")
    e.i("v_mov_b32 v26, v24")
    e.i("v_mov_b32 v27, v25")
    for hd in range(2):
        for j in range(4):
            e.i(f"v_cvt_pk_bf16_f32 v{QA+4*hd+j}, v{8+8*hd+2*j}, v{8+8*hd+2*j+1}")
    e.i("v_permlane32_swap_b32 v24, v26")
    e.i("v_permlane32_swap_b32 v25, v27")
    e.i("v_add_f32 v24, v24, v26")
    e.i("v_add_f32 v25, v25, v27")
    stamp(3, "front")
    lds_poll(CKV, 2, sleep=0)
    stamp(4)
    e.lds(f"ds_read_b32 v30, v6 offset:{CKM}")
    e.wait_all(lg=True)
    e.c("stand-in for the row max: |q| * max|k| >= max_k q.k ; used only while it cannot be far above the true max")
    e.i("v_mul_f32 v24, v24, v30")
    e.i("v_mul_f32 v25, v25, v30")
    e.i("v_sqrt_f32 v24, v24")
    e.i("v_sqrt_f32 v25, v25")
    e.i(f"s_mov_b32 s{sT1}, {hex(f32bits(opt.thr))}")
    e.i("v_max_f32 v26, v24, v25")
    e.i(f"v_cmp_nge_f32 vcc, s{sT1}, v26")
    e.i("v_cmp_u_f32 s[4:5], v24, v25")
    e.i("s_or_b64 s[4:5], s[4:5], vcc")
    if opt.force_fallback:
        e.i("s_branch L_fallback")
    else:
        e.i("s_cbranch_scc1 L_fallback")
    e.label("L_att_start")
    for r in range(16):
        e.i(f"v_sub_f32 v{NMA+r}, 0, v24")
        e.i(f"v_sub_f32 v{NMB+r}, 0, v25")
    lds_poll(CE7, 1, sleep=0)
    for j in range(3):
        e.lds(f"ds_read_b128 {V(KB+4*j,4)}, v{vK} offset:{j*KVS}", ("a", j))
        e.lds(f"ds_read_b128 {V(VB+8*j,4)}, v{vV0} offset:{j*KVS}")
        e.lds(f"ds_read_b128 {V(VB+8*j+4,4)}, v{vV1} offset:{j*KVS}")
    e.wait(lg=("a", 0))
    e.i(f"{MF32} {V(S0,16)}, {V(KB,4)}, {V(QA,4)}, {V(NMA,16)}")
    e.nop(11)
    e.wait_all(lg=True)
    stamp(5)
    def em(t):
        if t.endswith(":"): e.raw(t)
        else: e.i(t)
    def step(cur, nxt, pc, pp, K, Q, NM, O, Vb, after, noqk=False):
        for i in range(16):
            e.i(f"v_exp_f32 v{cur+i}, v{cur+i}")
            if i == 0:
                e.i(f"v_cvt_pk_bf16_f32 v{pp+7}, v{nxt+14}, v{nxt+15}")
                if not noqk:
                    e.i(f"{MF32} {V(nxt,16)}, {V(K,4)}, {V(Q,4)}, {V(NM,16)}")
                for t in after[0]: em(t)
            if i >= 2 and i % 2 == 0:
                j = (i - 2) // 2
                e.i(f"v_cvt_pk_bf16_f32 v{pc+j}, v{cur+2*j}, v{cur+2*j+1}")
            if i == 5:
                e.i(f"{MF32} {V(O,16)}, {V(Vb,4)}, {V(pp,4)}, {V(O,16)}")
                for t in after[1]: em(t)
            if i == 10:
                e.i(f"{MF32} {V(O,16)}, {V(Vb+4,4)}, {V(pp+4,4)}, {V(O,16)}")
                for t in after[2]: em(t)
    def shift(d):
        return [f"v_add_u32 v{v}, {hex(d & 0xffffffff)}, v{v}" for v in (vK, vV0, vV1)]
    if opt.full:
        slow = []
        SIG = lambda off: ["s_mov_b64 exec, 1", f"ds_add_u32 v6, v7 offset:{off}", "s_mov_b64 exec, -1"]
        def CHK(name, off, n):
            slow.append((name, off, n))
            return [f"v_readfirstlane_b32 s{sT0}, v5", f"s_cmp_ge_u32 s{sT0}, {n}", f"s_cbranch_scc0 L_slow_{name}", f"L_back_{name}:"]
        PRE = lambda off: [f"ds_read_b32 v5, v6 offset:{off}"]
        J0 = NE - 3
        for j in range(64):
            b3 = (j + 3) % 4
            slot = j + 3 if j < J0 else (j - J0 if j < J0 + 32 else (j - J0 - 32 if j < J0 + 48 else j - J0 - 48))
            off = slot * KVS
            rd = j + 3 < 64
            A = [[f"ds_read_b128 {V(KB+4*b3,4)}, v{vK} offset:{off}"] if rd else [], [], []]
            Bq = [[f"ds_read_b128 {V(VB+8*b3,4)}, v{vV0} offset:{off}"] if rd else [],
                  [f"ds_read_b128 {V(VB+8*b3+4,4)}, v{vV1} offset:{off}"] if rd else [],
                  [f"s_waitcnt lgkmcnt({2 if rd else 0})"] if j % 2 == 1 and j < 62 else []]
            assert J0 % 2 == 0
            if j == J0 - 1:
                A[2] += PRE(CA)
                Bq[2] += CHK("a", CA, 4) + SIG(CG) + shift(-R2)
            if j == J0 + 7:
                A[2] += PRE(CA2)
                Bq[2] += CHK("a2", CA2, 4)
            if j == J0 + 15:
                Bq[2] += SIG(CP1)
            if j == 31 and opt.stamps and not opt.lnclk:
                Bq[2] += [f"s_memrealtime {S(sSTAMP+12,2)}", f"s_memtime {S(sSTAMP+18,2)}"]
            if j == J0 + 31:
                A[2] += PRE(CL1)
                Bq[2] += CHK("l1", CL1, 1)
            if j == J0 + 47:
                A[2] += PRE(CH2)
                Bq[2] += CHK("h2", CH2, 4) + SIG(CR0) + shift(R1)
            if j == 62:
                A[1] += ["s_waitcnt vmcnt(0)"]
            step(S0, S1, P0, P1, KB+4*(j % 4), QB, NMB, OB, VB+8*((j-1) % 4), A)
            step(S1, S0, P1, P0, KB+4*((j+1) % 4), QA, NMA, OA, VB+8*(j % 4), Bq, noqk=(j == 63))
    e.label("L_att_done")
    if not opt.lnclk:
        stamp(7)
        cstamp(10)
    e.i("s_nop 0")
    e.i(f"v_cvt_pk_bf16_f32 v{P1+7}, v{S1+14}, v{S1+15}")
    e.i(f"{MF32} {V(OB,16)}, {V(VB+24,4)}, {V(P1,4)}, {V(OB,16)}")
    e.i("s_nop 0")
    e.i(f"{MF32} {V(OB,16)}, {V(VB+28,4)}, {V(P1+4,4)}, {V(OB,16)}")
    e.i(f"v_rcp_f32 v24, v{OA+8}")
    e.lg = []
    lds_signal(CAD)
    for hd, O in enumerate((OA, OB)):
        if hd == 1:
            e.i(f"v_rcp_f32 v24, v{OB+8}")
            e.nop(1)
        for r in range(8):
            e.i(f"v_mul_f32 v{O+r}, v{O+r}, v24")
        for j in range(4):
            e.i(f"v_cvt_pk_bf16_f32 v{8+4*hd+j}, v{O+2*j}, v{O+2*j+1}")
        for j in range(4):
            e.i(f"v_min_u32 v{8+4*hd+j}, -2, v{8+4*hd+j}")
        e.vmem(f"buffer_store_dwordx4 {V(8+4*hd,4)}, v{vL16}, {S(sWS,4)}, s{sOB} offen offset:{2048*hd} sc1")
    stamp(8, "late")
    e.c("output projection: wave w -> row half w>>1, K half w&1, both column tiles (own tile first)")
    G, XR, OF = 104, 120, 40
    e.i(f"v_mov_b32 v0, v{vL16}")
    e.i("v_mov_b32 v3, v205")
    e.i(f"s_and_b32 s{sT1}, s{sF}, 1")
    e.i(f"s_lshr_b32 s{sT2}, s{sF}, 1")
    e.i(f"s_lshl_b32 s{sT0}, s{sRB}, 6")
    e.i(f"s_add_u32 s{sT0}, s{sT0}, s{sT2}")
    e.i(f"s_lshl_b32 s{sT2}, s{sT1}, 5")
    e.i(f"s_add_u32 s{sT0}, s{sT0}, s{sT2}")
    e.i(f"s_lshl_b32 s{sT0}, s{sT0}, 10")
    e.i(f"s_add_u32 s{sOFF}, s{sT0}, {WS_O}")
    for g in range(4):
        e.i(f"s_add_u32 s{sCH+g}, s{sCB}, {1+g}")
        e.i(f"s_and_b32 s{sCH+g}, s{sCH+g}, 3")
        e.i(f"s_lshl_b32 s{sCH+g}, s{sCH+g}, 13")
        e.i(f"s_add_u32 s{sOA+2*g}, s{sOFF}, s{sCH+g}")
        e.i(f"s_add_u32 s{sOA+2*g+1}, s{sOA+2*g}, 4096")
    lds_poll(CWO, 4, sleep=1)
    def oloads(g):
        for i in range(4):
            e.i(f"buffer_load_dwordx4 {V(OF+16*g+4*i,4)}, v0, {S(sWS,4)}, s{sOA+2*g+(i>>1)} offen offset:{2048*(i&1)} sc1")
    for g in range(3):
        oloads(g)
    e.i(f"s_mul_i32 s{sT0}, s{sT1}, {32768+64}")
    e.i(f"v_lshl_add_u32 v2, v{vH}, 9, v{vTR}")
    e.i(f"v_xor_b32 v2, s{sT0}, v2")
    for g in range(4):
        e.i(f"v_add_u32 v{G+2*g}, s{sCH+g}, v2")
        e.i(f"v_xor_b32 v{G+2*g+1}, 64, v{G+2*g}")
    for q in range(4):
        e.i(f"v_mov_b64 {V(XR+2*q,2)}, {V(232+2*q,2)}")
    for i in range(16):
        for c2 in range(2):
            for t in range(2):
                e.lds(f"ds_read_b64_tr_b16 {V(128+8*i+4*c2+2*t,2)}, v{G+2*(i//4)+c2} offset:{(i%4)*2048+1024*t}")
    e.i(f"s_lshl_b32 s{sT2}, s{sF}, 12")
    e.i(f"s_add_u32 s{sT1}, s{sT2}, {R1}")
    e.i(f"v_add_u32 v1, s{sT1}, v0")
    e.i(f"s_xor_b32 s{sT2}, s{sT2}, 4096")
    e.i(f"s_add_u32 s{sT2}, s{sT2}, {R1}")
    e.i(f"v_add_u32 v2, s{sT2}, v0")
    e.i(f"s_and_b32 s{sT2}, s{sF}, 2")
    e.i(f"s_lshl_b32 s{sT2}, s{sT2}, 1")
    e.i(f"v_add_u32 v4, s{sT2}, v6")
    e.i(f"s_mov_b32 s{sSEG}, 0")
    e.i(f"s_mov_b32 s{sCNT}, {hex(opt.spin)}")
    lds_poll(CAD, 4, sleep=0)
    e.i("s_waitcnt vmcnt(12)")
    stamp(1, "late")
    oloads(3)
    e.c("o fragments: check that every dword was written; if not, re-read that group until it is, then refresh the rest")
    def ocheck(g):
        b = OF + 16 * g
        e.i(f"v_max3_u32 v5, v{b}, v{b+1}, v{b+2}")
        for k in range(3, 15, 2):
            e.i(f"v_max3_u32 v5, v5, v{b+k}, v{b+k+1}")
        e.i(f"v_max_u32 v5, v5, v{b+15}")
        e.i("v_cmp_eq_u32 vcc, -1, v5")
    for g in range(4):
        e.i(f"s_waitcnt vmcnt({12-4*g})")
        b = OF + 16 * g
        ocheck(g)
        e.i(f"s_cbranch_vccnz L_oretry_{g}")
        e.label(f"L_ogo_{g}")
        for i in range(4):
            for c2 in (1, 0):
                a = 8 + 16 * c2
                k = 4 * g + i
                e.i(f"{MF32} {V(a,16)}, {V(128+8*k+4*c2,4)}, {V(b+4*i,4)}, {'0' if k == 0 else V(a,16)}")
    stamp(2, "late")
    for t in range(8):
        e.i(f"v_lshlrev_b32 v{128+2*t}, 16, v{XR+t}")
        e.i(f"v_and_b32 v{129+2*t}, s{sMASK}, v{XR+t}")
    e.lg = []
    for q in range(4):
        e.lds(f"ds_write_b128 v1, {V(24+4*q,4)} offset:{q*1024}")
    lds_signal(CE0, va=4)
    e.i(f"s_lshl_b32 s{sT1}, s{sF}, 2")
    e.i(f"v_add_u32 v1, s{sT1}, v6")
    e.i(f"s_lshl_b32 s{sT1}, s{sF}, 11")
    e.i(f"s_add_u32 s{sT1}, s{sT1}, {R2 + 16384}")
    e.i(f"v_add_u32 v0, s{sT1}, v0")
    lds_poll(CGD, 1, sleep=0, va=1)
    e.lds("ds_read_b128 v[40:43], v0")
    e.lds("ds_read_b128 v[44:47], v0 offset:1024")
    lds_poll(CE0, 2, sleep=0, va=4)
    for q in range(4):
        e.lds(f"ds_read_b128 {V(24+4*q,4)}, v2 offset:{q*1024}", ("e", q))
    for t in range(8):
        e.i(f"v_lshlrev_b32 v{G+2*t}, 16, v{40+t}")
        e.i(f"v_and_b32 v{G+1+2*t}, s{sMASK}, v{40+t}")
    for q in range(4):
        e.wait(lg=("e", q))
        for r in range(4*q, 4*q+4):
            e.i(f"v_add_f32 v{8+r}, v{8+r}, v{24+r}")
        for r in range(4*q, 4*q+4):
            e.i(f"v_fmac_f32 v{128+r}, v{8+r}, v{G+r}")
        for j in range(2):
            e.i(f"v_cvt_pk_bf16_f32 v{XR+2*q+j}, v{128+4*q+2*j}, v{128+4*q+2*j+1}")
        e.vmem(f"buffer_store_dwordx2 {V(XR+2*q,2)}, v3, {S(sOUT,4)}, s{sXO} offen offset:{16*q}")
    if opt.stamps:
        e.wait_all(vm=True)
        stamp(3, "late")
    dump_stamps()
    e.i("s_endpgm")
    for g in range(4):
        e.label(f"L_oretry_{g}")
        e.i(f"s_sub_u32 s{sCNT}, s{sCNT}, 1")
        e.i(f"s_cbranch_scc1 L_odone_{g}")
        if opt.osleep:
            e.i(f"s_sleep {opt.osleep}")
        oloads(g)
        e.i("s_waitcnt vmcnt(0)")
        ocheck(g)
        e.i(f"s_cbranch_vccnz L_oretry_{g}")
        e.label(f"L_odone_{g}")
        for g2 in range(g + 1, 4):
            oloads(g2)
        e.i(f"s_branch L_ogo_{g}")
    if opt.full:
        for name, off, n in slow:
            e.label(f"L_slow_{name}")
            lds_poll(off, n, sleep=0)
            e.i(f"s_branch L_back_{name}")

    e.label("L_fallback")
    e.i("v_mov_b32 v24, 0xff800000")
    e.i("v_mov_b32 v25, 0xff800000")
    e.i(f"s_mov_b32 s{sT1}, 0")
    e.i(f"s_mov_b32 s{sCNT}, 31")
    e.label("L_fb_loop")
    e.i(f"buffer_load_dwordx4 v[8:11], v{vL16}, {S(sWS,4)}, s{sT1} offen sc1")
    e.i(f"buffer_load_dwordx4 v[12:15], v{vL16}, {S(sWS,4)}, s{sT1} offen offset:2048 sc1")
    e.i(f"s_add_u32 s{sT1}, s{sT1}, 4096")
    e.i("s_waitcnt vmcnt(0)")
    for k in range(2):
        e.i(f"{MF32} {V(NMA,16)}, {V(8+4*k,4)}, {V(QA,4)}, 0")
        e.i(f"{MF32} {V(NMB,16)}, {V(8+4*k,4)}, {V(QB,4)}, 0")
        e.nop(12)
        for r in range(0, 16, 2):
            e.i(f"v_max3_f32 v24, v24, v{NMA+r}, v{NMA+r+1}")
        for r in range(0, 16, 2):
            e.i(f"v_max3_f32 v25, v25, v{NMB+r}, v{NMB+r+1}")
    e.i(f"s_sub_u32 s{sCNT}, s{sCNT}, 1")
    e.i("s_cbranch_scc0 L_fb_loop")
    e.i("v_mov_b32 v26, v24")
    e.i("v_mov_b32 v27, v25")
    e.nop(2)
    e.i("v_permlane32_swap_b32 v24, v26")
    e.i("v_permlane32_swap_b32 v25, v27")
    e.i("v_max_f32 v24, v24, v26")
    e.i("v_max_f32 v25, v25, v27")
    e.i("s_branch L_att_start")

    e.label("L_pre_7")
    e.vm = []
    e.lg = []
    e.i("s_setprio 3")
    e.i(f"s_bitcmp1_b32 s{sCB}, 0")
    e.i("v_lshlrev_b32 v40, 4, v1")
    e.i("s_waitcnt lgkmcnt(0)")
    e.i(f"s_cselect_b64 {S(sWKV,2)}, s[54:55], s[52:53]")
    e.i(f"s_cselect_b32 s{sTILE}, 0, 6")
    e.i(f"s_load_dword s{sTAG}, s[68:69], {hex(WS_EPOCH)}")
    e.i(f"s_mov_b64 {S(sX,2)}, s[48:49]")
    for i in range(4):
        e.i(f"s_mov_b32 m0, {R2 + 4096*i}")
        e.i(f"s_mov_b32 s{sT0}, {4096*i}")
        for k in range(4):
            e.vmem(f"buffer_load_dwordx4 v40, {S(sWKV,4)}, s{sT0} offen offset:{1024*k} lds", "wkv")
    e.i("s_barrier")
    setup()
    e.i("v_lshrrev_b32 v42, 4, v1")
    e.i("v_and_b32 v43, 15, v1")
    e.i(f"s_lshr_b32 s{sT0}, s{sCB}, 2")
    e.i(f"s_mul_i32 s{sT0}, s{sT0}, {XN_RH}")
    e.i(f"s_bfe_u32 s{sT1}, s{sCB}, 0x10001")
    e.i(f"s_lshl_b32 s{sT1}, s{sT1}, 8")
    e.i(f"s_add_u32 s{sT0}, s{sT0}, s{sT1}")
    e.i(f"s_add_u32 s{sT0}, s{sT0}, {R1}")
    e.i("v_mul_u32_u24 v44, 528, v42")
    e.i("v_lshl_add_u32 v44, v43, 4, v44")
    e.i(f"v_add_u32 v44, s{sT0}, v44")
    e.i("v_lshlrev_b32 v45, 8, v42")
    e.i(f"v_lshl_add_u32 v45, v{vR}, 5, v45")
    e.i(f"v_lshl_add_u32 v45, v{vC}, 3, v45")
    e.i(f"v_add_u32 v45, {R2}, v45")
    for r in range(4):
        e.i(f"v_mov_b32 v{20+r}, 0x3f803f80")
    e.i(f"s_lshl_b32 s{sT2}, s{sRB}, 1")
    e.i(f"s_lshr_b32 s{sOFF2}, s{sCB}, 2")
    e.i(f"s_add_u32 s{sT2}, s{sT2}, s{sOFF2}")
    e.i(f"s_lshl_b32 s{sT2}, s{sT2}, 11")
    e.i(f"s_add_u32 s{sT2}, s{sT2}, s{sT1}")
    e.i(f"v_lshlrev_b32 v46, 3, v{vH}")
    e.i("v_lshl_add_u32 v46, v43, 4, v46")
    e.i(f"s_lshl_b32 s{sOFF2}, s{sRB}, 7")
    e.i(f"s_lshl_b32 s{sOFF}, s{sCB}, 3")
    e.i(f"s_add_u32 s{sOFF2}, s{sOFF2}, s{sOFF}")
    e.i(f"v_mov_b32 v18, {hex(WS_KVF)}")
    e.i(f"v_lshrrev_b32 v{vW1}, 2, v1")
    e.i(f"v_lshlrev_b32 v19, 7, v{vW1}")
    e.i(f"v_lshl_add_u32 v19, v{vC}, 4, v19")
    e.i("v_lshlrev_b32 v31, 11, v1")
    e.i(f"v_mul_u32_u24 v{vW1}, 3584, v{vW1}")
    e.i(f"v_lshl_add_u32 v{vW1}, v{vC}, 4, v{vW1}")
    e.i(f"v_lshlrev_b32 v{vT0}, 6, v{vR}")
    e.i(f"v_lshl_add_u32 v{vT0}, v{vCG}, 5, v{vT0}")
    e.i(f"v_lshl_add_u32 v{vT0}, v{vC}, 3, v{vT0}")
    e.i(f"v_lshl_add_u32 v{vT0}, v{vH}, 9, v{vT0}")
    e.i(f"v_add_u32 v{vT0}, s{sRING}, v{vT0}")
    e.i("s_waitcnt lgkmcnt(0)")
    e.i(f"s_mul_i32 s{sTAG}, s{sTAG}, 0x9e3779b1")
    e.i(f"s_add_u32 s{sTAG}, s{sTAG}, 0x7f4a7c15")
    e.i(f"v_mov_b32 v16, s{sTAG}")
    e.lds(f"ds_write_b32 v6, v16 offset:{CTAG}")
    e.wait(vm="wkv")
    stamp(1, "front")
    for ks in range(16):
        e.lds(f"ds_read_b64_tr_b16 {V(128+4*ks,2)}, v45 offset:{ks*1024}")
        e.lds(f"ds_read_b64_tr_b16 {V(130+4*ks,2)}, v45 offset:{ks*1024+128}")
    lds_signal(CXN)
    e.i(f"v_add_u32 v41, {R2}, v{vSP}")
    e.i(f"s_mov_b32 exec_lo, {hex((1 << NE) - 1)}")
    e.i(f"s_mov_b32 exec_hi, {hex((1 << NE) - 1)}")
    e.lds(f"ds_write_b128 v41, {V(vSD,4)} offset:2048")
    e.i("s_mov_b64 exec, -1")
    lds_poll(CRW, 2, sleep=0)
    for ks in range(16):
        e.lds(f"ds_read_b128 {V(64+4*ks,4)}, v44 offset:{ks*2112}", ("k", ks), guard=False)
    lds_signal(CRC)
    e.i(f"s_bitcmp1_b32 s{sCB}, 0")
    e.i("s_cbranch_scc1 L_w7_v")
    lg_save = list(e.lg)
    def kvloop(isV):
        for ks in range(16):
            W, Xf = V(128+4*ks, 4), V(64+4*ks, 4)
            a, b = ("v[20:23]", W) if isV else (W, "v[20:23]")
            e.i(f"{MF16} v[12:15], {a}, {b}, {'0' if ks == 0 else 'v[12:15]'}")
            e.wait(lg=("k", ks))
            a, b = (Xf, W) if isV else (W, Xf)
            e.i(f"{MF16} v[8:11], {a}, {b}, {'0' if ks == 0 else 'v[8:11]'}")
    kvloop(False)
    stamp(8, "front")
    e.i(f"v_lshl_add_u32 v46, v{vCG}, 9, v46")
    e.i("v_lshl_add_u32 v47, v43, 2, v6")
    lds_poll(CST, 2, sleep=0)
    e.i(f"ds_read2_b32 v[24:25], v47 offset0:{STAT//4} offset1:{STAT//4+16}")
    e.wait_all(lg=True)
    for r in range(4):
        e.i(f"v_fmac_f32 v{8+r}, v24, v{12+r}")
    for r in range(4):
        e.i(f"v_mul_f32 v{8+r}, v25, v{8+r}")
    e.i("v_cvt_pk_bf16_f32 v12, v8, v9")
    e.i("v_cvt_pk_bf16_f32 v13, v10, v11")
    e.i(f"buffer_store_dwordx2 v[12:13], v46, {S(sWS,4)}, s{sT2} offen sc1")
    e.i("v_mul_f32 v17, v8, v8")
    for r in range(1, 4):
        e.i(f"v_fmac_f32 v17, v{8+r}, v{8+r}")
    e.i("v_mov_b32 v15, v17")
    e.nop(2)
    e.i("v_permlane32_swap_b32 v17, v15")
    e.i("v_add_f32 v17, v17, v15")
    e.i("v_mov_b32 v15, v17")
    e.nop(2)
    e.i("v_permlane16_swap_b32 v17, v15")
    e.i("v_add_f32 v17, v17, v15")
    for m in ("row_ror:1", "row_ror:2", "row_ror:4", "row_ror:8"):
        e.nop(2)
        e.i(f"v_max_u32_dpp v17, v17, v17 {m} row_mask:0xf bank_mask:0xf")
    e.i("s_branch L_w7_pub")
    e.label("L_w7_v")
    e.lg = lg_save
    kvloop(True)
    stamp(8, "front")
    e.i(f"v_lshl_add_u32 v46, v{vCG}, 8, v46")
    e.i(f"s_add_u32 s{sT2}, s{sT2}, s{sT1}")
    e.i(f"s_add_u32 s{sT2}, s{sT2}, 1024")
    e.i("v_lshl_add_u32 v47, v42, 4, v6")
    lds_poll(CST, 2, sleep=0)
    e.i(f"ds_read_b128 v[24:27], v47 offset:{STAT}")
    e.i(f"ds_read_b128 v[32:35], v47 offset:{STAT+64}")
    e.wait_all(lg=True)
    for r in range(4):
        e.i(f"v_fmac_f32 v{8+r}, v{24+r}, v{12+r}")
    for r in range(4):
        e.i(f"v_mul_f32 v{8+r}, v{32+r}, v{8+r}")
    e.i("v_cvt_pk_bf16_f32 v12, v8, v9")
    e.i("v_cvt_pk_bf16_f32 v13, v10, v11")
    e.i(f"buffer_store_dwordx2 v[12:13], v46, {S(sWS,4)}, s{sT2} offen sc1")
    e.i("v_mov_b32 v17, 0")
    e.label("L_w7_pub")
    stamp(2)
    e.i("s_mov_b64 exec, 1")
    e.wait_all(vm=True)
    e.i(f"buffer_store_dwordx2 v[16:17], v18, {S(sWS,4)}, s{sOFF2} offen sc1")
    e.i("s_mov_b64 exec, -1")
    stamp(9)
    e.c("wait for all 256 K/V producers, pass max |k|^2 on through LDS")
    top, done = lbl("kv"), lbl("kvd")
    e.i(f"s_mov_b32 s{sT1}, {hex(WS_KVF)}")
    e.i(f"s_bfe_u32 s{sT2}, s2, 0x40003")
    e.i(f"s_lshl_b32 s{sT2}, s{sT2}, 7")
    if opt.touch == 3:
        e.c("touch 1/8 of the w1 slice -> L2; the first poll queues behind it")
        if opt.twait == 1:
            lds_poll(CWQ, 1, sleep=1)
        if opt.twait == 2:
            lds_poll(CWI, 1, sleep=1)
        touch_setup(sOFF)
        touches(sOFF, 0, opt.ntouch)
    if opt.kvdelay:
        e.i(f"s_sleep {opt.kvdelay}")
    spin_init()
    e.label(top)
    e.i(f"buffer_load_dwordx4 v[32:35], v19, {S(sWS,4)}, s{sT1} offen sc1")
    e.i(f"buffer_load_dwordx4 v[36:39], v19, {S(sWS,4)}, s{sT1} offen offset:2048 sc1")
    e.wait_all(vm=True)
    if opt.fstart == 3:
        lds_signal(CTL)
    e.i("v_xor_b32 v32, v16, v32")
    e.i("v_xor_b32 v34, v16, v34")
    e.i("v_xor_b32 v36, v16, v36")
    e.i("v_xor_b32 v38, v16, v38")
    e.i("v_or3_b32 v32, v32, v34, v36")
    e.i("v_or_b32 v32, v32, v38")
    e.i("v_cmp_ne_u32 vcc, 0, v32")
    e.i("v_max_u32 v30, v33, v37")
    e.i(f"s_cbranch_vccz {done}")
    spin_tail(top, done, opt.kvsleep)
    e.label(done)
    lds_signal(CKV)
    e.c("blocks 0..6 -> early slots in R2")
    e.i(f"s_mov_b32 s{sOFF2}, 0")
    e.i(f"s_mov_b32 s{sT1}, {R2}")
    kv_dma(NE, sOFF2, sT1, 1, 1)
    if opt.kvtouch:
        e.c("touch 64 of the 1024 K/V lines -> L2 (the workgroups of an XCD cover all of them)")
        e.i(f"buffer_load_dword v106, v31, {S(sWS,4)}, s{sT2} offen sc1")
    for m in ("row_ror:1", "row_ror:2", "row_ror:4", "row_ror:8"):
        e.nop(2)
        e.i(f"v_max_u32_dpp v30, v30, v30 {m} row_mask:0xf bank_mask:0xf")
    e.i("v_mov_b32 v29, v30")
    e.nop(2)
    e.i("v_permlane16_swap_b32 v29, v30")
    e.i("v_max_u32 v30, v29, v30")
    e.i("v_mov_b32 v29, v30")
    e.nop(2)
    e.i("v_permlane32_swap_b32 v29, v30")
    e.i("v_max_u32 v30, v29, v30")
    e.lds(f"ds_write_b32 v6, v30 offset:{CKM}")
    lds_signal(CKV)
    stamp(4, "front")
    e.i(f"s_waitcnt vmcnt({1 if opt.kvtouch else 0})")
    lds_signal(CE7)
    e.c("workgroup 0 renews the epoch word: every producer has read it by now")
    e.i("s_cmp_lg_u32 s2, 0")
    e.i("s_cbranch_scc1 L_ffn")
    e.i(f"v_mov_b32 v29, {hex(WS_EPOCH)}")
    e.i("s_mov_b64 exec, 1")
    e.i(f"buffer_store_dword v16, v29, {S(sWS,4)}, 0 offen sc1")
    e.i("s_mov_b64 exec, -1")

    ACC = 8
    NR = opt.NR
    AF, BF = 72, 88
    e.label("L_ffn")
    e.vm = []
    e.lg = []
    e.i("s_setprio 3")
    e.i(f"s_mul_i32 s{sOFF}, s{sCB}, 448")
    e.i(f"s_lshl_b32 s{sT1}, s{sTILE}, 6")
    e.i(f"s_add_u32 s{sOFF}, s{sOFF}, s{sT1}")
    e.c("k order is rotated by 4*(rb&7) steps: the 8 workgroups of an XCD that share this w1 slice take turns missing")
    e.i(f"s_add_u32 s{sE1}, s{sOFF}, {512*3584}")
    e.i(f"s_and_b32 s{sT1}, s{sRB}, {7 if opt.rot & 2 else 0}")
    e.i(f"s_mul_i32 s{sT0}, s{sT1}, {64*3584}")
    e.i(f"s_add_u32 s{sOFF}, s{sOFF}, s{sT0}")
    for g in range(8):
        e.i(f"s_add_u32 s{sT0}, s{sT1}, {g}")
        e.i(f"s_and_b32 s{sT0}, s{sT0}, 7")
        e.i(f"s_mul_i32 s{sT0}, s{sT0}, {4*1056}")
        e.i(f"v_add_u32 v{232+2*g}, s{sT0}, v{vXN0}")
        e.i(f"v_add_u32 v{233+2*g}, s{sT0}, v{vXN1}")
    e.i(f"s_mul_i32 s{sW2T}, s{sF}, {448*1024}")
    e.i(f"s_lshl_b32 s{sT0}, s{sCB}, 7")
    e.i(f"s_add_u32 s{sW2T}, s{sW2T}, s{sT0}")
    e.i(f"s_and_b32 s{sT0}, s{sRB}, 7")
    e.i(f"s_min_u32 s{sT0}, s{sT0}, 6")
    e.i(f"s_lshl_b32 s{sT0}, s{sT0}, 16")
    e.i(f"s_add_u32 s{sW2T}, s{sW2T}, s{sT0}")
    e.i(f"v_lshlrev_b32 v{vTCH}, 10, v1")
    lds_poll(CXN, 9, sleep=1)
    e.i(f"ds_read_b32 v4, v6 offset:{CTAG}")
    e.i("v_mov_b64 v[208:209], -1")
    e.i("v_mov_b64 v[210:211], -1")
    e.i(f"s_lshl_b32 s{sOFF2}, s{sF}, 11")
    e.i(f"s_add_u32 s{sOFF2}, s{sOFF2}, {NE*2048}")
    e.i(f"s_mul_i32 s{sT1}, s{sF}, {KVS}")
    lds_poll(CKV, 1, sleep=1)
    e.i(f"v_readfirstlane_b32 s{sTAG}, v4")
    lds_poll(CQ, 4, sleep=0)
    e.c("blocks 7..38 -> slots 0..31; mark the o fragments of attention wave f as not yet written")
    kv_dma(8, sOFF2, sT1, 4, 4)
    e.lds(f"ds_write_b128 v{vSP}, {V(vSD,4)} offset:2048")
    for hd in range(2):
        e.vmem(f"buffer_store_dwordx4 v[208:211], v{vL16}, {S(sWS,4)}, s{sOB} offen offset:{2048*hd} sc1", "clr")
    e.wait(vm=("kv", 1))
    lds_signal(CA)
    e.wait_all(vm=True)
    lds_signal(CA2)
    lds_poll(CG, 4, sleep=1)
    e.i(f"s_setprio {opt.fprio1}")
    stamp(2, "late")
    e.i(f"s_cmp_eq_u32 s{sWAVE}, 7")
    e.i("s_cbranch_scc1 L_ffn1_w7")

    def paced(n):
        if n == 0:
            e.wait_all(lg=True)
        elif len(e.lg) > n:
            e.i(f"s_waitcnt lgkmcnt({n})")
            del e.lg[: len(e.lg) - n]
    def bread(ks, rh):
        e.lds(f"ds_read_b128 {V(BF+8*(ks%2)+4*rh,4)}, v{232+2*(ks//4)+rh} offset:{(ks%4)*1056}", ("f", ks))
    def wrap1():
        e.i(f"s_cmp_ge_u32 s{sOFF}, s{sE1}")
        e.i(f"s_cselect_b32 s{sT0}, {512*3584}, 0")
        e.i(f"s_sub_u32 s{sOFF}, s{sOFF}, s{sT0}")
    def w2_touch():
        if opt.warm2:
            e.c("touch 1/7 of this wave's w2 slice (8 workgroups of an XCD share it) -> L2")
            e.vmem(f"buffer_load_dword v124, v{vTCH}, {S(sW2,4)}, s{sW2T} offen")
    def h_store(tiles):
        lds_signal(CX)
        stamp(3)
        e.i("s_setprio 3")
        e.i(f"s_mul_i32 s{sT0}, s{sRB}, 112")
        e.i(f"s_mul_i32 s{sT1}, s{sCB}, 14")
        e.i(f"s_add_u32 s{sT0}, s{sT0}, s{sT1}")
        e.i(f"s_lshl_b32 s{sT1}, s{sTILE}, 1")
        e.i(f"s_add_u32 s{sT0}, s{sT0}, s{sT1}")
        e.i(f"s_lshl_b32 s{sT0}, s{sT0}, 11")
        e.i(f"s_add_u32 s{sOFF}, s{sT0}, {WS_H}")
        e.i(f"s_add_u32 s{sOFF2}, s{sOFF}, 4096")
        for ct in tiles:
            for rh in range(2):
                a = ACC + 16 * (rh * 2 + ct)
                for j in range(8):
                    e.i(f"v_cvt_pk_bf16_f32 v{a+j}, v{a+2*j}, v{a+2*j+1}")
                for j in range(8):
                    e.i(f"v_pk_max_i16 v{a+j}, v{a+j}, 0")
                for s in range(2):
                    e.vmem(f"buffer_store_dwordx4 {V(a+4*s,4)}, v{vL16}, {S(sWS,4)}, s{sOFF2 if ct else sOFF} offen offset:{(2*s+rh)*1024} sc1", "hst")
    def ring_dma(ks, srd, v, step):
        for a in range(2):
            e.i(f"s_add_u32 m0, s{sRING}, {(ks % NR) * 2048 + a * 1024}")
            e.i("s_nop 0")
            e.vmem(f"buffer_load_dwordx4 v{v}, {S(srd,4)}, s{sOFF} offen lds", ("w", ks))
            e.i(f"s_add_u32 s{sOFF}, s{sOFF}, {step}")
    def tr2(ks, i, tstride):
        ct, t = i >> 1, i & 1
        e.lds(f"ds_read_b64_tr_b16 {V(AF+8*(ks%2)+4*ct+2*t,2)}, v{vT1 if ct else vT0} offset:{(ks%NR)*2048+tstride*t}", ("f", ks))

    e.c("FFN1, waves 4..6: two column tiles x two row halves")
    A3, B3 = 72, 96
    LA = 1 if opt.la1 else 2
    def dma1(ks, a):
        e.i(f"s_add_u32 m0, s{sRING}, {(ks % 4) * 2048 + a * 1024}")
        e.i("s_nop 0")
        e.vmem(f"buffer_load_dwordx4 v{vW1}, {S(sW1,4)}, s{sOFF} offen lds", ("w", ks))
        e.i(f"s_add_u32 s{sOFF}, s{sOFF}, {8*3584}")
        if a == 1 and ks % 4 == 3:
            wrap1()
    def br3(ks, rh):
        e.lds(f"ds_read_b128 {V(B3+8*(ks%3)+4*rh,4)}, v{232+2*(ks//4)+rh} offset:{(ks%4)*1056}", ("f", ks))
    def tr3(ks, i):
        ct, t = i >> 1, i & 1
        e.lds(f"ds_read_b64_tr_b16 {V(A3+8*(ks%3)+4*ct+2*t,2)}, v{vT1 if ct else vT0} offset:{(ks%4)*2048+512*t}", ("f", ks))
    for ks in range(4):
        dma1(ks, 0); dma1(ks, 1)
    for ks in range(LA):
        br3(ks, 0); br3(ks, 1)
        e.wait(vm=("w", ks))
        for i in range(4):
            tr3(ks, i)
    for ks in range(32):
        s = ks % 3
        e.wait(lg=("f", ks))
        n = ks + LA
        dense = ks < opt.dense
        for i in range(4):
            rh, ct = i >> 1, i & 1
            a = ACC + 16 * i
            e.i(f"{MF32} {V(a,16)}, {V(A3+8*s+4*ct,4)}, {V(B3+8*s+4*rh,4)}, {'0' if ks == 0 else V(a,16)}")
            if i == 0 and ks + 4 < 32:
                dma1(ks + 4, 0)
                dma1(ks + 4, 1)
            if n < 32:
                if i == 0:
                    br3(n, 0); br3(n, 1)
                if i == 1:
                    e.wait(vm=("w", n))
                if dense:
                    if i in (1, 2):
                        tr3(n, 2 * i - 2); tr3(n, 2 * i - 1)
                else:
                    if i == 1:
                        tr3(n, 0); tr3(n, 1)
                    if i >= 2:
                        tr3(n, i)
                    paced(opt.pace1)
        if ks == opt.t2at:
            w2_touch()
        if opt.mid and ks in (0, 4, 8, 12, 16, 20):
            stamp(4 + ks // 4)
    if opt.mid:
        lds_signal(CX)
        stamp(3)
        dump_stamps()
        e.i("s_endpgm")
    h_store([0, 1])
    e.i("s_branch L_ffn_join")

    e.label("L_ffn1_w7")
    e.vm = []
    e.lg = []
    e.c("FFN1, wave 7: one column tile")
    def dma7(ks):
        e.i(f"s_add_u32 m0, s{sRING}, {(ks % 4) * 1024}")
        e.i("s_nop 0")
        e.vmem(f"buffer_load_dwordx4 v{vW1}, {S(sW1,4)}, s{sOFF} offen lds", ("w", ks))
        e.i(f"s_add_u32 s{sOFF}, s{sOFF}, {16*3584}")
        if ks % 4 == 3:
            wrap1()
    def tr7(ks, t):
        e.lds(f"ds_read_b64_tr_b16 {V(AF+8*(ks%2)+2*t,2)}, v{vT0} offset:{(ks%4)*1024+256*t}", ("f", ks))
    for ks in range(4):
        dma7(ks)
    bread(0, 0); bread(0, 1)
    e.wait(vm=("w", 0))
    tr7(0, 0); tr7(0, 1)
    for ks in range(32):
        s = ks % 2
        e.wait(lg=("f", ks))
        if ks + 4 < 32:
            dma7(ks + 4)
        if ks + 1 < 32:
            e.wait(vm=("w", ks + 1))
        for rh in range(2):
            a = ACC + 32 * rh
            e.i(f"{MF32} {V(a,16)}, {V(AF+8*s,4)}, {V(BF+8*s+4*rh,4)}, {'0' if ks == 0 else V(a,16)}")
            if ks + 1 < 32:
                bread(ks + 1, rh)
                tr7(ks + 1, rh)
                if rh == 0:
                    paced(opt.pace1)
        if ks == opt.t2at:
            w2_touch()
    h_store([0])

    e.label("L_ffn_join")
    e.i(f"s_lshl_b32 s{sT2}, s{sCB}, 7")
    e.i(f"s_lshl_b32 s{sT1}, s{sF}, 2")
    e.i(f"s_add_u32 s{sT2}, s{sT2}, s{sT1}")
    e.i(f"s_add_u32 s{sT2}, s{sT2}, s{sFLG}")
    e.i("v_mov_b32 v72, 0")
    e.i(f"v_mov_b32 v73, s{sTAG}")
    e.i(f"v_add_u32 v{vSP}, {R1}, v{vSP}")
    e.i(f"s_add_u32 s{sRING}, s{sRING}, {hex((RB2 - R2) & 0xffffffff)}")
    e.i(f"v_lshl_add_u32 v{vTR}, v{vH}, 9, v{vTR}")
    e.c("accumulator i holds output tile i ^ f, so that accumulator 0 is this wave's own tile")
    e.i(f"s_and_b32 s{sT1}, s{sF}, 1")
    e.i(f"s_lshl_b32 s{sT1}, s{sT1}, 6")
    e.i(f"v_xor_b32 v{vT0}, s{sT1}, v{vTR}")
    e.i(f"v_add_u32 v{vT0}, s{sRING}, v{vT0}")
    e.i(f"v_xor_b32 v{vT1}, 64, v{vT0}")
    e.i(f"s_lshr_b32 s{sT1}, s{sF}, 1")
    e.i(f"s_lshl_b32 s{sT1}, s{sT1}, 10")
    e.i(f"v_add_u32 v0, s{sT1}, v{vL16}")
    e.i("v_xor_b32 v2, 0x400, v0")
    e.i("v_bfe_u32 v122, v1, 2, 3")
    e.i("v_lshlrev_b32 v122, 7, v122")
    e.i(f"v_lshl_add_u32 v122, v{vC}, 2, v122")
    e.i("v_lshlrev_b32 v123, 9, v1")
    lds_poll(CA2, 4, sleep=4)
    e.i("s_mov_b64 exec, 1")
    e.wait_all(vm=True)
    e.vmem(f"buffer_store_dword v73, v72, {S(sWS,4)}, s{sT2} offen sc1")
    e.i("s_mov_b64 exec, -1")
    stamp(4, "late")
    if opt.t2at > 31:
        w2_touch()
    if opt.wot:
        e.c("touch 16 lines of the wo slice (32 waves of an XCD share it) -> L2")
        e.i(f"s_and_b32 s{sT0}, s{sRB}, 7")
        e.i(f"s_lshl_b32 s{sT0}, s{sT0}, 2")
        e.i(f"s_add_u32 s{sT0}, s{sT0}, s{sF}")
        e.i(f"s_lshl_b32 s{sT0}, s{sT0}, 14")
        e.i(f"s_lshl_b32 s{sT1}, s{sCB}, 7")
        e.i(f"s_add_u32 s{sT0}, s{sT0}, s{sT1}")
        e.i("s_mov_b64 exec, 0xffff")
        e.vmem(f"buffer_load_dword v124, v{vTCH}, {S(sWO,4)}, s{sT0} offen")
        e.i("s_mov_b64 exec, -1")
    e.i(f"s_mul_i32 s{sOFF}, s{sF}, {448*1024}")
    e.i(f"s_lshl_b32 s{sT0}, s{sCB}, 7")
    e.i(f"s_add_u32 s{sOFF}, s{sOFF}, s{sT0}")
    e.i(f"s_mov_b32 s{sE1}, s{sOFF}")
    e.i(f"s_cmp_lg_u32 s{sWAVE}, 7")
    e.i("s_cbranch_scc1 L_no_e1")
    e.c("wave 7: blocks 39..54 -> slots 0..15 once attention has read them")
    lds_poll(CP1, 4, sleep=4)
    e.i(f"s_mov_b32 s{sOFF2}, {(NE+32)*2048}")
    e.i(f"s_mov_b32 s{sT1}, 0")
    kv_dma(16, sOFF2, sT1, 1, 1)
    e.wait_all(vm=True)
    lds_signal(CL1)
    e.label("L_no_e1")
    e.c("blocks 51..63 -> R1 once xn is dead")
    lds_poll(CX, 4, sleep=4)
    e.i(f"s_lshl_b32 s{sOFF2}, s{sF}, 11")
    e.i(f"s_add_u32 s{sOFF2}, s{sOFF2}, {(NE+48)*2048}")
    e.i(f"s_mul_i32 s{sT1}, s{sF}, {KVS}")
    e.i(f"s_add_u32 s{sT1}, s{sT1}, {R1}")
    e.vm = []
    kv_dma(3, sOFF2, sT1, 4, 4)
    e.i("s_mov_b32 exec_lo, 0xffff")
    e.i("s_mov_b32 exec_hi, 0xffff")
    e.lds(f"ds_write_b128 v{vSP}, {V(vSD,4)} offset:2048")
    e.i("s_mov_b64 exec, -1")
    stamp(5)
    if opt.exit_at == 5:
        e.wait_all(vm=True)
        lds_signal(CH2)
    exit_if(5)
    e.c("wait until one of the two producers of this wave's K range has published h; start with that one")
    top, done, other = lbl("fp"), lbl("fpd"), lbl("fpo")
    e.i(f"s_lshr_b32 s{sT2}, s{sCB}, 2")
    e.i(f"s_lshl_b32 s{sT1}, s{sF}, 3")
    spin_init()
    e.label(top)
    e.i(f"buffer_load_dword v72, v122, {S(sWS,4)}, s{sFLG} offen sc1")
    e.wait_all(vm=True)
    e.i(f"v_cmp_ne_u32 vcc, s{sTAG}, v72")
    if opt.dyn:
        e.i(f"s_lshr_b32 s{sT0}, vcc_lo, s{sT1}")
        e.i(f"s_lshl_b32 s{sU0}, s{sT2}, 2")
        e.i(f"s_lshr_b32 s{sU1}, s{sT0}, s{sU0}")
        e.i(f"s_and_b32 s{sU1}, s{sU1}, 15")
        e.i(f"s_cbranch_scc0 {done}")
        e.i(f"s_xor_b32 s{sT2}, s{sT2}, 1")
        e.i(f"s_xor_b32 s{sU0}, s{sU0}, 4")
        e.i(f"s_lshr_b32 s{sU1}, s{sT0}, s{sU0}")
        e.i(f"s_and_b32 s{sU1}, s{sU1}, 15")
        e.i(f"s_cbranch_scc0 {done}")
        e.i(f"s_xor_b32 s{sT2}, s{sT2}, 1")
    else:
        e.i(f"s_cbranch_vccz {done}")
    spin_tail(top, done, 4)
    e.label(done)
    lds_signal(CH2)
    stamp(6)
    e.i(f"s_setprio {opt.fprio}")
    e.i(f"s_bfe_u32 s{sT0}, s{sCB}, 0x10001")
    e.i(f"s_lshl_b32 s{sT2}, s{sT2}, 1")
    e.i(f"s_add_u32 s{sT2}, s{sT2}, s{sT0}")
    for c in range(4):
        e.i(f"s_xor_b32 s{sCH+c}, s{sT2}, {c}")
        e.i(f"s_mul_i32 s{sCH+c}, s{sCH+c}, {7*2048}")
    e.i(f"s_mul_i32 s{sT0}, s{sRB}, 112")
    e.i(f"s_mul_i32 s{sT1}, s{sF}, 28")
    e.i(f"s_add_u32 s{sT0}, s{sT0}, s{sT1}")
    e.i(f"s_lshl_b32 s{sT0}, s{sT0}, 11")
    e.i(f"s_add_u32 s{sE2}, s{sT0}, {WS_H}")
    def set_w(c):
        e.i(f"s_lshl_b32 s{sOFF}, s{sCH+c}, 3")
        e.i(f"s_add_u32 s{sOFF}, s{sOFF}, s{sE1}")
    def set_h(c):
        e.i(f"s_add_u32 s{sOFF2}, s{sCH+c}, s{sE2}")
    set_w(0)
    set_h(0)
    if opt.htouch:
        e.c("touch 1/4 of this wave's h slice (4 workgroups of an XCD share it) -> L2")
        e.i(f"s_lshr_b32 s{sT0}, s{sCB}, 1")
        e.i(f"s_lshl_b32 s{sT0}, s{sT0}, 7")
        e.i(f"s_add_u32 s{sT0}, s{sT0}, s{sOFF2}")
        e.vmem(f"buffer_load_dword v124, v123, {S(sWS,4)}, s{sT0} offen sc1")
        e.i(f"s_add_u32 s{sT0}, s{sT0}, {48*512}")
        e.vmem(f"buffer_load_dword v124, v123, {S(sWS,4)}, s{sT0} offen sc1")
    PH = NR + 1
    HB = 128
    def h_load(ks):
        for rh in range(2):
            r = HB + 8 * (ks % PH) + 4 * rh
            e.vmem(f"buffer_load_dwordx4 {V(r,4)}, v{2 if rh else 0}, {S(sWS,4)}, s{sOFF2} offen sc1", ("h", ks))
        e.i(f"s_add_u32 s{sOFF2}, s{sOFF2}, 2048")
    def wo_dma():
        e.c("wo slice -> R0 by DMA once attention has left it")
        e.i("s_setprio 3")
        lds_poll(CR0, 4, sleep=8)
        e.i(f"s_lshl_b32 s{sU0}, s{sF}, 17")
        e.i(f"s_lshl_b32 s{sU1}, s{sCB}, 7")
        e.i(f"s_add_u32 s{sU0}, s{sU0}, s{sU1}")
        e.i(f"s_lshl_b32 s{sU1}, s{sF}, 14")
        e.i(f"s_lshl_b32 s{sT1}, s{sRB}, {11 if opt.rot & 8 else 14}")
        for i in range(16):
            e.i(f"s_and_b32 s{sT1}, s{sT1}, 0x3fff")
            e.i(f"s_add_u32 m0, s{sU1}, s{sT1}")
            e.i(f"s_lshl_b32 s{sT0}, s{sT1}, 3")
            e.i(f"s_add_u32 s{sT0}, s{sT0}, s{sU0}")
            e.vmem(f"buffer_load_dwordx4 v{vSW}, {S(sWO,4)}, s{sT0} offen lds", "wo")
            e.i(f"s_add_u32 s{sT1}, s{sT1}, 1024")
    HR = [96, 104, 112, 232, 240]
    def dma2(ks, a):
        e.i(f"s_add_u32 m0, s{sRING}, {(ks % 4) * 2048 + a * 1024}")
        e.i("s_nop 0")
        e.vmem(f"buffer_load_dwordx4 v{vSW}, {S(sW2,4)}, s{sOFF} offen lds", ("w", ks))
        e.i(f"s_add_u32 s{sOFF}, s{sOFF}, 8192")
        if a == 1 and ks % 7 == 6 and ks < 27:
            set_w(ks // 7 + 1)
    def hl2(ks, rh):
        r = HR[ks % PH] + 4 * rh
        e.vmem(f"buffer_load_dwordx4 {V(r,4)}, v{2 if rh else 0}, {S(sWS,4)}, s{sOFF2} offen {opt.hfl}", ("h", ks))
        if rh:
            e.i(f"s_add_u32 s{sOFF2}, s{sOFF2}, 2048")
            if ks % 7 == 6 and ks < 27:
                set_h(ks // 7 + 1)
    def t32(ks, i):
        ct, t = i >> 1, i & 1
        e.lds(f"ds_read_b64_tr_b16 {V(A3+8*(ks%3)+4*ct+2*t,2)}, v{vT1 if ct else vT0} offset:{(ks%4)*2048+1024*t}", ("f", ks))
    for ks in range(4):
        dma2(ks, 0); dma2(ks, 1)
        hl2(ks, 0); hl2(ks, 1)
    for ks in range(2):
        e.wait(vm=("w", ks))
        for i in range(4):
            t32(ks, i)
    for ks in range(28):
        s = ks % 3
        if ks == 7:
            e.vmem(f"buffer_load_dword v124, v122, {S(sWS,4)}, s{sFLG} offen sc1", "fl")
        if ks == 10:
            e.c("every producer of the row group must have published before the second half is read")
            e.wait(vm="fl")
            e.i("s_setprio 3")
            e.i(f"v_cmp_ne_u32 vcc, s{sTAG}, v124")
            e.i("s_cbranch_vccnz L_slow_h")
            e.label("L_back_h")
            e.i(f"s_setprio {opt.fprio}")
        e.wait(lg=("f", ks), vm=("h", ks))
        e.wait(vm=("w", ks + 2))
        for i in range(4):
            rh, ct = i >> 1, i & 1
            a = (ACC if ks < 14 else 128) + 16 * i
            e.i(f"{MF32} {V(a,16)}, {V(A3+8*s+4*ct,4)}, {V(HR[ks%PH]+4*rh,4)}, {'0' if ks % 14 == 0 else V(a,16)}")
            if ct == 0:
                if ks + 4 < 28 and not (opt.nold2 & 1):
                    dma2(ks + 4, rh)
            elif ks + PH - 1 < 28 and not (opt.nold2 & 2):
                hl2(ks + PH - 1, rh)
            if ks + 2 < 28:
                t32(ks + 2, i)
                if opt.dense2 <= ks < opt.late2:
                    paced(opt.pace2)
        if ks == opt.wo_at:
            wo_dma()
            e.i(f"s_setprio {opt.fprio}")
        if ks == min(opt.wo_at + 4, 27):
            e.wait(vm="wo")
            lds_signal(CWO)
    stamp(7)
    exit_if(7)
    e.i("s_setprio 3")
    if opt.wo_at >= 28:
        wo_dma()
    e.c("f partials: accumulators 1,2 -> own ring, accumulator 3 -> R2; wave f^i picks up accumulator i")
    e.i(f"v_add_u32 v72, s{sRING}, v{vL16}")
    e.i(f"s_lshl_b32 s{sT1}, s{sF}, 12")
    e.i(f"s_add_u32 s{sT1}, s{sT1}, {R2}")
    e.i(f"v_add_u32 v73, s{sT1}, v{vL16}")
    for i in (1, 2):
        e.i(f"s_xor_b32 s{sT0}, s{sF}, {i}")
        e.i(f"s_lshl_b32 s{sT0}, s{sT0}, 13")
        e.i(f"s_add_u32 s{sT0}, s{sT0}, {RB2 + (i-1)*4096}")
        e.i(f"v_add_u32 v{73+i}, s{sT0}, v{vL16}")
    e.i(f"s_xor_b32 s{sT0}, s{sF}, 3")
    e.i(f"s_lshl_b32 s{sT0}, s{sT0}, 12")
    e.i(f"s_add_u32 s{sT0}, s{sT0}, {R2}")
    e.i(f"v_add_u32 v76, s{sT0}, v{vL16}")
    e.i(f"s_lshl_b32 s{sT0}, s{sF}, 11")
    e.i(f"s_add_u32 s{sT0}, s{sT0}, {R2 + 16384}")
    e.i(f"v_add_u32 v77, s{sT0}, v{vL16}")
    e.i(f"s_lshl_b32 s{sT0}, s{sF}, 2")
    e.i(f"v_add_u32 v78, s{sT0}, v6")
    e.i(f"s_mov_b32 s{sT1}, {hex(f32bits(-math.log2(math.e)))}")
    for r in list(range(16, 64, 2)) + list(range(0, 16, 2)):
        e.i(f"v_pk_add_f32 {V(ACC+r,2)}, {V(ACC+r,2)}, {V(128+r,2)}")
    e.i(f"s_setprio {opt.fprio}")
    for i in (1, 2, 3):
        for q in range(4):
            e.lds(f"ds_write_b128 v{72 if i < 3 else 73}, {V(ACC+16*i+4*q,4)} offset:{((i-1)%2)*4096+q*1024}")
    lds_signal(CF)
    e.i("s_setprio 3")
    stamp(8, "late")
    lds_poll(CF, 4, sleep=2)
    for i in (1, 2, 3):
        for q in range(4):
            e.lds(f"ds_read_b128 {V(ACC+16*i+4*q,4)}, v{73+i} offset:{q*1024}", ("r", i))
    for i in (1, 2, 3):
        e.wait(lg=("r", i))
        for r in range(0, 16, 2):
            e.i(f"v_pk_add_f32 {V(ACC+r,2)}, {V(ACC+r,2)}, {V(ACC+16*i+r,2)}")
    for r in range(16):
        e.i(f"v_mul_f32 v{ACC+16+r}, s{sT1}, v{ACC+r}")
    for r in range(16):
        e.i(f"v_exp_f32 v{ACC+16+r}, v{ACC+16+r}")
    for r in range(16):
        e.i(f"v_add_f32 v{ACC+16+r}, 1.0, v{ACC+16+r}")
    for r in range(16):
        e.i(f"v_rcp_f32 v{ACC+16+r}, v{ACC+16+r}")
    for r in range(16):
        e.i(f"v_mul_f32 v{ACC+r}, v{ACC+r}, v{ACC+16+r}")
    for j in range(8):
        e.i(f"v_cvt_pk_bf16_f32 v{ACC+j}, v{ACC+2*j}, v{ACC+2*j+1}")
    e.lds(f"ds_write_b128 v77, {V(ACC,4)}")
    e.lds(f"ds_write_b128 v77, {V(ACC+4,4)} offset:1024")
    lds_signal(CGD, va=78)
    stamp(10)
    dump_stamps()
    e.label("L_end")
    e.i("s_endpgm")
    e.label("L_slow_h")
    spin_init()
    e.label("L_slow_hx")
    e.i(f"buffer_load_dword v124, v122, {S(sWS,4)}, s{sFLG} offen sc1")
    e.i("s_waitcnt vmcnt(0)")
    e.i(f"v_cmp_ne_u32 vcc, s{sTAG}, v124")
    e.i("s_cbranch_vccz L_back_h")
    spin_tail("L_slow_hx", "L_back_h", 4)
    e.label("L_code_end")
    return e

def wrap(e):
    hdr = open("cdna_kernels/%s.s.ref" % NAME).read().split("\n")
    top = [l for l in hdr if l.startswith(";") and "@launch" not in l]
    out = "\n".join(top) + f"\n; @launch grid=(256,1,1) block=(512,1,1) lds={LDS_BYTES}\n"
    out += f""".amdgcn_target "amdgcn-amd-amdhsa--gfx950"
.text
.globl {NAME}_kernel
.p2align 8
.type {NAME}_kernel,@function
{NAME}_kernel:
"""
    out += e.text()
    out += f""".section .rodata,"a"
.p2align 6
.amdhsa_kernel {NAME}_kernel
  .amdhsa_next_free_vgpr 256
  .amdhsa_next_free_sgpr 102
  .amdhsa_accum_offset 256
  .amdhsa_group_segment_fixed_size 0
  .amdhsa_kernarg_size 88
  .amdhsa_user_sgpr_count 2
  .amdhsa_user_sgpr_kernarg_segment_ptr 1
  .amdhsa_system_sgpr_workgroup_id_x 1
.end_amdhsa_kernel
"""
    return out

if __name__ == "__main__":
    opt = Opt()
    outp = sys.argv[1]
    for a in sys.argv[2:]:
        k, v = a.split("=")
        assert hasattr(opt, k), k
        setattr(opt, k, type(getattr(opt, k))(eval(v)))
    e = gen(opt)
    bad = check_cfg(e.lines)
    print("hazards:", bad, "lines:", len(e.lines), "lds", LDS_BYTES)
    open(outp, "w").write(wrap(e))
```

```python
import sys, math, struct
from asmlib import *

NAME = "recurrent_scan__grouped_kv_mqa__dense_activation_relu__prompt"
MF32 = "v_mfma_f32_32x32x16_bf16"
MF16 = "v_mfma_f32_16x16x32_bf16"

def f32bits(x):
    return struct.unpack("<I", struct.pack("<f", x))[0]

KVS = 2080
R0 = 0
R1 = 32 * KVS
XN_RH = 64 * 528
R2 = R1 + 2 * XN_RH
R4 = R2 + 28672
LDS_BYTES = R4 + 256
(CXN, CST, CWQ, CQ, CKV, CKM, CTAG, CA, CA2, CX, CH2, CR0, CWO, CAD, CF, CE0, CE1, CRW, CRC, CXI, CP1, CL1, CG, CTL, CWI, CGD, CGD1, CGD2, CGD3, CE7) = [4 * i for i in range(30)]
NE = 7
RB2 = R1 + 16 * KVS
assert RB2 % 128 == 0 and RB2 + 32768 <= R2
STAT = 128
assert R2 % 128 == 0
WS_KV = 0
WS_EPOCH = 0x30000
WS_KVF = 0x38000
WS_HF = 0x40000
WS_O = 0x100000
WS_H = 0x400000
WS_STAMP = 0x1000000
sX, sWQ, sWKV, sWO, sW1, sW2, sOUT, sWS = 8, 12, 16, 20, 24, 28, 32, 40
sMASK, sF, sSPIN, sFLG = 44, 45, 46, 47
sWAVE, sRB, sCB, sT0, sT1, sT2, sOFF, sOFF2, sCNT, sSEG = 70, 71, 72, 73, 74, 75, 76, 77, 78, 79
sRG, sOB, sTAG, sTILE, sRING, sW2T, sU0, sU1, sE1, sE2, sXO = 3, 6, 7, 36, 37, 38, 39, 60, 61, 62, 63
sUN = 52
sCH = 64
sOA = 52
sSTAMP = 80
vH, vCG, vR, vC, vTR, vXN0, vXN1, vSW, vW1, vL16, vT0, vT1, vSP = 212, 213, 214, 215, 216, 217, 218, 219, 220, 221, 222, 223, 224
vTCH = 225
vSD = 228

class Opt:
    stamps = False
    front = False
    force_fallback = False
    thr = 40.0
    exit_at = 0
    spin = 0x20000
    pace1 = 0
    pace2 = 0
    kvsleep = 1
    kvdelay = 32
    kvtouch = True
    warm2 = True
    touch = 0
    fstart = 2
    twq = False
    wqdepth = 40
    fprio = 0
    outf = ''
    echo = ()
    NR = 4
    dense = 32
    twait = 1
    nomf2 = False
    nold2 = 0
    ctouch = True
    mid = False
    wo_at = 28
    ntouch = 4
    full = True
    stouch = 0
    late2 = 28
    xr_early = True
    fprio1 = 0
    rot = 14
    la1 = False
    dyn = True
    osleep = 2
    hint = True
    hsleep = 3
    hfl = 'sc1'
    t2at = 99
    wot = True
    t1 = False
    d1 = 64
    glate = True
    tser = 2
    tailst = False
    f2at = 2
    part = True
    dense2 = 0
    htouch = False
    lnclk = False

def gen(opt):
    e = E()
    uid = [0]
    def lbl(p):
        uid[0] += 1
        return f"L_{p}_{uid[0]}"
    def stamp(k, when=None):
        if when == "front" and not opt.front: return
        if when == "late" and opt.front: return
        if opt.stamps:
            e.i(f"s_memrealtime {S(sSTAMP+2*k,2)}")
    def cstamp(k):
        if opt.stamps:
            e.i(f"s_memtime {S(sSTAMP+2*k,2)}")
    def dump_stamps():
        if not opt.stamps or opt.echo:
            return
        e.wait_all(vm=True, lg=True)
        e.i("v_mov_b32 v2, 0")
        e.i("v_mbcnt_lo_u32_b32 v1, -1, 0")
        e.i("v_mbcnt_hi_u32_b32 v1, -1, v1")
        for k in range(22):
            e.i(f"v_writelane_b32 v2, s{sSTAMP+k}, {k}")
        e.i(f"s_getreg_b32 s{sT0}, hwreg(HW_REG_XCC_ID)")
        e.i(f"v_writelane_b32 v2, s{sT0}, 22")
        e.i(f"s_lshl_b32 s{sT0}, s2, 3")
        e.i(f"s_add_u32 s{sT0}, s{sT0}, s{sWAVE}")
        e.i(f"s_lshl_b32 s{sT0}, s{sT0}, 8")
        e.i(f"s_add_u32 s{sT0}, s{sT0}, {WS_STAMP}")
        e.i("v_lshlrev_b32 v3, 2, v1")
        e.i(f"buffer_store_dword v2, v3, {S(sWS,4)}, s{sT0} offen")
    def exit_if(k):
        if opt.exit_at == k:
            dump_stamps()
            e.i("s_endpgm")
    def spin_init(mult=1):
        e.i(f"s_mov_b32 s{sSPIN}, {hex(opt.spin*mult)}")
    def spin_tail(top, done, sleep):
        e.i(f"s_sub_u32 s{sSPIN}, s{sSPIN}, 1")
        e.i(f"s_cbranch_scc1 {done}")
        if sleep:
            e.i(f"s_sleep {sleep}")
        e.i(f"s_branch {top}")
    def lds_signal(off, va=6):
        e.i("s_mov_b64 exec, 1")
        e.lds(f"ds_add_u32 v{va}, v7 offset:{off}")
        e.i("s_mov_b64 exec, -1")
    def lds_poll(off, n, vt=5, sleep=1, va=6):
        top, done = lbl("lp"), lbl("lpd")
        spin_init(16)
        e.label(top)
        e.i(f"ds_read_b32 v{vt}, v{va} offset:{off}")
        e.wait_all(lg=True)
        e.i(f"v_readfirstlane_b32 s{sT0}, v{vt}")
        e.i(f"s_cmp_ge_u32 s{sT0}, {n}")
        e.i(f"s_cbranch_scc1 {done}")
        spin_tail(top, done, sleep)
        e.label(done)
    def kv_dma(n, soff, sl, gstep, lstep):
        for i in range(n):
            e.i(f"s_mov_b32 m0, s{sl}")
            e.i(f"s_add_u32 s{sl}, s{sl}, {lstep*KVS}")
            for p in range(2):
                e.vmem(f"buffer_load_dwordx4 v{vL16}, {S(sWS,4)}, s{soff} offen offset:{1024*p} sc1 lds", ("kv", i))
            e.i(f"s_add_u32 s{soff}, s{soff}, {gstep*2048}")
    def setup():
        e.i(f"s_mov_b64 {S(sWQ,2)}, s[50:51]")
        e.i(f"s_mov_b64 {S(sWO,2)}, s[56:57]")
        e.i(f"s_mov_b64 {S(sW1,2)}, s[60:61]")
        e.i(f"s_mov_b64 {S(sW2,2)}, s[62:63]")
        e.i(f"s_mov_b64 {S(sOUT,2)}, s[64:65]")
        e.i(f"s_mov_b64 {S(sWS,2)}, s[68:69]")
        e.i(f"s_lshl_b32 s{sFLG}, s{sRB}, 10")
        e.i(f"s_add_u32 s{sFLG}, s{sFLG}, {hex(WS_HF)}")
        e.i(f"s_mul_i32 s{sRING}, s{sF}, 7168")
        e.i(f"s_add_u32 s{sRING}, s{sRING}, {R2}")
        e.i(f"s_lshl_b32 s{sT0}, s{sRB}, 5")
        e.i(f"s_lshl_b32 s{sT1}, s{sCB}, 2")
        e.i(f"s_add_u32 s{sT0}, s{sT0}, s{sT1}")
        e.i(f"s_and_b32 s{sT1}, s{sF}, 1")
        e.i(f"s_lshl_b32 s{sXO}, s{sT1}, 6")
        e.i(f"s_lshl_b32 s{sT1}, s{sT1}, 1")
        e.i(f"s_add_u32 s{sT0}, s{sT0}, s{sT1}")
        e.i(f"s_lshl_b32 s{sT0}, s{sT0}, 1")
        e.i(f"s_lshr_b32 s{sT1}, s{sF}, 1")
        e.i(f"s_add_u32 s{sT0}, s{sT0}, s{sT1}")
        e.i(f"s_lshl_b32 s{sT0}, s{sT0}, 10")
        e.i(f"s_add_u32 s{sOB}, s{sT0}, {WS_O}")
        e.i(f"s_lshl_b32 s{sT0}, s{sRB}, 1")
        e.i(f"s_add_u32 s{sT0}, s{sT0}, s{sT1}")
        e.i(f"s_lshl_b32 s{sT0}, s{sT0}, 15")
        e.i(f"s_add_u32 s{sXO}, s{sXO}, s{sT0}")
        e.i(f"s_lshl_b32 s{sT0}, s{sCB}, 7")
        e.i(f"s_add_u32 s{sXO}, s{sXO}, s{sT0}")
        e.i("v_lshrrev_b32 v5, 2, v1")
        e.i("v_and_b32 v5, 4, v5")
        e.i("v_xor_b32 v5, v5, v3")
        e.i("v_lshlrev_b32 v5, 4, v5")
        e.i(f"v_lshl_add_u32 v{vSW}, v2, 10, v5")
        e.i(f"v_mul_u32_u24 v{vW1}, 3584, v2")
        e.i(f"v_add_u32 v{vW1}, v{vW1}, v5")
        e.i(f"v_lshlrev_b32 v{vL16}, 4, v1")
        e.i(f"v_lshrrev_b32 v{vH}, 5, v1")
        e.i(f"v_bfe_u32 v{vCG}, v1, 4, 1")
        e.i(f"v_bfe_u32 v{vR}, v1, 2, 2")
        e.i(f"v_and_b32 v{vC}, 3, v1")
        e.i(f"v_lshrrev_b32 v4, 1, v{vC}")
        e.i(f"v_lshl_add_u32 v4, v{vCG}, 1, v4")
        e.i(f"v_lshlrev_b32 v5, 1, v{vR}")
        e.i("v_and_b32 v5, 4, v5")
        e.i("v_xor_b32 v4, v4, v5")
        e.i(f"v_lshlrev_b32 v{vTR}, 7, v{vR}")
        e.i(f"v_lshl_add_u32 v{vTR}, v4, 4, v{vTR}")
        e.i(f"v_and_b32 v5, 1, v{vC}")
        e.i(f"v_lshl_add_u32 v{vTR}, v5, 3, v{vTR}")
        e.i("v_and_b32 v5, 31, v1")
        e.i(f"v_mul_u32_u24 v{vXN0}, 528, v{vH}")
        e.i(f"v_lshl_add_u32 v{vXN0}, v5, 4, v{vXN0}")
        e.i(f"v_add_u32 v{vXN0}, {R1}, v{vXN0}")
        e.i(f"v_add_u32 v{vXN1}, {XN_RH}, v{vXN0}")
        e.i("v_lshlrev_b32 v205, 10, v5")
        e.i(f"v_lshl_add_u32 v205, v{vH}, 3, v205")
        e.i(f"v_mul_u32_u24 v{vSP}, {KVS}, v5")
        e.i(f"v_lshl_add_u32 v{vSP}, v{vH}, 4, v{vSP}")
        e.i(f"v_subrev_u32 v{vSD}, 1, v{vH}")
        e.i(f"v_and_b32 v{vSD}, 0x3f803f80, v{vSD}")
        for r in range(1, 4):
            e.i(f"v_mov_b32 v{vSD+r}, v{vSD}")
        e.i("v_and_b32 v4, 15, v1")
        e.i(f"v_lshl_add_u32 v4, v{vH}, 4, v4")
        e.i("v_lshlrev_b32 v203, 4, v4")
        e.i(f"v_lshl_add_u32 v{vT0}, v{vH}, 10, v{vTR}")

    e.i("s_cmp_ge_u32 s2, 256")
    e.i("s_cbranch_scc1 L_end")
    e.i("s_load_dwordx16 s[48:63], s[0:1], 0")
    e.i("s_load_dwordx2 s[64:65], s[0:1], 64")
    e.i("s_load_dwordx2 s[68:69], s[0:1], 80")
    stamp(0)
    e.i("v_lshrrev_b32 v2, 6, v0")
    e.i("v_and_b32 v1, 63, v0")
    e.i(f"v_readfirstlane_b32 s{sWAVE}, v2")
    e.c("workgroup -> (row block rb, column block cb); ids that share id&7 share half of the columns and 1/4 of the rows")
    e.i(f"s_and_b32 s{sT0}, s2, 7")
    e.i(f"s_lshr_b32 s{sT1}, s2, 3")
    e.i(f"s_and_b32 s{sCB}, s{sT1}, 3")
    e.i(f"s_lshl_b32 s{sCB}, s{sCB}, 1")
    e.i(f"s_and_b32 s{sRB}, s{sT0}, 1")
    e.i(f"s_add_u32 s{sCB}, s{sCB}, s{sRB}")
    e.i(f"s_lshr_b32 s{sT1}, s{sT1}, 2")
    e.i(f"s_lshr_b32 s{sRB}, s{sT0}, 1")
    e.i(f"s_lshl_b32 s{sRB}, s{sRB}, 3")
    e.i(f"s_add_u32 s{sRB}, s{sRB}, s{sT1}")
    e.i(f"s_mov_b32 s{sMASK}, 0xffff0000")
    e.i(f"s_and_b32 s{sF}, s{sWAVE}, 3")
    e.c("row group of this wave: (w + 2*rq + 3) & 7 -> waves 5,6 hold the 16 rows of this workgroup's K/V tile")
    e.i(f"s_and_b32 s{sRG}, s{sCB}, 6")
    e.i(f"s_add_u32 s{sRG}, s{sRG}, s{sWAVE}")
    e.i(f"s_add_u32 s{sRG}, s{sRG}, 3")
    e.i(f"s_and_b32 s{sRG}, s{sRG}, 7")
    e.i("v_lshrrev_b32 v2, 3, v1")
    e.i("v_and_b32 v3, 7, v1")
    e.i("v_lshlrev_b32 v4, 10, v2")
    e.i("v_lshl_add_u32 v4, v3, 4, v4")
    e.i(f"s_lshl_b32 s{sOFF}, s{sRB}, 3")
    e.i(f"s_add_u32 s{sOFF}, s{sOFF}, s{sRG}")
    e.i(f"s_lshl_b32 s{sOFF}, s{sOFF}, 13")
    for srd, size in ((sX, 2048*512*2), (sWQ, 512*512*2), (sWKV, 512*16*2), (sWO, 512*512*2), (sW1, 512*1792*2),
                      (sW2, 1792*512*2), (sOUT, 2048*512*2), (sWS, 0x10000000)):
        e.i(f"s_mov_b32 s{srd+2}, {hex(size)}")
        e.i(f"s_mov_b32 s{srd+3}, 0x20000")
    e.i(f"v_mov_b32 v6, {R4}")
    e.i("v_mov_b32 v7, 1")
    e.i("v_mov_b64 v[108:109], 0")
    e.i("v_and_b32 v105, 15, v1")
    e.i("v_lshl_add_u32 v105, v105, 3, v6")
    e.i("ds_write_b64 v105, v[108:109]")
    e.i(f"s_mov_b32 s{sSEG}, 0")
    e.i(f"s_cmp_eq_u32 s{sWAVE}, 7")
    e.i("s_cbranch_scc1 L_pre_7")
    e.i("s_waitcnt lgkmcnt(0)")
    e.i(f"s_mov_b64 {S(sX,2)}, s[48:49]")
    e.i(f"s_cmp_eq_u32 s{sWAVE}, 4")
    e.i("s_cbranch_scc1 L_pre_4")
    e.i(f"s_cmp_ge_u32 s{sWAVE}, 5")
    e.i("s_cbranch_scc1 L_pre_first")
    e.i("s_barrier")
    e.label("L_pre_first")
    for i in range(8):
        e.i(f"buffer_load_dwordx4 {V(8+4*i,4)}, v4, {S(sX,4)}, s{sOFF} offen offset:{128*i}")
    e.i("s_cbranch_scc0 L_pre_second")
    e.i("s_barrier")
    e.label("L_pre_second")
    e.i(f"s_cmp_eq_u32 s{sWAVE}, 0")
    e.i("s_cbranch_scc1 L_pre_dbl")
    e.i(f"s_cmp_lg_u32 s{sWAVE}, 3")
    e.i("s_cbranch_scc1 L_pre_n3")
    e.label("L_pre_dbl")
    e.c("waves 0,3 also normalise the rows waves 4,7 would have had (row group ^ 4)")
    e.i(f"s_xor_b32 s{sOFF}, s{sOFF}, 0x8000")
    for i in range(8):
        e.i(f"buffer_load_dwordx4 {V(128+4*i,4)}, v4, {S(sX,4)}, s{sOFF} offen offset:{128*i}")
    e.i(f"s_mov_b32 s{sSEG}, 1")
    e.label("L_pre_n3")
    lds_signal(CXI)
    setup()
    e.i(f"s_cmp_ge_u32 s{sWAVE}, 4")
    e.i("s_cbranch_scc1 L_pre_56")
    S0, S1, P0, P1, OA, OB, NMA, NMB, QA, QB, KB, VB = 32, 48, 64, 72, 80, 96, 112, 128, 144, 148, 152, 168
    vK, vV0, vV1, vVG, vVC = 200, 201, 202, 203, 204
    e.i("s_setprio 1")
    e.i(f"s_and_b32 s{sT1}, s{sWAVE}, 1")
    e.i(f"s_lshl_b32 s{sT2}, s{sT1}, 6")
    e.i(f"v_xor_b32 v{vT0}, s{sT2}, v{vT0}")
    e.i(f"s_lshr_b32 s{sT1}, s{sWAVE}, 1")
    e.i(f"s_mul_i32 s{sT1}, s{sT1}, {XN_RH}")
    e.i(f"v_add_u32 v{vXN0}, s{sT1}, v{vXN0}")
    e.i(f"v_add_u32 v{vK}, {R2}, v{vL16}")
    e.i("v_and_b32 v5, 11, v1")
    e.i("v_cmp_ne_u32 vcc, 0, v5")
    e.i(f"v_mov_b32 v4, {R2+2048}")
    e.i(f"v_mov_b32 v5, {R2+2064}")
    e.i(f"v_add_u32 v{vV0}, {R2+1024}, v{vVG}")
    e.i("v_cndmask_b32 v4, v4, v5, vcc")
    e.i(f"v_cmp_eq_u32 vcc, 0, v{vCG}")
    e.i(f"v_add_u32 v{vV1}, {R2+1536}, v{vVG}")
    for r in range(0, 8, 2):
        e.i(f"v_mov_b64 {V(VB+24+r,2)}, 0")
    e.i(f"v_cndmask_b32 v{vV0}, v4, v{vV0}, vcc")
    e.i(f"v_cndmask_b32 v{vV1}, v4, v{vV1}, vcc")
    if opt.stouch:
        e.c("scalar touches of w1 -> L2: wave w takes line column w, rows (rb&7) + 8i")
        e.i(f"s_and_b32 s{sT0}, s{sRB}, 7")
        e.i(f"s_mul_i32 s{sT0}, s{sT0}, 3584")
        e.i(f"s_mul_i32 s{sT1}, s{sCB}, 448")
        e.i(f"s_add_u32 s{sT0}, s{sT0}, s{sT1}")
        e.i(f"s_lshl_b32 s{sT1}, s{sWAVE}, 7")
        e.i(f"s_add_u32 s{sT0}, s{sT0}, s{sT1}")
        e.i(f"s_add_u32 s4, s60, s{sT0}")
        e.i("s_addc_u32 s5, s61, 0")
        for i in range(opt.stouch):
            e.i(f"s_load_dword s{sU0}, s[4:5], {hex(i*8*3584)}")
    e.i(f"s_cmp_eq_u32 s{sSEG}, 1")
    e.i("s_cbranch_scc1 L_pre_w8")
    e.i("s_waitcnt vmcnt(0)")
    e.label("L_pre_w8")
    e.i("s_waitcnt vmcnt(8)")
    e.i("s_branch L_ln")

    def ffn_setup():
        e.i(f"v_lshrrev_b32 v{vW1}, 2, v1")
        e.i(f"v_mul_u32_u24 v{vW1}, 3584, v{vW1}")
        e.i(f"v_lshl_add_u32 v{vW1}, v{vC}, 4, v{vW1}")
        e.i(f"v_lshlrev_b32 v{vT0}, 6, v{vR}")
        e.i(f"v_lshl_add_u32 v{vT0}, v{vCG}, 5, v{vT0}")
        e.i(f"v_lshl_add_u32 v{vT0}, v{vC}, 3, v{vT0}")
        e.i(f"v_lshl_add_u32 v{vT0}, v{vH}, 9, v{vT0}")
        e.i(f"v_add_u32 v{vT0}, s{sRING}, v{vT0}")
    e.label("L_pre_4")
    if opt.ctouch:
        e.c("pull this kernel's code into L2: 16 lines per workgroup, the workgroups of an XCD cover all of it")
        e.i(f"s_getpc_b64 {S(sWKV,2)}")
        e.label("L_pc")
        e.i(f"s_mov_b32 s{sWKV+2}, L_code_end-L_pc")
        e.i(f"s_lshr_b32 s{sT0}, s2, 3")
        e.i(f"s_lshl_b32 s{sT0}, s{sT0}, 11")
        e.i("v_lshlrev_b32 v104, 7, v1")
        e.i("s_mov_b64 exec, 0xffff")
        e.i(f"buffer_load_dword v106, v104, {S(sWKV,4)}, s{sT0} offen")
        e.i("s_mov_b64 exec, -1")
    e.c("wave 4: loader.  wq slice -> R0 by DMA behind the x loads; touches 1/8 of the w1 slice -> L2")
    setup()
    ffn_setup()
    e.i(f"s_lshl_b32 s{sOFF}, s{sCB}, 7")
    e.i(f"s_mov_b32 s{sT1}, 0")
    if opt.rot & 1:
        e.i(f"s_and_b32 s{sT1}, s{sRB}, 7")
        e.i(f"s_lshl_b32 s{sT0}, s{sT1}, 16")
        e.i(f"s_add_u32 s{sOFF}, s{sOFF}, s{sT0}")
        e.i(f"s_lshl_b32 s{sT1}, s{sT1}, 13")
    e.i(f"s_mov_b32 s{sCNT}, 7")
    def touch_setup(so):
        e.i("v_lshrrev_b32 v105, 2, v1")
        e.i("v_mul_u32_u24 v105, 3584, v105")
        e.i(f"v_lshl_add_u32 v105, v{vC}, 7, v105")
        e.i(f"s_and_b32 s{so}, s{sRB}, 7")
        e.i(f"s_mul_i32 s{so}, s{so}, {16*3584}")
        e.i(f"s_mul_i32 s{sT0}, s{sCB}, 448")
        e.i(f"s_add_u32 s{so}, s{so}, s{sT0}")
    def touches(so=sT2, a=0, b=4):
        for i in range(a, b):
            e.i(f"s_add_u32 s{sU0}, s{so}, {i*128*3584}")
            e.i(f"buffer_load_dword v106, v105, {S(sW1,4)}, s{sU0} offen")
    touch_setup(sT2)
    if opt.twq:
        e.i("v_lshrrev_b32 v104, 2, v1")
        e.i("v_lshlrev_b32 v104, 10, v104")
        e.i(f"v_lshl_add_u32 v104, v{vC}, 8, v104")
        e.i(f"s_lshr_b32 s{sT0}, s2, 3")
        e.i(f"s_lshl_b32 s{sT0}, s{sT0}, 14")
        e.i(f"s_and_b32 s{sU0}, s{sCB}, 1")
        e.i(f"s_lshl_b32 s{sU0}, s{sU0}, 7")
        e.i(f"s_add_u32 s{sT0}, s{sT0}, s{sU0}")
    e.i("s_barrier")
    if opt.twq:
        e.i(f"buffer_load_dword v106, v104, {S(sWQ,4)}, s{sT0} offen")
    if opt.touch == 4:
        touches()
    lds_poll(CXI, 6, sleep=0)
    if opt.touch == 5:
        touches()
    e.label("L_wq_loop")
    for i in range(8):
        e.i(f"s_mov_b32 m0, s{sT1}")
        e.i(f"s_add_u32 s{sT1}, s{sT1}, 1024")
        e.i(f"buffer_load_dwordx4 v{vSW}, {S(sWQ,4)}, s{sOFF} offen lds")
        e.i(f"s_add_u32 s{sOFF}, s{sOFF}, 8192")
    e.i(f"s_and_b32 s{sOFF}, s{sOFF}, 0x7ffff")
    e.i(f"s_and_b32 s{sT1}, s{sT1}, 0xffff")
    e.i(f"s_waitcnt vmcnt({opt.wqdepth})")
    e.i(f"s_sub_u32 s{sCNT}, s{sCNT}, 1")
    e.i("s_cbranch_scc0 L_wq_loop")
    lds_signal(CWI)
    stamp(1, "front")
    if opt.touch == 1:
        touches()
    e.i(f"s_waitcnt vmcnt({4 if opt.touch == 1 else 0})")
    lds_signal(CWQ)
    stamp(8, "front")
    if opt.touch == 2 or (opt.touch == 3 and opt.ntouch < 4):
        lds_poll(CG, 4, sleep=2)
        touches(sT2, opt.ntouch if opt.touch == 3 else opt.stouch // 16, 4)
    e.i("s_branch L_ffn")

    e.label("L_pre_56")
    ffn_setup()
    e.i("s_setprio 3")
    e.i("s_waitcnt vmcnt(0)")

    e.label("L_ln")
    stamp(1, "front")
    if opt.lnclk:
        stamp(6); cstamp(9)
    X = 40
    A = 112
    e.i(f"s_lshr_b32 s{sT0}, s{sRG}, 2")
    e.i(f"s_mul_i32 s{sT0}, s{sT0}, {XN_RH}")
    e.i(f"s_and_b32 s{sT1}, s{sRG}, 3")
    e.i(f"s_lshl_b32 s{sT1}, s{sT1}, 7")
    e.i(f"s_add_u32 s{sT0}, s{sT0}, s{sT1}")
    e.i(f"s_add_u32 s{sT0}, s{sT0}, {R1}")
    e.i("v_mul_u32_u24 v122, 528, v3")
    e.i("v_lshl_add_u32 v122, v2, 4, v122")
    e.i(f"v_add_u32 v122, s{sT0}, v122")
    e.i(f"s_cmp_lt_u32 s{sWAVE}, 5")
    e.i("s_cbranch_scc1 L_ln_a")
    e.c("waves 5,6: raw rows -> LDS for the K/V wave")
    for i in range(8):
        e.i(f"ds_write_b128 v122, {V(8+4*i,4)} offset:{4224*i}")
    lds_signal(CRW)
    e.label("L_ln_a")
    e.i("v_mov_b32 v110, 0x3f803f80")
    e.i("v_mov_b64 v[112:113], 0")
    e.i("v_mov_b32 v108, 0x3f80")
    e.i("v_mov_b32 v109, 0x3f800000")
    for t in range(32):
        e.i(f"v_dot2c_f32_bf16 v{A+(t&1)}, v{8+t}, v110")
    def reduce_lanes():
        for m in ("quad_perm:[1,0,3,2]", "quad_perm:[2,3,0,1]", "row_half_mirror"):
            e.nop(2)
            e.i(f"v_add_f32_dpp v{A}, v{A}, v{A} {m} row_mask:0xf bank_mask:0xf")
    e.nop(3)
    e.i(f"v_add_f32 v{A}, v{A}, v{A+1}")
    reduce_lanes()
    e.i(f"v_mul_f32 v120, {hex(f32bits(-1.0/512))}, v{A}")
    for t in range(32):
        e.i(f"v_dot2_f32_bf16 v{X+2*t}, v{8+t}, v108, v120")
        e.i(f"v_dot2_f32_bf16 v{X+2*t+1}, v{8+t}, v109, v120")
    for t in range(32):
        a = t % 4
        if t < 4:
            e.i(f"v_pk_mul_f32 {V(A+2*a,2)}, {V(X+2*t,2)}, {V(X+2*t,2)}")
        else:
            e.i(f"v_pk_fma_f32 {V(A+2*a,2)}, {V(X+2*t,2)}, {V(X+2*t,2)}, {V(A+2*a,2)}")
    e.i(f"v_pk_add_f32 {V(A,2)}, {V(A,2)}, {V(A+2,2)}")
    e.i(f"v_pk_add_f32 {V(A+4,2)}, {V(A+4,2)}, {V(A+6,2)}")
    e.i(f"v_pk_add_f32 {V(A,2)}, {V(A,2)}, {V(A+4,2)}")
    e.i(f"v_add_f32 v{A}, v{A}, v{A+1}")
    reduce_lanes()
    e.i(f"v_mov_b32 v119, {hex(f32bits(1e-5))}")
    e.i(f"v_fmac_f32 v119, {hex(f32bits(1.0/512))}, v{A}")
    e.i("v_rsq_f32 v118, v119")
    e.i(f"s_cmp_lt_u32 s{sWAVE}, 5")
    e.i("s_cbranch_scc1 L_ln_b")
    e.c("waves 5,6: hand the row statistics to the K/V wave")
    e.i(f"s_lshl_b32 s{sT0}, s{sWAVE}, 5")
    e.i(f"s_add_u32 s{sT0}, s{sT0}, {R4 + STAT - 160}")
    e.i(f"v_lshl_add_u32 v111, v2, 2, s{sT0}")
    e.i("ds_write2_b32 v111, v120, v118 offset1:16")
    lds_signal(CST)
    lds_poll(CRC, 1, sleep=0)
    e.label("L_ln_b")
    e.lg = []
    for i in range(8):
        for t in range(4*i, 4*i+4):
            e.i(f"v_pk_mul_f32 {V(X+2*t,2)}, {V(X+2*t,2)}, v[118:119] op_sel_hi:[1,0]")
        for t in range(4*i, 4*i+4):
            e.i(f"v_cvt_pk_bf16_f32 v{8+t}, v{X+2*t}, v{X+2*t+1}")
        e.lds(f"ds_write_b128 v122, {V(8+4*i,4)} offset:{4224*i}")
    lds_signal(CXN)
    e.i(f"s_cmp_eq_u32 s{sSEG}, 0")
    e.i("s_cbranch_scc1 L_ln_done")
    e.i(f"s_mov_b32 s{sSEG}, 0")
    e.i(f"s_xor_b32 s{sRG}, s{sRG}, 4")
    e.i("s_waitcnt vmcnt(0)")
    for t in range(0, 32, 2):
        e.i(f"v_mov_b64 {V(8+t,2)}, {V(128+t,2)}")
    e.i("s_branch L_ln")
    e.label("L_ln_done")
    stamp(8, "front")
    if opt.lnclk:
        stamp(7); cstamp(10)
    e.i(f"s_cmp_ge_u32 s{sWAVE}, 4")
    e.i("s_cbranch_scc1 L_ffn")

    e.vm = []
    lds_poll(CWQ, 1, sleep=0)
    for q in range(4):
        e.i(f"buffer_load_dwordx2 {V(232+2*q,2)}, v205, {S(sX,4)}, s{sXO} offen offset:{16*q}")
    lds_poll(CXN, 9, sleep=0)
    stamp(2, "front")
    fill = [f"v_mov_b64 {V(OA+r,2)}, 0" for r in range(0, 32, 2)] + [f"v_mov_b64 {V(P1+r,2)}, 0" for r in range(0, 8, 2)]
    e.c("Q projection: wave w -> head pair hp=w&1, row half rh=w>>1")
    def qreads(ks):
        s = ks % 4
        e.lds(f"ds_read_b64_tr_b16 {V(32+8*s,2)}, v{vT0} offset:{ks*2048}", ("q", ks))
        e.lds(f"ds_read_b64_tr_b16 {V(34+8*s,2)}, v{vT0} offset:{ks*2048+512}", ("q", ks))
        e.lds(f"ds_read_b128 {V(36+8*s,4)}, v{vXN0} offset:{ks*1056}", ("q", ks))
    for ks in range(4):
        qreads(ks)
    for ks in range(32):
        s = ks % 4
        e.wait(lg=("q", ks))
        e.i(f"{MF32} v[8:23], {V(32+8*s,4)}, {V(36+8*s,4)}, {'0' if ks == 0 else 'v[8:23]'}")
        if ks + 4 < 32:
            qreads(ks + 4)
        if ks == 27:
            lds_signal(CQ)
        if fill:
            e.i(fill.pop(0))
    e.i(f"s_mov_b32 s{sT1}, {hex(f32bits(0.25*math.log2(math.e)))}")
    e.i(f"v_mov_b64 {V(S1+14,2)}, 0")
    e.nop(10)
    for r in range(16):
        e.i(f"v_mul_f32 v{8+r}, s{sT1}, v{8+r}")
    for hd in range(2):
        b = 8 + 8*hd
        e.i(f"v_mul_f32 v{24+hd}, v{b}, v{b}")
        for r in range(1, 8):
            e.i(f"v_fmac_f32 v{24+hd}, v{b+r}, v{b+r}")
    e.i("v_mov_b32 v26, v24")
    e.i("v_mov_b32 v27, v25")
    for hd in range(2):
        for j in range(4):
            e.i(f"v_cvt_pk_bf16_f32 v{QA+4*hd+j}, v{8+8*hd+2*j}, v{8+8*hd+2*j+1}")
    e.i("v_permlane32_swap_b32 v24, v26")
    e.i("v_permlane32_swap_b32 v25, v27")
    e.i("v_add_f32 v24, v24, v26")
    e.i("v_add_f32 v25, v25, v27")
    stamp(3, "front")
    lds_poll(CKV, 2, sleep=0)
    stamp(4)
    e.lds(f"ds_read_b32 v206, v6 offset:{CTAG}")
    e.lds(f"ds_read_b32 v30, v6 offset:{CKM}")
    e.wait_all(lg=True)
    e.c("stand-in for the row max: |q| * max|k| >= max_k q.k ; used only while it cannot be far above the true max")
    e.i("v_mul_f32 v24, v24, v30")
    e.i("v_mul_f32 v25, v25, v30")
    e.i("v_sqrt_f32 v24, v24")
    e.i("v_sqrt_f32 v25, v25")
    e.i(f"s_mov_b32 s{sT1}, {hex(f32bits(opt.thr))}")
    e.i("v_max_f32 v26, v24, v25")
    e.i(f"v_cmp_nge_f32 vcc, s{sT1}, v26")
    e.i("v_cmp_u_f32 s[4:5], v24, v25")
    e.i("s_or_b64 s[4:5], s[4:5], vcc")
    if opt.force_fallback:
        e.i("s_branch L_fallback")
    else:
        e.i("s_cbranch_scc1 L_fallback")
    e.label("L_att_start")
    for r in range(16):
        e.i(f"v_sub_f32 v{NMA+r}, 0, v24")
        e.i(f"v_sub_f32 v{NMB+r}, 0, v25")
    lds_poll(CE7, 1, sleep=0)
    for j in range(3):
        e.lds(f"ds_read_b128 {V(KB+4*j,4)}, v{vK} offset:{j*KVS}", ("a", j))
        e.lds(f"ds_read_b128 {V(VB+8*j,4)}, v{vV0} offset:{j*KVS}")
        e.lds(f"ds_read_b128 {V(VB+8*j+4,4)}, v{vV1} offset:{j*KVS}")
    e.wait(lg=("a", 0))
    e.i(f"{MF32} {V(S0,16)}, {V(KB,4)}, {V(QA,4)}, {V(NMA,16)}")
    e.nop(11)
    e.wait_all(lg=True)
    stamp(5)
    def em(t):
        if t.endswith(":"): e.raw(t)
        else: e.i(t)
    def step(cur, nxt, pc, pp, K, Q, NM, O, Vb, after, noqk=False):
        for i in range(16):
            e.i(f"v_exp_f32 v{cur+i}, v{cur+i}")
            if i == 0:
                e.i(f"v_cvt_pk_bf16_f32 v{pp+7}, v{nxt+14}, v{nxt+15}")
                if not noqk:
                    e.i(f"{MF32} {V(nxt,16)}, {V(K,4)}, {V(Q,4)}, {V(NM,16)}")
                for t in after[0]: em(t)
            if i >= 2 and i % 2 == 0:
                j = (i - 2) // 2
                e.i(f"v_cvt_pk_bf16_f32 v{pc+j}, v{cur+2*j}, v{cur+2*j+1}")
            if i == 5:
                e.i(f"{MF32} {V(O,16)}, {V(Vb,4)}, {V(pp,4)}, {V(O,16)}")
                for t in after[1]: em(t)
            if i == 10:
                e.i(f"{MF32} {V(O,16)}, {V(Vb+4,4)}, {V(pp+4,4)}, {V(O,16)}")
                for t in after[2]: em(t)
    def shift(d):
        return [f"v_add_u32 v{v}, {hex(d & 0xffffffff)}, v{v}" for v in (vK, vV0, vV1)]
    if opt.full:
        slow = []
        SIG = lambda off: ["s_mov_b64 exec, 1", f"ds_add_u32 v6, v7 offset:{off}", "s_mov_b64 exec, -1"]
        def CHK(name, off, n):
            slow.append((name, off, n))
            return [f"v_readfirstlane_b32 s{sT0}, v5", f"s_cmp_ge_u32 s{sT0}, {n}", f"s_cbranch_scc0 L_slow_{name}", f"L_back_{name}:"]
        PRE = lambda off: [f"ds_read_b32 v5, v6 offset:{off}"]
        J0 = NE - 3
        for j in range(64):
            b3 = (j + 3) % 4
            slot = j + 3 if j < J0 else (j - J0 if j < J0 + 32 else (j - J0 - 32 if j < J0 + 48 else j - J0 - 48))
            off = slot * KVS
            rd = j + 3 < 64
            A = [[f"ds_read_b128 {V(KB+4*b3,4)}, v{vK} offset:{off}"] if rd else [], [], []]
            Bq = [[f"ds_read_b128 {V(VB+8*b3,4)}, v{vV0} offset:{off}"] if rd else [],
                  [f"ds_read_b128 {V(VB+8*b3+4,4)}, v{vV1} offset:{off}"] if rd else [],
                  [f"s_waitcnt lgkmcnt({2 if rd else 0})"] if j % 2 == 1 and j < 62 else []]
            assert J0 % 2 == 0
            if j == J0 - 1:
                A[2] += PRE(CA)
                Bq[2] += CHK("a", CA, 4) + SIG(CG) + shift(-R2)
            if j == J0 + 7:
                A[2] += PRE(CA2)
                Bq[2] += CHK("a2", CA2, 4)
            if j == J0 + 15:
                Bq[2] += SIG(CP1)
            if j == 31 and opt.stamps and not opt.lnclk:
                Bq[2] += [f"s_memrealtime {S(sSTAMP+12,2)}", f"s_memtime {S(sSTAMP+18,2)}"]
            if j == J0 + 31:
                A[2] += PRE(CL1)
                Bq[2] += CHK("l1", CL1, 1)
            if j == J0 + 47:
                A[2] += PRE(CH2)
                Bq[2] += CHK("h2", CH2, 4) + SIG(CR0) + shift(R1)
            if j == 62:
                A[1] += ["s_waitcnt vmcnt(0)"]
            step(S0, S1, P0, P1, KB+4*(j % 4), QB, NMB, OB, VB+8*((j-1) % 4), A)
            step(S1, S0, P1, P0, KB+4*((j+1) % 4), QA, NMA, OA, VB+8*(j % 4), Bq, noqk=(j == 63))
    e.label("L_att_done")
    if not opt.lnclk:
        stamp(7)
        cstamp(10)
    e.i("s_nop 0")
    e.i(f"v_cvt_pk_bf16_f32 v{P1+7}, v{S1+14}, v{S1+15}")
    e.i(f"{MF32} {V(OB,16)}, {V(VB+24,4)}, {V(P1,4)}, {V(OB,16)}")
    e.i("s_nop 0")
    e.i(f"{MF32} {V(OB,16)}, {V(VB+28,4)}, {V(P1+4,4)}, {V(OB,16)}")
    e.i(f"v_rcp_f32 v24, v{OA+8}")
    e.lg = []
    lds_signal(CAD)
    for hd, O in enumerate((OA, OB)):
        if hd == 1:
            e.i(f"v_rcp_f32 v24, v{OB+8}")
            e.nop(1)
        for r in range(8):
            e.i(f"v_mul_f32 v{O+r}, v{O+r}, v24")
        for j in range(4):
            e.i(f"v_cvt_pk_bf16_f32 v{8+4*hd+j}, v{O+2*j}, v{O+2*j+1}")
        for j in range(4):
            e.i(f"v_min_u32 v{8+4*hd+j}, -2, v{8+4*hd+j}")
        e.vmem(f"buffer_store_dwordx4 {V(8+4*hd,4)}, v{vL16}, {S(sWS,4)}, s{sOB} offen offset:{2048*hd} sc1")
    if opt.hint:
        e.c("hint for the readers (the data itself is checked against the marker)")
        e.i(f"s_lshl_b32 s{sT0}, s{sCB}, 7")
        e.i(f"s_lshl_b32 s{sT1}, s{sF}, 2")
        e.i(f"s_add_u32 s{sT0}, s{sT0}, s{sT1}")
        e.i(f"s_add_u32 s{sFLG}, s{sFLG}, 0x10000")
        e.i(f"s_add_u32 s{sT0}, s{sT0}, s{sFLG}")
        e.i("s_mov_b64 exec, 1")
        e.i(f"buffer_store_dword v206, v{vL16}, {S(sWS,4)}, s{sT0} offen sc1")
        e.i("s_mov_b64 exec, -1")
        e.i(f"v_readfirstlane_b32 s{sTAG}, v206")
        e.i(f"v_lshlrev_b32 v16, 7, v{vC}")
        e.i("v_and_b32 v17, 4, v1")
        e.i("v_add_u32 v16, v16, v17")
        e.i(f"s_and_b32 s{sT0}, s{sF}, 1")
        e.i(f"s_lshl_b32 s{sT0}, s{sT0}, 9")
        e.i(f"s_add_u32 s{sFLG}, s{sFLG}, s{sT0}")
        e.i(f"s_and_b32 s{sT0}, s{sF}, 2")
        e.i(f"s_lshl_b32 s{sT0}, s{sT0}, 2")
        e.i(f"s_add_u32 s{sFLG}, s{sFLG}, s{sT0}")
    stamp(8, "late")
    e.c("output projection: wave w -> row half w>>1, K half w&1, both column tiles (own tile first)")
    G, XR, OF = 104, 120, 40
    e.i(f"v_mov_b32 v0, v{vL16}")
    e.i("v_mov_b32 v3, v205")
    e.i(f"s_and_b32 s{sT1}, s{sF}, 1")
    e.i(f"s_lshr_b32 s{sT2}, s{sF}, 1")
    e.i(f"s_lshl_b32 s{sT0}, s{sRB}, 6")
    e.i(f"s_add_u32 s{sT0}, s{sT0}, s{sT2}")
    e.i(f"s_lshl_b32 s{sT2}, s{sT1}, 5")
    e.i(f"s_add_u32 s{sT0}, s{sT0}, s{sT2}")
    e.i(f"s_lshl_b32 s{sT0}, s{sT0}, 10")
    e.i(f"s_add_u32 s{sOFF}, s{sT0}, {WS_O}")
    for g in range(4):
        e.i(f"s_add_u32 s{sCH+g}, s{sCB}, {1+g}")
        e.i(f"s_and_b32 s{sCH+g}, s{sCH+g}, 3")
        e.i(f"s_lshl_b32 s{sCH+g}, s{sCH+g}, 13")
        e.i(f"s_add_u32 s{sOA+2*g}, s{sOFF}, s{sCH+g}")
        e.i(f"s_add_u32 s{sOA+2*g+1}, s{sOA+2*g}, 4096")
    lds_poll(CWO, 4, sleep=1)
    if opt.tailst: stamp(4)
    def oloads(g):
        for i in range(4):
            e.i(f"buffer_load_dwordx4 {V(OF+16*g+4*i,4)}, v0, {S(sWS,4)}, s{sOA+2*g+(i>>1)} offen offset:{2048*(i&1)} sc1")
    if not opt.hint:
        for g in range(3):
            oloads(g)
    e.i(f"s_mul_i32 s{sT0}, s{sT1}, {32768+64}")
    e.i(f"v_lshl_add_u32 v2, v{vH}, 9, v{vTR}")
    e.i(f"v_xor_b32 v2, s{sT0}, v2")
    for g in range(4):
        e.i(f"v_add_u32 v{G+2*g}, s{sCH+g}, v2")
        e.i(f"v_xor_b32 v{G+2*g+1}, 64, v{G+2*g}")
    for q in range(4):
        e.i(f"v_mov_b64 {V(XR+2*q,2)}, {V(232+2*q,2)}")
    for i in range(16):
        for c2 in range(2):
            for t in range(2):
                e.lds(f"ds_read_b64_tr_b16 {V(128+8*i+4*c2+2*t,2)}, v{G+2*(i//4)+c2} offset:{(i%4)*2048+1024*t}")
    e.i(f"s_lshl_b32 s{sT2}, s{sF}, 12")
    e.i(f"s_add_u32 s{sT1}, s{sT2}, {R1}")
    e.i(f"v_add_u32 v1, s{sT1}, v0")
    e.i(f"s_xor_b32 s{sT2}, s{sT2}, 4096")
    e.i(f"s_add_u32 s{sT2}, s{sT2}, {R1}")
    e.i(f"v_add_u32 v2, s{sT2}, v0")
    e.i(f"s_and_b32 s{sT2}, s{sF}, 2")
    e.i(f"s_lshl_b32 s{sT2}, s{sT2}, 1")
    e.i(f"v_add_u32 v4, s{sT2}, v6")
    e.i(f"s_mov_b32 s{sSEG}, 0")
    e.i(f"s_mov_b32 s{sCNT}, {hex(opt.spin)}")
    if opt.tailst: stamp(6)
    lds_poll(CAD, 4, sleep=0)
    if opt.hint:
        top, done = lbl("hp"), lbl("hpd")
        spin_init()
        e.label(top)
        e.i(f"buffer_load_dword v17, v16, {S(sWS,4)}, s{sFLG} offen sc1")
        e.i("s_waitcnt vmcnt(0)")
        e.i(f"v_cmp_ne_u32 vcc, s{sTAG}, v17")
        e.i(f"s_cbranch_vccz {done}")
        spin_tail(top, done, opt.hsleep)
        e.label(done)
        stamp(1, "late")
        for g in range(4):
            oloads(g)
    else:
        e.i("s_waitcnt vmcnt(12)")
        stamp(1, "late")
        oloads(3)
    e.c("o fragments: check that every dword was written; if not, re-read that group until it is, then refresh the rest")
    def ocheck(g):
        b = OF + 16 * g
        e.i(f"v_max3_u32 v5, v{b}, v{b+1}, v{b+2}")
        for k in range(3, 15, 2):
            e.i(f"v_max3_u32 v5, v5, v{b+k}, v{b+k+1}")
        e.i(f"v_max_u32 v5, v5, v{b+15}")
        e.i("v_cmp_eq_u32 vcc, -1, v5")
    for g in range(4):
        e.i(f"s_waitcnt vmcnt({12-4*g})")
        b = OF + 16 * g
        ocheck(g)
        e.i(f"s_cbranch_vccnz L_oretry_{g}")
        e.label(f"L_ogo_{g}")
        if opt.tailst and g in (0, 2): stamp(9 + g // 2)
        for i in range(4):
            for c2 in (1, 0):
                a = 8 + 16 * c2
                k = 4 * g + i
                e.i(f"{MF32} {V(a,16)}, {V(128+8*k+4*c2,4)}, {V(b+4*i,4)}, {'0' if k == 0 else V(a,16)}")
    stamp(2, "late")
    for t in range(8):
        e.i(f"v_lshlrev_b32 v{128+2*t}, 16, v{XR+t}")
        e.i(f"v_and_b32 v{129+2*t}, s{sMASK}, v{XR+t}")
    e.lg = []
    for q in range(4):
        e.lds(f"ds_write_b128 v1, {V(24+4*q,4)} offset:{q*1024}")
    lds_signal(CE0, va=4)
    e.i(f"s_lshl_b32 s{sT1}, s{sF}, 2")
    e.i(f"v_add_u32 v1, s{sT1}, v6")
    e.i(f"s_add_u32 s{sT1}, s{sRING}, 4096")
    e.i(f"v_add_u32 v0, s{sT1}, v0")
    lds_poll(CGD, 1, sleep=0, va=1)
    e.lds("ds_read_b128 v[40:43], v0")
    e.lds("ds_read_b128 v[44:47], v0 offset:1024")
    lds_poll(CE0, 2, sleep=0, va=4)
    for q in range(4):
        e.lds(f"ds_read_b128 {V(24+4*q,4)}, v2 offset:{q*1024}", ("e", q))
    for t in range(8):
        e.i(f"v_lshlrev_b32 v{G+2*t}, 16, v{40+t}")
        e.i(f"v_and_b32 v{G+1+2*t}, s{sMASK}, v{40+t}")
    for q in range(4):
        e.wait(lg=("e", q))
        for r in range(4*q, 4*q+4):
            e.i(f"v_add_f32 v{8+r}, v{8+r}, v{24+r}")
        for r in range(4*q, 4*q+4):
            e.i(f"v_fmac_f32 v{128+r}, v{8+r}, v{G+r}")
        for j in range(2):
            e.i(f"v_cvt_pk_bf16_f32 v{XR+2*q+j}, v{128+4*q+2*j}, v{128+4*q+2*j+1}")
        e.vmem(f"buffer_store_dwordx2 {V(XR+2*q,2)}, v3, {S(sOUT,4)}, s{sXO} offen offset:{16*q}")
    if opt.stamps:
        e.wait_all(vm=True)
        stamp(3, "late")
    dump_stamps()
    e.i("s_endpgm")
    for g in range(4):
        e.label(f"L_oretry_{g}")
        e.i(f"s_sub_u32 s{sCNT}, s{sCNT}, 1")
        e.i(f"s_cbranch_scc1 L_odone_{g}")
        if opt.osleep:
            e.i(f"s_sleep {opt.osleep}")
        oloads(g)
        e.i("s_waitcnt vmcnt(0)")
        ocheck(g)
        e.i(f"s_cbranch_vccnz L_oretry_{g}")
        e.label(f"L_odone_{g}")
        for g2 in range(g + 1, 4):
            oloads(g2)
        e.i(f"s_branch L_ogo_{g}")
    if opt.full:
        for name, off, n in slow:
            e.label(f"L_slow_{name}")
            lds_poll(off, n, sleep=0)
            e.i(f"s_branch L_back_{name}")

    e.label("L_fallback")
    e.i("v_mov_b32 v24, 0xff800000")
    e.i("v_mov_b32 v25, 0xff800000")
    e.i(f"s_mov_b32 s{sT1}, 0")
    e.i(f"s_mov_b32 s{sCNT}, 31")
    e.label("L_fb_loop")
    e.i(f"buffer_load_dwordx4 v[8:11], v{vL16}, {S(sWS,4)}, s{sT1} offen sc1")
    e.i(f"buffer_load_dwordx4 v[12:15], v{vL16}, {S(sWS,4)}, s{sT1} offen offset:2048 sc1")
    e.i(f"s_add_u32 s{sT1}, s{sT1}, 4096")
    e.i("s_waitcnt vmcnt(0)")
    for k in range(2):
        e.i(f"{MF32} {V(NMA,16)}, {V(8+4*k,4)}, {V(QA,4)}, 0")
        e.i(f"{MF32} {V(NMB,16)}, {V(8+4*k,4)}, {V(QB,4)}, 0")
        e.nop(12)
        for r in range(0, 16, 2):
            e.i(f"v_max3_f32 v24, v24, v{NMA+r}, v{NMA+r+1}")
        for r in range(0, 16, 2):
            e.i(f"v_max3_f32 v25, v25, v{NMB+r}, v{NMB+r+1}")
    e.i(f"s_sub_u32 s{sCNT}, s{sCNT}, 1")
    e.i("s_cbranch_scc0 L_fb_loop")
    e.i("v_mov_b32 v26, v24")
    e.i("v_mov_b32 v27, v25")
    e.nop(2)
    e.i("v_permlane32_swap_b32 v24, v26")
    e.i("v_permlane32_swap_b32 v25, v27")
    e.i("v_max_f32 v24, v24, v26")
    e.i("v_max_f32 v25, v25, v27")
    e.i("s_branch L_att_start")

    e.label("L_pre_7")
    e.vm = []
    e.lg = []
    e.i("s_setprio 3")
    e.i(f"s_bitcmp1_b32 s{sCB}, 0")
    e.i("v_lshlrev_b32 v40, 4, v1")
    e.i("s_waitcnt lgkmcnt(0)")
    e.i(f"s_cselect_b64 {S(sWKV,2)}, s[54:55], s[52:53]")
    e.i(f"s_load_dword s{sTAG}, s[68:69], {hex(WS_EPOCH)}")
    e.i(f"s_mov_b64 {S(sX,2)}, s[48:49]")
    for i in range(4):
        e.i(f"s_mov_b32 m0, {R2 + 4096*i}")
        e.i(f"s_mov_b32 s{sT0}, {4096*i}")
        for k in range(4):
            e.vmem(f"buffer_load_dwordx4 v40, {S(sWKV,4)}, s{sT0} offen offset:{1024*k} lds", "wkv")
    e.i("s_barrier")
    setup()
    e.i("v_lshrrev_b32 v42, 4, v1")
    e.i("v_and_b32 v43, 15, v1")
    e.i(f"s_lshr_b32 s{sT0}, s{sCB}, 2")
    e.i(f"s_mul_i32 s{sT0}, s{sT0}, {XN_RH}")
    e.i(f"s_bfe_u32 s{sT1}, s{sCB}, 0x10001")
    e.i(f"s_lshl_b32 s{sT1}, s{sT1}, 8")
    e.i(f"s_add_u32 s{sT0}, s{sT0}, s{sT1}")
    e.i(f"s_add_u32 s{sT0}, s{sT0}, {R1}")
    e.i("v_mul_u32_u24 v44, 528, v42")
    e.i("v_lshl_add_u32 v44, v43, 4, v44")
    e.i(f"v_add_u32 v44, s{sT0}, v44")
    e.i("v_lshlrev_b32 v45, 8, v42")
    e.i(f"v_lshl_add_u32 v45, v{vR}, 5, v45")
    e.i(f"v_lshl_add_u32 v45, v{vC}, 3, v45")
    e.i(f"v_add_u32 v45, {R2}, v45")
    for r in range(4):
        e.i(f"v_mov_b32 v{20+r}, 0x3f803f80")
    e.i(f"s_lshl_b32 s{sT2}, s{sRB}, 1")
    e.i(f"s_lshr_b32 s{sOFF2}, s{sCB}, 2")
    e.i(f"s_add_u32 s{sT2}, s{sT2}, s{sOFF2}")
    e.i(f"s_lshl_b32 s{sT2}, s{sT2}, 11")
    e.i(f"s_add_u32 s{sT2}, s{sT2}, s{sT1}")
    e.i(f"v_lshlrev_b32 v46, 3, v{vH}")
    e.i("v_lshl_add_u32 v46, v43, 4, v46")
    e.i(f"s_lshl_b32 s{sOFF2}, s{sRB}, 7")
    e.i(f"s_lshl_b32 s{sOFF}, s{sCB}, 3")
    e.i(f"s_add_u32 s{sOFF2}, s{sOFF2}, s{sOFF}")
    e.i(f"v_mov_b32 v18, {hex(WS_KVF)}")
    e.i(f"v_lshrrev_b32 v{vW1}, 2, v1")
    e.i(f"v_lshlrev_b32 v19, 7, v{vW1}")
    e.i(f"v_lshl_add_u32 v19, v{vC}, 4, v19")
    e.i("v_lshlrev_b32 v31, 11, v1")
    e.i(f"v_mul_u32_u24 v{vW1}, 3584, v{vW1}")
    e.i(f"v_lshl_add_u32 v{vW1}, v{vC}, 4, v{vW1}")
    e.i(f"v_lshlrev_b32 v{vT0}, 6, v{vR}")
    e.i(f"v_lshl_add_u32 v{vT0}, v{vCG}, 5, v{vT0}")
    e.i(f"v_lshl_add_u32 v{vT0}, v{vC}, 3, v{vT0}")
    e.i(f"v_lshl_add_u32 v{vT0}, v{vH}, 9, v{vT0}")
    e.i(f"v_add_u32 v{vT0}, s{sRING}, v{vT0}")
    e.i("s_waitcnt lgkmcnt(0)")
    e.i(f"s_mul_i32 s{sTAG}, s{sTAG}, 0x9e3779b1")
    e.i(f"s_add_u32 s{sTAG}, s{sTAG}, 0x7f4a7c15")
    e.i(f"v_mov_b32 v16, s{sTAG}")
    e.lds(f"ds_write_b32 v6, v16 offset:{CTAG}")
    e.wait(vm="wkv")
    stamp(1, "front")
    for ks in range(16):
        e.lds(f"ds_read_b64_tr_b16 {V(128+4*ks,2)}, v45 offset:{ks*1024}")
        e.lds(f"ds_read_b64_tr_b16 {V(130+4*ks,2)}, v45 offset:{ks*1024+128}")
    lds_signal(CXN)
    e.i(f"v_add_u32 v41, {R2}, v{vSP}")
    e.i(f"s_mov_b32 exec_lo, {hex((1 << NE) - 1)}")
    e.i(f"s_mov_b32 exec_hi, {hex((1 << NE) - 1)}")
    e.lds(f"ds_write_b128 v41, {V(vSD,4)} offset:2048")
    e.i("s_mov_b64 exec, -1")
    lds_poll(CRW, 2, sleep=0)
    for ks in range(16):
        e.lds(f"ds_read_b128 {V(64+4*ks,4)}, v44 offset:{ks*2112}", ("k", ks), guard=False)
    lds_signal(CRC)
    e.i(f"s_bitcmp1_b32 s{sCB}, 0")
    e.i("s_cbranch_scc1 L_w7_v")
    lg_save = list(e.lg)
    def kvloop(isV):
        for ks in range(16):
            W, Xf = V(128+4*ks, 4), V(64+4*ks, 4)
            a, b = ("v[20:23]", W) if isV else (W, "v[20:23]")
            e.i(f"{MF16} v[12:15], {a}, {b}, {'0' if ks == 0 else 'v[12:15]'}")
            e.wait(lg=("k", ks))
            a, b = (Xf, W) if isV else (W, Xf)
            e.i(f"{MF16} v[8:11], {a}, {b}, {'0' if ks == 0 else 'v[8:11]'}")
    kvloop(False)
    stamp(8, "front")
    e.i(f"v_lshl_add_u32 v46, v{vCG}, 9, v46")
    e.i("v_lshl_add_u32 v47, v43, 2, v6")
    lds_poll(CST, 2, sleep=0)
    e.i(f"ds_read2_b32 v[24:25], v47 offset0:{STAT//4} offset1:{STAT//4+16}")
    e.wait_all(lg=True)
    for r in range(4):
        e.i(f"v_fmac_f32 v{8+r}, v24, v{12+r}")
    for r in range(4):
        e.i(f"v_mul_f32 v{8+r}, v25, v{8+r}")
    e.i("v_cvt_pk_bf16_f32 v12, v8, v9")
    e.i("v_cvt_pk_bf16_f32 v13, v10, v11")
    e.i(f"buffer_store_dwordx2 v[12:13], v46, {S(sWS,4)}, s{sT2} offen sc1")
    e.i("v_mul_f32 v17, v8, v8")
    for r in range(1, 4):
        e.i(f"v_fmac_f32 v17, v{8+r}, v{8+r}")
    e.i("v_mov_b32 v15, v17")
    e.nop(2)
    e.i("v_permlane32_swap_b32 v17, v15")
    e.i("v_add_f32 v17, v17, v15")
    e.i("v_mov_b32 v15, v17")
    e.nop(2)
    e.i("v_permlane16_swap_b32 v17, v15")
    e.i("v_add_f32 v17, v17, v15")
    for m in ("row_ror:1", "row_ror:2", "row_ror:4", "row_ror:8"):
        e.nop(2)
        e.i(f"v_max_u32_dpp v17, v17, v17 {m} row_mask:0xf bank_mask:0xf")
    e.i("s_branch L_w7_pub")
    e.label("L_w7_v")
    e.lg = lg_save
    kvloop(True)
    stamp(8, "front")
    e.i(f"v_lshl_add_u32 v46, v{vCG}, 8, v46")
    e.i(f"s_add_u32 s{sT2}, s{sT2}, s{sT1}")
    e.i(f"s_add_u32 s{sT2}, s{sT2}, 1024")
    e.i("v_lshl_add_u32 v47, v42, 4, v6")
    lds_poll(CST, 2, sleep=0)
    e.i(f"ds_read_b128 v[24:27], v47 offset:{STAT}")
    e.i(f"ds_read_b128 v[32:35], v47 offset:{STAT+64}")
    e.wait_all(lg=True)
    for r in range(4):
        e.i(f"v_fmac_f32 v{8+r}, v{24+r}, v{12+r}")
    for r in range(4):
        e.i(f"v_mul_f32 v{8+r}, v{32+r}, v{8+r}")
    e.i("v_cvt_pk_bf16_f32 v12, v8, v9")
    e.i("v_cvt_pk_bf16_f32 v13, v10, v11")
    e.i(f"buffer_store_dwordx2 v[12:13], v46, {S(sWS,4)}, s{sT2} offen sc1")
    e.i("v_mov_b32 v17, 0")
    e.label("L_w7_pub")
    stamp(2)
    e.i("s_mov_b64 exec, 1")
    e.wait_all(vm=True)
    e.i(f"buffer_store_dwordx2 v[16:17], v18, {S(sWS,4)}, s{sOFF2} offen sc1")
    e.i("s_mov_b64 exec, -1")
    stamp(9)
    e.c("wait for all 256 K/V producers, pass max |k|^2 on through LDS")
    top, done = lbl("kv"), lbl("kvd")
    e.i(f"s_mov_b32 s{sT1}, {hex(WS_KVF)}")
    e.i(f"s_bfe_u32 s{sT2}, s2, 0x40003")
    e.i(f"s_lshl_b32 s{sT2}, s{sT2}, 7")
    if opt.touch == 3:
        e.c("touch 1/8 of the w1 slice -> L2; the first poll queues behind it")
        if opt.twait == 1:
            lds_poll(CWQ, 1, sleep=1)
        if opt.twait == 2:
            lds_poll(CWI, 1, sleep=1)
        touch_setup(sOFF)
        touches(sOFF, 0, opt.ntouch)
    if opt.kvdelay:
        e.i(f"s_sleep {opt.kvdelay}")
    spin_init()
    e.label(top)
    e.i(f"buffer_load_dwordx4 v[32:35], v19, {S(sWS,4)}, s{sT1} offen sc1")
    e.i(f"buffer_load_dwordx4 v[36:39], v19, {S(sWS,4)}, s{sT1} offen offset:2048 sc1")
    e.wait_all(vm=True)
    if opt.fstart == 3:
        lds_signal(CTL)
    e.i("v_xor_b32 v32, v16, v32")
    e.i("v_xor_b32 v34, v16, v34")
    e.i("v_xor_b32 v36, v16, v36")
    e.i("v_xor_b32 v38, v16, v38")
    e.i("v_or3_b32 v32, v32, v34, v36")
    e.i("v_or_b32 v32, v32, v38")
    e.i("v_cmp_ne_u32 vcc, 0, v32")
    e.i("v_max_u32 v30, v33, v37")
    e.i(f"s_cbranch_vccz {done}")
    spin_tail(top, done, opt.kvsleep)
    e.label(done)
    lds_signal(CKV)
    e.c("blocks 0..6 -> early slots in R2")
    e.i(f"s_mov_b32 s{sOFF2}, 0")
    e.i(f"s_mov_b32 s{sT1}, {R2}")
    kv_dma(NE, sOFF2, sT1, 1, 1)
    if opt.kvtouch:
        e.c("touch 64 of the 1024 K/V lines -> L2 (the workgroups of an XCD cover all of them)")
        e.i(f"buffer_load_dword v106, v31, {S(sWS,4)}, s{sT2} offen sc1")
    for m in ("row_ror:1", "row_ror:2", "row_ror:4", "row_ror:8"):
        e.nop(2)
        e.i(f"v_max_u32_dpp v30, v30, v30 {m} row_mask:0xf bank_mask:0xf")
    e.i("v_mov_b32 v29, v30")
    e.nop(2)
    e.i("v_permlane16_swap_b32 v29, v30")
    e.i("v_max_u32 v30, v29, v30")
    e.i("v_mov_b32 v29, v30")
    e.nop(2)
    e.i("v_permlane32_swap_b32 v29, v30")
    e.i("v_max_u32 v30, v29, v30")
    e.lds(f"ds_write_b32 v6, v30 offset:{CKM}")
    lds_signal(CKV)
    stamp(4, "front")
    e.i(f"s_waitcnt vmcnt({1 if opt.kvtouch else 0})")
    lds_signal(CE7)
    e.c("workgroup 0 renews the epoch word: every producer has read it by now")
    e.i("s_cmp_lg_u32 s2, 0")
    e.i("s_cbranch_scc1 L_ffn")
    e.i(f"v_mov_b32 v29, {hex(WS_EPOCH)}")
    e.i("s_mov_b64 exec, 1")
    e.i(f"buffer_store_dword v16, v29, {S(sWS,4)}, 0 offen sc1")
    e.i("s_mov_b64 exec, -1")

    ACC = 8
    A3, B3 = 72, 96
    e.label("L_ffn")
    e.vm = []
    e.lg = []
    e.i("s_setprio 3")
    e.c("FFN1 tiles of wave f: (f + (cb&1)) and (f + 4 + (cb&1)) mod 7")
    e.c("k order is rotated by 4*(rb&7) steps: the 8 workgroups of an XCD that share this w1 slice take turns missing")
    e.i(f"s_and_b32 s{sTILE}, s{sCB}, 1")
    e.i(f"s_add_u32 s{sTILE}, s{sTILE}, s{sF}")
    e.i(f"s_mul_i32 s{sT2}, s{sCB}, 448")
    e.i(f"s_lshl_b32 s{sT1}, s{sTILE}, 6")
    e.i(f"s_add_u32 s{sOFF}, s{sT2}, s{sT1}")
    e.i(f"s_add_u32 s{sE1}, s{sOFF}, {512*3584}")
    e.i(f"s_and_b32 s{sT1}, s{sRB}, 7")
    e.i(f"s_mul_i32 s{sT0}, s{sT1}, {64*3584}")
    e.i(f"s_add_u32 s{sOFF}, s{sOFF}, s{sT0}")
    e.i(f"s_add_u32 s{sW2T}, s{sT2}, s{sT0}")
    e.i(f"s_lshl_b32 s{sT0}, s{sF}, 7")
    e.i(f"s_add_u32 s{sW2T}, s{sW2T}, s{sT0}")
    e.i(f"s_cmp_ge_u32 s{sTILE}, 3")
    e.i(f"s_cselect_b32 s{sE2}, -3, 4")
    for g in range(8):
        e.i(f"s_add_u32 s{sT0}, s{sT1}, {g}")
        e.i(f"s_and_b32 s{sT0}, s{sT0}, 7")
        e.i(f"s_mul_i32 s{sT0}, s{sT0}, {4*1056}")
        e.i(f"v_add_u32 v{232+2*g}, s{sT0}, v{vXN0}")
        e.i(f"v_add_u32 v{233+2*g}, s{sT0}, v{vXN1}")
    e.i(f"v_lshrrev_b32 v{vTCH}, 2, v1")
    e.i(f"v_lshlrev_b32 v{vTCH}, 10, v{vTCH}")
    e.i(f"v_lshl_add_u32 v{vTCH}, v{vC}, 8, v{vTCH}")
    e.i("v_mul_u32_u24 v125, 3584, v1")
    e.i(f"v_lshl_add_u32 v{vTR}, v{vH}, 9, v{vTR}")
    e.i(f"s_and_b32 s{sT1}, s{sF}, 1")
    e.i(f"s_lshl_b32 s{sT1}, s{sT1}, 6")
    e.i(f"v_xor_b32 v{vTR}, s{sT1}, v{vTR}")
    e.i(f"v_add_u32 v{vTR}, s{sRING}, v{vTR}")
    e.i(f"v_xor_b32 v{vT1}, 64, v{vTR}")
    e.i(f"s_lshr_b32 s{sT1}, s{sF}, 1")
    e.i(f"s_lshl_b32 s{sT1}, s{sT1}, 10")
    e.i(f"v_add_u32 v0, s{sT1}, v{vL16}")
    e.i("v_xor_b32 v2, 0x400, v0")
    e.i("v_lshrrev_b32 v122, 3, v1")
    e.i("v_lshlrev_b32 v122, 7, v122")
    e.i("v_and_b32 v3, 7, v1")
    e.i("v_lshl_add_u32 v122, v3, 2, v122")
    e.i(f"s_lshr_b32 s{sT1}, s{sCB}, 1")
    e.i(f"s_lshl_b32 s{sT1}, s{sT1}, 3")
    e.i("s_mov_b32 s4, 0x14100400")
    e.i("s_mov_b32 s5, 0x14100400")
    e.i(f"s_lshr_b64 s[4:5], s[4:5], s{sT1}")
    for i in range(4):
        e.i(f"s_bfe_u32 s{sUN+i}, s4, {hex(0x80000 + 8*i)}")
    e.i("s_mov_b32 s4, 0x08180c08")
    e.i("s_mov_b32 s5, 0x0000180c")
    e.i(f"s_lshr_b64 s[4:5], s[4:5], s{sT1}")
    for i in range(3):
        e.i(f"s_bfe_u32 s{sUN+4+i}, s4, {hex(0x80000 + 8*i)}")
    for i in range(7):
        e.i(f"s_lshl_b32 s{sUN+i}, s{sUN+i}, 11")
    e.i(f"s_mul_i32 s{sCH}, s{sF}, {448*1024}")
    e.i(f"s_lshl_b32 s{sT0}, s{sCB}, 7")
    e.i(f"s_add_u32 s{sCH}, s{sCH}, s{sT0}")
    e.i(f"s_mul_i32 s{sT0}, s{sRB}, 112")
    e.i(f"s_mul_i32 s{sT1}, s{sF}, 28")
    e.i(f"s_add_u32 s{sT1}, s{sT0}, s{sT1}")
    e.i(f"s_lshl_b32 s{sT1}, s{sT1}, 11")
    e.i(f"s_add_u32 s{sCH+1}, s{sT1}, {WS_H}")
    e.i(f"s_mul_i32 s{sT1}, s{sCB}, 14")
    e.i(f"s_add_u32 s{sT0}, s{sT0}, s{sT1}")
    e.i(f"s_lshl_b32 s{sT1}, s{sTILE}, 1")
    e.i(f"s_add_u32 s{sT0}, s{sT0}, s{sT1}")
    e.i(f"s_lshl_b32 s{sT0}, s{sT0}, 11")
    e.i(f"s_add_u32 s{sCH+2}, s{sT0}, {WS_H}")
    e.i(f"s_lshl_b32 s{sT0}, s{sCB}, 7")
    e.i(f"s_lshl_b32 s{sT1}, s{sF}, 2")
    e.i(f"s_add_u32 s{sT0}, s{sT0}, s{sT1}")
    e.i(f"s_add_u32 s{sCH+3}, s{sT0}, s{sFLG}")
    e.i(f"s_lshl_b32 s{sT0}, s{sF}, 4")
    e.i("s_mov_b64 s[4:5], 0x0f0f")
    e.i(f"s_lshl_b64 s[4:5], s[4:5], s{sT0}")
    lds_poll(CXN, 9, sleep=1)
    e.i(f"ds_read_b32 v123, v6 offset:{CTAG}")
    e.i("v_mov_b64 v[208:209], -1")
    e.i("v_mov_b64 v[210:211], -1")
    e.i(f"s_lshl_b32 s{sOFF2}, s{sF}, 11")
    e.i(f"s_add_u32 s{sOFF2}, s{sOFF2}, {NE*2048}")
    e.i(f"s_mul_i32 s{sT1}, s{sF}, {KVS}")
    lds_poll(CKV, 1, sleep=1)
    e.i(f"v_readfirstlane_b32 s{sTAG}, v123")
    lds_poll(CQ, 4, sleep=0)
    e.c("blocks 7..38 -> slots 0..31; mark the o fragments of attention wave f as not yet written")
    kv_dma(8, sOFF2, sT1, 4, 4)
    e.lds(f"ds_write_b128 v{vSP}, {V(vSD,4)} offset:2048")
    for hd in range(2):
        e.vmem(f"buffer_store_dwordx4 v[208:211], v{vL16}, {S(sWS,4)}, s{sOB} offen offset:{2048*hd} sc1", "clr")
    if opt.t1:
        e.vmem(f"buffer_load_dword v124, v125, {S(sW1,4)}, s{sW2T} offen")
    e.wait(vm=("kv", 1))
    lds_signal(CA)
    e.wait(vm="clr")
    lds_signal(CA2)
    e.i(f"v_add_u32 v{vSP}, {R1}, v{vSP}")
    lds_poll(CA2, 4, sleep=1)
    lds_poll(CG, 4, sleep=1)
    e.i(f"s_setprio {opt.fprio1}")
    stamp(2, "late")

    def paced(n):
        if n == 0:
            e.wait_all(lg=True)
        elif len(e.lg) > n:
            e.i(f"s_waitcnt lgkmcnt({n})")
            del e.lg[: len(e.lg) - n]
    def h_store(a0, prio):
        e.i("s_setprio 3")
        for rh in range(2):
            a = a0 + 16 * rh
            for j in range(8):
                e.i(f"v_cvt_pk_bf16_f32 v{a+j}, v{a+2*j}, v{a+2*j+1}")
            for j in range(8):
                e.i(f"v_pk_max_i16 v{a+j}, v{a+j}, 0")
            for s in range(2):
                e.vmem(f"buffer_store_dwordx4 {V(a+4*s,4)}, v{vL16}, {S(sWS,4)}, s{sCH+2} offen offset:{(2*s+rh)*1024} sc1", "hst")
        e.i(f"s_setprio {prio}")
    def h_flag(off, lanes=1):
        e.wait(vm="hst")
        e.i(f"s_mov_b64 exec, {lanes}")
        e.vmem(f"buffer_store_dword v123, v{vL16}, {S(sWS,4)}, s{sCH+3} offen offset:{off} sc1")
        e.i("s_mov_b64 exec, -1")
    D1 = 7
    def dma1(n):
        e.i(f"s_add_u32 m0, s{sRING}, {(n % D1) * 1024}")
        e.i("s_nop 0")
        e.vmem(f"buffer_load_dwordx4 v{vW1}, {S(sW1,4)}, s{sOFF} offen lds", ("w", n))
        e.i(f"s_add_u32 s{sOFF}, s{sOFF}, {16*3584}")
        if n % 4 == 3:
            e.i(f"s_cmp_ge_u32 s{sOFF}, s{sE1}")
            e.i(f"s_cselect_b32 s{sT0}, {512*3584}, 0")
            e.i(f"s_sub_u32 s{sOFF}, s{sOFF}, s{sT0}")
        if n == 31:
            e.i(f"s_lshl_b32 s{sT0}, s{sE2}, 6")
            e.i(f"s_add_u32 s{sOFF}, s{sOFF}, s{sT0}")
            e.i(f"s_add_u32 s{sE1}, s{sE1}, s{sT0}")
    def br1(n, rh):
        ks = n % 32
        e.lds(f"ds_read_b128 {V(B3+8*(n%3)+4*rh,4)}, v{232+2*(ks//4)+rh} offset:{(ks%4)*1056}", ("f", n))
    def tr1(n, t):
        e.lds(f"ds_read_b64_tr_b16 {V(A3+8*(n%3)+2*t,2)}, v{vT0} offset:{(n%D1)*1024+256*t}", ("f", n))
    e.c("FFN1: two rounds of one column tile x two row halves")
    for n in range(D1):
        dma1(n)
    for n in range(2):
        br1(n, 0); br1(n, 1)
        e.wait(vm=("w", n))
        tr1(n, 0); tr1(n, 1)
    for n in range(64):
        if n == 32:
            e.i(f"s_cmp_eq_u32 s{sWAVE}, 7")
            e.i("s_cbranch_scc1 L_w7_rest")
        s = n % 3
        e.wait(lg=("f", n), vm=("w", n + 2))
        for rh in range(2):
            a = ACC + 32 * (n // 32) + 16 * rh
            e.i(f"{MF32} {V(a,16)}, {V(A3+8*s,4)}, {V(B3+8*s+4*rh,4)}, {'0' if n % 32 == 0 else V(a,16)}")
            if rh == 0 and n + D1 < 64:
                dma1(n + D1)
            if n + 2 < 64:
                tr1(n + 2, rh)
                br1(n + 2, rh)
                if n >= opt.d1:
                    paced(opt.pace1)
        if n == 33:
            h_store(ACC, opt.fprio1)
            e.i(f"s_lshl_b32 s{sT0}, s{sE2}, 12")
            e.i(f"s_add_u32 s{sCH+2}, s{sCH+2}, s{sT0}")
        if n == 42:
            h_flag(0)
        if n == 58:
            e.vmem(f"buffer_load_dword v124, v122, {S(sWS,4)}, s{sFLG} offen sc1", "fl")
    lds_signal(CX)
    stamp(3)

    HR = [128, 136, 144, 152, 160]
    PH = 5
    A2 = 168
    def set_w(u):
        e.i(f"s_lshl_b32 s{sOFF}, s{sUN+u}, 3")
        e.i(f"s_add_u32 s{sOFF}, s{sOFF}, s{sCH}")
    def set_h(u):
        e.i(f"s_add_u32 s{sOFF2}, s{sUN+u}, s{sCH+1}")
    def dma2(ks, a):
        e.i(f"s_add_u32 m0, s{sRING}, {(ks % 3) * 2048 + a * 1024}")
        e.i("s_nop 0")
        e.vmem(f"buffer_load_dwordx4 v{vSW}, {S(sW2,4)}, s{sOFF} offen lds", ("w2", ks))
        e.i(f"s_add_u32 s{sOFF}, s{sOFF}, 8192")
        if a == 1 and ks % 4 == 3 and ks < 27:
            set_w(ks // 4 + 1)
    def hl2(ks, rh):
        r = HR[ks % PH] + 4 * rh
        e.vmem(f"buffer_load_dwordx4 {V(r,4)}, v{2 if rh else 0}, {S(sWS,4)}, s{sOFF2} offen sc1", ("h", ks))
        if rh:
            e.i(f"s_add_u32 s{sOFF2}, s{sOFF2}, 2048")
            if ks % 4 == 3 and ks < 27:
                set_h(ks // 4 + 1)
    def t32(ks, i):
        ct, t = i >> 1, i & 1
        e.lds(f"ds_read_b64_tr_b16 {V(A3+8*(ks%2)+4*ct+2*t,2)}, v{vT1 if ct else vTR} offset:{(ks%3)*2048+1024*t}", ("f2", ks))
    def wo_dma():
        e.c("wo slice -> R0 by DMA once attention has left it")
        e.i("s_setprio 3")
        lds_poll(CR0, 4, sleep=8)
        e.i(f"s_lshl_b32 s{sU0}, s{sF}, 17")
        e.i(f"s_lshl_b32 s{sU1}, s{sCB}, 7")
        e.i(f"s_add_u32 s{sU0}, s{sU0}, s{sU1}")
        e.i(f"s_lshl_b32 s{sU1}, s{sF}, 14")
        for i in range(16):
            e.i(f"s_mov_b32 m0, s{sU1}")
            e.i(f"s_add_u32 s{sU1}, s{sU1}, 1024")
            e.vmem(f"buffer_load_dwordx4 v{vSW}, {S(sWO,4)}, s{sU0} offen lds", "wo")
            e.i(f"s_add_u32 s{sU0}, s{sU0}, 8192")
    def prefill():
        set_w(0)
        set_h(0)
        for ks in range(3):
            dma2(ks, 0); dma2(ks, 1)
        for ks in range(PH - 1):
            hl2(ks, 0); hl2(ks, 1)
    e.i("s_setprio 3")
    e.wait(vm="fl")
    e.i(f"v_cmp_ne_u32 vcc, s{sTAG}, v124")
    e.i("s_and_b64 vcc, vcc, s[4:5]")
    e.i("s_cbranch_scc1 L_slow_p1")
    e.label("L_back_p1")
    stamp(6)
    prefill()
    vm_pre = list(e.vm)
    e.c("round-2 tile: pack into spare registers, the accumulators are needed for FFN2")
    for rh in range(2):
        a = ACC + 32 + 16 * rh
        for j in range(8):
            e.i(f"v_cvt_pk_bf16_f32 v{A2+8*rh+j}, v{a+2*j}, v{a+2*j+1}")
        for j in range(8):
            e.i(f"v_pk_max_i16 v{A2+8*rh+j}, v{A2+8*rh+j}, 0")
        for s in range(2):
            e.vmem(f"buffer_store_dwordx4 {V(A2+8*rh+4*s,4)}, v{vL16}, {S(sWS,4)}, s{sCH+2} offen offset:{(2*s+rh)*1024} sc1", "hst")
    e.label("L_ffn2")
    e.i(f"s_setprio {opt.fprio}")
    e.wait(vm=("w2", 0))
    for i in range(4):
        t32(0, i)
    for ks in range(28):
        s = ks % 2
        if ks == 5:
            e.c("waves 4..6: blocks 55..63 -> R1 once xn is dead")
            e.i(f"s_cmp_eq_u32 s{sWAVE}, 7")
            e.i("s_cbranch_scc1 L_no_r1")
            e.i("s_setprio 3")
            keep = list(e.lg)
            lds_poll(CX, 4, sleep=2)
            e.i(f"s_lshl_b32 s{sU0}, s{sF}, 11")
            e.i(f"s_add_u32 s{sU0}, s{sU0}, {(NE+48)*2048}")
            e.i(f"s_mul_i32 s{sU1}, s{sF}, {KVS}")
            e.i(f"s_add_u32 s{sU1}, s{sU1}, {R1}")
            kvm = list(e.vm)
            kv_dma(3, sU0, sU1, 3, 3)
            e.vm = kvm
            e.i("s_mov_b32 exec_lo, 0xffff")
            e.i("s_mov_b32 exec_hi, 0xffff")
            e.i(f"ds_write_b128 v{vSP}, {V(vSD,4)} offset:2048")
            e.i("s_mov_b64 exec, -1")
            e.i(f"s_setprio {opt.fprio}")
            e.lg = keep
            e.label("L_no_r1")
        if ks == opt.f2at:
            h_flag(16)
        if ks == 10:
            e.wait(vm=("w2", 8))
            lds_signal(CH2)
        if ks == 8:
            e.vmem(f"buffer_load_dword v124, v122, {S(sWS,4)}, s{sFLG} offen sc1", "fl")
        if ks == 12:
            e.c("every producer of the row group must have published both rounds before the rest is read")
            e.wait(vm="fl")
            e.i("s_setprio 3")
            e.i(f"v_cmp_ne_u32 vcc, s{sTAG}, v124")
            e.i("s_lshl_b64 s[4:5], s[4:5], 4")
            if not opt.part:
                e.i("s_mov_b64 s[4:5], -1")
            e.i("s_and_b64 vcc, vcc, s[4:5]")
            e.i("s_cbranch_scc1 L_slow_p2")
            e.label("L_back_p2")
            e.i(f"s_setprio {opt.fprio}")
        e.wait(lg=("f2", ks), vm=("h", ks))
        n = ks + 1
        dense = not (opt.dense2 <= ks < opt.late2)
        for i in range(4):
            rh, ct = i >> 1, i & 1
            a = ACC + 16 * i
            e.i(f"{MF32} {V(a,16)}, {V(A3+8*s+4*ct,4)}, {V(HR[ks%PH]+4*rh,4)}, {'0' if ks == 0 else V(a,16)}")
            if i == 0 and ks + 3 < 28:
                dma2(ks + 3, 0)
                dma2(ks + 3, 1)
            if i == 3 and ks + PH - 1 < 28:
                hl2(ks + PH - 1, 0)
                hl2(ks + PH - 1, 1)
            if n < 28:
                if i == 1:
                    e.wait(vm=("w2", n))
                if i in (1, 2):
                    t32(n, 2 * i - 2); t32(n, 2 * i - 1)
                    if not dense:
                        paced(opt.pace2)
        if ks == opt.wo_at:
            wo_dma()
            e.i(f"s_setprio {opt.fprio}")
        if ks == min(opt.wo_at + 4, 27) and opt.wo_at < 28:
            e.wait(vm="wo")
            lds_signal(CWO)
    stamp(7)
    e.i("s_setprio 3")
    e.c("f partials: accumulators 1,2 -> upper R1, accumulator 3 -> own ring; wave f^i picks up accumulator i")
    e.i(f"s_lshl_b32 s{sT1}, s{sF}, 13")
    e.i(f"s_add_u32 s{sT1}, s{sT1}, {RB2}")
    e.i(f"v_add_u32 v72, s{sT1}, v{vL16}")
    e.i(f"v_add_u32 v73, s{sRING}, v{vL16}")
    for i in (1, 2):
        e.i(f"s_xor_b32 s{sT0}, s{sF}, {i}")
        e.i(f"s_lshl_b32 s{sT0}, s{sT0}, 13")
        e.i(f"s_add_u32 s{sT0}, s{sT0}, {RB2 + (i-1)*4096}")
        e.i(f"v_add_u32 v{73+i}, s{sT0}, v{vL16}")
    e.i(f"s_xor_b32 s{sT0}, s{sF}, 3")
    e.i(f"s_mul_i32 s{sT0}, s{sT0}, 7168")
    e.i(f"s_add_u32 s{sT0}, s{sT0}, {R2}")
    e.i(f"v_add_u32 v76, s{sT0}, v{vL16}")
    e.i(f"s_lshl_b32 s{sT0}, s{sF}, 2")
    e.i(f"v_add_u32 v78, s{sT0}, v6")
    e.i(f"s_mov_b32 s{sT1}, {hex(f32bits(-math.log2(math.e)))}")
    lds_poll(CX, 4, sleep=1)
    e.i(f"s_setprio {opt.fprio}")
    for i in (1, 2, 3):
        for q in range(4):
            e.lds(f"ds_write_b128 v{72 if i < 3 else 73}, {V(ACC+16*i+4*q,4)} offset:{((i-1)%2)*4096+q*1024}")
    lds_signal(CF)
    if opt.wo_at >= 28:
        wo_dma()
        e.wait(vm="wo")
        lds_signal(CWO)
    e.i("s_setprio 3")
    stamp(8, "late")
    lds_poll(CF, 4, sleep=2)
    for i in (1, 2, 3):
        for q in range(4):
            e.lds(f"ds_read_b128 {V(ACC+16*i+4*q,4)}, v{73+i} offset:{q*1024}", ("r", i))
    if opt.glate:
        lds_poll(CAD, 4, sleep=4)
    for i in (1, 2, 3):
        e.wait(lg=("r", i))
        for r in range(0, 16, 2):
            e.i(f"v_pk_add_f32 {V(ACC+r,2)}, {V(ACC+r,2)}, {V(ACC+16*i+r,2)}")
    for r in range(16):
        e.i(f"v_mul_f32 v{ACC+16+r}, s{sT1}, v{ACC+r}")
    for r in range(16):
        e.i(f"v_exp_f32 v{ACC+16+r}, v{ACC+16+r}")
    for r in range(16):
        e.i(f"v_add_f32 v{ACC+16+r}, 1.0, v{ACC+16+r}")
    for r in range(16):
        e.i(f"v_rcp_f32 v{ACC+16+r}, v{ACC+16+r}")
    for r in range(16):
        e.i(f"v_mul_f32 v{ACC+r}, v{ACC+r}, v{ACC+16+r}")
    for j in range(8):
        e.i(f"v_cvt_pk_bf16_f32 v{ACC+j}, v{ACC+2*j}, v{ACC+2*j+1}")
    e.lds(f"ds_write_b128 v73, {V(ACC,4)} offset:4096")
    e.lds(f"ds_write_b128 v73, {V(ACC+4,4)} offset:5120")
    lds_signal(CGD, va=78)
    stamp(10)
    dump_stamps()
    e.label("L_end")
    e.i("s_endpgm")

    e.label("L_w7_rest")
    e.vm, e.lg = [], []
    lds_signal(CX)
    stamp(3)
    e.nop(8)
    h_store(ACC, 3)
    e.c("touch 1/8 of the w2 and wo slices (8 workgroups of an XCD share them) -> L2")
    e.i(f"s_lshr_b32 s{sT1}, s2, 3")
    e.i(f"s_and_b32 s{sT2}, s{sCB}, 1")
    e.i(f"s_lshl_b32 s{sT2}, s{sT2}, 7")
    e.i(f"s_mul_i32 s{sT0}, s{sT1}, {56*1024}")
    e.i(f"s_add_u32 s{sU0}, s{sT0}, s{sT2}")
    e.i(f"s_lshl_b32 s{sT0}, s{sT1}, 14")
    e.i(f"s_add_u32 s{sU1}, s{sT0}, s{sT2}")
    def t2(n):
        for i in range(n):
            e.vmem(f"buffer_load_dword v124, v{vTCH}, {S(sW2,4)}, s{sU0} offen")
            e.i(f"s_add_u32 s{sU0}, s{sU0}, {14*1024}")
    t2(opt.tser)
    h_flag(0, lanes=3)
    e.c("blocks 39..54 -> slots 0..15 once attention has read them")
    lds_poll(CP1, 4, sleep=4)
    e.i(f"s_mov_b32 s{sOFF2}, {(NE+32)*2048}")
    e.i(f"s_mov_b32 s{sT1}, 0")
    kv_dma(16, sOFF2, sT1, 1, 1)
    t2(4 - opt.tser)
    e.vmem(f"buffer_load_dword v124, v{vTCH}, {S(sWO,4)}, s{sU1} offen")
    e.wait(vm=("kv", 15))
    lds_signal(CL1)
    top, done = lbl("fp"), lbl("fpd")
    spin_init()
    e.label(top)
    e.i(f"buffer_load_dword v124, v122, {S(sWS,4)}, s{sFLG} offen sc1")
    e.wait_all(vm=True)
    e.i(f"v_cmp_ne_u32 vcc, s{sTAG}, v124")
    e.i("s_and_b64 vcc, vcc, s[4:5]")
    e.i(f"s_cbranch_scc0 {done}")
    spin_tail(top, done, 4)
    e.label(done)
    stamp(6)
    prefill()
    e.i("s_waitcnt vmcnt(0)")
    e.i("s_branch L_ffn2")

    for name, mask in (("p1", True), ("p2", True)):
        e.label(f"L_slow_{name}")
        spin_init()
        e.label(f"L_slowl_{name}")
        e.i(f"buffer_load_dword v124, v122, {S(sWS,4)}, s{sFLG} offen sc1")
        e.i("s_waitcnt vmcnt(0)")
        e.i(f"v_cmp_ne_u32 vcc, s{sTAG}, v124")
        if mask:
            e.i("s_and_b64 vcc, vcc, s[4:5]")
            e.i(f"s_cbranch_scc0 L_back_{name}")
        else:
            e.i(f"s_cbranch_vccz L_back_{name}")
        spin_tail(f"L_slowl_{name}", f"L_back_{name}", 4)
    e.label("L_code_end")
    return e

def wrap(e):
    hdr = open("cdna_kernels/%s.s.ref" % NAME).read().split("\n")
    top = [l for l in hdr if l.startswith(";") and "@launch" not in l]
    out = "\n".join(top) + f"\n; @launch grid=(256,1,1) block=(512,1,1) lds={LDS_BYTES}\n"
    out += f""".amdgcn_target "amdgcn-amd-amdhsa--gfx950"
.text
.globl {NAME}_kernel
.p2align 8
.type {NAME}_kernel,@function
{NAME}_kernel:
"""
    out += e.text()
    out += f""".section .rodata,"a"
.p2align 6
.amdhsa_kernel {NAME}_kernel
  .amdhsa_next_free_vgpr 256
  .amdhsa_next_free_sgpr 102
  .amdhsa_accum_offset 256
  .amdhsa_group_segment_fixed_size 0
  .amdhsa_kernarg_size 88
  .amdhsa_user_sgpr_count 2
  .amdhsa_user_sgpr_kernarg_segment_ptr 1
  .amdhsa_system_sgpr_workgroup_id_x 1
.end_amdhsa_kernel
"""
    return out

if __name__ == "__main__":
    opt = Opt()
    outp = sys.argv[1]
    for a in sys.argv[2:]:
        k, v = a.split("=")
        assert hasattr(opt, k), k
        setattr(opt, k, type(getattr(opt, k))(eval(v)))
    e = gen(opt)
    bad = check_cfg(e.lines)
    print("hazards:", bad, "lines:", len(e.lines), "lds", LDS_BYTES)
    open(outp, "w").write(wrap(e))
```

```python
import re

TRANS = ("v_exp_f32", "v_log_f32", "v_rcp_f32", "v_rsq_f32", "v_sqrt_f32", "v_sin_f32", "v_cos_f32")


def V(a, n=1):
    return f"v{a}" if n == 1 else f"v[{a}:{a+n-1}]"


def S(a, n=1):
    return f"s{a}" if n == 1 else f"s[{a}:{a+n-1}]"


class E:
    def __init__(self):
        self.lines = []
        self.vm = []
        self.lg = []

    def i(self, t):
        self.lines.append("    " + t)

    def c(self, t):
        self.lines.append("    ; " + t)

    def label(self, l):
        self.lines.append(l + ":")

    def raw(self, t):
        self.lines.append(t)

    def vmem(self, t, tag=None):
        if len(self.vm) >= 60:
            self.i("s_waitcnt vmcnt(56)")
            del self.vm[: len(self.vm) - 56]
        self.i(t)
        self.vm.append(tag)

    def lds(self, t, tag=None, guard=True):
        if guard and len(self.lg) >= 14:
            self.i("s_waitcnt lgkmcnt(8)")
            del self.lg[: len(self.lg) - 8]
        if len(self.lg) >= 15:
            self.i("s_waitcnt lgkmcnt(14)")
            del self.lg[: len(self.lg) - 14]
        self.i(t)
        self.lg.append(tag)

    def _wait(self, q, tag, name, mx):
        idx = [k for k, t in enumerate(q) if t == tag]
        if not idx:
            return None
        last = idx[-1]
        n = len(q) - 1 - last
        n2 = min(n, mx)
        del q[: len(q) - n2]
        return f"{name}({n2})"

    def wait(self, vm=None, lg=None):
        parts = []
        if vm is not None:
            p = self._wait(self.vm, vm, "vmcnt", 63)
            if p:
                parts.append(p)
        if lg is not None:
            p = self._wait(self.lg, lg, "lgkmcnt", 15)
            if p:
                parts.append(p)
        if parts:
            self.i("s_waitcnt " + " ".join(parts))

    def wait_all(self, vm=False, lg=False):
        parts = []
        if vm:
            parts.append("vmcnt(0)")
            self.vm = []
        if lg:
            parts.append("lgkmcnt(0)")
            self.lg = []
        self.i("s_waitcnt " + " ".join(parts))

    def nop(self, n):
        while n > 0:
            k = min(n, 16)
            self.i(f"s_nop {k-1}")
            n -= k

    def text(self):
        return "\n".join(self.lines) + "\n"


_reg = re.compile(r"^(-|\|)?(abs\()?([vsa])(\d+|\[(\d+):(\d+)\])\)?\|?$")


def regs(tok):
    tok = tok.strip()
    if tok in ("vcc", "exec", "m0", "scc"):
        return {(tok, 0)}
    if tok in ("vcc_lo", "vcc_hi"):
        return {("vcc", 0)}
    if tok in ("exec_lo", "exec_hi"):
        return {("exec", 0)}
    m = _reg.match(tok)
    if not m:
        return set()
    k = m.group(3)
    if m.group(5) is not None:
        return {(k, r) for r in range(int(m.group(5)), int(m.group(6)) + 1)}
    return {(k, int(m.group(4)))}


def parse(line):
    t = line.split(";")[0].strip()
    if not t or t.endswith(":") or t.startswith("."):
        return None
    sp = t.split(None, 1)
    op = sp[0]
    rest = sp[1] if len(sp) > 1 else ""
    ops, cur, d = [], "", 0
    for ch in rest:
        if ch in "[(":
            d += 1
        if ch in "])":
            d -= 1
        if ch == "," and d == 0:
            ops.append(cur.strip())
            cur = ""
        else:
            cur += ch
    if cur.strip():
        ops.append(cur.strip())
    mods = ""
    if ops:
        last = ops[-1].split(None, 1)
        ops[-1] = last[0]
        mods = last[1] if len(last) > 1 else ""
    I = dict(op=op, ops=ops, mods=mods, text=t, w=set(), r=set(), kind="other", ws=1)
    R = [regs(o) for o in ops]
    if op == "s_nop":
        I["ws"] = int(ops[0], 0) + 1
    elif op.startswith("v_smfmac"):
        I["kind"] = "mfma"
        I["passes"] = 8
        I["w"] = R[0]
        I["A"], I["B"], I["C"] = R[1], R[2] | R[3], R[0]
        I["r"] = R[0] | R[1] | R[2] | R[3]
    elif op.startswith("v_mfma"):
        I["kind"] = "mfma"
        I["passes"] = 8 if "32x32x16" in op else 4
        I["w"] = R[0]
        I["A"], I["B"], I["C"] = R[1], R[2], R[3]
        I["r"] = R[1] | R[2] | R[3]
    elif op.startswith("v_"):
        I["kind"] = "valu"
        if op.startswith("v_permlane") and "swap" in op:
            I["w"] = R[0] | R[1]
            I["r"] = R[0] | R[1]
        else:
            nd = 1
            if re.match(r"v_(add|sub|subrev|addc|subb)_co", op):
                nd = 2
            I["w"] = set().union(*R[:nd])
            I["r"] = set().union(*R[nd:]) if len(R) > nd else set()
            if op.startswith(("v_fmac", "v_dot2c", "v_writelane")) or "_dpp" in op or "UNUSED_PRESERVE" in mods:
                I["r"] |= R[0]
            if op.startswith("v_cmpx"):
                I["w"] |= {("exec", 0)}
        I["dpp"] = "_dpp" in op
        I["trans"] = op.replace("_e32", "").replace("_e64", "") in TRANS
    elif op.startswith("ds_"):
        I["kind"] = "mem"
        if op.startswith(("ds_read", "ds_bpermute", "ds_swizzle")) or "_rtn" in op:
            I["w"] = R[0]
            I["r"] = set().union(*R[1:])
        else:
            I["r"] = set().union(*R)
    elif op.startswith(("buffer_", "global_")):
        I["kind"] = "mem"
        I["vmem"] = True
        islds = " lds" in (" " + mods) or "load_lds" in op
        I["dma"] = islds
        if "load" in op and not islds:
            I["w"] = R[0]
            I["r"] = set().union(*R[1:])
        else:
            I["r"] = set().union(*R) if R else set()
            if "store" in op and ("x4" in op or "x3" in op):
                I["wide"] = R[0] if op.startswith("buffer") else R[1]
    elif op.startswith("s_"):
        I["kind"] = "salu"
        if op.startswith(("s_cmp", "s_cbranch", "s_branch", "s_waitcnt", "s_barrier", "s_sleep", "s_setprio", "s_endpgm")):
            I["r"] = set().union(*R) if R else set()
        else:
            I["w"] = R[0] if R else set()
            I["r"] = set().union(*R[1:]) if len(R) > 1 else set()
    return I


def vg(s):
    return {x for x in s if x[0] in "va"}


def sg(s):
    return {x for x in s if x[0] in ("s", "vcc")}


def need(P, C):
    n = 0
    pk, ck = P["kind"], C["kind"]
    if pk == "valu":
        wv = vg(P["w"])
        ws = sg(P["w"])
        if ck == "mfma" and wv & C["r"]:
            n = max(n, 2)
        if ck == "valu":
            if P["trans"] and wv & C["r"] and not C["trans"]:
                n = max(n, 1)
            if C["dpp"] and wv & C["r"]:
                n = max(n, 2)
            if C["op"].startswith("v_permlane") and wv & C["r"]:
                n = max(n, 2)
            if C["op"].startswith(("v_readlane", "v_readfirstlane")) and wv & C["r"]:
                n = max(n, 1)
            if ws & C["r"]:
                n = max(n, 4 if C["op"].startswith(("v_readlane", "v_writelane")) else 2)
            if C["op"].startswith("v_cndmask") and len(C["ops"]) == 4 and ws & regs(C["ops"][3]):
                n = max(n, 2)
            if ("sdwa" in P["op"] or "op_sel" in P["mods"]) and not P["op"].startswith("v_pk") and wv & (C["r"] | C["w"]):
                n = max(n, 1)
        if P["op"].startswith("v_dot"):
            same = P["op"] == C["op"]
            if ck in ("valu", "mfma", "mem"):
                if not same and wv & (C["r"] | C["w"]):
                    n = max(n, 3)
                if same:
                    ab = set().union(*[regs(o) for o in C["ops"][1:3]])
                    if wv & ab:
                        n = max(n, 3)
        if ck == "mem" and C.get("vmem") and ws & C["r"]:
            n = max(n, 5)
        if ("exec", 0) in P["w"]:
            if ck == "mfma":
                n = max(n, 4)
            if ck == "valu" and C["dpp"]:
                n = max(n, 5)
    if pk == "mfma":
        p8 = P["passes"] == 8
        D = P["w"]
        if ck == "mfma":
            if D & (C["A"] | C["B"]):
                n = max(n, 12 if p8 else 8)
            if D & C["C"] and not (D == C["C"] and P["passes"] == C["passes"]):
                n = max(n, 10 if p8 else 6)
            if D & C["w"] and not (D == C["w"]):
                n = max(n, 10 if p8 else 6)
        if ck == "valu":
            if D & (C["r"] | C["w"]):
                n = max(n, 12 if p8 else 8)
            if P["C"] & C["w"]:
                n = max(n, 7 if p8 else 3)
        if ck == "mem" and D & (C["r"] | C["w"]):
            n = max(n, 12 if p8 else 8)
    if pk == "salu" and ("m0", 0) in P["w"] and ck == "mem" and C.get("dma"):
        n = max(n, 1)
    if pk == "mem" and P.get("wide"):
        if P["wide"] & C["w"]:
            n = max(n, 2 if ck in ("valu", "mfma") else 1)
    return n


def check_seq(lines, name=""):
    ins = [x for x in (parse(l) for l in lines) if x]
    bad = 0
    for k, C in enumerate(ins):
        dist = 0
        for j in range(k - 1, max(-1, k - 24), -1):
            P = ins[j]
            n = need(P, C)
            if n > dist:
                print(f"HAZARD[{name}] need {n} have {dist}:\n   {P['text']}\n   {C['text']}")
                bad += 1
            dist += P["ws"]
            if dist >= 20:
                break
    return bad


def check_cfg(lines):
    bad = check_seq(lines, "linear")
    labels = {}
    for k, l in enumerate(lines):
        t = l.strip()
        if t.endswith(":") and not t.startswith(";"):
            labels[t[:-1]] = k
    for k, l in enumerate(lines):
        t = l.split(";")[0].strip()
        m = re.match(r"s_(cbranch_\w+|branch)\s+(\S+)", t)
        if m and m.group(2) in labels:
            tgt = labels[m.group(2)]
            seq = lines[max(0, k - 30): k + 1] + lines[tgt: tgt + 30]
            a = [x for x in (parse(z) for z in lines[max(0, k - 30): k + 1]) if x]
            b = [x for x in (parse(z) for z in lines[tgt: tgt + 30]) if x]
            for ci, C in enumerate(b):
                dist = sum(x["ws"] for x in b[:ci])
                for P in reversed(a):
                    if dist >= 20:
                        break
                    n = need(P, C)
                    if n > dist:
                        print(f"HAZARD[edge {m.group(2)}] need {n} have {dist}:\n   {P['text']}\n   {C['text']}")
                        bad += 1
                    dist += P["ws"]
    return bad
```

```python
import sys, math, struct
from asmlib import *

NAME = "recurrent_scan__grouped_kv_mqa__dense_activation_relu__prompt"
MF32 = "v_mfma_f32_32x32x16_bf16"
MF16 = "v_mfma_f32_16x16x32_bf16"
SMF = "v_smfmac_f32_32x32x32_bf16"

def f32bits(x):
    return struct.unpack("<I", struct.pack("<f", x))[0]

KVS = 2080
R0 = 0
R1 = 32 * KVS
XN_RH = 64 * 528
R2 = R1 + 2 * XN_RH
R4 = R2 + 28928
LDS_BYTES = R4 + 256
(CXN, CST, CWQ, CQ, CKV, CKM, CTAG, CA, CA2, CX, CH2, CR0, CWO, CAD, CF, CE0, CE1, CRW, CRC, CXI, CP1, CL1, CG, CTL, CWI, CGD, CGD1, CGD2, CGD3, CE7) = [4 * i for i in range(30)]
RE = R2 + 18432
NE = 5
RB2 = R1 + 16 * KVS
assert RB2 % 128 == 0 and RB2 + 32768 <= R2
STAT = 128
assert R2 % 128 == 0
WS_KV = 0
WS_EPOCH = 0x30000
WS_KVF = 0x38000
WS_HF = 0x40000
WS_O = 0x100000
WS_H = 0x400000
WS_STAMP = 0x1000000
sX, sWQ, sWKV, sWO, sW1, sW2, sOUT, sWS = 8, 12, 16, 20, 24, 28, 32, 40
sMASK, sF, sSPIN, sFLG = 44, 45, 46, 47
sWAVE, sRB, sCB, sT0, sT1, sT2, sOFF, sOFF2, sCNT, sSEG = 70, 71, 72, 73, 74, 75, 76, 77, 78, 79
sRG, sOB, sTAG, sTILE, sRING, sW2T, sU0, sU1, sE1, sE2, sXO = 3, 6, 7, 36, 37, 38, 39, 60, 61, 62, 63
sCH = 64
sOA = 52
sSTAMP = 80
vH, vCG, vR, vC, vTR, vXN0, vXN1, vSW, vW1, vL16, vT0, vT1, vSP = 212, 213, 214, 215, 216, 217, 218, 219, 220, 221, 222, 223, 224
vTCH = 225
vSD = 228

class Opt:
    stamps = False
    front = False
    force_fallback = False
    thr = 40.0
    exit_at = 0
    spin = 0x20000
    pace1 = 0
    pace2 = 0
    kvsleep = 1
    kvdelay = 32
    kvtouch = True
    warm2 = True
    touch = 0
    fstart = 2
    twq = False
    wqdepth = 40
    fprio = 0
    outf = ''
    echo = ()
    NR = 4
    dense = 32
    twait = 1
    nomf2 = False
    nold2 = 0
    ctouch = True
    mid = False
    wo_at = 16
    ntouch = 4
    full = True
    stouch = 0
    late2 = 0
    xr_early = True
    fprio1 = 0
    rot = 14
    la1 = True
    dyn = True
    osleep = 2
    hint = True
    hsleep = 2
    pos = (1, 4, 10)
    fgo = 1
    glate = True
    p7 = 0
    hfl = 'sc1'
    t2at = 99
    wot = True
    dense2 = 0
    htouch = False
    lnclk = False

def gen(opt):
    e = E()
    uid = [0]
    def lbl(p):
        uid[0] += 1
        return f"L_{p}_{uid[0]}"
    def stamp(k, when=None):
        if when == "front" and not opt.front: return
        if when == "late" and opt.front: return
        if opt.stamps:
            e.i(f"s_memrealtime {S(sSTAMP+2*k,2)}")
    def cstamp(k):
        if opt.stamps:
            e.i(f"s_memtime {S(sSTAMP+2*k,2)}")
    def dump_stamps():
        if not opt.stamps or opt.echo:
            return
        e.wait_all(vm=True, lg=True)
        e.i("v_mov_b32 v2, 0")
        e.i("v_mbcnt_lo_u32_b32 v1, -1, 0")
        e.i("v_mbcnt_hi_u32_b32 v1, -1, v1")
        for k in range(22):
            e.i(f"v_writelane_b32 v2, s{sSTAMP+k}, {k}")
        e.i(f"s_getreg_b32 s{sT0}, hwreg(HW_REG_XCC_ID)")
        e.i(f"v_writelane_b32 v2, s{sT0}, 22")
        e.i(f"s_lshl_b32 s{sT0}, s2, 3")
        e.i(f"s_add_u32 s{sT0}, s{sT0}, s{sWAVE}")
        e.i(f"s_lshl_b32 s{sT0}, s{sT0}, 8")
        e.i(f"s_add_u32 s{sT0}, s{sT0}, {WS_STAMP}")
        e.i("v_lshlrev_b32 v3, 2, v1")
        e.i(f"buffer_store_dword v2, v3, {S(sWS,4)}, s{sT0} offen")
    def exit_if(k):
        if opt.exit_at == k:
            dump_stamps()
            e.i("s_endpgm")
    def spin_init(mult=1):
        e.i(f"s_mov_b32 s{sSPIN}, {hex(opt.spin*mult)}")
    def spin_tail(top, done, sleep):
        e.i(f"s_sub_u32 s{sSPIN}, s{sSPIN}, 1")
        e.i(f"s_cbranch_scc1 {done}")
        if sleep:
            e.i(f"s_sleep {sleep}")
        e.i(f"s_branch {top}")
    def lds_signal(off, va=6):
        e.i("s_mov_b64 exec, 1")
        e.lds(f"ds_add_u32 v{va}, v7 offset:{off}")
        e.i("s_mov_b64 exec, -1")
    def lds_poll(off, n, vt=5, sleep=1, va=6):
        top, done = lbl("lp"), lbl("lpd")
        spin_init(16)
        e.label(top)
        e.i(f"ds_read_b32 v{vt}, v{va} offset:{off}")
        e.wait_all(lg=True)
        e.i(f"v_readfirstlane_b32 s{sT0}, v{vt}")
        e.i(f"s_cmp_ge_u32 s{sT0}, {n}")
        e.i(f"s_cbranch_scc1 {done}")
        spin_tail(top, done, sleep)
        e.label(done)
    def kv_dma(n, soff, sl, gstep, lstep):
        for i in range(n):
            e.i(f"s_mov_b32 m0, s{sl}")
            e.i(f"s_add_u32 s{sl}, s{sl}, {lstep*KVS}")
            for p in range(2):
                e.vmem(f"buffer_load_dwordx4 v{vL16}, {S(sWS,4)}, s{soff} offen offset:{1024*p} sc1 lds", ("kv", i))
            e.i(f"s_add_u32 s{soff}, s{soff}, {gstep*2048}")
    def setup():
        e.i(f"s_mov_b64 {S(sWQ,2)}, s[50:51]")
        e.i(f"s_mov_b64 {S(sWO,2)}, s[56:57]")
        e.i(f"s_mov_b64 {S(sW1,2)}, s[60:61]")
        e.i(f"s_mov_b64 {S(sW2,2)}, s[62:63]")
        e.i(f"s_mov_b64 {S(sOUT,2)}, s[64:65]")
        e.i(f"s_mov_b64 {S(sWS,2)}, s[68:69]")
        e.i(f"s_lshl_b32 s{sFLG}, s{sRB}, 10")
        e.i(f"s_add_u32 s{sFLG}, s{sFLG}, {hex(WS_HF)}")
        e.i(f"s_mul_i32 s{sRING}, s{sF}, 6144")
        e.i(f"s_add_u32 s{sRING}, s{sRING}, {R2}")
        e.i(f"s_lshl_b32 s{sT0}, s{sRB}, 5")
        e.i(f"s_lshl_b32 s{sT1}, s{sCB}, 2")
        e.i(f"s_add_u32 s{sT0}, s{sT0}, s{sT1}")
        e.i(f"s_and_b32 s{sT1}, s{sF}, 1")
        e.i(f"s_lshl_b32 s{sXO}, s{sT1}, 6")
        e.i(f"s_lshl_b32 s{sT1}, s{sT1}, 1")
        e.i(f"s_add_u32 s{sT0}, s{sT0}, s{sT1}")
        e.i(f"s_lshl_b32 s{sT0}, s{sT0}, 1")
        e.i(f"s_lshr_b32 s{sT1}, s{sF}, 1")
        e.i(f"s_add_u32 s{sT0}, s{sT0}, s{sT1}")
        e.i(f"s_lshl_b32 s{sT0}, s{sT0}, 10")
        e.i(f"s_add_u32 s{sOB}, s{sT0}, {WS_O}")
        e.i(f"s_lshl_b32 s{sT0}, s{sRB}, 1")
        e.i(f"s_add_u32 s{sT0}, s{sT0}, s{sT1}")
        e.i(f"s_lshl_b32 s{sT0}, s{sT0}, 15")
        e.i(f"s_add_u32 s{sXO}, s{sXO}, s{sT0}")
        e.i(f"s_lshl_b32 s{sT0}, s{sCB}, 7")
        e.i(f"s_add_u32 s{sXO}, s{sXO}, s{sT0}")
        e.i("v_lshrrev_b32 v5, 2, v1")
        e.i("v_and_b32 v5, 4, v5")
        e.i("v_xor_b32 v5, v5, v3")
        e.i("v_lshlrev_b32 v5, 4, v5")
        e.i(f"v_lshl_add_u32 v{vSW}, v2, 10, v5")
        e.i(f"v_mul_u32_u24 v{vW1}, 3584, v2")
        e.i(f"v_add_u32 v{vW1}, v{vW1}, v5")
        e.i(f"v_lshlrev_b32 v{vL16}, 4, v1")
        e.i(f"v_lshrrev_b32 v{vH}, 5, v1")
        e.i(f"v_bfe_u32 v{vCG}, v1, 4, 1")
        e.i(f"v_bfe_u32 v{vR}, v1, 2, 2")
        e.i(f"v_and_b32 v{vC}, 3, v1")
        e.i(f"v_lshrrev_b32 v4, 1, v{vC}")
        e.i(f"v_lshl_add_u32 v4, v{vCG}, 1, v4")
        e.i(f"v_lshlrev_b32 v5, 1, v{vR}")
        e.i("v_and_b32 v5, 4, v5")
        e.i("v_xor_b32 v4, v4, v5")
        e.i(f"v_lshlrev_b32 v{vTR}, 7, v{vR}")
        e.i(f"v_lshl_add_u32 v{vTR}, v4, 4, v{vTR}")
        e.i(f"v_and_b32 v5, 1, v{vC}")
        e.i(f"v_lshl_add_u32 v{vTR}, v5, 3, v{vTR}")
        e.i("v_and_b32 v5, 31, v1")
        e.i(f"v_mul_u32_u24 v{vXN0}, 528, v{vH}")
        e.i(f"v_lshl_add_u32 v{vXN0}, v5, 4, v{vXN0}")
        e.i(f"v_add_u32 v{vXN0}, {R1}, v{vXN0}")
        e.i(f"v_add_u32 v{vXN1}, {XN_RH}, v{vXN0}")
        e.i("v_lshlrev_b32 v205, 10, v5")
        e.i(f"v_lshl_add_u32 v205, v{vH}, 3, v205")
        e.i(f"v_mul_u32_u24 v{vSP}, {KVS}, v5")
        e.i(f"v_lshl_add_u32 v{vSP}, v{vH}, 4, v{vSP}")
        e.i(f"v_subrev_u32 v{vSD}, 1, v{vH}")
        e.i(f"v_and_b32 v{vSD}, 0x3f803f80, v{vSD}")
        for r in range(1, 4):
            e.i(f"v_mov_b32 v{vSD+r}, v{vSD}")
        e.i("v_and_b32 v4, 15, v1")
        e.i(f"v_lshl_add_u32 v4, v{vH}, 4, v4")
        e.i("v_lshlrev_b32 v203, 4, v4")
        e.i(f"v_lshl_add_u32 v{vT0}, v{vH}, 10, v{vTR}")

    e.i("s_cmp_ge_u32 s2, 256")
    e.i("s_cbranch_scc1 L_end")
    e.i("s_load_dwordx16 s[48:63], s[0:1], 0")
    e.i("s_load_dwordx2 s[64:65], s[0:1], 64")
    e.i("s_load_dwordx2 s[68:69], s[0:1], 80")
    stamp(0)
    e.i("v_lshrrev_b32 v2, 6, v0")
    e.i("v_and_b32 v1, 63, v0")
    e.i(f"v_readfirstlane_b32 s{sWAVE}, v2")
    e.c("workgroup -> (row block rb, column block cb); ids that share id&7 share half of the columns and 1/4 of the rows")
    e.i(f"s_and_b32 s{sT0}, s2, 7")
    e.i(f"s_lshr_b32 s{sT1}, s2, 3")
    e.i(f"s_and_b32 s{sCB}, s{sT1}, 3")
    e.i(f"s_lshl_b32 s{sCB}, s{sCB}, 1")
    e.i(f"s_and_b32 s{sRB}, s{sT0}, 1")
    e.i(f"s_add_u32 s{sCB}, s{sCB}, s{sRB}")
    e.i(f"s_lshr_b32 s{sT1}, s{sT1}, 2")
    e.i(f"s_lshr_b32 s{sRB}, s{sT0}, 1")
    e.i(f"s_lshl_b32 s{sRB}, s{sRB}, 3")
    e.i(f"s_add_u32 s{sRB}, s{sRB}, s{sT1}")
    e.i(f"s_mov_b32 s{sMASK}, 0xffff0000")
    e.i(f"s_and_b32 s{sF}, s{sWAVE}, 3")
    e.c("row group of this wave: (w + 2*rq + 3) & 7 -> waves 5,6 hold the 16 rows of this workgroup's K/V tile")
    e.i(f"s_and_b32 s{sRG}, s{sCB}, 6")
    e.i(f"s_add_u32 s{sRG}, s{sRG}, s{sWAVE}")
    e.i(f"s_add_u32 s{sRG}, s{sRG}, 3")
    e.i(f"s_and_b32 s{sRG}, s{sRG}, 7")
    e.i("v_lshrrev_b32 v2, 3, v1")
    e.i("v_and_b32 v3, 7, v1")
    e.i("v_lshlrev_b32 v4, 10, v2")
    e.i("v_lshl_add_u32 v4, v3, 4, v4")
    e.i(f"s_lshl_b32 s{sOFF}, s{sRB}, 3")
    e.i(f"s_add_u32 s{sOFF}, s{sOFF}, s{sRG}")
    e.i(f"s_lshl_b32 s{sOFF}, s{sOFF}, 13")
    for srd, size in ((sX, 2048*512*2), (sWQ, 512*512*2), (sWKV, 512*16*2), (sWO, 512*512*2), (sW1, 512*1792*2),
                      (sW2, 1792*512*2), (sOUT, 2048*512*2), (sWS, 0x10000000)):
        e.i(f"s_mov_b32 s{srd+2}, {hex(size)}")
        e.i(f"s_mov_b32 s{srd+3}, 0x20000")
    e.i(f"v_mov_b32 v6, {R4}")
    e.i("v_mov_b32 v7, 1")
    e.i("v_mov_b64 v[108:109], 0")
    e.i("v_and_b32 v105, 15, v1")
    e.i("v_lshl_add_u32 v105, v105, 3, v6")
    e.i("ds_write_b64 v105, v[108:109]")
    e.i(f"s_mov_b32 s{sSEG}, 0")
    e.i(f"s_cmp_eq_u32 s{sWAVE}, 7")
    e.i("s_cbranch_scc1 L_pre_7")
    e.i("s_waitcnt lgkmcnt(0)")
    e.i(f"s_mov_b64 {S(sX,2)}, s[48:49]")
    e.i(f"s_cmp_eq_u32 s{sWAVE}, 4")
    e.i("s_cbranch_scc1 L_pre_4")
    e.i(f"s_cmp_ge_u32 s{sWAVE}, 5")
    e.i("s_cbranch_scc1 L_pre_first")
    e.i("s_barrier")
    e.label("L_pre_first")
    for i in range(8):
        e.i(f"buffer_load_dwordx4 {V(8+4*i,4)}, v4, {S(sX,4)}, s{sOFF} offen offset:{128*i}")
    e.i("s_cbranch_scc0 L_pre_second")
    e.i("s_barrier")
    e.label("L_pre_second")
    e.i(f"s_cmp_eq_u32 s{sWAVE}, 0")
    e.i("s_cbranch_scc1 L_pre_dbl")
    e.i(f"s_cmp_lg_u32 s{sWAVE}, 3")
    e.i("s_cbranch_scc1 L_pre_n3")
    e.label("L_pre_dbl")
    e.c("waves 0,3 also normalise the rows waves 4,7 would have had (row group ^ 4)")
    e.i(f"s_xor_b32 s{sOFF}, s{sOFF}, 0x8000")
    for i in range(8):
        e.i(f"buffer_load_dwordx4 {V(128+4*i,4)}, v4, {S(sX,4)}, s{sOFF} offen offset:{128*i}")
    e.i(f"s_mov_b32 s{sSEG}, 1")
    e.label("L_pre_n3")
    lds_signal(CXI)
    setup()
    e.i(f"s_cmp_ge_u32 s{sWAVE}, 4")
    e.i("s_cbranch_scc1 L_pre_56")
    S0, S1, P0, P1, OA, OB, NMA, NMB, QA, QB, KB, VB = 32, 48, 64, 72, 80, 96, 112, 128, 144, 148, 152, 168
    vK, vV0, vV1, vVG, vVC = 200, 201, 202, 203, 204
    e.i("s_setprio 1")
    e.i(f"s_and_b32 s{sT1}, s{sWAVE}, 1")
    e.i(f"s_lshl_b32 s{sT2}, s{sT1}, 6")
    e.i(f"v_xor_b32 v{vT0}, s{sT2}, v{vT0}")
    e.i(f"s_lshr_b32 s{sT1}, s{sWAVE}, 1")
    e.i(f"s_mul_i32 s{sT1}, s{sT1}, {XN_RH}")
    e.i(f"v_add_u32 v{vXN0}, s{sT1}, v{vXN0}")
    e.i(f"v_add_u32 v{vK}, {RE}, v{vL16}")
    e.i("v_and_b32 v5, 11, v1")
    e.i("v_cmp_ne_u32 vcc, 0, v5")
    e.i(f"v_mov_b32 v4, {RE+2048}")
    e.i(f"v_mov_b32 v5, {RE+2064}")
    e.i(f"v_add_u32 v{vV0}, {RE+1024}, v{vVG}")
    e.i("v_cndmask_b32 v4, v4, v5, vcc")
    e.i(f"v_cmp_eq_u32 vcc, 0, v{vCG}")
    e.i(f"v_add_u32 v{vV1}, {RE+1536}, v{vVG}")
    e.i("v_mov_b32 v207, 0xdddddddd")
    e.nop(1)
    e.i(f"v_cndmask_b32 v{vV0}, v4, v{vV0}, vcc")
    e.i(f"v_cndmask_b32 v{vV1}, v4, v{vV1}, vcc")
    if opt.stouch:
        e.c("scalar touches of w1 -> L2: wave w takes line column w, rows (rb&7) + 8i")
        e.i(f"s_and_b32 s{sT0}, s{sRB}, 7")
        e.i(f"s_mul_i32 s{sT0}, s{sT0}, 3584")
        e.i(f"s_mul_i32 s{sT1}, s{sCB}, 448")
        e.i(f"s_add_u32 s{sT0}, s{sT0}, s{sT1}")
        e.i(f"s_lshl_b32 s{sT1}, s{sWAVE}, 7")
        e.i(f"s_add_u32 s{sT0}, s{sT0}, s{sT1}")
        e.i(f"s_add_u32 s4, s60, s{sT0}")
        e.i("s_addc_u32 s5, s61, 0")
        for i in range(opt.stouch):
            e.i(f"s_load_dword s{sU0}, s[4:5], {hex(i*8*3584)}")
    e.i(f"s_cmp_eq_u32 s{sSEG}, 1")
    e.i("s_cbranch_scc1 L_pre_w8")
    e.i("s_waitcnt vmcnt(0)")
    e.label("L_pre_w8")
    e.i("s_waitcnt vmcnt(8)")
    e.i("s_branch L_ln")

    def ffn_setup():
        e.i(f"s_and_b32 s{sTILE}, s{sCB}, 1")
        e.i(f"s_lshl_b32 s{sT1}, s{sF}, 1")
        e.i(f"s_add_u32 s{sTILE}, s{sTILE}, s{sT1}")
        e.i(f"v_add_u32 v{vT0}, s{sRING}, v{vT0}")
        e.i(f"v_xor_b32 v{vT1}, 64, v{vT0}")
    e.label("L_pre_4")
    if opt.ctouch:
        e.c("pull this kernel's code into L2: 16 lines per workgroup, the workgroups of an XCD cover all of it")
        e.i(f"s_getpc_b64 {S(sWKV,2)}")
        e.label("L_pc")
        e.i(f"s_mov_b32 s{sWKV+2}, L_code_end-L_pc")
        e.i(f"s_lshr_b32 s{sT0}, s2, 3")
        e.i(f"s_lshl_b32 s{sT0}, s{sT0}, 11")
        e.i("v_lshlrev_b32 v104, 7, v1")
        e.i("s_mov_b64 exec, 0xffff")
        e.i(f"buffer_load_dword v106, v104, {S(sWKV,4)}, s{sT0} offen")
        e.i("s_mov_b64 exec, -1")
    e.c("wave 4: loader.  wq slice -> R0 by DMA behind the x loads; touches 1/8 of the w1 slice -> L2")
    setup()
    ffn_setup()
    e.i(f"s_lshl_b32 s{sOFF}, s{sCB}, 7")
    e.i(f"s_mov_b32 s{sT1}, 0")
    if opt.rot & 1:
        e.i(f"s_and_b32 s{sT1}, s{sRB}, 7")
        e.i(f"s_lshl_b32 s{sT0}, s{sT1}, 16")
        e.i(f"s_add_u32 s{sOFF}, s{sOFF}, s{sT0}")
        e.i(f"s_lshl_b32 s{sT1}, s{sT1}, 13")
    e.i(f"s_mov_b32 s{sCNT}, 7")
    def touch_setup(so):
        e.i("v_lshrrev_b32 v105, 2, v1")
        e.i("v_mul_u32_u24 v105, 3584, v105")
        e.i(f"v_lshl_add_u32 v105, v{vC}, 7, v105")
        e.i(f"s_and_b32 s{so}, s{sRB}, 7")
        e.i(f"s_mul_i32 s{so}, s{so}, {16*3584}")
        e.i(f"s_mul_i32 s{sT0}, s{sCB}, 448")
        e.i(f"s_add_u32 s{so}, s{so}, s{sT0}")
    def touches(so=sT2, a=0, b=4):
        for i in range(a, b):
            e.i(f"s_add_u32 s{sU0}, s{so}, {i*128*3584}")
            e.i(f"buffer_load_dword v106, v105, {S(sW1,4)}, s{sU0} offen")
    touch_setup(sT2)
    if opt.twq:
        e.i("v_lshrrev_b32 v104, 2, v1")
        e.i("v_lshlrev_b32 v104, 10, v104")
        e.i(f"v_lshl_add_u32 v104, v{vC}, 8, v104")
        e.i(f"s_lshr_b32 s{sT0}, s2, 3")
        e.i(f"s_lshl_b32 s{sT0}, s{sT0}, 14")
        e.i(f"s_and_b32 s{sU0}, s{sCB}, 1")
        e.i(f"s_lshl_b32 s{sU0}, s{sU0}, 7")
        e.i(f"s_add_u32 s{sT0}, s{sT0}, s{sU0}")
    e.i("s_barrier")
    if opt.twq:
        e.i(f"buffer_load_dword v106, v104, {S(sWQ,4)}, s{sT0} offen")
    if opt.touch == 4:
        touches()
    lds_poll(CXI, 6, sleep=0)
    if opt.touch == 5:
        touches()
    e.label("L_wq_loop")
    for i in range(8):
        e.i(f"s_mov_b32 m0, s{sT1}")
        e.i(f"s_add_u32 s{sT1}, s{sT1}, 1024")
        e.i(f"buffer_load_dwordx4 v{vSW}, {S(sWQ,4)}, s{sOFF} offen lds")
        e.i(f"s_add_u32 s{sOFF}, s{sOFF}, 8192")
    e.i(f"s_and_b32 s{sOFF}, s{sOFF}, 0x7ffff")
    e.i(f"s_and_b32 s{sT1}, s{sT1}, 0xffff")
    e.i(f"s_waitcnt vmcnt({opt.wqdepth})")
    e.i(f"s_sub_u32 s{sCNT}, s{sCNT}, 1")
    e.i("s_cbranch_scc0 L_wq_loop")
    lds_signal(CWI)
    stamp(1, "front")
    if opt.touch == 1:
        touches()
    e.i(f"s_waitcnt vmcnt({4 if opt.touch == 1 else 0})")
    lds_signal(CWQ)
    stamp(8, "front")
    if opt.touch == 2 or (opt.touch == 3 and opt.ntouch < 4):
        lds_poll(CG, 4, sleep=2)
        touches(sT2, opt.ntouch if opt.touch == 3 else opt.stouch // 16, 4)
    e.i("s_branch L_ffn")

    e.label("L_pre_56")
    ffn_setup()
    e.i("s_setprio 3")
    e.i("s_waitcnt vmcnt(0)")

    e.label("L_ln")
    stamp(1, "front")
    if opt.lnclk:
        stamp(6); cstamp(9)
    X = 40
    A = 112
    e.i(f"s_lshr_b32 s{sT0}, s{sRG}, 2")
    e.i(f"s_mul_i32 s{sT0}, s{sT0}, {XN_RH}")
    e.i(f"s_and_b32 s{sT1}, s{sRG}, 3")
    e.i(f"s_lshl_b32 s{sT1}, s{sT1}, 7")
    e.i(f"s_add_u32 s{sT0}, s{sT0}, s{sT1}")
    e.i(f"s_add_u32 s{sT0}, s{sT0}, {R1}")
    e.i("v_mul_u32_u24 v122, 528, v3")
    e.i("v_lshl_add_u32 v122, v2, 4, v122")
    e.i(f"v_add_u32 v122, s{sT0}, v122")
    e.i(f"s_cmp_lt_u32 s{sWAVE}, 5")
    e.i("s_cbranch_scc1 L_ln_a")
    e.c("waves 5,6: raw rows -> LDS for the K/V wave")
    for i in range(8):
        e.i(f"ds_write_b128 v122, {V(8+4*i,4)} offset:{4224*i}")
    lds_signal(CRW)
    e.label("L_ln_a")
    e.i("v_mov_b32 v110, 0x3f803f80")
    e.i("v_mov_b64 v[112:113], 0")
    e.i("v_mov_b32 v108, 0x3f80")
    e.i("v_mov_b32 v109, 0x3f800000")
    for t in range(32):
        e.i(f"v_dot2c_f32_bf16 v{A+(t&1)}, v{8+t}, v110")
    def reduce_lanes():
        for m in ("quad_perm:[1,0,3,2]", "quad_perm:[2,3,0,1]", "row_half_mirror"):
            e.nop(2)
            e.i(f"v_add_f32_dpp v{A}, v{A}, v{A} {m} row_mask:0xf bank_mask:0xf")
    e.nop(3)
    e.i(f"v_add_f32 v{A}, v{A}, v{A+1}")
    reduce_lanes()
    e.i(f"v_mul_f32 v120, {hex(f32bits(-1.0/512))}, v{A}")
    for t in range(32):
        e.i(f"v_dot2_f32_bf16 v{X+2*t}, v{8+t}, v108, v120")
        e.i(f"v_dot2_f32_bf16 v{X+2*t+1}, v{8+t}, v109, v120")
    for t in range(32):
        a = t % 4
        if t < 4:
            e.i(f"v_pk_mul_f32 {V(A+2*a,2)}, {V(X+2*t,2)}, {V(X+2*t,2)}")
        else:
            e.i(f"v_pk_fma_f32 {V(A+2*a,2)}, {V(X+2*t,2)}, {V(X+2*t,2)}, {V(A+2*a,2)}")
    e.i(f"v_pk_add_f32 {V(A,2)}, {V(A,2)}, {V(A+2,2)}")
    e.i(f"v_pk_add_f32 {V(A+4,2)}, {V(A+4,2)}, {V(A+6,2)}")
    e.i(f"v_pk_add_f32 {V(A,2)}, {V(A,2)}, {V(A+4,2)}")
    e.i(f"v_add_f32 v{A}, v{A}, v{A+1}")
    reduce_lanes()
    e.i(f"v_mov_b32 v119, {hex(f32bits(1e-5))}")
    e.i(f"v_fmac_f32 v119, {hex(f32bits(1.0/512))}, v{A}")
    e.i("v_rsq_f32 v118, v119")
    e.i(f"s_cmp_lt_u32 s{sWAVE}, 5")
    e.i("s_cbranch_scc1 L_ln_b")
    e.c("waves 5,6: hand the row statistics to the K/V wave")
    e.i(f"s_lshl_b32 s{sT0}, s{sWAVE}, 5")
    e.i(f"s_add_u32 s{sT0}, s{sT0}, {R4 + STAT - 160}")
    e.i(f"v_lshl_add_u32 v111, v2, 2, s{sT0}")
    e.i("ds_write2_b32 v111, v120, v118 offset1:16")
    lds_signal(CST)
    lds_poll(CRC, 1, sleep=0)
    e.label("L_ln_b")
    e.lg = []
    for i in range(8):
        for t in range(4*i, 4*i+4):
            e.i(f"v_pk_mul_f32 {V(X+2*t,2)}, {V(X+2*t,2)}, v[118:119] op_sel_hi:[1,0]")
        for t in range(4*i, 4*i+4):
            e.i(f"v_cvt_pk_bf16_f32 v{8+t}, v{X+2*t}, v{X+2*t+1}")
        e.lds(f"ds_write_b128 v122, {V(8+4*i,4)} offset:{4224*i}")
    lds_signal(CXN)
    e.i(f"s_cmp_eq_u32 s{sSEG}, 0")
    e.i("s_cbranch_scc1 L_ln_done")
    e.i(f"s_mov_b32 s{sSEG}, 0")
    e.i(f"s_xor_b32 s{sRG}, s{sRG}, 4")
    e.i("s_waitcnt vmcnt(0)")
    for t in range(0, 32, 2):
        e.i(f"v_mov_b64 {V(8+t,2)}, {V(128+t,2)}")
    e.i("s_branch L_ln")
    e.label("L_ln_done")
    stamp(8, "front")
    if opt.lnclk:
        stamp(7); cstamp(10)
    e.i(f"s_cmp_ge_u32 s{sWAVE}, 4")
    e.i("s_cbranch_scc1 L_ffn")

    e.vm = []
    lds_poll(CWQ, 1, sleep=0)
    for q in range(4):
        e.i(f"buffer_load_dwordx2 {V(232+2*q,2)}, v205, {S(sX,4)}, s{sXO} offen offset:{16*q}")
    lds_poll(CXN, 9, sleep=0)
    stamp(2, "front")
    fill = [f"v_mov_b64 {V(OA+r,2)}, 0" for r in range(0, 32, 2)]
    e.c("Q projection: wave w -> head pair hp=w&1, row half rh=w>>1")
    def qreads(ks):
        s = ks % 4
        e.lds(f"ds_read_b64_tr_b16 {V(32+8*s,2)}, v{vT0} offset:{ks*2048}", ("q", ks))
        e.lds(f"ds_read_b64_tr_b16 {V(34+8*s,2)}, v{vT0} offset:{ks*2048+512}", ("q", ks))
        e.lds(f"ds_read_b128 {V(36+8*s,4)}, v{vXN0} offset:{ks*1056}", ("q", ks))
    for ks in range(4):
        qreads(ks)
    for ks in range(32):
        s = ks % 4
        e.wait(lg=("q", ks))
        e.i(f"{MF32} v[8:23], {V(32+8*s,4)}, {V(36+8*s,4)}, {'0' if ks == 0 else 'v[8:23]'}")
        if ks + 4 < 32:
            qreads(ks + 4)
        if ks == 27:
            lds_signal(CQ)
        if fill:
            e.i(fill.pop(0))
    e.i(f"s_mov_b32 s{sT1}, {hex(f32bits(0.25*math.log2(math.e)))}")
    e.nop(11)
    for r in range(16):
        e.i(f"v_mul_f32 v{8+r}, s{sT1}, v{8+r}")
    for hd in range(2):
        b = 8 + 8*hd
        e.i(f"v_mul_f32 v{24+hd}, v{b}, v{b}")
        for r in range(1, 8):
            e.i(f"v_fmac_f32 v{24+hd}, v{b+r}, v{b+r}")
    e.i("v_mov_b32 v26, v24")
    e.i("v_mov_b32 v27, v25")
    for hd in range(2):
        for j in range(4):
            e.i(f"v_cvt_pk_bf16_f32 v{QA+4*hd+j}, v{8+8*hd+2*j}, v{8+8*hd+2*j+1}")
    e.i("v_permlane32_swap_b32 v24, v26")
    e.i("v_permlane32_swap_b32 v25, v27")
    e.i("v_add_f32 v24, v24, v26")
    e.i("v_add_f32 v25, v25, v27")
    stamp(3, "front")
    lds_poll(CKV, 2, sleep=0)
    stamp(4)
    e.lds(f"ds_read_b32 v206, v6 offset:{CTAG}")
    e.lds(f"ds_read_b32 v30, v6 offset:{CKM}")
    e.wait_all(lg=True)
    e.c("stand-in for the row max: |q| * max|k| >= max_k q.k ; used only while it cannot be far above the true max")
    e.i("v_mul_f32 v24, v24, v30")
    e.i("v_mul_f32 v25, v25, v30")
    e.i("v_sqrt_f32 v24, v24")
    e.i("v_sqrt_f32 v25, v25")
    e.i(f"s_mov_b32 s{sT1}, {hex(f32bits(opt.thr))}")
    e.i("v_max_f32 v26, v24, v25")
    e.i(f"v_cmp_nge_f32 vcc, s{sT1}, v26")
    e.i("v_cmp_u_f32 s[4:5], v24, v25")
    e.i("s_or_b64 s[4:5], s[4:5], vcc")
    if opt.force_fallback:
        e.i("s_branch L_fallback")
    else:
        e.i("s_cbranch_scc1 L_fallback")
    e.label("L_att_start")
    for r in range(16):
        e.i(f"v_sub_f32 v{NMA+r}, 0, v24")
        e.i(f"v_sub_f32 v{NMB+r}, 0, v25")
    lds_poll(CE7, 1, sleep=0)
    for j in range(3):
        e.lds(f"ds_read_b128 {V(KB+4*j,4)}, v{vK} offset:{j*KVS}", ("a", j))
        e.lds(f"ds_read_b128 {V(VB+8*j,4)}, v{vV0} offset:{j*KVS}")
        e.lds(f"ds_read_b128 {V(VB+8*j+4,4)}, v{vV1} offset:{j*KVS}")
    e.wait(lg=("a", 0))
    e.i(f"{MF32} {V(S0,16)}, {V(KB,4)}, {V(QA,4)}, {V(NMA,16)}")
    e.nop(11)
    e.wait_all(lg=True)
    stamp(5)
    def em(t):
        if t.endswith(":"): e.raw(t)
        else: e.i(t)
    def step(cur, oth, K, Q, NM, O, V0, Op, V1p, after, noqk=False, nopv=False):
        for i in range(16):
            e.i(f"v_exp_f32 v{cur+i}, v{cur+i}")
            if i == opt.pos[0]:
                if not nopv:
                    e.i(f"{SMF} {V(Op,16)}, {V(V1p,4)}, {V(oth+8,8)}, v207")
                for t in after[0]: em(t)
            if i == opt.pos[1]:
                if not noqk:
                    e.i(f"{MF32} {V(oth,16)}, {V(K,4)}, {V(Q,4)}, {V(NM,16)}")
                for t in after[1]: em(t)
            if i == opt.pos[2]:
                e.i(f"{SMF} {V(O,16)}, {V(V0,4)}, {V(cur,8)}, v207")
                for t in after[2]: em(t)
    def shift(d):
        return [f"v_add_u32 v{v}, {hex(d & 0xffffffff)}, v{v}" for v in (vK, vV0, vV1)]
    if opt.full:
        slow = []
        SIG = lambda off: ["s_mov_b64 exec, 1", f"ds_add_u32 v6, v7 offset:{off}", "s_mov_b64 exec, -1"]
        def CHK(name, off, n):
            slow.append((name, off, n))
            return [f"v_readfirstlane_b32 s{sT0}, v5", f"s_cmp_ge_u32 s{sT0}, {n}", f"s_cbranch_scc0 L_slow_{name}", f"L_back_{name}:"]
        PRE = lambda off: [f"ds_read_b32 v5, v6 offset:{off}"]
        J0 = NE - 3
        for j in range(64):
            b3 = (j + 3) % 4
            slot = j + 3 if j < J0 else (j - J0 if j < J0 + 32 else (j - J0 - 32 if j < J0 + 47 else j - J0 - 47))
            off = slot * KVS
            rd = j + 3 < 64
            A = [[], [f"ds_read_b128 {V(KB+4*b3,4)}, v{vK} offset:{off}"] if rd else [], []]
            Bq = [[f"ds_read_b128 {V(VB+8*b3,4)}, v{vV0} offset:{off}"] if rd else [],
                  [f"ds_read_b128 {V(VB+8*b3+4,4)}, v{vV1} offset:{off}"] if rd else [],
                  [f"s_waitcnt lgkmcnt({2 if rd else 0})"] if j % 2 == 1 and j < 62 else []]
            assert J0 % 2 == 0
            if j == J0 - 1:
                A[2] += PRE(CA)
                Bq[2] += CHK("a", CA, 1) + SIG(CG) + shift(-RE)
            if j in (J0 + 7, J0 + 15, J0 + 23):
                A[2] += PRE(CA)
                Bq[2] += CHK(f"a{j}", CA, (j - J0 + 1) // 8 + 1)
            if j == J0 + 15:
                Bq[2] += SIG(CP1)
            if j == 31 and opt.stamps and not opt.lnclk:
                Bq[2] += [f"s_memrealtime {S(sSTAMP+12,2)}", f"s_memtime {S(sSTAMP+18,2)}"]
            if j == J0 + 31:
                A[2] += PRE(CL1)
                Bq[2] += CHK("l1", CL1, 3)
            if j == J0 + 45:
                A[2] += PRE(CH2)
                Bq[2] += CHK("h2", CH2, 4)
            if j == J0 + 46:
                Bq[2] += SIG(CR0) + shift(R1)
            if j == 62:
                A[1] += ["s_waitcnt vmcnt(0)"]
            step(S0, S1, KB+4*(j % 4), QB, NMB, OA, VB+8*(j % 4), OB, VB+8*((j-1) % 4)+4, A, nopv=(j == 0))
            step(S1, S0, KB+4*((j+1) % 4), QA, NMA, OB, VB+8*(j % 4), OA, VB+8*(j % 4)+4, Bq, noqk=(j == 63))
    e.label("L_att_done")
    if not opt.lnclk:
        stamp(7)
        cstamp(10)
    e.i(f"v_rcp_f32 v24, v{OA+8}")
    e.i("s_nop 0")
    e.i(f"{SMF} {V(OB,16)}, {V(VB+28,4)}, {V(S1+8,8)}, v207")
    e.lg = []
    lds_signal(CAD)
    for hd, O in enumerate((OA, OB)):
        if hd == 1:
            e.i(f"v_rcp_f32 v24, v{OB+8}")
            e.nop(1)
        for r in range(8):
            e.i(f"v_mul_f32 v{O+r}, v{O+r}, v24")
        for j in range(4):
            e.i(f"v_cvt_pk_bf16_f32 v{8+4*hd+j}, v{O+2*j}, v{O+2*j+1}")
        for j in range(4):
            e.i(f"v_min_u32 v{8+4*hd+j}, -2, v{8+4*hd+j}")
        e.vmem(f"buffer_store_dwordx4 {V(8+4*hd,4)}, v{vL16}, {S(sWS,4)}, s{sOB} offen offset:{2048*hd} sc1")
    if opt.hint:
        e.c("hint for the readers (the data itself is checked against the marker)")
        e.i(f"s_lshl_b32 s{sT0}, s{sCB}, 7")
        e.i(f"s_lshl_b32 s{sT1}, s{sF}, 2")
        e.i(f"s_add_u32 s{sT0}, s{sT0}, s{sT1}")
        e.i(f"s_add_u32 s{sFLG}, s{sFLG}, 0x10000")
        e.i(f"s_add_u32 s{sT0}, s{sT0}, s{sFLG}")
        e.i("s_mov_b64 exec, 1")
        e.i(f"buffer_store_dword v206, v{vL16}, {S(sWS,4)}, s{sT0} offen sc1")
        e.i("s_mov_b64 exec, -1")
        e.i(f"v_readfirstlane_b32 s{sTAG}, v206")
        e.i(f"v_lshlrev_b32 v16, 7, v{vC}")
        e.i("v_and_b32 v17, 4, v1")
        e.i("v_add_u32 v16, v16, v17")
        e.i(f"s_and_b32 s{sT0}, s{sF}, 1")
        e.i(f"s_lshl_b32 s{sT0}, s{sT0}, 9")
        e.i(f"s_add_u32 s{sFLG}, s{sFLG}, s{sT0}")
        e.i(f"s_and_b32 s{sT0}, s{sF}, 2")
        e.i(f"s_lshl_b32 s{sT0}, s{sT0}, 2")
        e.i(f"s_add_u32 s{sFLG}, s{sFLG}, s{sT0}")
    stamp(8, "late")
    e.c("output projection: wave w -> row half w>>1, K half w&1, both column tiles (own tile first)")
    G, XR, OF = 104, 120, 40
    e.i(f"v_mov_b32 v0, v{vL16}")
    e.i("v_mov_b32 v3, v205")
    e.i(f"s_and_b32 s{sT1}, s{sF}, 1")
    e.i(f"s_lshr_b32 s{sT2}, s{sF}, 1")
    e.i(f"s_lshl_b32 s{sT0}, s{sRB}, 6")
    e.i(f"s_add_u32 s{sT0}, s{sT0}, s{sT2}")
    e.i(f"s_lshl_b32 s{sT2}, s{sT1}, 5")
    e.i(f"s_add_u32 s{sT0}, s{sT0}, s{sT2}")
    e.i(f"s_lshl_b32 s{sT0}, s{sT0}, 10")
    e.i(f"s_add_u32 s{sOFF}, s{sT0}, {WS_O}")
    for g in range(4):
        e.i(f"s_add_u32 s{sCH+g}, s{sCB}, {1+g}")
        e.i(f"s_and_b32 s{sCH+g}, s{sCH+g}, 3")
        e.i(f"s_lshl_b32 s{sCH+g}, s{sCH+g}, 13")
        e.i(f"s_add_u32 s{sOA+2*g}, s{sOFF}, s{sCH+g}")
        e.i(f"s_add_u32 s{sOA+2*g+1}, s{sOA+2*g}, 4096")
    lds_poll(CWO, 4, sleep=1)
    def oloads(g):
        for i in range(4):
            e.i(f"buffer_load_dwordx4 {V(OF+16*g+4*i,4)}, v0, {S(sWS,4)}, s{sOA+2*g+(i>>1)} offen offset:{2048*(i&1)} sc1")
    if not opt.hint:
        for g in range(3):
            oloads(g)
    e.i(f"s_mul_i32 s{sT0}, s{sT1}, {32768+64}")
    e.i(f"v_lshl_add_u32 v2, v{vH}, 9, v{vTR}")
    e.i(f"v_xor_b32 v2, s{sT0}, v2")
    for g in range(4):
        e.i(f"v_add_u32 v{G+2*g}, s{sCH+g}, v2")
        e.i(f"v_xor_b32 v{G+2*g+1}, 64, v{G+2*g}")
    for q in range(4):
        e.i(f"v_mov_b64 {V(XR+2*q,2)}, {V(232+2*q,2)}")
    for i in range(16):
        for c2 in range(2):
            for t in range(2):
                e.lds(f"ds_read_b64_tr_b16 {V(128+8*i+4*c2+2*t,2)}, v{G+2*(i//4)+c2} offset:{(i%4)*2048+1024*t}")
    e.i(f"s_lshl_b32 s{sT2}, s{sF}, 12")
    e.i(f"s_add_u32 s{sT1}, s{sT2}, {R1}")
    e.i(f"v_add_u32 v1, s{sT1}, v0")
    e.i(f"s_xor_b32 s{sT2}, s{sT2}, 4096")
    e.i(f"s_add_u32 s{sT2}, s{sT2}, {R1}")
    e.i(f"v_add_u32 v2, s{sT2}, v0")
    e.i(f"s_and_b32 s{sT2}, s{sF}, 2")
    e.i(f"s_lshl_b32 s{sT2}, s{sT2}, 1")
    e.i(f"v_add_u32 v4, s{sT2}, v6")
    e.i(f"s_mov_b32 s{sSEG}, 0")
    e.i(f"s_mov_b32 s{sCNT}, {hex(opt.spin)}")
    lds_poll(CAD, 4, sleep=0)
    if opt.hint:
        top, done = lbl("hp"), lbl("hpd")
        spin_init()
        e.label(top)
        e.i(f"buffer_load_dword v17, v16, {S(sWS,4)}, s{sFLG} offen sc1")
        e.i("s_waitcnt vmcnt(0)")
        e.i(f"v_cmp_ne_u32 vcc, s{sTAG}, v17")
        e.i(f"s_cbranch_vccz {done}")
        spin_tail(top, done, opt.hsleep)
        e.label(done)
        stamp(1, "late")
        for g in range(4):
            oloads(g)
    else:
        e.i("s_waitcnt vmcnt(12)")
        stamp(1, "late")
        oloads(3)
    e.c("o fragments: check that every dword was written; if not, re-read that group until it is, then refresh the rest")
    def ocheck(g):
        b = OF + 16 * g
        e.i(f"v_max3_u32 v5, v{b}, v{b+1}, v{b+2}")
        for k in range(3, 15, 2):
            e.i(f"v_max3_u32 v5, v5, v{b+k}, v{b+k+1}")
        e.i(f"v_max_u32 v5, v5, v{b+15}")
        e.i("v_cmp_eq_u32 vcc, -1, v5")
    for g in range(4):
        e.i(f"s_waitcnt vmcnt({12-4*g})")
        b = OF + 16 * g
        ocheck(g)
        e.i(f"s_cbranch_vccnz L_oretry_{g}")
        e.label(f"L_ogo_{g}")
        for i in range(4):
            for c2 in (1, 0):
                a = 8 + 16 * c2
                k = 4 * g + i
                e.i(f"{MF32} {V(a,16)}, {V(128+8*k+4*c2,4)}, {V(b+4*i,4)}, {'0' if k == 0 else V(a,16)}")
    stamp(2, "late")
    for t in range(8):
        e.i(f"v_lshlrev_b32 v{128+2*t}, 16, v{XR+t}")
        e.i(f"v_and_b32 v{129+2*t}, s{sMASK}, v{XR+t}")
    e.lg = []
    for q in range(4):
        e.lds(f"ds_write_b128 v1, {V(24+4*q,4)} offset:{q*1024}")
    lds_signal(CE0, va=4)
    e.i(f"s_lshl_b32 s{sT1}, s{sF}, 2")
    e.i(f"v_add_u32 v1, s{sT1}, v6")
    e.i(f"s_lshl_b32 s{sT1}, s{sF}, 11")
    e.i(f"s_add_u32 s{sT1}, s{sT1}, {R2 + 16384}")
    e.i(f"v_add_u32 v0, s{sT1}, v0")
    lds_poll(CGD, 1, sleep=0, va=1)
    e.lds("ds_read_b128 v[40:43], v0")
    e.lds("ds_read_b128 v[44:47], v0 offset:1024")
    lds_poll(CE0, 2, sleep=0, va=4)
    for q in range(4):
        e.lds(f"ds_read_b128 {V(24+4*q,4)}, v2 offset:{q*1024}", ("e", q))
    for t in range(8):
        e.i(f"v_lshlrev_b32 v{G+2*t}, 16, v{40+t}")
        e.i(f"v_and_b32 v{G+1+2*t}, s{sMASK}, v{40+t}")
    for q in range(4):
        e.wait(lg=("e", q))
        for r in range(4*q, 4*q+4):
            e.i(f"v_add_f32 v{8+r}, v{8+r}, v{24+r}")
        for r in range(4*q, 4*q+4):
            e.i(f"v_fmac_f32 v{128+r}, v{8+r}, v{G+r}")
        for j in range(2):
            e.i(f"v_cvt_pk_bf16_f32 v{XR+2*q+j}, v{128+4*q+2*j}, v{128+4*q+2*j+1}")
        e.vmem(f"buffer_store_dwordx2 {V(XR+2*q,2)}, v3, {S(sOUT,4)}, s{sXO} offen offset:{16*q}")
    if opt.stamps:
        e.wait_all(vm=True)
        stamp(3, "late")
    dump_stamps()
    e.i("s_endpgm")
    for g in range(4):
        e.label(f"L_oretry_{g}")
        e.i(f"s_sub_u32 s{sCNT}, s{sCNT}, 1")
        e.i(f"s_cbranch_scc1 L_odone_{g}")
        if opt.osleep:
            e.i(f"s_sleep {opt.osleep}")
        oloads(g)
        e.i("s_waitcnt vmcnt(0)")
        ocheck(g)
        e.i(f"s_cbranch_vccnz L_oretry_{g}")
        e.label(f"L_odone_{g}")
        for g2 in range(g + 1, 4):
            oloads(g2)
        e.i(f"s_branch L_ogo_{g}")
    if opt.full:
        for name, off, n in slow:
            e.label(f"L_slow_{name}")
            lds_poll(off, n, sleep=0)
            e.i(f"s_branch L_back_{name}")

    e.label("L_fallback")
    e.i("v_mov_b32 v24, 0xff800000")
    e.i("v_mov_b32 v25, 0xff800000")
    e.i(f"s_mov_b32 s{sT1}, 0")
    e.i(f"s_mov_b32 s{sCNT}, 31")
    e.label("L_fb_loop")
    e.i(f"buffer_load_dwordx4 v[8:11], v{vL16}, {S(sWS,4)}, s{sT1} offen sc1")
    e.i(f"buffer_load_dwordx4 v[12:15], v{vL16}, {S(sWS,4)}, s{sT1} offen offset:2048 sc1")
    e.i(f"s_add_u32 s{sT1}, s{sT1}, 4096")
    e.i("s_waitcnt vmcnt(0)")
    for k in range(2):
        e.i(f"{MF32} {V(NMA,16)}, {V(8+4*k,4)}, {V(QA,4)}, 0")
        e.i(f"{MF32} {V(NMB,16)}, {V(8+4*k,4)}, {V(QB,4)}, 0")
        e.nop(12)
        for r in range(0, 16, 2):
            e.i(f"v_max3_f32 v24, v24, v{NMA+r}, v{NMA+r+1}")
        for r in range(0, 16, 2):
            e.i(f"v_max3_f32 v25, v25, v{NMB+r}, v{NMB+r+1}")
    e.i(f"s_sub_u32 s{sCNT}, s{sCNT}, 1")
    e.i("s_cbranch_scc0 L_fb_loop")
    e.i("v_mov_b32 v26, v24")
    e.i("v_mov_b32 v27, v25")
    e.nop(2)
    e.i("v_permlane32_swap_b32 v24, v26")
    e.i("v_permlane32_swap_b32 v25, v27")
    e.i("v_max_f32 v24, v24, v26")
    e.i("v_max_f32 v25, v25, v27")
    e.i("s_branch L_att_start")

    e.label("L_pre_7")
    e.vm = []
    e.lg = []
    e.i("s_setprio 3")
    e.i(f"s_bitcmp1_b32 s{sCB}, 0")
    e.i("v_lshlrev_b32 v40, 4, v1")
    e.i("s_waitcnt lgkmcnt(0)")
    e.i(f"s_cselect_b64 {S(sWKV,2)}, s[54:55], s[52:53]")
    e.i(f"s_cselect_b32 s{sTILE}, 0, 6")
    e.i(f"s_load_dword s{sTAG}, s[68:69], {hex(WS_EPOCH)}")
    e.i(f"s_mov_b64 {S(sX,2)}, s[48:49]")
    for i in range(4):
        e.i(f"s_mov_b32 m0, {R2 + 4096*i}")
        e.i(f"s_mov_b32 s{sT0}, {4096*i}")
        for k in range(4):
            e.vmem(f"buffer_load_dwordx4 v40, {S(sWKV,4)}, s{sT0} offen offset:{1024*k} lds", "wkv")
    e.i("s_barrier")
    setup()
    e.i("v_lshrrev_b32 v42, 4, v1")
    e.i("v_and_b32 v43, 15, v1")
    e.i(f"s_lshr_b32 s{sT0}, s{sCB}, 2")
    e.i(f"s_mul_i32 s{sT0}, s{sT0}, {XN_RH}")
    e.i(f"s_bfe_u32 s{sT1}, s{sCB}, 0x10001")
    e.i(f"s_lshl_b32 s{sT1}, s{sT1}, 8")
    e.i(f"s_add_u32 s{sT0}, s{sT0}, s{sT1}")
    e.i(f"s_add_u32 s{sT0}, s{sT0}, {R1}")
    e.i("v_mul_u32_u24 v44, 528, v42")
    e.i("v_lshl_add_u32 v44, v43, 4, v44")
    e.i(f"v_add_u32 v44, s{sT0}, v44")
    e.i("v_lshlrev_b32 v45, 8, v42")
    e.i(f"v_lshl_add_u32 v45, v{vR}, 5, v45")
    e.i(f"v_lshl_add_u32 v45, v{vC}, 3, v45")
    e.i(f"v_add_u32 v45, {R2}, v45")
    for r in range(4):
        e.i(f"v_mov_b32 v{20+r}, 0x3f803f80")
    e.i(f"s_lshl_b32 s{sT2}, s{sRB}, 1")
    e.i(f"s_lshr_b32 s{sOFF2}, s{sCB}, 2")
    e.i(f"s_add_u32 s{sT2}, s{sT2}, s{sOFF2}")
    e.i(f"s_lshl_b32 s{sT2}, s{sT2}, 11")
    e.i(f"s_add_u32 s{sT2}, s{sT2}, s{sT1}")
    e.i(f"v_lshlrev_b32 v46, 3, v{vH}")
    e.i("v_lshl_add_u32 v46, v43, 4, v46")
    e.i(f"s_lshl_b32 s{sOFF2}, s{sRB}, 7")
    e.i(f"s_lshl_b32 s{sOFF}, s{sCB}, 3")
    e.i(f"s_add_u32 s{sOFF2}, s{sOFF2}, s{sOFF}")
    e.i(f"v_mov_b32 v18, {hex(WS_KVF)}")
    e.i(f"v_lshrrev_b32 v{vW1}, 2, v1")
    e.i(f"v_lshlrev_b32 v19, 7, v{vW1}")
    e.i(f"v_lshl_add_u32 v19, v{vC}, 4, v19")
    e.i("v_lshlrev_b32 v31, 11, v1")
    e.i(f"v_mul_u32_u24 v{vW1}, 3584, v{vW1}")
    e.i(f"v_lshl_add_u32 v{vW1}, v{vC}, 4, v{vW1}")
    e.i(f"v_lshlrev_b32 v{vT0}, 6, v{vR}")
    e.i(f"v_lshl_add_u32 v{vT0}, v{vCG}, 5, v{vT0}")
    e.i(f"v_lshl_add_u32 v{vT0}, v{vC}, 3, v{vT0}")
    e.i(f"v_lshl_add_u32 v{vT0}, v{vH}, 9, v{vT0}")
    e.i(f"v_add_u32 v{vT0}, s{sRING}, v{vT0}")
    e.i("s_waitcnt lgkmcnt(0)")
    e.i(f"s_mul_i32 s{sTAG}, s{sTAG}, 0x9e3779b1")
    e.i(f"s_add_u32 s{sTAG}, s{sTAG}, 0x7f4a7c15")
    e.i(f"v_mov_b32 v16, s{sTAG}")
    e.lds(f"ds_write_b32 v6, v16 offset:{CTAG}")
    e.wait(vm="wkv")
    stamp(1, "front")
    for ks in range(16):
        e.lds(f"ds_read_b64_tr_b16 {V(128+4*ks,2)}, v45 offset:{ks*1024}")
        e.lds(f"ds_read_b64_tr_b16 {V(130+4*ks,2)}, v45 offset:{ks*1024+128}")
    lds_signal(CXN)
    e.i(f"v_add_u32 v41, {RE}, v{vSP}")
    e.i(f"s_mov_b32 exec_lo, {hex((1 << NE) - 1)}")
    e.i(f"s_mov_b32 exec_hi, {hex((1 << NE) - 1)}")
    e.lds(f"ds_write_b128 v41, {V(vSD,4)} offset:2048")
    e.i("s_mov_b64 exec, -1")
    lds_poll(CRW, 2, sleep=0)
    for ks in range(16):
        e.lds(f"ds_read_b128 {V(64+4*ks,4)}, v44 offset:{ks*2112}", ("k", ks), guard=False)
    lds_signal(CRC)
    e.i(f"s_bitcmp1_b32 s{sCB}, 0")
    e.i("s_cbranch_scc1 L_w7_v")
    lg_save = list(e.lg)
    def kvloop(isV):
        for ks in range(16):
            W, Xf = V(128+4*ks, 4), V(64+4*ks, 4)
            a, b = ("v[20:23]", W) if isV else (W, "v[20:23]")
            e.i(f"{MF16} v[12:15], {a}, {b}, {'0' if ks == 0 else 'v[12:15]'}")
            e.wait(lg=("k", ks))
            a, b = (Xf, W) if isV else (W, Xf)
            e.i(f"{MF16} v[8:11], {a}, {b}, {'0' if ks == 0 else 'v[8:11]'}")
    kvloop(False)
    stamp(8, "front")
    e.i(f"v_lshl_add_u32 v46, v{vCG}, 9, v46")
    e.i("v_lshl_add_u32 v47, v43, 2, v6")
    lds_poll(CST, 2, sleep=0)
    e.i(f"ds_read2_b32 v[24:25], v47 offset0:{STAT//4} offset1:{STAT//4+16}")
    e.wait_all(lg=True)
    for r in range(4):
        e.i(f"v_fmac_f32 v{8+r}, v24, v{12+r}")
    for r in range(4):
        e.i(f"v_mul_f32 v{8+r}, v25, v{8+r}")
    e.i("v_cvt_pk_bf16_f32 v12, v8, v9")
    e.i("v_cvt_pk_bf16_f32 v13, v10, v11")
    e.i(f"buffer_store_dwordx2 v[12:13], v46, {S(sWS,4)}, s{sT2} offen sc1")
    e.i("v_mul_f32 v17, v8, v8")
    for r in range(1, 4):
        e.i(f"v_fmac_f32 v17, v{8+r}, v{8+r}")
    e.i("v_mov_b32 v15, v17")
    e.nop(2)
    e.i("v_permlane32_swap_b32 v17, v15")
    e.i("v_add_f32 v17, v17, v15")
    e.i("v_mov_b32 v15, v17")
    e.nop(2)
    e.i("v_permlane16_swap_b32 v17, v15")
    e.i("v_add_f32 v17, v17, v15")
    for m in ("row_ror:1", "row_ror:2", "row_ror:4", "row_ror:8"):
        e.nop(2)
        e.i(f"v_max_u32_dpp v17, v17, v17 {m} row_mask:0xf bank_mask:0xf")
    e.i("s_branch L_w7_pub")
    e.label("L_w7_v")
    e.lg = lg_save
    kvloop(True)
    stamp(8, "front")
    e.i(f"v_lshlrev_b32 v46, 4, v43")
    e.i(f"v_lshl_add_u32 v46, v{vH}, 8, v46")
    e.i(f"v_lshl_add_u32 v46, v{vCG}, 3, v46")
    e.i(f"s_add_u32 s{sT2}, s{sT2}, s{sT1}")
    e.i(f"s_add_u32 s{sT2}, s{sT2}, 1024")
    e.i("v_lshl_add_u32 v47, v42, 4, v6")
    lds_poll(CST, 2, sleep=0)
    e.i(f"ds_read_b128 v[24:27], v47 offset:{STAT}")
    e.i(f"ds_read_b128 v[32:35], v47 offset:{STAT+64}")
    e.wait_all(lg=True)
    for r in range(4):
        e.i(f"v_fmac_f32 v{8+r}, v{24+r}, v{12+r}")
    for r in range(4):
        e.i(f"v_mul_f32 v{8+r}, v{32+r}, v{8+r}")
    e.i("v_cvt_pk_bf16_f32 v12, v8, v9")
    e.i("v_cvt_pk_bf16_f32 v13, v10, v11")
    e.i(f"buffer_store_dwordx2 v[12:13], v46, {S(sWS,4)}, s{sT2} offen sc1")
    e.i("v_mov_b32 v17, 0")
    e.label("L_w7_pub")
    stamp(2)
    e.i("s_mov_b64 exec, 1")
    e.wait_all(vm=True)
    e.i(f"buffer_store_dwordx2 v[16:17], v18, {S(sWS,4)}, s{sOFF2} offen sc1")
    e.i("s_mov_b64 exec, -1")
    stamp(9)
    e.c("wait for all 256 K/V producers, pass max |k|^2 on through LDS")
    top, done = lbl("kv"), lbl("kvd")
    e.i(f"s_mov_b32 s{sT1}, {hex(WS_KVF)}")
    e.i(f"s_bfe_u32 s{sT2}, s2, 0x40003")
    e.i(f"s_lshl_b32 s{sT2}, s{sT2}, 7")
    if opt.touch == 3:
        e.c("touch 1/8 of the w1 slice -> L2; the first poll queues behind it")
        if opt.twait == 1:
            lds_poll(CWQ, 1, sleep=1)
        if opt.twait == 2:
            lds_poll(CWI, 1, sleep=1)
        touch_setup(sOFF)
        touches(sOFF, 0, opt.ntouch)
    if opt.kvdelay:
        e.i(f"s_sleep {opt.kvdelay}")
    spin_init()
    e.label(top)
    e.i(f"buffer_load_dwordx4 v[32:35], v19, {S(sWS,4)}, s{sT1} offen sc1")
    e.i(f"buffer_load_dwordx4 v[36:39], v19, {S(sWS,4)}, s{sT1} offen offset:2048 sc1")
    e.wait_all(vm=True)
    if opt.fstart == 3:
        lds_signal(CTL)
    e.i("v_xor_b32 v32, v16, v32")
    e.i("v_xor_b32 v34, v16, v34")
    e.i("v_xor_b32 v36, v16, v36")
    e.i("v_xor_b32 v38, v16, v38")
    e.i("v_or3_b32 v32, v32, v34, v36")
    e.i("v_or_b32 v32, v32, v38")
    e.i("v_cmp_ne_u32 vcc, 0, v32")
    e.i("v_max_u32 v30, v33, v37")
    e.i(f"s_cbranch_vccz {done}")
    spin_tail(top, done, opt.kvsleep)
    e.label(done)
    lds_signal(CKV)
    e.c("blocks 0..6 -> early slots in R2")
    e.i(f"s_mov_b32 s{sOFF2}, 0")
    e.i(f"s_mov_b32 s{sT1}, {RE}")
    kv_dma(NE, sOFF2, sT1, 1, 1)
    if opt.kvtouch:
        e.c("touch 64 of the 1024 K/V lines -> L2 (the workgroups of an XCD cover all of them)")
        e.i(f"buffer_load_dword v106, v31, {S(sWS,4)}, s{sT2} offen sc1")
    for m in ("row_ror:1", "row_ror:2", "row_ror:4", "row_ror:8"):
        e.nop(2)
        e.i(f"v_max_u32_dpp v30, v30, v30 {m} row_mask:0xf bank_mask:0xf")
    e.i("v_mov_b32 v29, v30")
    e.nop(2)
    e.i("v_permlane16_swap_b32 v29, v30")
    e.i("v_max_u32 v30, v29, v30")
    e.i("v_mov_b32 v29, v30")
    e.nop(2)
    e.i("v_permlane32_swap_b32 v29, v30")
    e.i("v_max_u32 v30, v29, v30")
    e.lds(f"ds_write_b32 v6, v30 offset:{CKM}")
    lds_signal(CKV)
    stamp(4, "front")
    e.i(f"s_waitcnt vmcnt({1 if opt.kvtouch else 0})")
    lds_signal(CE7)
    e.c("blocks 5..36 -> slots 0..31; mark the o fragments of this workgroup as not yet written")
    e.i("v_mov_b64 v[208:209], -1")
    e.i("v_mov_b64 v[210:211], -1")
    e.i(f"s_mov_b32 s{sT1}, 0")
    lds_poll(CQ, 4, sleep=0)
    e.vm = []
    e.lds(f"ds_write_b128 v{vSP}, {V(vSD,4)} offset:2048")
    kv_dma(8, sOFF2, sT1, 1, 1)
    for st in range(3):
        kv_dma(8, sOFF2, sT1, 1, 1)
        e.i("s_waitcnt vmcnt(16)")
        e.vm = []
        lds_signal(CA)
    e.i("s_waitcnt vmcnt(0)")
    lds_signal(CA)
    lds_poll(CG, 4, sleep=1)
    e.c("workgroup 0 renews the epoch word: every producer has read it by now")
    e.i("s_cmp_lg_u32 s2, 0")
    e.i("s_cbranch_scc1 L_ffn")
    e.i(f"v_mov_b32 v29, {hex(WS_EPOCH)}")
    e.i("s_mov_b64 exec, 1")
    e.i(f"buffer_store_dword v16, v29, {S(sWS,4)}, 0 offen sc1")
    e.i("s_mov_b64 exec, -1")

    ACC = 8
    NR = opt.NR
    AF, BF = 72, 88
    e.label("L_ffn")
    e.vm = []
    e.lg = []
    e.i("s_setprio 3")
    e.i(f"s_mul_i32 s{sOFF}, s{sCB}, 448")
    e.i(f"s_lshl_b32 s{sT1}, s{sTILE}, 6")
    e.i(f"s_add_u32 s{sOFF}, s{sOFF}, s{sT1}")
    e.c("k order is rotated by 4*(rb&7) steps: the 8 workgroups of an XCD that share this w1 slice take turns missing")
    e.i(f"s_add_u32 s{sE1}, s{sOFF}, {512*3584}")
    e.i(f"s_and_b32 s{sT1}, s{sRB}, {7 if opt.rot & 2 else 0}")
    e.i(f"s_mul_i32 s{sT0}, s{sT1}, {64*3584}")
    e.i(f"s_add_u32 s{sOFF}, s{sOFF}, s{sT0}")
    for g in range(8):
        e.i(f"s_add_u32 s{sT0}, s{sT1}, {g}")
        e.i(f"s_and_b32 s{sT0}, s{sT0}, 7")
        e.i(f"s_mul_i32 s{sT0}, s{sT0}, {4*1056}")
        e.i(f"v_add_u32 v{232+2*g}, s{sT0}, v{vXN0}")
        e.i(f"v_add_u32 v{233+2*g}, s{sT0}, v{vXN1}")
    e.i(f"s_mul_i32 s{sW2T}, s{sF}, {448*1024}")
    e.i(f"s_lshl_b32 s{sT0}, s{sCB}, 7")
    e.i(f"s_add_u32 s{sW2T}, s{sW2T}, s{sT0}")
    e.i(f"s_and_b32 s{sT0}, s{sRB}, 7")
    e.i(f"s_min_u32 s{sT0}, s{sT0}, 6")
    e.i(f"s_lshl_b32 s{sT0}, s{sT0}, 16")
    e.i(f"s_add_u32 s{sW2T}, s{sW2T}, s{sT0}")
    e.i(f"v_lshrrev_b32 v{vTCH}, 2, v1")
    e.i(f"v_lshlrev_b32 v{vTCH}, 10, v{vTCH}")
    e.i(f"v_lshl_add_u32 v{vTCH}, v{vC}, 8, v{vTCH}")
    lds_poll(CXN, 9, sleep=1)
    e.i(f"ds_read_b32 v4, v6 offset:{CTAG}")
    e.i("v_mov_b64 v[208:209], -1")
    e.i("v_mov_b64 v[210:211], -1")
    if opt.fgo == 2:
        lds_poll(CKV, 1, sleep=1)
    if opt.fgo == 3:
        lds_poll(CE7, 1, sleep=1)
    e.wait_all(lg=True)
    e.i(f"v_readfirstlane_b32 s{sTAG}, v4")
    e.i(f"s_setprio {opt.fprio1}")
    stamp(2, "late")
    e.i(f"s_cmp_eq_u32 s{sWAVE}, 7")
    e.i("s_cbranch_scc1 L_ffn1_w7")

    def paced(n):
        if n == 0:
            e.wait_all(lg=True)
        elif len(e.lg) > n:
            e.i(f"s_waitcnt lgkmcnt({n})")
            del e.lg[: len(e.lg) - n]
    def bread(ks, rh):
        e.lds(f"ds_read_b128 {V(BF+8*(ks%2)+4*rh,4)}, v{232+2*(ks//4)+rh} offset:{(ks%4)*1056}", ("f", ks))
    def wrap1():
        e.i(f"s_cmp_ge_u32 s{sOFF}, s{sE1}")
        e.i(f"s_cselect_b32 s{sT0}, {512*3584}, 0")
        e.i(f"s_sub_u32 s{sOFF}, s{sOFF}, s{sT0}")
    def w2_touch():
        if opt.warm2:
            e.c("touch 1/7 of this wave's w2 slice (8 workgroups of an XCD share it) -> L2")
            e.vmem(f"buffer_load_dword v124, v{vTCH}, {S(sW2,4)}, s{sW2T} offen")
    def h_store(tiles):
        lds_signal(CX)
        stamp(3)
        e.i("s_setprio 3")
        e.i(f"s_mul_i32 s{sT0}, s{sRB}, 112")
        e.i(f"s_mul_i32 s{sT1}, s{sCB}, 14")
        e.i(f"s_add_u32 s{sT0}, s{sT0}, s{sT1}")
        e.i(f"s_lshl_b32 s{sT1}, s{sTILE}, 1")
        e.i(f"s_add_u32 s{sT0}, s{sT0}, s{sT1}")
        e.i(f"s_lshl_b32 s{sT0}, s{sT0}, 11")
        e.i(f"s_add_u32 s{sOFF}, s{sT0}, {WS_H}")
        e.i(f"s_add_u32 s{sOFF2}, s{sOFF}, 4096")
        e.c("mark the o fragments of attention wave f as not yet written")
        for hd in range(2):
            e.vmem(f"buffer_store_dwordx4 v[208:211], v{vL16}, {S(sWS,4)}, s{sOB} offen offset:{2048*hd} sc1", "clr")
        for ct in tiles:
            for rh in range(2):
                a = ACC + 16 * (rh * 2 + ct)
                for j in range(8):
                    e.i(f"v_cvt_pk_bf16_f32 v{a+j}, v{a+2*j}, v{a+2*j+1}")
                for j in range(8):
                    e.i(f"v_pk_max_i16 v{a+j}, v{a+j}, 0")
                for s in range(2):
                    e.vmem(f"buffer_store_dwordx4 {V(a+4*s,4)}, v{vL16}, {S(sWS,4)}, s{sOFF2 if ct else sOFF} offen offset:{(2*s+rh)*1024} sc1", "hst")
    def ring_dma(ks, srd, v, step):
        for a in range(2):
            e.i(f"s_add_u32 m0, s{sRING}, {(ks % NR) * 2048 + a * 1024}")
            e.i("s_nop 0")
            e.vmem(f"buffer_load_dwordx4 v{v}, {S(srd,4)}, s{sOFF} offen lds", ("w", ks))
            e.i(f"s_add_u32 s{sOFF}, s{sOFF}, {step}")
    def tr2(ks, i, tstride):
        ct, t = i >> 1, i & 1
        e.lds(f"ds_read_b64_tr_b16 {V(AF+8*(ks%2)+4*ct+2*t,2)}, v{vT1 if ct else vT0} offset:{(ks%NR)*2048+tstride*t}", ("f", ks))

    e.c("FFN1, waves 4..6: two column tiles x two row halves")
    A3, B3 = 72, 96
    LA = 1 if opt.la1 else 2
    def dma1(ks, a):
        e.i(f"s_add_u32 m0, s{sRING}, {(ks % 3) * 2048 + a * 1024}")
        e.i("s_nop 0")
        e.vmem(f"buffer_load_dwordx4 v{vW1}, {S(sW1,4)}, s{sOFF} offen lds", ("w", ks))
        e.i(f"s_add_u32 s{sOFF}, s{sOFF}, {8*3584}")
        if a == 1 and ks % 4 == 3:
            wrap1()
    def br3(ks, rh):
        e.lds(f"ds_read_b128 {V(B3+8*(ks%3)+4*rh,4)}, v{232+2*(ks//4)+rh} offset:{(ks%4)*1056}", ("f", ks))
    def tr3(ks, i):
        ct, t = i >> 1, i & 1
        e.lds(f"ds_read_b64_tr_b16 {V(A3+8*(ks%3)+4*ct+2*t,2)}, v{vT1 if ct else vT0} offset:{(ks%3)*2048+512*t}", ("f", ks))
    for ks in range(3):
        dma1(ks, 0); dma1(ks, 1)
    for ks in range(LA):
        br3(ks, 0); br3(ks, 1)
        e.wait(vm=("w", ks))
        for i in range(4):
            tr3(ks, i)
    for ks in range(32):
        s = ks % 3
        e.wait(lg=("f", ks))
        n = ks + LA
        dense = ks < opt.dense
        for i in range(4):
            rh, ct = i >> 1, i & 1
            a = ACC + 16 * i
            e.i(f"{MF32} {V(a,16)}, {V(A3+8*s+4*ct,4)}, {V(B3+8*s+4*rh,4)}, {'0' if ks == 0 else V(a,16)}")
            if i == 0 and ks + 3 < 32:
                dma1(ks + 3, 0)
                dma1(ks + 3, 1)
            if n < 32:
                if i == 0:
                    br3(n, 0); br3(n, 1)
                if i == 1:
                    e.wait(vm=("w", n))
                if dense:
                    if i in (1, 2):
                        tr3(n, 2 * i - 2); tr3(n, 2 * i - 1)
                else:
                    if i == 1:
                        tr3(n, 0); tr3(n, 1)
                    if i >= 2:
                        tr3(n, i)
                    paced(opt.pace1)
        if ks == opt.t2at:
            w2_touch()
        if opt.mid and ks in (0, 4, 8, 12, 16, 20):
            stamp(4 + ks // 4)
    if opt.mid:
        lds_signal(CX)
        stamp(3)
        dump_stamps()
        e.i("s_endpgm")
    h_store([0, 1])
    e.i("s_branch L_ffn_join")

    e.label("L_ffn1_w7")
    e.vm = []
    e.lg = []
    e.c("FFN1, wave 7: one column tile")
    def dma7(ks):
        e.i(f"s_add_u32 m0, s{sRING}, {(ks % 8) * 1024}")
        e.i("s_nop 0")
        e.vmem(f"buffer_load_dwordx4 v{vW1}, {S(sW1,4)}, s{sOFF} offen lds", ("w", ks))
        e.i(f"s_add_u32 s{sOFF}, s{sOFF}, {16*3584}")
        if ks % 4 == 3:
            wrap1()
    def tr7(ks, t):
        e.lds(f"ds_read_b64_tr_b16 {V(AF+8*(ks%2)+2*t,2)}, v{vT0} offset:{(ks%8)*1024+256*t}", ("f", ks))
    e.i(f"s_setprio {opt.p7}")
    for ks in range(8):
        dma7(ks)
    bread(0, 0); bread(0, 1)
    e.wait(vm=("w", 0))
    tr7(0, 0); tr7(0, 1)
    for ks in range(32):
        s = ks % 2
        e.wait(lg=("f", ks))
        if ks + 8 < 32:
            dma7(ks + 8)
        if ks + 1 < 32:
            e.wait(vm=("w", ks + 1))
        for rh in range(2):
            a = ACC + 32 * rh
            e.i(f"{MF32} {V(a,16)}, {V(AF+8*s,4)}, {V(BF+8*s+4*rh,4)}, {'0' if ks == 0 else V(a,16)}")
            if ks + 1 < 32:
                bread(ks + 1, rh)
                tr7(ks + 1, rh)
                if rh == 0 and ks >= opt.dense:
                    paced(opt.pace1)
        if ks == opt.t2at:
            w2_touch()
    h_store([0])

    e.label("L_ffn_join")
    e.i(f"s_lshl_b32 s{sT2}, s{sCB}, 7")
    e.i(f"s_lshl_b32 s{sT1}, s{sF}, 2")
    e.i(f"s_add_u32 s{sT2}, s{sT2}, s{sT1}")
    e.i(f"s_add_u32 s{sT2}, s{sT2}, s{sFLG}")
    e.i("v_mov_b32 v72, 0")
    e.i(f"v_mov_b32 v73, s{sTAG}")
    e.i(f"v_add_u32 v{vSP}, {R1}, v{vSP}")
    e.i(f"s_lshl_b32 s{sRING}, s{sF}, 13")
    e.i(f"s_add_u32 s{sRING}, s{sRING}, {RB2}")
    e.i(f"v_lshl_add_u32 v{vTR}, v{vH}, 9, v{vTR}")
    e.c("accumulator i holds output tile i ^ f, so that accumulator 0 is this wave's own tile")
    e.i(f"s_and_b32 s{sT1}, s{sF}, 1")
    e.i(f"s_lshl_b32 s{sT1}, s{sT1}, 6")
    e.i(f"v_xor_b32 v{vT0}, s{sT1}, v{vTR}")
    e.i(f"v_add_u32 v{vT0}, s{sRING}, v{vT0}")
    e.i(f"v_xor_b32 v{vT1}, 64, v{vT0}")
    e.i(f"s_lshr_b32 s{sT1}, s{sF}, 1")
    e.i(f"s_lshl_b32 s{sT1}, s{sT1}, 10")
    e.i(f"v_add_u32 v0, s{sT1}, v{vL16}")
    e.i("v_xor_b32 v2, 0x400, v0")
    e.i("v_bfe_u32 v122, v1, 2, 3")
    e.i("v_lshlrev_b32 v122, 7, v122")
    e.i(f"v_lshl_add_u32 v122, v{vC}, 2, v122")
    e.i("v_lshlrev_b32 v123, 9, v1")
    e.i("s_mov_b64 exec, 1")
    e.wait_all(vm=True)
    e.vmem(f"buffer_store_dword v73, v72, {S(sWS,4)}, s{sT2} offen sc1")
    e.i("s_mov_b64 exec, -1")
    stamp(4, "late")
    e.i(f"s_mul_i32 s{sOFF}, s{sF}, {448*1024}")
    e.i(f"s_lshl_b32 s{sT0}, s{sCB}, 7")
    e.i(f"s_add_u32 s{sOFF}, s{sOFF}, s{sT0}")
    e.i(f"s_mov_b32 s{sE1}, s{sOFF}")
    e.i(f"s_cmp_eq_u32 s{sWAVE}, 7")
    e.i("s_cbranch_scc1 L_no_e1")
    e.c("waves 4..6: blocks 37..51 -> slots 0..14 once attention has read them")
    lds_poll(CP1, 4, sleep=4)
    e.i(f"s_lshl_b32 s{sOFF2}, s{sF}, 11")
    e.i(f"s_add_u32 s{sOFF2}, s{sOFF2}, {(NE+32)*2048}")
    e.i(f"s_mul_i32 s{sT1}, s{sF}, {KVS}")
    kv_dma(5, sOFF2, sT1, 3, 3)
    e.c("touch 1/32 of the w2 / wo lines this XCD needs -> L2 (waves 4,5: w2, wave 6: wo)")
    e.i(f"s_lshr_b32 s{sT1}, s2, 3")
    e.i(f"s_and_b32 s{sT2}, s{sCB}, 1")
    e.i(f"s_lshl_b32 s{sT2}, s{sT2}, 7")
    e.i(f"s_cmp_eq_u32 s{sWAVE}, 6")
    e.i("s_cbranch_scc1 L_t_wo")
    e.i(f"s_lshl_b32 s{sT1}, s{sT1}, 1")
    e.i(f"s_add_u32 s{sT1}, s{sT1}, s{sF}")
    e.i(f"s_mul_i32 s{sT1}, s{sT1}, {28*1024}")
    e.i(f"s_add_u32 s{sT1}, s{sT1}, s{sT2}")
    e.i(f"buffer_load_dword v124, v{vTCH}, {S(sW2,4)}, s{sT1} offen")
    e.i(f"s_add_u32 s{sT1}, s{sT1}, {12*1024}")
    e.i(f"buffer_load_dword v124, v{vTCH}, {S(sW2,4)}, s{sT1} offen")
    e.i("s_waitcnt vmcnt(2)")
    e.i("s_branch L_t_done")
    e.label("L_t_wo")
    e.i(f"s_lshl_b32 s{sT1}, s{sT1}, 14")
    e.i(f"s_add_u32 s{sT1}, s{sT1}, s{sT2}")
    e.i(f"buffer_load_dword v124, v{vTCH}, {S(sWO,4)}, s{sT1} offen")
    e.i("s_waitcnt vmcnt(1)")
    e.label("L_t_done")
    lds_signal(CL1)
    e.label("L_no_e1")
    e.c("blocks 51..63 -> R1 once xn is dead")
    lds_poll(CX, 4, sleep=4)
    e.i(f"s_lshl_b32 s{sOFF2}, s{sF}, 11")
    e.i(f"s_add_u32 s{sOFF2}, s{sOFF2}, {(NE+47)*2048}")
    e.i(f"s_mul_i32 s{sT1}, s{sF}, {KVS}")
    e.i(f"s_add_u32 s{sT1}, s{sT1}, {R1}")
    e.vm = []
    kv_dma(3, sOFF2, sT1, 4, 4)
    e.i("s_mov_b32 exec_lo, 0xffff")
    e.i("s_mov_b32 exec_hi, 0xffff")
    e.lds(f"ds_write_b128 v{vSP}, {V(vSD,4)} offset:2048")
    e.i("s_mov_b64 exec, -1")
    stamp(5)
    if opt.exit_at == 5:
        e.wait_all(vm=True)
        lds_signal(CH2)
    exit_if(5)
    e.c("wait until one of the two producers of this wave's K range has published h; start with that one")
    top, done, other = lbl("fp"), lbl("fpd"), lbl("fpo")
    e.i(f"s_lshr_b32 s{sT2}, s{sCB}, 2")
    e.i(f"s_lshl_b32 s{sT1}, s{sF}, 3")
    spin_init()
    e.label(top)
    e.i(f"buffer_load_dword v72, v122, {S(sWS,4)}, s{sFLG} offen sc1")
    e.wait_all(vm=True)
    e.i(f"v_cmp_ne_u32 vcc, s{sTAG}, v72")
    if opt.dyn:
        e.i(f"s_lshr_b32 s{sT0}, vcc_lo, s{sT1}")
        e.i(f"s_lshl_b32 s{sU0}, s{sT2}, 2")
        e.i(f"s_lshr_b32 s{sU1}, s{sT0}, s{sU0}")
        e.i(f"s_and_b32 s{sU1}, s{sU1}, 15")
        e.i(f"s_cbranch_scc0 {done}")
        e.i(f"s_xor_b32 s{sT2}, s{sT2}, 1")
        e.i(f"s_xor_b32 s{sU0}, s{sU0}, 4")
        e.i(f"s_lshr_b32 s{sU1}, s{sT0}, s{sU0}")
        e.i(f"s_and_b32 s{sU1}, s{sU1}, 15")
        e.i(f"s_cbranch_scc0 {done}")
        e.i(f"s_xor_b32 s{sT2}, s{sT2}, 1")
    else:
        e.i(f"s_cbranch_vccz {done}")
    spin_tail(top, done, 4)
    e.label(done)
    lds_signal(CH2)
    stamp(6)
    e.i(f"s_setprio {opt.fprio}")
    e.i(f"s_bfe_u32 s{sT0}, s{sCB}, 0x10001")
    e.i(f"s_lshl_b32 s{sT2}, s{sT2}, 1")
    e.i(f"s_add_u32 s{sT2}, s{sT2}, s{sT0}")
    for c in range(4):
        e.i(f"s_xor_b32 s{sCH+c}, s{sT2}, {c}")
        e.i(f"s_mul_i32 s{sCH+c}, s{sCH+c}, {7*2048}")
    e.i(f"s_mul_i32 s{sT0}, s{sRB}, 112")
    e.i(f"s_mul_i32 s{sT1}, s{sF}, 28")
    e.i(f"s_add_u32 s{sT0}, s{sT0}, s{sT1}")
    e.i(f"s_lshl_b32 s{sT0}, s{sT0}, 11")
    e.i(f"s_add_u32 s{sE2}, s{sT0}, {WS_H}")
    def set_w(c):
        e.i(f"s_lshl_b32 s{sOFF}, s{sCH+c}, 3")
        e.i(f"s_add_u32 s{sOFF}, s{sOFF}, s{sE1}")
    def set_h(c):
        e.i(f"s_add_u32 s{sOFF2}, s{sCH+c}, s{sE2}")
    set_w(0)
    set_h(0)
    if opt.htouch:
        e.c("touch 1/4 of this wave's h slice (4 workgroups of an XCD share it) -> L2")
        e.i(f"s_lshr_b32 s{sT0}, s{sCB}, 1")
        e.i(f"s_lshl_b32 s{sT0}, s{sT0}, 7")
        e.i(f"s_add_u32 s{sT0}, s{sT0}, s{sOFF2}")
        e.vmem(f"buffer_load_dword v124, v123, {S(sWS,4)}, s{sT0} offen sc1")
        e.i(f"s_add_u32 s{sT0}, s{sT0}, {48*512}")
        e.vmem(f"buffer_load_dword v124, v123, {S(sWS,4)}, s{sT0} offen sc1")
    PH = NR + 1
    HB = 128
    def h_load(ks):
        for rh in range(2):
            r = HB + 8 * (ks % PH) + 4 * rh
            e.vmem(f"buffer_load_dwordx4 {V(r,4)}, v{2 if rh else 0}, {S(sWS,4)}, s{sOFF2} offen sc1", ("h", ks))
        e.i(f"s_add_u32 s{sOFF2}, s{sOFF2}, 2048")
    def wo_dma():
        e.c("wo slice -> R0 by DMA once attention has left it")
        e.i("s_setprio 3")
        lds_poll(CR0, 4, sleep=8)
        e.i(f"s_lshl_b32 s{sU0}, s{sF}, 17")
        e.i(f"s_lshl_b32 s{sU1}, s{sCB}, 7")
        e.i(f"s_add_u32 s{sU0}, s{sU0}, s{sU1}")
        e.i(f"s_lshl_b32 s{sU1}, s{sF}, 14")
        e.i(f"s_lshl_b32 s{sT1}, s{sRB}, {11 if opt.rot & 8 else 14}")
        for i in range(16):
            e.i(f"s_and_b32 s{sT1}, s{sT1}, 0x3fff")
            e.i(f"s_add_u32 m0, s{sU1}, s{sT1}")
            e.i(f"s_lshl_b32 s{sT0}, s{sT1}, 3")
            e.i(f"s_add_u32 s{sT0}, s{sT0}, s{sU0}")
            e.vmem(f"buffer_load_dwordx4 v{vSW}, {S(sWO,4)}, s{sT0} offen lds", "wo")
            e.i(f"s_add_u32 s{sT1}, s{sT1}, 1024")
    HR = [96, 104, 112, 232, 240]
    def dma2(ks, a):
        e.i(f"s_add_u32 m0, s{sRING}, {(ks % 4) * 2048 + a * 1024}")
        e.i("s_nop 0")
        e.vmem(f"buffer_load_dwordx4 v{vSW}, {S(sW2,4)}, s{sOFF} offen lds", ("w", ks))
        e.i(f"s_add_u32 s{sOFF}, s{sOFF}, 8192")
        if a == 1 and ks % 7 == 6 and ks < 27:
            set_w(ks // 7 + 1)
    def hl2(ks, rh):
        r = HR[ks % PH] + 4 * rh
        e.vmem(f"buffer_load_dwordx4 {V(r,4)}, v{2 if rh else 0}, {S(sWS,4)}, s{sOFF2} offen {opt.hfl}", ("h", ks))
        if rh:
            e.i(f"s_add_u32 s{sOFF2}, s{sOFF2}, 2048")
            if ks % 7 == 6 and ks < 27:
                set_h(ks // 7 + 1)
    def t32(ks, i):
        ct, t = i >> 1, i & 1
        e.lds(f"ds_read_b64_tr_b16 {V(A3+8*(ks%3)+4*ct+2*t,2)}, v{vT1 if ct else vT0} offset:{(ks%4)*2048+1024*t}", ("f", ks))
    for ks in range(4):
        dma2(ks, 0); dma2(ks, 1)
        hl2(ks, 0); hl2(ks, 1)
    for ks in range(2):
        e.wait(vm=("w", ks))
        for i in range(4):
            t32(ks, i)
    for ks in range(28):
        s = ks % 3
        if ks == 7:
            e.vmem(f"buffer_load_dword v124, v122, {S(sWS,4)}, s{sFLG} offen sc1", "fl")
        if ks == 10:
            e.c("every producer of the row group must have published before the second half is read")
            e.wait(vm="fl")
            e.i("s_setprio 3")
            e.i(f"v_cmp_ne_u32 vcc, s{sTAG}, v124")
            e.i("s_cbranch_vccnz L_slow_h")
            e.label("L_back_h")
            e.i(f"s_setprio {opt.fprio}")
        e.wait(lg=("f", ks), vm=("h", ks))
        e.wait(vm=("w", ks + 2))
        for i in range(4):
            rh, ct = i >> 1, i & 1
            a = (ACC if ks < 14 else 128) + 16 * i
            e.i(f"{MF32} {V(a,16)}, {V(A3+8*s+4*ct,4)}, {V(HR[ks%PH]+4*rh,4)}, {'0' if ks % 14 == 0 else V(a,16)}")
            if ct == 0:
                if ks + 4 < 28 and not (opt.nold2 & 1):
                    dma2(ks + 4, rh)
            elif ks + PH - 1 < 28 and not (opt.nold2 & 2):
                hl2(ks + PH - 1, rh)
            if ks + 2 < 28:
                t32(ks + 2, i)
                if opt.dense2 <= ks < opt.late2:
                    paced(opt.pace2)
        if ks == opt.wo_at:
            wo_dma()
            e.i(f"s_setprio {opt.fprio}")
        if ks == min(opt.wo_at + 4, 27):
            e.wait(vm="wo")
            lds_signal(CWO)
    stamp(7)
    exit_if(7)
    e.i("s_setprio 3")
    if opt.wo_at >= 28:
        wo_dma()
    e.c("f partials: accumulators 1,2 -> own ring, accumulator 3 -> R2; wave f^i picks up accumulator i")
    e.i(f"v_add_u32 v72, s{sRING}, v{vL16}")
    e.i(f"s_lshl_b32 s{sT1}, s{sF}, 12")
    e.i(f"s_add_u32 s{sT1}, s{sT1}, {R2}")
    e.i(f"v_add_u32 v73, s{sT1}, v{vL16}")
    for i in (1, 2):
        e.i(f"s_xor_b32 s{sT0}, s{sF}, {i}")
        e.i(f"s_lshl_b32 s{sT0}, s{sT0}, 13")
        e.i(f"s_add_u32 s{sT0}, s{sT0}, {RB2 + (i-1)*4096}")
        e.i(f"v_add_u32 v{73+i}, s{sT0}, v{vL16}")
    e.i(f"s_xor_b32 s{sT0}, s{sF}, 3")
    e.i(f"s_lshl_b32 s{sT0}, s{sT0}, 12")
    e.i(f"s_add_u32 s{sT0}, s{sT0}, {R2}")
    e.i(f"v_add_u32 v76, s{sT0}, v{vL16}")
    e.i(f"s_lshl_b32 s{sT0}, s{sF}, 11")
    e.i(f"s_add_u32 s{sT0}, s{sT0}, {R2 + 16384}")
    e.i(f"v_add_u32 v77, s{sT0}, v{vL16}")
    e.i(f"s_lshl_b32 s{sT0}, s{sF}, 2")
    e.i(f"v_add_u32 v78, s{sT0}, v6")
    e.i(f"s_mov_b32 s{sT1}, {hex(f32bits(-math.log2(math.e)))}")
    for r in list(range(16, 64, 2)) + list(range(0, 16, 2)):
        e.i(f"v_pk_add_f32 {V(ACC+r,2)}, {V(ACC+r,2)}, {V(128+r,2)}")
    e.i(f"s_setprio {opt.fprio}")
    for i in (1, 2, 3):
        for q in range(4):
            e.lds(f"ds_write_b128 v{72 if i < 3 else 73}, {V(ACC+16*i+4*q,4)} offset:{((i-1)%2)*4096+q*1024}")
    lds_signal(CF)
    e.i("s_setprio 3")
    stamp(8, "late")
    lds_poll(CF, 4, sleep=2)
    for i in (1, 2, 3):
        for q in range(4):
            e.lds(f"ds_read_b128 {V(ACC+16*i+4*q,4)}, v{73+i} offset:{q*1024}", ("r", i))
    if opt.glate:
        lds_poll(CAD, 4, sleep=4)
    for i in (1, 2, 3):
        e.wait(lg=("r", i))
        for r in range(0, 16, 2):
            e.i(f"v_pk_add_f32 {V(ACC+r,2)}, {V(ACC+r,2)}, {V(ACC+16*i+r,2)}")
    for r in range(16):
        e.i(f"v_mul_f32 v{ACC+16+r}, s{sT1}, v{ACC+r}")
    for r in range(16):
        e.i(f"v_exp_f32 v{ACC+16+r}, v{ACC+16+r}")
    for r in range(16):
        e.i(f"v_add_f32 v{ACC+16+r}, 1.0, v{ACC+16+r}")
    for r in range(16):
        e.i(f"v_rcp_f32 v{ACC+16+r}, v{ACC+16+r}")
    for r in range(16):
        e.i(f"v_mul_f32 v{ACC+r}, v{ACC+r}, v{ACC+16+r}")
    for j in range(8):
        e.i(f"v_cvt_pk_bf16_f32 v{ACC+j}, v{ACC+2*j}, v{ACC+2*j+1}")
    e.lds(f"ds_write_b128 v77, {V(ACC,4)}")
    e.lds(f"ds_write_b128 v77, {V(ACC+4,4)} offset:1024")
    lds_signal(CGD, va=78)
    stamp(10)
    dump_stamps()
    e.label("L_end")
    e.i("s_endpgm")
    e.label("L_slow_h")
    spin_init()
    e.label("L_slow_hx")
    e.i(f"buffer_load_dword v124, v122, {S(sWS,4)}, s{sFLG} offen sc1")
    e.i("s_waitcnt vmcnt(0)")
    e.i(f"v_cmp_ne_u32 vcc, s{sTAG}, v124")
    e.i("s_cbranch_vccz L_back_h")
    spin_tail("L_slow_hx", "L_back_h", 4)
    e.label("L_code_end")
    return e

def wrap(e):
    hdr = open("cdna_kernels/%s.s.ref" % NAME).read().split("\n")
    top = [l for l in hdr if l.startswith(";") and "@launch" not in l]
    out = "\n".join(top) + f"\n; @launch grid=(256,1,1) block=(512,1,1) lds={LDS_BYTES}\n"
    out += f""".amdgcn_target "amdgcn-amd-amdhsa--gfx950"
.text
.globl {NAME}_kernel
.p2align 8
.type {NAME}_kernel,@function
{NAME}_kernel:
"""
    out += e.text()
    out += f""".section .rodata,"a"
.p2align 6
.amdhsa_kernel {NAME}_kernel
  .amdhsa_next_free_vgpr 256
  .amdhsa_next_free_sgpr 102
  .amdhsa_accum_offset 256
  .amdhsa_group_segment_fixed_size 0
  .amdhsa_kernarg_size 88
  .amdhsa_user_sgpr_count 2
  .amdhsa_user_sgpr_kernarg_segment_ptr 1
  .amdhsa_system_sgpr_workgroup_id_x 1
.end_amdhsa_kernel
"""
    return out

if __name__ == "__main__":
    opt = Opt()
    outp = sys.argv[1]
    for a in sys.argv[2:]:
        k, v = a.split("=")
        assert hasattr(opt, k), k
        setattr(opt, k, type(getattr(opt, k))(eval(v)))
    e = gen(opt)
    bad = check_cfg(e.lines)
    print("hazards:", bad, "lines:", len(e.lines), "lds", LDS_BYTES)
    open(outp, "w").write(wrap(e))
```

```python
import sys, math, struct
from asmlib import *

NAME = "recurrent_scan__grouped_kv_mqa__dense_activation_relu__prompt"
MF32 = "v_mfma_f32_32x32x16_bf16"
MF16 = "v_mfma_f32_16x16x32_bf16"
SMF = "v_smfmac_f32_32x32x32_bf16"

def f32bits(x):
    return struct.unpack("<I", struct.pack("<f", x))[0]

KVS = 2080
R0 = 0
R1 = 32 * KVS
XN_RH = 64 * 528
R2 = R1 + 2 * XN_RH
R4 = R2 + 28928
LDS_BYTES = R4 + 256
(CXN, CST, CWQ, CQ, CKV, CKM, CTAG, CA, CA2, CX, CH2, CR0, CWO, CAD, CF, CE0, CE1, CRW, CRC, CXI, CP1, CL1, CG, CTL, CWI, CGD, CGD1, CGD2, CGD3, CE7, COD, CHN) = [4 * i for i in range(32)]
RE = R2 + 18432
NE = 5
RB2 = R1 + 12 * KVS
assert RB2 % 128 == 0 and RB2 + 65536 <= R4
STAT = 128
assert R2 % 128 == 0
WS_KV = 0
WS_EPOCH = 0x30000
WS_KVF = 0x38000
WS_HF = 0x40000
WS_O = 0x100000
WS_H = 0x400000
WS_STAMP = 0x1000000
sX, sWQ, sWKV, sWO, sW1, sW2, sOUT, sWS = 8, 12, 16, 20, 24, 28, 32, 40
sMASK, sF, sSPIN, sFLG = 44, 45, 46, 47
sWAVE, sRB, sCB, sT0, sT1, sT2, sOFF, sOFF2, sCNT, sSEG = 70, 71, 72, 73, 74, 75, 76, 77, 78, 79
sRG, sOB, sTAG, sTILE, sRING, sW2T, sU0, sU1, sE1, sE2, sXO = 3, 6, 7, 36, 37, 38, 39, 60, 61, 62, 63
sCH = 64
sOA = 52
sSTAMP = 80
vH, vCG, vR, vC, vTR, vXN0, vXN1, vSW, vW1, vL16, vT0, vT1, vSP = 212, 213, 214, 215, 216, 217, 218, 219, 220, 221, 222, 223, 224
vTCH = 225
vSD = 228

class Opt:
    stamps = False
    front = False
    force_fallback = False
    thr = 40.0
    exit_at = 0
    spin = 0x20000
    pace1 = 0
    pace2 = 0
    kvsleep = 1
    kvdelay = 32
    kvtouch = True
    warm2 = True
    touch = 0
    fstart = 2
    twq = True
    wqdepth = 40
    fprio = 0
    outf = ''
    echo = ()
    NR = 4
    dense = 32
    twait = 1
    nomf2 = False
    nold2 = 0
    ctouch = True
    mid = False
    wo_at = 20
    ntouch = 4
    full = True
    stouch = 0
    late2 = 28
    xr_early = True
    fprio1 = 0
    rot = 14
    la1 = True
    dyn = True
    osleep = 2
    hint = True
    hsleep = 2
    pos = (1, 4, 10)
    fgo = 1
    glate = True
    p7 = 0
    mimic = True
    noatt_tail = False
    jst = False
    e1pos = 1
    t7 = False
    npre = 0
    ph = 8
    pipe = 0
    prefirst = False
    hold = 21
    mkearly = True
    early_poll = 0
    epre = 0
    onep = False
    pslack = 0
    hfl = 'sc1'
    t2at = 99
    wot = True
    dense2 = 0
    htouch = False
    lnclk = False

def gen(opt):
    e = E()
    uid = [0]
    inatt = [True]
    def lbl(p):
        uid[0] += 1
        return f"L_{p}_{uid[0]}"
    def stamp(k, when=None):
        if when == "front" and not opt.front: return
        if when == "late" and (opt.front or (opt.jst and k in (1, 2, 3) and inatt[0])): return
        if opt.stamps:
            e.i(f"s_memrealtime {S(sSTAMP+2*k,2)}")
    def cstamp(k):
        if opt.stamps:
            e.i(f"s_memtime {S(sSTAMP+2*k,2)}")
    def dump_stamps():
        if not opt.stamps or opt.echo:
            return
        e.wait_all(vm=True, lg=True)
        e.i("v_mov_b32 v2, 0")
        e.i("v_mbcnt_lo_u32_b32 v1, -1, 0")
        e.i("v_mbcnt_hi_u32_b32 v1, -1, v1")
        for k in range(22):
            e.i(f"v_writelane_b32 v2, s{sSTAMP+k}, {k}")
        e.i(f"s_getreg_b32 s{sT0}, hwreg(HW_REG_XCC_ID)")
        e.i(f"v_writelane_b32 v2, s{sT0}, 22")
        e.i(f"s_lshl_b32 s{sT0}, s2, 3")
        e.i(f"s_add_u32 s{sT0}, s{sT0}, s{sWAVE}")
        e.i(f"s_lshl_b32 s{sT0}, s{sT0}, 8")
        e.i(f"s_add_u32 s{sT0}, s{sT0}, {WS_STAMP}")
        e.i("v_lshlrev_b32 v3, 2, v1")
        e.i(f"buffer_store_dword v2, v3, {S(sWS,4)}, s{sT0} offen")
    def exit_if(k):
        if opt.exit_at == k:
            dump_stamps()
            e.i("s_endpgm")
    def spin_init(mult=1):
        e.i(f"s_mov_b32 s{sSPIN}, {hex(opt.spin*mult)}")
    def spin_tail(top, done, sleep):
        e.i(f"s_sub_u32 s{sSPIN}, s{sSPIN}, 1")
        e.i(f"s_cbranch_scc1 {done}")
        if sleep:
            e.i(f"s_sleep {sleep}")
        e.i(f"s_branch {top}")
    def lds_signal(off, va=6):
        e.i("s_mov_b64 exec, 1")
        e.lds(f"ds_add_u32 v{va}, v7 offset:{off}")
        e.i("s_mov_b64 exec, -1")
    def lds_poll(off, n, vt=5, sleep=1, va=6):
        top, done = lbl("lp"), lbl("lpd")
        spin_init(16)
        e.label(top)
        e.i(f"ds_read_b32 v{vt}, v{va} offset:{off}")
        e.wait_all(lg=True)
        e.i(f"v_readfirstlane_b32 s{sT0}, v{vt}")
        e.i(f"s_cmp_ge_u32 s{sT0}, {n}")
        e.i(f"s_cbranch_scc1 {done}")
        spin_tail(top, done, sleep)
        e.label(done)
    def kv_dma(n, soff, sl, gstep, lstep):
        for i in range(n):
            e.i(f"s_mov_b32 m0, s{sl}")
            e.i(f"s_add_u32 s{sl}, s{sl}, {lstep*KVS}")
            for p in range(2):
                e.vmem(f"buffer_load_dwordx4 v{vL16}, {S(sWS,4)}, s{soff} offen offset:{1024*p} sc1 lds", ("kv", i))
            e.i(f"s_add_u32 s{soff}, s{soff}, {gstep*2048}")
    def setup():
        e.i(f"s_mov_b64 {S(sWQ,2)}, s[50:51]")
        e.i(f"s_mov_b64 {S(sWO,2)}, s[56:57]")
        e.i(f"s_mov_b64 {S(sW1,2)}, s[60:61]")
        e.i(f"s_mov_b64 {S(sW2,2)}, s[62:63]")
        e.i(f"s_mov_b64 {S(sOUT,2)}, s[64:65]")
        e.i(f"s_mov_b64 {S(sWS,2)}, s[68:69]")
        e.i(f"s_lshl_b32 s{sFLG}, s{sRB}, 10")
        e.i(f"s_add_u32 s{sFLG}, s{sFLG}, {hex(WS_HF)}")
        e.i(f"s_mul_i32 s{sRING}, s{sF}, 6144")
        e.i(f"s_add_u32 s{sRING}, s{sRING}, {R2}")
        e.i(f"s_lshl_b32 s{sT0}, s{sRB}, 5")
        e.i(f"s_lshl_b32 s{sT1}, s{sCB}, 2")
        e.i(f"s_add_u32 s{sT0}, s{sT0}, s{sT1}")
        e.i(f"s_and_b32 s{sT1}, s{sF}, 1")
        e.i(f"s_lshl_b32 s{sXO}, s{sT1}, 6")
        e.i(f"s_lshl_b32 s{sT1}, s{sT1}, 1")
        e.i(f"s_add_u32 s{sT0}, s{sT0}, s{sT1}")
        e.i(f"s_lshl_b32 s{sT0}, s{sT0}, 1")
        e.i(f"s_lshr_b32 s{sT1}, s{sF}, 1")
        e.i(f"s_add_u32 s{sT0}, s{sT0}, s{sT1}")
        e.i(f"s_lshl_b32 s{sT0}, s{sT0}, 10")
        e.i(f"s_add_u32 s{sOB}, s{sT0}, {WS_O}")
        e.i(f"s_lshl_b32 s{sT0}, s{sRB}, 1")
        e.i(f"s_add_u32 s{sT0}, s{sT0}, s{sT1}")
        e.i(f"s_lshl_b32 s{sT0}, s{sT0}, 15")
        e.i(f"s_add_u32 s{sXO}, s{sXO}, s{sT0}")
        e.i(f"s_lshl_b32 s{sT0}, s{sCB}, 7")
        e.i(f"s_add_u32 s{sXO}, s{sXO}, s{sT0}")
        e.i("v_lshrrev_b32 v5, 2, v1")
        e.i("v_and_b32 v5, 4, v5")
        e.i("v_xor_b32 v5, v5, v3")
        e.i("v_lshlrev_b32 v5, 4, v5")
        e.i(f"v_lshl_add_u32 v{vSW}, v2, 10, v5")
        e.i(f"v_mul_u32_u24 v{vW1}, 3584, v2")
        e.i(f"v_add_u32 v{vW1}, v{vW1}, v5")
        e.i(f"v_lshlrev_b32 v{vL16}, 4, v1")
        e.i(f"v_lshrrev_b32 v{vH}, 5, v1")
        e.i(f"v_bfe_u32 v{vCG}, v1, 4, 1")
        e.i(f"v_bfe_u32 v{vR}, v1, 2, 2")
        e.i(f"v_and_b32 v{vC}, 3, v1")
        e.i(f"v_lshrrev_b32 v4, 1, v{vC}")
        e.i(f"v_lshl_add_u32 v4, v{vCG}, 1, v4")
        e.i(f"v_lshlrev_b32 v5, 1, v{vR}")
        e.i("v_and_b32 v5, 4, v5")
        e.i("v_xor_b32 v4, v4, v5")
        e.i(f"v_lshlrev_b32 v{vTR}, 7, v{vR}")
        e.i(f"v_lshl_add_u32 v{vTR}, v4, 4, v{vTR}")
        e.i(f"v_and_b32 v5, 1, v{vC}")
        e.i(f"v_lshl_add_u32 v{vTR}, v5, 3, v{vTR}")
        e.i("v_and_b32 v5, 31, v1")
        e.i(f"v_mul_u32_u24 v{vXN0}, 528, v{vH}")
        e.i(f"v_lshl_add_u32 v{vXN0}, v5, 4, v{vXN0}")
        e.i(f"v_add_u32 v{vXN0}, {R1}, v{vXN0}")
        e.i(f"v_add_u32 v{vXN1}, {XN_RH}, v{vXN0}")
        e.i("v_lshlrev_b32 v205, 10, v5")
        e.i(f"v_lshl_add_u32 v205, v{vH}, 3, v205")
        e.i(f"v_mul_u32_u24 v{vSP}, {KVS}, v5")
        e.i(f"v_lshl_add_u32 v{vSP}, v{vH}, 4, v{vSP}")
        e.i(f"v_subrev_u32 v{vSD}, 1, v{vH}")
        e.i(f"v_and_b32 v{vSD}, 0x3f803f80, v{vSD}")
        for r in range(1, 4):
            e.i(f"v_mov_b32 v{vSD+r}, v{vSD}")
        e.i("v_and_b32 v4, 15, v1")
        e.i(f"v_lshl_add_u32 v4, v{vH}, 4, v4")
        e.i("v_lshlrev_b32 v203, 4, v4")
        e.i(f"v_lshl_add_u32 v{vT0}, v{vH}, 10, v{vTR}")

    e.i("s_cmp_ge_u32 s2, 256")
    e.i("s_cbranch_scc1 L_end")
    e.i("s_load_dwordx16 s[48:63], s[0:1], 0")
    e.i("s_load_dwordx2 s[64:65], s[0:1], 64")
    e.i("s_load_dwordx2 s[68:69], s[0:1], 80")
    stamp(0)
    e.i("v_lshrrev_b32 v2, 6, v0")
    e.i("v_and_b32 v1, 63, v0")
    e.i(f"v_readfirstlane_b32 s{sWAVE}, v2")
    e.c("workgroup -> (row block rb, column block cb); ids that share id&7 share half of the columns and 1/4 of the rows")
    e.i(f"s_and_b32 s{sT0}, s2, 7")
    e.i(f"s_lshr_b32 s{sT1}, s2, 3")
    e.i(f"s_and_b32 s{sCB}, s{sT1}, 3")
    e.i(f"s_lshl_b32 s{sCB}, s{sCB}, 1")
    e.i(f"s_and_b32 s{sRB}, s{sT0}, 1")
    e.i(f"s_add_u32 s{sCB}, s{sCB}, s{sRB}")
    e.i(f"s_lshr_b32 s{sT1}, s{sT1}, 2")
    e.i(f"s_lshr_b32 s{sRB}, s{sT0}, 1")
    e.i(f"s_lshl_b32 s{sRB}, s{sRB}, 3")
    e.i(f"s_add_u32 s{sRB}, s{sRB}, s{sT1}")
    e.i(f"s_mov_b32 s{sMASK}, 0xffff0000")
    e.i(f"s_and_b32 s{sF}, s{sWAVE}, 3")
    e.c("row group of this wave: (w + 2*rq + 3) & 7 -> waves 5,6 hold the 16 rows of this workgroup's K/V tile")
    e.i(f"s_and_b32 s{sRG}, s{sCB}, 6")
    e.i(f"s_add_u32 s{sRG}, s{sRG}, s{sWAVE}")
    e.i(f"s_add_u32 s{sRG}, s{sRG}, 3")
    e.i(f"s_and_b32 s{sRG}, s{sRG}, 7")
    e.i("v_lshrrev_b32 v2, 3, v1")
    e.i("v_and_b32 v3, 7, v1")
    e.i("v_lshlrev_b32 v4, 10, v2")
    e.i("v_lshl_add_u32 v4, v3, 4, v4")
    e.i(f"s_lshl_b32 s{sOFF}, s{sRB}, 3")
    e.i(f"s_add_u32 s{sOFF}, s{sOFF}, s{sRG}")
    e.i(f"s_lshl_b32 s{sOFF}, s{sOFF}, 13")
    for srd, size in ((sX, 2048*512*2), (sWQ, 512*512*2), (sWKV, 512*16*2), (sWO, 512*512*2), (sW1, 512*1792*2),
                      (sW2, 1792*512*2), (sOUT, 2048*512*2), (sWS, 0x10000000)):
        e.i(f"s_mov_b32 s{srd+2}, {hex(size)}")
        e.i(f"s_mov_b32 s{srd+3}, 0x20000")
    e.i(f"v_mov_b32 v6, {R4}")
    e.i("v_mov_b32 v7, 1")
    e.i("v_mov_b64 v[108:109], 0")
    e.i("v_and_b32 v105, 15, v1")
    e.i("v_lshl_add_u32 v105, v105, 3, v6")
    e.i("ds_write_b64 v105, v[108:109]")
    e.i(f"s_mov_b32 s{sSEG}, 0")
    e.i(f"s_cmp_eq_u32 s{sWAVE}, 7")
    e.i("s_cbranch_scc1 L_pre_7")
    e.i("s_waitcnt lgkmcnt(0)")
    e.i(f"s_mov_b64 {S(sX,2)}, s[48:49]")
    e.i(f"s_cmp_eq_u32 s{sWAVE}, 4")
    e.i("s_cbranch_scc1 L_pre_4")
    e.i(f"s_cmp_ge_u32 s{sWAVE}, 5")
    e.i("s_cbranch_scc1 L_pre_first")
    e.i("s_barrier")
    e.label("L_pre_first")
    for i in range(8):
        e.i(f"buffer_load_dwordx4 {V(8+4*i,4)}, v4, {S(sX,4)}, s{sOFF} offen offset:{128*i}")
    e.i("s_cbranch_scc0 L_pre_second")
    e.i("s_barrier")
    e.label("L_pre_second")
    e.i(f"s_cmp_eq_u32 s{sWAVE}, 0")
    e.i("s_cbranch_scc1 L_pre_dbl")
    e.i(f"s_cmp_lg_u32 s{sWAVE}, 3")
    e.i("s_cbranch_scc1 L_pre_n3")
    e.label("L_pre_dbl")
    e.c("waves 0,3 also normalise the rows waves 4,7 would have had (row group ^ 4)")
    e.i(f"s_xor_b32 s{sOFF}, s{sOFF}, 0x8000")
    for i in range(8):
        e.i(f"buffer_load_dwordx4 {V(128+4*i,4)}, v4, {S(sX,4)}, s{sOFF} offen offset:{128*i}")
    e.i(f"s_mov_b32 s{sSEG}, 1")
    e.label("L_pre_n3")
    lds_signal(CXI)
    setup()
    e.i(f"s_cmp_ge_u32 s{sWAVE}, 4")
    e.i("s_cbranch_scc1 L_pre_56")
    S0, S1, P0, P1, OA, OB, NMA, NMB, QA, QB, KB, VB = 32, 48, 64, 72, 80, 96, 112, 128, 144, 148, 152, 168
    vK, vV0, vV1, vVG, vVC = 200, 201, 202, 203, 204
    e.i("s_setprio 1")
    e.i(f"s_and_b32 s{sT1}, s{sWAVE}, 1")
    e.i(f"s_lshl_b32 s{sT2}, s{sT1}, 6")
    e.i(f"v_xor_b32 v{vT0}, s{sT2}, v{vT0}")
    e.i(f"s_lshr_b32 s{sT1}, s{sWAVE}, 1")
    e.i(f"s_mul_i32 s{sT1}, s{sT1}, {XN_RH}")
    e.i(f"v_add_u32 v{vXN0}, s{sT1}, v{vXN0}")
    e.i(f"v_add_u32 v{vK}, {RE}, v{vL16}")
    e.i("v_and_b32 v5, 11, v1")
    e.i("v_cmp_ne_u32 vcc, 0, v5")
    e.i(f"v_mov_b32 v4, {RE+2048}")
    e.i(f"v_mov_b32 v5, {RE+2064}")
    e.i(f"v_add_u32 v{vV0}, {RE+1024}, v{vVG}")
    e.i("v_cndmask_b32 v4, v4, v5, vcc")
    e.i(f"v_cmp_eq_u32 vcc, 0, v{vCG}")
    e.i(f"v_add_u32 v{vV1}, {RE+1536}, v{vVG}")
    e.i("v_mov_b32 v207, 0xdddddddd")
    e.nop(1)
    e.i(f"v_cndmask_b32 v{vV0}, v4, v{vV0}, vcc")
    e.i(f"v_cndmask_b32 v{vV1}, v4, v{vV1}, vcc")
    if opt.stouch:
        e.c("scalar touches of w1 -> L2: wave w takes line column w, rows (rb&7) + 8i")
        e.i(f"s_and_b32 s{sT0}, s{sRB}, 7")
        e.i(f"s_mul_i32 s{sT0}, s{sT0}, 3584")
        e.i(f"s_mul_i32 s{sT1}, s{sCB}, 448")
        e.i(f"s_add_u32 s{sT0}, s{sT0}, s{sT1}")
        e.i(f"s_lshl_b32 s{sT1}, s{sWAVE}, 7")
        e.i(f"s_add_u32 s{sT0}, s{sT0}, s{sT1}")
        e.i(f"s_add_u32 s4, s60, s{sT0}")
        e.i("s_addc_u32 s5, s61, 0")
        for i in range(opt.stouch):
            e.i(f"s_load_dword s{sU0}, s[4:5], {hex(i*8*3584)}")
    e.i(f"s_cmp_eq_u32 s{sSEG}, 1")
    e.i("s_cbranch_scc1 L_pre_w8")
    e.i("s_waitcnt vmcnt(0)")
    e.label("L_pre_w8")
    e.i("s_waitcnt vmcnt(8)")
    e.i("s_branch L_ln")

    def ffn_setup():
        e.i(f"s_and_b32 s{sTILE}, s{sCB}, 1")
        e.i(f"s_lshl_b32 s{sT1}, s{sF}, 1")
        e.i(f"s_add_u32 s{sTILE}, s{sTILE}, s{sT1}")
        e.i(f"v_add_u32 v{vT0}, s{sRING}, v{vT0}")
        e.i(f"v_xor_b32 v{vT1}, 64, v{vT0}")
    e.label("L_pre_4")
    if opt.ctouch:
        e.c("pull this kernel's code into L2: 16 lines per workgroup, the workgroups of an XCD cover all of it")
        e.i(f"s_getpc_b64 {S(sWKV,2)}")
        e.label("L_pc")
        e.i(f"s_mov_b32 s{sWKV+2}, L_code_end-L_pc")
        e.i(f"s_lshr_b32 s{sT0}, s2, 3")
        e.i(f"s_lshl_b32 s{sT0}, s{sT0}, 11")
        e.i("v_lshlrev_b32 v104, 7, v1")
        e.i("s_mov_b64 exec, 0xffff")
        e.i(f"buffer_load_dword v106, v104, {S(sWKV,4)}, s{sT0} offen")
        e.i("s_mov_b64 exec, -1")
    e.c("wave 4: loader.  wq slice -> R0 by DMA behind the x loads; touches 1/8 of the w1 slice -> L2")
    setup()
    ffn_setup()
    e.i(f"s_lshl_b32 s{sOFF}, s{sCB}, 7")
    e.i(f"s_mov_b32 s{sT1}, 0")
    if opt.rot & 1:
        e.i(f"s_and_b32 s{sT1}, s{sRB}, 7")
        e.i(f"s_lshl_b32 s{sT0}, s{sT1}, 16")
        e.i(f"s_add_u32 s{sOFF}, s{sOFF}, s{sT0}")
        e.i(f"s_lshl_b32 s{sT1}, s{sT1}, 13")
    e.i(f"s_mov_b32 s{sCNT}, 7")
    def touch_setup(so):
        e.i("v_lshrrev_b32 v105, 2, v1")
        e.i("v_mul_u32_u24 v105, 3584, v105")
        e.i(f"v_lshl_add_u32 v105, v{vC}, 7, v105")
        e.i(f"s_and_b32 s{so}, s{sRB}, 7")
        e.i(f"s_mul_i32 s{so}, s{so}, {16*3584}")
        e.i(f"s_mul_i32 s{sT0}, s{sCB}, 448")
        e.i(f"s_add_u32 s{so}, s{so}, s{sT0}")
    def touches(so=sT2, a=0, b=4):
        for i in range(a, b):
            e.i(f"s_add_u32 s{sU0}, s{so}, {i*128*3584}")
            e.i(f"buffer_load_dword v106, v105, {S(sW1,4)}, s{sU0} offen")
    touch_setup(sT2)
    if opt.twq:
        e.i("v_lshrrev_b32 v104, 2, v1")
        e.i("v_lshlrev_b32 v104, 10, v104")
        e.i(f"v_lshl_add_u32 v104, v{vC}, 8, v104")
        e.i(f"s_lshr_b32 s{sT0}, s2, 3")
        e.i(f"s_lshl_b32 s{sT0}, s{sT0}, 14")
        e.i(f"s_and_b32 s{sU0}, s{sCB}, 1")
        e.i(f"s_lshl_b32 s{sU0}, s{sU0}, 7")
        e.i(f"s_add_u32 s{sT0}, s{sT0}, s{sU0}")
    e.i("s_barrier")
    if opt.twq:
        e.i(f"buffer_load_dword v106, v104, {S(sWQ,4)}, s{sT0} offen")
    if opt.touch == 4:
        touches()
    lds_poll(CXI, 6, sleep=0)
    if opt.touch == 5:
        touches()
    e.label("L_wq_loop")
    for i in range(8):
        e.i(f"s_mov_b32 m0, s{sT1}")
        e.i(f"s_add_u32 s{sT1}, s{sT1}, 1024")
        e.i(f"buffer_load_dwordx4 v{vSW}, {S(sWQ,4)}, s{sOFF} offen lds")
        e.i(f"s_add_u32 s{sOFF}, s{sOFF}, 8192")
    e.i(f"s_and_b32 s{sOFF}, s{sOFF}, 0x7ffff")
    e.i(f"s_and_b32 s{sT1}, s{sT1}, 0xffff")
    e.i(f"s_waitcnt vmcnt({opt.wqdepth})")
    e.i(f"s_sub_u32 s{sCNT}, s{sCNT}, 1")
    e.i("s_cbranch_scc0 L_wq_loop")
    lds_signal(CWI)
    stamp(1, "front")
    if opt.touch == 1:
        touches()
    e.i(f"s_waitcnt vmcnt({4 if opt.touch == 1 else 0})")
    lds_signal(CWQ)
    stamp(8, "front")
    if opt.touch == 2 or (opt.touch == 3 and opt.ntouch < 4):
        lds_poll(CG, 4, sleep=2)
        touches(sT2, opt.ntouch if opt.touch == 3 else opt.stouch // 16, 4)
    e.i("s_branch L_ffn")

    e.label("L_pre_56")
    ffn_setup()
    e.i("s_setprio 3")
    e.i("s_waitcnt vmcnt(0)")

    e.label("L_ln")
    stamp(1, "front")
    if opt.lnclk:
        stamp(6); cstamp(9)
    X = 40
    A = 112
    e.i(f"s_lshr_b32 s{sT0}, s{sRG}, 2")
    e.i(f"s_mul_i32 s{sT0}, s{sT0}, {XN_RH}")
    e.i(f"s_and_b32 s{sT1}, s{sRG}, 3")
    e.i(f"s_lshl_b32 s{sT1}, s{sT1}, 7")
    e.i(f"s_add_u32 s{sT0}, s{sT0}, s{sT1}")
    e.i(f"s_add_u32 s{sT0}, s{sT0}, {R1}")
    e.i("v_mul_u32_u24 v122, 528, v3")
    e.i("v_lshl_add_u32 v122, v2, 4, v122")
    e.i(f"v_add_u32 v122, s{sT0}, v122")
    e.i(f"s_cmp_lt_u32 s{sWAVE}, 5")
    e.i("s_cbranch_scc1 L_ln_a")
    e.c("waves 5,6: raw rows -> LDS for the K/V wave")
    for i in range(8):
        e.i(f"ds_write_b128 v122, {V(8+4*i,4)} offset:{4224*i}")
    lds_signal(CRW)
    e.label("L_ln_a")
    e.i("v_mov_b32 v110, 0x3f803f80")
    e.i("v_mov_b64 v[112:113], 0")
    e.i("v_mov_b32 v108, 0x3f80")
    e.i("v_mov_b32 v109, 0x3f800000")
    for t in range(32):
        e.i(f"v_dot2c_f32_bf16 v{A+(t&1)}, v{8+t}, v110")
    def reduce_lanes():
        for m in ("quad_perm:[1,0,3,2]", "quad_perm:[2,3,0,1]", "row_half_mirror"):
            e.nop(2)
            e.i(f"v_add_f32_dpp v{A}, v{A}, v{A} {m} row_mask:0xf bank_mask:0xf")
    e.nop(3)
    e.i(f"v_add_f32 v{A}, v{A}, v{A+1}")
    reduce_lanes()
    def rnd(d, a):
        e.i(f"v_cvt_pk_bf16_f32 v{d}, v{a}, v{a}")
        e.i(f"v_and_b32 v{d}, s{sMASK}, v{d}")
    if opt.mimic:
        e.c("row statistics are rounded to bf16 where the reference rounds them")
        e.i(f"v_mul_f32 v121, {hex(f32bits(-1.0/512))}, v{A}")
        rnd(120, 121)
        e.i("v_sub_f32 v121, v121, v120")
    else:
        e.i(f"v_mul_f32 v120, {hex(f32bits(-1.0/512))}, v{A}")
    for t in range(32):
        e.i(f"v_dot2_f32_bf16 v{X+2*t}, v{8+t}, v108, v120")
        e.i(f"v_dot2_f32_bf16 v{X+2*t+1}, v{8+t}, v109, v120")
    for t in range(32):
        a = t % 4
        if t < 4:
            e.i(f"v_pk_mul_f32 {V(A+2*a,2)}, {V(X+2*t,2)}, {V(X+2*t,2)}")
        else:
            e.i(f"v_pk_fma_f32 {V(A+2*a,2)}, {V(X+2*t,2)}, {V(X+2*t,2)}, {V(A+2*a,2)}")
    e.i(f"v_pk_add_f32 {V(A,2)}, {V(A,2)}, {V(A+2,2)}")
    e.i(f"v_pk_add_f32 {V(A+4,2)}, {V(A+4,2)}, {V(A+6,2)}")
    e.i(f"v_pk_add_f32 {V(A,2)}, {V(A,2)}, {V(A+4,2)}")
    e.i(f"v_add_f32 v{A}, v{A}, v{A+1}")
    reduce_lanes()
    if opt.mimic:
        e.i(f"v_mul_f32 v119, {hex(f32bits(1.0/512))}, v{A}")
        e.i("v_fma_f32 v119, -v121, v121, v119")
        e.i("v_max_f32 v119, 0, v119")
        rnd(119, 119)
        e.i(f"v_add_f32 v119, {hex(f32bits(1e-5))}, v119")
        rnd(119, 119)
        e.i("v_sqrt_f32 v119, v119")
        e.nop(1)
        rnd(119, 119)
        e.i("v_rcp_f32 v118, v119")
    else:
        e.i(f"v_mov_b32 v119, {hex(f32bits(1e-5))}")
        e.i(f"v_fmac_f32 v119, {hex(f32bits(1.0/512))}, v{A}")
        e.i("v_rsq_f32 v118, v119")
    e.i(f"s_cmp_lt_u32 s{sWAVE}, 5")
    e.i("s_cbranch_scc1 L_ln_b")
    e.c("waves 5,6: hand the row statistics to the K/V wave")
    e.i(f"s_lshl_b32 s{sT0}, s{sWAVE}, 5")
    e.i(f"s_add_u32 s{sT0}, s{sT0}, {R4 + STAT - 160}")
    e.i(f"v_lshl_add_u32 v111, v2, 2, s{sT0}")
    e.i("ds_write2_b32 v111, v120, v118 offset1:16")
    lds_signal(CST)
    lds_poll(CRC, 1, sleep=0)
    e.label("L_ln_b")
    e.lg = []
    for i in range(8):
        for t in range(4*i, 4*i+4):
            e.i(f"v_pk_mul_f32 {V(X+2*t,2)}, {V(X+2*t,2)}, v[118:119] op_sel_hi:[1,0]")
        for t in range(4*i, 4*i+4):
            e.i(f"v_cvt_pk_bf16_f32 v{8+t}, v{X+2*t}, v{X+2*t+1}")
        e.lds(f"ds_write_b128 v122, {V(8+4*i,4)} offset:{4224*i}")
    lds_signal(CXN)
    e.i(f"s_cmp_eq_u32 s{sSEG}, 0")
    e.i("s_cbranch_scc1 L_ln_done")
    e.i(f"s_mov_b32 s{sSEG}, 0")
    e.i(f"s_xor_b32 s{sRG}, s{sRG}, 4")
    e.i("s_waitcnt vmcnt(0)")
    for t in range(0, 32, 2):
        e.i(f"v_mov_b64 {V(8+t,2)}, {V(128+t,2)}")
    e.i("s_branch L_ln")
    e.label("L_ln_done")
    stamp(8, "front")
    if opt.lnclk:
        stamp(7); cstamp(10)
    e.i(f"s_cmp_ge_u32 s{sWAVE}, 4")
    e.i("s_cbranch_scc1 L_ffn")

    e.vm = []
    lds_poll(CWQ, 1, sleep=0)
    for q in range(4):
        e.i(f"buffer_load_dwordx2 {V(232+2*q,2)}, v205, {S(sX,4)}, s{sXO} offen offset:{16*q}")
    lds_poll(CXN, 9, sleep=0)
    stamp(2, "front")
    fill = [f"v_mov_b64 {V(OA+r,2)}, 0" for r in range(0, 32, 2)]
    e.c("Q projection: wave w -> head pair hp=w&1, row half rh=w>>1")
    def qreads(ks):
        s = ks % 4
        e.lds(f"ds_read_b64_tr_b16 {V(32+8*s,2)}, v{vT0} offset:{ks*2048}", ("q", ks))
        e.lds(f"ds_read_b64_tr_b16 {V(34+8*s,2)}, v{vT0} offset:{ks*2048+512}", ("q", ks))
        e.lds(f"ds_read_b128 {V(36+8*s,4)}, v{vXN0} offset:{ks*1056}", ("q", ks))
    for ks in range(4):
        qreads(ks)
    for ks in range(32):
        s = ks % 4
        e.wait(lg=("q", ks))
        e.i(f"{MF32} v[8:23], {V(32+8*s,4)}, {V(36+8*s,4)}, {'0' if ks == 0 else 'v[8:23]'}")
        if ks + 4 < 32:
            qreads(ks + 4)
        if ks == 27:
            lds_signal(CQ)
        if fill:
            e.i(fill.pop(0))
    e.i(f"s_mov_b32 s{sT1}, {hex(f32bits(0.25*math.log2(math.e)))}")
    e.nop(11)
    for r in range(16):
        e.i(f"v_mul_f32 v{8+r}, s{sT1}, v{8+r}")
    for hd in range(2):
        b = 8 + 8*hd
        e.i(f"v_mul_f32 v{24+hd}, v{b}, v{b}")
        for r in range(1, 8):
            e.i(f"v_fmac_f32 v{24+hd}, v{b+r}, v{b+r}")
    e.i("v_mov_b32 v26, v24")
    e.i("v_mov_b32 v27, v25")
    for hd in range(2):
        for j in range(4):
            e.i(f"v_cvt_pk_bf16_f32 v{QA+4*hd+j}, v{8+8*hd+2*j}, v{8+8*hd+2*j+1}")
    e.i("v_permlane32_swap_b32 v24, v26")
    e.i("v_permlane32_swap_b32 v25, v27")
    e.i("v_add_f32 v24, v24, v26")
    e.i("v_add_f32 v25, v25, v27")
    stamp(3, "front")
    lds_poll(CKV, 2, sleep=0)
    stamp(4)
    e.lds(f"ds_read_b32 v206, v6 offset:{CTAG}")
    e.lds(f"ds_read_b32 v30, v6 offset:{CKM}")
    e.wait_all(lg=True)
    e.c("stand-in for the row max: |q| * max|k| >= max_k q.k ; used only while it cannot be far above the true max")
    e.i("v_mul_f32 v24, v24, v30")
    e.i("v_mul_f32 v25, v25, v30")
    e.i("v_sqrt_f32 v24, v24")
    e.i("v_sqrt_f32 v25, v25")
    e.i(f"s_mov_b32 s{sT1}, {hex(f32bits(opt.thr))}")
    e.i("v_max_f32 v26, v24, v25")
    e.i(f"v_cmp_nge_f32 vcc, s{sT1}, v26")
    e.i("v_cmp_u_f32 s[4:5], v24, v25")
    e.i("s_or_b64 s[4:5], s[4:5], vcc")
    if opt.force_fallback:
        e.i("s_branch L_fallback")
    else:
        e.i("s_cbranch_scc1 L_fallback")
    e.label("L_att_start")
    for r in range(16):
        e.i(f"v_sub_f32 v{NMA+r}, 0, v24")
        e.i(f"v_sub_f32 v{NMB+r}, 0, v25")
    lds_poll(CE7, 1, sleep=0)
    for j in range(3):
        e.lds(f"ds_read_b128 {V(KB+4*j,4)}, v{vK} offset:{j*KVS}", ("a", j))
        e.lds(f"ds_read_b128 {V(VB+8*j,4)}, v{vV0} offset:{j*KVS}")
        e.lds(f"ds_read_b128 {V(VB+8*j+4,4)}, v{vV1} offset:{j*KVS}")
    e.wait(lg=("a", 0))
    e.i(f"{MF32} {V(S0,16)}, {V(KB,4)}, {V(QA,4)}, {V(NMA,16)}")
    e.nop(11)
    e.wait_all(lg=True)
    stamp(5)
    def em(t):
        if t.endswith(":"): e.raw(t)
        else: e.i(t)
    def step(cur, oth, K, Q, NM, O, V0, Op, V1p, after, noqk=False, nopv=False):
        for i in range(16):
            e.i(f"v_exp_f32 v{cur+i}, v{cur+i}")
            if i == opt.pos[0]:
                if not nopv:
                    e.i(f"{SMF} {V(Op,16)}, {V(V1p,4)}, {V(oth+8,8)}, v207")
                for t in after[0]: em(t)
            if i == opt.pos[1]:
                if not noqk:
                    e.i(f"{MF32} {V(oth,16)}, {V(K,4)}, {V(Q,4)}, {V(NM,16)}")
                for t in after[1]: em(t)
            if i == opt.pos[2]:
                e.i(f"{SMF} {V(O,16)}, {V(V0,4)}, {V(cur,8)}, v207")
                for t in after[2]: em(t)
    def shift(d):
        return [f"v_add_u32 v{v}, {hex(d & 0xffffffff)}, v{v}" for v in (vK, vV0, vV1)]
    if opt.full:
        slow = []
        SIG = lambda off: ["s_mov_b64 exec, 1", f"ds_add_u32 v6, v7 offset:{off}", "s_mov_b64 exec, -1"]
        def CHK(name, off, n):
            slow.append((name, off, n))
            return [f"v_readfirstlane_b32 s{sT0}, v5", f"s_cmp_ge_u32 s{sT0}, {n}", f"s_cbranch_scc0 L_slow_{name}", f"L_back_{name}:"]
        PRE = lambda off: [f"ds_read_b32 v5, v6 offset:{off}"]
        J0 = NE - 3
        for j in range(64):
            b3 = (j + 3) % 4
            slot = j + 3 if j < J0 else (j - J0 if j < J0 + 32 else (j - J0 - 32 if j < J0 + 47 else j - J0 - 47))
            off = slot * KVS
            rd = j + 3 < 64
            A = [[], [f"ds_read_b128 {V(KB+4*b3,4)}, v{vK} offset:{off}"] if rd else [], []]
            Bq = [[f"ds_read_b128 {V(VB+8*b3,4)}, v{vV0} offset:{off}"] if rd else [],
                  [f"ds_read_b128 {V(VB+8*b3+4,4)}, v{vV1} offset:{off}"] if rd else [],
                  [f"s_waitcnt lgkmcnt({2 if rd else 0})"] if j % 2 == 1 and j < 62 else []]
            assert J0 % 2 == 0
            if j == J0 - 1:
                A[2] += PRE(CA)
                Bq[2] += CHK("a", CA, 1) + SIG(CG) + shift(-RE)
            if j in (J0 + 7, J0 + 15, J0 + 23):
                A[2] += PRE(CA)
                Bq[2] += CHK(f"a{j}", CA, (j - J0 + 1) // 8 + 1)
            if j == J0 + 15:
                Bq[2] += SIG(CP1)
            if j == 31 and opt.stamps and not opt.lnclk:
                Bq[2] += [f"s_memrealtime {S(sSTAMP+12,2)}", f"s_memtime {S(sSTAMP+18,2)}"]
            if j == J0 + 31:
                A[2] += PRE(CL1)
                Bq[2] += CHK("l1", CL1, 4)
            if j == J0 + 45:
                A[2] += PRE(CH2)
                Bq[2] += CHK("h2", CH2, 4)
            if j == J0 + 46:
                Bq[2] += SIG(CR0) + shift(R1)
            if opt.jst and j in (1, 9, 17, 25):
                Bq[2] += [f"s_memrealtime {S(sSTAMP+2*{1:1,9:2,17:3,25:4}[j],2)}"]
            if j == 62:
                A[1] += ["s_waitcnt vmcnt(0)"]
            step(S0, S1, KB+4*(j % 4), QB, NMB, OA, VB+8*(j % 4), OB, VB+8*((j-1) % 4)+4, A, nopv=(j == 0))
            step(S1, S0, KB+4*((j+1) % 4), QA, NMA, OB, VB+8*(j % 4), OA, VB+8*(j % 4)+4, Bq, noqk=(j == 63))
    e.label("L_att_done")
    if not opt.lnclk:
        stamp(7)
        cstamp(10)
    e.i(f"v_rcp_f32 v24, v{OA+8}")
    e.i("s_nop 0")
    e.i(f"{SMF} {V(OB,16)}, {V(VB+28,4)}, {V(S1+8,8)}, v207")
    e.lg = []
    lds_signal(CAD)
    for hd, O in enumerate((OA, OB)):
        if hd == 1:
            e.i(f"v_rcp_f32 v24, v{OB+8}")
            e.nop(1)
        for r in range(8):
            e.i(f"v_mul_f32 v{O+r}, v{O+r}, v24")
        for j in range(4):
            e.i(f"v_cvt_pk_bf16_f32 v{8+4*hd+j}, v{O+2*j}, v{O+2*j+1}")
        for j in range(4):
            e.i(f"v_min_u32 v{8+4*hd+j}, -2, v{8+4*hd+j}")
        e.vmem(f"buffer_store_dwordx4 {V(8+4*hd,4)}, v{vL16}, {S(sWS,4)}, s{sOB} offen offset:{2048*hd} sc1")
    if opt.hint:
        e.c("hint for the readers (the data itself is checked against the marker)")
        e.i(f"s_lshl_b32 s{sT0}, s{sCB}, 7")
        e.i(f"s_lshl_b32 s{sT1}, s{sF}, 2")
        e.i(f"s_add_u32 s{sT0}, s{sT0}, s{sT1}")
        e.i(f"s_add_u32 s{sFLG}, s{sFLG}, 0x10000")
        e.i(f"s_add_u32 s{sT0}, s{sT0}, s{sFLG}")
        e.i("s_mov_b64 exec, 1")
        e.i(f"buffer_store_dword v206, v{vL16}, {S(sWS,4)}, s{sT0} offen sc1")
        e.i("s_mov_b64 exec, -1")
        e.i(f"v_readfirstlane_b32 s{sTAG}, v206")
        e.i(f"v_lshlrev_b32 v16, 7, v{vC}")
        e.i("v_and_b32 v17, 4, v1")
        e.i("v_add_u32 v16, v16, v17")
        e.i(f"s_and_b32 s{sT0}, s{sF}, 1")
        e.i(f"s_lshl_b32 s{sT0}, s{sT0}, 9")
        e.i(f"s_add_u32 s{sFLG}, s{sFLG}, s{sT0}")
        e.i(f"s_and_b32 s{sT0}, s{sF}, 2")
        e.i(f"s_lshl_b32 s{sT0}, s{sT0}, 2")
        e.i(f"s_add_u32 s{sFLG}, s{sFLG}, s{sT0}")
    if opt.early_poll:
        e.c("the own workgroup's line is not read: its stores are known drained through LDS (read a neighbour twice instead)")
        e.i(f"s_and_b32 s{sT0}, s{sF}, 1")
        e.i(f"s_lshl_b32 s{sT0}, s{sT0}, 2")
        e.i(f"s_sub_u32 s{sT0}, s{sCB}, s{sT0}")
        e.i(f"v_cmp_eq_u32 vcc, s{sT0}, v{vC}")
        e.i("v_xor_b32 v17, 0x80, v16")
        e.i("s_mov_b64 s[4:5], -1")
        e.i("v_cndmask_b32 v16, v16, v17, vcc")
        if opt.early_poll == 1:
            e.i(f"buffer_load_dword v17, v16, {S(sWS,4)}, s{sFLG} offen sc1")
    stamp(8, "late")
    if opt.noatt_tail:
        dump_stamps()
        e.i("s_endpgm")
    e.c("output projection: wave w -> row half w>>1, K half w&1, both column tiles (own tile first)")
    G, XR, OF = 104, 120, 40
    e.i(f"v_mov_b32 v0, v{vL16}")
    e.i("v_mov_b32 v3, v205")
    e.i(f"s_and_b32 s{sT1}, s{sF}, 1")
    e.i(f"s_lshr_b32 s{sT2}, s{sF}, 1")
    e.i(f"s_lshl_b32 s{sT0}, s{sRB}, 6")
    e.i(f"s_add_u32 s{sT0}, s{sT0}, s{sT2}")
    e.i(f"s_lshl_b32 s{sT2}, s{sT1}, 5")
    e.i(f"s_add_u32 s{sT0}, s{sT0}, s{sT2}")
    e.i(f"s_lshl_b32 s{sT0}, s{sT0}, 10")
    e.i(f"s_add_u32 s{sOFF}, s{sT0}, {WS_O}")
    for g in range(4):
        e.i(f"s_add_u32 s{sCH+g}, s{sCB}, {1+g}")
        e.i(f"s_and_b32 s{sCH+g}, s{sCH+g}, 3")
        e.i(f"s_lshl_b32 s{sCH+g}, s{sCH+g}, 13")
        e.i(f"s_add_u32 s{sOA+2*g}, s{sOFF}, s{sCH+g}")
        e.i(f"s_add_u32 s{sOA+2*g+1}, s{sOA+2*g}, 4096")
    lds_poll(CWO, 4, sleep=1)
    def oloads(g):
        for i in range(4):
            e.i(f"buffer_load_dwordx4 {V(OF+16*g+4*i,4)}, v0, {S(sWS,4)}, s{sOA+2*g+(i>>1)} offen offset:{2048*(i&1)} sc1")
    if not opt.hint:
        for g in range(3):
            oloads(g)
    e.i(f"s_mul_i32 s{sT0}, s{sT1}, {32768+64}")
    e.i(f"v_lshl_add_u32 v2, v{vH}, 9, v{vTR}")
    e.i(f"v_xor_b32 v2, s{sT0}, v2")
    for g in range(4):
        e.i(f"v_add_u32 v{G+2*g}, s{sCH+g}, v2")
        e.i(f"v_xor_b32 v{G+2*g+1}, 64, v{G+2*g}")
    for q in range(4):
        e.i(f"v_mov_b64 {V(XR+2*q,2)}, {V(232+2*q,2)}")
    if opt.early_poll == 3:
        e.i(f"buffer_load_dword v17, v16, {S(sWS,4)}, s{sFLG} offen sc1")
    for i in range(16):
        for c2 in range(2):
            for t in range(2):
                e.lds(f"ds_read_b64_tr_b16 {V(128+8*i+4*c2+2*t,2)}, v{G+2*(i//4)+c2} offset:{(i%4)*2048+1024*t}")
    e.i(f"s_lshl_b32 s{sT2}, s{sF}, 12")
    e.i(f"s_add_u32 s{sT1}, s{sT2}, {R1}")
    e.i(f"v_add_u32 v1, s{sT1}, v0")
    e.i(f"s_xor_b32 s{sT2}, s{sT2}, 4096")
    e.i(f"s_add_u32 s{sT2}, s{sT2}, {R1}")
    e.i(f"v_add_u32 v2, s{sT2}, v0")
    e.i(f"s_and_b32 s{sT2}, s{sF}, 2")
    e.i(f"s_lshl_b32 s{sT2}, s{sT2}, 1")
    e.i(f"v_add_u32 v4, s{sT2}, v6")
    e.i(f"s_mov_b32 s{sSEG}, 0")
    e.i(f"s_mov_b32 s{sCNT}, {hex(opt.spin)}")
    if opt.early_poll:
        e.i("s_waitcnt vmcnt(0)")
        lds_signal(COD)
        lds_poll(COD, 4, sleep=0)
    else:
        lds_poll(CAD, 4, sleep=0)
    if opt.hint and opt.onep:
        e.i(f"s_cmp_lg_u32 s{sWAVE}, 0")
        e.i("s_cbranch_scc1 L_hint_other")
        e.i("v_mbcnt_lo_u32_b32 v17, -1, 0")
        e.i("v_bfe_u32 v18, v17, 2, 3")
        e.i(f"v_cmp_eq_u32 vcc, s{sCB}, v18")
        e.i("v_xor_b32 v19, 1, v18")
        e.i("v_and_b32 v17, 3, v17")
        e.i("v_cndmask_b32 v18, v18, v19, vcc")
        e.i("v_lshlrev_b32 v18, 7, v18")
        e.i("v_lshl_add_u32 v16, v17, 2, v18")
        top, done = lbl("hp"), lbl("hpd")
        spin_init()
        e.label(top)
        e.i(f"buffer_load_dword v17, v16, {S(sWS,4)}, s{sFLG} offen sc1")
        e.i("s_waitcnt vmcnt(0)")
        e.i(f"v_cmp_ne_u32 vcc, s{sTAG}, v17")
        e.i(f"s_cbranch_vccz {done}")
        spin_tail(top, done, opt.hsleep)
        e.label(done)
        lds_signal(CHN)
        e.label("L_hint_other")
        lds_poll(CHN, 1, sleep=0)
        stamp(1, "late")
        for g in range(4):
            oloads(g)
    elif opt.hint:
        top, done = lbl("hp"), lbl("hpd")
        spin_init()
        n = opt.pipe
        def chk(r):
            e.i(f"v_cmp_ne_u32 vcc, s{sTAG}, v{r}")
            if opt.early_poll:
                e.i("s_and_b64 vcc, vcc, s[4:5]")
                e.i(f"s_cbranch_scc0 {done}")
            else:
                e.i(f"s_cbranch_vccz {done}")
        if opt.early_poll in (1, 3):
            chk(17)
        for k in range(n):
            e.i(f"buffer_load_dword v{17+k}, v16, {S(sWS,4)}, s{sFLG} offen sc1")
            e.i(f"s_sleep {6 // n}")
        e.label(top)
        for k in range(n + 1):
            e.i(f"buffer_load_dword v{17+(n+k)%(n+1)}, v16, {S(sWS,4)}, s{sFLG} offen sc1")
            e.i(f"s_waitcnt vmcnt({n})")
            chk(17 + k)
        spin_tail(top, done, 0 if n else opt.hsleep)
        e.label(done)
        stamp(1, "late")
        for g in range(4):
            oloads(g)
    else:
        e.i("s_waitcnt vmcnt(12)")
        stamp(1, "late")
        oloads(3)
    e.c("o fragments: check that every dword was written; if not, re-read that group until it is, then refresh the rest")
    def ocheck(g):
        b = OF + 16 * g
        e.i(f"v_max3_u32 v5, v{b}, v{b+1}, v{b+2}")
        for k in range(3, 15, 2):
            e.i(f"v_max3_u32 v5, v5, v{b+k}, v{b+k+1}")
        e.i(f"v_max_u32 v5, v5, v{b+15}")
        e.i("v_cmp_eq_u32 vcc, -1, v5")
    for g in range(4):
        e.i(f"s_waitcnt vmcnt({12-4*g})")
        b = OF + 16 * g
        ocheck(g)
        e.i(f"s_cbranch_vccnz L_oretry_{g}")
        e.label(f"L_ogo_{g}")
        for i in range(4):
            for c2 in (1, 0):
                a = 8 + 16 * c2
                k = 4 * g + i
                e.i(f"{MF32} {V(a,16)}, {V(128+8*k+4*c2,4)}, {V(b+4*i,4)}, {'0' if k == 0 else V(a,16)}")
    stamp(2, "late")
    for t in range(8):
        e.i(f"v_lshlrev_b32 v{128+2*t}, 16, v{XR+t}")
        e.i(f"v_and_b32 v{129+2*t}, s{sMASK}, v{XR+t}")
    e.lg = []
    for q in range(4):
        e.lds(f"ds_write_b128 v1, {V(24+4*q,4)} offset:{q*1024}")
    lds_signal(CE0, va=4)
    e.i(f"s_lshl_b32 s{sT1}, s{sF}, 2")
    e.i(f"v_add_u32 v1, s{sT1}, v6")
    e.i(f"s_lshl_b32 s{sT1}, s{sF}, 14")
    e.i(f"s_add_u32 s{sT1}, s{sT1}, {RB2 + 12288}")
    e.i(f"v_add_u32 v0, s{sT1}, v0")
    lds_poll(CGD, 1, sleep=0, va=1)
    e.lds("ds_read_b128 v[40:43], v0")
    e.lds("ds_read_b128 v[44:47], v0 offset:1024")
    lds_poll(CE0, 2, sleep=0, va=4)
    for q in range(4):
        e.lds(f"ds_read_b128 {V(24+4*q,4)}, v2 offset:{q*1024}", ("e", q))
    for t in range(8):
        e.i(f"v_lshlrev_b32 v{G+2*t}, 16, v{40+t}")
        e.i(f"v_and_b32 v{G+1+2*t}, s{sMASK}, v{40+t}")
    for q in range(4):
        e.wait(lg=("e", q))
        for r in range(4*q, 4*q+4):
            e.i(f"v_add_f32 v{8+r}, v{8+r}, v{24+r}")
        for r in range(4*q, 4*q+4):
            e.i(f"v_fmac_f32 v{128+r}, v{8+r}, v{G+r}")
        for j in range(2):
            e.i(f"v_cvt_pk_bf16_f32 v{XR+2*q+j}, v{128+4*q+2*j}, v{128+4*q+2*j+1}")
        e.vmem(f"buffer_store_dwordx2 {V(XR+2*q,2)}, v3, {S(sOUT,4)}, s{sXO} offen offset:{16*q}")
    if opt.stamps:
        e.wait_all(vm=True)
        stamp(3, "late")
    dump_stamps()
    e.i("s_endpgm")
    for g in range(4):
        e.label(f"L_oretry_{g}")
        e.i(f"s_sub_u32 s{sCNT}, s{sCNT}, 1")
        e.i(f"s_cbranch_scc1 L_odone_{g}")
        if opt.osleep:
            e.i(f"s_sleep {opt.osleep}")
        oloads(g)
        e.i("s_waitcnt vmcnt(0)")
        ocheck(g)
        e.i(f"s_cbranch_vccnz L_oretry_{g}")
        e.label(f"L_odone_{g}")
        for g2 in range(g + 1, 4):
            oloads(g2)
        e.i(f"s_branch L_ogo_{g}")
    if opt.full:
        for name, off, n in slow:
            e.label(f"L_slow_{name}")
            lds_poll(off, n, sleep=0)
            e.i(f"s_branch L_back_{name}")

    e.label("L_fallback")
    e.i("v_mov_b32 v24, 0xff800000")
    e.i("v_mov_b32 v25, 0xff800000")
    e.i(f"s_mov_b32 s{sT1}, 0")
    e.i(f"s_mov_b32 s{sCNT}, 31")
    e.label("L_fb_loop")
    e.i(f"buffer_load_dwordx4 v[8:11], v{vL16}, {S(sWS,4)}, s{sT1} offen sc1")
    e.i(f"buffer_load_dwordx4 v[12:15], v{vL16}, {S(sWS,4)}, s{sT1} offen offset:2048 sc1")
    e.i(f"s_add_u32 s{sT1}, s{sT1}, 4096")
    e.i("s_waitcnt vmcnt(0)")
    for k in range(2):
        e.i(f"{MF32} {V(NMA,16)}, {V(8+4*k,4)}, {V(QA,4)}, 0")
        e.i(f"{MF32} {V(NMB,16)}, {V(8+4*k,4)}, {V(QB,4)}, 0")
        e.nop(12)
        for r in range(0, 16, 2):
            e.i(f"v_max3_f32 v24, v24, v{NMA+r}, v{NMA+r+1}")
        for r in range(0, 16, 2):
            e.i(f"v_max3_f32 v25, v25, v{NMB+r}, v{NMB+r+1}")
    e.i(f"s_sub_u32 s{sCNT}, s{sCNT}, 1")
    e.i("s_cbranch_scc0 L_fb_loop")
    e.i("v_mov_b32 v26, v24")
    e.i("v_mov_b32 v27, v25")
    e.nop(2)
    e.i("v_permlane32_swap_b32 v24, v26")
    e.i("v_permlane32_swap_b32 v25, v27")
    e.i("v_max_f32 v24, v24, v26")
    e.i("v_max_f32 v25, v25, v27")
    e.i("s_branch L_att_start")

    e.label("L_pre_7")
    inatt[0] = False
    e.vm = []
    e.lg = []
    e.i("s_setprio 3")
    e.i(f"s_bitcmp1_b32 s{sCB}, 0")
    e.i("v_lshlrev_b32 v40, 4, v1")
    e.i("s_waitcnt lgkmcnt(0)")
    e.i(f"s_cselect_b64 {S(sWKV,2)}, s[54:55], s[52:53]")
    e.i(f"s_cselect_b32 s{sTILE}, 0, 6")
    e.i(f"s_load_dword s{sTAG}, s[68:69], {hex(WS_EPOCH)}")
    e.i(f"s_mov_b64 {S(sX,2)}, s[48:49]")
    for i in range(4):
        e.i(f"s_mov_b32 m0, {R2 + 4096*i}")
        e.i(f"s_mov_b32 s{sT0}, {4096*i}")
        for k in range(4):
            e.vmem(f"buffer_load_dwordx4 v40, {S(sWKV,4)}, s{sT0} offen offset:{1024*k} lds", "wkv")
    e.i("s_barrier")
    setup()
    e.i("v_lshrrev_b32 v42, 4, v1")
    e.i("v_and_b32 v43, 15, v1")
    e.i(f"s_lshr_b32 s{sT0}, s{sCB}, 2")
    e.i(f"s_mul_i32 s{sT0}, s{sT0}, {XN_RH}")
    e.i(f"s_bfe_u32 s{sT1}, s{sCB}, 0x10001")
    e.i(f"s_lshl_b32 s{sT1}, s{sT1}, 8")
    e.i(f"s_add_u32 s{sT0}, s{sT0}, s{sT1}")
    e.i(f"s_add_u32 s{sT0}, s{sT0}, {R1}")
    e.i("v_mul_u32_u24 v44, 528, v42")
    e.i("v_lshl_add_u32 v44, v43, 4, v44")
    e.i(f"v_add_u32 v44, s{sT0}, v44")
    e.i("v_lshlrev_b32 v45, 8, v42")
    e.i(f"v_lshl_add_u32 v45, v{vR}, 5, v45")
    e.i(f"v_lshl_add_u32 v45, v{vC}, 3, v45")
    e.i(f"v_add_u32 v45, {R2}, v45")
    for r in range(4):
        e.i(f"v_mov_b32 v{20+r}, 0x3f803f80")
    e.i(f"s_lshl_b32 s{sT2}, s{sRB}, 1")
    e.i(f"s_lshr_b32 s{sOFF2}, s{sCB}, 2")
    e.i(f"s_add_u32 s{sT2}, s{sT2}, s{sOFF2}")
    e.i(f"s_lshl_b32 s{sT2}, s{sT2}, 11")
    e.i(f"s_add_u32 s{sT2}, s{sT2}, s{sT1}")
    e.i(f"v_lshlrev_b32 v46, 3, v{vH}")
    e.i("v_lshl_add_u32 v46, v43, 4, v46")
    e.i(f"s_lshl_b32 s{sOFF2}, s{sRB}, 7")
    e.i(f"s_lshl_b32 s{sOFF}, s{sCB}, 3")
    e.i(f"s_add_u32 s{sOFF2}, s{sOFF2}, s{sOFF}")
    e.i(f"v_mov_b32 v18, {hex(WS_KVF)}")
    e.i(f"v_lshrrev_b32 v{vW1}, 2, v1")
    e.i(f"v_lshlrev_b32 v19, 7, v{vW1}")
    e.i(f"v_lshl_add_u32 v19, v{vC}, 4, v19")
    e.i("v_lshlrev_b32 v31, 11, v1")
    e.i(f"v_mul_u32_u24 v{vW1}, 3584, v{vW1}")
    e.i(f"v_lshl_add_u32 v{vW1}, v{vC}, 4, v{vW1}")
    e.i(f"v_lshlrev_b32 v{vT0}, 6, v{vR}")
    e.i(f"v_lshl_add_u32 v{vT0}, v{vCG}, 5, v{vT0}")
    e.i(f"v_lshl_add_u32 v{vT0}, v{vC}, 3, v{vT0}")
    e.i(f"v_lshl_add_u32 v{vT0}, v{vH}, 9, v{vT0}")
    e.i(f"v_add_u32 v{vT0}, s{sRING}, v{vT0}")
    e.i("s_waitcnt lgkmcnt(0)")
    e.i(f"s_mul_i32 s{sTAG}, s{sTAG}, 0x9e3779b1")
    e.i(f"s_add_u32 s{sTAG}, s{sTAG}, 0x7f4a7c15")
    e.i(f"v_mov_b32 v16, s{sTAG}")
    e.lds(f"ds_write_b32 v6, v16 offset:{CTAG}")
    e.wait(vm="wkv")
    stamp(1, "front")
    for ks in range(16):
        e.lds(f"ds_read_b64_tr_b16 {V(128+4*ks,2)}, v45 offset:{ks*1024}")
        e.lds(f"ds_read_b64_tr_b16 {V(130+4*ks,2)}, v45 offset:{ks*1024+128}")
    lds_signal(CXN)
    e.i(f"v_add_u32 v41, {RE}, v{vSP}")
    e.i(f"s_mov_b32 exec_lo, {hex((1 << NE) - 1)}")
    e.i(f"s_mov_b32 exec_hi, {hex((1 << NE) - 1)}")
    e.lds(f"ds_write_b128 v41, {V(vSD,4)} offset:2048")
    e.i("s_mov_b64 exec, -1")
    lds_poll(CRW, 2, sleep=0)
    for ks in range(16):
        e.lds(f"ds_read_b128 {V(64+4*ks,4)}, v44 offset:{ks*2112}", ("k", ks), guard=False)
    lds_signal(CRC)
    e.i(f"s_bitcmp1_b32 s{sCB}, 0")
    e.i("s_cbranch_scc1 L_w7_v")
    lg_save = list(e.lg)
    def kvloop(isV):
        for ks in range(16):
            W, Xf = V(128+4*ks, 4), V(64+4*ks, 4)
            a, b = ("v[20:23]", W) if isV else (W, "v[20:23]")
            e.i(f"{MF16} v[12:15], {a}, {b}, {'0' if ks == 0 else 'v[12:15]'}")
            e.wait(lg=("k", ks))
            a, b = (Xf, W) if isV else (W, Xf)
            e.i(f"{MF16} v[8:11], {a}, {b}, {'0' if ks == 0 else 'v[8:11]'}")
    kvloop(False)
    stamp(8, "front")
    e.i(f"v_lshl_add_u32 v46, v{vCG}, 9, v46")
    e.i("v_lshl_add_u32 v47, v43, 2, v6")
    lds_poll(CST, 2, sleep=0)
    e.i(f"ds_read2_b32 v[24:25], v47 offset0:{STAT//4} offset1:{STAT//4+16}")
    e.wait_all(lg=True)
    for r in range(4):
        e.i(f"v_fmac_f32 v{8+r}, v24, v{12+r}")
    for r in range(4):
        e.i(f"v_mul_f32 v{8+r}, v25, v{8+r}")
    e.i("v_cvt_pk_bf16_f32 v12, v8, v9")
    e.i("v_cvt_pk_bf16_f32 v13, v10, v11")
    e.i(f"buffer_store_dwordx2 v[12:13], v46, {S(sWS,4)}, s{sT2} offen sc1")
    e.i("v_mul_f32 v17, v8, v8")
    for r in range(1, 4):
        e.i(f"v_fmac_f32 v17, v{8+r}, v{8+r}")
    e.i("v_mov_b32 v15, v17")
    e.nop(2)
    e.i("v_permlane32_swap_b32 v17, v15")
    e.i("v_add_f32 v17, v17, v15")
    e.i("v_mov_b32 v15, v17")
    e.nop(2)
    e.i("v_permlane16_swap_b32 v17, v15")
    e.i("v_add_f32 v17, v17, v15")
    for m in ("row_ror:1", "row_ror:2", "row_ror:4", "row_ror:8"):
        e.nop(2)
        e.i(f"v_max_u32_dpp v17, v17, v17 {m} row_mask:0xf bank_mask:0xf")
    e.i("s_branch L_w7_pub")
    e.label("L_w7_v")
    e.lg = lg_save
    kvloop(True)
    stamp(8, "front")
    e.i(f"v_lshlrev_b32 v46, 4, v43")
    e.i(f"v_lshl_add_u32 v46, v{vH}, 8, v46")
    e.i(f"v_lshl_add_u32 v46, v{vCG}, 3, v46")
    e.i(f"s_add_u32 s{sT2}, s{sT2}, s{sT1}")
    e.i(f"s_add_u32 s{sT2}, s{sT2}, 1024")
    e.i("v_lshl_add_u32 v47, v42, 4, v6")
    lds_poll(CST, 2, sleep=0)
    e.i(f"ds_read_b128 v[24:27], v47 offset:{STAT}")
    e.i(f"ds_read_b128 v[32:35], v47 offset:{STAT+64}")
    e.wait_all(lg=True)
    for r in range(4):
        e.i(f"v_fmac_f32 v{8+r}, v{24+r}, v{12+r}")
    for r in range(4):
        e.i(f"v_mul_f32 v{8+r}, v{32+r}, v{8+r}")
    e.i("v_cvt_pk_bf16_f32 v12, v8, v9")
    e.i("v_cvt_pk_bf16_f32 v13, v10, v11")
    e.i(f"buffer_store_dwordx2 v[12:13], v46, {S(sWS,4)}, s{sT2} offen sc1")
    e.i("v_mov_b32 v17, 0")
    e.label("L_w7_pub")
    stamp(2)
    e.i("s_mov_b64 exec, 1")
    e.wait_all(vm=True)
    e.i(f"buffer_store_dwordx2 v[16:17], v18, {S(sWS,4)}, s{sOFF2} offen sc1")
    e.i("s_mov_b64 exec, -1")
    stamp(9)
    e.c("wait for all 256 K/V producers, pass max |k|^2 on through LDS")
    top, done = lbl("kv"), lbl("kvd")
    e.i(f"s_mov_b32 s{sT1}, {hex(WS_KVF)}")
    e.i(f"s_bfe_u32 s{sT2}, s2, 0x40003")
    e.i(f"s_lshl_b32 s{sT2}, s{sT2}, 7")
    if opt.touch == 3:
        e.c("touch 1/8 of the w1 slice -> L2; the first poll queues behind it")
        if opt.twait == 1:
            lds_poll(CWQ, 1, sleep=1)
        if opt.twait == 2:
            lds_poll(CWI, 1, sleep=1)
        touch_setup(sOFF)
        touches(sOFF, 0, opt.ntouch)
    if opt.kvdelay:
        e.i(f"s_sleep {opt.kvdelay}")
    spin_init()
    e.label(top)
    e.i(f"buffer_load_dwordx4 v[32:35], v19, {S(sWS,4)}, s{sT1} offen sc1")
    e.i(f"buffer_load_dwordx4 v[36:39], v19, {S(sWS,4)}, s{sT1} offen offset:2048 sc1")
    e.wait_all(vm=True)
    if opt.fstart == 3:
        lds_signal(CTL)
    e.i("v_xor_b32 v32, v16, v32")
    e.i("v_xor_b32 v34, v16, v34")
    e.i("v_xor_b32 v36, v16, v36")
    e.i("v_xor_b32 v38, v16, v38")
    e.i("v_or3_b32 v32, v32, v34, v36")
    e.i("v_or_b32 v32, v32, v38")
    e.i("v_cmp_ne_u32 vcc, 0, v32")
    e.i("v_max_u32 v30, v33, v37")
    e.i(f"s_cbranch_vccz {done}")
    spin_tail(top, done, opt.kvsleep)
    e.label(done)
    lds_signal(CKV)
    e.c("blocks 0..6 -> early slots in R2")
    e.i(f"s_mov_b32 s{sOFF2}, 0")
    e.i(f"s_mov_b32 s{sT1}, {RE}")
    kv_dma(NE, sOFF2, sT1, 1, 1)
    if opt.kvtouch:
        e.c("touch 64 of the 1024 K/V lines -> L2 (the workgroups of an XCD cover all of them)")
        e.i(f"buffer_load_dword v106, v31, {S(sWS,4)}, s{sT2} offen sc1")
    for m in ("row_ror:1", "row_ror:2", "row_ror:4", "row_ror:8"):
        e.nop(2)
        e.i(f"v_max_u32_dpp v30, v30, v30 {m} row_mask:0xf bank_mask:0xf")
    e.i("v_mov_b32 v29, v30")
    e.nop(2)
    e.i("v_permlane16_swap_b32 v29, v30")
    e.i("v_max_u32 v30, v29, v30")
    e.i("v_mov_b32 v29, v30")
    e.nop(2)
    e.i("v_permlane32_swap_b32 v29, v30")
    e.i("v_max_u32 v30, v29, v30")
    e.lds(f"ds_write_b32 v6, v30 offset:{CKM}")
    lds_signal(CKV)
    stamp(4, "front")
    e.c("blocks 5..36 -> slots 0..31")
    e.i(f"s_mov_b32 s{sT1}, 0")
    lds_poll(CQ, 4, sleep=0)
    e.vm = []
    e.lds(f"ds_write_b128 v{vSP}, {V(vSD,4)} offset:2048")
    kv_dma(8, sOFF2, sT1, 1, 1)
    e.i(f"s_waitcnt vmcnt({17 if opt.kvtouch else 16})")
    lds_signal(CE7)
    e.i("s_waitcnt vmcnt(0)")
    lds_signal(CA)
    kv_dma(8, sOFF2, sT1, 1, 1)
    for st in range(2):
        kv_dma(8, sOFF2, sT1, 1, 1)
        e.i("s_waitcnt vmcnt(16)")
        e.vm = []
        lds_signal(CA)
    e.i("s_waitcnt vmcnt(0)")
    lds_signal(CA)
    lds_poll(CG, 4, sleep=1)
    e.c("workgroup 0 renews the epoch word: every producer has read it by now")
    e.i("s_cmp_lg_u32 s2, 0")
    e.i("s_cbranch_scc1 L_ffn")
    e.i(f"v_mov_b32 v29, {hex(WS_EPOCH)}")
    e.i("s_mov_b64 exec, 1")
    e.i(f"buffer_store_dword v16, v29, {S(sWS,4)}, 0 offen sc1")
    e.i("s_mov_b64 exec, -1")

    ACC = 8
    NR = opt.NR
    AF, BF = 72, 88
    e.label("L_ffn")
    e.vm = []
    e.lg = []
    e.i("s_setprio 3")
    e.i(f"s_mul_i32 s{sOFF}, s{sCB}, 448")
    e.i(f"s_lshl_b32 s{sT1}, s{sTILE}, 6")
    e.i(f"s_add_u32 s{sOFF}, s{sOFF}, s{sT1}")
    e.c("k order is rotated by 4*(rb&7) steps: the 8 workgroups of an XCD that share this w1 slice take turns missing")
    e.i(f"s_add_u32 s{sE1}, s{sOFF}, {512*3584}")
    e.i(f"s_and_b32 s{sT1}, s{sRB}, {7 if opt.rot & 2 else 0}")
    e.i(f"s_mul_i32 s{sT0}, s{sT1}, {64*3584}")
    e.i(f"s_add_u32 s{sOFF}, s{sOFF}, s{sT0}")
    for g in range(8):
        e.i(f"s_add_u32 s{sT0}, s{sT1}, {g}")
        e.i(f"s_and_b32 s{sT0}, s{sT0}, 7")
        e.i(f"s_mul_i32 s{sT0}, s{sT0}, {4*1056}")
        e.i(f"v_add_u32 v{232+2*g}, s{sT0}, v{vXN0}")
        e.i(f"v_add_u32 v{233+2*g}, s{sT0}, v{vXN1}")
    e.i(f"s_mul_i32 s{sW2T}, s{sF}, {448*1024}")
    e.i(f"s_lshl_b32 s{sT0}, s{sCB}, 7")
    e.i(f"s_add_u32 s{sW2T}, s{sW2T}, s{sT0}")
    e.i(f"s_and_b32 s{sT0}, s{sRB}, 7")
    e.i(f"s_min_u32 s{sT0}, s{sT0}, 6")
    e.i(f"s_lshl_b32 s{sT0}, s{sT0}, 16")
    e.i(f"s_add_u32 s{sW2T}, s{sW2T}, s{sT0}")
    e.i(f"v_lshrrev_b32 v{vTCH}, 2, v1")
    e.i(f"v_lshlrev_b32 v{vTCH}, 10, v{vTCH}")
    e.i(f"v_lshl_add_u32 v{vTCH}, v{vC}, 8, v{vTCH}")
    if opt.epre:
        e.i(f"s_cmp_eq_u32 s{sWAVE}, 7")
        e.i("s_cbranch_scc1 L_no_epre")
        lds_poll(CRC, 1, sleep=1)
        if opt.epre == 2:
            lds_poll(CWI, 1, sleep=1)
        for ks in range(3):
            for a in range(2):
                e.i(f"s_add_u32 m0, s{sRING}, {ks * 2048 + a * 1024}")
                e.i("s_nop 0")
                e.i(f"buffer_load_dwordx4 v{vW1}, {S(sW1,4)}, s{sOFF} offen lds")
                e.i(f"s_add_u32 s{sOFF}, s{sOFF}, {8*3584}")
        e.c("touch the lines of the fourth step as well")
        e.i("v_mul_u32_u24 v125, 3584, v1")
        e.i("s_mov_b64 exec, 0xffff")
        e.i(f"buffer_load_dword v124, v125, {S(sW1,4)}, s{sOFF} offen")
        e.i("s_mov_b64 exec, -1")
        e.label("L_no_epre")
    lds_poll(CXN, 9, sleep=1)
    e.i(f"ds_read_b32 v4, v6 offset:{CTAG}")
    e.i("v_mov_b64 v[208:209], -1")
    e.i("v_mov_b64 v[210:211], -1")
    if opt.fgo == 2:
        lds_poll(CKV, 1, sleep=1)
    if opt.fgo == 3:
        lds_poll(CE7, 1, sleep=1)
    e.wait_all(lg=True)
    e.i(f"v_readfirstlane_b32 s{sTAG}, v4")
    e.i(f"s_setprio {opt.fprio1}")
    stamp(2, "late")
    e.i(f"s_cmp_eq_u32 s{sWAVE}, 7")
    e.i("s_cbranch_scc1 L_ffn1_w7")

    def paced(n):
        if n == 0:
            e.wait_all(lg=True)
        elif len(e.lg) > n:
            e.i(f"s_waitcnt lgkmcnt({n})")
            del e.lg[: len(e.lg) - n]
    def bread(ks, rh):
        e.lds(f"ds_read_b128 {V(BF+8*(ks%2)+4*rh,4)}, v{232+2*(ks//4)+rh} offset:{(ks%4)*1056}", ("f", ks))
    def wrap1():
        e.i(f"s_cmp_ge_u32 s{sOFF}, s{sE1}")
        e.i(f"s_cselect_b32 s{sT0}, {512*3584}, 0")
        e.i(f"s_sub_u32 s{sOFF}, s{sOFF}, s{sT0}")
    def w2_touch():
        if opt.warm2:
            e.c("touch 1/7 of this wave's w2 slice (8 workgroups of an XCD share it) -> L2")
            e.vmem(f"buffer_load_dword v124, v{vTCH}, {S(sW2,4)}, s{sW2T} offen")
    def marker(hd):
        e.vmem(f"buffer_store_dwordx4 v[208:211], v{vL16}, {S(sWS,4)}, s{sOB} offen offset:{2048*hd} sc1", "clr")
    def e1():
        e.c("waves 4..6: blocks 37..51 -> slots 0..14 once attention has read them")
        lds_poll(CP1, 4, sleep=2)
        e.i(f"s_lshl_b32 s{sU0}, s{sF}, 11")
        e.i(f"s_add_u32 s{sU0}, s{sU0}, {(NE+32)*2048}")
        e.i(f"s_mul_i32 s{sU1}, s{sF}, {KVS}")
        kv_dma(5, sU0, sU1, 3, 3)
    def h_store(tiles):
        lds_signal(CX)
        stamp(3)
        e.i("s_setprio 3")
        e.i(f"s_mul_i32 s{sT0}, s{sRB}, 112")
        e.i(f"s_mul_i32 s{sT1}, s{sCB}, 14")
        e.i(f"s_add_u32 s{sT0}, s{sT0}, s{sT1}")
        e.i(f"s_lshl_b32 s{sT1}, s{sTILE}, 1")
        e.i(f"s_add_u32 s{sT0}, s{sT0}, s{sT1}")
        e.i(f"s_lshl_b32 s{sT0}, s{sT0}, 11")
        e.i(f"s_add_u32 s{sOFF}, s{sT0}, {WS_H}")
        e.i(f"s_add_u32 s{sOFF2}, s{sOFF}, 4096")
        if len(tiles) == 2 and opt.e1pos == 0:
            e1()
        e.c("mark the o fragments of attention wave f as not yet written")
        if not opt.mkearly:
            marker(0); marker(1)
        for ct in tiles:
            for rh in range(2):
                a = ACC + 16 * (rh * 2 + ct)
                for j in range(8):
                    e.i(f"v_cvt_pk_bf16_f32 v{a+j}, v{a+2*j}, v{a+2*j+1}")
                for j in range(8):
                    e.i(f"v_pk_max_i16 v{a+j}, v{a+j}, 0")
                for s in range(2):
                    e.vmem(f"buffer_store_dwordx4 {V(a+4*s,4)}, v{vL16}, {S(sWS,4)}, s{sOFF2 if ct else sOFF} offen offset:{(2*s+rh)*1024} sc1", "hst")
    def ring_dma(ks, srd, v, step):
        for a in range(2):
            e.i(f"s_add_u32 m0, s{sRING}, {(ks % NR) * 2048 + a * 1024}")
            e.i("s_nop 0")
            e.vmem(f"buffer_load_dwordx4 v{v}, {S(srd,4)}, s{sOFF} offen lds", ("w", ks))
            e.i(f"s_add_u32 s{sOFF}, s{sOFF}, {step}")
    def tr2(ks, i, tstride):
        ct, t = i >> 1, i & 1
        e.lds(f"ds_read_b64_tr_b16 {V(AF+8*(ks%2)+4*ct+2*t,2)}, v{vT1 if ct else vT0} offset:{(ks%NR)*2048+tstride*t}", ("f", ks))

    e.c("FFN1, waves 4..6: two column tiles x two row halves")
    A3, B3 = 72, 96
    LA = 1 if opt.la1 else 2
    def dma1(ks, a):
        e.i(f"s_add_u32 m0, s{sRING}, {(ks % 3) * 2048 + a * 1024}")
        e.i("s_nop 0")
        e.vmem(f"buffer_load_dwordx4 v{vW1}, {S(sW1,4)}, s{sOFF} offen lds", ("w", ks))
        e.i(f"s_add_u32 s{sOFF}, s{sOFF}, {8*3584}")
        if a == 1 and ks % 4 == 3:
            wrap1()
    def br3(ks, rh):
        e.lds(f"ds_read_b128 {V(B3+8*(ks%3)+4*rh,4)}, v{232+2*(ks//4)+rh} offset:{(ks%4)*1056}", ("f", ks))
    def tr3(ks, i):
        ct, t = i >> 1, i & 1
        e.lds(f"ds_read_b64_tr_b16 {V(A3+8*(ks%3)+4*ct+2*t,2)}, v{vT1 if ct else vT0} offset:{(ks%3)*2048+512*t}", ("f", ks))
    if opt.epre:
        e.vm = [("w", ks) for ks in range(3) for _ in range(2)] + ["t"]
    else:
        for ks in range(3):
            dma1(ks, 0); dma1(ks, 1)
    for ks in range(LA):
        br3(ks, 0); br3(ks, 1)
        e.wait(vm=("w", ks))
        for i in range(4):
            tr3(ks, i)
    for ks in range(32):
        s = ks % 3
        e.wait(lg=("f", ks))
        n = ks + LA
        dense = ks < opt.dense
        for i in range(4):
            rh, ct = i >> 1, i & 1
            a = ACC + 16 * i
            e.i(f"{MF32} {V(a,16)}, {V(A3+8*s+4*ct,4)}, {V(B3+8*s+4*rh,4)}, {'0' if ks == 0 else V(a,16)}")
            if i == 0 and ks + 3 < 32:
                dma1(ks + 3, 0)
                dma1(ks + 3, 1)
            if n < 32:
                if i == 0:
                    br3(n, 0); br3(n, 1)
                if i == 1:
                    e.wait(vm=("w", n))
                if dense:
                    if i in (1, 2):
                        tr3(n, 2 * i - 2); tr3(n, 2 * i - 1)
                else:
                    if i == 1:
                        tr3(n, 0); tr3(n, 1)
                    if i >= 2:
                        tr3(n, i)
                    paced(opt.pace1)
        if opt.mkearly and ks in (14, 20):
            marker(ks // 20)
        if opt.mid and ks in (0, 4, 8, 12, 16, 20):
            stamp(4 + ks // 4)
    if opt.mid:
        lds_signal(CX)
        stamp(3)
        dump_stamps()
        e.i("s_endpgm")
    h_store([0, 1])
    if opt.e1pos == 1:
        e1()
    e.i("s_branch L_ffn_join")

    e.label("L_ffn1_w7")
    e.vm = []
    e.lg = []
    e.c("FFN1, wave 7: one column tile")
    def dma7(ks):
        e.i(f"s_add_u32 m0, s{sRING}, {(ks % 8) * 1024}")
        e.i("s_nop 0")
        e.vmem(f"buffer_load_dwordx4 v{vW1}, {S(sW1,4)}, s{sOFF} offen lds", ("w", ks))
        e.i(f"s_add_u32 s{sOFF}, s{sOFF}, {16*3584}")
        if ks % 4 == 3:
            wrap1()
    def tr7(ks, t):
        e.lds(f"ds_read_b64_tr_b16 {V(AF+8*(ks%2)+2*t,2)}, v{vT0} offset:{(ks%8)*1024+256*t}", ("f", ks))
    if opt.t7:
        e.i(f"s_lshr_b32 s{sT1}, s2, 3")
        e.i(f"s_and_b32 s{sT2}, s{sCB}, 1")
        e.i(f"s_lshl_b32 s{sT2}, s{sT2}, 7")
        e.i(f"s_mul_i32 s{sU0}, s{sT1}, {56*1024}")
        e.i(f"s_add_u32 s{sU0}, s{sU0}, s{sT2}")
        for i in range(4):
            e.i(f"buffer_load_dword v124, v{vTCH}, {S(sW2,4)}, s{sU0} offen")
            e.i(f"s_add_u32 s{sU0}, s{sU0}, {14*1024}")
    e.i(f"s_setprio {opt.p7}")
    for ks in range(8):
        dma7(ks)
    bread(0, 0); bread(0, 1)
    e.wait(vm=("w", 0))
    tr7(0, 0); tr7(0, 1)
    for ks in range(32):
        s = ks % 2
        e.wait(lg=("f", ks))
        if ks + 8 < 32:
            dma7(ks + 8)
        if ks + 1 < 32:
            e.wait(vm=("w", ks + 1))
        for rh in range(2):
            a = ACC + 32 * rh
            e.i(f"{MF32} {V(a,16)}, {V(AF+8*s,4)}, {V(BF+8*s+4*rh,4)}, {'0' if ks == 0 else V(a,16)}")
            if ks + 1 < 32:
                bread(ks + 1, rh)
                tr7(ks + 1, rh)
                if rh == 0 and ks >= opt.dense:
                    paced(opt.pace1)
        if opt.mkearly and ks in (14, 20):
            marker(ks // 20)
    h_store([0])

    e.label("L_ffn_join")
    e.i(f"s_lshl_b32 s{sT2}, s{sCB}, 7")
    e.i(f"s_lshl_b32 s{sT1}, s{sF}, 2")
    e.i(f"s_add_u32 s{sT2}, s{sT2}, s{sT1}")
    e.i(f"s_add_u32 s{sT2}, s{sT2}, s{sFLG}")
    e.i("v_mov_b32 v72, 0")
    e.i(f"v_mov_b32 v73, s{sTAG}")
    e.i(f"v_add_u32 v{vSP}, {R1}, v{vSP}")
    e.i(f"s_lshl_b32 s{sRING}, s{sF}, 14")
    e.i(f"s_add_u32 s{sRING}, s{sRING}, {RB2}")
    e.i(f"v_lshl_add_u32 v{vTR}, v{vH}, 9, v{vTR}")
    e.c("accumulator i holds output tile i ^ f, so that accumulator 0 is this wave's own tile")
    e.i(f"s_and_b32 s{sT1}, s{sF}, 1")
    e.i(f"s_lshl_b32 s{sT1}, s{sT1}, 6")
    e.i(f"v_xor_b32 v{vT0}, s{sT1}, v{vTR}")
    e.i(f"v_add_u32 v{vT0}, s{sRING}, v{vT0}")
    e.i(f"v_xor_b32 v{vT1}, 64, v{vT0}")
    e.i(f"s_lshr_b32 s{sT1}, s{sF}, 1")
    e.i(f"s_lshl_b32 s{sT1}, s{sT1}, 10")
    e.i(f"v_add_u32 v0, s{sT1}, v{vL16}")
    e.i("v_xor_b32 v2, 0x400, v0")
    e.i("v_bfe_u32 v122, v1, 2, 3")
    e.i("v_lshlrev_b32 v122, 7, v122")
    e.i(f"v_lshl_add_u32 v122, v{vC}, 2, v122")
    e.i("v_lshlrev_b32 v123, 9, v1")
    e.i(f"s_mov_b32 s{sW2T}, s{sT2}")
    def flag_out():
        e.i("s_mov_b64 exec, 1")
        e.vmem(f"buffer_store_dword v73, v72, {S(sWS,4)}, s{sW2T} offen sc1")
        e.i("s_mov_b64 exec, -1")
        lds_signal(CL1)
        stamp(4, "late")
    if not opt.prefirst:
        e.wait_all(vm=True)
        flag_out()
    e.i(f"s_mul_i32 s{sOFF}, s{sF}, {448*1024}")
    e.i(f"s_lshl_b32 s{sT0}, s{sCB}, 7")
    e.i(f"s_add_u32 s{sOFF}, s{sOFF}, s{sT0}")
    e.i(f"s_mov_b32 s{sE1}, s{sOFF}")
    e.i(f"s_cmp_eq_u32 s{sWAVE}, 7")
    e.i("s_cbranch_scc1 L_no_e1")
    e.c("touch 1/32 of the w2 / wo lines this XCD needs -> L2 (waves 4,5: w2, wave 6: wo)")
    e.i(f"s_lshr_b32 s{sT1}, s2, 3")
    e.i(f"s_and_b32 s{sT2}, s{sCB}, 1")
    e.i(f"s_lshl_b32 s{sT2}, s{sT2}, 7")
    e.i(f"s_cmp_eq_u32 s{sWAVE}, 6")
    e.i("s_cbranch_scc1 L_t_wo")
    e.i(f"s_lshl_b32 s{sT1}, s{sT1}, 1")
    e.i(f"s_add_u32 s{sT1}, s{sT1}, s{sF}")
    e.i(f"s_mul_i32 s{sT1}, s{sT1}, {28*1024}")
    e.i(f"s_add_u32 s{sT1}, s{sT1}, s{sT2}")
    if not opt.t7:
        e.i(f"buffer_load_dword v124, v{vTCH}, {S(sW2,4)}, s{sT1} offen")
        e.i(f"s_add_u32 s{sT1}, s{sT1}, {12*1024}")
        e.i(f"buffer_load_dword v124, v{vTCH}, {S(sW2,4)}, s{sT1} offen")
    e.i("s_branch L_no_e1")
    e.label("L_t_wo")
    e.i(f"s_lshl_b32 s{sT1}, s{sT1}, 14")
    e.i(f"s_add_u32 s{sT1}, s{sT1}, s{sT2}")
    e.i(f"buffer_load_dword v124, v{vTCH}, {S(sWO,4)}, s{sT1} offen")
    e.label("L_no_e1")
    e.c("blocks 51..63 -> R1 once xn is dead")
    lds_poll(CX, 4, sleep=4)
    e.i(f"s_lshl_b32 s{sOFF2}, s{sF}, 11")
    e.i(f"s_add_u32 s{sOFF2}, s{sOFF2}, {(NE+47)*2048}")
    e.i(f"s_mul_i32 s{sT1}, s{sF}, {KVS}")
    e.i(f"s_add_u32 s{sT1}, s{sT1}, {R1}")
    e.vm = []
    kv_dma(3, sOFF2, sT1, 4, 4)
    e.i("s_mov_b32 exec_lo, 0xfff")
    e.i("s_mov_b32 exec_hi, 0xfff")
    e.lds(f"ds_write_b128 v{vSP}, {V(vSD,4)} offset:2048")
    e.i("s_mov_b64 exec, -1")
    stamp(5)
    if opt.exit_at == 5:
        e.wait_all(vm=True)
        lds_signal(CH2)
    exit_if(5)
    e.i(f"s_lshr_b32 s{sT2}, s{sCB}, 1")
    for c in range(4):
        e.i(f"s_xor_b32 s{sCH+c}, s{sT2}, {c}")
        e.i(f"s_mul_i32 s{sCH+c}, s{sCH+c}, {7*2048}")
    e.i(f"s_mul_i32 s{sT0}, s{sRB}, 112")
    e.i(f"s_mul_i32 s{sT1}, s{sF}, 28")
    e.i(f"s_add_u32 s{sT0}, s{sT0}, s{sT1}")
    e.i(f"s_lshl_b32 s{sT0}, s{sT0}, 11")
    e.i(f"s_add_u32 s{sE2}, s{sT0}, {WS_H}")
    e.i(f"s_lshl_b32 s{sT0}, s{sF}, 3")
    e.i(f"s_and_b32 s{sT1}, s{sCB}, 4")
    e.i(f"s_add_u32 s{sT1}, s{sT1}, s{sT0}")
    e.i(f"s_lshl_b32 s4, 15, s{sT1}")
    e.i(f"s_lshl_b32 s5, 0xff, s{sT0}")
    def set_w(c):
        e.i(f"s_lshl_b32 s{sOFF}, s{sCH+c}, 3")
        e.i(f"s_add_u32 s{sOFF}, s{sOFF}, s{sE1}")
    def set_h(c):
        e.i(f"s_add_u32 s{sOFF2}, s{sCH+c}, s{sE2}")
    set_w(0)
    set_h(0)
    PH = opt.ph
    def wo_dma():
        e.c("wo slice -> R0 by DMA once attention has left it")
        e.i("s_setprio 3")
        lds_poll(CR0, 4, sleep=8)
        e.i(f"s_lshl_b32 s{sU0}, s{sF}, 17")
        e.i(f"s_lshl_b32 s{sU1}, s{sCB}, 7")
        e.i(f"s_add_u32 s{sU0}, s{sU0}, s{sU1}")
        e.i(f"s_lshl_b32 s{sU1}, s{sF}, 14")
        e.i(f"s_lshl_b32 s{sT1}, s{sRB}, {11 if opt.rot & 8 else 14}")
        for i in range(16):
            e.i(f"s_and_b32 s{sT1}, s{sT1}, 0x3fff")
            e.i(f"s_add_u32 m0, s{sU1}, s{sT1}")
            e.i(f"s_lshl_b32 s{sT0}, s{sT1}, 3")
            e.i(f"s_add_u32 s{sT0}, s{sT0}, s{sU0}")
            e.vmem(f"buffer_load_dwordx4 v{vSW}, {S(sWO,4)}, s{sT0} offen lds", "wo")
            e.i(f"s_add_u32 s{sT1}, s{sT1}, 1024")
    HR = [96, 104, 112, 232, 240, 248, 192, 200][:PH]
    NP = opt.npre
    def dma2(ks, a):
        e.i(f"s_add_u32 m0, s{sRING}, {(ks % 8) * 2048 + a * 1024}")
        e.i("s_nop 0")
        e.vmem(f"buffer_load_dwordx4 v{vSW}, {S(sW2,4)}, s{sOFF} offen lds", ("w", ks))
        e.i(f"s_add_u32 s{sOFF}, s{sOFF}, 8192")
        if a == 1 and ks % 7 == 6 and ks < 27:
            set_w(ks // 7 + 1)
    def hl2(ks, rh):
        r = HR[ks % PH] + 4 * rh
        e.vmem(f"buffer_load_dwordx4 {V(r,4)}, v{2 if rh else 0}, {S(sWS,4)}, s{sOFF2} offen sc1", ("h", ks))
        if rh:
            e.i(f"s_add_u32 s{sOFF2}, s{sOFF2}, 2048")
            if ks % 7 == 6 and ks < 27:
                set_h(ks // 7 + 1)
    def areg(ks):
        return 128 + 8 * ks if ks < NP else A3 + 8 * (ks % 3)
    def t32(ks, i):
        ct, t = i >> 1, i & 1
        e.lds(f"ds_read_b64_tr_b16 {V(areg(ks)+4*ct+2*t,2)}, v{vT1 if ct else vT0} offset:{(ks%8)*2048+1024*t}", ("f", ks))
    e.c("while h is in flight: w2 stages -> ring -> fragments in registers, ring refilled")
    for ks in range(8):
        dma2(ks, 0); dma2(ks, 1)
    if opt.prefirst:
        e.i(f"s_waitcnt vmcnt({len(e.vm) + opt.pslack})")
        flag_out()
    e.wait(vm=("kv", 2))
    lds_signal(CH2)
    for ks in range(max(NP, 2)):
        e.wait(vm=("w", ks))
        for i in range(4):
            t32(ks, i)
        if 1 <= ks <= NP:
            e.wait(lg=("f", ks - 1))
            dma2(ks + 7, 0); dma2(ks + 7, 1)
    if NP >= 2:
        e.wait(lg=("f", NP - 1))
        dma2(NP + 7, 0); dma2(NP + 7, 1)
    stamp(9, "late")
    top, done = lbl("fp"), lbl("fpd")
    spin_init()
    e.label(top)
    e.i(f"buffer_load_dword v124, v122, {S(sWS,4)}, s{sFLG} offen sc1")
    e.wait_all(vm=True)
    e.i(f"v_cmp_ne_u32 vcc, s{sTAG}, v124")
    e.i(f"s_and_b32 s{sT0}, vcc_lo, s4")
    e.i(f"s_cbranch_scc0 {done}")
    spin_tail(top, done, 4)
    e.label(done)
    stamp(6)
    e.i(f"s_setprio {opt.fprio}")
    for ks in range(PH - 1):
        hl2(ks, 0); hl2(ks, 1)
    for ks in range(28):
        if ks == 12 - PH:
            e.vmem(f"buffer_load_dword v124, v122, {S(sWS,4)}, s{sFLG} offen sc1", "fl")
        if ks == 15 - PH:
            e.c("the second producer must have published before its half is read")
            e.wait(vm="fl")
            e.i("s_setprio 3")
            e.i(f"v_cmp_ne_u32 vcc, s{sTAG}, v124")
            e.i(f"s_and_b32 s{sT0}, vcc_lo, s5")
            e.i("s_cbranch_scc1 L_slow_h")
            e.label("L_back_h")
            e.i(f"s_setprio {opt.fprio}")
        if ks == opt.hold:
            e.c("the operands of the last steps are on chip: run them after attention, under the o hand-off")
            e.i("s_setprio 3")
            e.wait_all(vm=True)
            lds_signal(CWO)
            lds_poll(CAD, 4, sleep=2)
        e.wait(lg=("f", ks), vm=("h", ks))
        e.wait(vm=("w", ks + 2))
        for i in range(4):
            rh, ct = i >> 1, i & 1
            a = ACC + 16 * i
            e.i(f"{MF32} {V(a,16)}, {V(areg(ks)+4*ct,4)}, {V(HR[ks%PH]+4*rh,4)}, {'0' if ks == 0 else V(a,16)}")
            if ct == 0:
                if ks >= NP and ks + 8 < 28:
                    dma2(ks + 8, rh)
            elif ks + PH - 1 < 28:
                hl2(ks + PH - 1, rh)
            if max(NP, 2) <= ks + 2 < 28:
                t32(ks + 2, i)
                if opt.dense2 <= ks < min(opt.late2, opt.hold):
                    paced(opt.pace2)
        if ks == opt.wo_at:
            wo_dma()
            e.i(f"s_setprio {opt.fprio}")
        if ks == min(opt.wo_at + 4, 27) and opt.hold > 27:
            e.wait(vm="wo")
            lds_signal(CWO)
    stamp(7)
    exit_if(7)
    e.i("s_setprio 3")
    if opt.wo_at >= 28:
        wo_dma()
    e.c("f partials: accumulators 1..3 -> own ring; wave f^i picks up accumulator i")
    e.i(f"v_add_u32 v72, s{sRING}, v{vL16}")
    for i in (1, 2, 3):
        e.i(f"s_xor_b32 s{sT0}, s{sF}, {i}")
        e.i(f"s_lshl_b32 s{sT0}, s{sT0}, 14")
        e.i(f"s_add_u32 s{sT0}, s{sT0}, {RB2 + (i-1)*4096}")
        e.i(f"v_add_u32 v{73+i}, s{sT0}, v{vL16}")
    e.i("v_add_u32 v77, 0x3000, v72")
    e.i(f"s_lshl_b32 s{sT0}, s{sF}, 2")
    e.i(f"v_add_u32 v78, s{sT0}, v6")
    e.i(f"s_mov_b32 s{sT1}, {hex(f32bits(-math.log2(math.e)))}")
    e.i(f"s_setprio {opt.fprio}")
    for i in (1, 2, 3):
        for q in range(4):
            e.lds(f"ds_write_b128 v72, {V(ACC+16*i+4*q,4)} offset:{(i-1)*4096+q*1024}")
    lds_signal(CF)
    e.i("s_setprio 3")
    stamp(8, "late")
    lds_poll(CF, 4, sleep=2)
    for i in (1, 2, 3):
        for q in range(4):
            e.lds(f"ds_read_b128 {V(ACC+16*i+4*q,4)}, v{73+i} offset:{q*1024}", ("r", i))
    if opt.glate:
        lds_poll(CAD, 4, sleep=4)
    for i in (1, 2, 3):
        e.wait(lg=("r", i))
        for r in range(0, 16, 2):
            e.i(f"v_pk_add_f32 {V(ACC+r,2)}, {V(ACC+r,2)}, {V(ACC+16*i+r,2)}")
    for r in range(16):
        e.i(f"v_mul_f32 v{ACC+16+r}, s{sT1}, v{ACC+r}")
    for r in range(16):
        e.i(f"v_exp_f32 v{ACC+16+r}, v{ACC+16+r}")
    for r in range(16):
        e.i(f"v_add_f32 v{ACC+16+r}, 1.0, v{ACC+16+r}")
    for r in range(16):
        e.i(f"v_rcp_f32 v{ACC+16+r}, v{ACC+16+r}")
    for r in range(16):
        e.i(f"v_mul_f32 v{ACC+r}, v{ACC+r}, v{ACC+16+r}")
    for j in range(8):
        e.i(f"v_cvt_pk_bf16_f32 v{ACC+j}, v{ACC+2*j}, v{ACC+2*j+1}")
    e.lds(f"ds_write_b128 v77, {V(ACC,4)}")
    e.lds(f"ds_write_b128 v77, {V(ACC+4,4)} offset:1024")
    lds_signal(CGD, va=78)
    stamp(10)
    dump_stamps()
    e.label("L_end")
    e.i("s_endpgm")
    e.label("L_slow_h")
    spin_init()
    e.label("L_slow_hx")
    e.i(f"buffer_load_dword v124, v122, {S(sWS,4)}, s{sFLG} offen sc1")
    e.i("s_waitcnt vmcnt(0)")
    e.i(f"v_cmp_ne_u32 vcc, s{sTAG}, v124")
    e.i(f"s_and_b32 s{sT0}, vcc_lo, s5")
    e.i("s_cbranch_scc0 L_back_h")
    spin_tail("L_slow_hx", "L_back_h", 4)
    e.label("L_code_end")
    return e

def wrap(e):
    hdr = open("cdna_kernels/%s.s.ref" % NAME).read().split("\n")
    top = [l for l in hdr if l.startswith(";") and "@launch" not in l]
    out = "\n".join(top) + f"\n; @launch grid=(256,1,1) block=(512,1,1) lds={LDS_BYTES}\n"
    out += f""".amdgcn_target "amdgcn-amd-amdhsa--gfx950"
.text
.globl {NAME}_kernel
.p2align 8
.type {NAME}_kernel,@function
{NAME}_kernel:
"""
    out += e.text()
    out += f""".section .rodata,"a"
.p2align 6
.amdhsa_kernel {NAME}_kernel
  .amdhsa_next_free_vgpr 256
  .amdhsa_next_free_sgpr 102
  .amdhsa_accum_offset 256
  .amdhsa_group_segment_fixed_size 0
  .amdhsa_kernarg_size 88
  .amdhsa_user_sgpr_count 2
  .amdhsa_user_sgpr_kernarg_segment_ptr 1
  .amdhsa_system_sgpr_workgroup_id_x 1
.end_amdhsa_kernel
"""
    return out

if __name__ == "__main__":
    opt = Opt()
    outp = sys.argv[1]
    for a in sys.argv[2:]:
        k, v = a.split("=")
        assert hasattr(opt, k), k
        setattr(opt, k, type(getattr(opt, k))(eval(v)))
    e = gen(opt)
    bad = check_cfg(e.lines)
    print("hazards:", bad, "lines:", len(e.lines), "lds", LDS_BYTES)
    open(outp, "w").write(wrap(e))
```

```python
import sys, math, struct
from asmlib import *

NAME = "recurrent_scan__grouped_kv_mqa__dense_activation_relu__prompt"
MF32 = "v_mfma_f32_32x32x16_bf16"
MF16 = "v_mfma_f32_16x16x32_bf16"
SMF = "v_smfmac_f32_32x32x32_bf16"

def f32bits(x):
    return struct.unpack("<I", struct.pack("<f", x))[0]

KVS = 2080
R0 = 0
R1 = 32 * KVS
XN_RH = 64 * 528
R2 = R1 + 2 * XN_RH
R4 = R2 + 28928
LDS_BYTES = R4 + 256
(CXN, CST, CWQ, CQ, CKV, CKM, CTAG, CA, CA2, CX, CH2, CR0, CWO, CAD, CF, CE0, CE1, CRW, CRC, CXI, CP1, CL1, CG, CTL, CWI, CGD, CGD1, CGD2, CGD3, CE7, COD, CHN) = [4 * i for i in range(32)]
RE = R2 + 18432
NE = 5
RB2 = R1 + 12 * KVS
assert RB2 % 128 == 0 and RB2 + 65536 <= R4
STAT = 128
assert R2 % 128 == 0
WS_KV = 0
WS_EPOCH = 0x30000
WS_KVF = 0x38000
WS_HF = 0x40000
WS_O = 0x100000
WS_H = 0x400000
WS_STAMP = 0x1000000
sX, sWQ, sWKV, sWO, sW1, sW2, sOUT, sWS = 8, 12, 16, 20, 24, 28, 32, 40
sMASK, sF, sSPIN, sFLG = 44, 45, 46, 47
sWAVE, sRB, sCB, sT0, sT1, sT2, sOFF, sOFF2, sCNT, sSEG = 70, 71, 72, 73, 74, 75, 76, 77, 78, 79
sRG, sOB, sTAG, sTILE, sRING, sW2T, sU0, sU1, sE1, sE2, sXO = 3, 6, 7, 36, 37, 38, 39, 60, 61, 62, 63
sCH = 64
sOA = 52
sSTAMP = 80
vH, vCG, vR, vC, vTR, vXN0, vXN1, vSW, vW1, vL16, vT0, vT1, vSP = 212, 213, 214, 215, 216, 217, 218, 219, 220, 221, 222, 223, 224
vTCH = 225
vSD = 228

class Opt:
    stamps = False
    front = False
    force_fallback = False
    thr = 40.0
    exit_at = 0
    spin = 0x20000
    pace1 = 0
    pace2 = 0
    kvsleep = 1
    kvdelay = 32
    kvtouch = True
    warm2 = True
    touch = 0
    fstart = 2
    twq = True
    wqdepth = 40
    fprio = 0
    outf = ''
    echo = ()
    emul = 1
    NR = 4
    dense = 32
    twait = 1
    nomf2 = False
    nold2 = 0
    ctouch = True
    mid = False
    wo_at = 20
    ntouch = 4
    full = True
    stouch = 0
    late2 = 28
    xr_early = True
    fprio1 = 0
    rot = 14
    la1 = True
    dyn = True
    osleep = 2
    hint = True
    hsleep = 2
    pos = (1, 4, 10)
    fgo = 1
    glate = True
    p7 = 0
    mimic = True
    noatt_tail = False
    jst = False
    e1pos = 1
    t7 = False
    npre = 0
    ph = 8
    pipe = 0
    prefirst = False
    hold = 21
    mkearly = True
    early_poll = 0
    epre = 0
    onep = False
    pslack = 0
    hfl = 'sc1'
    t2at = 99
    wot = True
    dense2 = 0
    htouch = False
    lnclk = False

def gen(opt):
    e = E()
    uid = [0]
    inatt = [True]
    def lbl(p):
        uid[0] += 1
        return f"L_{p}_{uid[0]}"
    def stamp(k, when=None):
        if when == "front" and not opt.front: return
        if when == "late" and (opt.front or (opt.jst and k in (1, 2, 3) and inatt[0])): return
        if opt.stamps:
            e.i(f"s_memrealtime {S(sSTAMP+2*k,2)}")
    def cstamp(k):
        if opt.stamps:
            e.i(f"s_memtime {S(sSTAMP+2*k,2)}")
    def dump_stamps():
        if not opt.stamps or opt.echo:
            return
        e.wait_all(vm=True, lg=True)
        e.i("v_mov_b32 v2, 0")
        e.i("v_mbcnt_lo_u32_b32 v1, -1, 0")
        e.i("v_mbcnt_hi_u32_b32 v1, -1, v1")
        for k in range(22):
            e.i(f"v_writelane_b32 v2, s{sSTAMP+k}, {k}")
        e.i(f"s_getreg_b32 s{sT0}, hwreg(HW_REG_XCC_ID)")
        e.i(f"v_writelane_b32 v2, s{sT0}, 22")
        e.i(f"s_lshl_b32 s{sT0}, s2, 3")
        e.i(f"s_add_u32 s{sT0}, s{sT0}, s{sWAVE}")
        e.i(f"s_lshl_b32 s{sT0}, s{sT0}, 8")
        e.i(f"s_add_u32 s{sT0}, s{sT0}, {WS_STAMP}")
        e.i("v_lshlrev_b32 v3, 2, v1")
        e.i(f"buffer_store_dword v2, v3, {S(sWS,4)}, s{sT0} offen")
    def exit_if(k):
        if opt.exit_at == k:
            dump_stamps()
            e.i("s_endpgm")
    def spin_init(mult=1):
        e.i(f"s_mov_b32 s{sSPIN}, {hex(opt.spin*mult)}")
    def spin_tail(top, done, sleep):
        e.i(f"s_sub_u32 s{sSPIN}, s{sSPIN}, 1")
        e.i(f"s_cbranch_scc1 {done}")
        if sleep:
            e.i(f"s_sleep {sleep}")
        e.i(f"s_branch {top}")
    def lds_signal(off, va=6):
        e.i("s_mov_b64 exec, 1")
        e.lds(f"ds_add_u32 v{va}, v7 offset:{off}")
        e.i("s_mov_b64 exec, -1")
    def lds_poll(off, n, vt=5, sleep=1, va=6):
        top, done = lbl("lp"), lbl("lpd")
        spin_init(16)
        e.label(top)
        e.i(f"ds_read_b32 v{vt}, v{va} offset:{off}")
        e.wait_all(lg=True)
        e.i(f"v_readfirstlane_b32 s{sT0}, v{vt}")
        e.i(f"s_cmp_ge_u32 s{sT0}, {n}")
        e.i(f"s_cbranch_scc1 {done}")
        spin_tail(top, done, sleep)
        e.label(done)
    def kv_dma(n, soff, sl, gstep, lstep):
        for i in range(n):
            e.i(f"s_mov_b32 m0, s{sl}")
            e.i(f"s_add_u32 s{sl}, s{sl}, {lstep*KVS}")
            for p in range(2):
                e.vmem(f"buffer_load_dwordx4 v{vL16}, {S(sWS,4)}, s{soff} offen offset:{1024*p} sc1 lds", ("kv", i))
            e.i(f"s_add_u32 s{soff}, s{soff}, {gstep*2048}")
    def setup():
        e.i(f"s_mov_b64 {S(sWQ,2)}, s[50:51]")
        e.i(f"s_mov_b64 {S(sWO,2)}, s[56:57]")
        e.i(f"s_mov_b64 {S(sW1,2)}, s[60:61]")
        e.i(f"s_mov_b64 {S(sW2,2)}, s[62:63]")
        e.i(f"s_mov_b64 {S(sOUT,2)}, s[64:65]")
        e.i(f"s_mov_b64 {S(sWS,2)}, s[68:69]")
        e.i(f"s_lshl_b32 s{sFLG}, s{sRB}, 10")
        e.i(f"s_add_u32 s{sFLG}, s{sFLG}, {hex(WS_HF)}")
        e.i(f"s_mul_i32 s{sRING}, s{sF}, 6144")
        e.i(f"s_add_u32 s{sRING}, s{sRING}, {R2}")
        e.i(f"s_lshl_b32 s{sT0}, s{sRB}, 5")
        e.i(f"s_lshl_b32 s{sT1}, s{sCB}, 2")
        e.i(f"s_add_u32 s{sT0}, s{sT0}, s{sT1}")
        e.i(f"s_and_b32 s{sT1}, s{sF}, 1")
        e.i(f"s_lshl_b32 s{sXO}, s{sT1}, 6")
        e.i(f"s_lshl_b32 s{sT1}, s{sT1}, 1")
        e.i(f"s_add_u32 s{sT0}, s{sT0}, s{sT1}")
        e.i(f"s_lshl_b32 s{sT0}, s{sT0}, 1")
        e.i(f"s_lshr_b32 s{sT1}, s{sF}, 1")
        e.i(f"s_add_u32 s{sT0}, s{sT0}, s{sT1}")
        e.i(f"s_lshl_b32 s{sT0}, s{sT0}, 10")
        e.i(f"s_add_u32 s{sOB}, s{sT0}, {WS_O}")
        e.i(f"s_lshl_b32 s{sT0}, s{sRB}, 1")
        e.i(f"s_add_u32 s{sT0}, s{sT0}, s{sT1}")
        e.i(f"s_lshl_b32 s{sT0}, s{sT0}, 15")
        e.i(f"s_add_u32 s{sXO}, s{sXO}, s{sT0}")
        e.i(f"s_lshl_b32 s{sT0}, s{sCB}, 7")
        e.i(f"s_add_u32 s{sXO}, s{sXO}, s{sT0}")
        e.i("v_lshrrev_b32 v5, 2, v1")
        e.i("v_and_b32 v5, 4, v5")
        e.i("v_xor_b32 v5, v5, v3")
        e.i("v_lshlrev_b32 v5, 4, v5")
        e.i(f"v_lshl_add_u32 v{vSW}, v2, 10, v5")
        e.i(f"v_mul_u32_u24 v{vW1}, 3584, v2")
        e.i(f"v_add_u32 v{vW1}, v{vW1}, v5")
        e.i(f"v_lshlrev_b32 v{vL16}, 4, v1")
        e.i(f"v_lshrrev_b32 v{vH}, 5, v1")
        e.i(f"v_bfe_u32 v{vCG}, v1, 4, 1")
        e.i(f"v_bfe_u32 v{vR}, v1, 2, 2")
        e.i(f"v_and_b32 v{vC}, 3, v1")
        e.i(f"v_lshrrev_b32 v4, 1, v{vC}")
        e.i(f"v_lshl_add_u32 v4, v{vCG}, 1, v4")
        e.i(f"v_lshlrev_b32 v5, 1, v{vR}")
        e.i("v_and_b32 v5, 4, v5")
        e.i("v_xor_b32 v4, v4, v5")
        e.i(f"v_lshlrev_b32 v{vTR}, 7, v{vR}")
        e.i(f"v_lshl_add_u32 v{vTR}, v4, 4, v{vTR}")
        e.i(f"v_and_b32 v5, 1, v{vC}")
        e.i(f"v_lshl_add_u32 v{vTR}, v5, 3, v{vTR}")
        e.i("v_and_b32 v5, 31, v1")
        e.i(f"v_mul_u32_u24 v{vXN0}, 528, v{vH}")
        e.i(f"v_lshl_add_u32 v{vXN0}, v5, 4, v{vXN0}")
        e.i(f"v_add_u32 v{vXN0}, {R1}, v{vXN0}")
        e.i(f"v_add_u32 v{vXN1}, {XN_RH}, v{vXN0}")
        e.i("v_lshlrev_b32 v205, 10, v5")
        e.i(f"v_lshl_add_u32 v205, v{vH}, 3, v205")
        e.i(f"v_mul_u32_u24 v{vSP}, {KVS}, v5")
        e.i(f"v_lshl_add_u32 v{vSP}, v{vH}, 4, v{vSP}")
        e.i(f"v_subrev_u32 v{vSD}, 1, v{vH}")
        e.i(f"v_and_b32 v{vSD}, 0x3f803f80, v{vSD}")
        for r in range(1, 4):
            e.i(f"v_mov_b32 v{vSD+r}, v{vSD}")
        e.i("v_and_b32 v4, 15, v1")
        e.i(f"v_lshl_add_u32 v4, v{vH}, 4, v4")
        e.i("v_lshlrev_b32 v203, 4, v4")
        e.i(f"v_lshl_add_u32 v{vT0}, v{vH}, 10, v{vTR}")

    e.i("s_cmp_ge_u32 s2, 256")
    e.i("s_cbranch_scc1 L_end")
    e.i("s_load_dwordx16 s[48:63], s[0:1], 0")
    e.i("s_load_dwordx2 s[64:65], s[0:1], 64")
    e.i("s_load_dwordx2 s[68:69], s[0:1], 80")
    stamp(0)
    e.i("v_lshrrev_b32 v2, 6, v0")
    e.i("v_and_b32 v1, 63, v0")
    e.i(f"v_readfirstlane_b32 s{sWAVE}, v2")
    e.c("workgroup -> (row block rb, column block cb); ids that share id&7 share half of the columns and 1/4 of the rows")
    e.i(f"s_and_b32 s{sT0}, s2, 7")
    e.i(f"s_lshr_b32 s{sT1}, s2, 3")
    e.i(f"s_and_b32 s{sCB}, s{sT1}, 3")
    e.i(f"s_lshl_b32 s{sCB}, s{sCB}, 1")
    e.i(f"s_and_b32 s{sRB}, s{sT0}, 1")
    e.i(f"s_add_u32 s{sCB}, s{sCB}, s{sRB}")
    e.i(f"s_lshr_b32 s{sT1}, s{sT1}, 2")
    e.i(f"s_lshr_b32 s{sRB}, s{sT0}, 1")
    e.i(f"s_lshl_b32 s{sRB}, s{sRB}, 3")
    e.i(f"s_add_u32 s{sRB}, s{sRB}, s{sT1}")
    e.i(f"s_mov_b32 s{sMASK}, 0xffff0000")
    e.i(f"s_and_b32 s{sF}, s{sWAVE}, 3")
    e.c("row group of this wave: (w + 2*rq + 3) & 7 -> waves 5,6 hold the 16 rows of this workgroup's K/V tile")
    e.i(f"s_and_b32 s{sRG}, s{sCB}, 6")
    e.i(f"s_add_u32 s{sRG}, s{sRG}, s{sWAVE}")
    e.i(f"s_add_u32 s{sRG}, s{sRG}, 3")
    e.i(f"s_and_b32 s{sRG}, s{sRG}, 7")
    e.i("v_lshrrev_b32 v2, 3, v1")
    e.i("v_and_b32 v3, 7, v1")
    e.i("v_lshlrev_b32 v4, 10, v2")
    e.i("v_lshl_add_u32 v4, v3, 4, v4")
    e.i(f"s_lshl_b32 s{sOFF}, s{sRB}, 3")
    e.i(f"s_add_u32 s{sOFF}, s{sOFF}, s{sRG}")
    e.i(f"s_lshl_b32 s{sOFF}, s{sOFF}, 13")
    for srd, size in ((sX, 2048*512*2), (sWQ, 512*512*2), (sWKV, 512*16*2), (sWO, 512*512*2), (sW1, 512*1792*2),
                      (sW2, 1792*512*2), (sOUT, 2048*512*2), (sWS, 0x10000000)):
        e.i(f"s_mov_b32 s{srd+2}, {hex(size)}")
        e.i(f"s_mov_b32 s{srd+3}, 0x20000")
    e.i(f"v_mov_b32 v6, {R4}")
    e.i("v_mov_b32 v7, 1")
    e.i("v_mov_b64 v[108:109], 0")
    e.i("v_and_b32 v105, 15, v1")
    e.i("v_lshl_add_u32 v105, v105, 3, v6")
    e.i("ds_write_b64 v105, v[108:109]")
    e.i(f"s_mov_b32 s{sSEG}, 0")
    e.i(f"s_cmp_eq_u32 s{sWAVE}, 7")
    e.i("s_cbranch_scc1 L_pre_7")
    e.i("s_waitcnt lgkmcnt(0)")
    e.i(f"s_mov_b64 {S(sX,2)}, s[48:49]")
    e.i(f"s_cmp_eq_u32 s{sWAVE}, 4")
    e.i("s_cbranch_scc1 L_pre_4")
    e.i(f"s_cmp_ge_u32 s{sWAVE}, 5")
    e.i("s_cbranch_scc1 L_pre_first")
    e.i("s_barrier")
    e.label("L_pre_first")
    for i in range(8):
        e.i(f"buffer_load_dwordx4 {V(8+4*i,4)}, v4, {S(sX,4)}, s{sOFF} offen offset:{128*i}")
    e.i("s_cbranch_scc0 L_pre_second")
    e.i("s_barrier")
    e.label("L_pre_second")
    e.i(f"s_cmp_eq_u32 s{sWAVE}, 0")
    e.i("s_cbranch_scc1 L_pre_dbl")
    e.i(f"s_cmp_lg_u32 s{sWAVE}, 3")
    e.i("s_cbranch_scc1 L_pre_n3")
    e.label("L_pre_dbl")
    e.c("waves 0,3 also normalise the rows waves 4,7 would have had (row group ^ 4)")
    e.i(f"s_xor_b32 s{sOFF}, s{sOFF}, 0x8000")
    for i in range(8):
        e.i(f"buffer_load_dwordx4 {V(128+4*i,4)}, v4, {S(sX,4)}, s{sOFF} offen offset:{128*i}")
    e.i(f"s_mov_b32 s{sSEG}, 1")
    e.label("L_pre_n3")
    lds_signal(CXI)
    setup()
    e.i(f"s_cmp_ge_u32 s{sWAVE}, 4")
    e.i("s_cbranch_scc1 L_pre_56")
    S0, S1, P0, P1, OA, OB, NMA, NMB, QA, QB, KB, VB = 32, 48, 64, 72, 80, 96, 112, 128, 144, 148, 152, 168
    vK, vV0, vV1, vVG, vVC = 200, 201, 202, 203, 204
    e.i("s_setprio 1")
    e.i(f"s_and_b32 s{sT1}, s{sWAVE}, 1")
    e.i(f"s_lshl_b32 s{sT2}, s{sT1}, 6")
    e.i(f"v_xor_b32 v{vT0}, s{sT2}, v{vT0}")
    e.i(f"s_lshr_b32 s{sT1}, s{sWAVE}, 1")
    e.i(f"s_mul_i32 s{sT1}, s{sT1}, {XN_RH}")
    e.i(f"v_add_u32 v{vXN0}, s{sT1}, v{vXN0}")
    e.i(f"v_add_u32 v{vK}, {RE}, v{vL16}")
    e.i("v_and_b32 v5, 11, v1")
    e.i("v_cmp_ne_u32 vcc, 0, v5")
    e.i(f"v_mov_b32 v4, {RE+2048}")
    e.i(f"v_mov_b32 v5, {RE+2064}")
    e.i(f"v_add_u32 v{vV0}, {RE+1024}, v{vVG}")
    e.i("v_cndmask_b32 v4, v4, v5, vcc")
    e.i(f"v_cmp_eq_u32 vcc, 0, v{vCG}")
    e.i(f"v_add_u32 v{vV1}, {RE+1536}, v{vVG}")
    e.i("v_mov_b32 v207, 0xdddddddd")
    e.nop(1)
    e.i(f"v_cndmask_b32 v{vV0}, v4, v{vV0}, vcc")
    e.i(f"v_cndmask_b32 v{vV1}, v4, v{vV1}, vcc")
    if opt.stouch:
        e.c("scalar touches of w1 -> L2: wave w takes line column w, rows (rb&7) + 8i")
        e.i(f"s_and_b32 s{sT0}, s{sRB}, 7")
        e.i(f"s_mul_i32 s{sT0}, s{sT0}, 3584")
        e.i(f"s_mul_i32 s{sT1}, s{sCB}, 448")
        e.i(f"s_add_u32 s{sT0}, s{sT0}, s{sT1}")
        e.i(f"s_lshl_b32 s{sT1}, s{sWAVE}, 7")
        e.i(f"s_add_u32 s{sT0}, s{sT0}, s{sT1}")
        e.i(f"s_add_u32 s4, s60, s{sT0}")
        e.i("s_addc_u32 s5, s61, 0")
        for i in range(opt.stouch):
            e.i(f"s_load_dword s{sU0}, s[4:5], {hex(i*8*3584)}")
    e.i(f"s_cmp_eq_u32 s{sSEG}, 1")
    e.i("s_cbranch_scc1 L_pre_w8")
    e.i("s_waitcnt vmcnt(0)")
    e.label("L_pre_w8")
    e.i("s_waitcnt vmcnt(8)")
    e.i("s_branch L_ln")

    def ffn_setup():
        e.i(f"s_and_b32 s{sTILE}, s{sCB}, 1")
        e.i(f"s_lshl_b32 s{sT1}, s{sF}, 1")
        e.i(f"s_add_u32 s{sTILE}, s{sTILE}, s{sT1}")
        e.i(f"v_add_u32 v{vT0}, s{sRING}, v{vT0}")
        e.i(f"v_xor_b32 v{vT1}, 64, v{vT0}")
    e.label("L_pre_4")
    if opt.ctouch:
        e.c("pull this kernel's code into L2: 16 lines per workgroup, the workgroups of an XCD cover all of it")
        e.i(f"s_getpc_b64 {S(sWKV,2)}")
        e.label("L_pc")
        e.i(f"s_mov_b32 s{sWKV+2}, L_code_end-L_pc")
        e.i(f"s_lshr_b32 s{sT0}, s2, 3")
        e.i(f"s_lshl_b32 s{sT0}, s{sT0}, 11")
        e.i("v_lshlrev_b32 v104, 7, v1")
        e.i("s_mov_b64 exec, 0xffff")
        e.i(f"buffer_load_dword v106, v104, {S(sWKV,4)}, s{sT0} offen")
        e.i("s_mov_b64 exec, -1")
    e.c("wave 4: loader.  wq slice -> R0 by DMA behind the x loads; touches 1/8 of the w1 slice -> L2")
    setup()
    ffn_setup()
    e.i(f"s_lshl_b32 s{sOFF}, s{sCB}, 7")
    e.i(f"s_mov_b32 s{sT1}, 0")
    if opt.rot & 1:
        e.i(f"s_and_b32 s{sT1}, s{sRB}, 7")
        e.i(f"s_lshl_b32 s{sT0}, s{sT1}, 16")
        e.i(f"s_add_u32 s{sOFF}, s{sOFF}, s{sT0}")
        e.i(f"s_lshl_b32 s{sT1}, s{sT1}, 13")
    e.i(f"s_mov_b32 s{sCNT}, 7")
    def touch_setup(so):
        e.i("v_lshrrev_b32 v105, 2, v1")
        e.i("v_mul_u32_u24 v105, 3584, v105")
        e.i(f"v_lshl_add_u32 v105, v{vC}, 7, v105")
        e.i(f"s_and_b32 s{so}, s{sRB}, 7")
        e.i(f"s_mul_i32 s{so}, s{so}, {16*3584}")
        e.i(f"s_mul_i32 s{sT0}, s{sCB}, 448")
        e.i(f"s_add_u32 s{so}, s{so}, s{sT0}")
    def touches(so=sT2, a=0, b=4):
        for i in range(a, b):
            e.i(f"s_add_u32 s{sU0}, s{so}, {i*128*3584}")
            e.i(f"buffer_load_dword v106, v105, {S(sW1,4)}, s{sU0} offen")
    touch_setup(sT2)
    if opt.twq:
        e.i("v_lshrrev_b32 v104, 2, v1")
        e.i("v_lshlrev_b32 v104, 10, v104")
        e.i(f"v_lshl_add_u32 v104, v{vC}, 8, v104")
        e.i(f"s_lshr_b32 s{sT0}, s2, 3")
        e.i(f"s_lshl_b32 s{sT0}, s{sT0}, 14")
        e.i(f"s_and_b32 s{sU0}, s{sCB}, 1")
        e.i(f"s_lshl_b32 s{sU0}, s{sU0}, 7")
        e.i(f"s_add_u32 s{sT0}, s{sT0}, s{sU0}")
    e.i("s_barrier")
    if opt.twq:
        e.i(f"buffer_load_dword v106, v104, {S(sWQ,4)}, s{sT0} offen")
    if opt.touch == 4:
        touches()
    lds_poll(CXI, 6, sleep=0)
    if opt.touch == 5:
        touches()
    e.label("L_wq_loop")
    for i in range(8):
        e.i(f"s_mov_b32 m0, s{sT1}")
        e.i(f"s_add_u32 s{sT1}, s{sT1}, 1024")
        e.i(f"buffer_load_dwordx4 v{vSW}, {S(sWQ,4)}, s{sOFF} offen lds")
        e.i(f"s_add_u32 s{sOFF}, s{sOFF}, 8192")
    e.i(f"s_and_b32 s{sOFF}, s{sOFF}, 0x7ffff")
    e.i(f"s_and_b32 s{sT1}, s{sT1}, 0xffff")
    e.i(f"s_waitcnt vmcnt({opt.wqdepth})")
    e.i(f"s_sub_u32 s{sCNT}, s{sCNT}, 1")
    e.i("s_cbranch_scc0 L_wq_loop")
    lds_signal(CWI)
    stamp(1, "front")
    if opt.touch == 1:
        touches()
    e.i(f"s_waitcnt vmcnt({4 if opt.touch == 1 else 0})")
    lds_signal(CWQ)
    stamp(8, "front")
    if opt.touch == 2 or (opt.touch == 3 and opt.ntouch < 4):
        lds_poll(CG, 4, sleep=2)
        touches(sT2, opt.ntouch if opt.touch == 3 else opt.stouch // 16, 4)
    e.i("s_branch L_ffn")

    e.label("L_pre_56")
    ffn_setup()
    e.i("s_setprio 3")
    e.i("s_waitcnt vmcnt(0)")

    e.label("L_ln")
    stamp(1, "front")
    if opt.lnclk:
        stamp(6); cstamp(9)
    X = 40
    A = 112
    e.i(f"s_lshr_b32 s{sT0}, s{sRG}, 2")
    e.i(f"s_mul_i32 s{sT0}, s{sT0}, {XN_RH}")
    e.i(f"s_and_b32 s{sT1}, s{sRG}, 3")
    e.i(f"s_lshl_b32 s{sT1}, s{sT1}, 7")
    e.i(f"s_add_u32 s{sT0}, s{sT0}, s{sT1}")
    e.i(f"s_add_u32 s{sT0}, s{sT0}, {R1}")
    e.i("v_mul_u32_u24 v122, 528, v3")
    e.i("v_lshl_add_u32 v122, v2, 4, v122")
    e.i(f"v_add_u32 v122, s{sT0}, v122")
    e.i(f"s_cmp_lt_u32 s{sWAVE}, 5")
    e.i("s_cbranch_scc1 L_ln_a")
    e.c("waves 5,6: raw rows -> LDS for the K/V wave")
    for i in range(8):
        e.i(f"ds_write_b128 v122, {V(8+4*i,4)} offset:{4224*i}")
    lds_signal(CRW)
    e.label("L_ln_a")
    e.i("v_mov_b32 v110, 0x3f803f80")
    e.i("v_mov_b64 v[112:113], 0")
    e.i("v_mov_b32 v108, 0x3f80")
    e.i("v_mov_b32 v109, 0x3f800000")
    for t in range(32):
        e.i(f"v_dot2c_f32_bf16 v{A+(t&1)}, v{8+t}, v110")
    def reduce_lanes():
        for m in ("quad_perm:[1,0,3,2]", "quad_perm:[2,3,0,1]", "row_half_mirror"):
            e.nop(2)
            e.i(f"v_add_f32_dpp v{A}, v{A}, v{A} {m} row_mask:0xf bank_mask:0xf")
    e.nop(3)
    e.i(f"v_add_f32 v{A}, v{A}, v{A+1}")
    reduce_lanes()
    def rnd(d, a):
        e.i(f"v_cvt_pk_bf16_f32 v{d}, v{a}, v{a}")
        e.i(f"v_and_b32 v{d}, s{sMASK}, v{d}")
    if opt.mimic:
        e.c("row statistics are rounded to bf16 where the reference rounds them")
        e.i(f"v_mul_f32 v121, {hex(f32bits(-1.0/512))}, v{A}")
        rnd(120, 121)
        e.i("v_sub_f32 v121, v121, v120")
    else:
        e.i(f"v_mul_f32 v120, {hex(f32bits(-1.0/512))}, v{A}")
    for t in range(32):
        e.i(f"v_dot2_f32_bf16 v{X+2*t}, v{8+t}, v108, v120")
        e.i(f"v_dot2_f32_bf16 v{X+2*t+1}, v{8+t}, v109, v120")
    for t in range(32):
        a = t % 4
        if t < 4:
            e.i(f"v_pk_mul_f32 {V(A+2*a,2)}, {V(X+2*t,2)}, {V(X+2*t,2)}")
        else:
            e.i(f"v_pk_fma_f32 {V(A+2*a,2)}, {V(X+2*t,2)}, {V(X+2*t,2)}, {V(A+2*a,2)}")
    e.i(f"v_pk_add_f32 {V(A,2)}, {V(A,2)}, {V(A+2,2)}")
    e.i(f"v_pk_add_f32 {V(A+4,2)}, {V(A+4,2)}, {V(A+6,2)}")
    e.i(f"v_pk_add_f32 {V(A,2)}, {V(A,2)}, {V(A+4,2)}")
    e.i(f"v_add_f32 v{A}, v{A}, v{A+1}")
    reduce_lanes()
    if opt.mimic:
        e.i(f"v_mul_f32 v119, {hex(f32bits(1.0/512))}, v{A}")
        e.i("v_fma_f32 v119, -v121, v121, v119")
        e.i("v_max_f32 v119, 0, v119")
        rnd(119, 119)
        e.i(f"v_add_f32 v119, {hex(f32bits(1e-5))}, v119")
        rnd(119, 119)
        e.i("v_sqrt_f32 v119, v119")
        e.nop(1)
        rnd(119, 119)
        e.i("v_rcp_f32 v118, v119")
    else:
        e.i(f"v_mov_b32 v119, {hex(f32bits(1e-5))}")
        e.i(f"v_fmac_f32 v119, {hex(f32bits(1.0/512))}, v{A}")
        e.i("v_rsq_f32 v118, v119")
    e.i(f"s_cmp_lt_u32 s{sWAVE}, 5")
    e.i("s_cbranch_scc1 L_ln_b")
    e.c("waves 5,6: hand the row statistics to the K/V wave")
    e.i(f"s_lshl_b32 s{sT0}, s{sWAVE}, 5")
    e.i(f"s_add_u32 s{sT0}, s{sT0}, {R4 + STAT - 160}")
    e.i(f"v_lshl_add_u32 v111, v2, 2, s{sT0}")
    e.i("ds_write2_b32 v111, v120, v118 offset1:16")
    lds_signal(CST)
    lds_poll(CRC, 1, sleep=0)
    e.label("L_ln_b")
    e.lg = []
    for i in range(8):
        for t in range(4*i, 4*i+4):
            e.i(f"v_pk_mul_f32 {V(X+2*t,2)}, {V(X+2*t,2)}, v[118:119] op_sel_hi:[1,0]")
        for t in range(4*i, 4*i+4):
            e.i(f"v_cvt_pk_bf16_f32 v{8+t}, v{X+2*t}, v{X+2*t+1}")
        e.lds(f"ds_write_b128 v122, {V(8+4*i,4)} offset:{4224*i}")
    lds_signal(CXN)
    e.i(f"s_cmp_eq_u32 s{sSEG}, 0")
    e.i("s_cbranch_scc1 L_ln_done")
    e.i(f"s_mov_b32 s{sSEG}, 0")
    e.i(f"s_xor_b32 s{sRG}, s{sRG}, 4")
    e.i("s_waitcnt vmcnt(0)")
    for t in range(0, 32, 2):
        e.i(f"v_mov_b64 {V(8+t,2)}, {V(128+t,2)}")
    e.i("s_branch L_ln")
    e.label("L_ln_done")
    stamp(8, "front")
    if opt.lnclk:
        stamp(7); cstamp(10)
    e.i(f"s_cmp_ge_u32 s{sWAVE}, 4")
    e.i("s_cbranch_scc1 L_ffn")

    e.vm = []
    lds_poll(CWQ, 1, sleep=0)
    for q in range(4):
        e.i(f"buffer_load_dwordx2 {V(232+2*q,2)}, v205, {S(sX,4)}, s{sXO} offen offset:{16*q}")
    lds_poll(CXN, 9, sleep=0)
    stamp(2, "front")
    fill = [f"v_mov_b64 {V(OA+r,2)}, 0" for r in range(0, 32, 2)]
    e.c("Q projection: wave w -> head pair hp=w&1, row half rh=w>>1")
    def qreads(ks):
        s = ks % 4
        e.lds(f"ds_read_b64_tr_b16 {V(32+8*s,2)}, v{vT0} offset:{ks*2048}", ("q", ks))
        e.lds(f"ds_read_b64_tr_b16 {V(34+8*s,2)}, v{vT0} offset:{ks*2048+512}", ("q", ks))
        e.lds(f"ds_read_b128 {V(36+8*s,4)}, v{vXN0} offset:{ks*1056}", ("q", ks))
    for ks in range(4):
        qreads(ks)
    for ks in range(32):
        s = ks % 4
        e.wait(lg=("q", ks))
        e.i(f"{MF32} v[8:23], {V(32+8*s,4)}, {V(36+8*s,4)}, {'0' if ks == 0 else 'v[8:23]'}")
        if ks + 4 < 32:
            qreads(ks + 4)
        if ks == 27:
            lds_signal(CQ)
        if fill:
            e.i(fill.pop(0))
    e.i(f"s_mov_b32 s{sT1}, {hex(f32bits(0.25*math.log2(math.e)))}")
    e.nop(11)
    for r in range(16):
        e.i(f"v_mul_f32 v{8+r}, s{sT1}, v{8+r}")
    for hd in range(2):
        b = 8 + 8*hd
        e.i(f"v_mul_f32 v{24+hd}, v{b}, v{b}")
        for r in range(1, 8):
            e.i(f"v_fmac_f32 v{24+hd}, v{b+r}, v{b+r}")
    e.i("v_mov_b32 v26, v24")
    e.i("v_mov_b32 v27, v25")
    for hd in range(2):
        for j in range(4):
            e.i(f"v_cvt_pk_bf16_f32 v{QA+4*hd+j}, v{8+8*hd+2*j}, v{8+8*hd+2*j+1}")
    e.i("v_permlane32_swap_b32 v24, v26")
    e.i("v_permlane32_swap_b32 v25, v27")
    e.i("v_add_f32 v24, v24, v26")
    e.i("v_add_f32 v25, v25, v27")
    stamp(3, "front")
    lds_poll(CKV, 2, sleep=0)
    stamp(4)
    e.lds(f"ds_read_b32 v206, v6 offset:{CTAG}")
    e.lds(f"ds_read_b32 v30, v6 offset:{CKM}")
    e.wait_all(lg=True)
    e.c("stand-in for the row max: |q| * max|k| >= max_k q.k ; used only while it cannot be far above the true max")
    e.i("v_mul_f32 v24, v24, v30")
    e.i("v_mul_f32 v25, v25, v30")
    e.i("v_sqrt_f32 v24, v24")
    e.i("v_sqrt_f32 v25, v25")
    e.i(f"s_mov_b32 s{sT1}, {hex(f32bits(opt.thr))}")
    e.i("v_max_f32 v26, v24, v25")
    e.i(f"v_cmp_nge_f32 vcc, s{sT1}, v26")
    e.i("v_cmp_u_f32 s[4:5], v24, v25")
    e.i("s_or_b64 s[4:5], s[4:5], vcc")
    if opt.force_fallback:
        e.i("s_branch L_fallback")
    else:
        e.i("s_cbranch_scc1 L_fallback")
    e.label("L_att_start")
    for r in range(16):
        e.i(f"v_sub_f32 v{NMA+r}, 0, v24")
        e.i(f"v_sub_f32 v{NMB+r}, 0, v25")
    lds_poll(CE7, 1, sleep=0)
    for j in range(3):
        e.lds(f"ds_read_b128 {V(KB+4*j,4)}, v{vK} offset:{j*KVS}", ("a", j))
        e.lds(f"ds_read_b128 {V(VB+8*j,4)}, v{vV0} offset:{j*KVS}")
        e.lds(f"ds_read_b128 {V(VB+8*j+4,4)}, v{vV1} offset:{j*KVS}")
    e.wait(lg=("a", 0))
    e.i(f"{MF32} {V(S0,16)}, {V(KB,4)}, {V(QA,4)}, {V(NMA,16)}")
    e.nop(11)
    e.wait_all(lg=True)
    stamp(5)
    def em(t):
        if t.endswith(":"): e.raw(t)
        else: e.i(t)
    def step(cur, oth, K, Q, NM, O, V0, Op, V1p, after, noqk=False, nopv=False):
        for i in range(16):
            e.i(f"v_exp_f32 v{cur+i}, v{cur+i}")
            if i == opt.pos[0]:
                if not nopv:
                    e.i(f"{SMF} {V(Op,16)}, {V(V1p,4)}, {V(oth+8,8)}, v207")
                for t in after[0]: em(t)
            if i == opt.pos[1]:
                if not noqk:
                    e.i(f"{MF32} {V(oth,16)}, {V(K,4)}, {V(Q,4)}, {V(NM,16)}")
                for t in after[1]: em(t)
            if i == opt.pos[2]:
                e.i(f"{SMF} {V(O,16)}, {V(V0,4)}, {V(cur,8)}, v207")
                for t in after[2]: em(t)
    def shift(d):
        return [f"v_add_u32 v{v}, {hex(d & 0xffffffff)}, v{v}" for v in (vK, vV0, vV1)]
    if opt.full:
        slow = []
        SIG = lambda off: ["s_mov_b64 exec, 1", f"ds_add_u32 v6, v7 offset:{off}", "s_mov_b64 exec, -1"]
        def CHK(name, off, n):
            slow.append((name, off, n))
            return [f"v_readfirstlane_b32 s{sT0}, v5", f"s_cmp_ge_u32 s{sT0}, {n}", f"s_cbranch_scc0 L_slow_{name}", f"L_back_{name}:"]
        PRE = lambda off: [f"ds_read_b32 v5, v6 offset:{off}"]
        J0 = NE - 3
        for j in range(64):
            b3 = (j + 3) % 4
            slot = j + 3 if j < J0 else (j - J0 if j < J0 + 32 else (j - J0 - 32 if j < J0 + 47 else j - J0 - 47))
            off = slot * KVS
            rd = j + 3 < 64
            A = [[], [f"ds_read_b128 {V(KB+4*b3,4)}, v{vK} offset:{off}"] if rd else [], []]
            Bq = [[f"ds_read_b128 {V(VB+8*b3,4)}, v{vV0} offset:{off}"] if rd else [],
                  [f"ds_read_b128 {V(VB+8*b3+4,4)}, v{vV1} offset:{off}"] if rd else [],
                  [f"s_waitcnt lgkmcnt({2 if rd else 0})"] if j % 2 == 1 and j < 62 else []]
            assert J0 % 2 == 0
            if j == J0 - 1:
                A[2] += PRE(CA)
                Bq[2] += CHK("a", CA, 1) + SIG(CG) + shift(-RE)
            if j in (J0 + 7, J0 + 15, J0 + 23):
                A[2] += PRE(CA)
                Bq[2] += CHK(f"a{j}", CA, (j - J0 + 1) // 8 + 1)
            if j == J0 + 15:
                Bq[2] += SIG(CP1)
            if j == 31 and opt.stamps and not opt.lnclk:
                Bq[2] += [f"s_memrealtime {S(sSTAMP+12,2)}", f"s_memtime {S(sSTAMP+18,2)}"]
            if j == J0 + 31:
                A[2] += PRE(CL1)
                Bq[2] += CHK("l1", CL1, 4)
            if j == J0 + 45:
                A[2] += PRE(CH2)
                Bq[2] += CHK("h2", CH2, 4)
            if j == J0 + 46:
                Bq[2] += SIG(CR0) + shift(R1)
            if opt.jst and j in (1, 9, 17, 25):
                Bq[2] += [f"s_memrealtime {S(sSTAMP+2*{1:1,9:2,17:3,25:4}[j],2)}"]
            if j == 62:
                A[1] += ["s_waitcnt vmcnt(0)"]
            step(S0, S1, KB+4*(j % 4), QB, NMB, OA, VB+8*(j % 4), OB, VB+8*((j-1) % 4)+4, A, nopv=(j == 0))
            step(S1, S0, KB+4*((j+1) % 4), QA, NMA, OB, VB+8*(j % 4), OA, VB+8*(j % 4)+4, Bq, noqk=(j == 63))
    e.label("L_att_done")
    if not opt.lnclk:
        stamp(7)
        cstamp(10)
    e.i(f"v_rcp_f32 v24, v{OA+8}")
    e.i("s_nop 0")
    e.i(f"{SMF} {V(OB,16)}, {V(VB+28,4)}, {V(S1+8,8)}, v207")
    e.lg = []
    lds_signal(CAD)
    for hd, O in enumerate((OA, OB)):
        if hd == 1:
            e.i(f"v_rcp_f32 v24, v{OB+8}")
            e.nop(1)
        for r in range(8):
            e.i(f"v_mul_f32 v{O+r}, v{O+r}, v24")
        for j in range(4):
            e.i(f"v_cvt_pk_bf16_f32 v{8+4*hd+j}, v{O+2*j}, v{O+2*j+1}")
        for j in range(4):
            e.i(f"v_min_u32 v{8+4*hd+j}, -2, v{8+4*hd+j}")
        e.vmem(f"buffer_store_dwordx4 {V(8+4*hd,4)}, v{vL16}, {S(sWS,4)}, s{sOB} offen offset:{2048*hd} sc1")
    if opt.hint:
        e.c("hint for the readers (the data itself is checked against the marker)")
        e.i(f"s_lshl_b32 s{sT0}, s{sCB}, 7")
        e.i(f"s_lshl_b32 s{sT1}, s{sF}, 2")
        e.i(f"s_add_u32 s{sT0}, s{sT0}, s{sT1}")
        e.i(f"s_add_u32 s{sFLG}, s{sFLG}, 0x10000")
        e.i(f"s_add_u32 s{sT0}, s{sT0}, s{sFLG}")
        e.i("s_mov_b64 exec, 1")
        e.i(f"buffer_store_dword v206, v{vL16}, {S(sWS,4)}, s{sT0} offen sc1")
        e.i("s_mov_b64 exec, -1")
        e.i(f"v_readfirstlane_b32 s{sTAG}, v206")
        e.i(f"v_lshlrev_b32 v16, 7, v{vC}")
        e.i("v_and_b32 v17, 4, v1")
        e.i("v_add_u32 v16, v16, v17")
        e.i(f"s_and_b32 s{sT0}, s{sF}, 1")
        e.i(f"s_lshl_b32 s{sT0}, s{sT0}, 9")
        e.i(f"s_add_u32 s{sFLG}, s{sFLG}, s{sT0}")
        e.i(f"s_and_b32 s{sT0}, s{sF}, 2")
        e.i(f"s_lshl_b32 s{sT0}, s{sT0}, 2")
        e.i(f"s_add_u32 s{sFLG}, s{sFLG}, s{sT0}")
    if opt.early_poll:
        e.c("the own workgroup's line is not read: its stores are known drained through LDS (read a neighbour twice instead)")
        e.i(f"s_and_b32 s{sT0}, s{sF}, 1")
        e.i(f"s_lshl_b32 s{sT0}, s{sT0}, 2")
        e.i(f"s_sub_u32 s{sT0}, s{sCB}, s{sT0}")
        e.i(f"v_cmp_eq_u32 vcc, s{sT0}, v{vC}")
        e.i("v_xor_b32 v17, 0x80, v16")
        e.i("s_mov_b64 s[4:5], -1")
        e.i("v_cndmask_b32 v16, v16, v17, vcc")
        if opt.early_poll == 1:
            e.i(f"buffer_load_dword v17, v16, {S(sWS,4)}, s{sFLG} offen sc1")
    stamp(8, "late")
    if opt.noatt_tail:
        dump_stamps()
        e.i("s_endpgm")
    e.c("output projection: wave w -> row half w>>1, K half w&1, both column tiles (own tile first)")
    G, XR, OF = 104, 120, 40
    e.i(f"v_mov_b32 v0, v{vL16}")
    e.i("v_mov_b32 v3, v205")
    e.i(f"s_and_b32 s{sT1}, s{sF}, 1")
    e.i(f"s_lshr_b32 s{sT2}, s{sF}, 1")
    e.i(f"s_lshl_b32 s{sT0}, s{sRB}, 6")
    e.i(f"s_add_u32 s{sT0}, s{sT0}, s{sT2}")
    e.i(f"s_lshl_b32 s{sT2}, s{sT1}, 5")
    e.i(f"s_add_u32 s{sT0}, s{sT0}, s{sT2}")
    e.i(f"s_lshl_b32 s{sT0}, s{sT0}, 10")
    e.i(f"s_add_u32 s{sOFF}, s{sT0}, {WS_O}")
    for g in range(4):
        e.i(f"s_add_u32 s{sCH+g}, s{sCB}, {1+g}")
        e.i(f"s_and_b32 s{sCH+g}, s{sCH+g}, 3")
        e.i(f"s_lshl_b32 s{sCH+g}, s{sCH+g}, 13")
        e.i(f"s_add_u32 s{sOA+2*g}, s{sOFF}, s{sCH+g}")
        e.i(f"s_add_u32 s{sOA+2*g+1}, s{sOA+2*g}, 4096")
    if opt.echo: stamp(9)
    lds_poll(CWO, 4, sleep=1)
    if opt.echo: stamp(10)
    def oloads(g):
        for i in range(4):
            e.i(f"buffer_load_dwordx4 {V(OF+16*g+4*i,4)}, v0, {S(sWS,4)}, s{sOA+2*g+(i>>1)} offen offset:{2048*(i&1)} sc1")
    if not opt.hint:
        for g in range(3):
            oloads(g)
    e.i(f"s_mul_i32 s{sT0}, s{sT1}, {32768+64}")
    e.i(f"v_lshl_add_u32 v2, v{vH}, 9, v{vTR}")
    e.i(f"v_xor_b32 v2, s{sT0}, v2")
    for g in range(4):
        e.i(f"v_add_u32 v{G+2*g}, s{sCH+g}, v2")
        e.i(f"v_xor_b32 v{G+2*g+1}, 64, v{G+2*g}")
    for q in range(4):
        e.i(f"v_mov_b64 {V(XR+2*q,2)}, {V(232+2*q,2)}")
    if opt.early_poll == 3:
        e.i(f"buffer_load_dword v17, v16, {S(sWS,4)}, s{sFLG} offen sc1")
    for i in range(16):
        for c2 in range(2):
            for t in range(2):
                e.lds(f"ds_read_b64_tr_b16 {V(128+8*i+4*c2+2*t,2)}, v{G+2*(i//4)+c2} offset:{(i%4)*2048+1024*t}")
    e.i(f"s_lshl_b32 s{sT2}, s{sF}, 12")
    e.i(f"s_add_u32 s{sT1}, s{sT2}, {R1}")
    e.i(f"v_add_u32 v1, s{sT1}, v0")
    e.i(f"s_xor_b32 s{sT2}, s{sT2}, 4096")
    e.i(f"s_add_u32 s{sT2}, s{sT2}, {R1}")
    e.i(f"v_add_u32 v2, s{sT2}, v0")
    e.i(f"s_and_b32 s{sT2}, s{sF}, 2")
    e.i(f"s_lshl_b32 s{sT2}, s{sT2}, 1")
    e.i(f"v_add_u32 v4, s{sT2}, v6")
    e.i(f"s_mov_b32 s{sSEG}, 0")
    e.i(f"s_mov_b32 s{sCNT}, {hex(opt.spin)}")
    if opt.early_poll:
        e.i("s_waitcnt vmcnt(0)")
        lds_signal(COD)
        lds_poll(COD, 4, sleep=0)
    else:
        lds_poll(CAD, 4, sleep=0)
    if opt.hint and opt.onep:
        e.i(f"s_cmp_lg_u32 s{sWAVE}, 0")
        e.i("s_cbranch_scc1 L_hint_other")
        e.i("v_mbcnt_lo_u32_b32 v17, -1, 0")
        e.i("v_bfe_u32 v18, v17, 2, 3")
        e.i(f"v_cmp_eq_u32 vcc, s{sCB}, v18")
        e.i("v_xor_b32 v19, 1, v18")
        e.i("v_and_b32 v17, 3, v17")
        e.i("v_cndmask_b32 v18, v18, v19, vcc")
        e.i("v_lshlrev_b32 v18, 7, v18")
        e.i("v_lshl_add_u32 v16, v17, 2, v18")
        top, done = lbl("hp"), lbl("hpd")
        spin_init()
        e.label(top)
        e.i(f"buffer_load_dword v17, v16, {S(sWS,4)}, s{sFLG} offen sc1")
        e.i("s_waitcnt vmcnt(0)")
        e.i(f"v_cmp_ne_u32 vcc, s{sTAG}, v17")
        e.i(f"s_cbranch_vccz {done}")
        spin_tail(top, done, opt.hsleep)
        e.label(done)
        lds_signal(CHN)
        e.label("L_hint_other")
        lds_poll(CHN, 1, sleep=0)
        stamp(1, "late")
        for g in range(4):
            oloads(g)
    elif opt.hint:
        top, done = lbl("hp"), lbl("hpd")
        spin_init()
        n = opt.pipe
        def chk(r):
            e.i(f"v_cmp_ne_u32 vcc, s{sTAG}, v{r}")
            if opt.early_poll:
                e.i("s_and_b64 vcc, vcc, s[4:5]")
                e.i(f"s_cbranch_scc0 {done}")
            else:
                e.i(f"s_cbranch_vccz {done}")
        if opt.early_poll in (1, 3):
            chk(17)
        for k in range(n):
            e.i(f"buffer_load_dword v{17+k}, v16, {S(sWS,4)}, s{sFLG} offen sc1")
            e.i(f"s_sleep {6 // n}")
        e.label(top)
        for k in range(n + 1):
            e.i(f"buffer_load_dword v{17+(n+k)%(n+1)}, v16, {S(sWS,4)}, s{sFLG} offen sc1")
            e.i(f"s_waitcnt vmcnt({n})")
            chk(17 + k)
        spin_tail(top, done, 0 if n else opt.hsleep)
        e.label(done)
        stamp(1, "late")
        for g in range(4):
            oloads(g)
    else:
        e.i("s_waitcnt vmcnt(12)")
        stamp(1, "late")
        oloads(3)
    e.c("o fragments: check that every dword was written; if not, re-read that group until it is, then refresh the rest")
    def ocheck(g):
        b = OF + 16 * g
        e.i(f"v_max3_u32 v5, v{b}, v{b+1}, v{b+2}")
        for k in range(3, 15, 2):
            e.i(f"v_max3_u32 v5, v5, v{b+k}, v{b+k+1}")
        e.i(f"v_max_u32 v5, v5, v{b+15}")
        e.i("v_cmp_eq_u32 vcc, -1, v5")
    for g in range(4):
        e.i(f"s_waitcnt vmcnt({12-4*g})")
        b = OF + 16 * g
        ocheck(g)
        e.i(f"s_cbranch_vccnz L_oretry_{g}")
        e.label(f"L_ogo_{g}")
        for i in range(4):
            for c2 in (1, 0):
                a = 8 + 16 * c2
                k = 4 * g + i
                e.i(f"{MF32} {V(a,16)}, {V(128+8*k+4*c2,4)}, {V(b+4*i,4)}, {'0' if k == 0 else V(a,16)}")
    stamp(2, "late")
    for t in range(8):
        e.i(f"v_lshlrev_b32 v{128+2*t}, 16, v{XR+t}")
        e.i(f"v_and_b32 v{129+2*t}, s{sMASK}, v{XR+t}")
    e.lg = []
    for q in range(4):
        e.lds(f"ds_write_b128 v1, {V(24+4*q,4)} offset:{q*1024}")
    lds_signal(CE0, va=4)
    e.i(f"s_lshl_b32 s{sT1}, s{sF}, 2")
    e.i(f"v_add_u32 v1, s{sT1}, v6")
    e.i(f"s_lshl_b32 s{sT1}, s{sF}, 14")
    e.i(f"s_add_u32 s{sT1}, s{sT1}, {RB2 + 12288}")
    e.i(f"v_add_u32 v0, s{sT1}, v0")
    lds_poll(CGD, 1, sleep=0, va=1)
    if opt.echo: stamp(4)
    e.lds("ds_read_b128 v[40:43], v0")
    e.lds("ds_read_b128 v[44:47], v0 offset:1024")
    lds_poll(CE0, 2, sleep=0, va=4)
    for q in range(4):
        e.lds(f"ds_read_b128 {V(24+4*q,4)}, v2 offset:{q*1024}", ("e", q))
    for t in range(8):
        e.i(f"v_lshlrev_b32 v{G+2*t}, 16, v{40+t}")
        e.i(f"v_and_b32 v{G+1+2*t}, s{sMASK}, v{40+t}")
    for q in range(4):
        e.wait(lg=("e", q))
        for r in range(4*q, 4*q+4):
            e.i(f"v_add_f32 v{8+r}, v{8+r}, v{24+r}")
        for r in range(4*q, 4*q+4):
            e.i(f"v_fmac_f32 v{128+r}, v{8+r}, v{G+r}")
        for j in range(2):
            e.i(f"v_cvt_pk_bf16_f32 v{XR+2*q+j}, v{128+4*q+2*j}, v{128+4*q+2*j+1}")
        e.vmem(f"buffer_store_dwordx2 {V(XR+2*q,2)}, v3, {S(sOUT,4)}, s{sXO} offen offset:{16*q}")
    if opt.stamps:
        e.wait_all(vm=True)
        stamp(3, "late")
    if opt.echo:
        a, b = opt.echo
        e.i("s_waitcnt lgkmcnt(0)")
        e.i(f"s_sub_u32 s{sT0}, s{sSTAMP+2*b}, s{sSTAMP+2*a}")
        e.i(f"s_mul_i32 s{sT0}, s{sT0}, {opt.emul}")
        e.i(f"s_min_u32 s{sT0}, s{sT0}, 10000")
        e.i(f"s_add_u32 s{sT0}, s{sT0}, s{sSTAMP+6}")
        e.label("L_echo")
        e.i("s_memrealtime s[4:5]")
        e.i("s_waitcnt lgkmcnt(0)")
        e.i(f"s_sub_u32 s{sT1}, s4, s{sT0}")
        e.i(f"s_cmp_lt_i32 s{sT1}, 0")
        e.i("s_cbranch_scc1 L_echo")
    dump_stamps()
    e.i("s_endpgm")
    for g in range(4):
        e.label(f"L_oretry_{g}")
        e.i(f"s_sub_u32 s{sCNT}, s{sCNT}, 1")
        e.i(f"s_cbranch_scc1 L_odone_{g}")
        if opt.osleep:
            e.i(f"s_sleep {opt.osleep}")
        oloads(g)
        e.i("s_waitcnt vmcnt(0)")
        ocheck(g)
        e.i(f"s_cbranch_vccnz L_oretry_{g}")
        e.label(f"L_odone_{g}")
        for g2 in range(g + 1, 4):
            oloads(g2)
        e.i(f"s_branch L_ogo_{g}")
    if opt.full:
        for name, off, n in slow:
            e.label(f"L_slow_{name}")
            lds_poll(off, n, sleep=0)
            e.i(f"s_branch L_back_{name}")

    e.label("L_fallback")
    e.i("v_mov_b32 v24, 0xff800000")
    e.i("v_mov_b32 v25, 0xff800000")
    e.i(f"s_mov_b32 s{sT1}, 0")
    e.i(f"s_mov_b32 s{sCNT}, 31")
    e.label("L_fb_loop")
    e.i(f"buffer_load_dwordx4 v[8:11], v{vL16}, {S(sWS,4)}, s{sT1} offen sc1")
    e.i(f"buffer_load_dwordx4 v[12:15], v{vL16}, {S(sWS,4)}, s{sT1} offen offset:2048 sc1")
    e.i(f"s_add_u32 s{sT1}, s{sT1}, 4096")
    e.i("s_waitcnt vmcnt(0)")
    for k in range(2):
        e.i(f"{MF32} {V(NMA,16)}, {V(8+4*k,4)}, {V(QA,4)}, 0")
        e.i(f"{MF32} {V(NMB,16)}, {V(8+4*k,4)}, {V(QB,4)}, 0")
        e.nop(12)
        for r in range(0, 16, 2):
            e.i(f"v_max3_f32 v24, v24, v{NMA+r}, v{NMA+r+1}")
        for r in range(0, 16, 2):
            e.i(f"v_max3_f32 v25, v25, v{NMB+r}, v{NMB+r+1}")
    e.i(f"s_sub_u32 s{sCNT}, s{sCNT}, 1")
    e.i("s_cbranch_scc0 L_fb_loop")
    e.i("v_mov_b32 v26, v24")
    e.i("v_mov_b32 v27, v25")
    e.nop(2)
    e.i("v_permlane32_swap_b32 v24, v26")
    e.i("v_permlane32_swap_b32 v25, v27")
    e.i("v_max_f32 v24, v24, v26")
    e.i("v_max_f32 v25, v25, v27")
    e.i("s_branch L_att_start")

    e.label("L_pre_7")
    inatt[0] = False
    e.vm = []
    e.lg = []
    e.i("s_setprio 3")
    e.i(f"s_bitcmp1_b32 s{sCB}, 0")
    e.i("v_lshlrev_b32 v40, 4, v1")
    e.i("s_waitcnt lgkmcnt(0)")
    e.i(f"s_cselect_b64 {S(sWKV,2)}, s[54:55], s[52:53]")
    e.i(f"s_cselect_b32 s{sTILE}, 0, 6")
    e.i(f"s_load_dword s{sTAG}, s[68:69], {hex(WS_EPOCH)}")
    e.i(f"s_mov_b64 {S(sX,2)}, s[48:49]")
    for i in range(4):
        e.i(f"s_mov_b32 m0, {R2 + 4096*i}")
        e.i(f"s_mov_b32 s{sT0}, {4096*i}")
        for k in range(4):
            e.vmem(f"buffer_load_dwordx4 v40, {S(sWKV,4)}, s{sT0} offen offset:{1024*k} lds", "wkv")
    e.i("s_barrier")
    setup()
    e.i("v_lshrrev_b32 v42, 4, v1")
    e.i("v_and_b32 v43, 15, v1")
    e.i(f"s_lshr_b32 s{sT0}, s{sCB}, 2")
    e.i(f"s_mul_i32 s{sT0}, s{sT0}, {XN_RH}")
    e.i(f"s_bfe_u32 s{sT1}, s{sCB}, 0x10001")
    e.i(f"s_lshl_b32 s{sT1}, s{sT1}, 8")
    e.i(f"s_add_u32 s{sT0}, s{sT0}, s{sT1}")
    e.i(f"s_add_u32 s{sT0}, s{sT0}, {R1}")
    e.i("v_mul_u32_u24 v44, 528, v42")
    e.i("v_lshl_add_u32 v44, v43, 4, v44")
    e.i(f"v_add_u32 v44, s{sT0}, v44")
    e.i("v_lshlrev_b32 v45, 8, v42")
    e.i(f"v_lshl_add_u32 v45, v{vR}, 5, v45")
    e.i(f"v_lshl_add_u32 v45, v{vC}, 3, v45")
    e.i(f"v_add_u32 v45, {R2}, v45")
    for r in range(4):
        e.i(f"v_mov_b32 v{20+r}, 0x3f803f80")
    e.i(f"s_lshl_b32 s{sT2}, s{sRB}, 1")
    e.i(f"s_lshr_b32 s{sOFF2}, s{sCB}, 2")
    e.i(f"s_add_u32 s{sT2}, s{sT2}, s{sOFF2}")
    e.i(f"s_lshl_b32 s{sT2}, s{sT2}, 11")
    e.i(f"s_add_u32 s{sT2}, s{sT2}, s{sT1}")
    e.i(f"v_lshlrev_b32 v46, 3, v{vH}")
    e.i("v_lshl_add_u32 v46, v43, 4, v46")
    e.i(f"s_lshl_b32 s{sOFF2}, s{sRB}, 7")
    e.i(f"s_lshl_b32 s{sOFF}, s{sCB}, 3")
    e.i(f"s_add_u32 s{sOFF2}, s{sOFF2}, s{sOFF}")
    e.i(f"v_mov_b32 v18, {hex(WS_KVF)}")
    e.i(f"v_lshrrev_b32 v{vW1}, 2, v1")
    e.i(f"v_lshlrev_b32 v19, 7, v{vW1}")
    e.i(f"v_lshl_add_u32 v19, v{vC}, 4, v19")
    e.i("v_lshlrev_b32 v31, 11, v1")
    e.i(f"v_mul_u32_u24 v{vW1}, 3584, v{vW1}")
    e.i(f"v_lshl_add_u32 v{vW1}, v{vC}, 4, v{vW1}")
    e.i(f"v_lshlrev_b32 v{vT0}, 6, v{vR}")
    e.i(f"v_lshl_add_u32 v{vT0}, v{vCG}, 5, v{vT0}")
    e.i(f"v_lshl_add_u32 v{vT0}, v{vC}, 3, v{vT0}")
    e.i(f"v_lshl_add_u32 v{vT0}, v{vH}, 9, v{vT0}")
    e.i(f"v_add_u32 v{vT0}, s{sRING}, v{vT0}")
    e.i("s_waitcnt lgkmcnt(0)")
    e.i(f"s_mul_i32 s{sTAG}, s{sTAG}, 0x9e3779b1")
    e.i(f"s_add_u32 s{sTAG}, s{sTAG}, 0x7f4a7c15")
    e.i(f"v_mov_b32 v16, s{sTAG}")
    e.lds(f"ds_write_b32 v6, v16 offset:{CTAG}")
    e.wait(vm="wkv")
    stamp(1, "front")
    for ks in range(16):
        e.lds(f"ds_read_b64_tr_b16 {V(128+4*ks,2)}, v45 offset:{ks*1024}")
        e.lds(f"ds_read_b64_tr_b16 {V(130+4*ks,2)}, v45 offset:{ks*1024+128}")
    lds_signal(CXN)
    e.i(f"v_add_u32 v41, {RE}, v{vSP}")
    e.i(f"s_mov_b32 exec_lo, {hex((1 << NE) - 1)}")
    e.i(f"s_mov_b32 exec_hi, {hex((1 << NE) - 1)}")
    e.lds(f"ds_write_b128 v41, {V(vSD,4)} offset:2048")
    e.i("s_mov_b64 exec, -1")
    lds_poll(CRW, 2, sleep=0)
    for ks in range(16):
        e.lds(f"ds_read_b128 {V(64+4*ks,4)}, v44 offset:{ks*2112}", ("k", ks), guard=False)
    lds_signal(CRC)
    e.i(f"s_bitcmp1_b32 s{sCB}, 0")
    e.i("s_cbranch_scc1 L_w7_v")
    lg_save = list(e.lg)
    def kvloop(isV):
        for ks in range(16):
            W, Xf = V(128+4*ks, 4), V(64+4*ks, 4)
            a, b = ("v[20:23]", W) if isV else (W, "v[20:23]")
            e.i(f"{MF16} v[12:15], {a}, {b}, {'0' if ks == 0 else 'v[12:15]'}")
            e.wait(lg=("k", ks))
            a, b = (Xf, W) if isV else (W, Xf)
            e.i(f"{MF16} v[8:11], {a}, {b}, {'0' if ks == 0 else 'v[8:11]'}")
    kvloop(False)
    stamp(8, "front")
    e.i(f"v_lshl_add_u32 v46, v{vCG}, 9, v46")
    e.i("v_lshl_add_u32 v47, v43, 2, v6")
    lds_poll(CST, 2, sleep=0)
    e.i(f"ds_read2_b32 v[24:25], v47 offset0:{STAT//4} offset1:{STAT//4+16}")
    e.wait_all(lg=True)
    for r in range(4):
        e.i(f"v_fmac_f32 v{8+r}, v24, v{12+r}")
    for r in range(4):
        e.i(f"v_mul_f32 v{8+r}, v25, v{8+r}")
    e.i("v_cvt_pk_bf16_f32 v12, v8, v9")
    e.i("v_cvt_pk_bf16_f32 v13, v10, v11")
    e.i(f"buffer_store_dwordx2 v[12:13], v46, {S(sWS,4)}, s{sT2} offen sc1")
    e.i("v_mul_f32 v17, v8, v8")
    for r in range(1, 4):
        e.i(f"v_fmac_f32 v17, v{8+r}, v{8+r}")
    e.i("v_mov_b32 v15, v17")
    e.nop(2)
    e.i("v_permlane32_swap_b32 v17, v15")
    e.i("v_add_f32 v17, v17, v15")
    e.i("v_mov_b32 v15, v17")
    e.nop(2)
    e.i("v_permlane16_swap_b32 v17, v15")
    e.i("v_add_f32 v17, v17, v15")
    for m in ("row_ror:1", "row_ror:2", "row_ror:4", "row_ror:8"):
        e.nop(2)
        e.i(f"v_max_u32_dpp v17, v17, v17 {m} row_mask:0xf bank_mask:0xf")
    e.i("s_branch L_w7_pub")
    e.label("L_w7_v")
    e.lg = lg_save
    kvloop(True)
    stamp(8, "front")
    e.i(f"v_lshlrev_b32 v46, 4, v43")
    e.i(f"v_lshl_add_u32 v46, v{vH}, 8, v46")
    e.i(f"v_lshl_add_u32 v46, v{vCG}, 3, v46")
    e.i(f"s_add_u32 s{sT2}, s{sT2}, s{sT1}")
    e.i(f"s_add_u32 s{sT2}, s{sT2}, 1024")
    e.i("v_lshl_add_u32 v47, v42, 4, v6")
    lds_poll(CST, 2, sleep=0)
    e.i(f"ds_read_b128 v[24:27], v47 offset:{STAT}")
    e.i(f"ds_read_b128 v[32:35], v47 offset:{STAT+64}")
    e.wait_all(lg=True)
    for r in range(4):
        e.i(f"v_fmac_f32 v{8+r}, v{24+r}, v{12+r}")
    for r in range(4):
        e.i(f"v_mul_f32 v{8+r}, v{32+r}, v{8+r}")
    e.i("v_cvt_pk_bf16_f32 v12, v8, v9")
    e.i("v_cvt_pk_bf16_f32 v13, v10, v11")
    e.i(f"buffer_store_dwordx2 v[12:13], v46, {S(sWS,4)}, s{sT2} offen sc1")
    e.i("v_mov_b32 v17, 0")
    e.label("L_w7_pub")
    stamp(2)
    e.i("s_mov_b64 exec, 1")
    e.wait_all(vm=True)
    e.i(f"buffer_store_dwordx2 v[16:17], v18, {S(sWS,4)}, s{sOFF2} offen sc1")
    e.i("s_mov_b64 exec, -1")
    stamp(9)
    e.c("wait for all 256 K/V producers, pass max |k|^2 on through LDS")
    top, done = lbl("kv"), lbl("kvd")
    e.i(f"s_mov_b32 s{sT1}, {hex(WS_KVF)}")
    e.i(f"s_bfe_u32 s{sT2}, s2, 0x40003")
    e.i(f"s_lshl_b32 s{sT2}, s{sT2}, 7")
    if opt.touch == 3:
        e.c("touch 1/8 of the w1 slice -> L2; the first poll queues behind it")
        if opt.twait == 1:
            lds_poll(CWQ, 1, sleep=1)
        if opt.twait == 2:
            lds_poll(CWI, 1, sleep=1)
        touch_setup(sOFF)
        touches(sOFF, 0, opt.ntouch)
    if opt.kvdelay:
        e.i(f"s_sleep {opt.kvdelay}")
    spin_init()
    e.label(top)
    e.i(f"buffer_load_dwordx4 v[32:35], v19, {S(sWS,4)}, s{sT1} offen sc1")
    e.i(f"buffer_load_dwordx4 v[36:39], v19, {S(sWS,4)}, s{sT1} offen offset:2048 sc1")
    e.wait_all(vm=True)
    if opt.fstart == 3:
        lds_signal(CTL)
    e.i("v_xor_b32 v32, v16, v32")
    e.i("v_xor_b32 v34, v16, v34")
    e.i("v_xor_b32 v36, v16, v36")
    e.i("v_xor_b32 v38, v16, v38")
    e.i("v_or3_b32 v32, v32, v34, v36")
    e.i("v_or_b32 v32, v32, v38")
    e.i("v_cmp_ne_u32 vcc, 0, v32")
    e.i("v_max_u32 v30, v33, v37")
    e.i(f"s_cbranch_vccz {done}")
    spin_tail(top, done, opt.kvsleep)
    e.label(done)
    lds_signal(CKV)
    e.c("blocks 0..6 -> early slots in R2")
    e.i(f"s_mov_b32 s{sOFF2}, 0")
    e.i(f"s_mov_b32 s{sT1}, {RE}")
    kv_dma(NE, sOFF2, sT1, 1, 1)
    if opt.kvtouch:
        e.c("touch 64 of the 1024 K/V lines -> L2 (the workgroups of an XCD cover all of them)")
        e.i(f"buffer_load_dword v106, v31, {S(sWS,4)}, s{sT2} offen sc1")
    for m in ("row_ror:1", "row_ror:2", "row_ror:4", "row_ror:8"):
        e.nop(2)
        e.i(f"v_max_u32_dpp v30, v30, v30 {m} row_mask:0xf bank_mask:0xf")
    e.i("v_mov_b32 v29, v30")
    e.nop(2)
    e.i("v_permlane16_swap_b32 v29, v30")
    e.i("v_max_u32 v30, v29, v30")
    e.i("v_mov_b32 v29, v30")
    e.nop(2)
    e.i("v_permlane32_swap_b32 v29, v30")
    e.i("v_max_u32 v30, v29, v30")
    e.lds(f"ds_write_b32 v6, v30 offset:{CKM}")
    lds_signal(CKV)
    stamp(4, "front")
    e.c("blocks 5..36 -> slots 0..31")
    e.i(f"s_mov_b32 s{sT1}, 0")
    lds_poll(CQ, 4, sleep=0)
    e.vm = []
    e.lds(f"ds_write_b128 v{vSP}, {V(vSD,4)} offset:2048")
    kv_dma(8, sOFF2, sT1, 1, 1)
    e.i(f"s_waitcnt vmcnt({17 if opt.kvtouch else 16})")
    lds_signal(CE7)
    e.i("s_waitcnt vmcnt(0)")
    lds_signal(CA)
    kv_dma(8, sOFF2, sT1, 1, 1)
    for st in range(2):
        kv_dma(8, sOFF2, sT1, 1, 1)
        e.i("s_waitcnt vmcnt(16)")
        e.vm = []
        lds_signal(CA)
    e.i("s_waitcnt vmcnt(0)")
    lds_signal(CA)
    lds_poll(CG, 4, sleep=1)
    e.c("workgroup 0 renews the epoch word: every producer has read it by now")
    e.i("s_cmp_lg_u32 s2, 0")
    e.i("s_cbranch_scc1 L_ffn")
    e.i(f"v_mov_b32 v29, {hex(WS_EPOCH)}")
    e.i("s_mov_b64 exec, 1")
    e.i(f"buffer_store_dword v16, v29, {S(sWS,4)}, 0 offen sc1")
    e.i("s_mov_b64 exec, -1")

    ACC = 8
    NR = opt.NR
    AF, BF = 72, 88
    e.label("L_ffn")
    e.vm = []
    e.lg = []
    e.i("s_setprio 3")
    e.i(f"s_mul_i32 s{sOFF}, s{sCB}, 448")
    e.i(f"s_lshl_b32 s{sT1}, s{sTILE}, 6")
    e.i(f"s_add_u32 s{sOFF}, s{sOFF}, s{sT1}")
    e.c("k order is rotated by 4*(rb&7) steps: the 8 workgroups of an XCD that share this w1 slice take turns missing")
    e.i(f"s_add_u32 s{sE1}, s{sOFF}, {512*3584}")
    e.i(f"s_and_b32 s{sT1}, s{sRB}, {7 if opt.rot & 2 else 0}")
    e.i(f"s_mul_i32 s{sT0}, s{sT1}, {64*3584}")
    e.i(f"s_add_u32 s{sOFF}, s{sOFF}, s{sT0}")
    for g in range(8):
        e.i(f"s_add_u32 s{sT0}, s{sT1}, {g}")
        e.i(f"s_and_b32 s{sT0}, s{sT0}, 7")
        e.i(f"s_mul_i32 s{sT0}, s{sT0}, {4*1056}")
        e.i(f"v_add_u32 v{232+2*g}, s{sT0}, v{vXN0}")
        e.i(f"v_add_u32 v{233+2*g}, s{sT0}, v{vXN1}")
    e.i(f"s_mul_i32 s{sW2T}, s{sF}, {448*1024}")
    e.i(f"s_lshl_b32 s{sT0}, s{sCB}, 7")
    e.i(f"s_add_u32 s{sW2T}, s{sW2T}, s{sT0}")
    e.i(f"s_and_b32 s{sT0}, s{sRB}, 7")
    e.i(f"s_min_u32 s{sT0}, s{sT0}, 6")
    e.i(f"s_lshl_b32 s{sT0}, s{sT0}, 16")
    e.i(f"s_add_u32 s{sW2T}, s{sW2T}, s{sT0}")
    e.i(f"v_lshrrev_b32 v{vTCH}, 2, v1")
    e.i(f"v_lshlrev_b32 v{vTCH}, 10, v{vTCH}")
    e.i(f"v_lshl_add_u32 v{vTCH}, v{vC}, 8, v{vTCH}")
    if opt.epre:
        e.i(f"s_cmp_eq_u32 s{sWAVE}, 7")
        e.i("s_cbranch_scc1 L_no_epre")
        lds_poll(CRC, 1, sleep=1)
        if opt.epre == 2:
            lds_poll(CWI, 1, sleep=1)
        for ks in range(3):
            for a in range(2):
                e.i(f"s_add_u32 m0, s{sRING}, {ks * 2048 + a * 1024}")
                e.i("s_nop 0")
                e.i(f"buffer_load_dwordx4 v{vW1}, {S(sW1,4)}, s{sOFF} offen lds")
                e.i(f"s_add_u32 s{sOFF}, s{sOFF}, {8*3584}")
        e.c("touch the lines of the fourth step as well")
        e.i("v_mul_u32_u24 v125, 3584, v1")
        e.i("s_mov_b64 exec, 0xffff")
        e.i(f"buffer_load_dword v124, v125, {S(sW1,4)}, s{sOFF} offen")
        e.i("s_mov_b64 exec, -1")
        e.label("L_no_epre")
    lds_poll(CXN, 9, sleep=1)
    e.i(f"ds_read_b32 v4, v6 offset:{CTAG}")
    e.i("v_mov_b64 v[208:209], -1")
    e.i("v_mov_b64 v[210:211], -1")
    if opt.fgo == 2:
        lds_poll(CKV, 1, sleep=1)
    if opt.fgo == 3:
        lds_poll(CE7, 1, sleep=1)
    e.wait_all(lg=True)
    e.i(f"v_readfirstlane_b32 s{sTAG}, v4")
    e.i(f"s_setprio {opt.fprio1}")
    stamp(2, "late")
    e.i(f"s_cmp_eq_u32 s{sWAVE}, 7")
    e.i("s_cbranch_scc1 L_ffn1_w7")

    def paced(n):
        if n == 0:
            e.wait_all(lg=True)
        elif len(e.lg) > n:
            e.i(f"s_waitcnt lgkmcnt({n})")
            del e.lg[: len(e.lg) - n]
    def bread(ks, rh):
        e.lds(f"ds_read_b128 {V(BF+8*(ks%2)+4*rh,4)}, v{232+2*(ks//4)+rh} offset:{(ks%4)*1056}", ("f", ks))
    def wrap1():
        e.i(f"s_cmp_ge_u32 s{sOFF}, s{sE1}")
        e.i(f"s_cselect_b32 s{sT0}, {512*3584}, 0")
        e.i(f"s_sub_u32 s{sOFF}, s{sOFF}, s{sT0}")
    def w2_touch():
        if opt.warm2:
            e.c("touch 1/7 of this wave's w2 slice (8 workgroups of an XCD share it) -> L2")
            e.vmem(f"buffer_load_dword v124, v{vTCH}, {S(sW2,4)}, s{sW2T} offen")
    def marker(hd):
        e.vmem(f"buffer_store_dwordx4 v[208:211], v{vL16}, {S(sWS,4)}, s{sOB} offen offset:{2048*hd} sc1", "clr")
    def e1():
        e.c("waves 4..6: blocks 37..51 -> slots 0..14 once attention has read them")
        lds_poll(CP1, 4, sleep=2)
        e.i(f"s_lshl_b32 s{sU0}, s{sF}, 11")
        e.i(f"s_add_u32 s{sU0}, s{sU0}, {(NE+32)*2048}")
        e.i(f"s_mul_i32 s{sU1}, s{sF}, {KVS}")
        kv_dma(5, sU0, sU1, 3, 3)
    def h_store(tiles):
        lds_signal(CX)
        stamp(3)
        e.i("s_setprio 3")
        e.i(f"s_mul_i32 s{sT0}, s{sRB}, 112")
        e.i(f"s_mul_i32 s{sT1}, s{sCB}, 14")
        e.i(f"s_add_u32 s{sT0}, s{sT0}, s{sT1}")
        e.i(f"s_lshl_b32 s{sT1}, s{sTILE}, 1")
        e.i(f"s_add_u32 s{sT0}, s{sT0}, s{sT1}")
        e.i(f"s_lshl_b32 s{sT0}, s{sT0}, 11")
        e.i(f"s_add_u32 s{sOFF}, s{sT0}, {WS_H}")
        e.i(f"s_add_u32 s{sOFF2}, s{sOFF}, 4096")
        if len(tiles) == 2 and opt.e1pos == 0:
            e1()
        e.c("mark the o fragments of attention wave f as not yet written")
        if not opt.mkearly:
            marker(0); marker(1)
        for ct in tiles:
            for rh in range(2):
                a = ACC + 16 * (rh * 2 + ct)
                for j in range(8):
                    e.i(f"v_cvt_pk_bf16_f32 v{a+j}, v{a+2*j}, v{a+2*j+1}")
                for j in range(8):
                    e.i(f"v_pk_max_i16 v{a+j}, v{a+j}, 0")
                for s in range(2):
                    e.vmem(f"buffer_store_dwordx4 {V(a+4*s,4)}, v{vL16}, {S(sWS,4)}, s{sOFF2 if ct else sOFF} offen offset:{(2*s+rh)*1024} sc1", "hst")
    def ring_dma(ks, srd, v, step):
        for a in range(2):
            e.i(f"s_add_u32 m0, s{sRING}, {(ks % NR) * 2048 + a * 1024}")
            e.i("s_nop 0")
            e.vmem(f"buffer_load_dwordx4 v{v}, {S(srd,4)}, s{sOFF} offen lds", ("w", ks))
            e.i(f"s_add_u32 s{sOFF}, s{sOFF}, {step}")
    def tr2(ks, i, tstride):
        ct, t = i >> 1, i & 1
        e.lds(f"ds_read_b64_tr_b16 {V(AF+8*(ks%2)+4*ct+2*t,2)}, v{vT1 if ct else vT0} offset:{(ks%NR)*2048+tstride*t}", ("f", ks))

    e.c("FFN1, waves 4..6: two column tiles x two row halves")
    A3, B3 = 72, 96
    LA = 1 if opt.la1 else 2
    def dma1(ks, a):
        e.i(f"s_add_u32 m0, s{sRING}, {(ks % 3) * 2048 + a * 1024}")
        e.i("s_nop 0")
        e.vmem(f"buffer_load_dwordx4 v{vW1}, {S(sW1,4)}, s{sOFF} offen lds", ("w", ks))
        e.i(f"s_add_u32 s{sOFF}, s{sOFF}, {8*3584}")
        if a == 1 and ks % 4 == 3:
            wrap1()
    def br3(ks, rh):
        e.lds(f"ds_read_b128 {V(B3+8*(ks%3)+4*rh,4)}, v{232+2*(ks//4)+rh} offset:{(ks%4)*1056}", ("f", ks))
    def tr3(ks, i):
        ct, t = i >> 1, i & 1
        e.lds(f"ds_read_b64_tr_b16 {V(A3+8*(ks%3)+4*ct+2*t,2)}, v{vT1 if ct else vT0} offset:{(ks%3)*2048+512*t}", ("f", ks))
    if opt.epre:
        e.vm = [("w", ks) for ks in range(3) for _ in range(2)] + ["t"]
    else:
        for ks in range(3):
            dma1(ks, 0); dma1(ks, 1)
    for ks in range(LA):
        br3(ks, 0); br3(ks, 1)
        e.wait(vm=("w", ks))
        for i in range(4):
            tr3(ks, i)
    for ks in range(32):
        s = ks % 3
        e.wait(lg=("f", ks))
        n = ks + LA
        dense = ks < opt.dense
        for i in range(4):
            rh, ct = i >> 1, i & 1
            a = ACC + 16 * i
            e.i(f"{MF32} {V(a,16)}, {V(A3+8*s+4*ct,4)}, {V(B3+8*s+4*rh,4)}, {'0' if ks == 0 else V(a,16)}")
            if i == 0 and ks + 3 < 32:
                dma1(ks + 3, 0)
                dma1(ks + 3, 1)
            if n < 32:
                if i == 0:
                    br3(n, 0); br3(n, 1)
                if i == 1:
                    e.wait(vm=("w", n))
                if dense:
                    if i in (1, 2):
                        tr3(n, 2 * i - 2); tr3(n, 2 * i - 1)
                else:
                    if i == 1:
                        tr3(n, 0); tr3(n, 1)
                    if i >= 2:
                        tr3(n, i)
                    paced(opt.pace1)
        if opt.mkearly and ks in (14, 20):
            marker(ks // 20)
        if opt.mid and ks in (0, 4, 8, 12, 16, 20):
            stamp(4 + ks // 4)
    if opt.mid:
        lds_signal(CX)
        stamp(3)
        dump_stamps()
        e.i("s_endpgm")
    h_store([0, 1])
    if opt.e1pos == 1:
        e1()
    e.i("s_branch L_ffn_join")

    e.label("L_ffn1_w7")
    e.vm = []
    e.lg = []
    e.c("FFN1, wave 7: one column tile")
    def dma7(ks):
        e.i(f"s_add_u32 m0, s{sRING}, {(ks % 8) * 1024}")
        e.i("s_nop 0")
        e.vmem(f"buffer_load_dwordx4 v{vW1}, {S(sW1,4)}, s{sOFF} offen lds", ("w", ks))
        e.i(f"s_add_u32 s{sOFF}, s{sOFF}, {16*3584}")
        if ks % 4 == 3:
            wrap1()
    def tr7(ks, t):
        e.lds(f"ds_read_b64_tr_b16 {V(AF+8*(ks%2)+2*t,2)}, v{vT0} offset:{(ks%8)*1024+256*t}", ("f", ks))
    if opt.t7:
        e.i(f"s_lshr_b32 s{sT1}, s2, 3")
        e.i(f"s_and_b32 s{sT2}, s{sCB}, 1")
        e.i(f"s_lshl_b32 s{sT2}, s{sT2}, 7")
        e.i(f"s_mul_i32 s{sU0}, s{sT1}, {56*1024}")
        e.i(f"s_add_u32 s{sU0}, s{sU0}, s{sT2}")
        for i in range(4):
            e.i(f"buffer_load_dword v124, v{vTCH}, {S(sW2,4)}, s{sU0} offen")
            e.i(f"s_add_u32 s{sU0}, s{sU0}, {14*1024}")
    e.i(f"s_setprio {opt.p7}")
    for ks in range(8):
        dma7(ks)
    bread(0, 0); bread(0, 1)
    e.wait(vm=("w", 0))
    tr7(0, 0); tr7(0, 1)
    for ks in range(32):
        s = ks % 2
        e.wait(lg=("f", ks))
        if ks + 8 < 32:
            dma7(ks + 8)
        if ks + 1 < 32:
            e.wait(vm=("w", ks + 1))
        for rh in range(2):
            a = ACC + 32 * rh
            e.i(f"{MF32} {V(a,16)}, {V(AF+8*s,4)}, {V(BF+8*s+4*rh,4)}, {'0' if ks == 0 else V(a,16)}")
            if ks + 1 < 32:
                bread(ks + 1, rh)
                tr7(ks + 1, rh)
                if rh == 0 and ks >= opt.dense:
                    paced(opt.pace1)
        if opt.mkearly and ks in (14, 20):
            marker(ks // 20)
    h_store([0])

    e.label("L_ffn_join")
    e.i(f"s_lshl_b32 s{sT2}, s{sCB}, 7")
    e.i(f"s_lshl_b32 s{sT1}, s{sF}, 2")
    e.i(f"s_add_u32 s{sT2}, s{sT2}, s{sT1}")
    e.i(f"s_add_u32 s{sT2}, s{sT2}, s{sFLG}")
    e.i("v_mov_b32 v72, 0")
    e.i(f"v_mov_b32 v73, s{sTAG}")
    e.i(f"v_add_u32 v{vSP}, {R1}, v{vSP}")
    e.i(f"s_lshl_b32 s{sRING}, s{sF}, 14")
    e.i(f"s_add_u32 s{sRING}, s{sRING}, {RB2}")
    e.i(f"v_lshl_add_u32 v{vTR}, v{vH}, 9, v{vTR}")
    e.c("accumulator i holds output tile i ^ f, so that accumulator 0 is this wave's own tile")
    e.i(f"s_and_b32 s{sT1}, s{sF}, 1")
    e.i(f"s_lshl_b32 s{sT1}, s{sT1}, 6")
    e.i(f"v_xor_b32 v{vT0}, s{sT1}, v{vTR}")
    e.i(f"v_add_u32 v{vT0}, s{sRING}, v{vT0}")
    e.i(f"v_xor_b32 v{vT1}, 64, v{vT0}")
    e.i(f"s_lshr_b32 s{sT1}, s{sF}, 1")
    e.i(f"s_lshl_b32 s{sT1}, s{sT1}, 10")
    e.i(f"v_add_u32 v0, s{sT1}, v{vL16}")
    e.i("v_xor_b32 v2, 0x400, v0")
    e.i("v_bfe_u32 v122, v1, 2, 3")
    e.i("v_lshlrev_b32 v122, 7, v122")
    e.i(f"v_lshl_add_u32 v122, v{vC}, 2, v122")
    e.i("v_lshlrev_b32 v123, 9, v1")
    e.i(f"s_mov_b32 s{sW2T}, s{sT2}")
    def flag_out():
        e.i("s_mov_b64 exec, 1")
        e.vmem(f"buffer_store_dword v73, v72, {S(sWS,4)}, s{sW2T} offen sc1")
        e.i("s_mov_b64 exec, -1")
        lds_signal(CL1)
        stamp(4, "late")
    if not opt.prefirst:
        e.wait_all(vm=True)
        flag_out()
    e.i(f"s_mul_i32 s{sOFF}, s{sF}, {448*1024}")
    e.i(f"s_lshl_b32 s{sT0}, s{sCB}, 7")
    e.i(f"s_add_u32 s{sOFF}, s{sOFF}, s{sT0}")
    e.i(f"s_mov_b32 s{sE1}, s{sOFF}")
    e.i(f"s_cmp_eq_u32 s{sWAVE}, 7")
    e.i("s_cbranch_scc1 L_no_e1")
    e.c("touch 1/32 of the w2 / wo lines this XCD needs -> L2 (waves 4,5: w2, wave 6: wo)")
    e.i(f"s_lshr_b32 s{sT1}, s2, 3")
    e.i(f"s_and_b32 s{sT2}, s{sCB}, 1")
    e.i(f"s_lshl_b32 s{sT2}, s{sT2}, 7")
    e.i(f"s_cmp_eq_u32 s{sWAVE}, 6")
    e.i("s_cbranch_scc1 L_t_wo")
    e.i(f"s_lshl_b32 s{sT1}, s{sT1}, 1")
    e.i(f"s_add_u32 s{sT1}, s{sT1}, s{sF}")
    e.i(f"s_mul_i32 s{sT1}, s{sT1}, {28*1024}")
    e.i(f"s_add_u32 s{sT1}, s{sT1}, s{sT2}")
    if not opt.t7:
        e.i(f"buffer_load_dword v124, v{vTCH}, {S(sW2,4)}, s{sT1} offen")
        e.i(f"s_add_u32 s{sT1}, s{sT1}, {12*1024}")
        e.i(f"buffer_load_dword v124, v{vTCH}, {S(sW2,4)}, s{sT1} offen")
    e.i("s_branch L_no_e1")
    e.label("L_t_wo")
    e.i(f"s_lshl_b32 s{sT1}, s{sT1}, 14")
    e.i(f"s_add_u32 s{sT1}, s{sT1}, s{sT2}")
    e.i(f"buffer_load_dword v124, v{vTCH}, {S(sWO,4)}, s{sT1} offen")
    e.label("L_no_e1")
    e.c("blocks 51..63 -> R1 once xn is dead")
    lds_poll(CX, 4, sleep=4)
    e.i(f"s_lshl_b32 s{sOFF2}, s{sF}, 11")
    e.i(f"s_add_u32 s{sOFF2}, s{sOFF2}, {(NE+47)*2048}")
    e.i(f"s_mul_i32 s{sT1}, s{sF}, {KVS}")
    e.i(f"s_add_u32 s{sT1}, s{sT1}, {R1}")
    e.vm = []
    kv_dma(3, sOFF2, sT1, 4, 4)
    e.i("s_mov_b32 exec_lo, 0xfff")
    e.i("s_mov_b32 exec_hi, 0xfff")
    e.lds(f"ds_write_b128 v{vSP}, {V(vSD,4)} offset:2048")
    e.i("s_mov_b64 exec, -1")
    stamp(5)
    if opt.exit_at == 5:
        e.wait_all(vm=True)
        lds_signal(CH2)
    exit_if(5)
    e.i(f"s_lshr_b32 s{sT2}, s{sCB}, 1")
    for c in range(4):
        e.i(f"s_xor_b32 s{sCH+c}, s{sT2}, {c}")
        e.i(f"s_mul_i32 s{sCH+c}, s{sCH+c}, {7*2048}")
    e.i(f"s_mul_i32 s{sT0}, s{sRB}, 112")
    e.i(f"s_mul_i32 s{sT1}, s{sF}, 28")
    e.i(f"s_add_u32 s{sT0}, s{sT0}, s{sT1}")
    e.i(f"s_lshl_b32 s{sT0}, s{sT0}, 11")
    e.i(f"s_add_u32 s{sE2}, s{sT0}, {WS_H}")
    e.i(f"s_lshl_b32 s{sT0}, s{sF}, 3")
    e.i(f"s_and_b32 s{sT1}, s{sCB}, 4")
    e.i(f"s_add_u32 s{sT1}, s{sT1}, s{sT0}")
    e.i(f"s_lshl_b32 s4, 15, s{sT1}")
    e.i(f"s_lshl_b32 s5, 0xff, s{sT0}")
    def set_w(c):
        e.i(f"s_lshl_b32 s{sOFF}, s{sCH+c}, 3")
        e.i(f"s_add_u32 s{sOFF}, s{sOFF}, s{sE1}")
    def set_h(c):
        e.i(f"s_add_u32 s{sOFF2}, s{sCH+c}, s{sE2}")
    set_w(0)
    set_h(0)
    PH = opt.ph
    def wo_dma():
        e.c("wo slice -> R0 by DMA once attention has left it")
        e.i("s_setprio 3")
        lds_poll(CR0, 4, sleep=8)
        e.i(f"s_lshl_b32 s{sU0}, s{sF}, 17")
        e.i(f"s_lshl_b32 s{sU1}, s{sCB}, 7")
        e.i(f"s_add_u32 s{sU0}, s{sU0}, s{sU1}")
        e.i(f"s_lshl_b32 s{sU1}, s{sF}, 14")
        e.i(f"s_lshl_b32 s{sT1}, s{sRB}, {11 if opt.rot & 8 else 14}")
        for i in range(16):
            e.i(f"s_and_b32 s{sT1}, s{sT1}, 0x3fff")
            e.i(f"s_add_u32 m0, s{sU1}, s{sT1}")
            e.i(f"s_lshl_b32 s{sT0}, s{sT1}, 3")
            e.i(f"s_add_u32 s{sT0}, s{sT0}, s{sU0}")
            e.vmem(f"buffer_load_dwordx4 v{vSW}, {S(sWO,4)}, s{sT0} offen lds", "wo")
            e.i(f"s_add_u32 s{sT1}, s{sT1}, 1024")
    HR = [96, 104, 112, 232, 240, 248, 192, 200][:PH]
    NP = opt.npre
    def dma2(ks, a):
        e.i(f"s_add_u32 m0, s{sRING}, {(ks % 8) * 2048 + a * 1024}")
        e.i("s_nop 0")
        e.vmem(f"buffer_load_dwordx4 v{vSW}, {S(sW2,4)}, s{sOFF} offen lds", ("w", ks))
        e.i(f"s_add_u32 s{sOFF}, s{sOFF}, 8192")
        if a == 1 and ks % 7 == 6 and ks < 27:
            set_w(ks // 7 + 1)
    def hl2(ks, rh):
        r = HR[ks % PH] + 4 * rh
        e.vmem(f"buffer_load_dwordx4 {V(r,4)}, v{2 if rh else 0}, {S(sWS,4)}, s{sOFF2} offen sc1", ("h", ks))
        if rh:
            e.i(f"s_add_u32 s{sOFF2}, s{sOFF2}, 2048")
            if ks % 7 == 6 and ks < 27:
                set_h(ks // 7 + 1)
    def areg(ks):
        return 128 + 8 * ks if ks < NP else A3 + 8 * (ks % 3)
    def t32(ks, i):
        ct, t = i >> 1, i & 1
        e.lds(f"ds_read_b64_tr_b16 {V(areg(ks)+4*ct+2*t,2)}, v{vT1 if ct else vT0} offset:{(ks%8)*2048+1024*t}", ("f", ks))
    e.c("while h is in flight: w2 stages -> ring -> fragments in registers, ring refilled")
    for ks in range(8):
        dma2(ks, 0); dma2(ks, 1)
    if opt.prefirst:
        e.i(f"s_waitcnt vmcnt({len(e.vm) + opt.pslack})")
        flag_out()
    e.wait(vm=("kv", 2))
    lds_signal(CH2)
    for ks in range(max(NP, 2)):
        e.wait(vm=("w", ks))
        for i in range(4):
            t32(ks, i)
        if 1 <= ks <= NP:
            e.wait(lg=("f", ks - 1))
            dma2(ks + 7, 0); dma2(ks + 7, 1)
    if NP >= 2:
        e.wait(lg=("f", NP - 1))
        dma2(NP + 7, 0); dma2(NP + 7, 1)
    stamp(9, "late")
    top, done = lbl("fp"), lbl("fpd")
    spin_init()
    e.label(top)
    e.i(f"buffer_load_dword v124, v122, {S(sWS,4)}, s{sFLG} offen sc1")
    e.wait_all(vm=True)
    e.i(f"v_cmp_ne_u32 vcc, s{sTAG}, v124")
    e.i(f"s_and_b32 s{sT0}, vcc_lo, s4")
    e.i(f"s_cbranch_scc0 {done}")
    spin_tail(top, done, 4)
    e.label(done)
    stamp(6)
    e.i(f"s_setprio {opt.fprio}")
    for ks in range(PH - 1):
        hl2(ks, 0); hl2(ks, 1)
    for ks in range(28):
        if ks == 12 - PH:
            e.vmem(f"buffer_load_dword v124, v122, {S(sWS,4)}, s{sFLG} offen sc1", "fl")
        if ks == 15 - PH:
            e.c("the second producer must have published before its half is read")
            e.wait(vm="fl")
            e.i("s_setprio 3")
            e.i(f"v_cmp_ne_u32 vcc, s{sTAG}, v124")
            e.i(f"s_and_b32 s{sT0}, vcc_lo, s5")
            e.i("s_cbranch_scc1 L_slow_h")
            e.label("L_back_h")
            e.i(f"s_setprio {opt.fprio}")
        if ks == opt.hold:
            e.c("the operands of the last steps are on chip: run them after attention, under the o hand-off")
            e.i("s_setprio 3")
            e.wait_all(vm=True)
            lds_signal(CWO)
            lds_poll(CAD, 4, sleep=2)
        e.wait(lg=("f", ks), vm=("h", ks))
        e.wait(vm=("w", ks + 2))
        for i in range(4):
            rh, ct = i >> 1, i & 1
            a = ACC + 16 * i
            e.i(f"{MF32} {V(a,16)}, {V(areg(ks)+4*ct,4)}, {V(HR[ks%PH]+4*rh,4)}, {'0' if ks == 0 else V(a,16)}")
            if ct == 0:
                if ks >= NP and ks + 8 < 28:
                    dma2(ks + 8, rh)
            elif ks + PH - 1 < 28:
                hl2(ks + PH - 1, rh)
            if max(NP, 2) <= ks + 2 < 28:
                t32(ks + 2, i)
                if opt.dense2 <= ks < min(opt.late2, opt.hold):
                    paced(opt.pace2)
        if ks == opt.wo_at:
            wo_dma()
            e.i(f"s_setprio {opt.fprio}")
        if ks == min(opt.wo_at + 4, 27) and opt.hold > 27:
            e.wait(vm="wo")
            lds_signal(CWO)
    stamp(7)
    exit_if(7)
    e.i("s_setprio 3")
    if opt.wo_at >= 28:
        wo_dma()
    e.c("f partials: accumulators 1..3 -> own ring; wave f^i picks up accumulator i")
    e.i(f"v_add_u32 v72, s{sRING}, v{vL16}")
    for i in (1, 2, 3):
        e.i(f"s_xor_b32 s{sT0}, s{sF}, {i}")
        e.i(f"s_lshl_b32 s{sT0}, s{sT0}, 14")
        e.i(f"s_add_u32 s{sT0}, s{sT0}, {RB2 + (i-1)*4096}")
        e.i(f"v_add_u32 v{73+i}, s{sT0}, v{vL16}")
    e.i("v_add_u32 v77, 0x3000, v72")
    e.i(f"s_lshl_b32 s{sT0}, s{sF}, 2")
    e.i(f"v_add_u32 v78, s{sT0}, v6")
    e.i(f"s_mov_b32 s{sT1}, {hex(f32bits(-math.log2(math.e)))}")
    e.i(f"s_setprio {opt.fprio}")
    for i in (1, 2, 3):
        for q in range(4):
            e.lds(f"ds_write_b128 v72, {V(ACC+16*i+4*q,4)} offset:{(i-1)*4096+q*1024}")
    lds_signal(CF)
    e.i("s_setprio 3")
    stamp(8, "late")
    lds_poll(CF, 4, sleep=2)
    for i in (1, 2, 3):
        for q in range(4):
            e.lds(f"ds_read_b128 {V(ACC+16*i+4*q,4)}, v{73+i} offset:{q*1024}", ("r", i))
    if opt.glate:
        lds_poll(CAD, 4, sleep=4)
    for i in (1, 2, 3):
        e.wait(lg=("r", i))
        for r in range(0, 16, 2):
            e.i(f"v_pk_add_f32 {V(ACC+r,2)}, {V(ACC+r,2)}, {V(ACC+16*i+r,2)}")
    for r in range(16):
        e.i(f"v_mul_f32 v{ACC+16+r}, s{sT1}, v{ACC+r}")
    for r in range(16):
        e.i(f"v_exp_f32 v{ACC+16+r}, v{ACC+16+r}")
    for r in range(16):
        e.i(f"v_add_f32 v{ACC+16+r}, 1.0, v{ACC+16+r}")
    for r in range(16):
        e.i(f"v_rcp_f32 v{ACC+16+r}, v{ACC+16+r}")
    for r in range(16):
        e.i(f"v_mul_f32 v{ACC+r}, v{ACC+r}, v{ACC+16+r}")
    for j in range(8):
        e.i(f"v_cvt_pk_bf16_f32 v{ACC+j}, v{ACC+2*j}, v{ACC+2*j+1}")
    e.lds(f"ds_write_b128 v77, {V(ACC,4)}")
    e.lds(f"ds_write_b128 v77, {V(ACC+4,4)} offset:1024")
    lds_signal(CGD, va=78)
    stamp(10)
    dump_stamps()
    e.label("L_end")
    e.i("s_endpgm")
    e.label("L_slow_h")
    spin_init()
    e.label("L_slow_hx")
    e.i(f"buffer_load_dword v124, v122, {S(sWS,4)}, s{sFLG} offen sc1")
    e.i("s_waitcnt vmcnt(0)")
    e.i(f"v_cmp_ne_u32 vcc, s{sTAG}, v124")
    e.i(f"s_and_b32 s{sT0}, vcc_lo, s5")
    e.i("s_cbranch_scc0 L_back_h")
    spin_tail("L_slow_hx", "L_back_h", 4)
    e.label("L_code_end")
    return e

def wrap(e):
    hdr = open("cdna_kernels/%s.s.ref" % NAME).read().split("\n")
    top = [l for l in hdr if l.startswith(";") and "@launch" not in l]
    out = "\n".join(top) + f"\n; @launch grid=(256,1,1) block=(512,1,1) lds={LDS_BYTES}\n"
    out += f""".amdgcn_target "amdgcn-amd-amdhsa--gfx950"
.text
.globl {NAME}_kernel
.p2align 8
.type {NAME}_kernel,@function
{NAME}_kernel:
"""
    out += e.text()
    out += f""".section .rodata,"a"
.p2align 6
.amdhsa_kernel {NAME}_kernel
  .amdhsa_next_free_vgpr 256
  .amdhsa_next_free_sgpr 102
  .amdhsa_accum_offset 256
  .amdhsa_group_segment_fixed_size 0
  .amdhsa_kernarg_size 88
  .amdhsa_user_sgpr_count 2
  .amdhsa_user_sgpr_kernarg_segment_ptr 1
  .amdhsa_system_sgpr_workgroup_id_x 1
.end_amdhsa_kernel
"""
    return out

if __name__ == "__main__":
    opt = Opt()
    outp = sys.argv[1]
    for a in sys.argv[2:]:
        k, v = a.split("=")
        assert hasattr(opt, k), k
        setattr(opt, k, type(getattr(opt, k))(eval(v)))
    e = gen(opt)
    bad = check_cfg(e.lines)
    print("hazards:", bad, "lines:", len(e.lines), "lds", LDS_BYTES)
    open(outp, "w").write(wrap(e))
```

```python
import sys, math, struct
from asmlib import *

NAME = "recurrent_scan__grouped_kv_mqa__dense_activation_relu__prompt"
MF32 = "v_mfma_f32_32x32x16_bf16"
MF16 = "v_mfma_f32_16x16x32_bf16"
SMF = "v_smfmac_f32_32x32x32_bf16"

def f32bits(x):
    return struct.unpack("<I", struct.pack("<f", x))[0]

KVS = 2080
R0 = 0
R1 = 32 * KVS
XN_RH = 64 * 528
R2 = R1 + 2 * XN_RH
R4 = R2 + 28928
LDS_BYTES = R4 + 256
(CXN, CST, CWQ, CQ, CKV, CKM, CTAG, CA, CA2, CX, CH2, CR0, CWO, CAD, CF, CE0, CE1, CRW, CRC, CXI, CP1, CL1, CG, CTL, CWI, CGD, CGD1, CGD2, CGD3, CE7, COD, CHN) = [4 * i for i in range(32)]
RE = R2 + 18432
NE = 5
RB2 = R1 + 12 * KVS
assert RB2 % 128 == 0 and RB2 + 65536 <= R4
STAT = 128
assert R2 % 128 == 0
WS_KV = 0
WS_EPOCH = 0x30000
WS_KVF = 0x38000
WS_HF = 0x40000
WS_O = 0x100000
WS_H = 0x400000
WS_STAMP = 0x1000000
sX, sWQ, sWKV, sWO, sW1, sW2, sOUT, sWS = 8, 12, 16, 20, 24, 28, 32, 40
sMASK, sF, sSPIN, sFLG = 44, 45, 46, 47
sWAVE, sRB, sCB, sT0, sT1, sT2, sOFF, sOFF2, sCNT, sSEG = 70, 71, 72, 73, 74, 75, 76, 77, 78, 79
sRG, sOB, sTAG, sTILE, sRING, sW2T, sU0, sU1, sE1, sE2, sXO = 3, 6, 7, 36, 37, 38, 39, 60, 61, 62, 63
sCH = 64
sOA = 52
sSTAMP = 80
vH, vCG, vR, vC, vTR, vXN0, vXN1, vSW, vW1, vL16, vT0, vT1, vSP = 212, 213, 214, 215, 216, 217, 218, 219, 220, 221, 222, 223, 224
vTCH = 225
vSD = 228

class Opt:
    stamps = False
    front = False
    force_fallback = False
    thr = 40.0
    exit_at = 0
    spin = 0x20000
    pace1 = 0
    pace2 = 0
    kvsleep = 1
    kvdelay = 26
    kvtouch = True
    warm2 = True
    touch = 0
    fstart = 2
    twq = True
    wqdepth = 40
    fprio = 0
    outf = ''
    echo = ()
    emul = 1
    NR = 4
    dense = 32
    twait = 1
    nomf2 = False
    nold2 = 0
    ctouch = True
    mid = False
    wo_at = 16
    ntouch = 4
    full = True
    stouch = 0
    late2 = 28
    xr_early = True
    fprio1 = 0
    rot = 14
    la1 = True
    dyn = True
    osleep = 2
    hint = True
    hsleep = 2
    pos = (1, 4, 10)
    fgo = 1
    glate = True
    p7 = 0
    mimic = True
    noatt_tail = False
    jst = False
    e1pos = 1
    t7 = False
    npre = 0
    ph = 8
    pipe = 0
    prefirst = False
    hold = 21
    mkearly = True
    early_poll = 0
    epre = 2
    ln2 = True
    wqsplit = True
    centry = True
    wqafter = 0
    mid2 = False
    fp_early = 0
    fp_n = 0
    dry2 = False
    dryq = False
    onep = False
    pslack = 0
    hfl = 'sc1'
    t2at = 99
    wot = True
    dense2 = 0
    htouch = False
    lnclk = False

def gen(opt):
    e = E()
    uid = [0]
    inatt = [True]
    def lbl(p):
        uid[0] += 1
        return f"L_{p}_{uid[0]}"
    def stamp(k, when=None):
        if when == "front" and not opt.front: return
        if when == "late" and opt.mid2 and not inatt[0] and k in (4, 8, 9): return
        if when == "late" and (opt.front or (opt.jst and k in (1, 2, 3) and inatt[0])): return
        if opt.stamps:
            e.i(f"s_memrealtime {S(sSTAMP+2*k,2)}")
    def cstamp(k):
        if opt.stamps:
            e.i(f"s_memtime {S(sSTAMP+2*k,2)}")
    def dump_stamps():
        if not opt.stamps or opt.echo:
            return
        e.wait_all(vm=True, lg=True)
        e.i("v_mov_b32 v2, 0")
        e.i("v_mbcnt_lo_u32_b32 v1, -1, 0")
        e.i("v_mbcnt_hi_u32_b32 v1, -1, v1")
        for k in range(22):
            e.i(f"v_writelane_b32 v2, s{sSTAMP+k}, {k}")
        e.i(f"s_getreg_b32 s{sT0}, hwreg(HW_REG_XCC_ID)")
        e.i(f"v_writelane_b32 v2, s{sT0}, 22")
        e.i(f"s_lshl_b32 s{sT0}, s2, 3")
        e.i(f"s_add_u32 s{sT0}, s{sT0}, s{sWAVE}")
        e.i(f"s_lshl_b32 s{sT0}, s{sT0}, 8")
        e.i(f"s_add_u32 s{sT0}, s{sT0}, {WS_STAMP}")
        e.i("v_lshlrev_b32 v3, 2, v1")
        e.i(f"buffer_store_dword v2, v3, {S(sWS,4)}, s{sT0} offen")
    def exit_if(k):
        if opt.exit_at == k:
            dump_stamps()
            e.i("s_endpgm")
    def spin_init(mult=1):
        e.i(f"s_mov_b32 s{sSPIN}, {hex(opt.spin*mult)}")
    def spin_tail(top, done, sleep):
        e.i(f"s_sub_u32 s{sSPIN}, s{sSPIN}, 1")
        e.i(f"s_cbranch_scc1 {done}")
        if sleep:
            e.i(f"s_sleep {sleep}")
        e.i(f"s_branch {top}")
    def lds_signal(off, va=6):
        e.i("s_mov_b64 exec, 1")
        e.lds(f"ds_add_u32 v{va}, v7 offset:{off}")
        e.i("s_mov_b64 exec, -1")
    def lds_poll(off, n, vt=5, sleep=1, va=6):
        top, done = lbl("lp"), lbl("lpd")
        spin_init(16)
        e.label(top)
        e.i(f"ds_read_b32 v{vt}, v{va} offset:{off}")
        e.wait_all(lg=True)
        e.i(f"v_readfirstlane_b32 s{sT0}, v{vt}")
        e.i(f"s_cmp_ge_u32 s{sT0}, {n}")
        e.i(f"s_cbranch_scc1 {done}")
        spin_tail(top, done, sleep)
        e.label(done)
    def kv_dma(n, soff, sl, gstep, lstep):
        for i in range(n):
            e.i(f"s_mov_b32 m0, s{sl}")
            e.i(f"s_add_u32 s{sl}, s{sl}, {lstep*KVS}")
            for p in range(2):
                e.vmem(f"buffer_load_dwordx4 v{vL16}, {S(sWS,4)}, s{soff} offen offset:{1024*p} sc1 lds", ("kv", i))
            e.i(f"s_add_u32 s{soff}, s{soff}, {gstep*2048}")
    def setup():
        e.i(f"s_mov_b64 {S(sWQ,2)}, s[50:51]")
        e.i(f"s_mov_b64 {S(sWO,2)}, s[56:57]")
        e.i(f"s_mov_b64 {S(sW1,2)}, s[60:61]")
        e.i(f"s_mov_b64 {S(sW2,2)}, s[62:63]")
        e.i(f"s_mov_b64 {S(sOUT,2)}, s[64:65]")
        e.i(f"s_mov_b64 {S(sWS,2)}, s[68:69]")
        e.i(f"s_lshl_b32 s{sFLG}, s{sRB}, 10")
        e.i(f"s_add_u32 s{sFLG}, s{sFLG}, {hex(WS_HF)}")
        e.i(f"s_mul_i32 s{sRING}, s{sF}, 6144")
        e.i(f"s_add_u32 s{sRING}, s{sRING}, {R2}")
        e.i(f"s_lshl_b32 s{sT0}, s{sRB}, 5")
        e.i(f"s_lshl_b32 s{sT1}, s{sCB}, 2")
        e.i(f"s_add_u32 s{sT0}, s{sT0}, s{sT1}")
        e.i(f"s_and_b32 s{sT1}, s{sF}, 1")
        e.i(f"s_lshl_b32 s{sXO}, s{sT1}, 6")
        e.i(f"s_lshl_b32 s{sT1}, s{sT1}, 1")
        e.i(f"s_add_u32 s{sT0}, s{sT0}, s{sT1}")
        e.i(f"s_lshl_b32 s{sT0}, s{sT0}, 1")
        e.i(f"s_lshr_b32 s{sT1}, s{sF}, 1")
        e.i(f"s_add_u32 s{sT0}, s{sT0}, s{sT1}")
        e.i(f"s_lshl_b32 s{sT0}, s{sT0}, 10")
        e.i(f"s_add_u32 s{sOB}, s{sT0}, {WS_O}")
        e.i(f"s_lshl_b32 s{sT0}, s{sRB}, 1")
        e.i(f"s_add_u32 s{sT0}, s{sT0}, s{sT1}")
        e.i(f"s_lshl_b32 s{sT0}, s{sT0}, 15")
        e.i(f"s_add_u32 s{sXO}, s{sXO}, s{sT0}")
        e.i(f"s_lshl_b32 s{sT0}, s{sCB}, 7")
        e.i(f"s_add_u32 s{sXO}, s{sXO}, s{sT0}")
        e.i("v_lshrrev_b32 v5, 2, v1")
        e.i("v_and_b32 v5, 4, v5")
        e.i("v_xor_b32 v5, v5, v3")
        e.i("v_lshlrev_b32 v5, 4, v5")
        e.i(f"v_lshl_add_u32 v{vSW}, v2, 10, v5")
        e.i(f"v_mul_u32_u24 v{vW1}, 3584, v2")
        e.i(f"v_add_u32 v{vW1}, v{vW1}, v5")
        e.i(f"v_lshlrev_b32 v{vL16}, 4, v1")
        e.i(f"v_lshrrev_b32 v{vH}, 5, v1")
        e.i(f"v_bfe_u32 v{vCG}, v1, 4, 1")
        e.i(f"v_bfe_u32 v{vR}, v1, 2, 2")
        e.i(f"v_and_b32 v{vC}, 3, v1")
        e.i(f"v_lshrrev_b32 v4, 1, v{vC}")
        e.i(f"v_lshl_add_u32 v4, v{vCG}, 1, v4")
        e.i(f"v_lshlrev_b32 v5, 1, v{vR}")
        e.i("v_and_b32 v5, 4, v5")
        e.i("v_xor_b32 v4, v4, v5")
        e.i(f"v_lshlrev_b32 v{vTR}, 7, v{vR}")
        e.i(f"v_lshl_add_u32 v{vTR}, v4, 4, v{vTR}")
        e.i(f"v_and_b32 v5, 1, v{vC}")
        e.i(f"v_lshl_add_u32 v{vTR}, v5, 3, v{vTR}")
        e.i("v_and_b32 v5, 31, v1")
        e.i(f"v_mul_u32_u24 v{vXN0}, 528, v{vH}")
        e.i(f"v_lshl_add_u32 v{vXN0}, v5, 4, v{vXN0}")
        e.i(f"v_add_u32 v{vXN0}, {R1}, v{vXN0}")
        e.i(f"v_add_u32 v{vXN1}, {XN_RH}, v{vXN0}")
        e.i("v_lshlrev_b32 v205, 10, v5")
        e.i(f"v_lshl_add_u32 v205, v{vH}, 3, v205")
        e.i(f"v_mul_u32_u24 v{vSP}, {KVS}, v5")
        e.i(f"v_lshl_add_u32 v{vSP}, v{vH}, 4, v{vSP}")
        e.i(f"v_subrev_u32 v{vSD}, 1, v{vH}")
        e.i(f"v_and_b32 v{vSD}, 0x3f803f80, v{vSD}")
        for r in range(1, 4):
            e.i(f"v_mov_b32 v{vSD+r}, v{vSD}")
        e.i("v_and_b32 v4, 15, v1")
        e.i(f"v_lshl_add_u32 v4, v{vH}, 4, v4")
        e.i("v_lshlrev_b32 v203, 4, v4")
        e.i(f"v_lshl_add_u32 v{vT0}, v{vH}, 10, v{vTR}")

    e.i("s_cmp_ge_u32 s2, 256")
    e.i("s_cbranch_scc1 L_end")
    e.i("s_load_dwordx16 s[48:63], s[0:1], 0")
    e.i("s_load_dwordx2 s[64:65], s[0:1], 64")
    e.i("s_load_dwordx2 s[68:69], s[0:1], 80")
    stamp(0)
    e.i("v_lshrrev_b32 v2, 6, v0")
    e.i("v_and_b32 v1, 63, v0")
    e.i(f"v_readfirstlane_b32 s{sWAVE}, v2")
    def ctouch():
        e.c("pull this kernel's code into L2: 16 lines per workgroup, the workgroups of an XCD cover all of it")
        e.i(f"s_getpc_b64 {S(sWKV,2)}")
        e.label("L_pc")
        e.i(f"s_mov_b32 s{sWKV+2}, L_code_end-L_pc")
        e.i(f"s_mov_b32 s{sWKV+3}, 0x20000")
        e.i(f"s_lshr_b32 s{sT0}, s2, 3")
        e.i(f"s_lshl_b32 s{sT0}, s{sT0}, 7")
        e.i("v_lshlrev_b32 v104, 12, v1")
        e.i("s_mov_b64 exec, 0xffff")
        e.i(f"buffer_load_dword v106, v104, {S(sWKV,4)}, s{sT0} offen")
        e.i("s_mov_b64 exec, -1")
    if opt.ctouch and opt.centry:
        e.i(f"s_cmp_lg_u32 s{sWAVE}, 4")
        e.i("s_cbranch_scc1 L_no_ct")
        ctouch()
        e.label("L_no_ct")
    e.c("workgroup -> (row block rb, column block cb); ids that share id&7 share half of the columns and 1/4 of the rows")
    e.i(f"s_and_b32 s{sT0}, s2, 7")
    e.i(f"s_lshr_b32 s{sT1}, s2, 3")
    e.i(f"s_and_b32 s{sCB}, s{sT1}, 3")
    e.i(f"s_lshl_b32 s{sCB}, s{sCB}, 1")
    e.i(f"s_and_b32 s{sRB}, s{sT0}, 1")
    e.i(f"s_add_u32 s{sCB}, s{sCB}, s{sRB}")
    e.i(f"s_lshr_b32 s{sT1}, s{sT1}, 2")
    e.i(f"s_lshr_b32 s{sRB}, s{sT0}, 1")
    e.i(f"s_lshl_b32 s{sRB}, s{sRB}, 3")
    e.i(f"s_add_u32 s{sRB}, s{sRB}, s{sT1}")
    e.i(f"s_mov_b32 s{sMASK}, 0xffff0000")
    e.i(f"s_and_b32 s{sF}, s{sWAVE}, 3")
    e.c("row group of this wave: (w + 2*rq + 3) & 7 -> waves 5,6 hold the 16 rows of this workgroup's K/V tile")
    e.i(f"s_and_b32 s{sRG}, s{sCB}, 6")
    e.i(f"s_add_u32 s{sRG}, s{sRG}, s{sWAVE}")
    e.i(f"s_add_u32 s{sRG}, s{sRG}, 3")
    e.i(f"s_and_b32 s{sRG}, s{sRG}, 7")
    e.i("v_lshrrev_b32 v2, 3, v1")
    e.i("v_and_b32 v3, 7, v1")
    e.i("v_lshlrev_b32 v4, 10, v2")
    e.i("v_lshl_add_u32 v4, v3, 4, v4")
    e.i(f"s_lshl_b32 s{sOFF}, s{sRB}, 3")
    e.i(f"s_add_u32 s{sOFF}, s{sOFF}, s{sRG}")
    e.i(f"s_lshl_b32 s{sOFF}, s{sOFF}, 13")
    for srd, size in ((sX, 2048*512*2), (sWQ, 512*512*2), (sWKV, 512*16*2), (sWO, 512*512*2), (sW1, 512*1792*2),
                      (sW2, 1792*512*2), (sOUT, 2048*512*2), (sWS, 0x10000000)):
        e.i(f"s_mov_b32 s{srd+2}, {hex(size)}")
        e.i(f"s_mov_b32 s{srd+3}, 0x20000")
    e.i(f"v_mov_b32 v6, {R4}")
    e.i("v_mov_b32 v7, 1")
    e.i("v_mov_b64 v[108:109], 0")
    e.i("v_and_b32 v105, 15, v1")
    e.i("v_lshl_add_u32 v105, v105, 3, v6")
    e.i("ds_write_b64 v105, v[108:109]")
    e.i(f"s_mov_b32 s{sSEG}, 0")
    e.i(f"s_cmp_eq_u32 s{sWAVE}, 7")
    e.i("s_cbranch_scc1 L_pre_7")
    e.i("s_waitcnt lgkmcnt(0)")
    e.i(f"s_mov_b64 {S(sX,2)}, s[48:49]")
    e.i(f"s_cmp_eq_u32 s{sWAVE}, 4")
    e.i("s_cbranch_scc1 L_pre_4")
    e.i(f"s_cmp_ge_u32 s{sWAVE}, 5")
    e.i("s_cbranch_scc1 L_pre_first")
    e.i("s_barrier")
    e.label("L_pre_first")
    for i in range(8):
        e.i(f"buffer_load_dwordx4 {V(8+4*i,4)}, v4, {S(sX,4)}, s{sOFF} offen offset:{128*i}")
    e.i("s_cbranch_scc0 L_pre_second")
    e.i("s_barrier")
    e.label("L_pre_second")
    e.i(f"s_cmp_eq_u32 s{sWAVE}, 0")
    e.i("s_cbranch_scc1 L_pre_dbl")
    e.i(f"s_cmp_lg_u32 s{sWAVE}, 3")
    e.i("s_cbranch_scc1 L_pre_n3")
    e.label("L_pre_dbl")
    e.c("waves 0,3 also normalise the rows waves 4,7 would have had (row group ^ 4)")
    e.i(f"s_xor_b32 s{sOFF}, s{sOFF}, 0x8000")
    for i in range(8):
        e.i(f"buffer_load_dwordx4 {V(128+4*i,4)}, v4, {S(sX,4)}, s{sOFF} offen offset:{128*i}")
    e.i(f"s_mov_b32 s{sSEG}, 1")
    e.label("L_pre_n3")
    lds_signal(CXI)
    setup()
    e.i(f"s_cmp_ge_u32 s{sWAVE}, 4")
    e.i("s_cbranch_scc1 L_pre_56")
    S0, S1, P0, P1, OA, OB, NMA, NMB, QA, QB, KB, VB = 32, 48, 64, 72, 80, 96, 112, 128, 144, 148, 152, 168
    vK, vV0, vV1, vVG, vVC = 200, 201, 202, 203, 204
    e.i("s_setprio 1")
    e.i(f"s_and_b32 s{sT1}, s{sWAVE}, 1")
    e.i(f"s_lshl_b32 s{sT2}, s{sT1}, 6")
    e.i(f"v_xor_b32 v{vT0}, s{sT2}, v{vT0}")
    e.i(f"s_lshr_b32 s{sT1}, s{sWAVE}, 1")
    e.i(f"s_mul_i32 s{sT1}, s{sT1}, {XN_RH}")
    e.i(f"v_add_u32 v{vXN0}, s{sT1}, v{vXN0}")
    e.i(f"v_add_u32 v{vK}, {RE}, v{vL16}")
    e.i("v_and_b32 v5, 11, v1")
    e.i("v_cmp_ne_u32 vcc, 0, v5")
    e.i(f"v_mov_b32 v4, {RE+2048}")
    e.i(f"v_mov_b32 v5, {RE+2064}")
    e.i(f"v_add_u32 v{vV0}, {RE+1024}, v{vVG}")
    e.i("v_cndmask_b32 v4, v4, v5, vcc")
    e.i(f"v_cmp_eq_u32 vcc, 0, v{vCG}")
    e.i(f"v_add_u32 v{vV1}, {RE+1536}, v{vVG}")
    e.i("v_mov_b32 v207, 0xdddddddd")
    e.nop(1)
    e.i(f"v_cndmask_b32 v{vV0}, v4, v{vV0}, vcc")
    e.i(f"v_cndmask_b32 v{vV1}, v4, v{vV1}, vcc")
    if opt.stouch:
        e.c("scalar touches of w1 -> L2: wave w takes line column w, rows (rb&7) + 8i")
        e.i(f"s_and_b32 s{sT0}, s{sRB}, 7")
        e.i(f"s_mul_i32 s{sT0}, s{sT0}, 3584")
        e.i(f"s_mul_i32 s{sT1}, s{sCB}, 448")
        e.i(f"s_add_u32 s{sT0}, s{sT0}, s{sT1}")
        e.i(f"s_lshl_b32 s{sT1}, s{sWAVE}, 7")
        e.i(f"s_add_u32 s{sT0}, s{sT0}, s{sT1}")
        e.i(f"s_add_u32 s4, s60, s{sT0}")
        e.i("s_addc_u32 s5, s61, 0")
        for i in range(opt.stouch):
            e.i(f"s_load_dword s{sU0}, s[4:5], {hex(i*8*3584)}")
    if opt.ln2 and opt.dry2:
        e.c("while x is in flight: walk a quarter of the double-pass code with all lanes off (VALU / LDS writes only) to warm the instruction cache")
        e.i("v_mov_b32 v122, 0")
        e.i("s_mov_b64 exec, 0")
        for w in range(3):
            e.i(f"s_cmp_eq_u32 s{sWAVE}, {w}")
            e.i(f"s_cbranch_scc1 L_dry_{w}")
        e.i("s_branch L_dry_3")
        e.label("L_dry_ret")
        e.i("s_mov_b64 exec, -1")
    e.i(f"s_cmp_eq_u32 s{sSEG}, 1")
    e.i("s_cbranch_scc1 L_pre_w8")
    e.i("s_waitcnt vmcnt(0)")
    e.i("s_branch L_ln")
    e.label("L_pre_w8")
    e.i("s_waitcnt vmcnt(8)")
    e.i("s_branch L_ln2" if opt.ln2 else "s_branch L_ln")

    def ffn_setup():
        e.i(f"s_and_b32 s{sTILE}, s{sCB}, 1")
        e.i(f"s_lshl_b32 s{sT1}, s{sF}, 1")
        e.i(f"s_add_u32 s{sTILE}, s{sTILE}, s{sT1}")
        e.i(f"v_add_u32 v{vT0}, s{sRING}, v{vT0}")
        e.i(f"v_xor_b32 v{vT1}, 64, v{vT0}")
    e.label("L_pre_4")
    if opt.ctouch and not opt.centry:
        ctouch()
    e.c("wave 4: loader.  wq slice -> R0 by DMA behind the x loads; touches 1/8 of the w1 slice -> L2")
    setup()
    ffn_setup()
    e.i(f"s_lshl_b32 s{sOFF}, s{sCB}, 7")
    e.i(f"s_mov_b32 s{sT1}, 0")
    if opt.rot & 1:
        e.i(f"s_and_b32 s{sT1}, s{sRB}, 7")
        e.i(f"s_lshl_b32 s{sT0}, s{sT1}, 16")
        e.i(f"s_add_u32 s{sOFF}, s{sOFF}, s{sT0}")
        e.i(f"s_lshl_b32 s{sT1}, s{sT1}, 13")
    e.i(f"s_mov_b32 s{sCNT}, 7")
    def touch_setup(so):
        e.i("v_lshrrev_b32 v105, 2, v1")
        e.i("v_mul_u32_u24 v105, 3584, v105")
        e.i(f"v_lshl_add_u32 v105, v{vC}, 7, v105")
        e.i(f"s_and_b32 s{so}, s{sRB}, 7")
        e.i(f"s_mul_i32 s{so}, s{so}, {16*3584}")
        e.i(f"s_mul_i32 s{sT0}, s{sCB}, 448")
        e.i(f"s_add_u32 s{so}, s{so}, s{sT0}")
    def touches(so=sT2, a=0, b=4):
        for i in range(a, b):
            e.i(f"s_add_u32 s{sU0}, s{so}, {i*128*3584}")
            e.i(f"buffer_load_dword v106, v105, {S(sW1,4)}, s{sU0} offen")
    touch_setup(sT2)
    if opt.twq:
        e.i("v_lshrrev_b32 v104, 2, v1")
        e.i("v_lshlrev_b32 v104, 10, v104")
        e.i(f"v_lshl_add_u32 v104, v{vC}, 8, v104")
        e.i(f"s_lshr_b32 s{sT0}, s2, 3")
        e.i(f"s_lshl_b32 s{sT0}, s{sT0}, 14")
        e.i(f"s_and_b32 s{sU0}, s{sCB}, 1")
        e.i(f"s_lshl_b32 s{sU0}, s{sU0}, 7")
        e.i(f"s_add_u32 s{sT0}, s{sT0}, s{sU0}")
    e.i("s_barrier")
    if opt.twq:
        e.i(f"buffer_load_dword v106, v104, {S(sWQ,4)}, s{sT0} offen")
    if opt.touch == 4:
        touches()
    lds_poll(CXI, 6, sleep=0)
    if opt.wqafter:
        lds_poll(CXN, opt.wqafter, sleep=1)
    e.label("L_wq_loop")
    for i in range(8):
        e.i(f"s_mov_b32 m0, s{sT1}")
        e.i(f"s_add_u32 s{sT1}, s{sT1}, 1024")
        e.i(f"buffer_load_dwordx4 v{vSW}, {S(sWQ,4)}, s{sOFF} offen lds")
        e.i(f"s_add_u32 s{sOFF}, s{sOFF}, 8192")
    e.i(f"s_and_b32 s{sOFF}, s{sOFF}, 0x7ffff")
    e.i(f"s_and_b32 s{sT1}, s{sT1}, 0xffff")
    e.i(f"s_waitcnt vmcnt({opt.wqdepth})")
    e.i(f"s_sub_u32 s{sCNT}, s{sCNT}, 1")
    e.i("s_cbranch_scc0 L_wq_loop")
    lds_signal(CWI)
    stamp(1, "front")
    if opt.touch == 1:
        touches()
    if opt.wqsplit:
        e.i("s_waitcnt vmcnt(24)")
        lds_signal(CWQ)
    e.i("s_waitcnt vmcnt(0)")
    lds_signal(CWQ)
    stamp(8, "front")
    if opt.touch == 2 or (opt.touch == 3 and opt.ntouch < 4):
        lds_poll(CG, 4, sleep=2)
        touches(sT2, opt.ntouch if opt.touch == 3 else opt.stouch // 16, 4)
    e.i("s_branch L_ffn")

    e.label("L_pre_56")
    ffn_setup()
    e.i("s_setprio 3")
    e.i("s_waitcnt vmcnt(0)")

    e.label("L_ln")
    stamp(1, "front")
    if opt.lnclk:
        stamp(6); cstamp(9)
    X = 40
    A = 112
    e.i(f"s_lshr_b32 s{sT0}, s{sRG}, 2")
    e.i(f"s_mul_i32 s{sT0}, s{sT0}, {XN_RH}")
    e.i(f"s_and_b32 s{sT1}, s{sRG}, 3")
    e.i(f"s_lshl_b32 s{sT1}, s{sT1}, 7")
    e.i(f"s_add_u32 s{sT0}, s{sT0}, s{sT1}")
    e.i(f"s_add_u32 s{sT0}, s{sT0}, {R1}")
    e.i("v_mul_u32_u24 v122, 528, v3")
    e.i("v_lshl_add_u32 v122, v2, 4, v122")
    e.i(f"v_add_u32 v122, s{sT0}, v122")
    e.i(f"s_cmp_lt_u32 s{sWAVE}, 5")
    e.i("s_cbranch_scc1 L_ln_a")
    e.c("waves 5,6: raw rows -> LDS for the K/V wave")
    for i in range(8):
        e.i(f"ds_write_b128 v122, {V(8+4*i,4)} offset:{4224*i}")
    lds_signal(CRW)
    e.label("L_ln_a")
    e.i("v_mov_b32 v110, 0x3f803f80")
    e.i("v_mov_b64 v[112:113], 0")
    e.i("v_mov_b32 v108, 0x3f80")
    e.i("v_mov_b32 v109, 0x3f800000")
    for t in range(32):
        e.i(f"v_dot2c_f32_bf16 v{A+(t&1)}, v{8+t}, v110")
    def reduce_lanes():
        for m in ("quad_perm:[1,0,3,2]", "quad_perm:[2,3,0,1]", "row_half_mirror"):
            e.nop(2)
            e.i(f"v_add_f32_dpp v{A}, v{A}, v{A} {m} row_mask:0xf bank_mask:0xf")
    e.nop(3)
    e.i(f"v_add_f32 v{A}, v{A}, v{A+1}")
    reduce_lanes()
    def rnd(d, a):
        e.i(f"v_cvt_pk_bf16_f32 v{d}, v{a}, v{a}")
        e.i(f"v_and_b32 v{d}, s{sMASK}, v{d}")
    if opt.mimic:
        e.c("row statistics are rounded to bf16 where the reference rounds them")
        e.i(f"v_mul_f32 v121, {hex(f32bits(-1.0/512))}, v{A}")
        rnd(120, 121)
        e.i("v_sub_f32 v121, v121, v120")
    else:
        e.i(f"v_mul_f32 v120, {hex(f32bits(-1.0/512))}, v{A}")
    for t in range(32):
        e.i(f"v_dot2_f32_bf16 v{X+2*t}, v{8+t}, v108, v120")
        e.i(f"v_dot2_f32_bf16 v{X+2*t+1}, v{8+t}, v109, v120")
    for t in range(32):
        a = t % 4
        if t < 4:
            e.i(f"v_pk_mul_f32 {V(A+2*a,2)}, {V(X+2*t,2)}, {V(X+2*t,2)}")
        else:
            e.i(f"v_pk_fma_f32 {V(A+2*a,2)}, {V(X+2*t,2)}, {V(X+2*t,2)}, {V(A+2*a,2)}")
    e.i(f"v_pk_add_f32 {V(A,2)}, {V(A,2)}, {V(A+2,2)}")
    e.i(f"v_pk_add_f32 {V(A+4,2)}, {V(A+4,2)}, {V(A+6,2)}")
    e.i(f"v_pk_add_f32 {V(A,2)}, {V(A,2)}, {V(A+4,2)}")
    e.i(f"v_add_f32 v{A}, v{A}, v{A+1}")
    reduce_lanes()
    if opt.mimic:
        e.i(f"v_mul_f32 v119, {hex(f32bits(1.0/512))}, v{A}")
        e.i("v_fma_f32 v119, -v121, v121, v119")
        e.i("v_max_f32 v119, 0, v119")
        rnd(119, 119)
        e.i(f"v_add_f32 v119, {hex(f32bits(1e-5))}, v119")
        rnd(119, 119)
        e.i("v_sqrt_f32 v119, v119")
        e.nop(1)
        rnd(119, 119)
        e.i("v_rcp_f32 v118, v119")
    else:
        e.i(f"v_mov_b32 v119, {hex(f32bits(1e-5))}")
        e.i(f"v_fmac_f32 v119, {hex(f32bits(1.0/512))}, v{A}")
        e.i("v_rsq_f32 v118, v119")
    e.i(f"s_cmp_lt_u32 s{sWAVE}, 5")
    e.i("s_cbranch_scc1 L_ln_b")
    e.c("waves 5,6: hand the row statistics to the K/V wave")
    e.i(f"s_lshl_b32 s{sT0}, s{sWAVE}, 5")
    e.i(f"s_add_u32 s{sT0}, s{sT0}, {R4 + STAT - 160}")
    e.i(f"v_lshl_add_u32 v111, v2, 2, s{sT0}")
    e.i("ds_write2_b32 v111, v120, v118 offset1:16")
    lds_signal(CST)
    lds_poll(CRC, 1, sleep=0)
    e.label("L_ln_b")
    e.lg = []
    for i in range(8):
        for t in range(4*i, 4*i+4):
            e.i(f"v_pk_mul_f32 {V(X+2*t,2)}, {V(X+2*t,2)}, v[118:119] op_sel_hi:[1,0]")
        for t in range(4*i, 4*i+4):
            e.i(f"v_cvt_pk_bf16_f32 v{8+t}, v{X+2*t}, v{X+2*t+1}")
        e.lds(f"ds_write_b128 v122, {V(8+4*i,4)} offset:{4224*i}")
    lds_signal(CXN)
    e.i(f"s_cmp_eq_u32 s{sSEG}, 0")
    e.i("s_cbranch_scc1 L_ln_done")
    e.i(f"s_mov_b32 s{sSEG}, 0")
    e.i(f"s_xor_b32 s{sRG}, s{sRG}, 4")
    e.i("s_waitcnt vmcnt(0)")
    for t in range(0, 32, 2):
        e.i(f"v_mov_b64 {V(8+t,2)}, {V(128+t,2)}")
    e.i("s_branch L_ln")
    e.label("L_ln_done")
    stamp(8, "front")
    if opt.lnclk:
        stamp(7); cstamp(10)
    if opt.dryq:
        e.i(f"s_cmp_eq_u32 s{sWAVE}, 6")
        e.i("s_cbranch_scc1 L_dryq")
    e.i(f"s_cmp_ge_u32 s{sWAVE}, 4")
    e.i("s_cbranch_scc1 L_ffn")

    if opt.ln2:
        keep = e.lines
        e.lines = []
        class G: pass
        def phases(raw, xs, acc, nm, dl, ad):
            p = G()
            a0 = acc[0]
            p.sum = [f"v_dot2c_f32_bf16 v{a0+(t&1)}, v{raw+t}, v110" for t in range(32)]
            dpp = [f"v_add_f32_dpp v{a0}, v{a0}, v{a0} {m} row_mask:0xf bank_mask:0xf" for m in ("quad_perm:[1,0,3,2]", "quad_perm:[2,3,0,1]", "row_half_mirror")]
            rn = lambda d, a: [f"v_cvt_pk_bf16_f32 v{d}, v{a}, v{a}", f"v_and_b32 v{d}, s{sMASK}, v{d}"]
            p.r1 = [f"v_add_f32 v{a0}, v{a0}, v{a0+1}"] + dpp + [f"v_mul_f32 v{dl}, {hex(f32bits(-1.0/512))}, v{a0}"] + rn(nm, dl) + [f"v_sub_f32 v{dl}, v{dl}, v{nm}"]
            p.cen = []
            for t in range(32):
                p.cen += [f"v_dot2_f32_bf16 v{xs[t]}, v{raw+t}, v108, v{nm}", f"v_dot2_f32_bf16 v{xs[t]+1}, v{raw+t}, v109, v{nm}"]
            p.sq = [f"v_pk_mul_f32 {V(acc[t],2)}, {V(xs[t],2)}, {V(xs[t],2)}" if t < 4 else
                    f"v_pk_fma_f32 {V(acc[t%4],2)}, {V(xs[t],2)}, {V(xs[t],2)}, {V(acc[t%4],2)}" for t in range(32)]
            r, q = acc[3], acc[3] + 1
            p.r2 = [f"v_pk_add_f32 {V(acc[0],2)}, {V(acc[0],2)}, {V(acc[1],2)}", f"v_pk_add_f32 {V(acc[2],2)}, {V(acc[2],2)}, {V(acc[3],2)}",
                    f"v_pk_add_f32 {V(acc[0],2)}, {V(acc[0],2)}, {V(acc[2],2)}", f"v_add_f32 v{a0}, v{a0}, v{a0+1}"] + dpp + \
                   [f"v_mul_f32 v{q}, {hex(f32bits(1.0/512))}, v{a0}", f"v_fma_f32 v{q}, -v{dl}, v{dl}, v{q}", f"v_max_f32 v{q}, 0, v{q}"] + rn(q, q) + \
                   [f"v_add_f32 v{q}, {hex(f32bits(1e-5))}, v{q}"] + rn(q, q) + [f"v_sqrt_f32 v{q}, v{q}"] + rn(q, q) + [f"v_rcp_f32 v{r}, v{q}"]
            p.norm = []
            for i in range(8):
                p.norm += [f"v_pk_mul_f32 {V(xs[t],2)}, {V(xs[t],2)}, {V(r,2)} op_sel_hi:[1,0]" for t in range(4*i, 4*i+4)]
                p.norm += [f"v_cvt_pk_bf16_f32 v{raw+t}, v{xs[t]}, v{xs[t]+1}" for t in range(4*i, 4*i+4)]
                p.norm += [f"ds_write_b128 v{ad}, {V(raw+4*i,4)} offset:{4224*i}"]
            return p
        def merge(ser, bulk, k):
            out, b = [], list(bulk)
            for x in ser:
                out += b[:k]; b = b[k:]
                out.append(x)
            return out + b
        PA = phases(8, [40+2*t for t in range(32)], [112, 114, 116, 118], 120, 121, 122)
        PB = phases(128, [160+2*t for t in range(20)] + [232+2*t for t in range(12)], [104, 106, 124, 126], 111, 123, 5)
        e.label("L_ln2")
        e.c("waves 0,3: two row groups (rg and rg^4) in one interleaved pass")
        stamp(1, "front")
        e.i(f"s_lshr_b32 s{sT0}, s{sRG}, 2")
        e.i(f"s_mul_i32 s{sT0}, s{sT0}, {XN_RH}")
        e.i(f"s_and_b32 s{sT1}, s{sRG}, 3")
        e.i(f"s_lshl_b32 s{sT1}, s{sT1}, 7")
        e.i(f"s_add_u32 s{sT1}, s{sT1}, {R1}")
        e.i(f"s_add_u32 s{sT2}, s{sT1}, {XN_RH}")
        e.i(f"s_sub_u32 s{sT2}, s{sT2}, s{sT0}")
        e.i(f"s_add_u32 s{sT0}, s{sT0}, s{sT1}")
        e.i("v_mul_u32_u24 v122, 528, v3")
        e.i("v_lshl_add_u32 v122, v2, 4, v122")
        e.i(f"v_add_u32 v5, s{sT2}, v122")
        e.i(f"v_add_u32 v122, s{sT0}, v122")
        e.i("v_mov_b32 v110, 0x3f803f80")
        e.i("v_mov_b64 v[112:113], 0")
        e.i("v_mov_b64 v[104:105], 0")
        e.i("v_mov_b32 v108, 0x3f80")
        e.i("v_mov_b32 v109, 0x3f800000")
        def zipn(x, y):
            out = []
            for p, q in zip(x, y):
                out += [p, q] + (["s_nop 0"] if "dpp" in p or "v_add_f32 " in p else [])
            return out
        def solo(x):
            out = []
            for p in x:
                if "dpp" in p: out.append("s_nop 1")
                out.append(p)
                if "v_sqrt" in p: out.append("s_nop 0")
            return out
        seq = PA.sum + ["s_nop 2"] + solo(PA.r1) + PA.cen + PA.sq + solo(PA.r2) + ["s_nop 0"] + PA.norm[:9] + ["s_waitcnt vmcnt(0)"]
        if opt.stamps and opt.front:
            seq += [f"s_memrealtime {S(sSTAMP+18,2)}"]
        seq += PB.sum[:16] + PA.norm[9:18] + PB.sum[16:] + merge(PB.r1, PA.norm[18:36], 3)
        rest = PB.cen + PB.sq
        for i in range(4):
            seq += rest[24*i:24*i+24] + PA.norm[36+9*i:45+9*i]
        seq += solo(PB.r2) + ["s_nop 0"]
        k0 = seq.index("s_waitcnt vmcnt(0)") + 1
        n3 = (len(seq) - k0) // 3
        for k, t in enumerate(seq):
            if opt.dry2 and k in (k0 + n3, k0 + 2 * n3):
                e.i("s_cbranch_execz L_dry_ret")
            if opt.dry2 and k in (k0, k0 + n3, k0 + 2 * n3):
                e.label(f"L_dry_{(k - k0) // n3}")
            e.i(t)
        if opt.dry2:
            e.i("s_cbranch_execz L_dry_ret")
        lds_signal(CXN)
        e.label("L_dry_3")
        for t in PB.norm: e.i(t)
        if opt.dry2:
            e.i("s_cbranch_execz L_dry_ret")
        lds_signal(CXN)
        e.i("s_branch L_ln_done")
        ln2_lines = e.lines
        e.lines = keep
    e.vm = []
    for r in range(0, 32, 2):
        e.i(f"v_mov_b64 {V(OA+r,2)}, 0")
    lds_poll(CWQ, 1, sleep=0)
    for q in range(4):
        e.i(f"buffer_load_dwordx2 {V(232+2*q,2)}, v205, {S(sX,4)}, s{sXO} offen offset:{16*q}")
    lds_poll(CXN, 9, sleep=0)
    stamp(2, "front")
    e.label("L_q")
    fill = []
    e.c("Q projection: wave w -> head pair hp=w&1, row half rh=w>>1")
    def qreads(ks):
        s = ks % 4
        if ks == 20 and opt.wqsplit:
            e.i(f"v_readfirstlane_b32 s{sT0}, v5")
            e.i(f"s_cmp_ge_u32 s{sT0}, 2")
            e.i("s_cbranch_scc0 L_slow_wq")
            e.label("L_back_wq")
        if ks == 16 and opt.wqsplit:
            e.lds(f"ds_read_b32 v5, v6 offset:{CWQ}")
        e.lds(f"ds_read_b64_tr_b16 {V(32+8*s,2)}, v{vT0} offset:{ks*2048}", ("q", ks))
        e.lds(f"ds_read_b64_tr_b16 {V(34+8*s,2)}, v{vT0} offset:{ks*2048+512}", ("q", ks))
        e.lds(f"ds_read_b128 {V(36+8*s,4)}, v{vXN0} offset:{ks*1056}", ("q", ks))
    for ks in range(4):
        qreads(ks)
    for ks in range(32):
        s = ks % 4
        e.wait(lg=("q", ks))
        e.i(f"{MF32} v[8:23], {V(32+8*s,4)}, {V(36+8*s,4)}, {'0' if ks == 0 else 'v[8:23]'}")
        if ks + 4 < 32:
            qreads(ks + 4)
        if ks == 27:
            lds_signal(CQ)
        if fill:
            e.i(fill.pop(0))
    e.i(f"v_mov_b32 v28, {hex(f32bits(0.25*math.log2(math.e)))}")
    e.nop(11)
    for r in range(0, 16, 2):
        e.i(f"v_pk_mul_f32 {V(8+r,2)}, {V(8+r,2)}, v[28:29] op_sel_hi:[1,0]")
    for k in range(4):
        for hd in range(2):
            b = 8 + 8*hd + 2*k
            if k == 0:
                e.i(f"v_pk_mul_f32 {V(30+2*hd,2)}, {V(b,2)}, {V(b,2)}")
            else:
                e.i(f"v_pk_fma_f32 {V(30+2*hd,2)}, {V(b,2)}, {V(b,2)}, {V(30+2*hd,2)}")
    e.i("v_add_f32 v24, v30, v31")
    e.i("v_add_f32 v25, v32, v33")
    e.i("v_mov_b32 v26, v24")
    e.i("v_mov_b32 v27, v25")
    for hd in range(2):
        for j in range(4):
            e.i(f"v_cvt_pk_bf16_f32 v{QA+4*hd+j}, v{8+8*hd+2*j}, v{8+8*hd+2*j+1}")
    e.i("v_permlane32_swap_b32 v24, v26")
    e.i("v_permlane32_swap_b32 v25, v27")
    e.i("v_add_f32 v24, v24, v26")
    e.i("v_add_f32 v25, v25, v27")
    if opt.dryq:
        e.i(f"s_cmp_eq_u32 s{sWAVE}, 6")
        e.i("s_cbranch_scc1 L_dryq_ret")
    stamp(3, "front")
    lds_poll(CKV, 2, sleep=0)
    stamp(4)
    e.lds(f"ds_read_b32 v206, v6 offset:{CTAG}")
    e.lds(f"ds_read_b32 v30, v6 offset:{CKM}")
    e.wait_all(lg=True)
    e.c("stand-in for the row max: |q| * max|k| >= max_k q.k ; used only while it cannot be far above the true max")
    e.i("v_mul_f32 v24, v24, v30")
    e.i("v_mul_f32 v25, v25, v30")
    e.i("v_sqrt_f32 v24, v24")
    e.i("v_sqrt_f32 v25, v25")
    e.i(f"s_mov_b32 s{sT1}, {hex(f32bits(opt.thr))}")
    e.i("v_max_f32 v26, v24, v25")
    e.i(f"v_cmp_nge_f32 vcc, s{sT1}, v26")
    e.i("v_cmp_u_f32 s[4:5], v24, v25")
    e.i("s_or_b64 s[4:5], s[4:5], vcc")
    if opt.force_fallback:
        e.i("s_branch L_fallback")
    else:
        e.i("s_cbranch_scc1 L_fallback")
    e.label("L_att_start")
    e.i(f"v_sub_f32 v{NMA}, 0, v24")
    e.i(f"v_sub_f32 v{NMA+1}, 0, v24")
    e.i(f"v_sub_f32 v{NMB}, 0, v25")
    e.i(f"v_sub_f32 v{NMB+1}, 0, v25")
    for r in range(2, 16, 2):
        e.i(f"v_mov_b64 {V(NMA+r,2)}, {V(NMA,2)}")
        e.i(f"v_mov_b64 {V(NMB+r,2)}, {V(NMB,2)}")
    lds_poll(CE7, 1, sleep=0)
    for j in range(3):
        e.lds(f"ds_read_b128 {V(KB+4*j,4)}, v{vK} offset:{j*KVS}", ("a", j))
        e.lds(f"ds_read_b128 {V(VB+8*j,4)}, v{vV0} offset:{j*KVS}")
        e.lds(f"ds_read_b128 {V(VB+8*j+4,4)}, v{vV1} offset:{j*KVS}")
    e.wait(lg=("a", 0))
    e.i(f"{MF32} {V(S0,16)}, {V(KB,4)}, {V(QA,4)}, {V(NMA,16)}")
    e.nop(11)
    e.wait_all(lg=True)
    stamp(5)
    def em(t):
        if t.endswith(":"): e.raw(t)
        else: e.i(t)
    def step(cur, oth, K, Q, NM, O, V0, Op, V1p, after, noqk=False, nopv=False):
        for i in range(16):
            e.i(f"v_exp_f32 v{cur+i}, v{cur+i}")
            if i == opt.pos[0]:
                if not nopv:
                    e.i(f"{SMF} {V(Op,16)}, {V(V1p,4)}, {V(oth+8,8)}, v207")
                for t in after[0]: em(t)
            if i == opt.pos[1]:
                if not noqk:
                    e.i(f"{MF32} {V(oth,16)}, {V(K,4)}, {V(Q,4)}, {V(NM,16)}")
                for t in after[1]: em(t)
            if i == opt.pos[2]:
                e.i(f"{SMF} {V(O,16)}, {V(V0,4)}, {V(cur,8)}, v207")
                for t in after[2]: em(t)
    def shift(d):
        return [f"v_add_u32 v{v}, {hex(d & 0xffffffff)}, v{v}" for v in (vK, vV0, vV1)]
    if opt.full:
        slow = [("wq", CWQ, 2)] if opt.wqsplit else []
        SIG = lambda off: ["s_mov_b64 exec, 1", f"ds_add_u32 v6, v7 offset:{off}", "s_mov_b64 exec, -1"]
        def CHK(name, off, n):
            slow.append((name, off, n))
            return [f"v_readfirstlane_b32 s{sT0}, v5", f"s_cmp_ge_u32 s{sT0}, {n}", f"s_cbranch_scc0 L_slow_{name}", f"L_back_{name}:"]
        PRE = lambda off: [f"ds_read_b32 v5, v6 offset:{off}"]
        J0 = NE - 3
        for j in range(64):
            b3 = (j + 3) % 4
            slot = j + 3 if j < J0 else (j - J0 if j < J0 + 32 else (j - J0 - 32 if j < J0 + 47 else j - J0 - 47))
            off = slot * KVS
            rd = j + 3 < 64
            A = [[], [f"ds_read_b128 {V(KB+4*b3,4)}, v{vK} offset:{off}"] if rd else [], []]
            Bq = [[f"ds_read_b128 {V(VB+8*b3,4)}, v{vV0} offset:{off}"] if rd else [],
                  [f"ds_read_b128 {V(VB+8*b3+4,4)}, v{vV1} offset:{off}"] if rd else [],
                  [f"s_waitcnt lgkmcnt({2 if rd else 0})"] if j % 2 == 1 and j < 62 else []]
            assert J0 % 2 == 0
            if j == J0 - 1:
                A[2] += PRE(CA)
                Bq[2] += CHK("a", CA, 1) + SIG(CG) + shift(-RE)
            if j in (J0 + 7, J0 + 15, J0 + 23):
                A[2] += PRE(CA)
                Bq[2] += CHK(f"a{j}", CA, (j - J0 + 1) // 8 + 1)
            if j == J0 + 15:
                Bq[2] += SIG(CP1)
            if j == 31 and opt.stamps and not opt.lnclk:
                Bq[2] += [f"s_memrealtime {S(sSTAMP+12,2)}"] + ([] if opt.front else [f"s_memtime {S(sSTAMP+18,2)}"])
            if j == J0 + 31:
                A[2] += PRE(CL1)
                Bq[2] += CHK("l1", CL1, 4)
            if j == J0 + 45:
                A[2] += PRE(CH2)
                Bq[2] += CHK("h2", CH2, 4)
            if j == J0 + 46:
                Bq[2] += SIG(CR0) + shift(R1)
            if opt.jst and j in (1, 9, 17, 25):
                Bq[2] += [f"s_memrealtime {S(sSTAMP+2*{1:1,9:2,17:3,25:4}[j],2)}"]
            if j == 62:
                A[1] += ["s_waitcnt vmcnt(0)"]
            step(S0, S1, KB+4*(j % 4), QB, NMB, OA, VB+8*(j % 4), OB, VB+8*((j-1) % 4)+4, A, nopv=(j == 0))
            step(S1, S0, KB+4*((j+1) % 4), QA, NMA, OB, VB+8*(j % 4), OA, VB+8*(j % 4)+4, Bq, noqk=(j == 63))
    e.label("L_att_done")
    if not opt.lnclk:
        stamp(7)
        cstamp(10)
    e.i(f"v_rcp_f32 v24, v{OA+8}")
    e.i("s_nop 0")
    e.i(f"{SMF} {V(OB,16)}, {V(VB+28,4)}, {V(S1+8,8)}, v207")
    e.lg = []
    lds_signal(CAD)
    for hd, O in enumerate((OA, OB)):
        if hd == 1:
            e.i(f"v_rcp_f32 v24, v{OB+8}")
            e.nop(1)
        for r in range(8):
            e.i(f"v_mul_f32 v{O+r}, v{O+r}, v24")
        for j in range(4):
            e.i(f"v_cvt_pk_bf16_f32 v{8+4*hd+j}, v{O+2*j}, v{O+2*j+1}")
        for j in range(4):
            e.i(f"v_min_u32 v{8+4*hd+j}, -2, v{8+4*hd+j}")
        e.vmem(f"buffer_store_dwordx4 {V(8+4*hd,4)}, v{vL16}, {S(sWS,4)}, s{sOB} offen offset:{2048*hd} sc1")
    if opt.hint:
        e.c("hint for the readers (the data itself is checked against the marker)")
        e.i(f"s_lshl_b32 s{sT0}, s{sCB}, 7")
        e.i(f"s_lshl_b32 s{sT1}, s{sF}, 2")
        e.i(f"s_add_u32 s{sT0}, s{sT0}, s{sT1}")
        e.i(f"s_add_u32 s{sFLG}, s{sFLG}, 0x10000")
        e.i(f"s_add_u32 s{sT0}, s{sT0}, s{sFLG}")
        e.i("s_mov_b64 exec, 1")
        e.i(f"buffer_store_dword v206, v{vL16}, {S(sWS,4)}, s{sT0} offen sc1")
        e.i("s_mov_b64 exec, -1")
        e.i(f"v_readfirstlane_b32 s{sTAG}, v206")
        e.i(f"v_lshlrev_b32 v16, 7, v{vC}")
        e.i("v_and_b32 v17, 4, v1")
        e.i("v_add_u32 v16, v16, v17")
        e.i(f"s_and_b32 s{sT0}, s{sF}, 1")
        e.i(f"s_lshl_b32 s{sT0}, s{sT0}, 9")
        e.i(f"s_add_u32 s{sFLG}, s{sFLG}, s{sT0}")
        e.i(f"s_and_b32 s{sT0}, s{sF}, 2")
        e.i(f"s_lshl_b32 s{sT0}, s{sT0}, 2")
        e.i(f"s_add_u32 s{sFLG}, s{sFLG}, s{sT0}")
    if opt.early_poll:
        e.c("the own workgroup's line is not read: its stores are known drained through LDS (read a neighbour twice instead)")
        e.i(f"s_and_b32 s{sT0}, s{sF}, 1")
        e.i(f"s_lshl_b32 s{sT0}, s{sT0}, 2")
        e.i(f"s_sub_u32 s{sT0}, s{sCB}, s{sT0}")
        e.i(f"v_cmp_eq_u32 vcc, s{sT0}, v{vC}")
        e.i("v_xor_b32 v17, 0x80, v16")
        e.i("s_mov_b64 s[4:5], -1")
        e.i("v_cndmask_b32 v16, v16, v17, vcc")
        if opt.early_poll == 1:
            e.i(f"buffer_load_dword v17, v16, {S(sWS,4)}, s{sFLG} offen sc1")
    stamp(8, "late")
    if opt.noatt_tail:
        dump_stamps()
        e.i("s_endpgm")
    e.c("output projection: wave w -> row half w>>1, K half w&1, both column tiles (own tile first)")
    G, XR, OF = 104, 120, 40
    e.i(f"v_mov_b32 v0, v{vL16}")
    e.i("v_mov_b32 v3, v205")
    e.i(f"s_and_b32 s{sT1}, s{sF}, 1")
    e.i(f"s_lshr_b32 s{sT2}, s{sF}, 1")
    e.i(f"s_lshl_b32 s{sT0}, s{sRB}, 6")
    e.i(f"s_add_u32 s{sT0}, s{sT0}, s{sT2}")
    e.i(f"s_lshl_b32 s{sT2}, s{sT1}, 5")
    e.i(f"s_add_u32 s{sT0}, s{sT0}, s{sT2}")
    e.i(f"s_lshl_b32 s{sT0}, s{sT0}, 10")
    e.i(f"s_add_u32 s{sOFF}, s{sT0}, {WS_O}")
    for g in range(4):
        e.i(f"s_add_u32 s{sCH+g}, s{sCB}, {1+g}")
        e.i(f"s_and_b32 s{sCH+g}, s{sCH+g}, 3")
        e.i(f"s_lshl_b32 s{sCH+g}, s{sCH+g}, 13")
        e.i(f"s_add_u32 s{sOA+2*g}, s{sOFF}, s{sCH+g}")
        e.i(f"s_add_u32 s{sOA+2*g+1}, s{sOA+2*g}, 4096")
    if opt.echo: stamp(9)
    lds_poll(CWO, 4, sleep=1)
    if opt.echo: stamp(10)
    def oloads(g):
        for i in range(4):
            e.i(f"buffer_load_dwordx4 {V(OF+16*g+4*i,4)}, v0, {S(sWS,4)}, s{sOA+2*g+(i>>1)} offen offset:{2048*(i&1)} sc1")
    if not opt.hint:
        for g in range(3):
            oloads(g)
    e.i(f"s_mul_i32 s{sT0}, s{sT1}, {32768+64}")
    e.i(f"v_lshl_add_u32 v2, v{vH}, 9, v{vTR}")
    e.i(f"v_xor_b32 v2, s{sT0}, v2")
    for g in range(4):
        e.i(f"v_add_u32 v{G+2*g}, s{sCH+g}, v2")
        e.i(f"v_xor_b32 v{G+2*g+1}, 64, v{G+2*g}")
    for q in range(4):
        e.i(f"v_mov_b64 {V(XR+2*q,2)}, {V(232+2*q,2)}")
    if opt.early_poll == 3:
        e.i(f"buffer_load_dword v17, v16, {S(sWS,4)}, s{sFLG} offen sc1")
    for i in range(16):
        for c2 in range(2):
            for t in range(2):
                e.lds(f"ds_read_b64_tr_b16 {V(128+8*i+4*c2+2*t,2)}, v{G+2*(i//4)+c2} offset:{(i%4)*2048+1024*t}")
    e.i(f"s_lshl_b32 s{sT2}, s{sF}, 12")
    e.i(f"s_add_u32 s{sT1}, s{sT2}, {R1}")
    e.i(f"v_add_u32 v1, s{sT1}, v0")
    e.i(f"s_xor_b32 s{sT2}, s{sT2}, 4096")
    e.i(f"s_add_u32 s{sT2}, s{sT2}, {R1}")
    e.i(f"v_add_u32 v2, s{sT2}, v0")
    e.i(f"s_and_b32 s{sT2}, s{sF}, 2")
    e.i(f"s_lshl_b32 s{sT2}, s{sT2}, 1")
    e.i(f"v_add_u32 v4, s{sT2}, v6")
    e.i(f"s_mov_b32 s{sSEG}, 0")
    e.i(f"s_mov_b32 s{sCNT}, {hex(opt.spin)}")
    if opt.early_poll:
        e.i("s_waitcnt vmcnt(0)")
        lds_signal(COD)
        lds_poll(COD, 4, sleep=0)
    else:
        lds_poll(CAD, 4, sleep=0)
    if opt.hint and opt.onep:
        e.i(f"s_cmp_lg_u32 s{sWAVE}, 0")
        e.i("s_cbranch_scc1 L_hint_other")
        e.i("v_mbcnt_lo_u32_b32 v17, -1, 0")
        e.i("v_bfe_u32 v18, v17, 2, 3")
        e.i(f"v_cmp_eq_u32 vcc, s{sCB}, v18")
        e.i("v_xor_b32 v19, 1, v18")
        e.i("v_and_b32 v17, 3, v17")
        e.i("v_cndmask_b32 v18, v18, v19, vcc")
        e.i("v_lshlrev_b32 v18, 7, v18")
        e.i("v_lshl_add_u32 v16, v17, 2, v18")
        top, done = lbl("hp"), lbl("hpd")
        spin_init()
        e.label(top)
        e.i(f"buffer_load_dword v17, v16, {S(sWS,4)}, s{sFLG} offen sc1")
        e.i("s_waitcnt vmcnt(0)")
        e.i(f"v_cmp_ne_u32 vcc, s{sTAG}, v17")
        e.i(f"s_cbranch_vccz {done}")
        spin_tail(top, done, opt.hsleep)
        e.label(done)
        lds_signal(CHN)
        e.label("L_hint_other")
        lds_poll(CHN, 1, sleep=0)
        stamp(1, "late")
        for g in range(4):
            oloads(g)
    elif opt.hint:
        top, done = lbl("hp"), lbl("hpd")
        spin_init()
        n = opt.pipe
        def chk(r):
            e.i(f"v_cmp_ne_u32 vcc, s{sTAG}, v{r}")
            if opt.early_poll:
                e.i("s_and_b64 vcc, vcc, s[4:5]")
                e.i(f"s_cbranch_scc0 {done}")
            else:
                e.i(f"s_cbranch_vccz {done}")
        if opt.early_poll in (1, 3):
            chk(17)
        for k in range(n):
            e.i(f"buffer_load_dword v{17+k}, v16, {S(sWS,4)}, s{sFLG} offen sc1")
            e.i(f"s_sleep {6 // n}")
        e.label(top)
        for k in range(n + 1):
            e.i(f"buffer_load_dword v{17+(n+k)%(n+1)}, v16, {S(sWS,4)}, s{sFLG} offen sc1")
            e.i(f"s_waitcnt vmcnt({n})")
            chk(17 + k)
        spin_tail(top, done, 0 if n else opt.hsleep)
        e.label(done)
        stamp(1, "late")
        for g in range(4):
            oloads(g)
    else:
        e.i("s_waitcnt vmcnt(12)")
        stamp(1, "late")
        oloads(3)
    e.c("o fragments: check that every dword was written; if not, re-read that group until it is, then refresh the rest")
    def ocheck(g):
        b = OF + 16 * g
        e.i(f"v_max3_u32 v5, v{b}, v{b+1}, v{b+2}")
        for k in range(3, 15, 2):
            e.i(f"v_max3_u32 v5, v5, v{b+k}, v{b+k+1}")
        e.i(f"v_max_u32 v5, v5, v{b+15}")
        e.i("v_cmp_eq_u32 vcc, -1, v5")
    for g in range(4):
        e.i(f"s_waitcnt vmcnt({12-4*g})")
        b = OF + 16 * g
        ocheck(g)
        e.i(f"s_cbranch_vccnz L_oretry_{g}")
        e.label(f"L_ogo_{g}")
        for i in range(4):
            for c2 in (1, 0):
                a = 8 + 16 * c2
                k = 4 * g + i
                e.i(f"{MF32} {V(a,16)}, {V(128+8*k+4*c2,4)}, {V(b+4*i,4)}, {'0' if k == 0 else V(a,16)}")
    stamp(2, "late")
    for t in range(8):
        e.i(f"v_lshlrev_b32 v{128+2*t}, 16, v{XR+t}")
        e.i(f"v_and_b32 v{129+2*t}, s{sMASK}, v{XR+t}")
    e.lg = []
    for q in range(4):
        e.lds(f"ds_write_b128 v1, {V(24+4*q,4)} offset:{q*1024}")
    lds_signal(CE0, va=4)
    e.i(f"s_lshl_b32 s{sT1}, s{sF}, 2")
    e.i(f"v_add_u32 v1, s{sT1}, v6")
    e.i(f"s_lshl_b32 s{sT1}, s{sF}, 14")
    e.i(f"s_add_u32 s{sT1}, s{sT1}, {RB2 + 12288}")
    e.i(f"v_add_u32 v0, s{sT1}, v0")
    lds_poll(CGD, 1, sleep=0, va=1)
    if opt.echo: stamp(4)
    e.lds("ds_read_b128 v[40:43], v0")
    e.lds("ds_read_b128 v[44:47], v0 offset:1024")
    lds_poll(CE0, 2, sleep=0, va=4)
    for q in range(4):
        e.lds(f"ds_read_b128 {V(24+4*q,4)}, v2 offset:{q*1024}", ("e", q))
    for t in range(8):
        e.i(f"v_lshlrev_b32 v{G+2*t}, 16, v{40+t}")
        e.i(f"v_and_b32 v{G+1+2*t}, s{sMASK}, v{40+t}")
    for q in range(4):
        e.wait(lg=("e", q))
        for r in range(4*q, 4*q+4):
            e.i(f"v_add_f32 v{8+r}, v{8+r}, v{24+r}")
        for r in range(4*q, 4*q+4):
            e.i(f"v_fmac_f32 v{128+r}, v{8+r}, v{G+r}")
        for j in range(2):
            e.i(f"v_cvt_pk_bf16_f32 v{XR+2*q+j}, v{128+4*q+2*j}, v{128+4*q+2*j+1}")
        e.vmem(f"buffer_store_dwordx2 {V(XR+2*q,2)}, v3, {S(sOUT,4)}, s{sXO} offen offset:{16*q}")
    if opt.stamps:
        e.wait_all(vm=True)
        stamp(3, "late")
    if opt.echo:
        a, b = opt.echo
        e.i("s_waitcnt lgkmcnt(0)")
        e.i(f"s_sub_u32 s{sT0}, s{sSTAMP+2*b}, s{sSTAMP+2*a}")
        e.i(f"s_mul_i32 s{sT0}, s{sT0}, {opt.emul}")
        e.i(f"s_min_u32 s{sT0}, s{sT0}, 10000")
        e.i(f"s_add_u32 s{sT0}, s{sT0}, s{sSTAMP+6}")
        e.label("L_echo")
        e.i("s_memrealtime s[4:5]")
        e.i("s_waitcnt lgkmcnt(0)")
        e.i(f"s_sub_u32 s{sT1}, s4, s{sT0}")
        e.i(f"s_cmp_lt_i32 s{sT1}, 0")
        e.i("s_cbranch_scc1 L_echo")
    dump_stamps()
    e.i("s_endpgm")
    for g in range(4):
        e.label(f"L_oretry_{g}")
        e.i(f"s_sub_u32 s{sCNT}, s{sCNT}, 1")
        e.i(f"s_cbranch_scc1 L_odone_{g}")
        if opt.osleep:
            e.i(f"s_sleep {opt.osleep}")
        oloads(g)
        e.i("s_waitcnt vmcnt(0)")
        ocheck(g)
        e.i(f"s_cbranch_vccnz L_oretry_{g}")
        e.label(f"L_odone_{g}")
        for g2 in range(g + 1, 4):
            oloads(g2)
        e.i(f"s_branch L_ogo_{g}")
    if opt.full:
        for name, off, n in slow:
            e.label(f"L_slow_{name}")
            lds_poll(off, n, sleep=0)
            e.i(f"s_branch L_back_{name}")

    if opt.ln2:
        e.lines += ln2_lines
    if opt.dryq:
        e.label("L_dryq")
        e.c("wave 6 runs the Q projection code once on whatever LDS holds (its signal adds 0) to warm the instruction cache")
        e.i("s_setprio 0")
        e.i("s_waitcnt lgkmcnt(0)")
        e.i("v_mov_b32 v7, 0")
        e.i("s_branch L_q")
        e.label("L_dryq_ret")
        e.i("s_waitcnt lgkmcnt(0)")
        e.i("v_mov_b32 v7, 1")
        e.i("s_branch L_ffn")
    e.label("L_fallback")
    e.i("v_mov_b32 v24, 0xff800000")
    e.i("v_mov_b32 v25, 0xff800000")
    e.i(f"s_mov_b32 s{sT1}, 0")
    e.i(f"s_mov_b32 s{sCNT}, 31")
    e.label("L_fb_loop")
    e.i(f"buffer_load_dwordx4 v[8:11], v{vL16}, {S(sWS,4)}, s{sT1} offen sc1")
    e.i(f"buffer_load_dwordx4 v[12:15], v{vL16}, {S(sWS,4)}, s{sT1} offen offset:2048 sc1")
    e.i(f"s_add_u32 s{sT1}, s{sT1}, 4096")
    e.i("s_waitcnt vmcnt(0)")
    for k in range(2):
        e.i(f"{MF32} {V(NMA,16)}, {V(8+4*k,4)}, {V(QA,4)}, 0")
        e.i(f"{MF32} {V(NMB,16)}, {V(8+4*k,4)}, {V(QB,4)}, 0")
        e.nop(12)
        for r in range(0, 16, 2):
            e.i(f"v_max3_f32 v24, v24, v{NMA+r}, v{NMA+r+1}")
        for r in range(0, 16, 2):
            e.i(f"v_max3_f32 v25, v25, v{NMB+r}, v{NMB+r+1}")
    e.i(f"s_sub_u32 s{sCNT}, s{sCNT}, 1")
    e.i("s_cbranch_scc0 L_fb_loop")
    e.i("v_mov_b32 v26, v24")
    e.i("v_mov_b32 v27, v25")
    e.nop(2)
    e.i("v_permlane32_swap_b32 v24, v26")
    e.i("v_permlane32_swap_b32 v25, v27")
    e.i("v_max_f32 v24, v24, v26")
    e.i("v_max_f32 v25, v25, v27")
    e.i("s_branch L_att_start")

    e.label("L_pre_7")
    inatt[0] = False
    e.vm = []
    e.lg = []
    e.i("s_setprio 3")
    e.i(f"s_bitcmp1_b32 s{sCB}, 0")
    e.i("v_lshlrev_b32 v40, 4, v1")
    e.i("s_waitcnt lgkmcnt(0)")
    e.i(f"s_cselect_b64 {S(sWKV,2)}, s[54:55], s[52:53]")
    e.i(f"s_cselect_b32 s{sTILE}, 0, 6")
    e.i(f"s_load_dword s{sTAG}, s[68:69], {hex(WS_EPOCH)}")
    e.i(f"s_mov_b64 {S(sX,2)}, s[48:49]")
    for i in range(4):
        e.i(f"s_mov_b32 m0, {R2 + 4096*i}")
        e.i(f"s_mov_b32 s{sT0}, {4096*i}")
        for k in range(4):
            e.vmem(f"buffer_load_dwordx4 v40, {S(sWKV,4)}, s{sT0} offen offset:{1024*k} lds", "wkv")
    e.i("s_barrier")
    setup()
    e.i("v_lshrrev_b32 v42, 4, v1")
    e.i("v_and_b32 v43, 15, v1")
    e.i(f"s_lshr_b32 s{sT0}, s{sCB}, 2")
    e.i(f"s_mul_i32 s{sT0}, s{sT0}, {XN_RH}")
    e.i(f"s_bfe_u32 s{sT1}, s{sCB}, 0x10001")
    e.i(f"s_lshl_b32 s{sT1}, s{sT1}, 8")
    e.i(f"s_add_u32 s{sT0}, s{sT0}, s{sT1}")
    e.i(f"s_add_u32 s{sT0}, s{sT0}, {R1}")
    e.i("v_mul_u32_u24 v44, 528, v42")
    e.i("v_lshl_add_u32 v44, v43, 4, v44")
    e.i(f"v_add_u32 v44, s{sT0}, v44")
    e.i("v_lshlrev_b32 v45, 8, v42")
    e.i(f"v_lshl_add_u32 v45, v{vR}, 5, v45")
    e.i(f"v_lshl_add_u32 v45, v{vC}, 3, v45")
    e.i(f"v_add_u32 v45, {R2}, v45")
    for r in range(4):
        e.i(f"v_mov_b32 v{20+r}, 0x3f803f80")
    e.i(f"s_lshl_b32 s{sT2}, s{sRB}, 1")
    e.i(f"s_lshr_b32 s{sOFF2}, s{sCB}, 2")
    e.i(f"s_add_u32 s{sT2}, s{sT2}, s{sOFF2}")
    e.i(f"s_lshl_b32 s{sT2}, s{sT2}, 11")
    e.i(f"s_add_u32 s{sT2}, s{sT2}, s{sT1}")
    e.i(f"v_lshlrev_b32 v46, 3, v{vH}")
    e.i("v_lshl_add_u32 v46, v43, 4, v46")
    e.i(f"s_lshl_b32 s{sOFF2}, s{sRB}, 7")
    e.i(f"s_lshl_b32 s{sOFF}, s{sCB}, 3")
    e.i(f"s_add_u32 s{sOFF2}, s{sOFF2}, s{sOFF}")
    e.i(f"v_mov_b32 v18, {hex(WS_KVF)}")
    e.i(f"v_lshrrev_b32 v{vW1}, 2, v1")
    e.i(f"v_lshlrev_b32 v19, 7, v{vW1}")
    e.i(f"v_lshl_add_u32 v19, v{vC}, 4, v19")
    e.i("v_lshlrev_b32 v31, 11, v1")
    e.i(f"v_mul_u32_u24 v{vW1}, 3584, v{vW1}")
    e.i(f"v_lshl_add_u32 v{vW1}, v{vC}, 4, v{vW1}")
    e.i(f"v_lshlrev_b32 v{vT0}, 6, v{vR}")
    e.i(f"v_lshl_add_u32 v{vT0}, v{vCG}, 5, v{vT0}")
    e.i(f"v_lshl_add_u32 v{vT0}, v{vC}, 3, v{vT0}")
    e.i(f"v_lshl_add_u32 v{vT0}, v{vH}, 9, v{vT0}")
    e.i(f"v_add_u32 v{vT0}, s{sRING}, v{vT0}")
    e.i("s_waitcnt lgkmcnt(0)")
    e.i(f"s_mul_i32 s{sTAG}, s{sTAG}, 0x9e3779b1")
    e.i(f"s_add_u32 s{sTAG}, s{sTAG}, 0x7f4a7c15")
    e.i(f"v_mov_b32 v16, s{sTAG}")
    e.lds(f"ds_write_b32 v6, v16 offset:{CTAG}")
    e.wait(vm="wkv")
    stamp(1, "front")
    for ks in range(16):
        e.lds(f"ds_read_b64_tr_b16 {V(128+4*ks,2)}, v45 offset:{ks*1024}")
        e.lds(f"ds_read_b64_tr_b16 {V(130+4*ks,2)}, v45 offset:{ks*1024+128}")
    lds_signal(CXN)
    e.i(f"v_add_u32 v41, {RE}, v{vSP}")
    e.i(f"s_mov_b32 exec_lo, {hex((1 << NE) - 1)}")
    e.i(f"s_mov_b32 exec_hi, {hex((1 << NE) - 1)}")
    e.lds(f"ds_write_b128 v41, {V(vSD,4)} offset:2048")
    e.i("s_mov_b64 exec, -1")
    lds_poll(CRW, 2, sleep=0)
    for ks in range(16):
        e.lds(f"ds_read_b128 {V(64+4*ks,4)}, v44 offset:{ks*2112}", ("k", ks), guard=False)
    lds_signal(CRC)
    e.i(f"s_bitcmp1_b32 s{sCB}, 0")
    e.i("s_cbranch_scc1 L_w7_v")
    lg_save = list(e.lg)
    def kvloop(isV):
        for ks in range(16):
            W, Xf = V(128+4*ks, 4), V(64+4*ks, 4)
            a, b = ("v[20:23]", W) if isV else (W, "v[20:23]")
            e.i(f"{MF16} v[12:15], {a}, {b}, {'0' if ks == 0 else 'v[12:15]'}")
            e.wait(lg=("k", ks))
            a, b = (Xf, W) if isV else (W, Xf)
            e.i(f"{MF16} v[8:11], {a}, {b}, {'0' if ks == 0 else 'v[8:11]'}")
    kvloop(False)
    stamp(8, "front")
    e.i(f"v_lshl_add_u32 v46, v{vCG}, 9, v46")
    e.i("v_lshl_add_u32 v47, v43, 2, v6")
    lds_poll(CST, 2, sleep=0)
    e.i(f"ds_read2_b32 v[24:25], v47 offset0:{STAT//4} offset1:{STAT//4+16}")
    e.wait_all(lg=True)
    for r in range(4):
        e.i(f"v_fmac_f32 v{8+r}, v24, v{12+r}")
    for r in range(4):
        e.i(f"v_mul_f32 v{8+r}, v25, v{8+r}")
    e.i("v_cvt_pk_bf16_f32 v12, v8, v9")
    e.i("v_cvt_pk_bf16_f32 v13, v10, v11")
    e.i(f"buffer_store_dwordx2 v[12:13], v46, {S(sWS,4)}, s{sT2} offen sc1")
    e.i("v_mul_f32 v17, v8, v8")
    for r in range(1, 4):
        e.i(f"v_fmac_f32 v17, v{8+r}, v{8+r}")
    e.i("v_mov_b32 v15, v17")
    e.nop(2)
    e.i("v_permlane32_swap_b32 v17, v15")
    e.i("v_add_f32 v17, v17, v15")
    e.i("v_mov_b32 v15, v17")
    e.nop(2)
    e.i("v_permlane16_swap_b32 v17, v15")
    e.i("v_add_f32 v17, v17, v15")
    for m in ("row_ror:1", "row_ror:2", "row_ror:4", "row_ror:8"):
        e.nop(2)
        e.i(f"v_max_u32_dpp v17, v17, v17 {m} row_mask:0xf bank_mask:0xf")
    e.i("s_branch L_w7_pub")
    e.label("L_w7_v")
    e.lg = lg_save
    kvloop(True)
    stamp(8, "front")
    e.i(f"v_lshlrev_b32 v46, 4, v43")
    e.i(f"v_lshl_add_u32 v46, v{vH}, 8, v46")
    e.i(f"v_lshl_add_u32 v46, v{vCG}, 3, v46")
    e.i(f"s_add_u32 s{sT2}, s{sT2}, s{sT1}")
    e.i(f"s_add_u32 s{sT2}, s{sT2}, 1024")
    e.i("v_lshl_add_u32 v47, v42, 4, v6")
    lds_poll(CST, 2, sleep=0)
    e.i(f"ds_read_b128 v[24:27], v47 offset:{STAT}")
    e.i(f"ds_read_b128 v[32:35], v47 offset:{STAT+64}")
    e.wait_all(lg=True)
    for r in range(4):
        e.i(f"v_fmac_f32 v{8+r}, v{24+r}, v{12+r}")
    for r in range(4):
        e.i(f"v_mul_f32 v{8+r}, v{32+r}, v{8+r}")
    e.i("v_cvt_pk_bf16_f32 v12, v8, v9")
    e.i("v_cvt_pk_bf16_f32 v13, v10, v11")
    e.i(f"buffer_store_dwordx2 v[12:13], v46, {S(sWS,4)}, s{sT2} offen sc1")
    e.i("v_mov_b32 v17, 0")
    e.label("L_w7_pub")
    stamp(2)
    e.i("s_mov_b64 exec, 1")
    e.wait_all(vm=True)
    e.i(f"buffer_store_dwordx2 v[16:17], v18, {S(sWS,4)}, s{sOFF2} offen sc1")
    e.i("s_mov_b64 exec, -1")
    stamp(9)
    e.c("wait for all 256 K/V producers, pass max |k|^2 on through LDS")
    top, done = lbl("kv"), lbl("kvd")
    e.i(f"s_mov_b32 s{sT1}, {hex(WS_KVF)}")
    e.i(f"s_bfe_u32 s{sT2}, s2, 0x40003")
    e.i(f"s_lshl_b32 s{sT2}, s{sT2}, 7")
    if opt.touch == 3:
        e.c("touch 1/8 of the w1 slice -> L2; the first poll queues behind it")
        if opt.twait == 1:
            lds_poll(CWQ, 1, sleep=1)
        if opt.twait == 2:
            lds_poll(CWI, 1, sleep=1)
        touch_setup(sOFF)
        touches(sOFF, 0, opt.ntouch)
    if opt.kvdelay:
        e.i(f"s_sleep {opt.kvdelay}")
    spin_init()
    e.label(top)
    e.i(f"buffer_load_dwordx4 v[32:35], v19, {S(sWS,4)}, s{sT1} offen sc1")
    e.i(f"buffer_load_dwordx4 v[36:39], v19, {S(sWS,4)}, s{sT1} offen offset:2048 sc1")
    e.wait_all(vm=True)
    if opt.fstart == 3:
        lds_signal(CTL)
    e.i("v_xor_b32 v32, v16, v32")
    e.i("v_xor_b32 v34, v16, v34")
    e.i("v_xor_b32 v36, v16, v36")
    e.i("v_xor_b32 v38, v16, v38")
    e.i("v_or3_b32 v32, v32, v34, v36")
    e.i("v_or_b32 v32, v32, v38")
    e.i("v_cmp_ne_u32 vcc, 0, v32")
    e.i("v_max_u32 v30, v33, v37")
    e.i(f"s_cbranch_vccz {done}")
    spin_tail(top, done, opt.kvsleep)
    e.label(done)
    lds_signal(CKV)
    e.c("blocks 0..6 -> early slots in R2")
    e.i(f"s_mov_b32 s{sOFF2}, 0")
    e.i(f"s_mov_b32 s{sT1}, {RE}")
    kv_dma(NE, sOFF2, sT1, 1, 1)
    if opt.kvtouch:
        e.c("touch 64 of the 1024 K/V lines -> L2 (the workgroups of an XCD cover all of them)")
        e.i(f"buffer_load_dword v106, v31, {S(sWS,4)}, s{sT2} offen sc1")
    for m in ("row_ror:1", "row_ror:2", "row_ror:4", "row_ror:8"):
        e.nop(2)
        e.i(f"v_max_u32_dpp v30, v30, v30 {m} row_mask:0xf bank_mask:0xf")
    e.i("v_mov_b32 v29, v30")
    e.nop(2)
    e.i("v_permlane16_swap_b32 v29, v30")
    e.i("v_max_u32 v30, v29, v30")
    e.i("v_mov_b32 v29, v30")
    e.nop(2)
    e.i("v_permlane32_swap_b32 v29, v30")
    e.i("v_max_u32 v30, v29, v30")
    e.lds(f"ds_write_b32 v6, v30 offset:{CKM}")
    lds_signal(CKV)
    stamp(4, "front")
    e.c("blocks 5..36 -> slots 0..31")
    e.i(f"s_mov_b32 s{sT1}, 0")
    lds_poll(CQ, 4, sleep=0)
    e.vm = []
    e.lds(f"ds_write_b128 v{vSP}, {V(vSD,4)} offset:2048")
    kv_dma(8, sOFF2, sT1, 1, 1)
    e.i(f"s_waitcnt vmcnt({17 if opt.kvtouch else 16})")
    lds_signal(CE7)
    e.i("s_waitcnt vmcnt(0)")
    lds_signal(CA)
    kv_dma(8, sOFF2, sT1, 1, 1)
    for st in range(2):
        kv_dma(8, sOFF2, sT1, 1, 1)
        e.i("s_waitcnt vmcnt(16)")
        e.vm = []
        lds_signal(CA)
    e.i("s_waitcnt vmcnt(0)")
    lds_signal(CA)
    lds_poll(CG, 4, sleep=1)
    e.c("workgroup 0 renews the epoch word: every producer has read it by now")
    e.i("s_cmp_lg_u32 s2, 0")
    e.i("s_cbranch_scc1 L_ffn")
    e.i(f"v_mov_b32 v29, {hex(WS_EPOCH)}")
    e.i("s_mov_b64 exec, 1")
    e.i(f"buffer_store_dword v16, v29, {S(sWS,4)}, 0 offen sc1")
    e.i("s_mov_b64 exec, -1")

    ACC = 8
    NR = opt.NR
    AF, BF = 72, 88
    e.label("L_ffn")
    e.vm = []
    e.lg = []
    e.i("s_setprio 3")
    e.i(f"s_mul_i32 s{sOFF}, s{sCB}, 448")
    e.i(f"s_lshl_b32 s{sT1}, s{sTILE}, 6")
    e.i(f"s_add_u32 s{sOFF}, s{sOFF}, s{sT1}")
    e.c("k order is rotated by 4*(rb&7) steps: the 8 workgroups of an XCD that share this w1 slice take turns missing")
    e.i(f"s_add_u32 s{sE1}, s{sOFF}, {512*3584}")
    e.i(f"s_and_b32 s{sT1}, s{sRB}, {7 if opt.rot & 2 else 0}")
    e.i(f"s_mul_i32 s{sT0}, s{sT1}, {64*3584}")
    e.i(f"s_add_u32 s{sOFF}, s{sOFF}, s{sT0}")
    for g in range(8):
        e.i(f"s_add_u32 s{sT0}, s{sT1}, {g}")
        e.i(f"s_and_b32 s{sT0}, s{sT0}, 7")
        e.i(f"s_mul_i32 s{sT0}, s{sT0}, {4*1056}")
        e.i(f"v_add_u32 v{232+2*g}, s{sT0}, v{vXN0}")
        e.i(f"v_add_u32 v{233+2*g}, s{sT0}, v{vXN1}")
    e.i(f"s_mul_i32 s{sW2T}, s{sF}, {448*1024}")
    e.i(f"s_lshl_b32 s{sT0}, s{sCB}, 7")
    e.i(f"s_add_u32 s{sW2T}, s{sW2T}, s{sT0}")
    e.i(f"s_and_b32 s{sT0}, s{sRB}, 7")
    e.i(f"s_min_u32 s{sT0}, s{sT0}, 6")
    e.i(f"s_lshl_b32 s{sT0}, s{sT0}, 16")
    e.i(f"s_add_u32 s{sW2T}, s{sW2T}, s{sT0}")
    e.i(f"v_lshrrev_b32 v{vTCH}, 2, v1")
    e.i(f"v_lshlrev_b32 v{vTCH}, 10, v{vTCH}")
    e.i(f"v_lshl_add_u32 v{vTCH}, v{vC}, 8, v{vTCH}")
    if opt.epre:
        e.i(f"s_cmp_eq_u32 s{sWAVE}, 7")
        e.i("s_cbranch_scc1 L_no_epre")
        lds_poll(CRC, 1, sleep=1)
        if opt.epre == 2:
            lds_poll(CWI, 1, sleep=1)
        for ks in range(3):
            for a in range(2):
                e.i(f"s_add_u32 m0, s{sRING}, {ks * 2048 + a * 1024}")
                e.i("s_nop 0")
                e.i(f"buffer_load_dwordx4 v{vW1}, {S(sW1,4)}, s{sOFF} offen lds")
                e.i(f"s_add_u32 s{sOFF}, s{sOFF}, {8*3584}")
        e.c("touch the lines of the fourth step as well")
        e.i("v_mul_u32_u24 v125, 3584, v1")
        e.i("s_mov_b64 exec, 0xffff")
        e.i(f"buffer_load_dword v124, v125, {S(sW1,4)}, s{sOFF} offen")
        e.i("s_mov_b64 exec, -1")
        e.label("L_no_epre")
    lds_poll(CXN, 9, sleep=1)
    e.i(f"ds_read_b32 v4, v6 offset:{CTAG}")
    e.i("v_mov_b64 v[208:209], -1")
    e.i("v_mov_b64 v[210:211], -1")
    if opt.fgo == 2:
        lds_poll(CKV, 1, sleep=1)
    if opt.fgo == 3:
        lds_poll(CE7, 1, sleep=1)
    e.wait_all(lg=True)
    e.i(f"v_readfirstlane_b32 s{sTAG}, v4")
    e.i(f"s_setprio {opt.fprio1}")
    stamp(2, "late")
    e.i(f"s_cmp_eq_u32 s{sWAVE}, 7")
    e.i("s_cbranch_scc1 L_ffn1_w7")

    def paced(n):
        if n == 0:
            e.wait_all(lg=True)
        elif len(e.lg) > n:
            e.i(f"s_waitcnt lgkmcnt({n})")
            del e.lg[: len(e.lg) - n]
    def bread(ks, rh):
        e.lds(f"ds_read_b128 {V(BF+8*(ks%2)+4*rh,4)}, v{232+2*(ks//4)+rh} offset:{(ks%4)*1056}", ("f", ks))
    def wrap1():
        e.i(f"s_cmp_ge_u32 s{sOFF}, s{sE1}")
        e.i(f"s_cselect_b32 s{sT0}, {512*3584}, 0")
        e.i(f"s_sub_u32 s{sOFF}, s{sOFF}, s{sT0}")
    def w2_touch():
        if opt.warm2:
            e.c("touch 1/7 of this wave's w2 slice (8 workgroups of an XCD share it) -> L2")
            e.vmem(f"buffer_load_dword v124, v{vTCH}, {S(sW2,4)}, s{sW2T} offen")
    def marker(hd):
        e.vmem(f"buffer_store_dwordx4 v[208:211], v{vL16}, {S(sWS,4)}, s{sOB} offen offset:{2048*hd} sc1", "clr")
    def e1():
        e.c("waves 4..6: blocks 37..51 -> slots 0..14 once attention has read them")
        lds_poll(CP1, 4, sleep=2)
        e.i(f"s_lshl_b32 s{sU0}, s{sF}, 11")
        e.i(f"s_add_u32 s{sU0}, s{sU0}, {(NE+32)*2048}")
        e.i(f"s_mul_i32 s{sU1}, s{sF}, {KVS}")
        kv_dma(5, sU0, sU1, 3, 3)
    def h_store(tiles):
        lds_signal(CX)
        stamp(3)
        e.i("s_setprio 3")
        e.i(f"s_mul_i32 s{sT0}, s{sRB}, 112")
        e.i(f"s_mul_i32 s{sT1}, s{sCB}, 14")
        e.i(f"s_add_u32 s{sT0}, s{sT0}, s{sT1}")
        e.i(f"s_lshl_b32 s{sT1}, s{sTILE}, 1")
        e.i(f"s_add_u32 s{sT0}, s{sT0}, s{sT1}")
        e.i(f"s_lshl_b32 s{sT0}, s{sT0}, 11")
        e.i(f"s_add_u32 s{sOFF}, s{sT0}, {WS_H}")
        e.i(f"s_add_u32 s{sOFF2}, s{sOFF}, 4096")
        if len(tiles) == 2 and opt.e1pos == 0:
            e1()
        e.c("mark the o fragments of attention wave f as not yet written")
        if not opt.mkearly:
            marker(0); marker(1)
        for ct in tiles:
            for rh in range(2):
                a = ACC + 16 * (rh * 2 + ct)
                for j in range(8):
                    e.i(f"v_cvt_pk_bf16_f32 v{a+j}, v{a+2*j}, v{a+2*j+1}")
                for j in range(8):
                    e.i(f"v_pk_max_i16 v{a+j}, v{a+j}, 0")
                for s in range(2):
                    e.vmem(f"buffer_store_dwordx4 {V(a+4*s,4)}, v{vL16}, {S(sWS,4)}, s{sOFF2 if ct else sOFF} offen offset:{(2*s+rh)*1024} sc1", "hst")
    def ring_dma(ks, srd, v, step):
        for a in range(2):
            e.i(f"s_add_u32 m0, s{sRING}, {(ks % NR) * 2048 + a * 1024}")
            e.i("s_nop 0")
            e.vmem(f"buffer_load_dwordx4 v{v}, {S(srd,4)}, s{sOFF} offen lds", ("w", ks))
            e.i(f"s_add_u32 s{sOFF}, s{sOFF}, {step}")
    def tr2(ks, i, tstride):
        ct, t = i >> 1, i & 1
        e.lds(f"ds_read_b64_tr_b16 {V(AF+8*(ks%2)+4*ct+2*t,2)}, v{vT1 if ct else vT0} offset:{(ks%NR)*2048+tstride*t}", ("f", ks))

    e.c("FFN1, waves 4..6: two column tiles x two row halves")
    if opt.fp_n:
        e.i(f"s_setprio {opt.fp_early}")
    A3, B3 = 72, 96
    LA = 1 if opt.la1 else 2
    def dma1(ks, a):
        e.i(f"s_add_u32 m0, s{sRING}, {(ks % 3) * 2048 + a * 1024}")
        e.i("s_nop 0")
        e.vmem(f"buffer_load_dwordx4 v{vW1}, {S(sW1,4)}, s{sOFF} offen lds", ("w", ks))
        e.i(f"s_add_u32 s{sOFF}, s{sOFF}, {8*3584}")
        if a == 1 and ks % 4 == 3:
            wrap1()
    def br3(ks, rh):
        e.lds(f"ds_read_b128 {V(B3+8*(ks%3)+4*rh,4)}, v{232+2*(ks//4)+rh} offset:{(ks%4)*1056}", ("f", ks))
    def tr3(ks, i):
        ct, t = i >> 1, i & 1
        e.lds(f"ds_read_b64_tr_b16 {V(A3+8*(ks%3)+4*ct+2*t,2)}, v{vT1 if ct else vT0} offset:{(ks%3)*2048+512*t}", ("f", ks))
    if opt.epre:
        e.vm = [("w", ks) for ks in range(3) for _ in range(2)] + ["t"]
    else:
        for ks in range(3):
            dma1(ks, 0); dma1(ks, 1)
    for ks in range(LA):
        br3(ks, 0); br3(ks, 1)
        e.wait(vm=("w", ks))
        for i in range(4):
            tr3(ks, i)
    for ks in range(32):
        s = ks % 3
        e.wait(lg=("f", ks))
        n = ks + LA
        dense = ks < opt.dense
        for i in range(4):
            rh, ct = i >> 1, i & 1
            a = ACC + 16 * i
            e.i(f"{MF32} {V(a,16)}, {V(A3+8*s+4*ct,4)}, {V(B3+8*s+4*rh,4)}, {'0' if ks == 0 else V(a,16)}")
            if i == 0 and ks + 3 < 32:
                dma1(ks + 3, 0)
                dma1(ks + 3, 1)
            if n < 32:
                if i == 0:
                    br3(n, 0); br3(n, 1)
                if i == 1:
                    e.wait(vm=("w", n))
                if dense:
                    if i in (1, 2):
                        tr3(n, 2 * i - 2); tr3(n, 2 * i - 1)
                else:
                    if i == 1:
                        tr3(n, 0); tr3(n, 1)
                    if i >= 2:
                        tr3(n, i)
                    paced(opt.pace1)
        if opt.mkearly and ks in (14, 20):
            marker(ks // 20)
        if opt.mid2 and ks in (0, 4, 8, 12):
            stamp({0: 1, 4: 8, 8: 9, 12: 4}[ks])
        if opt.fp_n and ks == opt.fp_n:
            e.i(f"s_setprio {opt.fprio1}")
        if opt.mid and ks in (0, 4, 8, 12, 16, 20):
            stamp(4 + ks // 4)
    if opt.mid:
        lds_signal(CX)
        stamp(3)
        dump_stamps()
        e.i("s_endpgm")
    h_store([0, 1])
    if opt.e1pos == 1:
        e1()
    e.i("s_branch L_ffn_join")

    e.label("L_ffn1_w7")
    e.vm = []
    e.lg = []
    e.c("FFN1, wave 7: one column tile")
    def dma7(ks):
        e.i(f"s_add_u32 m0, s{sRING}, {(ks % 8) * 1024}")
        e.i("s_nop 0")
        e.vmem(f"buffer_load_dwordx4 v{vW1}, {S(sW1,4)}, s{sOFF} offen lds", ("w", ks))
        e.i(f"s_add_u32 s{sOFF}, s{sOFF}, {16*3584}")
        if ks % 4 == 3:
            wrap1()
    def tr7(ks, t):
        e.lds(f"ds_read_b64_tr_b16 {V(AF+8*(ks%2)+2*t,2)}, v{vT0} offset:{(ks%8)*1024+256*t}", ("f", ks))
    if opt.t7:
        e.i(f"s_lshr_b32 s{sT1}, s2, 3")
        e.i(f"s_and_b32 s{sT2}, s{sCB}, 1")
        e.i(f"s_lshl_b32 s{sT2}, s{sT2}, 7")
        e.i(f"s_mul_i32 s{sU0}, s{sT1}, {56*1024}")
        e.i(f"s_add_u32 s{sU0}, s{sU0}, s{sT2}")
        for i in range(4):
            e.i(f"buffer_load_dword v124, v{vTCH}, {S(sW2,4)}, s{sU0} offen")
            e.i(f"s_add_u32 s{sU0}, s{sU0}, {14*1024}")
    e.i(f"s_setprio {opt.p7}")
    for ks in range(8):
        dma7(ks)
    bread(0, 0); bread(0, 1)
    e.wait(vm=("w", 0))
    tr7(0, 0); tr7(0, 1)
    for ks in range(32):
        s = ks % 2
        e.wait(lg=("f", ks))
        if ks + 8 < 32:
            dma7(ks + 8)
        if ks + 1 < 32:
            e.wait(vm=("w", ks + 1))
        for rh in range(2):
            a = ACC + 32 * rh
            e.i(f"{MF32} {V(a,16)}, {V(AF+8*s,4)}, {V(BF+8*s+4*rh,4)}, {'0' if ks == 0 else V(a,16)}")
            if ks + 1 < 32:
                bread(ks + 1, rh)
                tr7(ks + 1, rh)
                if rh == 0 and ks >= opt.dense:
                    paced(opt.pace1)
        if opt.mkearly and ks in (14, 20):
            marker(ks // 20)
    h_store([0])

    e.label("L_ffn_join")
    e.i(f"s_lshl_b32 s{sT2}, s{sCB}, 7")
    e.i(f"s_lshl_b32 s{sT1}, s{sF}, 2")
    e.i(f"s_add_u32 s{sT2}, s{sT2}, s{sT1}")
    e.i(f"s_add_u32 s{sT2}, s{sT2}, s{sFLG}")
    e.i("v_mov_b32 v72, 0")
    e.i(f"v_mov_b32 v73, s{sTAG}")
    e.i(f"v_add_u32 v{vSP}, {R1}, v{vSP}")
    e.i(f"s_lshl_b32 s{sRING}, s{sF}, 14")
    e.i(f"s_add_u32 s{sRING}, s{sRING}, {RB2}")
    e.i(f"v_lshl_add_u32 v{vTR}, v{vH}, 9, v{vTR}")
    e.c("accumulator i holds output tile i ^ f, so that accumulator 0 is this wave's own tile")
    e.i(f"s_and_b32 s{sT1}, s{sF}, 1")
    e.i(f"s_lshl_b32 s{sT1}, s{sT1}, 6")
    e.i(f"v_xor_b32 v{vT0}, s{sT1}, v{vTR}")
    e.i(f"v_add_u32 v{vT0}, s{sRING}, v{vT0}")
    e.i(f"v_xor_b32 v{vT1}, 64, v{vT0}")
    e.i(f"s_lshr_b32 s{sT1}, s{sF}, 1")
    e.i(f"s_lshl_b32 s{sT1}, s{sT1}, 10")
    e.i(f"v_add_u32 v0, s{sT1}, v{vL16}")
    e.i("v_xor_b32 v2, 0x400, v0")
    e.i("v_bfe_u32 v122, v1, 2, 3")
    e.i("v_lshlrev_b32 v122, 7, v122")
    e.i(f"v_lshl_add_u32 v122, v{vC}, 2, v122")
    e.i("v_lshlrev_b32 v123, 9, v1")
    e.i(f"s_mov_b32 s{sW2T}, s{sT2}")
    def flag_out():
        e.i("s_mov_b64 exec, 1")
        e.vmem(f"buffer_store_dword v73, v72, {S(sWS,4)}, s{sW2T} offen sc1")
        e.i("s_mov_b64 exec, -1")
        lds_signal(CL1)
        stamp(4, "late")
    if not opt.prefirst:
        e.wait_all(vm=True)
        flag_out()
    e.i(f"s_mul_i32 s{sOFF}, s{sF}, {448*1024}")
    e.i(f"s_lshl_b32 s{sT0}, s{sCB}, 7")
    e.i(f"s_add_u32 s{sOFF}, s{sOFF}, s{sT0}")
    e.i(f"s_mov_b32 s{sE1}, s{sOFF}")
    e.i(f"s_cmp_eq_u32 s{sWAVE}, 7")
    e.i("s_cbranch_scc1 L_no_e1")
    e.c("touch 1/32 of the w2 / wo lines this XCD needs -> L2 (waves 4,5: w2, wave 6: wo)")
    e.i(f"s_lshr_b32 s{sT1}, s2, 3")
    e.i(f"s_and_b32 s{sT2}, s{sCB}, 1")
    e.i(f"s_lshl_b32 s{sT2}, s{sT2}, 7")
    e.i(f"s_cmp_eq_u32 s{sWAVE}, 6")
    e.i("s_cbranch_scc1 L_t_wo")
    e.i(f"s_lshl_b32 s{sT1}, s{sT1}, 1")
    e.i(f"s_add_u32 s{sT1}, s{sT1}, s{sF}")
    e.i(f"s_mul_i32 s{sT1}, s{sT1}, {28*1024}")
    e.i(f"s_add_u32 s{sT1}, s{sT1}, s{sT2}")
    if not opt.t7:
        e.i(f"buffer_load_dword v124, v{vTCH}, {S(sW2,4)}, s{sT1} offen")
        e.i(f"s_add_u32 s{sT1}, s{sT1}, {12*1024}")
        e.i(f"buffer_load_dword v124, v{vTCH}, {S(sW2,4)}, s{sT1} offen")
    e.i("s_branch L_no_e1")
    e.label("L_t_wo")
    e.i(f"s_lshl_b32 s{sT1}, s{sT1}, 14")
    e.i(f"s_add_u32 s{sT1}, s{sT1}, s{sT2}")
    e.i(f"buffer_load_dword v124, v{vTCH}, {S(sWO,4)}, s{sT1} offen")
    e.label("L_no_e1")
    e.c("blocks 51..63 -> R1 once xn is dead")
    lds_poll(CX, 4, sleep=4)
    e.i(f"s_lshl_b32 s{sOFF2}, s{sF}, 11")
    e.i(f"s_add_u32 s{sOFF2}, s{sOFF2}, {(NE+47)*2048}")
    e.i(f"s_mul_i32 s{sT1}, s{sF}, {KVS}")
    e.i(f"s_add_u32 s{sT1}, s{sT1}, {R1}")
    e.vm = []
    kv_dma(3, sOFF2, sT1, 4, 4)
    e.i("s_mov_b32 exec_lo, 0xfff")
    e.i("s_mov_b32 exec_hi, 0xfff")
    e.lds(f"ds_write_b128 v{vSP}, {V(vSD,4)} offset:2048")
    e.i("s_mov_b64 exec, -1")
    stamp(5)
    if opt.exit_at == 5:
        e.wait_all(vm=True)
        lds_signal(CH2)
    exit_if(5)
    e.i(f"s_lshr_b32 s{sT2}, s{sCB}, 1")
    for c in range(4):
        e.i(f"s_xor_b32 s{sCH+c}, s{sT2}, {c}")
        e.i(f"s_mul_i32 s{sCH+c}, s{sCH+c}, {7*2048}")
    e.i(f"s_mul_i32 s{sT0}, s{sRB}, 112")
    e.i(f"s_mul_i32 s{sT1}, s{sF}, 28")
    e.i(f"s_add_u32 s{sT0}, s{sT0}, s{sT1}")
    e.i(f"s_lshl_b32 s{sT0}, s{sT0}, 11")
    e.i(f"s_add_u32 s{sE2}, s{sT0}, {WS_H}")
    e.i(f"s_lshl_b32 s{sT0}, s{sF}, 3")
    e.i(f"s_and_b32 s{sT1}, s{sCB}, 4")
    e.i(f"s_add_u32 s{sT1}, s{sT1}, s{sT0}")
    e.i(f"s_lshl_b32 s4, 15, s{sT1}")
    e.i(f"s_lshl_b32 s5, 0xff, s{sT0}")
    def set_w(c):
        e.i(f"s_lshl_b32 s{sOFF}, s{sCH+c}, 3")
        e.i(f"s_add_u32 s{sOFF}, s{sOFF}, s{sE1}")
    def set_h(c):
        e.i(f"s_add_u32 s{sOFF2}, s{sCH+c}, s{sE2}")
    set_w(0)
    set_h(0)
    PH = opt.ph
    def wo_dma():
        e.c("wo slice -> R0 by DMA once attention has left it")
        e.i("s_setprio 3")
        lds_poll(CR0, 4, sleep=8)
        e.i(f"s_lshl_b32 s{sU0}, s{sF}, 17")
        e.i(f"s_lshl_b32 s{sU1}, s{sCB}, 7")
        e.i(f"s_add_u32 s{sU0}, s{sU0}, s{sU1}")
        e.i(f"s_lshl_b32 s{sU1}, s{sF}, 14")
        e.i(f"s_lshl_b32 s{sT1}, s{sRB}, {11 if opt.rot & 8 else 14}")
        for i in range(16):
            e.i(f"s_and_b32 s{sT1}, s{sT1}, 0x3fff")
            e.i(f"s_add_u32 m0, s{sU1}, s{sT1}")
            e.i(f"s_lshl_b32 s{sT0}, s{sT1}, 3")
            e.i(f"s_add_u32 s{sT0}, s{sT0}, s{sU0}")
            e.vmem(f"buffer_load_dwordx4 v{vSW}, {S(sWO,4)}, s{sT0} offen lds", "wo")
            e.i(f"s_add_u32 s{sT1}, s{sT1}, 1024")
    HR = [96, 104, 112, 232, 240, 248, 192, 200][:PH]
    NP = opt.npre
    def dma2(ks, a):
        e.i(f"s_add_u32 m0, s{sRING}, {(ks % 8) * 2048 + a * 1024}")
        e.i("s_nop 0")
        e.vmem(f"buffer_load_dwordx4 v{vSW}, {S(sW2,4)}, s{sOFF} offen lds", ("w", ks))
        e.i(f"s_add_u32 s{sOFF}, s{sOFF}, 8192")
        if a == 1 and ks % 7 == 6 and ks < 27:
            set_w(ks // 7 + 1)
    def hl2(ks, rh):
        r = HR[ks % PH] + 4 * rh
        e.vmem(f"buffer_load_dwordx4 {V(r,4)}, v{2 if rh else 0}, {S(sWS,4)}, s{sOFF2} offen sc1", ("h", ks))
        if rh:
            e.i(f"s_add_u32 s{sOFF2}, s{sOFF2}, 2048")
            if ks % 7 == 6 and ks < 27:
                set_h(ks // 7 + 1)
    def areg(ks):
        return 128 + 8 * ks if ks < NP else A3 + 8 * (ks % 3)
    def t32(ks, i):
        ct, t = i >> 1, i & 1
        e.lds(f"ds_read_b64_tr_b16 {V(areg(ks)+4*ct+2*t,2)}, v{vT1 if ct else vT0} offset:{(ks%8)*2048+1024*t}", ("f", ks))
    e.c("while h is in flight: w2 stages -> ring -> fragments in registers, ring refilled")
    for ks in range(8):
        dma2(ks, 0); dma2(ks, 1)
    if opt.prefirst:
        e.i(f"s_waitcnt vmcnt({len(e.vm) + opt.pslack})")
        flag_out()
    e.wait(vm=("kv", 2))
    lds_signal(CH2)
    for ks in range(max(NP, 2)):
        e.wait(vm=("w", ks))
        for i in range(4):
            t32(ks, i)
        if 1 <= ks <= NP:
            e.wait(lg=("f", ks - 1))
            dma2(ks + 7, 0); dma2(ks + 7, 1)
    if NP >= 2:
        e.wait(lg=("f", NP - 1))
        dma2(NP + 7, 0); dma2(NP + 7, 1)
    stamp(9, "late")
    top, done = lbl("fp"), lbl("fpd")
    spin_init()
    e.label(top)
    e.i(f"buffer_load_dword v124, v122, {S(sWS,4)}, s{sFLG} offen sc1")
    e.wait_all(vm=True)
    e.i(f"v_cmp_ne_u32 vcc, s{sTAG}, v124")
    e.i(f"s_and_b32 s{sT0}, vcc_lo, s4")
    e.i(f"s_cbranch_scc0 {done}")
    spin_tail(top, done, 4)
    e.label(done)
    stamp(6)
    e.i(f"s_setprio {opt.fprio}")
    for ks in range(PH - 1):
        hl2(ks, 0); hl2(ks, 1)
    for ks in range(28):
        if ks == 12 - PH:
            e.vmem(f"buffer_load_dword v124, v122, {S(sWS,4)}, s{sFLG} offen sc1", "fl")
        if ks == 15 - PH:
            e.c("the second producer must have published before its half is read")
            e.wait(vm="fl")
            e.i("s_setprio 3")
            e.i(f"v_cmp_ne_u32 vcc, s{sTAG}, v124")
            e.i(f"s_and_b32 s{sT0}, vcc_lo, s5")
            e.i("s_cbranch_scc1 L_slow_h")
            e.label("L_back_h")
            e.i(f"s_setprio {opt.fprio}")
        if ks == opt.hold:
            e.c("the operands of the last steps are on chip: run them after attention, under the o hand-off")
            e.i("s_setprio 3")
            e.wait_all(vm=True)
            if opt.wo_at + 3 >= opt.hold:
                lds_signal(CWO)
            lds_poll(CAD, 4, sleep=2)
        e.wait(lg=("f", ks), vm=("h", ks))
        e.wait(vm=("w", ks + 2))
        for i in range(4):
            rh, ct = i >> 1, i & 1
            a = ACC + 16 * i
            e.i(f"{MF32} {V(a,16)}, {V(areg(ks)+4*ct,4)}, {V(HR[ks%PH]+4*rh,4)}, {'0' if ks == 0 else V(a,16)}")
            if ct == 0:
                if ks >= NP and ks + 8 < 28:
                    dma2(ks + 8, rh)
            elif ks + PH - 1 < 28:
                hl2(ks + PH - 1, rh)
            if max(NP, 2) <= ks + 2 < 28:
                t32(ks + 2, i)
                if opt.dense2 <= ks < min(opt.late2, opt.hold):
                    paced(opt.pace2)
        if ks == opt.wo_at:
            wo_dma()
            e.i(f"s_setprio {opt.fprio}")
        if ks == min(opt.wo_at + 3, 27) and opt.wo_at + 3 < opt.hold:
            e.wait(vm="wo")
            lds_signal(CWO)
    stamp(7)
    exit_if(7)
    e.i("s_setprio 3")
    if opt.wo_at >= 28:
        wo_dma()
    e.c("f partials: accumulators 1..3 -> own ring; wave f^i picks up accumulator i")
    e.i(f"v_add_u32 v72, s{sRING}, v{vL16}")
    for i in (1, 2, 3):
        e.i(f"s_xor_b32 s{sT0}, s{sF}, {i}")
        e.i(f"s_lshl_b32 s{sT0}, s{sT0}, 14")
        e.i(f"s_add_u32 s{sT0}, s{sT0}, {RB2 + (i-1)*4096}")
        e.i(f"v_add_u32 v{73+i}, s{sT0}, v{vL16}")
    e.i("v_add_u32 v77, 0x3000, v72")
    e.i(f"s_lshl_b32 s{sT0}, s{sF}, 2")
    e.i(f"v_add_u32 v78, s{sT0}, v6")
    e.i(f"s_mov_b32 s{sT1}, {hex(f32bits(-math.log2(math.e)))}")
    e.i(f"s_setprio {opt.fprio}")
    for i in (1, 2, 3):
        for q in range(4):
            e.lds(f"ds_write_b128 v72, {V(ACC+16*i+4*q,4)} offset:{(i-1)*4096+q*1024}")
    lds_signal(CF)
    e.i("s_setprio 3")
    stamp(8, "late")
    lds_poll(CF, 4, sleep=2)
    for i in (1, 2, 3):
        for q in range(4):
            e.lds(f"ds_read_b128 {V(ACC+16*i+4*q,4)}, v{73+i} offset:{q*1024}", ("r", i))
    if opt.glate:
        lds_poll(CAD, 4, sleep=4)
    for i in (1, 2, 3):
        e.wait(lg=("r", i))
        for r in range(0, 16, 2):
            e.i(f"v_pk_add_f32 {V(ACC+r,2)}, {V(ACC+r,2)}, {V(ACC+16*i+r,2)}")
    for r in range(16):
        e.i(f"v_mul_f32 v{ACC+16+r}, s{sT1}, v{ACC+r}")
    for r in range(16):
        e.i(f"v_exp_f32 v{ACC+16+r}, v{ACC+16+r}")
    for r in range(16):
        e.i(f"v_add_f32 v{ACC+16+r}, 1.0, v{ACC+16+r}")
    for r in range(16):
        e.i(f"v_rcp_f32 v{ACC+16+r}, v{ACC+16+r}")
    for r in range(16):
        e.i(f"v_mul_f32 v{ACC+r}, v{ACC+r}, v{ACC+16+r}")
    for j in range(8):
        e.i(f"v_cvt_pk_bf16_f32 v{ACC+j}, v{ACC+2*j}, v{ACC+2*j+1}")
    e.lds(f"ds_write_b128 v77, {V(ACC,4)}")
    e.lds(f"ds_write_b128 v77, {V(ACC+4,4)} offset:1024")
    lds_signal(CGD, va=78)
    stamp(10)
    dump_stamps()
    e.label("L_end")
    e.i("s_endpgm")
    e.label("L_slow_h")
    spin_init()
    e.label("L_slow_hx")
    e.i(f"buffer_load_dword v124, v122, {S(sWS,4)}, s{sFLG} offen sc1")
    e.i("s_waitcnt vmcnt(0)")
    e.i(f"v_cmp_ne_u32 vcc, s{sTAG}, v124")
    e.i(f"s_and_b32 s{sT0}, vcc_lo, s5")
    e.i("s_cbranch_scc0 L_back_h")
    spin_tail("L_slow_hx", "L_back_h", 4)
    e.label("L_code_end")
    return e

def wrap(e):
    hdr = open("cdna_kernels/%s.s.ref" % NAME).read().split("\n")
    top = [l for l in hdr if l.startswith(";") and "@launch" not in l]
    out = "\n".join(top) + f"\n; @launch grid=(256,1,1) block=(512,1,1) lds={LDS_BYTES}\n"
    out += f""".amdgcn_target "amdgcn-amd-amdhsa--gfx950"
.text
.globl {NAME}_kernel
.p2align 8
.type {NAME}_kernel,@function
{NAME}_kernel:
"""
    out += e.text()
    out += f""".section .rodata,"a"
.p2align 6
.amdhsa_kernel {NAME}_kernel
  .amdhsa_next_free_vgpr 256
  .amdhsa_next_free_sgpr 102
  .amdhsa_accum_offset 256
  .amdhsa_group_segment_fixed_size 0
  .amdhsa_kernarg_size 88
  .amdhsa_user_sgpr_count 2
  .amdhsa_user_sgpr_kernarg_segment_ptr 1
  .amdhsa_system_sgpr_workgroup_id_x 1
.end_amdhsa_kernel
"""
    return out

if __name__ == "__main__":
    opt = Opt()
    outp = sys.argv[1]
    for a in sys.argv[2:]:
        k, v = a.split("=")
        assert hasattr(opt, k), k
        setattr(opt, k, type(getattr(opt, k))(eval(v)))
    e = gen(opt)
    bad = check_cfg(e.lines)
    print("hazards:", bad, "lines:", len(e.lines), "lds", LDS_BYTES)
    open(outp, "w").write(wrap(e))
```

```python
import sys, math, struct
from asmlib import *

NAME = "recurrent_scan__grouped_kv_mqa__dense_activation_relu__prompt"
MF32 = "v_mfma_f32_32x32x16_bf16"
MF16 = "v_mfma_f32_16x16x32_bf16"
SMF = "v_smfmac_f32_32x32x32_bf16"

def f32bits(x):
    return struct.unpack("<I", struct.pack("<f", x))[0]

KVS = 2080
R0 = 0
R1 = 32 * KVS
XN_RH = 64 * 528
R2 = R1 + 2 * XN_RH
R4 = R2 + 28928
LDS_BYTES = R4 + 256
(CXN, CST, CWQ, CQ, CKV, CKM, CTAG, CA, CA2, CX, CH2, CR0, CWO, CAD, CF, CE0, CE1, CRW, CRC, CXI, CP1, CL1, CG, CTL, CWI, CGD, CGD1, CGD2, CGD3, CE7, COD, CHN) = [4 * i for i in range(32)]
RE = R2 + 18432
NE = 5
RB2 = R1 + 12 * KVS
assert RB2 % 128 == 0 and RB2 + 65536 <= R4
STAT = 128
assert R2 % 128 == 0
WS_KV = 0
WS_EPOCH = 0x30000
WS_KVF = 0x38000
WS_HF = 0x40000
WS_O = 0x100000
WS_H = 0x400000
WS_STAMP = 0x1000000
sX, sWQ, sWKV, sWO, sW1, sW2, sOUT, sWS = 8, 12, 16, 20, 24, 28, 32, 40
sMASK, sF, sSPIN, sFLG = 44, 45, 46, 47
sWAVE, sRB, sCB, sT0, sT1, sT2, sOFF, sOFF2, sCNT, sSEG = 70, 71, 72, 73, 74, 75, 76, 77, 78, 79
sRG, sOB, sTAG, sTILE, sRING, sW2T, sU0, sU1, sE1, sE2, sXO = 3, 6, 7, 36, 37, 38, 39, 60, 61, 62, 63
sCH = 64
sOA = 52
sSTAMP = 80
vH, vCG, vR, vC, vTR, vXN0, vXN1, vSW, vW1, vL16, vT0, vT1, vSP = 212, 213, 214, 215, 216, 217, 218, 219, 220, 221, 222, 223, 224
vTCH = 225
vSD = 228

class Opt:
    stamps = False
    front = False
    force_fallback = False
    thr = 40.0
    exit_at = 0
    spin = 0x20000
    pace1 = 0
    pace2 = 0
    kvsleep = 1
    kvdelay = 26
    kvtouch = True
    warm2 = True
    touch = 0
    fstart = 2
    twq = True
    wqdepth = 16
    fprio = 0
    outf = ''
    echo = ()
    emul = 1
    NR = 4
    dense = 32
    twait = 1
    nomf2 = False
    nold2 = 0
    ctouch = True
    mid = False
    wo_at = 16
    ntouch = 4
    full = True
    stouch = 0
    late2 = 28
    xr_early = True
    fprio1 = 0
    rot = 14
    la1 = True
    dyn = True
    osleep = 2
    hint = True
    hsleep = 2
    pos = (1, 4, 10)
    fgo = 1
    glate = True
    p7 = 0
    mimic = True
    noatt_tail = False
    jst = False
    e1pos = 1
    t7 = False
    npre = 4
    ph = 8
    pipe = 0
    prefirst = False
    hold = 21
    mkearly = True
    early_poll = 0
    epre = 0
    ln2 = False
    wqsplit = True
    centry = True
    wqafter = 0
    mid2 = False
    fp_early = 0
    fp_n = 0
    wide = True
    dry2 = False
    dryq = False
    onep = False
    pslack = 0
    hfl = 'sc1'
    t2at = 99
    wot = True
    dense2 = 0
    htouch = False
    lnclk = False

def gen(opt):
    e = E()
    uid = [0]
    inatt = [True]
    def lbl(p):
        uid[0] += 1
        return f"L_{p}_{uid[0]}"
    def stamp(k, when=None):
        if when == "front" and not opt.front: return
        if when == "late" and opt.mid2 and not inatt[0] and k in (4, 8, 9): return
        if when == "late" and (opt.front or (opt.jst and k in (1, 2, 3) and inatt[0])): return
        if opt.stamps:
            e.i(f"s_memrealtime {S(sSTAMP+2*k,2)}")
    def cstamp(k):
        if opt.stamps:
            e.i(f"s_memtime {S(sSTAMP+2*k,2)}")
    def dump_stamps():
        if not opt.stamps or opt.echo:
            return
        e.wait_all(vm=True, lg=True)
        e.i("v_mov_b32 v2, 0")
        e.i("v_mbcnt_lo_u32_b32 v1, -1, 0")
        e.i("v_mbcnt_hi_u32_b32 v1, -1, v1")
        for k in range(22):
            e.i(f"v_writelane_b32 v2, s{sSTAMP+k}, {k}")
        e.i(f"s_getreg_b32 s{sT0}, hwreg(HW_REG_XCC_ID)")
        e.i(f"v_writelane_b32 v2, s{sT0}, 22")
        e.i(f"s_lshl_b32 s{sT0}, s2, 3")
        e.i(f"s_add_u32 s{sT0}, s{sT0}, s{sWAVE}")
        e.i(f"s_lshl_b32 s{sT0}, s{sT0}, 8")
        e.i(f"s_add_u32 s{sT0}, s{sT0}, {WS_STAMP}")
        e.i("v_lshlrev_b32 v3, 2, v1")
        e.i(f"buffer_store_dword v2, v3, {S(sWS,4)}, s{sT0} offen")
    def exit_if(k):
        if opt.exit_at == k:
            dump_stamps()
            e.i("s_endpgm")
    def spin_init(mult=1):
        e.i(f"s_mov_b32 s{sSPIN}, {hex(opt.spin*mult)}")
    def spin_tail(top, done, sleep):
        e.i(f"s_sub_u32 s{sSPIN}, s{sSPIN}, 1")
        e.i(f"s_cbranch_scc1 {done}")
        if sleep:
            e.i(f"s_sleep {sleep}")
        e.i(f"s_branch {top}")
    def lds_signal(off, va=6):
        e.i("s_mov_b64 exec, 1")
        e.lds(f"ds_add_u32 v{va}, v7 offset:{off}")
        e.i("s_mov_b64 exec, -1")
    def lds_poll(off, n, vt=5, sleep=1, va=6):
        top, done = lbl("lp"), lbl("lpd")
        spin_init(16)
        e.label(top)
        e.i(f"ds_read_b32 v{vt}, v{va} offset:{off}")
        e.wait_all(lg=True)
        e.i(f"v_readfirstlane_b32 s{sT0}, v{vt}")
        e.i(f"s_cmp_ge_u32 s{sT0}, {n}")
        e.i(f"s_cbranch_scc1 {done}")
        spin_tail(top, done, sleep)
        e.label(done)
    def kv_dma(n, soff, sl, gstep, lstep):
        for i in range(n):
            e.i(f"s_mov_b32 m0, s{sl}")
            e.i(f"s_add_u32 s{sl}, s{sl}, {lstep*KVS}")
            for p in range(2):
                e.vmem(f"buffer_load_dwordx4 v{vL16}, {S(sWS,4)}, s{soff} offen offset:{1024*p} sc1 lds", ("kv", i))
            e.i(f"s_add_u32 s{soff}, s{soff}, {gstep*2048}")
    def setup():
        e.i(f"s_mov_b64 {S(sWQ,2)}, s[50:51]")
        e.i(f"s_mov_b64 {S(sWO,2)}, s[56:57]")
        e.i(f"s_mov_b64 {S(sW1,2)}, s[60:61]")
        e.i(f"s_mov_b64 {S(sW2,2)}, s[62:63]")
        e.i(f"s_mov_b64 {S(sOUT,2)}, s[64:65]")
        e.i(f"s_mov_b64 {S(sWS,2)}, s[68:69]")
        e.i(f"s_lshl_b32 s{sFLG}, s{sRB}, 10")
        e.i(f"s_add_u32 s{sFLG}, s{sFLG}, {hex(WS_HF)}")
        e.i(f"s_mul_i32 s{sRING}, s{sF}, 6144")
        e.i(f"s_add_u32 s{sRING}, s{sRING}, {R2}")
        e.i(f"s_lshl_b32 s{sT0}, s{sRB}, 5")
        e.i(f"s_lshl_b32 s{sT1}, s{sCB}, 2")
        e.i(f"s_add_u32 s{sT0}, s{sT0}, s{sT1}")
        e.i(f"s_and_b32 s{sT1}, s{sF}, 1")
        e.i(f"s_lshl_b32 s{sXO}, s{sT1}, 6")
        e.i(f"s_lshl_b32 s{sT1}, s{sT1}, 1")
        e.i(f"s_add_u32 s{sT0}, s{sT0}, s{sT1}")
        e.i(f"s_lshl_b32 s{sT0}, s{sT0}, 1")
        e.i(f"s_lshr_b32 s{sT1}, s{sF}, 1")
        e.i(f"s_add_u32 s{sT0}, s{sT0}, s{sT1}")
        e.i(f"s_lshl_b32 s{sT0}, s{sT0}, 10")
        e.i(f"s_add_u32 s{sOB}, s{sT0}, {WS_O}")
        e.i(f"s_lshl_b32 s{sT0}, s{sRB}, 1")
        e.i(f"s_add_u32 s{sT0}, s{sT0}, s{sT1}")
        e.i(f"s_lshl_b32 s{sT0}, s{sT0}, 15")
        e.i(f"s_add_u32 s{sXO}, s{sXO}, s{sT0}")
        e.i(f"s_lshl_b32 s{sT0}, s{sCB}, 7")
        e.i(f"s_add_u32 s{sXO}, s{sXO}, s{sT0}")
        e.i("v_lshrrev_b32 v5, 2, v1")
        e.i("v_and_b32 v5, 4, v5")
        e.i("v_xor_b32 v5, v5, v3")
        e.i("v_lshlrev_b32 v5, 4, v5")
        e.i(f"v_lshl_add_u32 v{vSW}, v2, 10, v5")
        e.i(f"v_mul_u32_u24 v{vW1}, 3584, v2")
        e.i(f"v_add_u32 v{vW1}, v{vW1}, v5")
        e.i(f"v_lshlrev_b32 v{vL16}, 4, v1")
        e.i(f"v_lshrrev_b32 v{vH}, 5, v1")
        e.i(f"v_bfe_u32 v{vCG}, v1, 4, 1")
        e.i(f"v_bfe_u32 v{vR}, v1, 2, 2")
        e.i(f"v_and_b32 v{vC}, 3, v1")
        e.i(f"v_lshrrev_b32 v4, 1, v{vC}")
        e.i(f"v_lshl_add_u32 v4, v{vCG}, 1, v4")
        e.i(f"v_lshlrev_b32 v5, 1, v{vR}")
        e.i("v_and_b32 v5, 4, v5")
        e.i("v_xor_b32 v4, v4, v5")
        e.i(f"v_lshlrev_b32 v{vTR}, 7, v{vR}")
        e.i(f"v_lshl_add_u32 v{vTR}, v4, 4, v{vTR}")
        e.i(f"v_and_b32 v5, 1, v{vC}")
        e.i(f"v_lshl_add_u32 v{vTR}, v5, 3, v{vTR}")
        e.i("v_and_b32 v5, 31, v1")
        e.i(f"v_mul_u32_u24 v{vXN0}, 528, v{vH}")
        e.i(f"v_lshl_add_u32 v{vXN0}, v5, 4, v{vXN0}")
        e.i(f"v_add_u32 v{vXN0}, {R1}, v{vXN0}")
        e.i(f"v_add_u32 v{vXN1}, {XN_RH}, v{vXN0}")
        e.i("v_lshlrev_b32 v205, 10, v5")
        e.i(f"v_lshl_add_u32 v205, v{vH}, 3, v205")
        e.i(f"v_mul_u32_u24 v{vSP}, {KVS}, v5")
        e.i(f"v_lshl_add_u32 v{vSP}, v{vH}, 4, v{vSP}")
        e.i(f"v_subrev_u32 v{vSD}, 1, v{vH}")
        e.i(f"v_and_b32 v{vSD}, 0x3f803f80, v{vSD}")
        for r in range(1, 4):
            e.i(f"v_mov_b32 v{vSD+r}, v{vSD}")
        e.i("v_and_b32 v4, 15, v1")
        e.i(f"v_lshl_add_u32 v4, v{vH}, 4, v4")
        e.i("v_lshlrev_b32 v203, 4, v4")
        e.i(f"v_lshl_add_u32 v{vT0}, v{vH}, 10, v{vTR}")

    e.i("s_cmp_ge_u32 s2, 256")
    e.i("s_cbranch_scc1 L_end")
    e.i("s_load_dwordx16 s[48:63], s[0:1], 0")
    e.i("s_load_dwordx2 s[64:65], s[0:1], 64")
    e.i("s_load_dwordx2 s[68:69], s[0:1], 80")
    stamp(0)
    e.i("v_lshrrev_b32 v2, 6, v0")
    e.i("v_and_b32 v1, 63, v0")
    e.i(f"v_readfirstlane_b32 s{sWAVE}, v2")
    def ctouch():
        e.c("pull this kernel's code into L2: 16 lines per workgroup, the workgroups of an XCD cover all of it")
        e.i(f"s_getpc_b64 {S(sWKV,2)}")
        e.label("L_pc")
        e.i(f"s_mov_b32 s{sWKV+2}, L_code_end-L_pc")
        e.i(f"s_mov_b32 s{sWKV+3}, 0x20000")
        e.i(f"s_lshr_b32 s{sT0}, s2, 3")
        e.i(f"s_lshl_b32 s{sT0}, s{sT0}, 7")
        e.i("v_lshlrev_b32 v104, 12, v1")
        e.i("s_mov_b64 exec, 0xffff")
        e.i(f"buffer_load_dword v106, v104, {S(sWKV,4)}, s{sT0} offen")
        e.i("s_mov_b64 exec, -1")
    if opt.ctouch and opt.centry:
        e.i(f"s_cmp_lg_u32 s{sWAVE}, 4")
        e.i("s_cbranch_scc1 L_no_ct")
        ctouch()
        e.label("L_no_ct")
    e.c("workgroup -> (row block rb, column block cb); ids that share id&7 share half of the columns and 1/4 of the rows")
    e.i(f"s_and_b32 s{sT0}, s2, 7")
    e.i(f"s_lshr_b32 s{sT1}, s2, 3")
    e.i(f"s_and_b32 s{sCB}, s{sT1}, 3")
    e.i(f"s_lshl_b32 s{sCB}, s{sCB}, 1")
    e.i(f"s_and_b32 s{sRB}, s{sT0}, 1")
    e.i(f"s_add_u32 s{sCB}, s{sCB}, s{sRB}")
    e.i(f"s_lshr_b32 s{sT1}, s{sT1}, 2")
    e.i(f"s_lshr_b32 s{sRB}, s{sT0}, 1")
    e.i(f"s_lshl_b32 s{sRB}, s{sRB}, 3")
    e.i(f"s_add_u32 s{sRB}, s{sRB}, s{sT1}")
    e.i(f"s_mov_b32 s{sMASK}, 0xffff0000")
    e.i(f"s_and_b32 s{sF}, s{sWAVE}, 3")
    e.c("row group of this wave: (w + 2*rq + 3) & 7 -> waves 5,6 hold the 16 rows of this workgroup's K/V tile")
    e.i(f"s_and_b32 s{sRG}, s{sCB}, 6")
    e.i(f"s_add_u32 s{sRG}, s{sRG}, s{sWAVE}")
    e.i(f"s_add_u32 s{sRG}, s{sRG}, 3")
    e.i(f"s_and_b32 s{sRG}, s{sRG}, 7")
    e.i("v_lshrrev_b32 v2, 3, v1")
    e.i("v_and_b32 v3, 7, v1")
    e.i("v_lshlrev_b32 v4, 10, v2")
    e.i("v_lshl_add_u32 v4, v3, 4, v4")
    e.i(f"s_lshl_b32 s{sOFF}, s{sRB}, 3")
    e.i(f"s_add_u32 s{sOFF}, s{sOFF}, s{sRG}")
    e.i(f"s_lshl_b32 s{sOFF}, s{sOFF}, 13")
    for srd, size in ((sX, 2048*512*2), (sWQ, 512*512*2), (sWKV, 512*16*2), (sWO, 512*512*2), (sW1, 512*1792*2),
                      (sW2, 1792*512*2), (sOUT, 2048*512*2), (sWS, 0x10000000)):
        e.i(f"s_mov_b32 s{srd+2}, {hex(size)}")
        e.i(f"s_mov_b32 s{srd+3}, 0x20000")
    e.i(f"v_mov_b32 v6, {R4}")
    e.i("v_mov_b32 v7, 1")
    e.i("v_mov_b64 v[108:109], 0")
    e.i("v_and_b32 v105, 15, v1")
    e.i("v_lshl_add_u32 v105, v105, 3, v6")
    e.i("ds_write_b64 v105, v[108:109]")
    e.i(f"s_mov_b32 s{sSEG}, 0")
    e.i(f"s_cmp_eq_u32 s{sWAVE}, 7")
    e.i("s_cbranch_scc1 L_pre_7")
    e.i("s_waitcnt lgkmcnt(0)")
    e.i(f"s_mov_b64 {S(sX,2)}, s[48:49]")
    e.i(f"s_cmp_eq_u32 s{sWAVE}, 4")
    e.i("s_cbranch_scc1 L_pre_4")
    e.i(f"s_cmp_ge_u32 s{sWAVE}, 5")
    e.i("s_cbranch_scc1 L_pre_first")
    e.i("s_barrier")
    e.label("L_pre_first")
    for i in range(8):
        e.i(f"buffer_load_dwordx4 {V(8+4*i,4)}, v4, {S(sX,4)}, s{sOFF} offen offset:{128*i}")
    e.i("s_cbranch_scc0 L_pre_second")
    e.i("s_barrier")
    e.label("L_pre_second")
    e.i(f"s_cmp_eq_u32 s{sWAVE}, 0")
    e.i("s_cbranch_scc1 L_pre_dbl")
    e.i(f"s_cmp_lg_u32 s{sWAVE}, 3")
    e.i("s_cbranch_scc1 L_pre_n3")
    e.label("L_pre_dbl")
    e.c("waves 0,3 also normalise the rows waves 4,7 would have had (row group ^ 4)")
    e.i(f"s_xor_b32 s{sOFF}, s{sOFF}, 0x8000")
    for i in range(8):
        e.i(f"buffer_load_dwordx4 {V(128+4*i,4)}, v4, {S(sX,4)}, s{sOFF} offen offset:{128*i}")
    e.i(f"s_mov_b32 s{sSEG}, 1")
    e.label("L_pre_n3")
    lds_signal(CXI)
    setup()
    e.i(f"s_cmp_ge_u32 s{sWAVE}, 4")
    e.i("s_cbranch_scc1 L_pre_56")
    S0, S1, P0, P1, OA, OB, NMA, NMB, QA, QB, KB, VB = 32, 48, 64, 72, 80, 96, 112, 128, 144, 148, 152, 168
    vK, vV0, vV1, vVG, vVC = 200, 201, 202, 203, 204
    e.i("s_setprio 1")
    e.i(f"s_and_b32 s{sT1}, s{sWAVE}, 1")
    e.i(f"s_lshl_b32 s{sT2}, s{sT1}, 6")
    e.i(f"v_xor_b32 v{vT0}, s{sT2}, v{vT0}")
    e.i(f"s_lshr_b32 s{sT1}, s{sWAVE}, 1")
    e.i(f"s_mul_i32 s{sT1}, s{sT1}, {XN_RH}")
    e.i(f"v_add_u32 v{vXN0}, s{sT1}, v{vXN0}")
    e.i(f"v_add_u32 v{vK}, {RE}, v{vL16}")
    e.i("v_and_b32 v5, 11, v1")
    e.i("v_cmp_ne_u32 vcc, 0, v5")
    e.i(f"v_mov_b32 v4, {RE+2048}")
    e.i(f"v_mov_b32 v5, {RE+2064}")
    e.i(f"v_add_u32 v{vV0}, {RE+1024}, v{vVG}")
    e.i("v_cndmask_b32 v4, v4, v5, vcc")
    e.i(f"v_cmp_eq_u32 vcc, 0, v{vCG}")
    e.i(f"v_add_u32 v{vV1}, {RE+1536}, v{vVG}")
    e.i("v_mov_b32 v207, 0xdddddddd")
    e.nop(1)
    e.i(f"v_cndmask_b32 v{vV0}, v4, v{vV0}, vcc")
    e.i(f"v_cndmask_b32 v{vV1}, v4, v{vV1}, vcc")
    if opt.stouch:
        e.c("scalar touches of w1 -> L2: wave w takes line column w, rows (rb&7) + 8i")
        e.i(f"s_and_b32 s{sT0}, s{sRB}, 7")
        e.i(f"s_mul_i32 s{sT0}, s{sT0}, 3584")
        e.i(f"s_mul_i32 s{sT1}, s{sCB}, 448")
        e.i(f"s_add_u32 s{sT0}, s{sT0}, s{sT1}")
        e.i(f"s_lshl_b32 s{sT1}, s{sWAVE}, 7")
        e.i(f"s_add_u32 s{sT0}, s{sT0}, s{sT1}")
        e.i(f"s_add_u32 s4, s60, s{sT0}")
        e.i("s_addc_u32 s5, s61, 0")
        for i in range(opt.stouch):
            e.i(f"s_load_dword s{sU0}, s[4:5], {hex(i*8*3584)}")
    if opt.ln2 and opt.dry2:
        e.c("while x is in flight: walk a quarter of the double-pass code with all lanes off (VALU / LDS writes only) to warm the instruction cache")
        e.i("v_mov_b32 v122, 0")
        e.i("s_mov_b64 exec, 0")
        for w in range(3):
            e.i(f"s_cmp_eq_u32 s{sWAVE}, {w}")
            e.i(f"s_cbranch_scc1 L_dry_{w}")
        e.i("s_branch L_dry_3")
        e.label("L_dry_ret")
        e.i("s_mov_b64 exec, -1")
    e.i(f"s_cmp_eq_u32 s{sSEG}, 1")
    e.i("s_cbranch_scc1 L_pre_w8")
    e.i("s_waitcnt vmcnt(0)")
    e.i("s_branch L_ln")
    e.label("L_pre_w8")
    e.i("s_waitcnt vmcnt(8)")
    e.i("s_branch L_ln2" if opt.ln2 else "s_branch L_ln")

    def ffn_setup():
        e.i(f"s_and_b32 s{sTILE}, s{sCB}, 1")
        e.i(f"s_lshl_b32 s{sT1}, s{sF}, 1")
        e.i(f"s_add_u32 s{sTILE}, s{sTILE}, s{sT1}")
        e.i(f"v_add_u32 v{vT0}, s{sRING}, v{vT0}")
        e.i(f"v_xor_b32 v{vT1}, 64, v{vT0}")
    e.label("L_pre_4")
    if opt.ctouch and not opt.centry:
        ctouch()
    e.c("wave 4: loader.  wq slice -> R0 by DMA behind the x loads; touches 1/8 of the w1 slice -> L2")
    setup()
    ffn_setup()
    e.i(f"s_lshl_b32 s{sOFF}, s{sCB}, 7")
    e.i(f"s_mov_b32 s{sT1}, 0")
    if opt.rot & 1:
        e.i(f"s_and_b32 s{sT1}, s{sRB}, 7")
        e.i(f"s_lshl_b32 s{sT0}, s{sT1}, 16")
        e.i(f"s_add_u32 s{sOFF}, s{sOFF}, s{sT0}")
        e.i(f"s_lshl_b32 s{sT1}, s{sT1}, 13")
    e.i(f"s_mov_b32 s{sCNT}, 7")
    def touch_setup(so):
        e.i("v_lshrrev_b32 v105, 2, v1")
        e.i("v_mul_u32_u24 v105, 3584, v105")
        e.i(f"v_lshl_add_u32 v105, v{vC}, 7, v105")
        e.i(f"s_and_b32 s{so}, s{sRB}, 7")
        e.i(f"s_mul_i32 s{so}, s{so}, {16*3584}")
        e.i(f"s_mul_i32 s{sT0}, s{sCB}, 448")
        e.i(f"s_add_u32 s{so}, s{so}, s{sT0}")
    def touches(so=sT2, a=0, b=4):
        for i in range(a, b):
            e.i(f"s_add_u32 s{sU0}, s{so}, {i*128*3584}")
            e.i(f"buffer_load_dword v106, v105, {S(sW1,4)}, s{sU0} offen")
    touch_setup(sT2)
    if opt.twq:
        e.i("v_lshrrev_b32 v104, 2, v1")
        e.i("v_lshlrev_b32 v104, 10, v104")
        e.i(f"v_lshl_add_u32 v104, v{vC}, 8, v104")
        e.i(f"s_lshr_b32 s{sT0}, s2, 3")
        e.i(f"s_lshl_b32 s{sT0}, s{sT0}, 14")
        e.i(f"s_and_b32 s{sU0}, s{sCB}, 1")
        e.i(f"s_lshl_b32 s{sU0}, s{sU0}, 7")
        e.i(f"s_add_u32 s{sT0}, s{sT0}, s{sU0}")
    e.i("s_barrier")
    if opt.twq:
        e.i(f"buffer_load_dword v106, v104, {S(sWQ,4)}, s{sT0} offen")
    if opt.touch == 4:
        touches()
    lds_poll(CXI, 6, sleep=0)
    if opt.wqafter:
        lds_poll(CXN, opt.wqafter, sleep=1)
    e.label("L_wq_loop")
    for i in range(8):
        e.i(f"s_mov_b32 m0, s{sT1}")
        e.i(f"s_add_u32 s{sT1}, s{sT1}, 1024")
        e.i(f"buffer_load_dwordx4 v{vSW}, {S(sWQ,4)}, s{sOFF} offen lds")
        e.i(f"s_add_u32 s{sOFF}, s{sOFF}, 8192")
    e.i(f"s_and_b32 s{sOFF}, s{sOFF}, 0x7ffff")
    e.i(f"s_and_b32 s{sT1}, s{sT1}, 0xffff")
    e.i(f"s_waitcnt vmcnt({opt.wqdepth})")
    e.i(f"s_sub_u32 s{sCNT}, s{sCNT}, 1")
    e.i("s_cbranch_scc0 L_wq_loop")
    lds_signal(CWI)
    stamp(1, "front")
    if opt.touch == 1:
        touches()
    if opt.wqsplit:
        e.i("s_waitcnt vmcnt(24)")
        lds_signal(CWQ)
    e.i("s_waitcnt vmcnt(0)")
    lds_signal(CWQ)
    stamp(8, "front")
    if opt.touch == 2 or (opt.touch == 3 and opt.ntouch < 4):
        lds_poll(CG, 4, sleep=2)
        touches(sT2, opt.ntouch if opt.touch == 3 else opt.stouch // 16, 4)
    e.i("s_branch L_ffn")

    e.label("L_pre_56")
    ffn_setup()
    e.i("s_setprio 3")
    e.i("s_waitcnt vmcnt(0)")

    e.label("L_ln")
    stamp(1, "front")
    if opt.lnclk:
        stamp(6); cstamp(9)
    X = 40
    A = 112
    e.i(f"s_lshr_b32 s{sT0}, s{sRG}, 2")
    e.i(f"s_mul_i32 s{sT0}, s{sT0}, {XN_RH}")
    e.i(f"s_and_b32 s{sT1}, s{sRG}, 3")
    e.i(f"s_lshl_b32 s{sT1}, s{sT1}, 7")
    e.i(f"s_add_u32 s{sT0}, s{sT0}, s{sT1}")
    e.i(f"s_add_u32 s{sT0}, s{sT0}, {R1}")
    e.i("v_mul_u32_u24 v122, 528, v3")
    e.i("v_lshl_add_u32 v122, v2, 4, v122")
    e.i(f"v_add_u32 v122, s{sT0}, v122")
    e.i(f"s_cmp_lt_u32 s{sWAVE}, 5")
    e.i("s_cbranch_scc1 L_ln_a")
    e.c("waves 5,6: raw rows -> LDS for the K/V wave")
    for i in range(8):
        e.i(f"ds_write_b128 v122, {V(8+4*i,4)} offset:{4224*i}")
    lds_signal(CRW)
    e.label("L_ln_a")
    e.i("v_mov_b32 v110, 0x3f803f80")
    e.i("v_mov_b64 v[112:113], 0")
    e.i("v_mov_b32 v108, 0x3f80")
    e.i("v_mov_b32 v109, 0x3f800000")
    for t in range(32):
        e.i(f"v_dot2c_f32_bf16 v{A+(t&1)}, v{8+t}, v110")
    def reduce_lanes():
        for m in ("quad_perm:[1,0,3,2]", "quad_perm:[2,3,0,1]", "row_half_mirror"):
            e.nop(2)
            e.i(f"v_add_f32_dpp v{A}, v{A}, v{A} {m} row_mask:0xf bank_mask:0xf")
    e.nop(3)
    e.i(f"v_add_f32 v{A}, v{A}, v{A+1}")
    reduce_lanes()
    def rnd(d, a):
        e.i(f"v_cvt_pk_bf16_f32 v{d}, v{a}, v{a}")
        e.i(f"v_and_b32 v{d}, s{sMASK}, v{d}")
    if opt.mimic:
        e.c("row statistics are rounded to bf16 where the reference rounds them")
        e.i(f"v_mul_f32 v121, {hex(f32bits(-1.0/512))}, v{A}")
        rnd(120, 121)
        e.i("v_sub_f32 v121, v121, v120")
    else:
        e.i(f"v_mul_f32 v120, {hex(f32bits(-1.0/512))}, v{A}")
    for t in range(32):
        e.i(f"v_dot2_f32_bf16 v{X+2*t}, v{8+t}, v108, v120")
        e.i(f"v_dot2_f32_bf16 v{X+2*t+1}, v{8+t}, v109, v120")
    for t in range(32):
        a = t % 4
        if t < 4:
            e.i(f"v_pk_mul_f32 {V(A+2*a,2)}, {V(X+2*t,2)}, {V(X+2*t,2)}")
        else:
            e.i(f"v_pk_fma_f32 {V(A+2*a,2)}, {V(X+2*t,2)}, {V(X+2*t,2)}, {V(A+2*a,2)}")
    e.i(f"v_pk_add_f32 {V(A,2)}, {V(A,2)}, {V(A+2,2)}")
    e.i(f"v_pk_add_f32 {V(A+4,2)}, {V(A+4,2)}, {V(A+6,2)}")
    e.i(f"v_pk_add_f32 {V(A,2)}, {V(A,2)}, {V(A+4,2)}")
    e.i(f"v_add_f32 v{A}, v{A}, v{A+1}")
    reduce_lanes()
    if opt.mimic:
        e.i(f"v_mul_f32 v119, {hex(f32bits(1.0/512))}, v{A}")
        e.i("v_fma_f32 v119, -v121, v121, v119")
        e.i("v_max_f32 v119, 0, v119")
        rnd(119, 119)
        e.i(f"v_add_f32 v119, {hex(f32bits(1e-5))}, v119")
        rnd(119, 119)
        e.i("v_sqrt_f32 v119, v119")
        e.nop(1)
        rnd(119, 119)
        e.i("v_rcp_f32 v118, v119")
    else:
        e.i(f"v_mov_b32 v119, {hex(f32bits(1e-5))}")
        e.i(f"v_fmac_f32 v119, {hex(f32bits(1.0/512))}, v{A}")
        e.i("v_rsq_f32 v118, v119")
    e.i(f"s_cmp_lt_u32 s{sWAVE}, 5")
    e.i("s_cbranch_scc1 L_ln_b")
    e.c("waves 5,6: hand the row statistics to the K/V wave")
    e.i(f"s_lshl_b32 s{sT0}, s{sWAVE}, 5")
    e.i(f"s_add_u32 s{sT0}, s{sT0}, {R4 + STAT - 160}")
    e.i(f"v_lshl_add_u32 v111, v2, 2, s{sT0}")
    e.i("ds_write2_b32 v111, v120, v118 offset1:16")
    lds_signal(CST)
    lds_poll(CRC, 1, sleep=0)
    e.label("L_ln_b")
    e.lg = []
    for i in range(8):
        for t in range(4*i, 4*i+4):
            e.i(f"v_pk_mul_f32 {V(X+2*t,2)}, {V(X+2*t,2)}, v[118:119] op_sel_hi:[1,0]")
        for t in range(4*i, 4*i+4):
            e.i(f"v_cvt_pk_bf16_f32 v{8+t}, v{X+2*t}, v{X+2*t+1}")
        e.lds(f"ds_write_b128 v122, {V(8+4*i,4)} offset:{4224*i}")
    lds_signal(CXN)
    e.i(f"s_cmp_eq_u32 s{sSEG}, 0")
    e.i("s_cbranch_scc1 L_ln_done")
    e.i(f"s_mov_b32 s{sSEG}, 0")
    e.i(f"s_xor_b32 s{sRG}, s{sRG}, 4")
    e.i("s_waitcnt vmcnt(0)")
    for t in range(0, 32, 2):
        e.i(f"v_mov_b64 {V(8+t,2)}, {V(128+t,2)}")
    e.i("s_branch L_ln")
    e.label("L_ln_done")
    stamp(8, "front")
    if opt.lnclk:
        stamp(7); cstamp(10)
    if opt.dryq:
        e.i(f"s_cmp_eq_u32 s{sWAVE}, 6")
        e.i("s_cbranch_scc1 L_dryq")
    e.i(f"s_cmp_ge_u32 s{sWAVE}, 4")
    e.i("s_cbranch_scc1 L_ffn")

    if opt.ln2:
        keep = e.lines
        e.lines = []
        class G: pass
        def phases(raw, xs, acc, nm, dl, ad):
            p = G()
            a0 = acc[0]
            p.sum = [f"v_dot2c_f32_bf16 v{a0+(t&1)}, v{raw+t}, v110" for t in range(32)]
            dpp = [f"v_add_f32_dpp v{a0}, v{a0}, v{a0} {m} row_mask:0xf bank_mask:0xf" for m in ("quad_perm:[1,0,3,2]", "quad_perm:[2,3,0,1]", "row_half_mirror")]
            rn = lambda d, a: [f"v_cvt_pk_bf16_f32 v{d}, v{a}, v{a}", f"v_and_b32 v{d}, s{sMASK}, v{d}"]
            p.r1 = [f"v_add_f32 v{a0}, v{a0}, v{a0+1}"] + dpp + [f"v_mul_f32 v{dl}, {hex(f32bits(-1.0/512))}, v{a0}"] + rn(nm, dl) + [f"v_sub_f32 v{dl}, v{dl}, v{nm}"]
            p.cen = []
            for t in range(32):
                p.cen += [f"v_dot2_f32_bf16 v{xs[t]}, v{raw+t}, v108, v{nm}", f"v_dot2_f32_bf16 v{xs[t]+1}, v{raw+t}, v109, v{nm}"]
            p.sq = [f"v_pk_mul_f32 {V(acc[t],2)}, {V(xs[t],2)}, {V(xs[t],2)}" if t < 4 else
                    f"v_pk_fma_f32 {V(acc[t%4],2)}, {V(xs[t],2)}, {V(xs[t],2)}, {V(acc[t%4],2)}" for t in range(32)]
            r, q = acc[3], acc[3] + 1
            p.r2 = [f"v_pk_add_f32 {V(acc[0],2)}, {V(acc[0],2)}, {V(acc[1],2)}", f"v_pk_add_f32 {V(acc[2],2)}, {V(acc[2],2)}, {V(acc[3],2)}",
                    f"v_pk_add_f32 {V(acc[0],2)}, {V(acc[0],2)}, {V(acc[2],2)}", f"v_add_f32 v{a0}, v{a0}, v{a0+1}"] + dpp + \
                   [f"v_mul_f32 v{q}, {hex(f32bits(1.0/512))}, v{a0}", f"v_fma_f32 v{q}, -v{dl}, v{dl}, v{q}", f"v_max_f32 v{q}, 0, v{q}"] + rn(q, q) + \
                   [f"v_add_f32 v{q}, {hex(f32bits(1e-5))}, v{q}"] + rn(q, q) + [f"v_sqrt_f32 v{q}, v{q}"] + rn(q, q) + [f"v_rcp_f32 v{r}, v{q}"]
            p.norm = []
            for i in range(8):
                p.norm += [f"v_pk_mul_f32 {V(xs[t],2)}, {V(xs[t],2)}, {V(r,2)} op_sel_hi:[1,0]" for t in range(4*i, 4*i+4)]
                p.norm += [f"v_cvt_pk_bf16_f32 v{raw+t}, v{xs[t]}, v{xs[t]+1}" for t in range(4*i, 4*i+4)]
                p.norm += [f"ds_write_b128 v{ad}, {V(raw+4*i,4)} offset:{4224*i}"]
            return p
        def merge(ser, bulk, k):
            out, b = [], list(bulk)
            for x in ser:
                out += b[:k]; b = b[k:]
                out.append(x)
            return out + b
        PA = phases(8, [40+2*t for t in range(32)], [112, 114, 116, 118], 120, 121, 122)
        PB = phases(128, [160+2*t for t in range(20)] + [232+2*t for t in range(12)], [104, 106, 124, 126], 111, 123, 5)
        e.label("L_ln2")
        e.c("waves 0,3: two row groups (rg and rg^4) in one interleaved pass")
        stamp(1, "front")
        e.i(f"s_lshr_b32 s{sT0}, s{sRG}, 2")
        e.i(f"s_mul_i32 s{sT0}, s{sT0}, {XN_RH}")
        e.i(f"s_and_b32 s{sT1}, s{sRG}, 3")
        e.i(f"s_lshl_b32 s{sT1}, s{sT1}, 7")
        e.i(f"s_add_u32 s{sT1}, s{sT1}, {R1}")
        e.i(f"s_add_u32 s{sT2}, s{sT1}, {XN_RH}")
        e.i(f"s_sub_u32 s{sT2}, s{sT2}, s{sT0}")
        e.i(f"s_add_u32 s{sT0}, s{sT0}, s{sT1}")
        e.i("v_mul_u32_u24 v122, 528, v3")
        e.i("v_lshl_add_u32 v122, v2, 4, v122")
        e.i(f"v_add_u32 v5, s{sT2}, v122")
        e.i(f"v_add_u32 v122, s{sT0}, v122")
        e.i("v_mov_b32 v110, 0x3f803f80")
        e.i("v_mov_b64 v[112:113], 0")
        e.i("v_mov_b64 v[104:105], 0")
        e.i("v_mov_b32 v108, 0x3f80")
        e.i("v_mov_b32 v109, 0x3f800000")
        def zipn(x, y):
            out = []
            for p, q in zip(x, y):
                out += [p, q] + (["s_nop 0"] if "dpp" in p or "v_add_f32 " in p else [])
            return out
        def solo(x):
            out = []
            for p in x:
                if "dpp" in p: out.append("s_nop 1")
                out.append(p)
                if "v_sqrt" in p: out.append("s_nop 0")
            return out
        seq = PA.sum + ["s_nop 2"] + solo(PA.r1) + PA.cen + PA.sq + solo(PA.r2) + ["s_nop 0"] + PA.norm[:9] + ["s_waitcnt vmcnt(0)"]
        if opt.stamps and opt.front:
            seq += [f"s_memrealtime {S(sSTAMP+18,2)}"]
        seq += PB.sum[:16] + PA.norm[9:18] + PB.sum[16:] + merge(PB.r1, PA.norm[18:36], 3)
        rest = PB.cen + PB.sq
        for i in range(4):
            seq += rest[24*i:24*i+24] + PA.norm[36+9*i:45+9*i]
        seq += solo(PB.r2) + ["s_nop 0"]
        k0 = seq.index("s_waitcnt vmcnt(0)") + 1
        n3 = (len(seq) - k0) // 3
        for k, t in enumerate(seq):
            if opt.dry2 and k in (k0 + n3, k0 + 2 * n3):
                e.i("s_cbranch_execz L_dry_ret")
            if opt.dry2 and k in (k0, k0 + n3, k0 + 2 * n3):
                e.label(f"L_dry_{(k - k0) // n3}")
            e.i(t)
        if opt.dry2:
            e.i("s_cbranch_execz L_dry_ret")
        lds_signal(CXN)
        e.label("L_dry_3")
        for t in PB.norm: e.i(t)
        if opt.dry2:
            e.i("s_cbranch_execz L_dry_ret")
        lds_signal(CXN)
        e.i("s_branch L_ln_done")
        ln2_lines = e.lines
        e.lines = keep
    e.vm = []
    for r in range(0, 32, 2):
        e.i(f"v_mov_b64 {V(OA+r,2)}, 0")
    lds_poll(CWQ, 1, sleep=0)
    for q in range(4):
        e.i(f"buffer_load_dwordx2 {V(232+2*q,2)}, v205, {S(sX,4)}, s{sXO} offen offset:{16*q}")
    lds_poll(CXN, 9, sleep=0)
    stamp(2, "front")
    e.label("L_q")
    fill = []
    e.c("Q projection: wave w -> head pair hp=w&1, row half rh=w>>1")
    def qreads(ks):
        s = ks % 4
        if ks == 20 and opt.wqsplit:
            e.i(f"v_readfirstlane_b32 s{sT0}, v5")
            e.i(f"s_cmp_ge_u32 s{sT0}, 2")
            e.i("s_cbranch_scc0 L_slow_wq")
            e.label("L_back_wq")
        if ks == 16 and opt.wqsplit:
            e.lds(f"ds_read_b32 v5, v6 offset:{CWQ}")
        e.lds(f"ds_read_b64_tr_b16 {V(32+8*s,2)}, v{vT0} offset:{ks*2048}", ("q", ks))
        e.lds(f"ds_read_b64_tr_b16 {V(34+8*s,2)}, v{vT0} offset:{ks*2048+512}", ("q", ks))
        e.lds(f"ds_read_b128 {V(36+8*s,4)}, v{vXN0} offset:{ks*1056}", ("q", ks))
    for ks in range(4):
        qreads(ks)
    for ks in range(32):
        s = ks % 4
        e.wait(lg=("q", ks))
        e.i(f"{MF32} v[8:23], {V(32+8*s,4)}, {V(36+8*s,4)}, {'0' if ks == 0 else 'v[8:23]'}")
        if ks + 4 < 32:
            qreads(ks + 4)
        if ks == 27:
            lds_signal(CQ)
        if fill:
            e.i(fill.pop(0))
    e.i(f"v_mov_b32 v28, {hex(f32bits(0.25*math.log2(math.e)))}")
    e.nop(11)
    for r in range(0, 16, 2):
        e.i(f"v_pk_mul_f32 {V(8+r,2)}, {V(8+r,2)}, v[28:29] op_sel_hi:[1,0]")
    for k in range(4):
        for hd in range(2):
            b = 8 + 8*hd + 2*k
            if k == 0:
                e.i(f"v_pk_mul_f32 {V(30+2*hd,2)}, {V(b,2)}, {V(b,2)}")
            else:
                e.i(f"v_pk_fma_f32 {V(30+2*hd,2)}, {V(b,2)}, {V(b,2)}, {V(30+2*hd,2)}")
    e.i("v_add_f32 v24, v30, v31")
    e.i("v_add_f32 v25, v32, v33")
    e.i("v_mov_b32 v26, v24")
    e.i("v_mov_b32 v27, v25")
    for hd in range(2):
        for j in range(4):
            e.i(f"v_cvt_pk_bf16_f32 v{QA+4*hd+j}, v{8+8*hd+2*j}, v{8+8*hd+2*j+1}")
    e.i("v_permlane32_swap_b32 v24, v26")
    e.i("v_permlane32_swap_b32 v25, v27")
    e.i("v_add_f32 v24, v24, v26")
    e.i("v_add_f32 v25, v25, v27")
    if opt.dryq:
        e.i(f"s_cmp_eq_u32 s{sWAVE}, 6")
        e.i("s_cbranch_scc1 L_dryq_ret")
    stamp(3, "front")
    lds_poll(CKV, 2, sleep=0)
    stamp(4)
    e.lds(f"ds_read_b32 v206, v6 offset:{CTAG}")
    e.lds(f"ds_read_b32 v30, v6 offset:{CKM}")
    e.wait_all(lg=True)
    e.c("stand-in for the row max: |q| * max|k| >= max_k q.k ; used only while it cannot be far above the true max")
    e.i("v_mul_f32 v24, v24, v30")
    e.i("v_mul_f32 v25, v25, v30")
    e.i("v_sqrt_f32 v24, v24")
    e.i("v_sqrt_f32 v25, v25")
    e.i(f"s_mov_b32 s{sT1}, {hex(f32bits(opt.thr))}")
    e.i("v_max_f32 v26, v24, v25")
    e.i(f"v_cmp_nge_f32 vcc, s{sT1}, v26")
    e.i("v_cmp_u_f32 s[4:5], v24, v25")
    e.i("s_or_b64 s[4:5], s[4:5], vcc")
    if opt.force_fallback:
        e.i("s_branch L_fallback")
    else:
        e.i("s_cbranch_scc1 L_fallback")
    e.label("L_att_start")
    e.i(f"v_sub_f32 v{NMA}, 0, v24")
    e.i(f"v_sub_f32 v{NMA+1}, 0, v24")
    e.i(f"v_sub_f32 v{NMB}, 0, v25")
    e.i(f"v_sub_f32 v{NMB+1}, 0, v25")
    for r in range(2, 16, 2):
        e.i(f"v_mov_b64 {V(NMA+r,2)}, {V(NMA,2)}")
        e.i(f"v_mov_b64 {V(NMB+r,2)}, {V(NMB,2)}")
    lds_poll(CE7, 1, sleep=0)
    for j in range(3):
        e.lds(f"ds_read_b128 {V(KB+4*j,4)}, v{vK} offset:{j*KVS}", ("a", j))
        e.lds(f"ds_read_b128 {V(VB+8*j,4)}, v{vV0} offset:{j*KVS}")
        e.lds(f"ds_read_b128 {V(VB+8*j+4,4)}, v{vV1} offset:{j*KVS}")
    e.wait(lg=("a", 0))
    e.i(f"{MF32} {V(S0,16)}, {V(KB,4)}, {V(QA,4)}, {V(NMA,16)}")
    e.nop(11)
    e.wait_all(lg=True)
    stamp(5)
    def em(t):
        if t.endswith(":"): e.raw(t)
        else: e.i(t)
    def step(cur, oth, K, Q, NM, O, V0, Op, V1p, after, noqk=False, nopv=False):
        for i in range(16):
            e.i(f"v_exp_f32 v{cur+i}, v{cur+i}")
            if i == opt.pos[0]:
                if not nopv:
                    e.i(f"{SMF} {V(Op,16)}, {V(V1p,4)}, {V(oth+8,8)}, v207")
                for t in after[0]: em(t)
            if i == opt.pos[1]:
                if not noqk:
                    e.i(f"{MF32} {V(oth,16)}, {V(K,4)}, {V(Q,4)}, {V(NM,16)}")
                for t in after[1]: em(t)
            if i == opt.pos[2]:
                e.i(f"{SMF} {V(O,16)}, {V(V0,4)}, {V(cur,8)}, v207")
                for t in after[2]: em(t)
    def shift(d):
        return [f"v_add_u32 v{v}, {hex(d & 0xffffffff)}, v{v}" for v in (vK, vV0, vV1)]
    if opt.full:
        slow = [("wq", CWQ, 2)] if opt.wqsplit else []
        SIG = lambda off: ["s_mov_b64 exec, 1", f"ds_add_u32 v6, v7 offset:{off}", "s_mov_b64 exec, -1"]
        def CHK(name, off, n):
            slow.append((name, off, n))
            return [f"v_readfirstlane_b32 s{sT0}, v5", f"s_cmp_ge_u32 s{sT0}, {n}", f"s_cbranch_scc0 L_slow_{name}", f"L_back_{name}:"]
        PRE = lambda off: [f"ds_read_b32 v5, v6 offset:{off}"]
        J0 = NE - 3
        for j in range(64):
            b3 = (j + 3) % 4
            slot = j + 3 if j < J0 else (j - J0 if j < J0 + 32 else (j - J0 - 32 if j < J0 + 47 else j - J0 - 47))
            off = slot * KVS
            rd = j + 3 < 64
            A = [[], [f"ds_read_b128 {V(KB+4*b3,4)}, v{vK} offset:{off}"] if rd else [], []]
            Bq = [[f"ds_read_b128 {V(VB+8*b3,4)}, v{vV0} offset:{off}"] if rd else [],
                  [f"ds_read_b128 {V(VB+8*b3+4,4)}, v{vV1} offset:{off}"] if rd else [],
                  [f"s_waitcnt lgkmcnt({2 if rd else 0})"] if j % 2 == 1 and j < 62 else []]
            assert J0 % 2 == 0
            if j == J0 - 1:
                A[2] += PRE(CA)
                Bq[2] += CHK("a", CA, 1) + SIG(CG) + shift(-RE)
            if j in (J0 + 7, J0 + 15, J0 + 23):
                A[2] += PRE(CA)
                Bq[2] += CHK(f"a{j}", CA, (j - J0 + 1) // 8 + 1)
            if j == J0 + 15:
                Bq[2] += SIG(CP1)
            if j == 31 and opt.stamps and not opt.lnclk:
                Bq[2] += [f"s_memrealtime {S(sSTAMP+12,2)}"] + ([] if opt.front else [f"s_memtime {S(sSTAMP+18,2)}"])
            if j == J0 + 31:
                A[2] += PRE(CL1)
                Bq[2] += CHK("l1", CL1, 4)
            if j == J0 + 45:
                A[2] += PRE(CH2)
                Bq[2] += CHK("h2", CH2, 4)
            if j == J0 + 46:
                Bq[2] += SIG(CR0) + shift(R1)
            if opt.jst and j in (1, 9, 17, 25):
                Bq[2] += [f"s_memrealtime {S(sSTAMP+2*{1:1,9:2,17:3,25:4}[j],2)}"]
            if j == 62:
                A[1] += ["s_waitcnt vmcnt(0)"]
            step(S0, S1, KB+4*(j % 4), QB, NMB, OA, VB+8*(j % 4), OB, VB+8*((j-1) % 4)+4, A, nopv=(j == 0))
            step(S1, S0, KB+4*((j+1) % 4), QA, NMA, OB, VB+8*(j % 4), OA, VB+8*(j % 4)+4, Bq, noqk=(j == 63))
    e.label("L_att_done")
    if not opt.lnclk:
        stamp(7)
        cstamp(10)
    e.i(f"v_rcp_f32 v24, v{OA+8}")
    e.i("s_nop 0")
    e.i(f"{SMF} {V(OB,16)}, {V(VB+28,4)}, {V(S1+8,8)}, v207")
    e.lg = []
    lds_signal(CAD)
    for hd, O in enumerate((OA, OB)):
        if hd == 1:
            e.i(f"v_rcp_f32 v24, v{OB+8}")
            e.nop(1)
        for r in range(8):
            e.i(f"v_mul_f32 v{O+r}, v{O+r}, v24")
        for j in range(4):
            e.i(f"v_cvt_pk_bf16_f32 v{8+4*hd+j}, v{O+2*j}, v{O+2*j+1}")
        for j in range(4):
            e.i(f"v_min_u32 v{8+4*hd+j}, -2, v{8+4*hd+j}")
        e.vmem(f"buffer_store_dwordx4 {V(8+4*hd,4)}, v{vL16}, {S(sWS,4)}, s{sOB} offen offset:{2048*hd} sc1")
    if opt.hint:
        e.c("hint for the readers (the data itself is checked against the marker)")
        e.i(f"s_lshl_b32 s{sT0}, s{sCB}, 7")
        e.i(f"s_lshl_b32 s{sT1}, s{sF}, 2")
        e.i(f"s_add_u32 s{sT0}, s{sT0}, s{sT1}")
        e.i(f"s_add_u32 s{sFLG}, s{sFLG}, 0x10000")
        e.i(f"s_add_u32 s{sT0}, s{sT0}, s{sFLG}")
        e.i("s_mov_b64 exec, 1")
        e.i(f"buffer_store_dword v206, v{vL16}, {S(sWS,4)}, s{sT0} offen sc1")
        e.i("s_mov_b64 exec, -1")
        e.i(f"v_readfirstlane_b32 s{sTAG}, v206")
        e.i(f"v_lshlrev_b32 v16, 7, v{vC}")
        e.i("v_and_b32 v17, 4, v1")
        e.i("v_add_u32 v16, v16, v17")
        e.i(f"s_and_b32 s{sT0}, s{sF}, 1")
        e.i(f"s_lshl_b32 s{sT0}, s{sT0}, 9")
        e.i(f"s_add_u32 s{sFLG}, s{sFLG}, s{sT0}")
        e.i(f"s_and_b32 s{sT0}, s{sF}, 2")
        e.i(f"s_lshl_b32 s{sT0}, s{sT0}, 2")
        e.i(f"s_add_u32 s{sFLG}, s{sFLG}, s{sT0}")
    if opt.early_poll:
        e.c("the own workgroup's line is not read: its stores are known drained through LDS (read a neighbour twice instead)")
        e.i(f"s_and_b32 s{sT0}, s{sF}, 1")
        e.i(f"s_lshl_b32 s{sT0}, s{sT0}, 2")
        e.i(f"s_sub_u32 s{sT0}, s{sCB}, s{sT0}")
        e.i(f"v_cmp_eq_u32 vcc, s{sT0}, v{vC}")
        e.i("v_xor_b32 v17, 0x80, v16")
        e.i("s_mov_b64 s[4:5], -1")
        e.i("v_cndmask_b32 v16, v16, v17, vcc")
        if opt.early_poll == 1:
            e.i(f"buffer_load_dword v17, v16, {S(sWS,4)}, s{sFLG} offen sc1")
    stamp(8, "late")
    if opt.noatt_tail:
        dump_stamps()
        e.i("s_endpgm")
    e.c("output projection: wave w -> row half w>>1, K half w&1, both column tiles (own tile first)")
    G, XR, OF = 104, 120, 40
    e.i(f"v_mov_b32 v0, v{vL16}")
    e.i("v_mov_b32 v3, v205")
    if opt.wide:
        e.i(f"v_lshl_add_u32 v3, v{vH}, 3, v3")
    e.i(f"s_and_b32 s{sT1}, s{sF}, 1")
    e.i(f"s_lshr_b32 s{sT2}, s{sF}, 1")
    e.i(f"s_lshl_b32 s{sT0}, s{sRB}, 6")
    e.i(f"s_add_u32 s{sT0}, s{sT0}, s{sT2}")
    e.i(f"s_lshl_b32 s{sT2}, s{sT1}, 5")
    e.i(f"s_add_u32 s{sT0}, s{sT0}, s{sT2}")
    e.i(f"s_lshl_b32 s{sT0}, s{sT0}, 10")
    e.i(f"s_add_u32 s{sOFF}, s{sT0}, {WS_O}")
    for g in range(4):
        e.i(f"s_add_u32 s{sCH+g}, s{sCB}, {1+g}")
        e.i(f"s_and_b32 s{sCH+g}, s{sCH+g}, 3")
        e.i(f"s_lshl_b32 s{sCH+g}, s{sCH+g}, 13")
        e.i(f"s_add_u32 s{sOA+2*g}, s{sOFF}, s{sCH+g}")
        e.i(f"s_add_u32 s{sOA+2*g+1}, s{sOA+2*g}, 4096")
    if opt.echo: stamp(9)
    lds_poll(CWO, 4, sleep=1)
    if opt.echo: stamp(10)
    def oloads(g):
        for i in range(4):
            e.i(f"buffer_load_dwordx4 {V(OF+16*g+4*i,4)}, v0, {S(sWS,4)}, s{sOA+2*g+(i>>1)} offen offset:{2048*(i&1)} sc1")
    if not opt.hint:
        for g in range(3):
            oloads(g)
    e.i(f"s_mul_i32 s{sT0}, s{sT1}, {32768+64}")
    e.i(f"v_lshl_add_u32 v2, v{vH}, 9, v{vTR}")
    e.i(f"v_xor_b32 v2, s{sT0}, v2")
    for g in range(4):
        e.i(f"v_add_u32 v{G+2*g}, s{sCH+g}, v2")
        e.i(f"v_xor_b32 v{G+2*g+1}, 64, v{G+2*g}")
    for q in range(4):
        e.i(f"v_mov_b64 {V(XR+2*q,2)}, {V(232+2*q,2)}")
    if opt.early_poll == 3:
        e.i(f"buffer_load_dword v17, v16, {S(sWS,4)}, s{sFLG} offen sc1")
    for i in range(16):
        for c2 in range(2):
            for t in range(2):
                e.lds(f"ds_read_b64_tr_b16 {V(128+8*i+4*c2+2*t,2)}, v{G+2*(i//4)+c2} offset:{(i%4)*2048+1024*t}")
    e.i(f"s_lshl_b32 s{sT2}, s{sF}, 12")
    e.i(f"s_add_u32 s{sT1}, s{sT2}, {R1}")
    e.i(f"v_add_u32 v1, s{sT1}, v0")
    e.i(f"s_xor_b32 s{sT2}, s{sT2}, 4096")
    e.i(f"s_add_u32 s{sT2}, s{sT2}, {R1}")
    e.i(f"v_add_u32 v2, s{sT2}, v0")
    e.i(f"s_and_b32 s{sT2}, s{sF}, 2")
    e.i(f"s_lshl_b32 s{sT2}, s{sT2}, 1")
    e.i(f"v_add_u32 v4, s{sT2}, v6")
    e.i(f"s_mov_b32 s{sSEG}, 0")
    e.i(f"s_mov_b32 s{sCNT}, {hex(opt.spin)}")
    if opt.early_poll:
        e.i("s_waitcnt vmcnt(0)")
        lds_signal(COD)
        lds_poll(COD, 4, sleep=0)
    else:
        lds_poll(CAD, 4, sleep=0)
    if opt.hint and opt.onep:
        e.i(f"s_cmp_lg_u32 s{sWAVE}, 0")
        e.i("s_cbranch_scc1 L_hint_other")
        e.i("v_mbcnt_lo_u32_b32 v17, -1, 0")
        e.i("v_bfe_u32 v18, v17, 2, 3")
        e.i(f"v_cmp_eq_u32 vcc, s{sCB}, v18")
        e.i("v_xor_b32 v19, 1, v18")
        e.i("v_and_b32 v17, 3, v17")
        e.i("v_cndmask_b32 v18, v18, v19, vcc")
        e.i("v_lshlrev_b32 v18, 7, v18")
        e.i("v_lshl_add_u32 v16, v17, 2, v18")
        top, done = lbl("hp"), lbl("hpd")
        spin_init()
        e.label(top)
        e.i(f"buffer_load_dword v17, v16, {S(sWS,4)}, s{sFLG} offen sc1")
        e.i("s_waitcnt vmcnt(0)")
        e.i(f"v_cmp_ne_u32 vcc, s{sTAG}, v17")
        e.i(f"s_cbranch_vccz {done}")
        spin_tail(top, done, opt.hsleep)
        e.label(done)
        lds_signal(CHN)
        e.label("L_hint_other")
        lds_poll(CHN, 1, sleep=0)
        stamp(1, "late")
        for g in range(4):
            oloads(g)
    elif opt.hint:
        top, done = lbl("hp"), lbl("hpd")
        spin_init()
        n = opt.pipe
        def chk(r):
            e.i(f"v_cmp_ne_u32 vcc, s{sTAG}, v{r}")
            if opt.early_poll:
                e.i("s_and_b64 vcc, vcc, s[4:5]")
                e.i(f"s_cbranch_scc0 {done}")
            else:
                e.i(f"s_cbranch_vccz {done}")
        if opt.early_poll in (1, 3):
            chk(17)
        for k in range(n):
            e.i(f"buffer_load_dword v{17+k}, v16, {S(sWS,4)}, s{sFLG} offen sc1")
            e.i(f"s_sleep {6 // n}")
        e.label(top)
        for k in range(n + 1):
            e.i(f"buffer_load_dword v{17+(n+k)%(n+1)}, v16, {S(sWS,4)}, s{sFLG} offen sc1")
            e.i(f"s_waitcnt vmcnt({n})")
            chk(17 + k)
        spin_tail(top, done, 0 if n else opt.hsleep)
        e.label(done)
        stamp(1, "late")
        for g in range(4):
            oloads(g)
    else:
        e.i("s_waitcnt vmcnt(12)")
        stamp(1, "late")
        oloads(3)
    e.c("o fragments: check that every dword was written; if not, re-read that group until it is, then refresh the rest")
    def ocheck(g):
        b = OF + 16 * g
        e.i(f"v_max3_u32 v5, v{b}, v{b+1}, v{b+2}")
        for k in range(3, 15, 2):
            e.i(f"v_max3_u32 v5, v5, v{b+k}, v{b+k+1}")
        e.i(f"v_max_u32 v5, v5, v{b+15}")
        e.i("v_cmp_eq_u32 vcc, -1, v5")
    for g in range(4):
        e.i(f"s_waitcnt vmcnt({12-4*g})")
        b = OF + 16 * g
        ocheck(g)
        e.i(f"s_cbranch_vccnz L_oretry_{g}")
        e.label(f"L_ogo_{g}")
        for i in range(4):
            for c2 in (1, 0):
                a = 8 + 16 * c2
                k = 4 * g + i
                e.i(f"{MF32} {V(a,16)}, {V(128+8*k+4*c2,4)}, {V(b+4*i,4)}, {'0' if k == 0 else V(a,16)}")
    stamp(2, "late")
    for t in range(8):
        e.i(f"v_lshlrev_b32 v{128+2*t}, 16, v{XR+t}")
        e.i(f"v_and_b32 v{129+2*t}, s{sMASK}, v{XR+t}")
    e.lg = []
    for q in range(4):
        e.lds(f"ds_write_b128 v1, {V(24+4*q,4)} offset:{q*1024}")
    lds_signal(CE0, va=4)
    e.i(f"s_lshl_b32 s{sT1}, s{sF}, 2")
    e.i(f"v_add_u32 v1, s{sT1}, v6")
    e.i(f"s_lshl_b32 s{sT1}, s{sF}, 14")
    e.i(f"s_add_u32 s{sT1}, s{sT1}, {RB2 + 12288}")
    e.i(f"v_add_u32 v0, s{sT1}, v0")
    lds_poll(CGD, 1, sleep=0, va=1)
    if opt.echo: stamp(4)
    e.lds("ds_read_b128 v[40:43], v0")
    e.lds("ds_read_b128 v[44:47], v0 offset:1024")
    lds_poll(CE0, 2, sleep=0, va=4)
    for q in range(4):
        e.lds(f"ds_read_b128 {V(24+4*q,4)}, v2 offset:{q*1024}", ("e", q))
    for t in range(8):
        e.i(f"v_lshlrev_b32 v{G+2*t}, 16, v{40+t}")
        e.i(f"v_and_b32 v{G+1+2*t}, s{sMASK}, v{40+t}")
    for q in range(4):
        e.wait(lg=("e", q))
        for r in range(4*q, 4*q+4):
            e.i(f"v_add_f32 v{8+r}, v{8+r}, v{24+r}")
        for r in range(4*q, 4*q+4):
            e.i(f"v_fmac_f32 v{128+r}, v{8+r}, v{G+r}")
        for j in range(2):
            e.i(f"v_cvt_pk_bf16_f32 v{XR+2*q+j}, v{128+4*q+2*j}, v{128+4*q+2*j+1}")
        if not opt.wide:
            e.vmem(f"buffer_store_dwordx2 {V(XR+2*q,2)}, v3, {S(sOUT,4)}, s{sXO} offen offset:{16*q} {opt.outf}")
        elif q % 2 == 1:
            e.nop(2)
            e.i(f"v_permlane32_swap_b32 v{XR+2*q-2}, v{XR+2*q}")
            e.i(f"v_permlane32_swap_b32 v{XR+2*q-1}, v{XR+2*q+1}")
            e.vmem(f"buffer_store_dwordx4 {V(XR+2*q-2,4)}, v3, {S(sOUT,4)}, s{sXO} offen offset:{16*(q-1)} {opt.outf}")
    if opt.stamps:
        e.wait_all(vm=True)
        stamp(3, "late")
    if opt.echo:
        a, b = opt.echo
        e.i("s_waitcnt lgkmcnt(0)")
        e.i(f"s_sub_u32 s{sT0}, s{sSTAMP+2*b}, s{sSTAMP+2*a}")
        e.i(f"s_mul_i32 s{sT0}, s{sT0}, {opt.emul}")
        e.i(f"s_min_u32 s{sT0}, s{sT0}, 10000")
        e.i(f"s_add_u32 s{sT0}, s{sT0}, s{sSTAMP+6}")
        e.label("L_echo")
        e.i("s_memrealtime s[4:5]")
        e.i("s_waitcnt lgkmcnt(0)")
        e.i(f"s_sub_u32 s{sT1}, s4, s{sT0}")
        e.i(f"s_cmp_lt_i32 s{sT1}, 0")
        e.i("s_cbranch_scc1 L_echo")
    dump_stamps()
    e.i("s_endpgm")
    for g in range(4):
        e.label(f"L_oretry_{g}")
        e.i(f"s_sub_u32 s{sCNT}, s{sCNT}, 1")
        e.i(f"s_cbranch_scc1 L_odone_{g}")
        if opt.osleep:
            e.i(f"s_sleep {opt.osleep}")
        oloads(g)
        e.i("s_waitcnt vmcnt(0)")
        ocheck(g)
        e.i(f"s_cbranch_vccnz L_oretry_{g}")
        e.label(f"L_odone_{g}")
        for g2 in range(g + 1, 4):
            oloads(g2)
        e.i(f"s_branch L_ogo_{g}")
    if opt.full:
        for name, off, n in slow:
            e.label(f"L_slow_{name}")
            lds_poll(off, n, sleep=0)
            e.i(f"s_branch L_back_{name}")

    if opt.ln2:
        e.lines += ln2_lines
    if opt.dryq:
        e.label("L_dryq")
        e.c("wave 6 runs the Q projection code once on whatever LDS holds (its signal adds 0) to warm the instruction cache")
        e.i("s_setprio 0")
        e.i("s_waitcnt lgkmcnt(0)")
        e.i("v_mov_b32 v7, 0")
        e.i("s_branch L_q")
        e.label("L_dryq_ret")
        e.i("s_waitcnt lgkmcnt(0)")
        e.i("v_mov_b32 v7, 1")
        e.i("s_branch L_ffn")
    e.label("L_fallback")
    e.i("v_mov_b32 v24, 0xff800000")
    e.i("v_mov_b32 v25, 0xff800000")
    e.i(f"s_mov_b32 s{sT1}, 0")
    e.i(f"s_mov_b32 s{sCNT}, 31")
    e.label("L_fb_loop")
    e.i(f"buffer_load_dwordx4 v[8:11], v{vL16}, {S(sWS,4)}, s{sT1} offen sc1")
    e.i(f"buffer_load_dwordx4 v[12:15], v{vL16}, {S(sWS,4)}, s{sT1} offen offset:2048 sc1")
    e.i(f"s_add_u32 s{sT1}, s{sT1}, 4096")
    e.i("s_waitcnt vmcnt(0)")
    for k in range(2):
        e.i(f"{MF32} {V(NMA,16)}, {V(8+4*k,4)}, {V(QA,4)}, 0")
        e.i(f"{MF32} {V(NMB,16)}, {V(8+4*k,4)}, {V(QB,4)}, 0")
        e.nop(12)
        for r in range(0, 16, 2):
            e.i(f"v_max3_f32 v24, v24, v{NMA+r}, v{NMA+r+1}")
        for r in range(0, 16, 2):
            e.i(f"v_max3_f32 v25, v25, v{NMB+r}, v{NMB+r+1}")
    e.i(f"s_sub_u32 s{sCNT}, s{sCNT}, 1")
    e.i("s_cbranch_scc0 L_fb_loop")
    e.i("v_mov_b32 v26, v24")
    e.i("v_mov_b32 v27, v25")
    e.nop(2)
    e.i("v_permlane32_swap_b32 v24, v26")
    e.i("v_permlane32_swap_b32 v25, v27")
    e.i("v_max_f32 v24, v24, v26")
    e.i("v_max_f32 v25, v25, v27")
    e.i("s_branch L_att_start")

    e.label("L_pre_7")
    inatt[0] = False
    e.vm = []
    e.lg = []
    e.i("s_setprio 3")
    e.i(f"s_bitcmp1_b32 s{sCB}, 0")
    e.i("v_lshlrev_b32 v40, 4, v1")
    e.i("s_waitcnt lgkmcnt(0)")
    e.i(f"s_cselect_b64 {S(sWKV,2)}, s[54:55], s[52:53]")
    e.i(f"s_cselect_b32 s{sTILE}, 0, 6")
    e.i(f"s_load_dword s{sTAG}, s[68:69], {hex(WS_EPOCH)}")
    e.i(f"s_mov_b64 {S(sX,2)}, s[48:49]")
    for i in range(4):
        e.i(f"s_mov_b32 m0, {R2 + 4096*i}")
        e.i(f"s_mov_b32 s{sT0}, {4096*i}")
        for k in range(4):
            e.vmem(f"buffer_load_dwordx4 v40, {S(sWKV,4)}, s{sT0} offen offset:{1024*k} lds", "wkv")
    e.i("s_barrier")
    setup()
    e.i("v_lshrrev_b32 v42, 4, v1")
    e.i("v_and_b32 v43, 15, v1")
    e.i(f"s_lshr_b32 s{sT0}, s{sCB}, 2")
    e.i(f"s_mul_i32 s{sT0}, s{sT0}, {XN_RH}")
    e.i(f"s_bfe_u32 s{sT1}, s{sCB}, 0x10001")
    e.i(f"s_lshl_b32 s{sT1}, s{sT1}, 8")
    e.i(f"s_add_u32 s{sT0}, s{sT0}, s{sT1}")
    e.i(f"s_add_u32 s{sT0}, s{sT0}, {R1}")
    e.i("v_mul_u32_u24 v44, 528, v42")
    e.i("v_lshl_add_u32 v44, v43, 4, v44")
    e.i(f"v_add_u32 v44, s{sT0}, v44")
    e.i("v_lshlrev_b32 v45, 8, v42")
    e.i(f"v_lshl_add_u32 v45, v{vR}, 5, v45")
    e.i(f"v_lshl_add_u32 v45, v{vC}, 3, v45")
    e.i(f"v_add_u32 v45, {R2}, v45")
    for r in range(4):
        e.i(f"v_mov_b32 v{20+r}, 0x3f803f80")
    e.i(f"s_lshl_b32 s{sT2}, s{sRB}, 1")
    e.i(f"s_lshr_b32 s{sOFF2}, s{sCB}, 2")
    e.i(f"s_add_u32 s{sT2}, s{sT2}, s{sOFF2}")
    e.i(f"s_lshl_b32 s{sT2}, s{sT2}, 11")
    e.i(f"s_add_u32 s{sT2}, s{sT2}, s{sT1}")
    e.i(f"v_lshlrev_b32 v46, 3, v{vH}")
    e.i("v_lshl_add_u32 v46, v43, 4, v46")
    e.i(f"s_lshl_b32 s{sOFF2}, s{sRB}, 7")
    e.i(f"s_lshl_b32 s{sOFF}, s{sCB}, 3")
    e.i(f"s_add_u32 s{sOFF2}, s{sOFF2}, s{sOFF}")
    e.i(f"v_mov_b32 v18, {hex(WS_KVF)}")
    e.i(f"v_lshrrev_b32 v{vW1}, 2, v1")
    e.i(f"v_lshlrev_b32 v19, 7, v{vW1}")
    e.i(f"v_lshl_add_u32 v19, v{vC}, 4, v19")
    e.i("v_lshlrev_b32 v31, 11, v1")
    e.i(f"v_mul_u32_u24 v{vW1}, 3584, v{vW1}")
    e.i(f"v_lshl_add_u32 v{vW1}, v{vC}, 4, v{vW1}")
    e.i(f"v_lshlrev_b32 v{vT0}, 6, v{vR}")
    e.i(f"v_lshl_add_u32 v{vT0}, v{vCG}, 5, v{vT0}")
    e.i(f"v_lshl_add_u32 v{vT0}, v{vC}, 3, v{vT0}")
    e.i(f"v_lshl_add_u32 v{vT0}, v{vH}, 9, v{vT0}")
    e.i(f"v_add_u32 v{vT0}, s{sRING}, v{vT0}")
    e.i("s_waitcnt lgkmcnt(0)")
    e.i(f"s_mul_i32 s{sTAG}, s{sTAG}, 0x9e3779b1")
    e.i(f"s_add_u32 s{sTAG}, s{sTAG}, 0x7f4a7c15")
    e.i(f"v_mov_b32 v16, s{sTAG}")
    e.lds(f"ds_write_b32 v6, v16 offset:{CTAG}")
    e.wait(vm="wkv")
    stamp(1, "front")
    for ks in range(16):
        e.lds(f"ds_read_b64_tr_b16 {V(128+4*ks,2)}, v45 offset:{ks*1024}")
        e.lds(f"ds_read_b64_tr_b16 {V(130+4*ks,2)}, v45 offset:{ks*1024+128}")
    lds_signal(CXN)
    e.i(f"v_add_u32 v41, {RE}, v{vSP}")
    e.i(f"s_mov_b32 exec_lo, {hex((1 << NE) - 1)}")
    e.i(f"s_mov_b32 exec_hi, {hex((1 << NE) - 1)}")
    e.lds(f"ds_write_b128 v41, {V(vSD,4)} offset:2048")
    e.i("s_mov_b64 exec, -1")
    lds_poll(CRW, 2, sleep=0)
    for ks in range(16):
        e.lds(f"ds_read_b128 {V(64+4*ks,4)}, v44 offset:{ks*2112}", ("k", ks), guard=False)
    lds_signal(CRC)
    e.i(f"s_bitcmp1_b32 s{sCB}, 0")
    e.i("s_cbranch_scc1 L_w7_v")
    lg_save = list(e.lg)
    def kvloop(isV):
        for ks in range(16):
            W, Xf = V(128+4*ks, 4), V(64+4*ks, 4)
            a, b = ("v[20:23]", W) if isV else (W, "v[20:23]")
            e.i(f"{MF16} v[12:15], {a}, {b}, {'0' if ks == 0 else 'v[12:15]'}")
            e.wait(lg=("k", ks))
            a, b = (Xf, W) if isV else (W, Xf)
            e.i(f"{MF16} v[8:11], {a}, {b}, {'0' if ks == 0 else 'v[8:11]'}")
    kvloop(False)
    stamp(8, "front")
    e.i(f"v_lshl_add_u32 v46, v{vCG}, 9, v46")
    e.i("v_lshl_add_u32 v47, v43, 2, v6")
    lds_poll(CST, 2, sleep=0)
    e.i(f"ds_read2_b32 v[24:25], v47 offset0:{STAT//4} offset1:{STAT//4+16}")
    e.wait_all(lg=True)
    for r in range(4):
        e.i(f"v_fmac_f32 v{8+r}, v24, v{12+r}")
    for r in range(4):
        e.i(f"v_mul_f32 v{8+r}, v25, v{8+r}")
    e.i("v_cvt_pk_bf16_f32 v12, v8, v9")
    e.i("v_cvt_pk_bf16_f32 v13, v10, v11")
    e.i(f"buffer_store_dwordx2 v[12:13], v46, {S(sWS,4)}, s{sT2} offen sc1")
    e.i("v_mul_f32 v17, v8, v8")
    for r in range(1, 4):
        e.i(f"v_fmac_f32 v17, v{8+r}, v{8+r}")
    e.i("v_mov_b32 v15, v17")
    e.nop(2)
    e.i("v_permlane32_swap_b32 v17, v15")
    e.i("v_add_f32 v17, v17, v15")
    e.i("v_mov_b32 v15, v17")
    e.nop(2)
    e.i("v_permlane16_swap_b32 v17, v15")
    e.i("v_add_f32 v17, v17, v15")
    for m in ("row_ror:1", "row_ror:2", "row_ror:4", "row_ror:8"):
        e.nop(2)
        e.i(f"v_max_u32_dpp v17, v17, v17 {m} row_mask:0xf bank_mask:0xf")
    e.i("s_branch L_w7_pub")
    e.label("L_w7_v")
    e.lg = lg_save
    kvloop(True)
    stamp(8, "front")
    e.i(f"v_lshlrev_b32 v46, 4, v43")
    e.i(f"v_lshl_add_u32 v46, v{vH}, 8, v46")
    e.i(f"v_lshl_add_u32 v46, v{vCG}, 3, v46")
    e.i(f"s_add_u32 s{sT2}, s{sT2}, s{sT1}")
    e.i(f"s_add_u32 s{sT2}, s{sT2}, 1024")
    e.i("v_lshl_add_u32 v47, v42, 4, v6")
    lds_poll(CST, 2, sleep=0)
    e.i(f"ds_read_b128 v[24:27], v47 offset:{STAT}")
    e.i(f"ds_read_b128 v[32:35], v47 offset:{STAT+64}")
    e.wait_all(lg=True)
    for r in range(4):
        e.i(f"v_fmac_f32 v{8+r}, v{24+r}, v{12+r}")
    for r in range(4):
        e.i(f"v_mul_f32 v{8+r}, v{32+r}, v{8+r}")
    e.i("v_cvt_pk_bf16_f32 v12, v8, v9")
    e.i("v_cvt_pk_bf16_f32 v13, v10, v11")
    e.i(f"buffer_store_dwordx2 v[12:13], v46, {S(sWS,4)}, s{sT2} offen sc1")
    e.i("v_mov_b32 v17, 0")
    e.label("L_w7_pub")
    stamp(2)
    e.i("s_mov_b64 exec, 1")
    e.wait_all(vm=True)
    e.i(f"buffer_store_dwordx2 v[16:17], v18, {S(sWS,4)}, s{sOFF2} offen sc1")
    e.i("s_mov_b64 exec, -1")
    stamp(9)
    e.c("wait for all 256 K/V producers, pass max |k|^2 on through LDS")
    top, done = lbl("kv"), lbl("kvd")
    e.i(f"s_mov_b32 s{sT1}, {hex(WS_KVF)}")
    e.i(f"s_bfe_u32 s{sT2}, s2, 0x40003")
    e.i(f"s_lshl_b32 s{sT2}, s{sT2}, 7")
    if opt.touch == 3:
        e.c("touch 1/8 of the w1 slice -> L2; the first poll queues behind it")
        if opt.twait == 1:
            lds_poll(CWQ, 1, sleep=1)
        if opt.twait == 2:
            lds_poll(CWI, 1, sleep=1)
        touch_setup(sOFF)
        touches(sOFF, 0, opt.ntouch)
    if opt.kvdelay:
        e.i(f"s_sleep {opt.kvdelay}")
    spin_init()
    e.label(top)
    e.i(f"buffer_load_dwordx4 v[32:35], v19, {S(sWS,4)}, s{sT1} offen sc1")
    e.i(f"buffer_load_dwordx4 v[36:39], v19, {S(sWS,4)}, s{sT1} offen offset:2048 sc1")
    e.wait_all(vm=True)
    if opt.fstart == 3:
        lds_signal(CTL)
    e.i("v_xor_b32 v32, v16, v32")
    e.i("v_xor_b32 v34, v16, v34")
    e.i("v_xor_b32 v36, v16, v36")
    e.i("v_xor_b32 v38, v16, v38")
    e.i("v_or3_b32 v32, v32, v34, v36")
    e.i("v_or_b32 v32, v32, v38")
    e.i("v_cmp_ne_u32 vcc, 0, v32")
    e.i("v_max_u32 v30, v33, v37")
    e.i(f"s_cbranch_vccz {done}")
    spin_tail(top, done, opt.kvsleep)
    e.label(done)
    lds_signal(CKV)
    e.c("blocks 0..6 -> early slots in R2")
    e.i(f"s_mov_b32 s{sOFF2}, 0")
    e.i(f"s_mov_b32 s{sT1}, {RE}")
    kv_dma(NE, sOFF2, sT1, 1, 1)
    if opt.kvtouch:
        e.c("touch 64 of the 1024 K/V lines -> L2 (the workgroups of an XCD cover all of them)")
        e.i(f"buffer_load_dword v106, v31, {S(sWS,4)}, s{sT2} offen sc1")
    for m in ("row_ror:1", "row_ror:2", "row_ror:4", "row_ror:8"):
        e.nop(2)
        e.i(f"v_max_u32_dpp v30, v30, v30 {m} row_mask:0xf bank_mask:0xf")
    e.i("v_mov_b32 v29, v30")
    e.nop(2)
    e.i("v_permlane16_swap_b32 v29, v30")
    e.i("v_max_u32 v30, v29, v30")
    e.i("v_mov_b32 v29, v30")
    e.nop(2)
    e.i("v_permlane32_swap_b32 v29, v30")
    e.i("v_max_u32 v30, v29, v30")
    e.lds(f"ds_write_b32 v6, v30 offset:{CKM}")
    lds_signal(CKV)
    stamp(4, "front")
    e.c("blocks 5..36 -> slots 0..31")
    e.i(f"s_mov_b32 s{sT1}, 0")
    lds_poll(CQ, 4, sleep=0)
    e.vm = []
    e.lds(f"ds_write_b128 v{vSP}, {V(vSD,4)} offset:2048")
    kv_dma(8, sOFF2, sT1, 1, 1)
    e.i(f"s_waitcnt vmcnt({17 if opt.kvtouch else 16})")
    lds_signal(CE7)
    e.i("s_waitcnt vmcnt(0)")
    lds_signal(CA)
    kv_dma(8, sOFF2, sT1, 1, 1)
    for st in range(2):
        kv_dma(8, sOFF2, sT1, 1, 1)
        e.i("s_waitcnt vmcnt(16)")
        e.vm = []
        lds_signal(CA)
    e.i("s_waitcnt vmcnt(0)")
    lds_signal(CA)
    lds_poll(CG, 4, sleep=1)
    e.c("workgroup 0 renews the epoch word: every producer has read it by now")
    e.i("s_cmp_lg_u32 s2, 0")
    e.i("s_cbranch_scc1 L_ffn")
    e.i(f"v_mov_b32 v29, {hex(WS_EPOCH)}")
    e.i("s_mov_b64 exec, 1")
    e.i(f"buffer_store_dword v16, v29, {S(sWS,4)}, 0 offen sc1")
    e.i("s_mov_b64 exec, -1")

    ACC = 8
    NR = opt.NR
    AF, BF = 72, 88
    e.label("L_ffn")
    e.vm = []
    e.lg = []
    e.i("s_setprio 3")
    e.i(f"s_mul_i32 s{sOFF}, s{sCB}, 448")
    e.i(f"s_lshl_b32 s{sT1}, s{sTILE}, 6")
    e.i(f"s_add_u32 s{sOFF}, s{sOFF}, s{sT1}")
    e.c("k order is rotated by 4*(rb&7) steps: the 8 workgroups of an XCD that share this w1 slice take turns missing")
    e.i(f"s_add_u32 s{sE1}, s{sOFF}, {512*3584}")
    e.i(f"s_and_b32 s{sT1}, s{sRB}, {7 if opt.rot & 2 else 0}")
    e.i(f"s_mul_i32 s{sT0}, s{sT1}, {64*3584}")
    e.i(f"s_add_u32 s{sOFF}, s{sOFF}, s{sT0}")
    for g in range(8):
        e.i(f"s_add_u32 s{sT0}, s{sT1}, {g}")
        e.i(f"s_and_b32 s{sT0}, s{sT0}, 7")
        e.i(f"s_mul_i32 s{sT0}, s{sT0}, {4*1056}")
        e.i(f"v_add_u32 v{232+2*g}, s{sT0}, v{vXN0}")
        e.i(f"v_add_u32 v{233+2*g}, s{sT0}, v{vXN1}")
    e.i(f"s_mul_i32 s{sW2T}, s{sF}, {448*1024}")
    e.i(f"s_lshl_b32 s{sT0}, s{sCB}, 7")
    e.i(f"s_add_u32 s{sW2T}, s{sW2T}, s{sT0}")
    e.i(f"s_and_b32 s{sT0}, s{sRB}, 7")
    e.i(f"s_min_u32 s{sT0}, s{sT0}, 6")
    e.i(f"s_lshl_b32 s{sT0}, s{sT0}, 16")
    e.i(f"s_add_u32 s{sW2T}, s{sW2T}, s{sT0}")
    e.i(f"v_lshrrev_b32 v{vTCH}, 2, v1")
    e.i(f"v_lshlrev_b32 v{vTCH}, 10, v{vTCH}")
    e.i(f"v_lshl_add_u32 v{vTCH}, v{vC}, 8, v{vTCH}")
    if opt.epre:
        e.i(f"s_cmp_eq_u32 s{sWAVE}, 7")
        e.i("s_cbranch_scc1 L_no_epre")
        lds_poll(CRC, 1, sleep=1)
        if opt.epre == 2:
            lds_poll(CWI, 1, sleep=1)
        for ks in range(3):
            for a in range(2):
                e.i(f"s_add_u32 m0, s{sRING}, {ks * 2048 + a * 1024}")
                e.i("s_nop 0")
                e.i(f"buffer_load_dwordx4 v{vW1}, {S(sW1,4)}, s{sOFF} offen lds")
                e.i(f"s_add_u32 s{sOFF}, s{sOFF}, {8*3584}")
        e.c("touch the lines of the fourth step as well")
        e.i("v_mul_u32_u24 v125, 3584, v1")
        e.i("s_mov_b64 exec, 0xffff")
        e.i(f"buffer_load_dword v124, v125, {S(sW1,4)}, s{sOFF} offen")
        e.i("s_mov_b64 exec, -1")
        e.label("L_no_epre")
    lds_poll(CXN, 9, sleep=1)
    e.i(f"ds_read_b32 v4, v6 offset:{CTAG}")
    e.i("v_mov_b64 v[208:209], -1")
    e.i("v_mov_b64 v[210:211], -1")
    if opt.fgo == 2:
        lds_poll(CKV, 1, sleep=1)
    if opt.fgo == 3:
        lds_poll(CE7, 1, sleep=1)
    e.wait_all(lg=True)
    e.i(f"v_readfirstlane_b32 s{sTAG}, v4")
    e.i(f"s_setprio {opt.fprio1}")
    stamp(2, "late")
    e.i(f"s_cmp_eq_u32 s{sWAVE}, 7")
    e.i("s_cbranch_scc1 L_ffn1_w7")

    def paced(n):
        if n == 0:
            e.wait_all(lg=True)
        elif len(e.lg) > n:
            e.i(f"s_waitcnt lgkmcnt({n})")
            del e.lg[: len(e.lg) - n]
    def bread(ks, rh):
        e.lds(f"ds_read_b128 {V(BF+8*(ks%2)+4*rh,4)}, v{232+2*(ks//4)+rh} offset:{(ks%4)*1056}", ("f", ks))
    def wrap1():
        e.i(f"s_cmp_ge_u32 s{sOFF}, s{sE1}")
        e.i(f"s_cselect_b32 s{sT0}, {512*3584}, 0")
        e.i(f"s_sub_u32 s{sOFF}, s{sOFF}, s{sT0}")
    def w2_touch():
        if opt.warm2:
            e.c("touch 1/7 of this wave's w2 slice (8 workgroups of an XCD share it) -> L2")
            e.vmem(f"buffer_load_dword v124, v{vTCH}, {S(sW2,4)}, s{sW2T} offen")
    def marker(hd):
        e.vmem(f"buffer_store_dwordx4 v[208:211], v{vL16}, {S(sWS,4)}, s{sOB} offen offset:{2048*hd} sc1", "clr")
    def e1():
        e.c("waves 4..6: blocks 37..51 -> slots 0..14 once attention has read them")
        lds_poll(CP1, 4, sleep=2)
        e.i(f"s_lshl_b32 s{sU0}, s{sF}, 11")
        e.i(f"s_add_u32 s{sU0}, s{sU0}, {(NE+32)*2048}")
        e.i(f"s_mul_i32 s{sU1}, s{sF}, {KVS}")
        kv_dma(5, sU0, sU1, 3, 3)
    def h_store(tiles):
        lds_signal(CX)
        stamp(3)
        e.i("s_setprio 3")
        e.i(f"s_mul_i32 s{sT0}, s{sRB}, 112")
        e.i(f"s_mul_i32 s{sT1}, s{sCB}, 14")
        e.i(f"s_add_u32 s{sT0}, s{sT0}, s{sT1}")
        e.i(f"s_lshl_b32 s{sT1}, s{sTILE}, 1")
        e.i(f"s_add_u32 s{sT0}, s{sT0}, s{sT1}")
        e.i(f"s_lshl_b32 s{sT0}, s{sT0}, 11")
        e.i(f"s_add_u32 s{sOFF}, s{sT0}, {WS_H}")
        e.i(f"s_add_u32 s{sOFF2}, s{sOFF}, 4096")
        if len(tiles) == 2 and opt.e1pos == 0:
            e1()
        e.c("mark the o fragments of attention wave f as not yet written")
        if not opt.mkearly:
            marker(0); marker(1)
        for ct in tiles:
            for rh in range(2):
                a = ACC + 16 * (rh * 2 + ct)
                for j in range(8):
                    e.i(f"v_cvt_pk_bf16_f32 v{a+j}, v{a+2*j}, v{a+2*j+1}")
                for j in range(8):
                    e.i(f"v_pk_max_i16 v{a+j}, v{a+j}, 0")
                for s in range(2):
                    e.vmem(f"buffer_store_dwordx4 {V(a+4*s,4)}, v{vL16}, {S(sWS,4)}, s{sOFF2 if ct else sOFF} offen offset:{(2*s+rh)*1024} sc1", "hst")
    def ring_dma(ks, srd, v, step):
        for a in range(2):
            e.i(f"s_add_u32 m0, s{sRING}, {(ks % NR) * 2048 + a * 1024}")
            e.i("s_nop 0")
            e.vmem(f"buffer_load_dwordx4 v{v}, {S(srd,4)}, s{sOFF} offen lds", ("w", ks))
            e.i(f"s_add_u32 s{sOFF}, s{sOFF}, {step}")
    def tr2(ks, i, tstride):
        ct, t = i >> 1, i & 1
        e.lds(f"ds_read_b64_tr_b16 {V(AF+8*(ks%2)+4*ct+2*t,2)}, v{vT1 if ct else vT0} offset:{(ks%NR)*2048+tstride*t}", ("f", ks))

    e.c("FFN1, waves 4..6: two column tiles x two row halves")
    if opt.fp_n:
        e.i(f"s_setprio {opt.fp_early}")
    A3, B3 = 72, 96
    LA = 1 if opt.la1 else 2
    def dma1(ks, a):
        e.i(f"s_add_u32 m0, s{sRING}, {(ks % 3) * 2048 + a * 1024}")
        e.i("s_nop 0")
        e.vmem(f"buffer_load_dwordx4 v{vW1}, {S(sW1,4)}, s{sOFF} offen lds", ("w", ks))
        e.i(f"s_add_u32 s{sOFF}, s{sOFF}, {8*3584}")
        if a == 1 and ks % 4 == 3:
            wrap1()
    def br3(ks, rh):
        e.lds(f"ds_read_b128 {V(B3+8*(ks%3)+4*rh,4)}, v{232+2*(ks//4)+rh} offset:{(ks%4)*1056}", ("f", ks))
    def tr3(ks, i):
        ct, t = i >> 1, i & 1
        e.lds(f"ds_read_b64_tr_b16 {V(A3+8*(ks%3)+4*ct+2*t,2)}, v{vT1 if ct else vT0} offset:{(ks%3)*2048+512*t}", ("f", ks))
    if opt.epre:
        e.vm = [("w", ks) for ks in range(3) for _ in range(2)] + ["t"]
    else:
        for ks in range(3):
            dma1(ks, 0); dma1(ks, 1)
    for ks in range(LA):
        br3(ks, 0); br3(ks, 1)
        e.wait(vm=("w", ks))
        for i in range(4):
            tr3(ks, i)
    for ks in range(32):
        s = ks % 3
        e.wait(lg=("f", ks))
        n = ks + LA
        dense = ks < opt.dense
        for i in range(4):
            rh, ct = i >> 1, i & 1
            a = ACC + 16 * i
            e.i(f"{MF32} {V(a,16)}, {V(A3+8*s+4*ct,4)}, {V(B3+8*s+4*rh,4)}, {'0' if ks == 0 else V(a,16)}")
            if i == 0 and ks + 3 < 32:
                dma1(ks + 3, 0)
                dma1(ks + 3, 1)
            if n < 32:
                if i == 0:
                    br3(n, 0); br3(n, 1)
                if i == 1:
                    e.wait(vm=("w", n))
                if dense:
                    if i in (1, 2):
                        tr3(n, 2 * i - 2); tr3(n, 2 * i - 1)
                else:
                    if i == 1:
                        tr3(n, 0); tr3(n, 1)
                    if i >= 2:
                        tr3(n, i)
                    paced(opt.pace1)
        if opt.mkearly and ks in (14, 20):
            marker(ks // 20)
        if opt.mid2 and ks in (0, 4, 8, 12):
            stamp({0: 1, 4: 8, 8: 9, 12: 4}[ks])
        if opt.fp_n and ks == opt.fp_n:
            e.i(f"s_setprio {opt.fprio1}")
        if opt.mid and ks in (0, 4, 8, 12, 16, 20):
            stamp(4 + ks // 4)
    if opt.mid:
        lds_signal(CX)
        stamp(3)
        dump_stamps()
        e.i("s_endpgm")
    h_store([0, 1])
    if opt.e1pos == 1:
        e1()
    e.i("s_branch L_ffn_join")

    e.label("L_ffn1_w7")
    e.vm = []
    e.lg = []
    e.c("FFN1, wave 7: one column tile")
    def dma7(ks):
        e.i(f"s_add_u32 m0, s{sRING}, {(ks % 8) * 1024}")
        e.i("s_nop 0")
        e.vmem(f"buffer_load_dwordx4 v{vW1}, {S(sW1,4)}, s{sOFF} offen lds", ("w", ks))
        e.i(f"s_add_u32 s{sOFF}, s{sOFF}, {16*3584}")
        if ks % 4 == 3:
            wrap1()
    def tr7(ks, t):
        e.lds(f"ds_read_b64_tr_b16 {V(AF+8*(ks%2)+2*t,2)}, v{vT0} offset:{(ks%8)*1024+256*t}", ("f", ks))
    if opt.t7:
        e.i(f"s_lshr_b32 s{sT1}, s2, 3")
        e.i(f"s_and_b32 s{sT2}, s{sCB}, 1")
        e.i(f"s_lshl_b32 s{sT2}, s{sT2}, 7")
        e.i(f"s_mul_i32 s{sU0}, s{sT1}, {56*1024}")
        e.i(f"s_add_u32 s{sU0}, s{sU0}, s{sT2}")
        for i in range(4):
            e.i(f"buffer_load_dword v124, v{vTCH}, {S(sW2,4)}, s{sU0} offen")
            e.i(f"s_add_u32 s{sU0}, s{sU0}, {14*1024}")
    e.i(f"s_setprio {opt.p7}")
    for ks in range(8):
        dma7(ks)
    bread(0, 0); bread(0, 1)
    e.wait(vm=("w", 0))
    tr7(0, 0); tr7(0, 1)
    for ks in range(32):
        s = ks % 2
        e.wait(lg=("f", ks))
        if ks + 8 < 32:
            dma7(ks + 8)
        if ks + 1 < 32:
            e.wait(vm=("w", ks + 1))
        for rh in range(2):
            a = ACC + 32 * rh
            e.i(f"{MF32} {V(a,16)}, {V(AF+8*s,4)}, {V(BF+8*s+4*rh,4)}, {'0' if ks == 0 else V(a,16)}")
            if ks + 1 < 32:
                bread(ks + 1, rh)
                tr7(ks + 1, rh)
                if rh == 0 and ks >= opt.dense:
                    paced(opt.pace1)
        if opt.mkearly and ks in (14, 20):
            marker(ks // 20)
    h_store([0])

    e.label("L_ffn_join")
    e.i(f"s_lshl_b32 s{sT2}, s{sCB}, 7")
    e.i(f"s_lshl_b32 s{sT1}, s{sF}, 2")
    e.i(f"s_add_u32 s{sT2}, s{sT2}, s{sT1}")
    e.i(f"s_add_u32 s{sT2}, s{sT2}, s{sFLG}")
    e.i("v_mov_b32 v72, 0")
    e.i(f"v_mov_b32 v73, s{sTAG}")
    e.i(f"v_add_u32 v{vSP}, {R1}, v{vSP}")
    e.i(f"s_lshl_b32 s{sRING}, s{sF}, 14")
    e.i(f"s_add_u32 s{sRING}, s{sRING}, {RB2}")
    e.i(f"v_lshl_add_u32 v{vTR}, v{vH}, 9, v{vTR}")
    e.c("accumulator i holds output tile i ^ f, so that accumulator 0 is this wave's own tile")
    e.i(f"s_and_b32 s{sT1}, s{sF}, 1")
    e.i(f"s_lshl_b32 s{sT1}, s{sT1}, 6")
    e.i(f"v_xor_b32 v{vT0}, s{sT1}, v{vTR}")
    e.i(f"v_add_u32 v{vT0}, s{sRING}, v{vT0}")
    e.i(f"v_xor_b32 v{vT1}, 64, v{vT0}")
    e.i(f"s_lshr_b32 s{sT1}, s{sF}, 1")
    e.i(f"s_lshl_b32 s{sT1}, s{sT1}, 10")
    e.i(f"v_add_u32 v0, s{sT1}, v{vL16}")
    e.i("v_xor_b32 v2, 0x400, v0")
    e.i("v_bfe_u32 v122, v1, 2, 3")
    e.i("v_lshlrev_b32 v122, 7, v122")
    e.i(f"v_lshl_add_u32 v122, v{vC}, 2, v122")
    e.i("v_lshlrev_b32 v123, 9, v1")
    e.i(f"s_mov_b32 s{sW2T}, s{sT2}")
    def flag_out():
        e.i("s_mov_b64 exec, 1")
        e.vmem(f"buffer_store_dword v73, v72, {S(sWS,4)}, s{sW2T} offen sc1")
        e.i("s_mov_b64 exec, -1")
        lds_signal(CL1)
        stamp(4, "late")
    if not opt.prefirst:
        e.wait_all(vm=True)
        flag_out()
    e.i(f"s_mul_i32 s{sOFF}, s{sF}, {448*1024}")
    e.i(f"s_lshl_b32 s{sT0}, s{sCB}, 7")
    e.i(f"s_add_u32 s{sOFF}, s{sOFF}, s{sT0}")
    e.i(f"s_mov_b32 s{sE1}, s{sOFF}")
    e.i(f"s_cmp_eq_u32 s{sWAVE}, 7")
    e.i("s_cbranch_scc1 L_no_e1")
    e.c("touch 1/32 of the w2 / wo lines this XCD needs -> L2 (waves 4,5: w2, wave 6: wo)")
    e.i(f"s_lshr_b32 s{sT1}, s2, 3")
    e.i(f"s_and_b32 s{sT2}, s{sCB}, 1")
    e.i(f"s_lshl_b32 s{sT2}, s{sT2}, 7")
    e.i(f"s_cmp_eq_u32 s{sWAVE}, 6")
    e.i("s_cbranch_scc1 L_t_wo")
    e.i(f"s_lshl_b32 s{sT1}, s{sT1}, 1")
    e.i(f"s_add_u32 s{sT1}, s{sT1}, s{sF}")
    e.i(f"s_mul_i32 s{sT1}, s{sT1}, {28*1024}")
    e.i(f"s_add_u32 s{sT1}, s{sT1}, s{sT2}")
    if not opt.t7:
        e.i(f"buffer_load_dword v124, v{vTCH}, {S(sW2,4)}, s{sT1} offen")
        e.i(f"s_add_u32 s{sT1}, s{sT1}, {12*1024}")
        e.i(f"buffer_load_dword v124, v{vTCH}, {S(sW2,4)}, s{sT1} offen")
    e.i("s_branch L_no_e1")
    e.label("L_t_wo")
    e.i(f"s_lshl_b32 s{sT1}, s{sT1}, 14")
    e.i(f"s_add_u32 s{sT1}, s{sT1}, s{sT2}")
    e.i(f"buffer_load_dword v124, v{vTCH}, {S(sWO,4)}, s{sT1} offen")
    e.label("L_no_e1")
    e.c("blocks 51..63 -> R1 once xn is dead")
    lds_poll(CX, 4, sleep=4)
    e.i(f"s_lshl_b32 s{sOFF2}, s{sF}, 11")
    e.i(f"s_add_u32 s{sOFF2}, s{sOFF2}, {(NE+47)*2048}")
    e.i(f"s_mul_i32 s{sT1}, s{sF}, {KVS}")
    e.i(f"s_add_u32 s{sT1}, s{sT1}, {R1}")
    e.vm = []
    kv_dma(3, sOFF2, sT1, 4, 4)
    e.i("s_mov_b32 exec_lo, 0xfff")
    e.i("s_mov_b32 exec_hi, 0xfff")
    e.lds(f"ds_write_b128 v{vSP}, {V(vSD,4)} offset:2048")
    e.i("s_mov_b64 exec, -1")
    stamp(5)
    if opt.exit_at == 5:
        e.wait_all(vm=True)
        lds_signal(CH2)
    exit_if(5)
    e.i(f"s_lshr_b32 s{sT2}, s{sCB}, 1")
    for c in range(4):
        e.i(f"s_xor_b32 s{sCH+c}, s{sT2}, {c}")
        e.i(f"s_mul_i32 s{sCH+c}, s{sCH+c}, {7*2048}")
    e.i(f"s_mul_i32 s{sT0}, s{sRB}, 112")
    e.i(f"s_mul_i32 s{sT1}, s{sF}, 28")
    e.i(f"s_add_u32 s{sT0}, s{sT0}, s{sT1}")
    e.i(f"s_lshl_b32 s{sT0}, s{sT0}, 11")
    e.i(f"s_add_u32 s{sE2}, s{sT0}, {WS_H}")
    e.i(f"s_lshl_b32 s{sT0}, s{sF}, 3")
    e.i(f"s_and_b32 s{sT1}, s{sCB}, 4")
    e.i(f"s_add_u32 s{sT1}, s{sT1}, s{sT0}")
    e.i(f"s_lshl_b32 s4, 15, s{sT1}")
    e.i(f"s_lshl_b32 s5, 0xff, s{sT0}")
    def set_w(c):
        e.i(f"s_lshl_b32 s{sOFF}, s{sCH+c}, 3")
        e.i(f"s_add_u32 s{sOFF}, s{sOFF}, s{sE1}")
    def set_h(c):
        e.i(f"s_add_u32 s{sOFF2}, s{sCH+c}, s{sE2}")
    set_w(0)
    set_h(0)
    PH = opt.ph
    def wo_dma():
        e.c("wo slice -> R0 by DMA once attention has left it")
        e.i("s_setprio 3")
        lds_poll(CR0, 4, sleep=8)
        e.i(f"s_lshl_b32 s{sU0}, s{sF}, 17")
        e.i(f"s_lshl_b32 s{sU1}, s{sCB}, 7")
        e.i(f"s_add_u32 s{sU0}, s{sU0}, s{sU1}")
        e.i(f"s_lshl_b32 s{sU1}, s{sF}, 14")
        e.i(f"s_lshl_b32 s{sT1}, s{sRB}, {11 if opt.rot & 8 else 14}")
        for i in range(16):
            e.i(f"s_and_b32 s{sT1}, s{sT1}, 0x3fff")
            e.i(f"s_add_u32 m0, s{sU1}, s{sT1}")
            e.i(f"s_lshl_b32 s{sT0}, s{sT1}, 3")
            e.i(f"s_add_u32 s{sT0}, s{sT0}, s{sU0}")
            e.vmem(f"buffer_load_dwordx4 v{vSW}, {S(sWO,4)}, s{sT0} offen lds", "wo")
            e.i(f"s_add_u32 s{sT1}, s{sT1}, 1024")
    HR = [96, 104, 112, 232, 240, 248, 192, 200][:PH]
    NP = opt.npre
    def dma2(ks, a):
        e.i(f"s_add_u32 m0, s{sRING}, {(ks % 8) * 2048 + a * 1024}")
        e.i("s_nop 0")
        e.vmem(f"buffer_load_dwordx4 v{vSW}, {S(sW2,4)}, s{sOFF} offen lds", ("w", ks))
        e.i(f"s_add_u32 s{sOFF}, s{sOFF}, 8192")
        if a == 1 and ks % 7 == 6 and ks < 27:
            set_w(ks // 7 + 1)
    def hl2(ks, rh):
        r = HR[ks % PH] + 4 * rh
        e.vmem(f"buffer_load_dwordx4 {V(r,4)}, v{2 if rh else 0}, {S(sWS,4)}, s{sOFF2} offen sc1", ("h", ks))
        if rh:
            e.i(f"s_add_u32 s{sOFF2}, s{sOFF2}, 2048")
            if ks % 7 == 6 and ks < 27:
                set_h(ks // 7 + 1)
    def areg(ks):
        return 128 + 8 * ks if ks < NP else A3 + 8 * (ks % 3)
    def t32(ks, i):
        ct, t = i >> 1, i & 1
        e.lds(f"ds_read_b64_tr_b16 {V(areg(ks)+4*ct+2*t,2)}, v{vT1 if ct else vT0} offset:{(ks%8)*2048+1024*t}", ("f", ks))
    e.c("while h is in flight: w2 stages -> ring -> fragments in registers, ring refilled")
    for ks in range(8):
        dma2(ks, 0); dma2(ks, 1)
    if opt.prefirst:
        e.i(f"s_waitcnt vmcnt({len(e.vm) + opt.pslack})")
        flag_out()
    e.wait(vm=("kv", 2))
    lds_signal(CH2)
    for ks in range(max(NP, 2)):
        e.wait(vm=("w", ks))
        for i in range(4):
            t32(ks, i)
        if 1 <= ks <= NP:
            e.wait(lg=("f", ks - 1))
            dma2(ks + 7, 0); dma2(ks + 7, 1)
    if NP >= 2:
        e.wait(lg=("f", NP - 1))
        dma2(NP + 7, 0); dma2(NP + 7, 1)
    stamp(9, "late")
    top, done = lbl("fp"), lbl("fpd")
    spin_init()
    e.label(top)
    e.i(f"buffer_load_dword v124, v122, {S(sWS,4)}, s{sFLG} offen sc1")
    e.wait_all(vm=True)
    e.i(f"v_cmp_ne_u32 vcc, s{sTAG}, v124")
    e.i(f"s_and_b32 s{sT0}, vcc_lo, s4")
    e.i(f"s_cbranch_scc0 {done}")
    spin_tail(top, done, 4)
    e.label(done)
    stamp(6)
    e.i(f"s_setprio {opt.fprio}")
    for ks in range(PH - 1):
        hl2(ks, 0); hl2(ks, 1)
    for ks in range(28):
        if ks == 12 - PH:
            e.vmem(f"buffer_load_dword v124, v122, {S(sWS,4)}, s{sFLG} offen sc1", "fl")
        if ks == 15 - PH:
            e.c("the second producer must have published before its half is read")
            e.wait(vm="fl")
            e.i("s_setprio 3")
            e.i(f"v_cmp_ne_u32 vcc, s{sTAG}, v124")
            e.i(f"s_and_b32 s{sT0}, vcc_lo, s5")
            e.i("s_cbranch_scc1 L_slow_h")
            e.label("L_back_h")
            e.i(f"s_setprio {opt.fprio}")
        if ks == opt.hold:
            e.c("the operands of the last steps are on chip: run them after attention, under the o hand-off")
            e.i("s_setprio 3")
            e.wait_all(vm=True)
            if opt.wo_at + 3 >= opt.hold:
                lds_signal(CWO)
            lds_poll(CAD, 4, sleep=2)
        e.wait(lg=("f", ks), vm=("h", ks))
        e.wait(vm=("w", ks + 2))
        for i in range(4):
            rh, ct = i >> 1, i & 1
            a = ACC + 16 * i
            e.i(f"{MF32} {V(a,16)}, {V(areg(ks)+4*ct,4)}, {V(HR[ks%PH]+4*rh,4)}, {'0' if ks == 0 else V(a,16)}")
            if ct == 0:
                if ks >= NP and ks + 8 < 28:
                    dma2(ks + 8, rh)
            elif ks + PH - 1 < 28:
                hl2(ks + PH - 1, rh)
            if max(NP, 2) <= ks + 2 < 28:
                t32(ks + 2, i)
                if opt.dense2 <= ks < min(opt.late2, opt.hold):
                    paced(opt.pace2)
        if ks == opt.wo_at:
            wo_dma()
            e.i(f"s_setprio {opt.fprio}")
        if ks == min(opt.wo_at + 3, 27) and opt.wo_at + 3 < opt.hold:
            e.wait(vm="wo")
            lds_signal(CWO)
    stamp(7)
    exit_if(7)
    e.i("s_setprio 3")
    if opt.wo_at >= 28:
        wo_dma()
    e.c("f partials: accumulators 1..3 -> own ring; wave f^i picks up accumulator i")
    e.i(f"v_add_u32 v72, s{sRING}, v{vL16}")
    for i in (1, 2, 3):
        e.i(f"s_xor_b32 s{sT0}, s{sF}, {i}")
        e.i(f"s_lshl_b32 s{sT0}, s{sT0}, 14")
        e.i(f"s_add_u32 s{sT0}, s{sT0}, {RB2 + (i-1)*4096}")
        e.i(f"v_add_u32 v{73+i}, s{sT0}, v{vL16}")
    e.i("v_add_u32 v77, 0x3000, v72")
    e.i(f"s_lshl_b32 s{sT0}, s{sF}, 2")
    e.i(f"v_add_u32 v78, s{sT0}, v6")
    e.i(f"s_mov_b32 s{sT1}, {hex(f32bits(-math.log2(math.e)))}")
    e.i(f"s_setprio {opt.fprio}")
    for i in (1, 2, 3):
        for q in range(4):
            e.lds(f"ds_write_b128 v72, {V(ACC+16*i+4*q,4)} offset:{(i-1)*4096+q*1024}")
    lds_signal(CF)
    e.i("s_setprio 3")
    stamp(8, "late")
    lds_poll(CF, 4, sleep=2)
    for i in (1, 2, 3):
        for q in range(4):
            e.lds(f"ds_read_b128 {V(ACC+16*i+4*q,4)}, v{73+i} offset:{q*1024}", ("r", i))
    if opt.glate:
        lds_poll(CAD, 4, sleep=4)
    for i in (1, 2, 3):
        e.wait(lg=("r", i))
        for r in range(0, 16, 2):
            e.i(f"v_pk_add_f32 {V(ACC+r,2)}, {V(ACC+r,2)}, {V(ACC+16*i+r,2)}")
    for r in range(16):
        e.i(f"v_mul_f32 v{ACC+16+r}, s{sT1}, v{ACC+r}")
    for r in range(16):
        e.i(f"v_exp_f32 v{ACC+16+r}, v{ACC+16+r}")
    for r in range(16):
        e.i(f"v_add_f32 v{ACC+16+r}, 1.0, v{ACC+16+r}")
    for r in range(16):
        e.i(f"v_rcp_f32 v{ACC+16+r}, v{ACC+16+r}")
    for r in range(16):
        e.i(f"v_mul_f32 v{ACC+r}, v{ACC+r}, v{ACC+16+r}")
    for j in range(8):
        e.i(f"v_cvt_pk_bf16_f32 v{ACC+j}, v{ACC+2*j}, v{ACC+2*j+1}")
    e.lds(f"ds_write_b128 v77, {V(ACC,4)}")
    e.lds(f"ds_write_b128 v77, {V(ACC+4,4)} offset:1024")
    lds_signal(CGD, va=78)
    stamp(10)
    dump_stamps()
    e.label("L_end")
    e.i("s_endpgm")
    e.label("L_slow_h")
    spin_init()
    e.label("L_slow_hx")
    e.i(f"buffer_load_dword v124, v122, {S(sWS,4)}, s{sFLG} offen sc1")
    e.i("s_waitcnt vmcnt(0)")
    e.i(f"v_cmp_ne_u32 vcc, s{sTAG}, v124")
    e.i(f"s_and_b32 s{sT0}, vcc_lo, s5")
    e.i("s_cbranch_scc0 L_back_h")
    spin_tail("L_slow_hx", "L_back_h", 4)
    e.label("L_code_end")
    return e

def wrap(e):
    hdr = open("cdna_kernels/%s.s.ref" % NAME).read().split("\n")
    top = [l for l in hdr if l.startswith(";") and "@launch" not in l]
    out = "\n".join(top) + f"\n; @launch grid=(256,1,1) block=(512,1,1) lds={LDS_BYTES}\n"
    out += f""".amdgcn_target "amdgcn-amd-amdhsa--gfx950"
.text
.globl {NAME}_kernel
.p2align 8
.type {NAME}_kernel,@function
{NAME}_kernel:
"""
    out += e.text()
    out += f""".section .rodata,"a"
.p2align 6
.amdhsa_kernel {NAME}_kernel
  .amdhsa_next_free_vgpr 256
  .amdhsa_next_free_sgpr 102
  .amdhsa_accum_offset 256
  .amdhsa_group_segment_fixed_size 0
  .amdhsa_kernarg_size 88
  .amdhsa_user_sgpr_count 2
  .amdhsa_user_sgpr_kernarg_segment_ptr 1
  .amdhsa_system_sgpr_workgroup_id_x 1
.end_amdhsa_kernel
"""
    return out

if __name__ == "__main__":
    opt = Opt()
    outp = sys.argv[1]
    for a in sys.argv[2:]:
        k, v = a.split("=")
        assert hasattr(opt, k), k
        setattr(opt, k, type(getattr(opt, k))(eval(v)))
    e = gen(opt)
    bad = check_cfg(e.lines)
    print("hazards:", bad, "lines:", len(e.lines), "lds", LDS_BYTES)
    open(outp, "w").write(wrap(e))
```

```python
import sys, math, struct
from asmlib import *

NAME = "recurrent_scan__grouped_kv_mqa__dense_activation_relu__prompt"
MF32 = "v_mfma_f32_32x32x16_bf16"
MF16 = "v_mfma_f32_16x16x32_bf16"
SMF = "v_smfmac_f32_32x32x32_bf16"

def f32bits(x):
    return struct.unpack("<I", struct.pack("<f", x))[0]

KVS = 2080
R0 = 0
R1 = 32 * KVS
XN_RH = 64 * 528
R2 = R1 + 2 * XN_RH
R4 = R2 + 28928
LDS_BYTES = R4 + 256
(CXN, CST, CWQ, CQ, CKV, CKM, CTAG, CA, CA2, CX, CH2, CR0, CWO, CAD, CF, CE0, CE1, CRW, CRC, CXI, CP1, CL1, CG, CTL, CWI, CGD, CGD1, CGD2, CGD3, CE7, COD, CHN) = [4 * i for i in range(32)]
RE = R2 + 18432
NE = 5
RB2 = R1 + 12 * KVS
assert RB2 % 128 == 0 and RB2 + 65536 <= R4
STAT = 128
assert R2 % 128 == 0
WS_KV = 0
WS_EPOCH = 0x30000
WS_KVF = 0x38000
WS_HF = 0x40000
WS_O = 0x100000
WS_H = 0x400000
WS_STAMP = 0x1000000
sX, sWQ, sWKV, sWO, sW1, sW2, sOUT, sWS = 8, 12, 16, 20, 24, 28, 32, 40
sMASK, sF, sSPIN, sFLG = 44, 45, 46, 47
sWAVE, sRB, sCB, sT0, sT1, sT2, sOFF, sOFF2, sCNT, sSEG = 70, 71, 72, 73, 74, 75, 76, 77, 78, 79
sRG, sOB, sTAG, sTILE, sRING, sW2T, sU0, sU1, sE1, sE2, sXO = 3, 6, 7, 36, 37, 38, 39, 60, 61, 62, 63
sCH = 64
sOA = 52
sSTAMP = 80
vH, vCG, vR, vC, vTR, vXN0, vXN1, vSW, vW1, vL16, vT0, vT1, vSP = 212, 213, 214, 215, 216, 217, 218, 219, 220, 221, 222, 223, 224
vTCH = 225
vSD = 228

class Opt:
    stamps = False
    front = False
    force_fallback = False
    thr = 40.0
    exit_at = 0
    spin = 0x20000
    pace1 = 0
    pace2 = 0
    kvsleep = 1
    kvdelay = 26
    kvtouch = True
    warm2 = True
    touch = 0
    fstart = 2
    twq = True
    wqdepth = 16
    fprio = 0
    outf = ''
    echo = ()
    emul = 1
    NR = 4
    dense = 32
    twait = 1
    nomf2 = False
    nold2 = 0
    ctouch = True
    mid = False
    wo_at = 16
    ntouch = 4
    full = True
    stouch = 0
    late2 = 28
    xr_early = True
    fprio1 = 0
    rot = 14
    la1 = True
    dyn = True
    osleep = 2
    hint = True
    hsleep = 2
    pos = (1, 4, 10)
    fgo = 1
    glate = True
    p7 = 0
    mimic = True
    noatt_tail = False
    jst = False
    e1pos = 1
    t7 = False
    npre = 4
    ph = 8
    pipe = 0
    prefirst = False
    hold = 21
    mkearly = True
    early_poll = 0
    epre = 0
    ln2 = True
    wqsplit = True
    centry = True
    wqafter = 0
    mid2 = False
    fp_early = 0
    fp_n = 0
    wide = True
    ehint = 6
    hp = 3
    lg2 = False
    midpoll = -1
    dry2 = False
    dryq = False
    onep = False
    pslack = 0
    hfl = 'sc1'
    t2at = 99
    wot = True
    dense2 = 0
    htouch = False
    lnclk = False

def gen(opt):
    e = E()
    uid = [0]
    inatt = [True]
    def lbl(p):
        uid[0] += 1
        return f"L_{p}_{uid[0]}"
    def stamp(k, when=None):
        if when == "front" and not opt.front: return
        if when == "late" and opt.mid2 and not inatt[0] and k in (4, 8, 9): return
        if when == "late" and (opt.front or (opt.jst and k in (1, 2, 3) and inatt[0])): return
        if opt.stamps:
            e.i(f"s_memrealtime {S(sSTAMP+2*k,2)}")
    def cstamp(k):
        if opt.stamps:
            e.i(f"s_memtime {S(sSTAMP+2*k,2)}")
    def dump_stamps():
        if not opt.stamps or opt.echo:
            return
        e.wait_all(vm=True, lg=True)
        e.i("v_mov_b32 v2, 0")
        e.i("v_mbcnt_lo_u32_b32 v1, -1, 0")
        e.i("v_mbcnt_hi_u32_b32 v1, -1, v1")
        for k in range(22):
            e.i(f"v_writelane_b32 v2, s{sSTAMP+k}, {k}")
        e.i(f"s_getreg_b32 s{sT0}, hwreg(HW_REG_XCC_ID)")
        e.i(f"v_writelane_b32 v2, s{sT0}, 22")
        e.i(f"s_lshl_b32 s{sT0}, s2, 3")
        e.i(f"s_add_u32 s{sT0}, s{sT0}, s{sWAVE}")
        e.i(f"s_lshl_b32 s{sT0}, s{sT0}, 8")
        e.i(f"s_add_u32 s{sT0}, s{sT0}, {WS_STAMP}")
        e.i("v_lshlrev_b32 v3, 2, v1")
        e.i(f"buffer_store_dword v2, v3, {S(sWS,4)}, s{sT0} offen")
    def exit_if(k):
        if opt.exit_at == k:
            dump_stamps()
            e.i("s_endpgm")
    def spin_init(mult=1):
        e.i(f"s_mov_b32 s{sSPIN}, {hex(opt.spin*mult)}")
    def spin_tail(top, done, sleep):
        e.i(f"s_sub_u32 s{sSPIN}, s{sSPIN}, 1")
        e.i(f"s_cbranch_scc1 {done}")
        if sleep:
            e.i(f"s_sleep {sleep}")
        e.i(f"s_branch {top}")
    def lds_signal(off, va=6):
        e.i("s_mov_b64 exec, 1")
        e.lds(f"ds_add_u32 v{va}, v7 offset:{off}")
        e.i("s_mov_b64 exec, -1")
    def lds_poll(off, n, vt=5, sleep=1, va=6):
        top, done = lbl("lp"), lbl("lpd")
        spin_init(16)
        e.label(top)
        e.i(f"ds_read_b32 v{vt}, v{va} offset:{off}")
        e.wait_all(lg=True)
        e.i(f"v_readfirstlane_b32 s{sT0}, v{vt}")
        e.i(f"s_cmp_ge_u32 s{sT0}, {n}")
        e.i(f"s_cbranch_scc1 {done}")
        spin_tail(top, done, sleep)
        e.label(done)
    def kv_dma(n, soff, sl, gstep, lstep):
        for i in range(n):
            e.i(f"s_mov_b32 m0, s{sl}")
            e.i(f"s_add_u32 s{sl}, s{sl}, {lstep*KVS}")
            for p in range(2):
                e.vmem(f"buffer_load_dwordx4 v{vL16}, {S(sWS,4)}, s{soff} offen offset:{1024*p} sc1 lds", ("kv", i))
            e.i(f"s_add_u32 s{soff}, s{soff}, {gstep*2048}")
    def setup():
        e.i(f"s_mov_b64 {S(sWQ,2)}, s[50:51]")
        e.i(f"s_mov_b64 {S(sWO,2)}, s[56:57]")
        e.i(f"s_mov_b64 {S(sW1,2)}, s[60:61]")
        e.i(f"s_mov_b64 {S(sW2,2)}, s[62:63]")
        e.i(f"s_mov_b64 {S(sOUT,2)}, s[64:65]")
        e.i(f"s_mov_b64 {S(sWS,2)}, s[68:69]")
        e.i(f"s_lshl_b32 s{sFLG}, s{sRB}, 10")
        e.i(f"s_add_u32 s{sFLG}, s{sFLG}, {hex(WS_HF)}")
        e.i(f"s_mul_i32 s{sRING}, s{sF}, 6144")
        e.i(f"s_add_u32 s{sRING}, s{sRING}, {R2}")
        e.i(f"s_lshl_b32 s{sT0}, s{sRB}, 5")
        e.i(f"s_lshl_b32 s{sT1}, s{sCB}, 2")
        e.i(f"s_add_u32 s{sT0}, s{sT0}, s{sT1}")
        e.i(f"s_and_b32 s{sT1}, s{sF}, 1")
        e.i(f"s_lshl_b32 s{sXO}, s{sT1}, 6")
        e.i(f"s_lshl_b32 s{sT1}, s{sT1}, 1")
        e.i(f"s_add_u32 s{sT0}, s{sT0}, s{sT1}")
        e.i(f"s_lshl_b32 s{sT0}, s{sT0}, 1")
        e.i(f"s_lshr_b32 s{sT1}, s{sF}, 1")
        e.i(f"s_add_u32 s{sT0}, s{sT0}, s{sT1}")
        e.i(f"s_lshl_b32 s{sT0}, s{sT0}, 10")
        e.i(f"s_add_u32 s{sOB}, s{sT0}, {WS_O}")
        e.i(f"s_lshl_b32 s{sT0}, s{sRB}, 1")
        e.i(f"s_add_u32 s{sT0}, s{sT0}, s{sT1}")
        e.i(f"s_lshl_b32 s{sT0}, s{sT0}, 15")
        e.i(f"s_add_u32 s{sXO}, s{sXO}, s{sT0}")
        e.i(f"s_lshl_b32 s{sT0}, s{sCB}, 7")
        e.i(f"s_add_u32 s{sXO}, s{sXO}, s{sT0}")
        e.i("v_lshrrev_b32 v5, 2, v1")
        e.i("v_and_b32 v5, 4, v5")
        e.i("v_xor_b32 v5, v5, v3")
        e.i("v_lshlrev_b32 v5, 4, v5")
        e.i(f"v_lshl_add_u32 v{vSW}, v2, 10, v5")
        e.i(f"v_mul_u32_u24 v{vW1}, 3584, v2")
        e.i(f"v_add_u32 v{vW1}, v{vW1}, v5")
        e.i(f"v_lshlrev_b32 v{vL16}, 4, v1")
        e.i(f"v_lshrrev_b32 v{vH}, 5, v1")
        e.i(f"v_bfe_u32 v{vCG}, v1, 4, 1")
        e.i(f"v_bfe_u32 v{vR}, v1, 2, 2")
        e.i(f"v_and_b32 v{vC}, 3, v1")
        e.i(f"v_lshrrev_b32 v4, 1, v{vC}")
        e.i(f"v_lshl_add_u32 v4, v{vCG}, 1, v4")
        e.i(f"v_lshlrev_b32 v5, 1, v{vR}")
        e.i("v_and_b32 v5, 4, v5")
        e.i("v_xor_b32 v4, v4, v5")
        e.i(f"v_lshlrev_b32 v{vTR}, 7, v{vR}")
        e.i(f"v_lshl_add_u32 v{vTR}, v4, 4, v{vTR}")
        e.i(f"v_and_b32 v5, 1, v{vC}")
        e.i(f"v_lshl_add_u32 v{vTR}, v5, 3, v{vTR}")
        e.i("v_and_b32 v5, 31, v1")
        e.i(f"v_mul_u32_u24 v{vXN0}, 528, v{vH}")
        e.i(f"v_lshl_add_u32 v{vXN0}, v5, 4, v{vXN0}")
        e.i(f"v_add_u32 v{vXN0}, {R1}, v{vXN0}")
        e.i(f"v_add_u32 v{vXN1}, {XN_RH}, v{vXN0}")
        e.i("v_lshlrev_b32 v205, 10, v5")
        e.i(f"v_lshl_add_u32 v205, v{vH}, 3, v205")
        e.i(f"v_mul_u32_u24 v{vSP}, {KVS}, v5")
        e.i(f"v_lshl_add_u32 v{vSP}, v{vH}, 4, v{vSP}")
        e.i(f"v_subrev_u32 v{vSD}, 1, v{vH}")
        e.i(f"v_and_b32 v{vSD}, 0x3f803f80, v{vSD}")
        for r in range(1, 4):
            e.i(f"v_mov_b32 v{vSD+r}, v{vSD}")
        e.i("v_and_b32 v4, 15, v1")
        e.i(f"v_lshl_add_u32 v4, v{vH}, 4, v4")
        e.i("v_lshlrev_b32 v203, 4, v4")
        e.i(f"v_lshl_add_u32 v{vT0}, v{vH}, 10, v{vTR}")

    e.i("s_cmp_ge_u32 s2, 256")
    e.i("s_cbranch_scc1 L_end")
    e.i("s_load_dwordx16 s[48:63], s[0:1], 0")
    e.i("s_load_dwordx2 s[64:65], s[0:1], 64")
    e.i("s_load_dwordx2 s[68:69], s[0:1], 80")
    stamp(0)
    e.i("v_lshrrev_b32 v2, 6, v0")
    e.i("v_and_b32 v1, 63, v0")
    e.i(f"v_readfirstlane_b32 s{sWAVE}, v2")
    def ctouch():
        e.c("pull this kernel's code into L2: 16 lines per workgroup, the workgroups of an XCD cover all of it")
        e.i(f"s_getpc_b64 {S(sWKV,2)}")
        e.label("L_pc")
        e.i(f"s_mov_b32 s{sWKV+2}, L_code_end-L_pc")
        e.i(f"s_mov_b32 s{sWKV+3}, 0x20000")
        e.i(f"s_lshr_b32 s{sT0}, s2, 3")
        e.i(f"s_lshl_b32 s{sT0}, s{sT0}, 7")
        e.i("v_lshlrev_b32 v104, 12, v1")
        e.i("s_mov_b64 exec, 0xffff")
        e.i(f"buffer_load_dword v106, v104, {S(sWKV,4)}, s{sT0} offen")
        e.i("s_mov_b64 exec, -1")
    if opt.ctouch and opt.centry:
        e.i(f"s_cmp_lg_u32 s{sWAVE}, 4")
        e.i("s_cbranch_scc1 L_no_ct")
        ctouch()
        e.label("L_no_ct")
    e.c("workgroup -> (row block rb, column block cb); ids that share id&7 share half of the columns and 1/4 of the rows")
    e.i(f"s_and_b32 s{sT0}, s2, 7")
    e.i(f"s_lshr_b32 s{sT1}, s2, 3")
    e.i(f"s_and_b32 s{sCB}, s{sT1}, 3")
    e.i(f"s_lshl_b32 s{sCB}, s{sCB}, 1")
    e.i(f"s_and_b32 s{sRB}, s{sT0}, 1")
    e.i(f"s_add_u32 s{sCB}, s{sCB}, s{sRB}")
    e.i(f"s_lshr_b32 s{sT1}, s{sT1}, 2")
    e.i(f"s_lshr_b32 s{sRB}, s{sT0}, 1")
    e.i(f"s_lshl_b32 s{sRB}, s{sRB}, 3")
    e.i(f"s_add_u32 s{sRB}, s{sRB}, s{sT1}")
    e.i(f"s_mov_b32 s{sMASK}, 0xffff0000")
    e.i(f"s_and_b32 s{sF}, s{sWAVE}, 3")
    e.c("row group of this wave: (w + 2*rq + 3) & 7 -> waves 5,6 hold the 16 rows of this workgroup's K/V tile")
    e.i(f"s_and_b32 s{sRG}, s{sCB}, 6")
    e.i(f"s_add_u32 s{sRG}, s{sRG}, s{sWAVE}")
    e.i(f"s_add_u32 s{sRG}, s{sRG}, 3")
    e.i(f"s_and_b32 s{sRG}, s{sRG}, 7")
    e.i("v_lshrrev_b32 v2, 3, v1")
    e.i("v_and_b32 v3, 7, v1")
    e.i("v_lshlrev_b32 v4, 10, v2")
    e.i("v_lshl_add_u32 v4, v3, 4, v4")
    e.i(f"s_lshl_b32 s{sOFF}, s{sRB}, 3")
    e.i(f"s_add_u32 s{sOFF}, s{sOFF}, s{sRG}")
    e.i(f"s_lshl_b32 s{sOFF}, s{sOFF}, 13")
    for srd, size in ((sX, 2048*512*2), (sWQ, 512*512*2), (sWKV, 512*16*2), (sWO, 512*512*2), (sW1, 512*1792*2),
                      (sW2, 1792*512*2), (sOUT, 2048*512*2), (sWS, 0x10000000)):
        e.i(f"s_mov_b32 s{srd+2}, {hex(size)}")
        e.i(f"s_mov_b32 s{srd+3}, 0x20000")
    e.i(f"v_mov_b32 v6, {R4}")
    e.i("v_mov_b32 v7, 1")
    e.i("v_mov_b64 v[108:109], 0")
    e.i("v_and_b32 v105, 15, v1")
    e.i("v_lshl_add_u32 v105, v105, 3, v6")
    e.i("ds_write_b64 v105, v[108:109]")
    e.i(f"s_mov_b32 s{sSEG}, 0")
    e.i(f"s_cmp_eq_u32 s{sWAVE}, 7")
    e.i("s_cbranch_scc1 L_pre_7")
    e.i("s_waitcnt lgkmcnt(0)")
    e.i(f"s_mov_b64 {S(sX,2)}, s[48:49]")
    e.i(f"s_cmp_eq_u32 s{sWAVE}, 4")
    e.i("s_cbranch_scc1 L_pre_4")
    e.i(f"s_cmp_ge_u32 s{sWAVE}, 5")
    e.i("s_cbranch_scc1 L_pre_first")
    e.i("s_barrier")
    e.label("L_pre_first")
    for i in range(8):
        e.i(f"buffer_load_dwordx4 {V(8+4*i,4)}, v4, {S(sX,4)}, s{sOFF} offen offset:{128*i}")
    e.i("s_cbranch_scc0 L_pre_second")
    e.i("s_barrier")
    e.label("L_pre_second")
    e.i(f"s_cmp_eq_u32 s{sWAVE}, 0")
    e.i("s_cbranch_scc1 L_pre_dbl")
    e.i(f"s_cmp_lg_u32 s{sWAVE}, 3")
    e.i("s_cbranch_scc1 L_pre_n3")
    e.label("L_pre_dbl")
    e.c("waves 0,3 also normalise the rows waves 4,7 would have had (row group ^ 4)")
    e.i(f"s_xor_b32 s{sOFF}, s{sOFF}, 0x8000")
    for i in range(8):
        e.i(f"buffer_load_dwordx4 {V(128+4*i,4)}, v4, {S(sX,4)}, s{sOFF} offen offset:{128*i}")
    e.i(f"s_mov_b32 s{sSEG}, 1")
    e.label("L_pre_n3")
    lds_signal(CXI)
    setup()
    e.i(f"s_cmp_ge_u32 s{sWAVE}, 4")
    e.i("s_cbranch_scc1 L_pre_56")
    S0, S1, P0, P1, OA, OB, NMA, NMB, QA, QB, KB, VB = 32, 48, 64, 72, 80, 96, 112, 128, 144, 148, 152, 168
    vK, vV0, vV1, vVG, vVC = 200, 201, 202, 203, 204
    e.i("s_setprio 1")
    e.i(f"s_and_b32 s{sT1}, s{sWAVE}, 1")
    e.i(f"s_lshl_b32 s{sT2}, s{sT1}, 6")
    e.i(f"v_xor_b32 v{vT0}, s{sT2}, v{vT0}")
    e.i(f"s_lshr_b32 s{sT1}, s{sWAVE}, 1")
    e.i(f"s_mul_i32 s{sT1}, s{sT1}, {XN_RH}")
    e.i(f"v_add_u32 v{vXN0}, s{sT1}, v{vXN0}")
    e.i(f"v_add_u32 v{vK}, {RE}, v{vL16}")
    e.i("v_and_b32 v5, 11, v1")
    e.i("v_cmp_ne_u32 vcc, 0, v5")
    e.i(f"v_mov_b32 v4, {RE+2048}")
    e.i(f"v_mov_b32 v5, {RE+2064}")
    e.i(f"v_add_u32 v{vV0}, {RE+1024}, v{vVG}")
    e.i("v_cndmask_b32 v4, v4, v5, vcc")
    e.i(f"v_cmp_eq_u32 vcc, 0, v{vCG}")
    e.i(f"v_add_u32 v{vV1}, {RE+1536}, v{vVG}")
    e.i("v_mov_b32 v207, 0xdddddddd")
    e.nop(1)
    e.i(f"v_cndmask_b32 v{vV0}, v4, v{vV0}, vcc")
    e.i(f"v_cndmask_b32 v{vV1}, v4, v{vV1}, vcc")
    if opt.stouch:
        e.c("scalar touches of w1 -> L2: wave w takes line column w, rows (rb&7) + 8i")
        e.i(f"s_and_b32 s{sT0}, s{sRB}, 7")
        e.i(f"s_mul_i32 s{sT0}, s{sT0}, 3584")
        e.i(f"s_mul_i32 s{sT1}, s{sCB}, 448")
        e.i(f"s_add_u32 s{sT0}, s{sT0}, s{sT1}")
        e.i(f"s_lshl_b32 s{sT1}, s{sWAVE}, 7")
        e.i(f"s_add_u32 s{sT0}, s{sT0}, s{sT1}")
        e.i(f"s_add_u32 s4, s60, s{sT0}")
        e.i("s_addc_u32 s5, s61, 0")
        for i in range(opt.stouch):
            e.i(f"s_load_dword s{sU0}, s[4:5], {hex(i*8*3584)}")
    if opt.ln2 and opt.dry2:
        e.c("while x is in flight: walk a quarter of the double-pass code with all lanes off (VALU / LDS writes only) to warm the instruction cache")
        e.i("v_mov_b32 v122, 0")
        e.i("s_mov_b64 exec, 0")
        for w in range(3):
            e.i(f"s_cmp_eq_u32 s{sWAVE}, {w}")
            e.i(f"s_cbranch_scc1 L_dry_{w}")
        e.i("s_branch L_dry_3")
        e.label("L_dry_ret")
        e.i("s_mov_b64 exec, -1")
    e.i(f"s_cmp_eq_u32 s{sSEG}, 1")
    e.i("s_cbranch_scc1 L_pre_w8")
    e.i("s_waitcnt vmcnt(0)")
    e.i("s_branch L_ln")
    e.label("L_pre_w8")
    e.i("s_waitcnt vmcnt(8)")
    e.i("s_branch L_ln2" if opt.ln2 else "s_branch L_ln")

    def ffn_setup():
        e.i(f"s_and_b32 s{sTILE}, s{sCB}, 1")
        e.i(f"s_lshl_b32 s{sT1}, s{sF}, 1")
        e.i(f"s_add_u32 s{sTILE}, s{sTILE}, s{sT1}")
        e.i(f"v_add_u32 v{vT0}, s{sRING}, v{vT0}")
        e.i(f"v_xor_b32 v{vT1}, 64, v{vT0}")
    e.label("L_pre_4")
    if opt.ctouch and not opt.centry:
        ctouch()
    e.c("wave 4: loader.  wq slice -> R0 by DMA behind the x loads; touches 1/8 of the w1 slice -> L2")
    setup()
    ffn_setup()
    e.i(f"s_lshl_b32 s{sOFF}, s{sCB}, 7")
    e.i(f"s_mov_b32 s{sT1}, 0")
    if opt.rot & 1:
        e.i(f"s_and_b32 s{sT1}, s{sRB}, 7")
        e.i(f"s_lshl_b32 s{sT0}, s{sT1}, 16")
        e.i(f"s_add_u32 s{sOFF}, s{sOFF}, s{sT0}")
        e.i(f"s_lshl_b32 s{sT1}, s{sT1}, 13")
    e.i(f"s_mov_b32 s{sCNT}, 7")
    def touch_setup(so):
        e.i("v_lshrrev_b32 v105, 2, v1")
        e.i("v_mul_u32_u24 v105, 3584, v105")
        e.i(f"v_lshl_add_u32 v105, v{vC}, 7, v105")
        e.i(f"s_and_b32 s{so}, s{sRB}, 7")
        e.i(f"s_mul_i32 s{so}, s{so}, {16*3584}")
        e.i(f"s_mul_i32 s{sT0}, s{sCB}, 448")
        e.i(f"s_add_u32 s{so}, s{so}, s{sT0}")
    def touches(so=sT2, a=0, b=4):
        for i in range(a, b):
            e.i(f"s_add_u32 s{sU0}, s{so}, {i*128*3584}")
            e.i(f"buffer_load_dword v106, v105, {S(sW1,4)}, s{sU0} offen")
    touch_setup(sT2)
    if opt.twq:
        e.i("v_lshrrev_b32 v104, 2, v1")
        e.i("v_lshlrev_b32 v104, 10, v104")
        e.i(f"v_lshl_add_u32 v104, v{vC}, 8, v104")
        e.i(f"s_lshr_b32 s{sT0}, s2, 3")
        e.i(f"s_lshl_b32 s{sT0}, s{sT0}, 14")
        e.i(f"s_and_b32 s{sU0}, s{sCB}, 1")
        e.i(f"s_lshl_b32 s{sU0}, s{sU0}, 7")
        e.i(f"s_add_u32 s{sT0}, s{sT0}, s{sU0}")
    e.i("s_barrier")
    if opt.twq:
        e.i(f"buffer_load_dword v106, v104, {S(sWQ,4)}, s{sT0} offen")
    if opt.touch == 4:
        touches()
    lds_poll(CXI, 6, sleep=0)
    if opt.wqafter:
        lds_poll(CXN, opt.wqafter, sleep=1)
    e.label("L_wq_loop")
    for i in range(8):
        e.i(f"s_mov_b32 m0, s{sT1}")
        e.i(f"s_add_u32 s{sT1}, s{sT1}, 1024")
        e.i(f"buffer_load_dwordx4 v{vSW}, {S(sWQ,4)}, s{sOFF} offen lds")
        e.i(f"s_add_u32 s{sOFF}, s{sOFF}, 8192")
    e.i(f"s_and_b32 s{sOFF}, s{sOFF}, 0x7ffff")
    e.i(f"s_and_b32 s{sT1}, s{sT1}, 0xffff")
    e.i(f"s_waitcnt vmcnt({opt.wqdepth})")
    e.i(f"s_sub_u32 s{sCNT}, s{sCNT}, 1")
    e.i("s_cbranch_scc0 L_wq_loop")
    lds_signal(CWI)
    stamp(1, "front")
    if opt.touch == 1:
        touches()
    if opt.wqsplit:
        e.i("s_waitcnt vmcnt(24)")
        lds_signal(CWQ)
    e.i("s_waitcnt vmcnt(0)")
    lds_signal(CWQ)
    stamp(8, "front")
    if opt.touch == 2 or (opt.touch == 3 and opt.ntouch < 4):
        lds_poll(CG, 4, sleep=2)
        touches(sT2, opt.ntouch if opt.touch == 3 else opt.stouch // 16, 4)
    e.i("s_branch L_ffn")

    e.label("L_pre_56")
    ffn_setup()
    e.i("s_setprio 3")
    e.i("s_waitcnt vmcnt(0)")

    e.label("L_ln")
    stamp(1, "front")
    if opt.lnclk:
        stamp(6); cstamp(9)
    X = 40
    A = 112
    e.i(f"s_lshr_b32 s{sT0}, s{sRG}, 2")
    e.i(f"s_mul_i32 s{sT0}, s{sT0}, {XN_RH}")
    e.i(f"s_and_b32 s{sT1}, s{sRG}, 3")
    e.i(f"s_lshl_b32 s{sT1}, s{sT1}, 7")
    e.i(f"s_add_u32 s{sT0}, s{sT0}, s{sT1}")
    e.i(f"s_add_u32 s{sT0}, s{sT0}, {R1}")
    e.i("v_mul_u32_u24 v122, 528, v3")
    e.i("v_lshl_add_u32 v122, v2, 4, v122")
    e.i(f"v_add_u32 v122, s{sT0}, v122")
    e.i(f"s_cmp_lt_u32 s{sWAVE}, 5")
    e.i("s_cbranch_scc1 L_ln_a")
    e.c("waves 5,6: raw rows -> LDS for the K/V wave")
    for i in range(8):
        e.i(f"ds_write_b128 v122, {V(8+4*i,4)} offset:{4224*i}")
    lds_signal(CRW)
    e.label("L_ln_a")
    e.i("v_mov_b32 v110, 0x3f803f80")
    e.i("v_mov_b64 v[112:113], 0")
    e.i("v_mov_b32 v108, 0x3f80")
    e.i("v_mov_b32 v109, 0x3f800000")
    for t in range(32):
        e.i(f"v_dot2c_f32_bf16 v{A+(t&1)}, v{8+t}, v110")
    def reduce_lanes():
        for m in ("quad_perm:[1,0,3,2]", "quad_perm:[2,3,0,1]", "row_half_mirror"):
            e.nop(2)
            e.i(f"v_add_f32_dpp v{A}, v{A}, v{A} {m} row_mask:0xf bank_mask:0xf")
    e.nop(3)
    e.i(f"v_add_f32 v{A}, v{A}, v{A+1}")
    reduce_lanes()
    def rnd(d, a):
        e.i(f"v_cvt_pk_bf16_f32 v{d}, v{a}, v{a}")
        e.i(f"v_and_b32 v{d}, s{sMASK}, v{d}")
    if opt.mimic:
        e.c("row statistics are rounded to bf16 where the reference rounds them")
        e.i(f"v_mul_f32 v121, {hex(f32bits(-1.0/512))}, v{A}")
        rnd(120, 121)
        e.i("v_sub_f32 v121, v121, v120")
    else:
        e.i(f"v_mul_f32 v120, {hex(f32bits(-1.0/512))}, v{A}")
    for t in range(32):
        e.i(f"v_dot2_f32_bf16 v{X+2*t}, v{8+t}, v108, v120")
        e.i(f"v_dot2_f32_bf16 v{X+2*t+1}, v{8+t}, v109, v120")
    for t in range(32):
        a = t % 4
        if t < 4:
            e.i(f"v_pk_mul_f32 {V(A+2*a,2)}, {V(X+2*t,2)}, {V(X+2*t,2)}")
        else:
            e.i(f"v_pk_fma_f32 {V(A+2*a,2)}, {V(X+2*t,2)}, {V(X+2*t,2)}, {V(A+2*a,2)}")
    e.i(f"v_pk_add_f32 {V(A,2)}, {V(A,2)}, {V(A+2,2)}")
    e.i(f"v_pk_add_f32 {V(A+4,2)}, {V(A+4,2)}, {V(A+6,2)}")
    e.i(f"v_pk_add_f32 {V(A,2)}, {V(A,2)}, {V(A+4,2)}")
    e.i(f"v_add_f32 v{A}, v{A}, v{A+1}")
    reduce_lanes()
    if opt.mimic:
        e.i(f"v_mul_f32 v119, {hex(f32bits(1.0/512))}, v{A}")
        e.i("v_fma_f32 v119, -v121, v121, v119")
        e.i("v_max_f32 v119, 0, v119")
        rnd(119, 119)
        e.i(f"v_add_f32 v119, {hex(f32bits(1e-5))}, v119")
        rnd(119, 119)
        e.i("v_sqrt_f32 v119, v119")
        e.nop(1)
        rnd(119, 119)
        e.i("v_rcp_f32 v118, v119")
    else:
        e.i(f"v_mov_b32 v119, {hex(f32bits(1e-5))}")
        e.i(f"v_fmac_f32 v119, {hex(f32bits(1.0/512))}, v{A}")
        e.i("v_rsq_f32 v118, v119")
    e.i(f"s_cmp_lt_u32 s{sWAVE}, 5")
    e.i("s_cbranch_scc1 L_ln_b")
    e.c("waves 5,6: hand the row statistics to the K/V wave")
    e.i(f"s_lshl_b32 s{sT0}, s{sWAVE}, 5")
    e.i(f"s_add_u32 s{sT0}, s{sT0}, {R4 + STAT - 160}")
    e.i(f"v_lshl_add_u32 v111, v2, 2, s{sT0}")
    e.i("ds_write2_b32 v111, v120, v118 offset1:16")
    lds_signal(CST)
    lds_poll(CRC, 1, sleep=0)
    e.label("L_ln_b")
    e.lg = []
    for i in range(8):
        for t in range(4*i, 4*i+4):
            e.i(f"v_pk_mul_f32 {V(X+2*t,2)}, {V(X+2*t,2)}, v[118:119] op_sel_hi:[1,0]")
        for t in range(4*i, 4*i+4):
            e.i(f"v_cvt_pk_bf16_f32 v{8+t}, v{X+2*t}, v{X+2*t+1}")
        e.lds(f"ds_write_b128 v122, {V(8+4*i,4)} offset:{4224*i}")
    lds_signal(CXN)
    e.i(f"s_cmp_eq_u32 s{sSEG}, 0")
    e.i("s_cbranch_scc1 L_ln_done")
    e.i(f"s_mov_b32 s{sSEG}, 0")
    e.i(f"s_xor_b32 s{sRG}, s{sRG}, 4")
    e.i("s_waitcnt vmcnt(0)")
    for t in range(0, 32, 2):
        e.i(f"v_mov_b64 {V(8+t,2)}, {V(128+t,2)}")
    e.i("s_branch L_ln")
    e.label("L_ln_done")
    stamp(8, "front")
    if opt.lnclk:
        stamp(7); cstamp(10)
    if opt.dryq:
        e.i(f"s_cmp_eq_u32 s{sWAVE}, 6")
        e.i("s_cbranch_scc1 L_dryq")
    e.i(f"s_cmp_ge_u32 s{sWAVE}, 4")
    e.i("s_cbranch_scc1 L_ffn")

    if opt.ln2:
        keep = e.lines
        e.lines = []
        class G: pass
        def phases(raw, xs, acc, nm, dl, ad):
            p = G()
            a0 = acc[0]
            p.sum = [f"v_dot2c_f32_bf16 v{a0+(t&1)}, v{raw+t}, v110" for t in range(32)]
            dpp = [f"v_add_f32_dpp v{a0}, v{a0}, v{a0} {m} row_mask:0xf bank_mask:0xf" for m in ("quad_perm:[1,0,3,2]", "quad_perm:[2,3,0,1]", "row_half_mirror")]
            rn = lambda d, a: [f"v_cvt_pk_bf16_f32 v{d}, v{a}, v{a}", f"v_and_b32 v{d}, s{sMASK}, v{d}"]
            p.r1 = [f"v_add_f32 v{a0}, v{a0}, v{a0+1}"] + dpp + [f"v_mul_f32 v{dl}, {hex(f32bits(-1.0/512))}, v{a0}"] + rn(nm, dl) + [f"v_sub_f32 v{dl}, v{dl}, v{nm}"]
            p.cen = []
            for t in range(32):
                p.cen += [f"v_dot2_f32_bf16 v{xs[t]}, v{raw+t}, v108, v{nm}", f"v_dot2_f32_bf16 v{xs[t]+1}, v{raw+t}, v109, v{nm}"]
            p.sq = [f"v_pk_mul_f32 {V(acc[t],2)}, {V(xs[t],2)}, {V(xs[t],2)}" if t < 4 else
                    f"v_pk_fma_f32 {V(acc[t%4],2)}, {V(xs[t],2)}, {V(xs[t],2)}, {V(acc[t%4],2)}" for t in range(32)]
            r, q = acc[3], acc[3] + 1
            p.r2 = [f"v_pk_add_f32 {V(acc[0],2)}, {V(acc[0],2)}, {V(acc[1],2)}", f"v_pk_add_f32 {V(acc[2],2)}, {V(acc[2],2)}, {V(acc[3],2)}",
                    f"v_pk_add_f32 {V(acc[0],2)}, {V(acc[0],2)}, {V(acc[2],2)}", f"v_add_f32 v{a0}, v{a0}, v{a0+1}"] + dpp + \
                   [f"v_mul_f32 v{q}, {hex(f32bits(1.0/512))}, v{a0}", f"v_fma_f32 v{q}, -v{dl}, v{dl}, v{q}", f"v_max_f32 v{q}, 0, v{q}"] + rn(q, q) + \
                   [f"v_add_f32 v{q}, {hex(f32bits(1e-5))}, v{q}"] + rn(q, q) + [f"v_sqrt_f32 v{q}, v{q}"] + rn(q, q) + [f"v_rcp_f32 v{r}, v{q}"]
            p.norm = []
            for i in range(8):
                p.norm += [f"v_pk_mul_f32 {V(xs[t],2)}, {V(xs[t],2)}, {V(r,2)} op_sel_hi:[1,0]" for t in range(4*i, 4*i+4)]
                p.norm += [f"v_cvt_pk_bf16_f32 v{raw+t}, v{xs[t]}, v{xs[t]+1}" for t in range(4*i, 4*i+4)]
                p.norm += [f"ds_write_b128 v{ad}, {V(raw+4*i,4)} offset:{4224*i}"]
            return p
        def merge(ser, bulk, k):
            out, b = [], list(bulk)
            for x in ser:
                out += b[:k]; b = b[k:]
                out.append(x)
            return out + b
        PA = phases(8, [40+2*t for t in range(32)], [112, 114, 116, 118], 120, 121, 122)
        PB = phases(128, [160+2*t for t in range(20)] + [232+2*t for t in range(12)], [104, 106, 124, 126], 111, 123, 5)
        e.label("L_ln2")
        e.c("waves 0,3: two row groups (rg and rg^4) in one interleaved pass")
        stamp(1, "front")
        e.i(f"s_lshr_b32 s{sT0}, s{sRG}, 2")
        e.i(f"s_mul_i32 s{sT0}, s{sT0}, {XN_RH}")
        e.i(f"s_and_b32 s{sT1}, s{sRG}, 3")
        e.i(f"s_lshl_b32 s{sT1}, s{sT1}, 7")
        e.i(f"s_add_u32 s{sT1}, s{sT1}, {R1}")
        e.i(f"s_add_u32 s{sT2}, s{sT1}, {XN_RH}")
        e.i(f"s_sub_u32 s{sT2}, s{sT2}, s{sT0}")
        e.i(f"s_add_u32 s{sT0}, s{sT0}, s{sT1}")
        e.i("v_mul_u32_u24 v122, 528, v3")
        e.i("v_lshl_add_u32 v122, v2, 4, v122")
        e.i(f"v_add_u32 v5, s{sT2}, v122")
        e.i(f"v_add_u32 v122, s{sT0}, v122")
        e.i("v_mov_b32 v110, 0x3f803f80")
        e.i("v_mov_b64 v[112:113], 0")
        e.i("v_mov_b64 v[104:105], 0")
        e.i("v_mov_b32 v108, 0x3f80")
        e.i("v_mov_b32 v109, 0x3f800000")
        def zipn(x, y):
            out = []
            for p, q in zip(x, y):
                out += [p, q] + (["s_nop 0"] if "dpp" in p or "v_add_f32 " in p else [])
            return out
        def solo(x):
            out = []
            for p in x:
                if "dpp" in p: out.append("s_nop 1")
                out.append(p)
                if "v_sqrt" in p: out.append("s_nop 0")
            return out
        seq = PA.sum + ["s_nop 2"] + solo(PA.r1) + PA.cen + PA.sq + solo(PA.r2) + ["s_nop 0"] + PA.norm[:9] + ["s_waitcnt vmcnt(0)"]
        if opt.stamps and opt.front:
            seq += [f"s_memrealtime {S(sSTAMP+18,2)}"]
        seq += PB.sum[:16] + PA.norm[9:18] + PB.sum[16:] + merge(PB.r1, PA.norm[18:36], 3)
        rest = PB.cen + PB.sq
        for i in range(4):
            seq += rest[24*i:24*i+24] + PA.norm[36+9*i:45+9*i]
        seq += solo(PB.r2) + ["s_nop 0"]
        k0 = seq.index("s_waitcnt vmcnt(0)") + 1
        n3 = (len(seq) - k0) // 3
        for k, t in enumerate(seq):
            if opt.dry2 and k in (k0 + n3, k0 + 2 * n3):
                e.i("s_cbranch_execz L_dry_ret")
            if opt.dry2 and k in (k0, k0 + n3, k0 + 2 * n3):
                e.label(f"L_dry_{(k - k0) // n3}")
            e.i(t)
        if opt.dry2:
            e.i("s_cbranch_execz L_dry_ret")
        lds_signal(CXN)
        e.label("L_dry_3")
        for t in PB.norm: e.i(t)
        if opt.dry2:
            e.i("s_cbranch_execz L_dry_ret")
        lds_signal(CXN)
        e.i("s_branch L_ln_done")
        ln2_lines = e.lines
        e.lines = keep
    e.vm = []
    for r in range(0, 32, 2):
        e.i(f"v_mov_b64 {V(OA+r,2)}, 0")
    lds_poll(CWQ, 1, sleep=0)
    for q in range(4):
        e.i(f"buffer_load_dwordx2 {V(232+2*q,2)}, v205, {S(sX,4)}, s{sXO} offen offset:{16*q}")
    lds_poll(CXN, 9, sleep=0)
    stamp(2, "front")
    e.label("L_q")
    fill = []
    e.c("Q projection: wave w -> head pair hp=w&1, row half rh=w>>1")
    def qreads(ks):
        s = ks % 4
        if ks == 20 and opt.wqsplit:
            e.i(f"v_readfirstlane_b32 s{sT0}, v5")
            e.i(f"s_cmp_ge_u32 s{sT0}, 2")
            e.i("s_cbranch_scc0 L_slow_wq")
            e.label("L_back_wq")
        if ks == 16 and opt.wqsplit:
            e.lds(f"ds_read_b32 v5, v6 offset:{CWQ}")
        e.lds(f"ds_read_b64_tr_b16 {V(32+8*s,2)}, v{vT0} offset:{ks*2048}", ("q", ks))
        e.lds(f"ds_read_b64_tr_b16 {V(34+8*s,2)}, v{vT0} offset:{ks*2048+512}", ("q", ks))
        e.lds(f"ds_read_b128 {V(36+8*s,4)}, v{vXN0} offset:{ks*1056}", ("q", ks))
    for ks in range(4):
        qreads(ks)
    for ks in range(32):
        s = ks % 4
        e.wait(lg=("q", ks))
        e.i(f"{MF32} v[8:23], {V(32+8*s,4)}, {V(36+8*s,4)}, {'0' if ks == 0 else 'v[8:23]'}")
        if ks + 4 < 32:
            qreads(ks + 4)
        if ks == 27:
            lds_signal(CQ)
        if fill:
            e.i(fill.pop(0))
    e.i(f"v_mov_b32 v28, {hex(f32bits(0.25*math.log2(math.e)))}")
    e.nop(11)
    for r in range(0, 16, 2):
        e.i(f"v_pk_mul_f32 {V(8+r,2)}, {V(8+r,2)}, v[28:29] op_sel_hi:[1,0]")
    for k in range(4):
        for hd in range(2):
            b = 8 + 8*hd + 2*k
            if k == 0:
                e.i(f"v_pk_mul_f32 {V(30+2*hd,2)}, {V(b,2)}, {V(b,2)}")
            else:
                e.i(f"v_pk_fma_f32 {V(30+2*hd,2)}, {V(b,2)}, {V(b,2)}, {V(30+2*hd,2)}")
    e.i("v_add_f32 v24, v30, v31")
    e.i("v_add_f32 v25, v32, v33")
    e.i("v_mov_b32 v26, v24")
    e.i("v_mov_b32 v27, v25")
    for hd in range(2):
        for j in range(4):
            e.i(f"v_cvt_pk_bf16_f32 v{QA+4*hd+j}, v{8+8*hd+2*j}, v{8+8*hd+2*j+1}")
    e.i("v_permlane32_swap_b32 v24, v26")
    e.i("v_permlane32_swap_b32 v25, v27")
    e.i("v_add_f32 v24, v24, v26")
    e.i("v_add_f32 v25, v25, v27")
    if opt.dryq:
        e.i(f"s_cmp_eq_u32 s{sWAVE}, 6")
        e.i("s_cbranch_scc1 L_dryq_ret")
    stamp(3, "front")
    lds_poll(CKV, 2, sleep=0)
    stamp(4)
    e.lds(f"ds_read_b32 v206, v6 offset:{CTAG}")
    e.lds(f"ds_read_b32 v30, v6 offset:{CKM}")
    e.wait_all(lg=True)
    e.c("stand-in for the row max: |q| * max|k| >= max_k q.k ; used only while it cannot be far above the true max")
    e.i("v_mul_f32 v24, v24, v30")
    e.i("v_mul_f32 v25, v25, v30")
    e.i("v_sqrt_f32 v24, v24")
    e.i("v_sqrt_f32 v25, v25")
    e.i(f"s_mov_b32 s{sT1}, {hex(f32bits(opt.thr))}")
    e.i("v_max_f32 v26, v24, v25")
    e.i(f"v_cmp_nge_f32 vcc, s{sT1}, v26")
    e.i("v_cmp_u_f32 s[4:5], v24, v25")
    e.i("s_or_b64 s[4:5], s[4:5], vcc")
    if opt.force_fallback:
        e.i("s_branch L_fallback")
    else:
        e.i("s_cbranch_scc1 L_fallback")
    e.label("L_att_start")
    e.i(f"v_sub_f32 v{NMA}, 0, v24")
    e.i(f"v_sub_f32 v{NMA+1}, 0, v24")
    e.i(f"v_sub_f32 v{NMB}, 0, v25")
    e.i(f"v_sub_f32 v{NMB+1}, 0, v25")
    for r in range(2, 16, 2):
        e.i(f"v_mov_b64 {V(NMA+r,2)}, {V(NMA,2)}")
        e.i(f"v_mov_b64 {V(NMB+r,2)}, {V(NMB,2)}")
    e.i(f"s_lshl_b32 s{sT0}, s{sCB}, 7")
    e.i(f"s_lshl_b32 s{sT1}, s{sF}, 2")
    e.i(f"s_add_u32 s{sT0}, s{sT0}, s{sT1}")
    e.i(f"s_add_u32 s{sE1}, s{sFLG}, 0x10000")
    e.i(f"s_add_u32 s{sE2}, s{sT0}, s{sE1}")
    lds_poll(CE7, 1, sleep=0)
    for j in range(3):
        e.lds(f"ds_read_b128 {V(KB+4*j,4)}, v{vK} offset:{j*KVS}", ("a", j))
        e.lds(f"ds_read_b128 {V(VB+8*j,4)}, v{vV0} offset:{j*KVS}")
        e.lds(f"ds_read_b128 {V(VB+8*j+4,4)}, v{vV1} offset:{j*KVS}")
    e.wait(lg=("a", 0))
    e.i(f"{MF32} {V(S0,16)}, {V(KB,4)}, {V(QA,4)}, {V(NMA,16)}")
    e.nop(11)
    e.wait_all(lg=True)
    stamp(5)
    def em(t):
        if t.endswith(":"): e.raw(t)
        else: e.i(t)
    def step(cur, oth, K, Q, NM, O, V0, Op, V1p, after, noqk=False, nopv=False):
        for i in range(16):
            e.i(f"v_exp_f32 v{cur+i}, v{cur+i}")
            if i == opt.pos[0]:
                if not nopv:
                    e.i(f"{SMF} {V(Op,16)}, {V(V1p,4)}, {V(oth+8,8)}, v207")
                for t in after[0]: em(t)
            if i == opt.pos[1]:
                if not noqk:
                    e.i(f"{MF32} {V(oth,16)}, {V(K,4)}, {V(Q,4)}, {V(NM,16)}")
                for t in after[1]: em(t)
            if i == opt.pos[2]:
                e.i(f"{SMF} {V(O,16)}, {V(V0,4)}, {V(cur,8)}, v207")
                for t in after[2]: em(t)
    def shift(d):
        return [f"v_add_u32 v{v}, {hex(d & 0xffffffff)}, v{v}" for v in (vK, vV0, vV1)]
    if opt.full:
        slow = [("wq", CWQ, 2)] if opt.wqsplit else []
        SIG = lambda off: ["s_mov_b64 exec, 1", f"ds_add_u32 v6, v7 offset:{off}", "s_mov_b64 exec, -1"]
        def CHK(name, off, n):
            slow.append((name, off, n))
            return [f"v_readfirstlane_b32 s{sT0}, v5", f"s_cmp_ge_u32 s{sT0}, {n}", f"s_cbranch_scc0 L_slow_{name}", f"L_back_{name}:"]
        PRE = lambda off: [f"ds_read_b32 v5, v6 offset:{off}"]
        HINT = ["s_mov_b64 exec, 1", f"buffer_store_dword v206, v{vL16}, {S(sWS,4)}, s{sE2} offen sc1", "s_mov_b64 exec, -1"]
        J0 = NE - 3
        for j in range(64):
            b3 = (j + 3) % 4
            slot = j + 3 if j < J0 else (j - J0 if j < J0 + 32 else (j - J0 - 32 if j < J0 + 47 else j - J0 - 47))
            off = slot * KVS
            rd = j + 3 < 64
            A = [[], [f"ds_read_b128 {V(KB+4*b3,4)}, v{vK} offset:{off}"] if rd else [], []]
            Bq = [[f"ds_read_b128 {V(VB+8*b3,4)}, v{vV0} offset:{off}"] if rd else [],
                  [f"ds_read_b128 {V(VB+8*b3+4,4)}, v{vV1} offset:{off}"] if rd else [],
                  [f"s_waitcnt lgkmcnt({2 if rd else 0})"] if j % 2 == 1 and j < 62 else []]
            assert J0 % 2 == 0
            if j == J0 - 1:
                A[2] += PRE(CA)
                Bq[2] += CHK("a", CA, 1) + SIG(CG) + shift(-RE)
            if j in (J0 + 7, J0 + 15, J0 + 23):
                A[2] += PRE(CA)
                Bq[2] += CHK(f"a{j}", CA, (j - J0 + 1) // 8 + 1)
            if j == J0 + 15:
                Bq[2] += SIG(CP1)
            if j == 31 and opt.stamps and not opt.lnclk:
                Bq[2] += [f"s_memrealtime {S(sSTAMP+12,2)}"] + ([] if opt.front else [f"s_memtime {S(sSTAMP+18,2)}"])
            if j == J0 + 31:
                A[2] += PRE(CL1)
                Bq[2] += CHK("l1", CL1, 4)
            if j == J0 + 45:
                A[2] += PRE(CH2)
                Bq[2] += CHK("h2", CH2, 4)
            if j == J0 + 46:
                Bq[2] += SIG(CR0) + shift(R1)
            if opt.jst and j in (1, 9, 17, 25):
                Bq[2] += [f"s_memrealtime {S(sSTAMP+2*{1:1,9:2,17:3,25:4}[j],2)}"]
            if j == 56:
                A[0] += ["s_waitcnt vmcnt(0)"]
            if opt.ehint and 2 * j == 128 - opt.ehint:
                A[0] += HINT
            if opt.ehint and 2 * j + 1 == 128 - opt.ehint:
                Bq[0] += HINT
            step(S0, S1, KB+4*(j % 4), QB, NMB, OA, VB+8*(j % 4), OB, VB+8*((j-1) % 4)+4, A, nopv=(j == 0))
            step(S1, S0, KB+4*((j+1) % 4), QA, NMA, OB, VB+8*(j % 4), OA, VB+8*(j % 4)+4, Bq, noqk=(j == 63))
    e.label("L_att_done")
    if not opt.lnclk:
        stamp(7)
        cstamp(10)
    e.i(f"v_rcp_f32 v24, v{OA+8}")
    e.i("s_nop 0")
    e.i(f"{SMF} {V(OB,16)}, {V(VB+28,4)}, {V(S1+8,8)}, v207")
    e.lg = []
    lds_signal(CAD)
    for hd, O in enumerate((OA, OB)):
        if hd == 1:
            e.i(f"v_rcp_f32 v24, v{OB+8}")
            e.nop(1)
        for r in range(8):
            e.i(f"v_mul_f32 v{O+r}, v{O+r}, v24")
        for j in range(4):
            e.i(f"v_cvt_pk_bf16_f32 v{8+4*hd+j}, v{O+2*j}, v{O+2*j+1}")
        for j in range(4):
            e.i(f"v_min_u32 v{8+4*hd+j}, -2, v{8+4*hd+j}")
        e.vmem(f"buffer_store_dwordx4 {V(8+4*hd,4)}, v{vL16}, {S(sWS,4)}, s{sOB} offen offset:{2048*hd} sc1")
    if opt.hint:
        e.c("hint for the readers (the data itself is checked against the marker)")
        if not opt.ehint:
            for t in HINT: e.i(t)
        e.i(f"s_mov_b32 s{sFLG}, s{sE1}")
        e.i(f"v_readfirstlane_b32 s{sTAG}, v206")
        e.i(f"v_lshlrev_b32 v16, 7, v{vC}")
        e.i("v_and_b32 v17, 4, v1")
        e.i("v_add_u32 v16, v16, v17")
        e.i(f"s_and_b32 s{sT0}, s{sF}, 1")
        e.i(f"s_lshl_b32 s{sT0}, s{sT0}, 9")
        e.i(f"s_add_u32 s{sFLG}, s{sFLG}, s{sT0}")
        e.i(f"s_and_b32 s{sT0}, s{sF}, 2")
        e.i(f"s_lshl_b32 s{sT0}, s{sT0}, 2")
        e.i(f"s_add_u32 s{sFLG}, s{sFLG}, s{sT0}")
    if opt.early_poll:
        e.c("the own workgroup's line is not read: its stores are known drained through LDS (read a neighbour twice instead)")
        e.i(f"s_and_b32 s{sT0}, s{sF}, 1")
        e.i(f"s_lshl_b32 s{sT0}, s{sT0}, 2")
        e.i(f"s_sub_u32 s{sT0}, s{sCB}, s{sT0}")
        e.i(f"v_cmp_eq_u32 vcc, s{sT0}, v{vC}")
        e.i("v_xor_b32 v17, 0x80, v16")
        e.i("s_mov_b64 s[4:5], -1")
        e.i("v_cndmask_b32 v16, v16, v17, vcc")
        if opt.early_poll == 1:
            e.i(f"buffer_load_dword v17, v16, {S(sWS,4)}, s{sFLG} offen sc1")
    stamp(8, "late")
    if opt.noatt_tail:
        dump_stamps()
        e.i("s_endpgm")
    e.c("output projection: wave w -> row half w>>1, K half w&1, both column tiles (own tile first)")
    G, XR, OF = 104, 120, 40
    e.i(f"v_mov_b32 v0, v{vL16}")
    e.i("v_mov_b32 v3, v205")
    if opt.wide:
        e.i(f"v_lshl_add_u32 v3, v{vH}, 3, v3")
    e.i(f"s_and_b32 s{sT1}, s{sF}, 1")
    e.i(f"s_lshr_b32 s{sT2}, s{sF}, 1")
    e.i(f"s_lshl_b32 s{sT0}, s{sRB}, 6")
    e.i(f"s_add_u32 s{sT0}, s{sT0}, s{sT2}")
    e.i(f"s_lshl_b32 s{sT2}, s{sT1}, 5")
    e.i(f"s_add_u32 s{sT0}, s{sT0}, s{sT2}")
    e.i(f"s_lshl_b32 s{sT0}, s{sT0}, 10")
    e.i(f"s_add_u32 s{sOFF}, s{sT0}, {WS_O}")
    for g in range(4):
        e.i(f"s_add_u32 s{sCH+g}, s{sCB}, {1+g}")
        e.i(f"s_and_b32 s{sCH+g}, s{sCH+g}, 3")
        e.i(f"s_lshl_b32 s{sCH+g}, s{sCH+g}, 13")
        e.i(f"s_add_u32 s{sOA+2*g}, s{sOFF}, s{sCH+g}")
        e.i(f"s_add_u32 s{sOA+2*g+1}, s{sOA+2*g}, 4096")
    if opt.echo: stamp(9)
    lds_poll(CWO, 4, sleep=1)
    if opt.echo: stamp(10)
    def oloads(g):
        for i in range(4):
            e.i(f"buffer_load_dwordx4 {V(OF+16*g+4*i,4)}, v0, {S(sWS,4)}, s{sOA+2*g+(i>>1)} offen offset:{2048*(i&1)} sc1")
    if not opt.hint:
        for g in range(3):
            oloads(g)
    e.i(f"s_mul_i32 s{sT0}, s{sT1}, {32768+64}")
    e.i(f"v_lshl_add_u32 v2, v{vH}, 9, v{vTR}")
    e.i(f"v_xor_b32 v2, s{sT0}, v2")
    for g in range(4):
        e.i(f"v_add_u32 v{G+2*g}, s{sCH+g}, v2")
        e.i(f"v_xor_b32 v{G+2*g+1}, 64, v{G+2*g}")
    for q in range(4):
        e.i(f"v_mov_b64 {V(XR+2*q,2)}, {V(232+2*q,2)}")
    if opt.early_poll == 3:
        e.i(f"buffer_load_dword v17, v16, {S(sWS,4)}, s{sFLG} offen sc1")
    for i in range(16):
        if i == opt.midpoll:
            e.i(f"buffer_load_dword v17, v16, {S(sWS,4)}, s{sFLG} offen sc1")
        for c2 in range(2):
            for t in range(2):
                if opt.lg2:
                    e.i(f"ds_read_b64_tr_b16 {V(128+8*i+4*c2+2*t,2)}, v{G+2*(i//4)+c2} offset:{(i%4)*2048+1024*t}")
                else:
                    e.lds(f"ds_read_b64_tr_b16 {V(128+8*i+4*c2+2*t,2)}, v{G+2*(i//4)+c2} offset:{(i%4)*2048+1024*t}")
        if opt.lg2 and i >= 2:
            e.i("s_waitcnt lgkmcnt(11)")
    e.i(f"s_lshl_b32 s{sT2}, s{sF}, 12")
    e.i(f"s_add_u32 s{sT1}, s{sT2}, {R1}")
    e.i(f"v_add_u32 v1, s{sT1}, v0")
    e.i(f"s_xor_b32 s{sT2}, s{sT2}, 4096")
    e.i(f"s_add_u32 s{sT2}, s{sT2}, {R1}")
    e.i(f"v_add_u32 v2, s{sT2}, v0")
    e.i(f"s_and_b32 s{sT2}, s{sF}, 2")
    e.i(f"s_lshl_b32 s{sT2}, s{sT2}, 1")
    e.i(f"v_add_u32 v4, s{sT2}, v6")
    e.i(f"s_mov_b32 s{sSEG}, 0")
    e.i(f"s_mov_b32 s{sCNT}, {hex(opt.spin)}")
    if opt.early_poll:
        e.i("s_waitcnt vmcnt(0)")
        lds_signal(COD)
        lds_poll(COD, 4, sleep=0)
    else:
        lds_poll(CAD, 4, sleep=0)
    if opt.hint and opt.onep:
        e.i(f"s_cmp_lg_u32 s{sWAVE}, 0")
        e.i("s_cbranch_scc1 L_hint_other")
        e.i("v_mbcnt_lo_u32_b32 v17, -1, 0")
        e.i("v_bfe_u32 v18, v17, 2, 3")
        e.i(f"v_cmp_eq_u32 vcc, s{sCB}, v18")
        e.i("v_xor_b32 v19, 1, v18")
        e.i("v_and_b32 v17, 3, v17")
        e.i("v_cndmask_b32 v18, v18, v19, vcc")
        e.i("v_lshlrev_b32 v18, 7, v18")
        e.i("v_lshl_add_u32 v16, v17, 2, v18")
        top, done = lbl("hp"), lbl("hpd")
        spin_init()
        e.label(top)
        e.i(f"buffer_load_dword v17, v16, {S(sWS,4)}, s{sFLG} offen sc1")
        e.i("s_waitcnt vmcnt(0)")
        e.i(f"v_cmp_ne_u32 vcc, s{sTAG}, v17")
        e.i(f"s_cbranch_vccz {done}")
        spin_tail(top, done, opt.hsleep)
        e.label(done)
        lds_signal(CHN)
        e.label("L_hint_other")
        lds_poll(CHN, 1, sleep=0)
        stamp(1, "late")
        for g in range(4):
            oloads(g)
    elif opt.hint:
        top, done = lbl("hp"), lbl("hpd")
        spin_init()
        n = opt.pipe
        def chk(r):
            e.i(f"v_cmp_ne_u32 vcc, s{sTAG}, v{r}")
            if opt.early_poll:
                e.i("s_and_b64 vcc, vcc, s[4:5]")
                e.i(f"s_cbranch_scc0 {done}")
            else:
                e.i(f"s_cbranch_vccz {done}")
        if opt.midpoll >= 0:
            e.i("s_waitcnt vmcnt(0)")
        if opt.early_poll in (1, 3) or opt.midpoll >= 0:
            chk(17)
        for k in range(n):
            e.i(f"buffer_load_dword v{17+k}, v16, {S(sWS,4)}, s{sFLG} offen sc1")
            e.i(f"s_sleep {6 // n}")
        e.label(top)
        for k in range(n + 1):
            e.i(f"buffer_load_dword v{17+(n+k)%(n+1)}, v16, {S(sWS,4)}, s{sFLG} offen sc1")
            e.i(f"s_waitcnt vmcnt({n})")
            chk(17 + k)
        spin_tail(top, done, 0 if n else opt.hsleep)
        e.label(done)
        stamp(1, "late")
        for g in range(4):
            oloads(g)
    else:
        e.i("s_waitcnt vmcnt(12)")
        stamp(1, "late")
        oloads(3)
    e.c("o fragments: check that every dword was written; if not, re-read that group until it is, then refresh the rest")
    def ocheck(g):
        b = OF + 16 * g
        e.i(f"v_max3_u32 v5, v{b}, v{b+1}, v{b+2}")
        for k in range(3, 15, 2):
            e.i(f"v_max3_u32 v5, v5, v{b+k}, v{b+k+1}")
        e.i(f"v_max_u32 v5, v5, v{b+15}")
        e.i("v_cmp_eq_u32 vcc, -1, v5")
    for g in range(4):
        e.i(f"s_waitcnt vmcnt({12-4*g})")
        b = OF + 16 * g
        ocheck(g)
        e.i(f"s_cbranch_vccnz L_oretry_{g}")
        e.label(f"L_ogo_{g}")
        for i in range(4):
            for c2 in (1, 0):
                a = 8 + 16 * c2
                k = 4 * g + i
                e.i(f"{MF32} {V(a,16)}, {V(128+8*k+4*c2,4)}, {V(b+4*i,4)}, {'0' if k == 0 else V(a,16)}")
    stamp(2, "late")
    for t in range(8):
        e.i(f"v_lshlrev_b32 v{128+2*t}, 16, v{XR+t}")
        e.i(f"v_and_b32 v{129+2*t}, s{sMASK}, v{XR+t}")
    e.lg = []
    for q in range(4):
        e.lds(f"ds_write_b128 v1, {V(24+4*q,4)} offset:{q*1024}")
    lds_signal(CE0, va=4)
    e.i(f"s_lshl_b32 s{sT1}, s{sF}, 2")
    e.i(f"v_add_u32 v1, s{sT1}, v6")
    e.i(f"s_lshl_b32 s{sT1}, s{sF}, 14")
    e.i(f"s_add_u32 s{sT1}, s{sT1}, {RB2 + 12288}")
    e.i(f"v_add_u32 v0, s{sT1}, v0")
    lds_poll(CGD, 1, sleep=0, va=1)
    if opt.echo: stamp(4)
    e.lds("ds_read_b128 v[40:43], v0")
    e.lds("ds_read_b128 v[44:47], v0 offset:1024")
    lds_poll(CE0, 2, sleep=0, va=4)
    for q in range(4):
        e.lds(f"ds_read_b128 {V(24+4*q,4)}, v2 offset:{q*1024}", ("e", q))
    for t in range(8):
        e.i(f"v_lshlrev_b32 v{G+2*t}, 16, v{40+t}")
        e.i(f"v_and_b32 v{G+1+2*t}, s{sMASK}, v{40+t}")
    for q in range(4):
        e.wait(lg=("e", q))
        for r in range(4*q, 4*q+4):
            e.i(f"v_add_f32 v{8+r}, v{8+r}, v{24+r}")
        for r in range(4*q, 4*q+4):
            e.i(f"v_fmac_f32 v{128+r}, v{8+r}, v{G+r}")
        for j in range(2):
            e.i(f"v_cvt_pk_bf16_f32 v{XR+2*q+j}, v{128+4*q+2*j}, v{128+4*q+2*j+1}")
        if not opt.wide:
            e.vmem(f"buffer_store_dwordx2 {V(XR+2*q,2)}, v3, {S(sOUT,4)}, s{sXO} offen offset:{16*q} {opt.outf}")
        elif q % 2 == 1:
            e.nop(2)
            e.i(f"v_permlane32_swap_b32 v{XR+2*q-2}, v{XR+2*q}")
            e.i(f"v_permlane32_swap_b32 v{XR+2*q-1}, v{XR+2*q+1}")
            e.vmem(f"buffer_store_dwordx4 {V(XR+2*q-2,4)}, v3, {S(sOUT,4)}, s{sXO} offen offset:{16*(q-1)} {opt.outf}")
    if opt.stamps:
        e.wait_all(vm=True)
        stamp(3, "late")
    if opt.echo:
        a, b = opt.echo
        e.i("s_waitcnt lgkmcnt(0)")
        e.i(f"s_sub_u32 s{sT0}, s{sSTAMP+2*b}, s{sSTAMP+2*a}")
        e.i(f"s_mul_i32 s{sT0}, s{sT0}, {opt.emul}")
        e.i(f"s_min_u32 s{sT0}, s{sT0}, 10000")
        e.i(f"s_add_u32 s{sT0}, s{sT0}, s{sSTAMP+6}")
        e.label("L_echo")
        e.i("s_memrealtime s[4:5]")
        e.i("s_waitcnt lgkmcnt(0)")
        e.i(f"s_sub_u32 s{sT1}, s4, s{sT0}")
        e.i(f"s_cmp_lt_i32 s{sT1}, 0")
        e.i("s_cbranch_scc1 L_echo")
    dump_stamps()
    e.i("s_endpgm")
    for g in range(4):
        e.label(f"L_oretry_{g}")
        e.i(f"s_sub_u32 s{sCNT}, s{sCNT}, 1")
        e.i(f"s_cbranch_scc1 L_odone_{g}")
        if opt.osleep:
            e.i(f"s_sleep {opt.osleep}")
        oloads(g)
        e.i("s_waitcnt vmcnt(0)")
        ocheck(g)
        e.i(f"s_cbranch_vccnz L_oretry_{g}")
        e.label(f"L_odone_{g}")
        for g2 in range(g + 1, 4):
            oloads(g2)
        e.i(f"s_branch L_ogo_{g}")
    if opt.full:
        for name, off, n in slow:
            e.label(f"L_slow_{name}")
            lds_poll(off, n, sleep=0)
            e.i(f"s_branch L_back_{name}")

    if opt.ln2:
        e.lines += ln2_lines
    if opt.dryq:
        e.label("L_dryq")
        e.c("wave 6 runs the Q projection code once on whatever LDS holds (its signal adds 0) to warm the instruction cache")
        e.i("s_setprio 0")
        e.i("s_waitcnt lgkmcnt(0)")
        e.i("v_mov_b32 v7, 0")
        e.i("s_branch L_q")
        e.label("L_dryq_ret")
        e.i("s_waitcnt lgkmcnt(0)")
        e.i("v_mov_b32 v7, 1")
        e.i("s_branch L_ffn")
    e.label("L_fallback")
    e.i("v_mov_b32 v24, 0xff800000")
    e.i("v_mov_b32 v25, 0xff800000")
    e.i(f"s_mov_b32 s{sT1}, 0")
    e.i(f"s_mov_b32 s{sCNT}, 31")
    e.label("L_fb_loop")
    e.i(f"buffer_load_dwordx4 v[8:11], v{vL16}, {S(sWS,4)}, s{sT1} offen sc1")
    e.i(f"buffer_load_dwordx4 v[12:15], v{vL16}, {S(sWS,4)}, s{sT1} offen offset:2048 sc1")
    e.i(f"s_add_u32 s{sT1}, s{sT1}, 4096")
    e.i("s_waitcnt vmcnt(0)")
    for k in range(2):
        e.i(f"{MF32} {V(NMA,16)}, {V(8+4*k,4)}, {V(QA,4)}, 0")
        e.i(f"{MF32} {V(NMB,16)}, {V(8+4*k,4)}, {V(QB,4)}, 0")
        e.nop(12)
        for r in range(0, 16, 2):
            e.i(f"v_max3_f32 v24, v24, v{NMA+r}, v{NMA+r+1}")
        for r in range(0, 16, 2):
            e.i(f"v_max3_f32 v25, v25, v{NMB+r}, v{NMB+r+1}")
    e.i(f"s_sub_u32 s{sCNT}, s{sCNT}, 1")
    e.i("s_cbranch_scc0 L_fb_loop")
    e.i("v_mov_b32 v26, v24")
    e.i("v_mov_b32 v27, v25")
    e.nop(2)
    e.i("v_permlane32_swap_b32 v24, v26")
    e.i("v_permlane32_swap_b32 v25, v27")
    e.i("v_max_f32 v24, v24, v26")
    e.i("v_max_f32 v25, v25, v27")
    e.i("s_branch L_att_start")

    e.label("L_pre_7")
    inatt[0] = False
    e.vm = []
    e.lg = []
    e.i("s_setprio 3")
    e.i(f"s_bitcmp1_b32 s{sCB}, 0")
    e.i("v_lshlrev_b32 v40, 4, v1")
    e.i("s_waitcnt lgkmcnt(0)")
    e.i(f"s_cselect_b64 {S(sWKV,2)}, s[54:55], s[52:53]")
    e.i(f"s_cselect_b32 s{sTILE}, 0, 6")
    e.i(f"s_load_dword s{sTAG}, s[68:69], {hex(WS_EPOCH)}")
    e.i(f"s_mov_b64 {S(sX,2)}, s[48:49]")
    for i in range(4):
        e.i(f"s_mov_b32 m0, {R2 + 4096*i}")
        e.i(f"s_mov_b32 s{sT0}, {4096*i}")
        for k in range(4):
            e.vmem(f"buffer_load_dwordx4 v40, {S(sWKV,4)}, s{sT0} offen offset:{1024*k} lds", "wkv")
    e.i("s_barrier")
    setup()
    e.i("v_lshrrev_b32 v42, 4, v1")
    e.i("v_and_b32 v43, 15, v1")
    e.i(f"s_lshr_b32 s{sT0}, s{sCB}, 2")
    e.i(f"s_mul_i32 s{sT0}, s{sT0}, {XN_RH}")
    e.i(f"s_bfe_u32 s{sT1}, s{sCB}, 0x10001")
    e.i(f"s_lshl_b32 s{sT1}, s{sT1}, 8")
    e.i(f"s_add_u32 s{sT0}, s{sT0}, s{sT1}")
    e.i(f"s_add_u32 s{sT0}, s{sT0}, {R1}")
    e.i("v_mul_u32_u24 v44, 528, v42")
    e.i("v_lshl_add_u32 v44, v43, 4, v44")
    e.i(f"v_add_u32 v44, s{sT0}, v44")
    e.i("v_lshlrev_b32 v45, 8, v42")
    e.i(f"v_lshl_add_u32 v45, v{vR}, 5, v45")
    e.i(f"v_lshl_add_u32 v45, v{vC}, 3, v45")
    e.i(f"v_add_u32 v45, {R2}, v45")
    for r in range(4):
        e.i(f"v_mov_b32 v{20+r}, 0x3f803f80")
    e.i(f"s_lshl_b32 s{sT2}, s{sRB}, 1")
    e.i(f"s_lshr_b32 s{sOFF2}, s{sCB}, 2")
    e.i(f"s_add_u32 s{sT2}, s{sT2}, s{sOFF2}")
    e.i(f"s_lshl_b32 s{sT2}, s{sT2}, 11")
    e.i(f"s_add_u32 s{sT2}, s{sT2}, s{sT1}")
    e.i(f"v_lshlrev_b32 v46, 3, v{vH}")
    e.i("v_lshl_add_u32 v46, v43, 4, v46")
    e.i(f"s_lshl_b32 s{sOFF2}, s{sRB}, 7")
    e.i(f"s_lshl_b32 s{sOFF}, s{sCB}, 3")
    e.i(f"s_add_u32 s{sOFF2}, s{sOFF2}, s{sOFF}")
    e.i(f"v_mov_b32 v18, {hex(WS_KVF)}")
    e.i(f"v_lshrrev_b32 v{vW1}, 2, v1")
    e.i(f"v_lshlrev_b32 v19, 7, v{vW1}")
    e.i(f"v_lshl_add_u32 v19, v{vC}, 4, v19")
    e.i("v_lshlrev_b32 v31, 11, v1")
    e.i(f"v_mul_u32_u24 v{vW1}, 3584, v{vW1}")
    e.i(f"v_lshl_add_u32 v{vW1}, v{vC}, 4, v{vW1}")
    e.i(f"v_lshlrev_b32 v{vT0}, 6, v{vR}")
    e.i(f"v_lshl_add_u32 v{vT0}, v{vCG}, 5, v{vT0}")
    e.i(f"v_lshl_add_u32 v{vT0}, v{vC}, 3, v{vT0}")
    e.i(f"v_lshl_add_u32 v{vT0}, v{vH}, 9, v{vT0}")
    e.i(f"v_add_u32 v{vT0}, s{sRING}, v{vT0}")
    e.i("s_waitcnt lgkmcnt(0)")
    e.i(f"s_mul_i32 s{sTAG}, s{sTAG}, 0x9e3779b1")
    e.i(f"s_add_u32 s{sTAG}, s{sTAG}, 0x7f4a7c15")
    e.i(f"v_mov_b32 v16, s{sTAG}")
    e.lds(f"ds_write_b32 v6, v16 offset:{CTAG}")
    e.wait(vm="wkv")
    stamp(1, "front")
    for ks in range(16):
        e.lds(f"ds_read_b64_tr_b16 {V(128+4*ks,2)}, v45 offset:{ks*1024}")
        e.lds(f"ds_read_b64_tr_b16 {V(130+4*ks,2)}, v45 offset:{ks*1024+128}")
    lds_signal(CXN)
    e.i(f"v_add_u32 v41, {RE}, v{vSP}")
    e.i(f"s_mov_b32 exec_lo, {hex((1 << NE) - 1)}")
    e.i(f"s_mov_b32 exec_hi, {hex((1 << NE) - 1)}")
    e.lds(f"ds_write_b128 v41, {V(vSD,4)} offset:2048")
    e.i("s_mov_b64 exec, -1")
    lds_poll(CRW, 2, sleep=0)
    for ks in range(16):
        e.lds(f"ds_read_b128 {V(64+4*ks,4)}, v44 offset:{ks*2112}", ("k", ks), guard=False)
    lds_signal(CRC)
    e.i(f"s_bitcmp1_b32 s{sCB}, 0")
    e.i("s_cbranch_scc1 L_w7_v")
    lg_save = list(e.lg)
    def kvloop(isV):
        for ks in range(16):
            W, Xf = V(128+4*ks, 4), V(64+4*ks, 4)
            a, b = ("v[20:23]", W) if isV else (W, "v[20:23]")
            e.i(f"{MF16} v[12:15], {a}, {b}, {'0' if ks == 0 else 'v[12:15]'}")
            e.wait(lg=("k", ks))
            a, b = (Xf, W) if isV else (W, Xf)
            e.i(f"{MF16} v[8:11], {a}, {b}, {'0' if ks == 0 else 'v[8:11]'}")
    kvloop(False)
    stamp(8, "front")
    e.i(f"v_lshl_add_u32 v46, v{vCG}, 9, v46")
    e.i("v_lshl_add_u32 v47, v43, 2, v6")
    lds_poll(CST, 2, sleep=0)
    e.i(f"ds_read2_b32 v[24:25], v47 offset0:{STAT//4} offset1:{STAT//4+16}")
    e.wait_all(lg=True)
    for r in range(4):
        e.i(f"v_fmac_f32 v{8+r}, v24, v{12+r}")
    for r in range(4):
        e.i(f"v_mul_f32 v{8+r}, v25, v{8+r}")
    e.i("v_cvt_pk_bf16_f32 v12, v8, v9")
    e.i("v_cvt_pk_bf16_f32 v13, v10, v11")
    e.i(f"buffer_store_dwordx2 v[12:13], v46, {S(sWS,4)}, s{sT2} offen sc1")
    e.i("v_mul_f32 v17, v8, v8")
    for r in range(1, 4):
        e.i(f"v_fmac_f32 v17, v{8+r}, v{8+r}")
    e.i("v_mov_b32 v15, v17")
    e.nop(2)
    e.i("v_permlane32_swap_b32 v17, v15")
    e.i("v_add_f32 v17, v17, v15")
    e.i("v_mov_b32 v15, v17")
    e.nop(2)
    e.i("v_permlane16_swap_b32 v17, v15")
    e.i("v_add_f32 v17, v17, v15")
    for m in ("row_ror:1", "row_ror:2", "row_ror:4", "row_ror:8"):
        e.nop(2)
        e.i(f"v_max_u32_dpp v17, v17, v17 {m} row_mask:0xf bank_mask:0xf")
    e.i("s_branch L_w7_pub")
    e.label("L_w7_v")
    e.lg = lg_save
    kvloop(True)
    stamp(8, "front")
    e.i(f"v_lshlrev_b32 v46, 4, v43")
    e.i(f"v_lshl_add_u32 v46, v{vH}, 8, v46")
    e.i(f"v_lshl_add_u32 v46, v{vCG}, 3, v46")
    e.i(f"s_add_u32 s{sT2}, s{sT2}, s{sT1}")
    e.i(f"s_add_u32 s{sT2}, s{sT2}, 1024")
    e.i("v_lshl_add_u32 v47, v42, 4, v6")
    lds_poll(CST, 2, sleep=0)
    e.i(f"ds_read_b128 v[24:27], v47 offset:{STAT}")
    e.i(f"ds_read_b128 v[32:35], v47 offset:{STAT+64}")
    e.wait_all(lg=True)
    for r in range(4):
        e.i(f"v_fmac_f32 v{8+r}, v{24+r}, v{12+r}")
    for r in range(4):
        e.i(f"v_mul_f32 v{8+r}, v{32+r}, v{8+r}")
    e.i("v_cvt_pk_bf16_f32 v12, v8, v9")
    e.i("v_cvt_pk_bf16_f32 v13, v10, v11")
    e.i(f"buffer_store_dwordx2 v[12:13], v46, {S(sWS,4)}, s{sT2} offen sc1")
    e.i("v_mov_b32 v17, 0")
    e.label("L_w7_pub")
    stamp(2)
    e.i("s_mov_b64 exec, 1")
    e.wait_all(vm=True)
    e.i(f"buffer_store_dwordx2 v[16:17], v18, {S(sWS,4)}, s{sOFF2} offen sc1")
    e.i("s_mov_b64 exec, -1")
    stamp(9)
    e.c("wait for all 256 K/V producers, pass max |k|^2 on through LDS")
    top, done = lbl("kv"), lbl("kvd")
    e.i(f"s_mov_b32 s{sT1}, {hex(WS_KVF)}")
    e.i(f"s_bfe_u32 s{sT2}, s2, 0x40003")
    e.i(f"s_lshl_b32 s{sT2}, s{sT2}, 7")
    if opt.touch == 3:
        e.c("touch 1/8 of the w1 slice -> L2; the first poll queues behind it")
        if opt.twait == 1:
            lds_poll(CWQ, 1, sleep=1)
        if opt.twait == 2:
            lds_poll(CWI, 1, sleep=1)
        touch_setup(sOFF)
        touches(sOFF, 0, opt.ntouch)
    if opt.kvdelay:
        e.i(f"s_sleep {opt.kvdelay}")
    spin_init()
    e.label(top)
    e.i(f"buffer_load_dwordx4 v[32:35], v19, {S(sWS,4)}, s{sT1} offen sc1")
    e.i(f"buffer_load_dwordx4 v[36:39], v19, {S(sWS,4)}, s{sT1} offen offset:2048 sc1")
    e.wait_all(vm=True)
    if opt.fstart == 3:
        lds_signal(CTL)
    e.i("v_xor_b32 v32, v16, v32")
    e.i("v_xor_b32 v34, v16, v34")
    e.i("v_xor_b32 v36, v16, v36")
    e.i("v_xor_b32 v38, v16, v38")
    e.i("v_or3_b32 v32, v32, v34, v36")
    e.i("v_or_b32 v32, v32, v38")
    e.i("v_cmp_ne_u32 vcc, 0, v32")
    e.i("v_max_u32 v30, v33, v37")
    e.i(f"s_cbranch_vccz {done}")
    spin_tail(top, done, opt.kvsleep)
    e.label(done)
    lds_signal(CKV)
    e.c("blocks 0..6 -> early slots in R2")
    e.i(f"s_mov_b32 s{sOFF2}, 0")
    e.i(f"s_mov_b32 s{sT1}, {RE}")
    kv_dma(NE, sOFF2, sT1, 1, 1)
    if opt.kvtouch:
        e.c("touch 64 of the 1024 K/V lines -> L2 (the workgroups of an XCD cover all of them)")
        e.i(f"buffer_load_dword v106, v31, {S(sWS,4)}, s{sT2} offen sc1")
    for m in ("row_ror:1", "row_ror:2", "row_ror:4", "row_ror:8"):
        e.nop(2)
        e.i(f"v_max_u32_dpp v30, v30, v30 {m} row_mask:0xf bank_mask:0xf")
    e.i("v_mov_b32 v29, v30")
    e.nop(2)
    e.i("v_permlane16_swap_b32 v29, v30")
    e.i("v_max_u32 v30, v29, v30")
    e.i("v_mov_b32 v29, v30")
    e.nop(2)
    e.i("v_permlane32_swap_b32 v29, v30")
    e.i("v_max_u32 v30, v29, v30")
    e.lds(f"ds_write_b32 v6, v30 offset:{CKM}")
    lds_signal(CKV)
    stamp(4, "front")
    e.c("blocks 5..36 -> slots 0..31")
    e.i(f"s_mov_b32 s{sT1}, 0")
    lds_poll(CQ, 4, sleep=0)
    e.vm = []
    e.lds(f"ds_write_b128 v{vSP}, {V(vSD,4)} offset:2048")
    kv_dma(8, sOFF2, sT1, 1, 1)
    e.i(f"s_waitcnt vmcnt({17 if opt.kvtouch else 16})")
    lds_signal(CE7)
    e.i("s_waitcnt vmcnt(0)")
    lds_signal(CA)
    kv_dma(8, sOFF2, sT1, 1, 1)
    for st in range(2):
        kv_dma(8, sOFF2, sT1, 1, 1)
        e.i("s_waitcnt vmcnt(16)")
        e.vm = []
        lds_signal(CA)
    e.i("s_waitcnt vmcnt(0)")
    lds_signal(CA)
    lds_poll(CG, 4, sleep=1)
    e.c("workgroup 0 renews the epoch word: every producer has read it by now")
    e.i("s_cmp_lg_u32 s2, 0")
    e.i("s_cbranch_scc1 L_ffn")
    e.i(f"v_mov_b32 v29, {hex(WS_EPOCH)}")
    e.i("s_mov_b64 exec, 1")
    e.i(f"buffer_store_dword v16, v29, {S(sWS,4)}, 0 offen sc1")
    e.i("s_mov_b64 exec, -1")

    ACC = 8
    NR = opt.NR
    AF, BF = 72, 88
    e.label("L_ffn")
    e.vm = []
    e.lg = []
    e.i("s_setprio 3")
    e.i(f"s_mul_i32 s{sOFF}, s{sCB}, 448")
    e.i(f"s_lshl_b32 s{sT1}, s{sTILE}, 6")
    e.i(f"s_add_u32 s{sOFF}, s{sOFF}, s{sT1}")
    e.c("k order is rotated by 4*(rb&7) steps: the 8 workgroups of an XCD that share this w1 slice take turns missing")
    e.i(f"s_add_u32 s{sE1}, s{sOFF}, {512*3584}")
    e.i(f"s_and_b32 s{sT1}, s{sRB}, {7 if opt.rot & 2 else 0}")
    e.i(f"s_mul_i32 s{sT0}, s{sT1}, {64*3584}")
    e.i(f"s_add_u32 s{sOFF}, s{sOFF}, s{sT0}")
    for g in range(8):
        e.i(f"s_add_u32 s{sT0}, s{sT1}, {g}")
        e.i(f"s_and_b32 s{sT0}, s{sT0}, 7")
        e.i(f"s_mul_i32 s{sT0}, s{sT0}, {4*1056}")
        e.i(f"v_add_u32 v{232+2*g}, s{sT0}, v{vXN0}")
        e.i(f"v_add_u32 v{233+2*g}, s{sT0}, v{vXN1}")
    e.i(f"s_mul_i32 s{sW2T}, s{sF}, {448*1024}")
    e.i(f"s_lshl_b32 s{sT0}, s{sCB}, 7")
    e.i(f"s_add_u32 s{sW2T}, s{sW2T}, s{sT0}")
    e.i(f"s_and_b32 s{sT0}, s{sRB}, 7")
    e.i(f"s_min_u32 s{sT0}, s{sT0}, 6")
    e.i(f"s_lshl_b32 s{sT0}, s{sT0}, 16")
    e.i(f"s_add_u32 s{sW2T}, s{sW2T}, s{sT0}")
    e.i(f"v_lshrrev_b32 v{vTCH}, 2, v1")
    e.i(f"v_lshlrev_b32 v{vTCH}, 10, v{vTCH}")
    e.i(f"v_lshl_add_u32 v{vTCH}, v{vC}, 8, v{vTCH}")
    if opt.epre:
        e.i(f"s_cmp_eq_u32 s{sWAVE}, 7")
        e.i("s_cbranch_scc1 L_no_epre")
        lds_poll(CRC, 1, sleep=1)
        if opt.epre == 2:
            lds_poll(CWI, 1, sleep=1)
        for ks in range(3):
            for a in range(2):
                e.i(f"s_add_u32 m0, s{sRING}, {ks * 2048 + a * 1024}")
                e.i("s_nop 0")
                e.i(f"buffer_load_dwordx4 v{vW1}, {S(sW1,4)}, s{sOFF} offen lds")
                e.i(f"s_add_u32 s{sOFF}, s{sOFF}, {8*3584}")
        e.c("touch the lines of the fourth step as well")
        e.i("v_mul_u32_u24 v125, 3584, v1")
        e.i("s_mov_b64 exec, 0xffff")
        e.i(f"buffer_load_dword v124, v125, {S(sW1,4)}, s{sOFF} offen")
        e.i("s_mov_b64 exec, -1")
        e.label("L_no_epre")
    lds_poll(CXN, 9, sleep=1)
    e.i(f"ds_read_b32 v4, v6 offset:{CTAG}")
    e.i("v_mov_b64 v[208:209], -1")
    e.i("v_mov_b64 v[210:211], -1")
    if opt.fgo == 2:
        lds_poll(CKV, 1, sleep=1)
    if opt.fgo == 3:
        lds_poll(CE7, 1, sleep=1)
    e.wait_all(lg=True)
    e.i(f"v_readfirstlane_b32 s{sTAG}, v4")
    e.i(f"s_setprio {opt.fprio1}")
    stamp(2, "late")
    e.i(f"s_cmp_eq_u32 s{sWAVE}, 7")
    e.i("s_cbranch_scc1 L_ffn1_w7")

    def paced(n):
        if n == 0:
            e.wait_all(lg=True)
        elif len(e.lg) > n:
            e.i(f"s_waitcnt lgkmcnt({n})")
            del e.lg[: len(e.lg) - n]
    def bread(ks, rh):
        e.lds(f"ds_read_b128 {V(BF+8*(ks%2)+4*rh,4)}, v{232+2*(ks//4)+rh} offset:{(ks%4)*1056}", ("f", ks))
    def wrap1():
        e.i(f"s_cmp_ge_u32 s{sOFF}, s{sE1}")
        e.i(f"s_cselect_b32 s{sT0}, {512*3584}, 0")
        e.i(f"s_sub_u32 s{sOFF}, s{sOFF}, s{sT0}")
    def w2_touch():
        if opt.warm2:
            e.c("touch 1/7 of this wave's w2 slice (8 workgroups of an XCD share it) -> L2")
            e.vmem(f"buffer_load_dword v124, v{vTCH}, {S(sW2,4)}, s{sW2T} offen")
    def marker(hd):
        e.vmem(f"buffer_store_dwordx4 v[208:211], v{vL16}, {S(sWS,4)}, s{sOB} offen offset:{2048*hd} sc1", "clr")
    def e1():
        e.c("waves 4..6: blocks 37..51 -> slots 0..14 once attention has read them")
        lds_poll(CP1, 4, sleep=2)
        e.i(f"s_lshl_b32 s{sU0}, s{sF}, 11")
        e.i(f"s_add_u32 s{sU0}, s{sU0}, {(NE+32)*2048}")
        e.i(f"s_mul_i32 s{sU1}, s{sF}, {KVS}")
        kv_dma(5, sU0, sU1, 3, 3)
    def h_store(tiles):
        lds_signal(CX)
        stamp(3)
        e.i("s_setprio 3")
        e.i(f"s_mul_i32 s{sT0}, s{sRB}, 112")
        e.i(f"s_mul_i32 s{sT1}, s{sCB}, 14")
        e.i(f"s_add_u32 s{sT0}, s{sT0}, s{sT1}")
        e.i(f"s_lshl_b32 s{sT1}, s{sTILE}, 1")
        e.i(f"s_add_u32 s{sT0}, s{sT0}, s{sT1}")
        e.i(f"s_lshl_b32 s{sT0}, s{sT0}, 11")
        e.i(f"s_add_u32 s{sOFF}, s{sT0}, {WS_H}")
        e.i(f"s_add_u32 s{sOFF2}, s{sOFF}, 4096")
        if len(tiles) == 2 and opt.e1pos == 0:
            e1()
        e.c("mark the o fragments of attention wave f as not yet written")
        if not opt.mkearly:
            marker(0); marker(1)
        for ct in tiles:
            for rh in range(2):
                a = ACC + 16 * (rh * 2 + ct)
                for j in range(8):
                    e.i(f"v_cvt_pk_bf16_f32 v{a+j}, v{a+2*j}, v{a+2*j+1}")
                for j in range(8):
                    e.i(f"v_pk_max_i16 v{a+j}, v{a+j}, 0")
                for s in range(2):
                    e.vmem(f"buffer_store_dwordx4 {V(a+4*s,4)}, v{vL16}, {S(sWS,4)}, s{sOFF2 if ct else sOFF} offen offset:{(2*s+rh)*1024} sc1", "hst")
    def ring_dma(ks, srd, v, step):
        for a in range(2):
            e.i(f"s_add_u32 m0, s{sRING}, {(ks % NR) * 2048 + a * 1024}")
            e.i("s_nop 0")
            e.vmem(f"buffer_load_dwordx4 v{v}, {S(srd,4)}, s{sOFF} offen lds", ("w", ks))
            e.i(f"s_add_u32 s{sOFF}, s{sOFF}, {step}")
    def tr2(ks, i, tstride):
        ct, t = i >> 1, i & 1
        e.lds(f"ds_read_b64_tr_b16 {V(AF+8*(ks%2)+4*ct+2*t,2)}, v{vT1 if ct else vT0} offset:{(ks%NR)*2048+tstride*t}", ("f", ks))

    e.c("FFN1, waves 4..6: two column tiles x two row halves")
    if opt.fp_n:
        e.i(f"s_setprio {opt.fp_early}")
    A3, B3 = 72, 96
    LA = 1 if opt.la1 else 2
    def dma1(ks, a):
        e.i(f"s_add_u32 m0, s{sRING}, {(ks % 3) * 2048 + a * 1024}")
        e.i("s_nop 0")
        e.vmem(f"buffer_load_dwordx4 v{vW1}, {S(sW1,4)}, s{sOFF} offen lds", ("w", ks))
        e.i(f"s_add_u32 s{sOFF}, s{sOFF}, {8*3584}")
        if a == 1 and ks % 4 == 3:
            wrap1()
    def br3(ks, rh):
        e.lds(f"ds_read_b128 {V(B3+8*(ks%3)+4*rh,4)}, v{232+2*(ks//4)+rh} offset:{(ks%4)*1056}", ("f", ks))
    def tr3(ks, i):
        ct, t = i >> 1, i & 1
        e.lds(f"ds_read_b64_tr_b16 {V(A3+8*(ks%3)+4*ct+2*t,2)}, v{vT1 if ct else vT0} offset:{(ks%3)*2048+512*t}", ("f", ks))
    if opt.epre:
        e.vm = [("w", ks) for ks in range(3) for _ in range(2)] + ["t"]
    else:
        for ks in range(3):
            dma1(ks, 0); dma1(ks, 1)
    for ks in range(LA):
        br3(ks, 0); br3(ks, 1)
        e.wait(vm=("w", ks))
        for i in range(4):
            tr3(ks, i)
    for ks in range(32):
        s = ks % 3
        e.wait(lg=("f", ks))
        n = ks + LA
        dense = ks < opt.dense
        for i in range(4):
            rh, ct = i >> 1, i & 1
            a = ACC + 16 * i
            e.i(f"{MF32} {V(a,16)}, {V(A3+8*s+4*ct,4)}, {V(B3+8*s+4*rh,4)}, {'0' if ks == 0 else V(a,16)}")
            if i == 0 and ks + 3 < 32:
                dma1(ks + 3, 0)
                dma1(ks + 3, 1)
            if n < 32:
                if i == 0:
                    br3(n, 0); br3(n, 1)
                if i == 1:
                    e.wait(vm=("w", n))
                if dense:
                    if i in (1, 2):
                        tr3(n, 2 * i - 2); tr3(n, 2 * i - 1)
                else:
                    if i == 1:
                        tr3(n, 0); tr3(n, 1)
                    if i >= 2:
                        tr3(n, i)
                    paced(opt.pace1)
        if opt.mkearly and ks in (14, 20):
            marker(ks // 20)
        if opt.mid2 and ks in (0, 4, 8, 12):
            stamp({0: 1, 4: 8, 8: 9, 12: 4}[ks])
        if opt.fp_n and ks == opt.fp_n:
            e.i(f"s_setprio {opt.fprio1}")
        if opt.mid and ks in (0, 4, 8, 12, 16, 20):
            stamp(4 + ks // 4)
    if opt.mid:
        lds_signal(CX)
        stamp(3)
        dump_stamps()
        e.i("s_endpgm")
    h_store([0, 1])
    if opt.e1pos == 1:
        e1()
    e.i("s_branch L_ffn_join")

    e.label("L_ffn1_w7")
    e.vm = []
    e.lg = []
    e.c("FFN1, wave 7: one column tile")
    def dma7(ks):
        e.i(f"s_add_u32 m0, s{sRING}, {(ks % 8) * 1024}")
        e.i("s_nop 0")
        e.vmem(f"buffer_load_dwordx4 v{vW1}, {S(sW1,4)}, s{sOFF} offen lds", ("w", ks))
        e.i(f"s_add_u32 s{sOFF}, s{sOFF}, {16*3584}")
        if ks % 4 == 3:
            wrap1()
    def tr7(ks, t):
        e.lds(f"ds_read_b64_tr_b16 {V(AF+8*(ks%2)+2*t,2)}, v{vT0} offset:{(ks%8)*1024+256*t}", ("f", ks))
    if opt.t7:
        e.i(f"s_lshr_b32 s{sT1}, s2, 3")
        e.i(f"s_and_b32 s{sT2}, s{sCB}, 1")
        e.i(f"s_lshl_b32 s{sT2}, s{sT2}, 7")
        e.i(f"s_mul_i32 s{sU0}, s{sT1}, {56*1024}")
        e.i(f"s_add_u32 s{sU0}, s{sU0}, s{sT2}")
        for i in range(4):
            e.i(f"buffer_load_dword v124, v{vTCH}, {S(sW2,4)}, s{sU0} offen")
            e.i(f"s_add_u32 s{sU0}, s{sU0}, {14*1024}")
    e.i(f"s_setprio {opt.p7}")
    for ks in range(8):
        dma7(ks)
    bread(0, 0); bread(0, 1)
    e.wait(vm=("w", 0))
    tr7(0, 0); tr7(0, 1)
    for ks in range(32):
        s = ks % 2
        e.wait(lg=("f", ks))
        if ks + 8 < 32:
            dma7(ks + 8)
        if ks + 1 < 32:
            e.wait(vm=("w", ks + 1))
        for rh in range(2):
            a = ACC + 32 * rh
            e.i(f"{MF32} {V(a,16)}, {V(AF+8*s,4)}, {V(BF+8*s+4*rh,4)}, {'0' if ks == 0 else V(a,16)}")
            if ks + 1 < 32:
                bread(ks + 1, rh)
                tr7(ks + 1, rh)
                if rh == 0 and ks >= opt.dense:
                    paced(opt.pace1)
        if opt.mkearly and ks in (14, 20):
            marker(ks // 20)
    h_store([0])

    e.label("L_ffn_join")
    e.i(f"s_lshl_b32 s{sT2}, s{sCB}, 7")
    e.i(f"s_lshl_b32 s{sT1}, s{sF}, 2")
    e.i(f"s_add_u32 s{sT2}, s{sT2}, s{sT1}")
    e.i(f"s_add_u32 s{sT2}, s{sT2}, s{sFLG}")
    e.i("v_mov_b32 v72, 0")
    e.i(f"v_mov_b32 v73, s{sTAG}")
    e.i(f"v_add_u32 v{vSP}, {R1}, v{vSP}")
    e.i(f"s_lshl_b32 s{sRING}, s{sF}, 14")
    e.i(f"s_add_u32 s{sRING}, s{sRING}, {RB2}")
    e.i(f"v_lshl_add_u32 v{vTR}, v{vH}, 9, v{vTR}")
    e.c("accumulator i holds output tile i ^ f, so that accumulator 0 is this wave's own tile")
    e.i(f"s_and_b32 s{sT1}, s{sF}, 1")
    e.i(f"s_lshl_b32 s{sT1}, s{sT1}, 6")
    e.i(f"v_xor_b32 v{vT0}, s{sT1}, v{vTR}")
    e.i(f"v_add_u32 v{vT0}, s{sRING}, v{vT0}")
    e.i(f"v_xor_b32 v{vT1}, 64, v{vT0}")
    e.i(f"s_lshr_b32 s{sT1}, s{sF}, 1")
    e.i(f"s_lshl_b32 s{sT1}, s{sT1}, 10")
    e.i(f"v_add_u32 v0, s{sT1}, v{vL16}")
    e.i("v_xor_b32 v2, 0x400, v0")
    e.i("v_bfe_u32 v122, v1, 2, 3")
    e.i("v_lshlrev_b32 v122, 7, v122")
    e.i(f"v_lshl_add_u32 v122, v{vC}, 2, v122")
    e.i("v_lshlrev_b32 v123, 9, v1")
    e.i(f"s_mov_b32 s{sW2T}, s{sT2}")
    def flag_out():
        e.i("s_mov_b64 exec, 1")
        e.vmem(f"buffer_store_dword v73, v72, {S(sWS,4)}, s{sW2T} offen sc1")
        e.i("s_mov_b64 exec, -1")
        lds_signal(CL1)
        stamp(4, "late")
    if not opt.prefirst:
        e.wait_all(vm=True)
        flag_out()
    e.i(f"s_mul_i32 s{sOFF}, s{sF}, {448*1024}")
    e.i(f"s_lshl_b32 s{sT0}, s{sCB}, 7")
    e.i(f"s_add_u32 s{sOFF}, s{sOFF}, s{sT0}")
    e.i(f"s_mov_b32 s{sE1}, s{sOFF}")
    e.i(f"s_cmp_eq_u32 s{sWAVE}, 7")
    e.i("s_cbranch_scc1 L_no_e1")
    e.c("touch 1/32 of the w2 / wo lines this XCD needs -> L2 (waves 4,5: w2, wave 6: wo)")
    e.i(f"s_lshr_b32 s{sT1}, s2, 3")
    e.i(f"s_and_b32 s{sT2}, s{sCB}, 1")
    e.i(f"s_lshl_b32 s{sT2}, s{sT2}, 7")
    e.i(f"s_cmp_eq_u32 s{sWAVE}, 6")
    e.i("s_cbranch_scc1 L_t_wo")
    e.i(f"s_lshl_b32 s{sT1}, s{sT1}, 1")
    e.i(f"s_add_u32 s{sT1}, s{sT1}, s{sF}")
    e.i(f"s_mul_i32 s{sT1}, s{sT1}, {28*1024}")
    e.i(f"s_add_u32 s{sT1}, s{sT1}, s{sT2}")
    if not opt.t7:
        e.i(f"buffer_load_dword v124, v{vTCH}, {S(sW2,4)}, s{sT1} offen")
        e.i(f"s_add_u32 s{sT1}, s{sT1}, {12*1024}")
        e.i(f"buffer_load_dword v124, v{vTCH}, {S(sW2,4)}, s{sT1} offen")
    e.i("s_branch L_no_e1")
    e.label("L_t_wo")
    e.i(f"s_lshl_b32 s{sT1}, s{sT1}, 14")
    e.i(f"s_add_u32 s{sT1}, s{sT1}, s{sT2}")
    e.i(f"buffer_load_dword v124, v{vTCH}, {S(sWO,4)}, s{sT1} offen")
    e.label("L_no_e1")
    e.c("blocks 51..63 -> R1 once xn is dead")
    lds_poll(CX, 4, sleep=4)
    e.i(f"s_lshl_b32 s{sOFF2}, s{sF}, 11")
    e.i(f"s_add_u32 s{sOFF2}, s{sOFF2}, {(NE+47)*2048}")
    e.i(f"s_mul_i32 s{sT1}, s{sF}, {KVS}")
    e.i(f"s_add_u32 s{sT1}, s{sT1}, {R1}")
    e.vm = []
    kv_dma(3, sOFF2, sT1, 4, 4)
    e.i("s_mov_b32 exec_lo, 0xfff")
    e.i("s_mov_b32 exec_hi, 0xfff")
    e.lds(f"ds_write_b128 v{vSP}, {V(vSD,4)} offset:2048")
    e.i("s_mov_b64 exec, -1")
    stamp(5)
    if opt.exit_at == 5:
        e.wait_all(vm=True)
        lds_signal(CH2)
    exit_if(5)
    e.i(f"s_lshr_b32 s{sT2}, s{sCB}, 1")
    for c in range(4):
        e.i(f"s_xor_b32 s{sCH+c}, s{sT2}, {c}")
        e.i(f"s_mul_i32 s{sCH+c}, s{sCH+c}, {7*2048}")
    e.i(f"s_mul_i32 s{sT0}, s{sRB}, 112")
    e.i(f"s_mul_i32 s{sT1}, s{sF}, 28")
    e.i(f"s_add_u32 s{sT0}, s{sT0}, s{sT1}")
    e.i(f"s_lshl_b32 s{sT0}, s{sT0}, 11")
    e.i(f"s_add_u32 s{sE2}, s{sT0}, {WS_H}")
    e.i(f"s_lshl_b32 s{sT0}, s{sF}, 3")
    e.i(f"s_and_b32 s{sT1}, s{sCB}, 4")
    e.i(f"s_add_u32 s{sT1}, s{sT1}, s{sT0}")
    e.i(f"s_lshl_b32 s4, 15, s{sT1}")
    e.i(f"s_lshl_b32 s5, 0xff, s{sT0}")
    def set_w(c):
        e.i(f"s_lshl_b32 s{sOFF}, s{sCH+c}, 3")
        e.i(f"s_add_u32 s{sOFF}, s{sOFF}, s{sE1}")
    def set_h(c):
        e.i(f"s_add_u32 s{sOFF2}, s{sCH+c}, s{sE2}")
    set_w(0)
    set_h(0)
    PH = opt.ph
    def wo_dma():
        e.c("wo slice -> R0 by DMA once attention has left it")
        e.i("s_setprio 3")
        lds_poll(CR0, 4, sleep=8)
        e.i(f"s_lshl_b32 s{sU0}, s{sF}, 17")
        e.i(f"s_lshl_b32 s{sU1}, s{sCB}, 7")
        e.i(f"s_add_u32 s{sU0}, s{sU0}, s{sU1}")
        e.i(f"s_lshl_b32 s{sU1}, s{sF}, 14")
        e.i(f"s_lshl_b32 s{sT1}, s{sRB}, {11 if opt.rot & 8 else 14}")
        for i in range(16):
            e.i(f"s_and_b32 s{sT1}, s{sT1}, 0x3fff")
            e.i(f"s_add_u32 m0, s{sU1}, s{sT1}")
            e.i(f"s_lshl_b32 s{sT0}, s{sT1}, 3")
            e.i(f"s_add_u32 s{sT0}, s{sT0}, s{sU0}")
            e.vmem(f"buffer_load_dwordx4 v{vSW}, {S(sWO,4)}, s{sT0} offen lds", "wo")
            e.i(f"s_add_u32 s{sT1}, s{sT1}, 1024")
    def red_addr():
        e.i(f"v_add_u32 v208, s{sRING}, v{vL16}")
        for i in (1, 2, 3):
            e.i(f"s_xor_b32 s{sT0}, s{sF}, {i}")
            e.i(f"s_lshl_b32 s{sT0}, s{sT0}, 14")
            e.i(f"s_add_u32 s{sT0}, s{sT0}, {RB2 + (i-1)*4096}")
            e.i(f"v_add_u32 v{208+i}, s{sT0}, v{vL16}")
        e.i(f"s_lshl_b32 s{sT0}, s{sF}, 2")
        e.i(f"v_add_u32 v212, s{sT0}, v6")
        e.i(f"s_mov_b32 s{sT1}, {hex(f32bits(-math.log2(math.e)))}")
    HR = [96, 104, 112, 232, 240, 248, 192, 200][:PH]
    NP = opt.npre
    def dma2(ks, a):
        e.i(f"s_add_u32 m0, s{sRING}, {(ks % 8) * 2048 + a * 1024}")
        e.i("s_nop 0")
        e.vmem(f"buffer_load_dwordx4 v{vSW}, {S(sW2,4)}, s{sOFF} offen lds", ("w", ks))
        e.i(f"s_add_u32 s{sOFF}, s{sOFF}, 8192")
        if a == 1 and ks % 7 == 6 and ks < 27:
            set_w(ks // 7 + 1)
    def hl2(ks, rh):
        r = HR[ks % PH] + 4 * rh
        e.vmem(f"buffer_load_dwordx4 {V(r,4)}, v{2 if rh else 0}, {S(sWS,4)}, s{sOFF2} offen sc1", ("h", ks))
        if rh:
            e.i(f"s_add_u32 s{sOFF2}, s{sOFF2}, 2048")
            if ks % 7 == 6 and ks < 27:
                set_h(ks // 7 + 1)
    def areg(ks):
        return 128 + 8 * ks if ks < NP else A3 + 8 * (ks % 3)
    def t32(ks, i):
        ct, t = i >> 1, i & 1
        e.lds(f"ds_read_b64_tr_b16 {V(areg(ks)+4*ct+2*t,2)}, v{vT1 if ct else vT0} offset:{(ks%8)*2048+1024*t}", ("f", ks))
    e.c("while h is in flight: w2 stages -> ring -> fragments in registers, ring refilled")
    for ks in range(8):
        dma2(ks, 0); dma2(ks, 1)
    if opt.prefirst:
        e.i(f"s_waitcnt vmcnt({len(e.vm) + opt.pslack})")
        flag_out()
    e.wait(vm=("kv", 2))
    lds_signal(CH2)
    for ks in range(max(NP, 2)):
        e.wait(vm=("w", ks))
        for i in range(4):
            t32(ks, i)
        if 1 <= ks <= NP:
            e.wait(lg=("f", ks - 1))
            dma2(ks + 7, 0); dma2(ks + 7, 1)
    if NP >= 2:
        e.wait(lg=("f", NP - 1))
        dma2(NP + 7, 0); dma2(NP + 7, 1)
    stamp(9, "late")
    top, done = lbl("fp"), lbl("fpd")
    spin_init()
    e.label(top)
    e.i(f"buffer_load_dword v124, v122, {S(sWS,4)}, s{sFLG} offen sc1")
    e.wait_all(vm=True)
    e.i(f"v_cmp_ne_u32 vcc, s{sTAG}, v124")
    e.i(f"s_and_b32 s{sT0}, vcc_lo, s4")
    e.i(f"s_cbranch_scc0 {done}")
    spin_tail(top, done, 4)
    e.label(done)
    stamp(6)
    e.i(f"s_setprio {opt.fprio}")
    for ks in range(PH - 1):
        hl2(ks, 0); hl2(ks, 1)
    for ks in range(28):
        if ks == 12 - PH:
            e.vmem(f"buffer_load_dword v124, v122, {S(sWS,4)}, s{sFLG} offen sc1", "fl")
        if ks == 15 - PH:
            e.c("the second producer must have published before its half is read")
            e.wait(vm="fl")
            e.i("s_setprio 3")
            e.i(f"v_cmp_ne_u32 vcc, s{sTAG}, v124")
            e.i(f"s_and_b32 s{sT0}, vcc_lo, s5")
            e.i("s_cbranch_scc1 L_slow_h")
            e.label("L_back_h")
            e.i(f"s_setprio {opt.fprio}")
        if ks == opt.hold:
            e.c("the operands of the last steps are on chip: run them after attention, under the o hand-off")
            e.i("s_setprio 3")
            e.wait_all(vm=True)
            if opt.wo_at + 3 >= opt.hold:
                lds_signal(CWO)
            red_addr()
            lds_poll(CAD, 4, sleep=1)
            e.i(f"s_setprio {opt.hp}")
        e.wait(lg=("f", ks), vm=("h", ks))
        e.wait(vm=("w", ks + 2))
        for i in range(4):
            rh, ct = i >> 1, i & 1
            a = ACC + 16 * i
            e.i(f"{MF32} {V(a,16)}, {V(areg(ks)+4*ct,4)}, {V(HR[ks%PH]+4*rh,4)}, {'0' if ks == 0 else V(a,16)}")
            if ct == 0:
                if ks >= NP and ks + 8 < 28:
                    dma2(ks + 8, rh)
            elif ks + PH - 1 < 28:
                hl2(ks + PH - 1, rh)
            if max(NP, 2) <= ks + 2 < 28:
                t32(ks + 2, i)
                if opt.dense2 <= ks < min(opt.late2, opt.hold):
                    paced(opt.pace2)
        if ks == opt.wo_at:
            wo_dma()
            e.i(f"s_setprio {opt.fprio}")
        if ks == min(opt.wo_at + 3, 27) and opt.wo_at + 3 < opt.hold:
            e.wait(vm="wo")
            lds_signal(CWO)
    stamp(7)
    exit_if(7)
    e.i("s_setprio 3")
    if opt.wo_at >= 28:
        wo_dma()
    e.c("f partials: accumulators 1..3 -> own ring; wave f^i picks up accumulator i")
    if opt.hold > 27:
        red_addr()
    e.nop(10)
    e.i(f"s_setprio {opt.fprio}")
    for i in (1, 2, 3):
        for q in range(4):
            e.lds(f"ds_write_b128 v208, {V(ACC+16*i+4*q,4)} offset:{(i-1)*4096+q*1024}")
    lds_signal(CF)
    e.i("s_setprio 3")
    stamp(8, "late")
    lds_poll(CF, 4, sleep=0)
    for i in (1, 2, 3):
        for q in range(4):
            e.lds(f"ds_read_b128 {V(ACC+16*i+4*q,4)}, v{208+i} offset:{q*1024}", ("r", i))
    if opt.glate and opt.hold > 27:
        lds_poll(CAD, 4, sleep=4)
    for i in (1, 2, 3):
        e.wait(lg=("r", i))
        for r in range(0, 16, 2):
            e.i(f"v_pk_add_f32 {V(ACC+r,2)}, {V(ACC+r,2)}, {V(ACC+16*i+r,2)}")
    for r in range(16):
        e.i(f"v_mul_f32 v{ACC+16+r}, s{sT1}, v{ACC+r}")
    for r in range(16):
        e.i(f"v_exp_f32 v{ACC+16+r}, v{ACC+16+r}")
    for r in range(16):
        e.i(f"v_add_f32 v{ACC+16+r}, 1.0, v{ACC+16+r}")
    for r in range(16):
        e.i(f"v_rcp_f32 v{ACC+16+r}, v{ACC+16+r}")
    for r in range(16):
        e.i(f"v_mul_f32 v{ACC+r}, v{ACC+r}, v{ACC+16+r}")
    for j in range(8):
        e.i(f"v_cvt_pk_bf16_f32 v{ACC+j}, v{ACC+2*j}, v{ACC+2*j+1}")
    e.lds(f"ds_write_b128 v208, {V(ACC,4)} offset:12288")
    e.lds(f"ds_write_b128 v208, {V(ACC+4,4)} offset:13312")
    lds_signal(CGD, va=212)
    stamp(10)
    dump_stamps()
    e.label("L_end")
    e.i("s_endpgm")
    e.label("L_slow_h")
    spin_init()
    e.label("L_slow_hx")
    e.i(f"buffer_load_dword v124, v122, {S(sWS,4)}, s{sFLG} offen sc1")
    e.i("s_waitcnt vmcnt(0)")
    e.i(f"v_cmp_ne_u32 vcc, s{sTAG}, v124")
    e.i(f"s_and_b32 s{sT0}, vcc_lo, s5")
    e.i("s_cbranch_scc0 L_back_h")
    spin_tail("L_slow_hx", "L_back_h", 4)
    e.label("L_code_end")
    return e

DOC = """;
"""

def wrap(e):
    hdr = open("cdna_kernels/%s.s.ref" % NAME).read().split("\n")
    top = [l for l in hdr if l.startswith(";") and "@launch" not in l]
    out = "\n".join(top) + f"\n; @launch grid=(256,1,1) block=(512,1,1) lds={LDS_BYTES}\n"
    out += DOC
    out += f""".amdgcn_target "amdgcn-amd-amdhsa--gfx950"
.text
.globl {NAME}_kernel
.p2align 8
.type {NAME}_kernel,@function
{NAME}_kernel:
"""
    out += e.text()
    out += f""".section .rodata,"a"
.p2align 6
.amdhsa_kernel {NAME}_kernel
  .amdhsa_next_free_vgpr 256
  .amdhsa_next_free_sgpr 102
  .amdhsa_accum_offset 256
  .amdhsa_group_segment_fixed_size 0
  .amdhsa_kernarg_size 88
  .amdhsa_user_sgpr_count 2
  .amdhsa_user_sgpr_kernarg_segment_ptr 1
  .amdhsa_system_sgpr_workgroup_id_x 1
.end_amdhsa_kernel
"""
    return out

if __name__ == "__main__":
    opt = Opt()
    outp = sys.argv[1]
    for a in sys.argv[2:]:
        k, v = a.split("=")
        assert hasattr(opt, k), k
        setattr(opt, k, type(getattr(opt, k))(eval(v)))
    e = gen(opt)
    bad = check_cfg(e.lines)
    print("hazards:", bad, "lines:", len(e.lines), "lds", LDS_BYTES)
    open(outp, "w").write(wrap(e))
```

```python
import sys, math, struct
from asmlib import *

NAME = "recurrent_scan__grouped_kv_mqa__dense_activation_relu__prompt"
MF32 = "v_mfma_f32_32x32x16_bf16"
MF16 = "v_mfma_f32_16x16x32_bf16"
SMF = "v_smfmac_f32_32x32x32_bf16"

def f32bits(x):
    return struct.unpack("<I", struct.pack("<f", x))[0]

KVS = 2080
R0 = 0
R1 = 32 * KVS
XN_RH = 64 * 528
R2 = R1 + 2 * XN_RH
R4 = R2 + 28928
LDS_BYTES = R4 + 256
(CXN, CST, CWQ, CQ, CKV, CKM, CTAG, CA, CA2, CX, CH2, CR0, CWO, CAD, CF, CE0, CE1, CRW, CRC, CXI, CP1, CL1, CG, CTL, CWI, CGD, CGD1, CGD2, CGD3, CE7, COD, CHN) = [4 * i for i in range(32)]
RE = R2 + 18432
NE = 5
RB2 = R1 + 12 * KVS
assert RB2 % 128 == 0 and RB2 + 65536 <= R4
STAT = 128
assert R2 % 128 == 0
WS_KV = 0
WS_EPOCH = 0x30000
WS_KVF = 0x38000
WS_HF = 0x40000
WS_O = 0x100000
WS_H = 0x400000
WS_STAMP = 0x1000000
sX, sWQ, sWKV, sWO, sW1, sW2, sOUT, sWS = 8, 12, 16, 20, 24, 28, 32, 40
sMASK, sF, sSPIN, sFLG = 44, 45, 46, 47
sWAVE, sRB, sCB, sT0, sT1, sT2, sOFF, sOFF2, sCNT, sSEG = 70, 71, 72, 73, 74, 75, 76, 77, 78, 79
sRG, sOB, sTAG, sTILE, sRING, sW2T, sU0, sU1, sE1, sE2, sXO = 3, 6, 7, 36, 37, 38, 39, 60, 61, 62, 63
sCH = 64
sOA = 52
sSTAMP = 80
vH, vCG, vR, vC, vTR, vXN0, vXN1, vSW, vW1, vL16, vT0, vT1, vSP = 212, 213, 214, 215, 216, 217, 218, 219, 220, 221, 222, 223, 224
vTCH = 225
vSD = 228

class Opt:
    stamps = False
    front = False
    force_fallback = False
    thr = 40.0
    exit_at = 0
    spin = 0x20000
    pace1 = 0
    pace2 = 0
    kvsleep = 1
    kvdelay = 26
    kvtouch = True
    warm2 = True
    touch = 0
    fstart = 2
    twq = True
    wqdepth = 16
    fprio = 0
    outf = ''
    echo = ()
    emul = 1
    NR = 4
    dense = 32
    twait = 1
    nomf2 = False
    nold2 = 0
    ctouch = True
    mid = False
    wo_at = 16
    ntouch = 4
    full = True
    stouch = 0
    late2 = 28
    xr_early = True
    fprio1 = 0
    rot = 14
    la1 = True
    dyn = True
    osleep = 2
    hint = True
    hsleep = 2
    pos = (1, 3, 9)
    fgo = 1
    glate = True
    p7 = 0
    mimic = True
    noatt_tail = False
    jst = False
    e1pos = 1
    t7 = False
    npre = 4
    ph = 8
    pipe = 0
    prefirst = False
    hold = 21
    mkearly = True
    early_poll = 0
    epre = 0
    ln2 = True
    wqsplit = True
    centry = True
    wqafter = 0
    mid2 = False
    fp_early = 0
    fp_n = 0
    wide = True
    ehint = 6
    hp = 3
    lg2 = False
    midpoll = -1
    nobar = 1
    g1 = 8
    win = ()
    ord1 = 0
    rdalt = True
    lowp = 15
    loose = True
    dry2 = False
    dryq = False
    onep = False
    pslack = 0
    hfl = 'sc1'
    t2at = 99
    wot = True
    dense2 = 0
    htouch = False
    lnclk = False

def gen(opt):
    e = E()
    uid = [0]
    inatt = [True]
    def lbl(p):
        uid[0] += 1
        return f"L_{p}_{uid[0]}"
    def stamp(k, when=None):
        if when == "front" and not opt.front: return
        if when == "late" and opt.mid2 and not inatt[0] and k in (4, 8, 9): return
        if when == "late" and (opt.front or (opt.jst and k in (1, 2, 3) and inatt[0])): return
        if opt.stamps:
            e.i(f"s_memrealtime {S(sSTAMP+2*k,2)}")
    def cstamp(k):
        if opt.stamps:
            e.i(f"s_memtime {S(sSTAMP+2*k,2)}")
    def dump_stamps():
        if not opt.stamps or opt.echo:
            return
        e.wait_all(vm=True, lg=True)
        e.i("v_mov_b32 v2, 0")
        e.i("v_mbcnt_lo_u32_b32 v1, -1, 0")
        e.i("v_mbcnt_hi_u32_b32 v1, -1, v1")
        for k in range(22):
            e.i(f"v_writelane_b32 v2, s{sSTAMP+k}, {k}")
        e.i(f"s_getreg_b32 s{sT0}, hwreg(HW_REG_XCC_ID)")
        e.i(f"v_writelane_b32 v2, s{sT0}, 22")
        e.i(f"s_lshl_b32 s{sT0}, s2, 3")
        e.i(f"s_add_u32 s{sT0}, s{sT0}, s{sWAVE}")
        e.i(f"s_lshl_b32 s{sT0}, s{sT0}, 8")
        e.i(f"s_add_u32 s{sT0}, s{sT0}, {WS_STAMP}")
        e.i("v_lshlrev_b32 v3, 2, v1")
        e.i(f"buffer_store_dword v2, v3, {S(sWS,4)}, s{sT0} offen")
    def exit_if(k):
        if opt.exit_at == k:
            dump_stamps()
            e.i("s_endpgm")
    def spin_init(mult=1):
        e.i(f"s_mov_b32 s{sSPIN}, {hex(opt.spin*mult)}")
    def spin_tail(top, done, sleep):
        e.i(f"s_sub_u32 s{sSPIN}, s{sSPIN}, 1")
        e.i(f"s_cbranch_scc1 {done}")
        if sleep:
            e.i(f"s_sleep {sleep}")
        e.i(f"s_branch {top}")
    def lds_signal(off, va=6):
        e.i("s_mov_b64 exec, 1")
        e.lds(f"ds_add_u32 v{va}, v7 offset:{off}")
        e.i("s_mov_b64 exec, -1")
    def lds_poll(off, n, vt=5, sleep=1, va=6):
        top, done = lbl("lp"), lbl("lpd")
        spin_init(16)
        e.label(top)
        e.i(f"ds_read_b32 v{vt}, v{va} offset:{off}")
        e.wait_all(lg=True)
        e.i(f"v_readfirstlane_b32 s{sT0}, v{vt}")
        e.i(f"s_cmp_ge_u32 s{sT0}, {n}")
        e.i(f"s_cbranch_scc1 {done}")
        spin_tail(top, done, sleep)
        e.label(done)
    def kv_dma(n, soff, sl, gstep, lstep):
        for i in range(n):
            e.i(f"s_mov_b32 m0, s{sl}")
            e.i(f"s_add_u32 s{sl}, s{sl}, {lstep*KVS}")
            for p in range(2):
                e.vmem(f"buffer_load_dwordx4 v{vL16}, {S(sWS,4)}, s{soff} offen offset:{1024*p} sc1 lds", ("kv", i))
            e.i(f"s_add_u32 s{soff}, s{soff}, {gstep*2048}")
    def setup():
        e.i(f"s_mov_b64 {S(sWQ,2)}, s[50:51]")
        e.i(f"s_mov_b64 {S(sWO,2)}, s[56:57]")
        e.i(f"s_mov_b64 {S(sW1,2)}, s[60:61]")
        e.i(f"s_mov_b64 {S(sW2,2)}, s[62:63]")
        e.i(f"s_mov_b64 {S(sOUT,2)}, s[64:65]")
        e.i(f"s_mov_b64 {S(sWS,2)}, s[68:69]")
        e.i(f"s_lshl_b32 s{sFLG}, s{sRB}, 10")
        e.i(f"s_add_u32 s{sFLG}, s{sFLG}, {hex(WS_HF)}")
        e.i(f"s_mul_i32 s{sRING}, s{sF}, 6144")
        e.i(f"s_add_u32 s{sRING}, s{sRING}, {R2}")
        e.i(f"s_lshl_b32 s{sT0}, s{sRB}, 5")
        e.i(f"s_lshl_b32 s{sT1}, s{sCB}, 2")
        e.i(f"s_add_u32 s{sT0}, s{sT0}, s{sT1}")
        e.i(f"s_and_b32 s{sT1}, s{sF}, 1")
        e.i(f"s_lshl_b32 s{sXO}, s{sT1}, 6")
        e.i(f"s_lshl_b32 s{sT1}, s{sT1}, 1")
        e.i(f"s_add_u32 s{sT0}, s{sT0}, s{sT1}")
        e.i(f"s_lshl_b32 s{sT0}, s{sT0}, 1")
        e.i(f"s_lshr_b32 s{sT1}, s{sF}, 1")
        e.i(f"s_add_u32 s{sT0}, s{sT0}, s{sT1}")
        e.i(f"s_lshl_b32 s{sT0}, s{sT0}, 10")
        e.i(f"s_add_u32 s{sOB}, s{sT0}, {WS_O}")
        e.i(f"s_lshl_b32 s{sT0}, s{sRB}, 1")
        e.i(f"s_add_u32 s{sT0}, s{sT0}, s{sT1}")
        e.i(f"s_lshl_b32 s{sT0}, s{sT0}, 15")
        e.i(f"s_add_u32 s{sXO}, s{sXO}, s{sT0}")
        e.i(f"s_lshl_b32 s{sT0}, s{sCB}, 7")
        e.i(f"s_add_u32 s{sXO}, s{sXO}, s{sT0}")
        e.i("v_lshrrev_b32 v5, 2, v1")
        e.i("v_and_b32 v5, 4, v5")
        e.i("v_xor_b32 v5, v5, v3")
        e.i("v_lshlrev_b32 v5, 4, v5")
        e.i(f"v_lshl_add_u32 v{vSW}, v2, 10, v5")
        e.i(f"v_mul_u32_u24 v{vW1}, 3584, v2")
        e.i(f"v_add_u32 v{vW1}, v{vW1}, v5")
        e.i(f"v_lshlrev_b32 v{vL16}, 4, v1")
        e.i(f"v_lshrrev_b32 v{vH}, 5, v1")
        e.i(f"v_bfe_u32 v{vCG}, v1, 4, 1")
        e.i(f"v_bfe_u32 v{vR}, v1, 2, 2")
        e.i(f"v_and_b32 v{vC}, 3, v1")
        e.i(f"v_lshrrev_b32 v4, 1, v{vC}")
        e.i(f"v_lshl_add_u32 v4, v{vCG}, 1, v4")
        e.i(f"v_lshlrev_b32 v5, 1, v{vR}")
        e.i("v_and_b32 v5, 4, v5")
        e.i("v_xor_b32 v4, v4, v5")
        e.i(f"v_lshlrev_b32 v{vTR}, 7, v{vR}")
        e.i(f"v_lshl_add_u32 v{vTR}, v4, 4, v{vTR}")
        e.i(f"v_and_b32 v5, 1, v{vC}")
        e.i(f"v_lshl_add_u32 v{vTR}, v5, 3, v{vTR}")
        e.i("v_and_b32 v5, 31, v1")
        e.i(f"v_mul_u32_u24 v{vXN0}, 528, v{vH}")
        e.i(f"v_lshl_add_u32 v{vXN0}, v5, 4, v{vXN0}")
        e.i(f"v_add_u32 v{vXN0}, {R1}, v{vXN0}")
        e.i(f"v_add_u32 v{vXN1}, {XN_RH}, v{vXN0}")
        e.i("v_lshlrev_b32 v205, 10, v5")
        e.i(f"v_lshl_add_u32 v205, v{vH}, 3, v205")
        e.i(f"v_mul_u32_u24 v{vSP}, {KVS}, v5")
        e.i(f"v_lshl_add_u32 v{vSP}, v{vH}, 4, v{vSP}")
        e.i(f"v_subrev_u32 v{vSD}, 1, v{vH}")
        e.i(f"v_and_b32 v{vSD}, 0x3f803f80, v{vSD}")
        for r in range(1, 4):
            e.i(f"v_mov_b32 v{vSD+r}, v{vSD}")
        e.i("v_and_b32 v4, 15, v1")
        e.i(f"v_lshl_add_u32 v4, v{vH}, 4, v4")
        e.i("v_lshlrev_b32 v203, 4, v4")
        e.i(f"v_lshl_add_u32 v{vT0}, v{vH}, 10, v{vTR}")

    e.i("s_cmp_ge_u32 s2, 256")
    e.i("s_cbranch_scc1 L_end")
    e.i("s_load_dwordx16 s[48:63], s[0:1], 0")
    e.i("s_load_dwordx2 s[64:65], s[0:1], 64")
    e.i("s_load_dwordx2 s[68:69], s[0:1], 80")
    stamp(0)
    e.i("v_lshrrev_b32 v2, 6, v0")
    e.i("v_and_b32 v1, 63, v0")
    e.i(f"v_readfirstlane_b32 s{sWAVE}, v2")
    def ctouch():
        e.c("pull this kernel's code into L2: 16 lines per workgroup, the workgroups of an XCD cover all of it")
        e.i(f"s_getpc_b64 {S(sWKV,2)}")
        e.label("L_pc")
        e.i(f"s_mov_b32 s{sWKV+2}, L_code_end-L_pc")
        e.i(f"s_mov_b32 s{sWKV+3}, 0x20000")
        e.i(f"s_lshr_b32 s{sT0}, s2, 3")
        e.i(f"s_lshl_b32 s{sT0}, s{sT0}, 7")
        e.i("v_lshlrev_b32 v104, 12, v1")
        e.i("s_mov_b64 exec, 0xffff")
        e.i(f"buffer_load_dword v106, v104, {S(sWKV,4)}, s{sT0} offen")
        e.i("s_mov_b64 exec, -1")
    if opt.ctouch and opt.centry:
        e.i(f"s_cmp_lg_u32 s{sWAVE}, 4")
        e.i("s_cbranch_scc1 L_no_ct")
        ctouch()
        e.label("L_no_ct")
    e.c("workgroup -> (row block rb, column block cb); ids that share id&7 share half of the columns and 1/4 of the rows")
    e.i(f"s_and_b32 s{sT0}, s2, 7")
    e.i(f"s_lshr_b32 s{sT1}, s2, 3")
    e.i(f"s_and_b32 s{sCB}, s{sT1}, 3")
    e.i(f"s_lshl_b32 s{sCB}, s{sCB}, 1")
    e.i(f"s_and_b32 s{sRB}, s{sT0}, 1")
    e.i(f"s_add_u32 s{sCB}, s{sCB}, s{sRB}")
    e.i(f"s_lshr_b32 s{sT1}, s{sT1}, 2")
    e.i(f"s_lshr_b32 s{sRB}, s{sT0}, 1")
    e.i(f"s_lshl_b32 s{sRB}, s{sRB}, 3")
    e.i(f"s_add_u32 s{sRB}, s{sRB}, s{sT1}")
    e.i(f"s_mov_b32 s{sMASK}, 0xffff0000")
    e.i(f"s_and_b32 s{sF}, s{sWAVE}, 3")
    e.c("row group of this wave: (w + 2*rq + 3) & 7 -> waves 5,6 hold the 16 rows of this workgroup's K/V tile")
    e.i(f"s_and_b32 s{sRG}, s{sCB}, 6")
    e.i(f"s_add_u32 s{sRG}, s{sRG}, s{sWAVE}")
    e.i(f"s_add_u32 s{sRG}, s{sRG}, 3")
    e.i(f"s_and_b32 s{sRG}, s{sRG}, 7")
    e.i("v_lshrrev_b32 v2, 3, v1")
    e.i("v_and_b32 v3, 7, v1")
    e.i("v_lshlrev_b32 v4, 10, v2")
    e.i("v_lshl_add_u32 v4, v3, 4, v4")
    e.i(f"s_lshl_b32 s{sOFF}, s{sRB}, 3")
    e.i(f"s_add_u32 s{sOFF}, s{sOFF}, s{sRG}")
    e.i(f"s_lshl_b32 s{sOFF}, s{sOFF}, 13")
    for srd, size in ((sX, 2048*512*2), (sWQ, 512*512*2), (sWKV, 512*16*2), (sWO, 512*512*2), (sW1, 512*1792*2),
                      (sW2, 1792*512*2), (sOUT, 2048*512*2), (sWS, 0x10000000)):
        e.i(f"s_mov_b32 s{srd+2}, {hex(size)}")
        e.i(f"s_mov_b32 s{srd+3}, 0x20000")
    e.i(f"v_mov_b32 v6, {R4}")
    e.i("v_mov_b32 v7, 1")
    e.i("v_mov_b64 v[108:109], 0")
    e.i("v_and_b32 v105, 15, v1")
    e.i("v_lshl_add_u32 v105, v105, 3, v6")
    e.i("ds_write_b64 v105, v[108:109]")
    e.i(f"s_mov_b32 s{sSEG}, 0")
    e.i(f"s_cmp_eq_u32 s{sWAVE}, 7")
    e.i("s_cbranch_scc1 L_pre_7")
    e.i("s_waitcnt lgkmcnt(0)")
    e.i(f"s_mov_b64 {S(sX,2)}, s[48:49]")
    e.i(f"s_cmp_eq_u32 s{sWAVE}, 4")
    e.i("s_cbranch_scc1 L_pre_4")
    if opt.nobar == 1:
        e.i(f"s_cmp_ge_u32 s{sWAVE}, 0")
    elif opt.nobar == 2:
        e.i(f"s_lshr_b32 s{sT0}, 0x69, s{sWAVE}")
        e.i(f"s_bitcmp1_b32 s{sT0}, 0")
    else:
        e.i(f"s_cmp_ge_u32 s{sWAVE}, 5")
    e.i("s_cbranch_scc1 L_pre_first")
    e.i("s_barrier")
    e.label("L_pre_first")
    for i in range(8):
        e.i(f"buffer_load_dwordx4 {V(8+4*i,4)}, v4, {S(sX,4)}, s{sOFF} offen offset:{128*i}")
    e.i("s_cbranch_scc0 L_pre_second")
    e.i("s_barrier")
    e.label("L_pre_second")
    e.i(f"s_cmp_eq_u32 s{sWAVE}, 0")
    e.i("s_cbranch_scc1 L_pre_dbl")
    e.i(f"s_cmp_lg_u32 s{sWAVE}, 3")
    e.i("s_cbranch_scc1 L_pre_n3")
    e.label("L_pre_dbl")
    e.c("waves 0,3 also normalise the rows waves 4,7 would have had (row group ^ 4)")
    e.i(f"s_xor_b32 s{sOFF}, s{sOFF}, 0x8000")
    for i in range(8):
        e.i(f"buffer_load_dwordx4 {V(128+4*i,4)}, v4, {S(sX,4)}, s{sOFF} offen offset:{128*i}")
    e.i(f"s_mov_b32 s{sSEG}, 1")
    e.label("L_pre_n3")
    lds_signal(CXI)
    setup()
    e.i(f"s_cmp_ge_u32 s{sWAVE}, 4")
    e.i("s_cbranch_scc1 L_pre_56")
    S0, S1, P0, P1, OA, OB, NMA, NMB, QA, QB, KB, VB = 32, 48, 64, 72, 80, 96, 112, 128, 144, 148, 152, 168
    vK, vV0, vV1, vVG, vVC = 200, 201, 202, 203, 204
    e.i("s_setprio 1")
    e.i(f"s_and_b32 s{sT1}, s{sWAVE}, 1")
    e.i(f"s_lshl_b32 s{sT2}, s{sT1}, 6")
    e.i(f"v_xor_b32 v{vT0}, s{sT2}, v{vT0}")
    e.i(f"s_lshr_b32 s{sT1}, s{sWAVE}, 1")
    e.i(f"s_mul_i32 s{sT1}, s{sT1}, {XN_RH}")
    e.i(f"v_add_u32 v{vXN0}, s{sT1}, v{vXN0}")
    e.i(f"v_add_u32 v{vK}, {RE}, v{vL16}")
    e.i("v_and_b32 v5, 11, v1")
    e.i("v_cmp_ne_u32 vcc, 0, v5")
    e.i(f"v_mov_b32 v4, {RE+2048}")
    e.i(f"v_mov_b32 v5, {RE+2064}")
    e.i(f"v_add_u32 v{vV0}, {RE+1024}, v{vVG}")
    e.i("v_cndmask_b32 v4, v4, v5, vcc")
    e.i(f"v_cmp_eq_u32 vcc, 0, v{vCG}")
    e.i(f"v_add_u32 v{vV1}, {RE+1536}, v{vVG}")
    e.i("v_mov_b32 v207, 0xdddddddd")
    e.nop(1)
    e.i(f"v_cndmask_b32 v{vV0}, v4, v{vV0}, vcc")
    e.i(f"v_cndmask_b32 v{vV1}, v4, v{vV1}, vcc")
    if opt.stouch:
        e.c("scalar touches of w1 -> L2: wave w takes line column w, rows (rb&7) + 8i")
        e.i(f"s_and_b32 s{sT0}, s{sRB}, 7")
        e.i(f"s_mul_i32 s{sT0}, s{sT0}, 3584")
        e.i(f"s_mul_i32 s{sT1}, s{sCB}, 448")
        e.i(f"s_add_u32 s{sT0}, s{sT0}, s{sT1}")
        e.i(f"s_lshl_b32 s{sT1}, s{sWAVE}, 7")
        e.i(f"s_add_u32 s{sT0}, s{sT0}, s{sT1}")
        e.i(f"s_add_u32 s4, s60, s{sT0}")
        e.i("s_addc_u32 s5, s61, 0")
        for i in range(opt.stouch):
            e.i(f"s_load_dword s{sU0}, s[4:5], {hex(i*8*3584)}")
    if opt.ln2 and opt.dry2:
        e.c("while x is in flight: walk a quarter of the double-pass code with all lanes off (VALU / LDS writes only) to warm the instruction cache")
        e.i("v_mov_b32 v122, 0")
        e.i("s_mov_b64 exec, 0")
        for w in range(3):
            e.i(f"s_cmp_eq_u32 s{sWAVE}, {w}")
            e.i(f"s_cbranch_scc1 L_dry_{w}")
        e.i("s_branch L_dry_3")
        e.label("L_dry_ret")
        e.i("s_mov_b64 exec, -1")
    e.i(f"s_cmp_eq_u32 s{sSEG}, 1")
    e.i("s_cbranch_scc1 L_pre_w8")
    e.i("s_waitcnt vmcnt(0)")
    e.i("s_branch L_ln")
    e.label("L_pre_w8")
    e.i("s_waitcnt vmcnt(8)")
    e.i("s_branch L_ln2" if opt.ln2 else "s_branch L_ln")

    def ffn_setup():
        e.i(f"s_and_b32 s{sTILE}, s{sCB}, 1")
        e.i(f"s_lshl_b32 s{sT1}, s{sF}, 1")
        e.i(f"s_add_u32 s{sTILE}, s{sTILE}, s{sT1}")
        e.i(f"v_add_u32 v{vT0}, s{sRING}, v{vT0}")
        e.i(f"v_xor_b32 v{vT1}, 64, v{vT0}")
    e.label("L_pre_4")
    if opt.ctouch and not opt.centry:
        ctouch()
    e.c("wave 4: loader.  wq slice -> R0 by DMA behind the x loads; touches 1/8 of the w1 slice -> L2")
    setup()
    ffn_setup()
    e.i(f"s_lshl_b32 s{sOFF}, s{sCB}, 7")
    e.i(f"s_mov_b32 s{sT1}, 0")
    if opt.rot & 1:
        e.i(f"s_and_b32 s{sT1}, s{sRB}, 7")
        e.i(f"s_lshl_b32 s{sT0}, s{sT1}, 16")
        e.i(f"s_add_u32 s{sOFF}, s{sOFF}, s{sT0}")
        e.i(f"s_lshl_b32 s{sT1}, s{sT1}, 13")
    e.i(f"s_mov_b32 s{sCNT}, 7")
    def touch_setup(so):
        e.i("v_lshrrev_b32 v105, 2, v1")
        e.i("v_mul_u32_u24 v105, 3584, v105")
        e.i(f"v_lshl_add_u32 v105, v{vC}, 7, v105")
        e.i(f"s_and_b32 s{so}, s{sRB}, 7")
        e.i(f"s_mul_i32 s{so}, s{so}, {16*3584}")
        e.i(f"s_mul_i32 s{sT0}, s{sCB}, 448")
        e.i(f"s_add_u32 s{so}, s{so}, s{sT0}")
    def touches(so=sT2, a=0, b=4):
        for i in range(a, b):
            e.i(f"s_add_u32 s{sU0}, s{so}, {i*128*3584}")
            e.i(f"buffer_load_dword v106, v105, {S(sW1,4)}, s{sU0} offen")
    touch_setup(sT2)
    if opt.twq:
        e.i("v_lshrrev_b32 v104, 2, v1")
        e.i("v_lshlrev_b32 v104, 10, v104")
        e.i(f"v_lshl_add_u32 v104, v{vC}, 8, v104")
        e.i(f"s_lshr_b32 s{sT0}, s2, 3")
        e.i(f"s_lshl_b32 s{sT0}, s{sT0}, 14")
        e.i(f"s_and_b32 s{sU0}, s{sCB}, 1")
        e.i(f"s_lshl_b32 s{sU0}, s{sU0}, 7")
        e.i(f"s_add_u32 s{sT0}, s{sT0}, s{sU0}")
    e.i("s_barrier")
    if opt.twq:
        e.i(f"buffer_load_dword v106, v104, {S(sWQ,4)}, s{sT0} offen")
    if opt.touch == 4:
        touches()
    lds_poll(CXI, 6, sleep=0)
    if opt.wqafter:
        lds_poll(CXN, opt.wqafter, sleep=1)
    e.label("L_wq_loop")
    for i in range(8):
        e.i(f"s_mov_b32 m0, s{sT1}")
        e.i(f"s_add_u32 s{sT1}, s{sT1}, 1024")
        e.i(f"buffer_load_dwordx4 v{vSW}, {S(sWQ,4)}, s{sOFF} offen lds")
        e.i(f"s_add_u32 s{sOFF}, s{sOFF}, 8192")
    e.i(f"s_and_b32 s{sOFF}, s{sOFF}, 0x7ffff")
    e.i(f"s_and_b32 s{sT1}, s{sT1}, 0xffff")
    e.i(f"s_waitcnt vmcnt({opt.wqdepth})")
    e.i(f"s_sub_u32 s{sCNT}, s{sCNT}, 1")
    e.i("s_cbranch_scc0 L_wq_loop")
    lds_signal(CWI)
    stamp(1, "front")
    if opt.touch == 1:
        touches()
    if opt.wqsplit:
        e.i("s_waitcnt vmcnt(24)")
        lds_signal(CWQ)
    e.i("s_waitcnt vmcnt(0)")
    lds_signal(CWQ)
    stamp(8, "front")
    if opt.touch == 2 or (opt.touch == 3 and opt.ntouch < 4):
        lds_poll(CG, 4, sleep=2)
        touches(sT2, opt.ntouch if opt.touch == 3 else opt.stouch // 16, 4)
    e.i("s_branch L_ffn")

    e.label("L_pre_56")
    ffn_setup()
    e.i("s_setprio 3")
    e.i("s_waitcnt vmcnt(0)")

    e.label("L_ln")
    stamp(1, "front")
    if opt.lnclk:
        stamp(6); cstamp(9)
    X = 40
    A = 112
    e.i(f"s_lshr_b32 s{sT0}, s{sRG}, 2")
    e.i(f"s_mul_i32 s{sT0}, s{sT0}, {XN_RH}")
    e.i(f"s_and_b32 s{sT1}, s{sRG}, 3")
    e.i(f"s_lshl_b32 s{sT1}, s{sT1}, 7")
    e.i(f"s_add_u32 s{sT0}, s{sT0}, s{sT1}")
    e.i(f"s_add_u32 s{sT0}, s{sT0}, {R1}")
    e.i("v_mul_u32_u24 v122, 528, v3")
    e.i("v_lshl_add_u32 v122, v2, 4, v122")
    e.i(f"v_add_u32 v122, s{sT0}, v122")
    e.i(f"s_cmp_lt_u32 s{sWAVE}, 5")
    e.i("s_cbranch_scc1 L_ln_a")
    e.c("waves 5,6: raw rows -> LDS for the K/V wave")
    for i in range(8):
        e.i(f"ds_write_b128 v122, {V(8+4*i,4)} offset:{4224*i}")
    lds_signal(CRW)
    e.label("L_ln_a")
    e.i("v_mov_b32 v110, 0x3f803f80")
    e.i("v_mov_b64 v[112:113], 0")
    e.i("v_mov_b32 v108, 0x3f80")
    e.i("v_mov_b32 v109, 0x3f800000")
    for t in range(32):
        e.i(f"v_dot2c_f32_bf16 v{A+(t&1)}, v{8+t}, v110")
    def reduce_lanes():
        for m in ("quad_perm:[1,0,3,2]", "quad_perm:[2,3,0,1]", "row_half_mirror"):
            e.nop(2)
            e.i(f"v_add_f32_dpp v{A}, v{A}, v{A} {m} row_mask:0xf bank_mask:0xf")
    e.nop(3)
    e.i(f"v_add_f32 v{A}, v{A}, v{A+1}")
    reduce_lanes()
    def rnd(d, a):
        e.i(f"v_cvt_pk_bf16_f32 v{d}, v{a}, v{a}")
        e.i(f"v_and_b32 v{d}, s{sMASK}, v{d}")
    if opt.mimic:
        e.c("row statistics are rounded to bf16 where the reference rounds them")
        e.i(f"v_mul_f32 v121, {hex(f32bits(-1.0/512))}, v{A}")
        rnd(120, 121)
        e.i("v_sub_f32 v121, v121, v120")
    else:
        e.i(f"v_mul_f32 v120, {hex(f32bits(-1.0/512))}, v{A}")
    for t in range(32):
        e.i(f"v_dot2_f32_bf16 v{X+2*t}, v{8+t}, v108, v120")
        e.i(f"v_dot2_f32_bf16 v{X+2*t+1}, v{8+t}, v109, v120")
    for t in range(32):
        a = t % 4
        if t < 4:
            e.i(f"v_pk_mul_f32 {V(A+2*a,2)}, {V(X+2*t,2)}, {V(X+2*t,2)}")
        else:
            e.i(f"v_pk_fma_f32 {V(A+2*a,2)}, {V(X+2*t,2)}, {V(X+2*t,2)}, {V(A+2*a,2)}")
    e.i(f"v_pk_add_f32 {V(A,2)}, {V(A,2)}, {V(A+2,2)}")
    e.i(f"v_pk_add_f32 {V(A+4,2)}, {V(A+4,2)}, {V(A+6,2)}")
    e.i(f"v_pk_add_f32 {V(A,2)}, {V(A,2)}, {V(A+4,2)}")
    e.i(f"v_add_f32 v{A}, v{A}, v{A+1}")
    reduce_lanes()
    if opt.mimic:
        e.i(f"v_mul_f32 v119, {hex(f32bits(1.0/512))}, v{A}")
        e.i("v_fma_f32 v119, -v121, v121, v119")
        e.i("v_max_f32 v119, 0, v119")
        rnd(119, 119)
        e.i(f"v_add_f32 v119, {hex(f32bits(1e-5))}, v119")
        rnd(119, 119)
        e.i("v_sqrt_f32 v119, v119")
        e.nop(1)
        rnd(119, 119)
        e.i("v_rcp_f32 v118, v119")
    else:
        e.i(f"v_mov_b32 v119, {hex(f32bits(1e-5))}")
        e.i(f"v_fmac_f32 v119, {hex(f32bits(1.0/512))}, v{A}")
        e.i("v_rsq_f32 v118, v119")
    e.i(f"s_cmp_lt_u32 s{sWAVE}, 5")
    e.i("s_cbranch_scc1 L_ln_b")
    e.c("waves 5,6: hand the row statistics to the K/V wave")
    e.i(f"s_lshl_b32 s{sT0}, s{sWAVE}, 5")
    e.i(f"s_add_u32 s{sT0}, s{sT0}, {R4 + STAT - 160}")
    e.i(f"v_lshl_add_u32 v111, v2, 2, s{sT0}")
    e.i("ds_write2_b32 v111, v120, v118 offset1:16")
    lds_signal(CST)
    lds_poll(CRC, 1, sleep=0)
    e.label("L_ln_b")
    e.lg = []
    for i in range(8):
        for t in range(4*i, 4*i+4):
            e.i(f"v_pk_mul_f32 {V(X+2*t,2)}, {V(X+2*t,2)}, v[118:119] op_sel_hi:[1,0]")
        for t in range(4*i, 4*i+4):
            e.i(f"v_cvt_pk_bf16_f32 v{8+t}, v{X+2*t}, v{X+2*t+1}")
        e.lds(f"ds_write_b128 v122, {V(8+4*i,4)} offset:{4224*i}")
    lds_signal(CXN)
    e.i(f"s_cmp_eq_u32 s{sSEG}, 0")
    e.i("s_cbranch_scc1 L_ln_done")
    e.i(f"s_mov_b32 s{sSEG}, 0")
    e.i(f"s_xor_b32 s{sRG}, s{sRG}, 4")
    e.i("s_waitcnt vmcnt(0)")
    for t in range(0, 32, 2):
        e.i(f"v_mov_b64 {V(8+t,2)}, {V(128+t,2)}")
    e.i("s_branch L_ln")
    e.label("L_ln_done")
    stamp(8, "front")
    if opt.lnclk:
        stamp(7); cstamp(10)
    if opt.dryq:
        e.i(f"s_cmp_eq_u32 s{sWAVE}, 6")
        e.i("s_cbranch_scc1 L_dryq")
    e.i(f"s_cmp_ge_u32 s{sWAVE}, 4")
    e.i("s_cbranch_scc1 L_ffn")

    if opt.ln2:
        keep = e.lines
        e.lines = []
        class G: pass
        def phases(raw, xs, acc, nm, dl, ad):
            p = G()
            a0 = acc[0]
            p.sum = [f"v_dot2c_f32_bf16 v{a0+(t&1)}, v{raw+t}, v110" for t in range(32)]
            dpp = [f"v_add_f32_dpp v{a0}, v{a0}, v{a0} {m} row_mask:0xf bank_mask:0xf" for m in ("quad_perm:[1,0,3,2]", "quad_perm:[2,3,0,1]", "row_half_mirror")]
            rn = lambda d, a: [f"v_cvt_pk_bf16_f32 v{d}, v{a}, v{a}", f"v_and_b32 v{d}, s{sMASK}, v{d}"]
            p.r1 = [f"v_add_f32 v{a0}, v{a0}, v{a0+1}"] + dpp + [f"v_mul_f32 v{dl}, {hex(f32bits(-1.0/512))}, v{a0}"] + rn(nm, dl) + [f"v_sub_f32 v{dl}, v{dl}, v{nm}"]
            p.cen = []
            for t in range(32):
                p.cen += [f"v_dot2_f32_bf16 v{xs[t]}, v{raw+t}, v108, v{nm}", f"v_dot2_f32_bf16 v{xs[t]+1}, v{raw+t}, v109, v{nm}"]
            p.sq = [f"v_pk_mul_f32 {V(acc[t],2)}, {V(xs[t],2)}, {V(xs[t],2)}" if t < 4 else
                    f"v_pk_fma_f32 {V(acc[t%4],2)}, {V(xs[t],2)}, {V(xs[t],2)}, {V(acc[t%4],2)}" for t in range(32)]
            r, q = acc[3], acc[3] + 1
            p.r2 = [f"v_pk_add_f32 {V(acc[0],2)}, {V(acc[0],2)}, {V(acc[1],2)}", f"v_pk_add_f32 {V(acc[2],2)}, {V(acc[2],2)}, {V(acc[3],2)}",
                    f"v_pk_add_f32 {V(acc[0],2)}, {V(acc[0],2)}, {V(acc[2],2)}", f"v_add_f32 v{a0}, v{a0}, v{a0+1}"] + dpp + \
                   [f"v_mul_f32 v{q}, {hex(f32bits(1.0/512))}, v{a0}", f"v_fma_f32 v{q}, -v{dl}, v{dl}, v{q}", f"v_max_f32 v{q}, 0, v{q}"] + rn(q, q) + \
                   [f"v_add_f32 v{q}, {hex(f32bits(1e-5))}, v{q}"] + rn(q, q) + [f"v_sqrt_f32 v{q}, v{q}"] + rn(q, q) + [f"v_rcp_f32 v{r}, v{q}"]
            p.norm = []
            for i in range(8):
                p.norm += [f"v_pk_mul_f32 {V(xs[t],2)}, {V(xs[t],2)}, {V(r,2)} op_sel_hi:[1,0]" for t in range(4*i, 4*i+4)]
                p.norm += [f"v_cvt_pk_bf16_f32 v{raw+t}, v{xs[t]}, v{xs[t]+1}" for t in range(4*i, 4*i+4)]
                p.norm += [f"ds_write_b128 v{ad}, {V(raw+4*i,4)} offset:{4224*i}"]
            return p
        def merge(ser, bulk, k):
            out, b = [], list(bulk)
            for x in ser:
                out += b[:k]; b = b[k:]
                out.append(x)
            return out + b
        PA = phases(8, [40+2*t for t in range(32)], [112, 114, 116, 118], 120, 121, 122)
        PB = phases(128, [160+2*t for t in range(20)] + [232+2*t for t in range(12)], [104, 106, 124, 126], 111, 123, 5)
        e.label("L_ln2")
        e.c("waves 0,3: two row groups (rg and rg^4) in one interleaved pass")
        stamp(1, "front")
        e.i(f"s_lshr_b32 s{sT0}, s{sRG}, 2")
        e.i(f"s_mul_i32 s{sT0}, s{sT0}, {XN_RH}")
        e.i(f"s_and_b32 s{sT1}, s{sRG}, 3")
        e.i(f"s_lshl_b32 s{sT1}, s{sT1}, 7")
        e.i(f"s_add_u32 s{sT1}, s{sT1}, {R1}")
        e.i(f"s_add_u32 s{sT2}, s{sT1}, {XN_RH}")
        e.i(f"s_sub_u32 s{sT2}, s{sT2}, s{sT0}")
        e.i(f"s_add_u32 s{sT0}, s{sT0}, s{sT1}")
        e.i("v_mul_u32_u24 v122, 528, v3")
        e.i("v_lshl_add_u32 v122, v2, 4, v122")
        e.i(f"v_add_u32 v5, s{sT2}, v122")
        e.i(f"v_add_u32 v122, s{sT0}, v122")
        e.i("v_mov_b32 v110, 0x3f803f80")
        e.i("v_mov_b64 v[112:113], 0")
        e.i("v_mov_b64 v[104:105], 0")
        e.i("v_mov_b32 v108, 0x3f80")
        e.i("v_mov_b32 v109, 0x3f800000")
        def zipn(x, y):
            out = []
            for p, q in zip(x, y):
                out += [p, q] + (["s_nop 0"] if "dpp" in p or "v_add_f32 " in p else [])
            return out
        def solo(x):
            out = []
            for p in x:
                if "dpp" in p: out.append("s_nop 1")
                out.append(p)
                if "v_sqrt" in p: out.append("s_nop 0")
            return out
        seq = PA.sum + ["s_nop 2"] + solo(PA.r1) + PA.cen + PA.sq + solo(PA.r2) + ["s_nop 0"] + PA.norm[:9] + ["s_waitcnt vmcnt(0)"]
        if opt.stamps and opt.front:
            seq += [f"s_memrealtime {S(sSTAMP+18,2)}"]
        seq += PB.sum[:16] + PA.norm[9:18] + PB.sum[16:] + merge(PB.r1, PA.norm[18:36], 3)
        rest = PB.cen + PB.sq
        for i in range(4):
            seq += rest[24*i:24*i+24] + PA.norm[36+9*i:45+9*i]
        seq += solo(PB.r2) + ["s_nop 0"]
        k0 = seq.index("s_waitcnt vmcnt(0)") + 1
        n3 = (len(seq) - k0) // 3
        for k, t in enumerate(seq):
            if opt.dry2 and k in (k0 + n3, k0 + 2 * n3):
                e.i("s_cbranch_execz L_dry_ret")
            if opt.dry2 and k in (k0, k0 + n3, k0 + 2 * n3):
                e.label(f"L_dry_{(k - k0) // n3}")
            e.i(t)
        if opt.dry2:
            e.i("s_cbranch_execz L_dry_ret")
        lds_signal(CXN)
        e.label("L_dry_3")
        for t in PB.norm: e.i(t)
        if opt.dry2:
            e.i("s_cbranch_execz L_dry_ret")
        lds_signal(CXN)
        e.i("s_branch L_ln_done")
        ln2_lines = e.lines
        e.lines = keep
    e.vm = []
    for r in range(0, 32, 2):
        e.i(f"v_mov_b64 {V(OA+r,2)}, 0")
    lds_poll(CWQ, 1, sleep=0)
    for q in range(4):
        e.i(f"buffer_load_dwordx2 {V(232+2*q,2)}, v205, {S(sX,4)}, s{sXO} offen offset:{16*q}")
    lds_poll(CXN, 9, sleep=0)
    stamp(2, "front")
    e.label("L_q")
    fill = []
    e.c("Q projection: wave w -> head pair hp=w&1, row half rh=w>>1")
    def qreads(ks):
        s = ks % 4
        if ks == 20 and opt.wqsplit:
            e.i(f"v_readfirstlane_b32 s{sT0}, v5")
            e.i(f"s_cmp_ge_u32 s{sT0}, 2")
            e.i("s_cbranch_scc0 L_slow_wq")
            e.label("L_back_wq")
        if ks == 16 and opt.wqsplit:
            e.lds(f"ds_read_b32 v5, v6 offset:{CWQ}")
        e.lds(f"ds_read_b64_tr_b16 {V(32+8*s,2)}, v{vT0} offset:{ks*2048}", ("q", ks))
        e.lds(f"ds_read_b64_tr_b16 {V(34+8*s,2)}, v{vT0} offset:{ks*2048+512}", ("q", ks))
        e.lds(f"ds_read_b128 {V(36+8*s,4)}, v{vXN0} offset:{ks*1056}", ("q", ks))
    for ks in range(4):
        qreads(ks)
    for ks in range(32):
        s = ks % 4
        e.wait(lg=("q", ks))
        e.i(f"{MF32} v[8:23], {V(32+8*s,4)}, {V(36+8*s,4)}, {'0' if ks == 0 else 'v[8:23]'}")
        if ks + 4 < 32:
            qreads(ks + 4)
        if ks == 27:
            lds_signal(CQ)
        if fill:
            e.i(fill.pop(0))
    e.i(f"v_mov_b32 v28, {hex(f32bits(0.25*math.log2(math.e)))}")
    e.nop(11)
    for r in range(0, 16, 2):
        e.i(f"v_pk_mul_f32 {V(8+r,2)}, {V(8+r,2)}, v[28:29] op_sel_hi:[1,0]")
    for k in range(4):
        for hd in range(2):
            b = 8 + 8*hd + 2*k
            if k == 0:
                e.i(f"v_pk_mul_f32 {V(30+2*hd,2)}, {V(b,2)}, {V(b,2)}")
            else:
                e.i(f"v_pk_fma_f32 {V(30+2*hd,2)}, {V(b,2)}, {V(b,2)}, {V(30+2*hd,2)}")
    e.i("v_add_f32 v24, v30, v31")
    e.i("v_add_f32 v25, v32, v33")
    e.i("v_mov_b32 v26, v24")
    e.i("v_mov_b32 v27, v25")
    for hd in range(2):
        for j in range(4):
            e.i(f"v_cvt_pk_bf16_f32 v{QA+4*hd+j}, v{8+8*hd+2*j}, v{8+8*hd+2*j+1}")
    e.i("v_permlane32_swap_b32 v24, v26")
    e.i("v_permlane32_swap_b32 v25, v27")
    e.i("v_add_f32 v24, v24, v26")
    e.i("v_add_f32 v25, v25, v27")
    if opt.dryq:
        e.i(f"s_cmp_eq_u32 s{sWAVE}, 6")
        e.i("s_cbranch_scc1 L_dryq_ret")
    stamp(3, "front")
    lds_poll(CKV, 2, sleep=0)
    stamp(4)
    e.lds(f"ds_read_b32 v206, v6 offset:{CTAG}")
    e.lds(f"ds_read_b32 v30, v6 offset:{CKM}")
    e.wait_all(lg=True)
    e.c("stand-in for the row max: |q| * max|k| >= max_k q.k ; used only while it cannot be far above the true max")
    e.i("v_mul_f32 v24, v24, v30")
    e.i("v_mul_f32 v25, v25, v30")
    e.i("v_sqrt_f32 v24, v24")
    e.i("v_sqrt_f32 v25, v25")
    e.i(f"s_mov_b32 s{sT1}, {hex(f32bits(opt.thr))}")
    e.i("v_max_f32 v26, v24, v25")
    e.i(f"v_cmp_nge_f32 vcc, s{sT1}, v26")
    e.i("v_cmp_u_f32 s[4:5], v24, v25")
    e.i("s_or_b64 s[4:5], s[4:5], vcc")
    if opt.force_fallback:
        e.i("s_branch L_fallback")
    else:
        e.i("s_cbranch_scc1 L_fallback")
    e.label("L_att_start")
    e.i(f"v_sub_f32 v{NMA}, 0, v24")
    e.i(f"v_sub_f32 v{NMA+1}, 0, v24")
    e.i(f"v_sub_f32 v{NMB}, 0, v25")
    e.i(f"v_sub_f32 v{NMB+1}, 0, v25")
    for r in range(2, 16, 2):
        e.i(f"v_mov_b64 {V(NMA+r,2)}, {V(NMA,2)}")
        e.i(f"v_mov_b64 {V(NMB+r,2)}, {V(NMB,2)}")
    e.i(f"s_lshl_b32 s{sT0}, s{sCB}, 7")
    e.i(f"s_lshl_b32 s{sT1}, s{sF}, 2")
    e.i(f"s_add_u32 s{sT0}, s{sT0}, s{sT1}")
    e.i(f"s_add_u32 s{sE1}, s{sFLG}, 0x10000")
    e.i(f"s_add_u32 s{sE2}, s{sT0}, s{sE1}")
    lds_poll(CE7, 1, sleep=0)
    for j in range(3):
        e.lds(f"ds_read_b128 {V(KB+4*j,4)}, v{vK} offset:{j*KVS}", ("a", j))
        e.lds(f"ds_read_b128 {V(VB+8*j,4)}, v{vV0} offset:{j*KVS}")
        e.lds(f"ds_read_b128 {V(VB+8*j+4,4)}, v{vV1} offset:{j*KVS}")
    e.wait(lg=("a", 0))
    e.i(f"{MF32} {V(S0,16)}, {V(KB,4)}, {V(QA,4)}, {V(NMA,16)}")
    e.nop(11)
    e.wait_all(lg=True)
    stamp(5)
    def em(t):
        if t.endswith(":"): e.raw(t)
        else: e.i(t)
    def step(cur, oth, K, Q, NM, O, V0, Op, V1p, after, noqk=False, nopv=False):
        for i in range(16):
            e.i(f"v_exp_f32 v{cur+i}, v{cur+i}")
            if i == opt.pos[0]:
                if not nopv:
                    e.i(f"{SMF} {V(Op,16)}, {V(V1p,4)}, {V(oth+8,8)}, v207")
                for t in after[0]: em(t)
            if i == opt.pos[1]:
                if not noqk:
                    e.i(f"{MF32} {V(oth,16)}, {V(K,4)}, {V(Q,4)}, {V(NM,16)}")
                for t in after[1]: em(t)
            if i == opt.pos[2]:
                e.i(f"{SMF} {V(O,16)}, {V(V0,4)}, {V(cur,8)}, v207")
                for t in after[2]: em(t)
    def shift(d):
        return [f"v_add_u32 v{v}, {hex(d & 0xffffffff)}, v{v}" for v in (vK, vV0, vV1)]
    if opt.full:
        slow = [("wq", CWQ, 2)] if opt.wqsplit else []
        SIG = lambda off: ["s_mov_b64 exec, 1", f"ds_add_u32 v6, v7 offset:{off}", "s_mov_b64 exec, -1"]
        def CHK(name, off, n):
            slow.append((name, off, n))
            return [f"v_readfirstlane_b32 s{sT0}, v5", f"s_cmp_ge_u32 s{sT0}, {n}", f"s_cbranch_scc0 L_slow_{name}", f"L_back_{name}:"]
        PRE = lambda off: [f"ds_read_b32 v5, v6 offset:{off}"]
        HINT = ["s_mov_b64 exec, 1", f"buffer_store_dword v206, v{vL16}, {S(sWS,4)}, s{sE2} offen sc1", "s_mov_b64 exec, -1"]
        J0 = NE - 3
        for j in range(64):
            b3 = (j + 3) % 4
            slot = j + 3 if j < J0 else (j - J0 if j < J0 + 32 else (j - J0 - 32 if j < J0 + 47 else j - J0 - 47))
            off = slot * KVS
            rd = j + 3 < 64
            A = [[], [f"ds_read_b128 {V(KB+4*b3,4)}, v{vK} offset:{off}"] if rd else [], []]
            Bq = [[f"ds_read_b128 {V(VB+8*b3,4)}, v{vV0} offset:{off}"] if rd else [],
                  [f"ds_read_b128 {V(VB+8*b3+4,4)}, v{vV1} offset:{off}"] if rd else [],
                  [f"s_waitcnt lgkmcnt({2 if rd else 0})"] if j % 2 == 1 and j < 62 else []]
            if opt.loose:
                chkj = (J0 - 1, J0 + 7, J0 + 15, J0 + 23, J0 + 31, J0 + 45)
                n = 2 if j in chkj else (5 if j <= 60 else (2 if j == 61 else 0))
                Bq[2] = [f"s_waitcnt lgkmcnt({n})"] if j < 63 else []
            assert J0 % 2 == 0
            if j == J0 - 1:
                A[2] += PRE(CA)
                Bq[2] += CHK("a", CA, 1) + SIG(CG) + shift(-RE)
            if j in (J0 + 7, J0 + 15, J0 + 23):
                A[2] += PRE(CA)
                Bq[2] += CHK(f"a{j}", CA, (j - J0 + 1) // 8 + 1)
            if j == J0 + 15:
                Bq[2] += SIG(CP1)
            if opt.win and j == opt.win[0]:
                Bq[2] += [f"s_memrealtime {S(sSTAMP+12,2)}", f"s_memtime {S(sSTAMP+18,2)}"]
            if opt.win and j == opt.win[1]:
                Bq[2] += [f"s_memrealtime {S(sSTAMP+14,2)}", f"s_memtime {S(sSTAMP+20,2)}"]
            if j == 31 and opt.stamps and not opt.lnclk and not opt.win:
                Bq[2] += [f"s_memrealtime {S(sSTAMP+12,2)}"] + ([] if opt.front else [f"s_memtime {S(sSTAMP+18,2)}"])
            if j == J0 + 31:
                A[2] += PRE(CL1)
                Bq[2] += CHK("l1", CL1, 4)
            if j == J0 + 45:
                A[2] += PRE(CH2)
                Bq[2] += CHK("h2", CH2, 4)
            if j == J0 + 46:
                Bq[2] += SIG(CR0) + shift(R1)
            if opt.jst and j in (1, 9, 17, 25):
                Bq[2] += [f"s_memrealtime {S(sSTAMP+2*{1:1,9:2,17:3,25:4}[j],2)}"]
            if j == 56:
                A[0] += ["s_waitcnt vmcnt(0)"]
            if opt.ehint and 2 * j == 128 - opt.ehint:
                A[0] += HINT
            if opt.ehint and 2 * j + 1 == 128 - opt.ehint:
                Bq[0] += HINT
            if opt.rdalt:
                kr = [t for t in A[1] if t.startswith("ds_read_b128")]
                A = [kr + A[0], [t for t in A[1] if t not in kr] + A[2], [t for t in Bq[0] if t.startswith("ds_read_b128")]]
                Bq = [Bq[1] + [t for t in Bq[0] if not t.startswith("ds_read_b128")], [], Bq[2]]
            step(S0, S1, KB+4*(j % 4), QB, NMB, OA, VB+8*(j % 4), OB, VB+8*((j-1) % 4)+4, A, nopv=(j == 0))
            step(S1, S0, KB+4*((j+1) % 4), QA, NMA, OB, VB+8*(j % 4), OA, VB+8*(j % 4)+4, Bq, noqk=(j == 63))
    e.label("L_att_done")
    if not opt.lnclk and not opt.win:
        stamp(7)
        cstamp(10)
    e.i(f"v_rcp_f32 v24, v{OA+8}")
    e.i("s_nop 0")
    e.i(f"{SMF} {V(OB,16)}, {V(VB+28,4)}, {V(S1+8,8)}, v207")
    e.lg = []
    lds_signal(CAD)
    for hd, O in enumerate((OA, OB)):
        if hd == 1:
            e.i(f"v_rcp_f32 v24, v{OB+8}")
            e.nop(1)
        for r in range(8):
            e.i(f"v_mul_f32 v{O+r}, v{O+r}, v24")
        for j in range(4):
            e.i(f"v_cvt_pk_bf16_f32 v{8+4*hd+j}, v{O+2*j}, v{O+2*j+1}")
        for j in range(4):
            e.i(f"v_min_u32 v{8+4*hd+j}, -2, v{8+4*hd+j}")
        e.vmem(f"buffer_store_dwordx4 {V(8+4*hd,4)}, v{vL16}, {S(sWS,4)}, s{sOB} offen offset:{2048*hd} sc1")
    if opt.hint:
        e.c("hint for the readers (the data itself is checked against the marker)")
        if not opt.ehint:
            for t in HINT: e.i(t)
        e.i(f"s_mov_b32 s{sFLG}, s{sE1}")
        e.i(f"v_readfirstlane_b32 s{sTAG}, v206")
        e.i(f"v_lshlrev_b32 v16, 7, v{vC}")
        e.i("v_and_b32 v17, 4, v1")
        e.i("v_add_u32 v16, v16, v17")
        e.i(f"s_and_b32 s{sT0}, s{sF}, 1")
        e.i(f"s_lshl_b32 s{sT0}, s{sT0}, 9")
        e.i(f"s_add_u32 s{sFLG}, s{sFLG}, s{sT0}")
        e.i(f"s_and_b32 s{sT0}, s{sF}, 2")
        e.i(f"s_lshl_b32 s{sT0}, s{sT0}, 2")
        e.i(f"s_add_u32 s{sFLG}, s{sFLG}, s{sT0}")
    if opt.early_poll:
        e.c("the own workgroup's line is not read: its stores are known drained through LDS (read a neighbour twice instead)")
        e.i(f"s_and_b32 s{sT0}, s{sF}, 1")
        e.i(f"s_lshl_b32 s{sT0}, s{sT0}, 2")
        e.i(f"s_sub_u32 s{sT0}, s{sCB}, s{sT0}")
        e.i(f"v_cmp_eq_u32 vcc, s{sT0}, v{vC}")
        e.i("v_xor_b32 v17, 0x80, v16")
        e.i("s_mov_b64 s[4:5], -1")
        e.i("v_cndmask_b32 v16, v16, v17, vcc")
        if opt.early_poll == 1:
            e.i(f"buffer_load_dword v17, v16, {S(sWS,4)}, s{sFLG} offen sc1")
    stamp(8, "late")
    if opt.noatt_tail:
        dump_stamps()
        e.i("s_endpgm")
    e.c("output projection: wave w -> row half w>>1, K half w&1, both column tiles (own tile first)")
    G, XR, OF = 104, 120, 40
    e.i(f"v_mov_b32 v0, v{vL16}")
    e.i("v_mov_b32 v3, v205")
    if opt.wide:
        e.i(f"v_lshl_add_u32 v3, v{vH}, 3, v3")
    e.i(f"s_and_b32 s{sT1}, s{sF}, 1")
    e.i(f"s_lshr_b32 s{sT2}, s{sF}, 1")
    e.i(f"s_lshl_b32 s{sT0}, s{sRB}, 6")
    e.i(f"s_add_u32 s{sT0}, s{sT0}, s{sT2}")
    e.i(f"s_lshl_b32 s{sT2}, s{sT1}, 5")
    e.i(f"s_add_u32 s{sT0}, s{sT0}, s{sT2}")
    e.i(f"s_lshl_b32 s{sT0}, s{sT0}, 10")
    e.i(f"s_add_u32 s{sOFF}, s{sT0}, {WS_O}")
    for g in range(4):
        e.i(f"s_add_u32 s{sCH+g}, s{sCB}, {1+g}")
        e.i(f"s_and_b32 s{sCH+g}, s{sCH+g}, 3")
        e.i(f"s_lshl_b32 s{sCH+g}, s{sCH+g}, 13")
        e.i(f"s_add_u32 s{sOA+2*g}, s{sOFF}, s{sCH+g}")
        e.i(f"s_add_u32 s{sOA+2*g+1}, s{sOA+2*g}, 4096")
    if opt.echo: stamp(9)
    lds_poll(CWO, 4, sleep=1)
    if opt.echo: stamp(10)
    def oloads(g):
        for i in range(4):
            e.i(f"buffer_load_dwordx4 {V(OF+16*g+4*i,4)}, v0, {S(sWS,4)}, s{sOA+2*g+(i>>1)} offen offset:{2048*(i&1)} sc1")
    if not opt.hint:
        for g in range(3):
            oloads(g)
    e.i(f"s_mul_i32 s{sT0}, s{sT1}, {32768+64}")
    e.i(f"v_lshl_add_u32 v2, v{vH}, 9, v{vTR}")
    e.i(f"v_xor_b32 v2, s{sT0}, v2")
    for g in range(4):
        e.i(f"v_add_u32 v{G+2*g}, s{sCH+g}, v2")
        e.i(f"v_xor_b32 v{G+2*g+1}, 64, v{G+2*g}")
    for q in range(4):
        e.i(f"v_mov_b64 {V(XR+2*q,2)}, {V(232+2*q,2)}")
    if opt.early_poll == 3:
        e.i(f"buffer_load_dword v17, v16, {S(sWS,4)}, s{sFLG} offen sc1")
    for i in range(16):
        if i == opt.midpoll:
            e.i(f"buffer_load_dword v17, v16, {S(sWS,4)}, s{sFLG} offen sc1")
        for c2 in range(2):
            for t in range(2):
                if opt.lg2:
                    e.i(f"ds_read_b64_tr_b16 {V(128+8*i+4*c2+2*t,2)}, v{G+2*(i//4)+c2} offset:{(i%4)*2048+1024*t}")
                else:
                    e.lds(f"ds_read_b64_tr_b16 {V(128+8*i+4*c2+2*t,2)}, v{G+2*(i//4)+c2} offset:{(i%4)*2048+1024*t}")
        if opt.lg2 and i >= 2:
            e.i("s_waitcnt lgkmcnt(11)")
    e.i(f"s_lshl_b32 s{sT2}, s{sF}, 12")
    e.i(f"s_add_u32 s{sT1}, s{sT2}, {R1}")
    e.i(f"v_add_u32 v1, s{sT1}, v0")
    e.i(f"s_xor_b32 s{sT2}, s{sT2}, 4096")
    e.i(f"s_add_u32 s{sT2}, s{sT2}, {R1}")
    e.i(f"v_add_u32 v2, s{sT2}, v0")
    e.i(f"s_and_b32 s{sT2}, s{sF}, 2")
    e.i(f"s_lshl_b32 s{sT2}, s{sT2}, 1")
    e.i(f"v_add_u32 v4, s{sT2}, v6")
    e.i(f"s_mov_b32 s{sSEG}, 0")
    e.i(f"s_mov_b32 s{sCNT}, {hex(opt.spin)}")
    if opt.early_poll:
        e.i("s_waitcnt vmcnt(0)")
        lds_signal(COD)
        lds_poll(COD, 4, sleep=0)
    else:
        lds_poll(CAD, 4, sleep=0)
    if opt.hint and opt.onep:
        e.i(f"s_cmp_lg_u32 s{sWAVE}, 0")
        e.i("s_cbranch_scc1 L_hint_other")
        e.i("v_mbcnt_lo_u32_b32 v17, -1, 0")
        e.i("v_bfe_u32 v18, v17, 2, 3")
        e.i(f"v_cmp_eq_u32 vcc, s{sCB}, v18")
        e.i("v_xor_b32 v19, 1, v18")
        e.i("v_and_b32 v17, 3, v17")
        e.i("v_cndmask_b32 v18, v18, v19, vcc")
        e.i("v_lshlrev_b32 v18, 7, v18")
        e.i("v_lshl_add_u32 v16, v17, 2, v18")
        top, done = lbl("hp"), lbl("hpd")
        spin_init()
        e.label(top)
        e.i(f"buffer_load_dword v17, v16, {S(sWS,4)}, s{sFLG} offen sc1")
        e.i("s_waitcnt vmcnt(0)")
        e.i(f"v_cmp_ne_u32 vcc, s{sTAG}, v17")
        e.i(f"s_cbranch_vccz {done}")
        spin_tail(top, done, opt.hsleep)
        e.label(done)
        lds_signal(CHN)
        e.label("L_hint_other")
        lds_poll(CHN, 1, sleep=0)
        stamp(1, "late")
        for g in range(4):
            oloads(g)
    elif opt.hint:
        top, done = lbl("hp"), lbl("hpd")
        spin_init()
        n = opt.pipe
        def chk(r):
            e.i(f"v_cmp_ne_u32 vcc, s{sTAG}, v{r}")
            if opt.early_poll:
                e.i("s_and_b64 vcc, vcc, s[4:5]")
                e.i(f"s_cbranch_scc0 {done}")
            else:
                e.i(f"s_cbranch_vccz {done}")
        if opt.midpoll >= 0:
            e.i("s_waitcnt vmcnt(0)")
        if opt.early_poll in (1, 3) or opt.midpoll >= 0:
            chk(17)
        for k in range(n):
            e.i(f"buffer_load_dword v{17+k}, v16, {S(sWS,4)}, s{sFLG} offen sc1")
            e.i(f"s_sleep {6 // n}")
        e.label(top)
        for k in range(n + 1):
            e.i(f"buffer_load_dword v{17+(n+k)%(n+1)}, v16, {S(sWS,4)}, s{sFLG} offen sc1")
            e.i(f"s_waitcnt vmcnt({n})")
            chk(17 + k)
        spin_tail(top, done, 0 if n else opt.hsleep)
        e.label(done)
        stamp(1, "late")
        for g in range(4):
            oloads(g)
    else:
        e.i("s_waitcnt vmcnt(12)")
        stamp(1, "late")
        oloads(3)
    e.c("o fragments: check that every dword was written; if not, re-read that group until it is, then refresh the rest")
    def ocheck(g):
        b = OF + 16 * g
        e.i(f"v_max3_u32 v5, v{b}, v{b+1}, v{b+2}")
        for k in range(3, 15, 2):
            e.i(f"v_max3_u32 v5, v5, v{b+k}, v{b+k+1}")
        e.i(f"v_max_u32 v5, v5, v{b+15}")
        e.i("v_cmp_eq_u32 vcc, -1, v5")
    for g in range(4):
        e.i(f"s_waitcnt vmcnt({12-4*g})")
        b = OF + 16 * g
        ocheck(g)
        e.i(f"s_cbranch_vccnz L_oretry_{g}")
        e.label(f"L_ogo_{g}")
        for i in range(4):
            for c2 in (1, 0):
                a = 8 + 16 * c2
                k = 4 * g + i
                e.i(f"{MF32} {V(a,16)}, {V(128+8*k+4*c2,4)}, {V(b+4*i,4)}, {'0' if k == 0 else V(a,16)}")
    stamp(2, "late")
    for t in range(8):
        e.i(f"v_lshlrev_b32 v{128+2*t}, 16, v{XR+t}")
        e.i(f"v_and_b32 v{129+2*t}, s{sMASK}, v{XR+t}")
    e.lg = []
    for q in range(4):
        e.lds(f"ds_write_b128 v1, {V(24+4*q,4)} offset:{q*1024}")
    lds_signal(CE0, va=4)
    e.i(f"s_lshl_b32 s{sT1}, s{sF}, 2")
    e.i(f"v_add_u32 v1, s{sT1}, v6")
    e.i(f"s_lshl_b32 s{sT1}, s{sF}, 14")
    e.i(f"s_add_u32 s{sT1}, s{sT1}, {RB2 + 12288}")
    e.i(f"v_add_u32 v0, s{sT1}, v0")
    lds_poll(CGD, 1, sleep=0, va=1)
    if opt.echo: stamp(4)
    e.lds("ds_read_b128 v[40:43], v0")
    e.lds("ds_read_b128 v[44:47], v0 offset:1024")
    lds_poll(CE0, 2, sleep=0, va=4)
    for q in range(4):
        e.lds(f"ds_read_b128 {V(24+4*q,4)}, v2 offset:{q*1024}", ("e", q))
    for t in range(8):
        e.i(f"v_lshlrev_b32 v{G+2*t}, 16, v{40+t}")
        e.i(f"v_and_b32 v{G+1+2*t}, s{sMASK}, v{40+t}")
    for q in range(4):
        e.wait(lg=("e", q))
        for r in range(4*q, 4*q+4):
            e.i(f"v_add_f32 v{8+r}, v{8+r}, v{24+r}")
        for r in range(4*q, 4*q+4):
            e.i(f"v_fmac_f32 v{128+r}, v{8+r}, v{G+r}")
        for j in range(2):
            e.i(f"v_cvt_pk_bf16_f32 v{XR+2*q+j}, v{128+4*q+2*j}, v{128+4*q+2*j+1}")
        if not opt.wide:
            e.vmem(f"buffer_store_dwordx2 {V(XR+2*q,2)}, v3, {S(sOUT,4)}, s{sXO} offen offset:{16*q} {opt.outf}")
        elif q % 2 == 1:
            e.nop(2)
            e.i(f"v_permlane32_swap_b32 v{XR+2*q-2}, v{XR+2*q}")
            e.i(f"v_permlane32_swap_b32 v{XR+2*q-1}, v{XR+2*q+1}")
            e.vmem(f"buffer_store_dwordx4 {V(XR+2*q-2,4)}, v3, {S(sOUT,4)}, s{sXO} offen offset:{16*(q-1)} {opt.outf}")
    if opt.stamps:
        e.wait_all(vm=True)
        stamp(3, "late")
    if opt.echo:
        a, b = opt.echo
        e.i("s_waitcnt lgkmcnt(0)")
        e.i(f"s_sub_u32 s{sT0}, s{sSTAMP+2*b}, s{sSTAMP+2*a}")
        e.i(f"s_mul_i32 s{sT0}, s{sT0}, {opt.emul}")
        e.i(f"s_min_u32 s{sT0}, s{sT0}, 10000")
        e.i(f"s_add_u32 s{sT0}, s{sT0}, s{sSTAMP+6}")
        e.label("L_echo")
        e.i("s_memrealtime s[4:5]")
        e.i("s_waitcnt lgkmcnt(0)")
        e.i(f"s_sub_u32 s{sT1}, s4, s{sT0}")
        e.i(f"s_cmp_lt_i32 s{sT1}, 0")
        e.i("s_cbranch_scc1 L_echo")
    dump_stamps()
    e.i("s_endpgm")
    for g in range(4):
        e.label(f"L_oretry_{g}")
        e.i(f"s_sub_u32 s{sCNT}, s{sCNT}, 1")
        e.i(f"s_cbranch_scc1 L_odone_{g}")
        if opt.osleep:
            e.i(f"s_sleep {opt.osleep}")
        oloads(g)
        e.i("s_waitcnt vmcnt(0)")
        ocheck(g)
        e.i(f"s_cbranch_vccnz L_oretry_{g}")
        e.label(f"L_odone_{g}")
        for g2 in range(g + 1, 4):
            oloads(g2)
        e.i(f"s_branch L_ogo_{g}")
    if opt.full:
        for name, off, n in slow:
            e.label(f"L_slow_{name}")
            lds_poll(off, n, sleep=0)
            e.i(f"s_branch L_back_{name}")

    if opt.ln2:
        e.lines += ln2_lines
    if opt.dryq:
        e.label("L_dryq")
        e.c("wave 6 runs the Q projection code once on whatever LDS holds (its signal adds 0) to warm the instruction cache")
        e.i("s_setprio 0")
        e.i("s_waitcnt lgkmcnt(0)")
        e.i("v_mov_b32 v7, 0")
        e.i("s_branch L_q")
        e.label("L_dryq_ret")
        e.i("s_waitcnt lgkmcnt(0)")
        e.i("v_mov_b32 v7, 1")
        e.i("s_branch L_ffn")
    e.label("L_fallback")
    e.i("v_mov_b32 v24, 0xff800000")
    e.i("v_mov_b32 v25, 0xff800000")
    e.i(f"s_mov_b32 s{sT1}, 0")
    e.i(f"s_mov_b32 s{sCNT}, 31")
    e.label("L_fb_loop")
    e.i(f"buffer_load_dwordx4 v[8:11], v{vL16}, {S(sWS,4)}, s{sT1} offen sc1")
    e.i(f"buffer_load_dwordx4 v[12:15], v{vL16}, {S(sWS,4)}, s{sT1} offen offset:2048 sc1")
    e.i(f"s_add_u32 s{sT1}, s{sT1}, 4096")
    e.i("s_waitcnt vmcnt(0)")
    for k in range(2):
        e.i(f"{MF32} {V(NMA,16)}, {V(8+4*k,4)}, {V(QA,4)}, 0")
        e.i(f"{MF32} {V(NMB,16)}, {V(8+4*k,4)}, {V(QB,4)}, 0")
        e.nop(12)
        for r in range(0, 16, 2):
            e.i(f"v_max3_f32 v24, v24, v{NMA+r}, v{NMA+r+1}")
        for r in range(0, 16, 2):
            e.i(f"v_max3_f32 v25, v25, v{NMB+r}, v{NMB+r+1}")
    e.i(f"s_sub_u32 s{sCNT}, s{sCNT}, 1")
    e.i("s_cbranch_scc0 L_fb_loop")
    e.i("v_mov_b32 v26, v24")
    e.i("v_mov_b32 v27, v25")
    e.nop(2)
    e.i("v_permlane32_swap_b32 v24, v26")
    e.i("v_permlane32_swap_b32 v25, v27")
    e.i("v_max_f32 v24, v24, v26")
    e.i("v_max_f32 v25, v25, v27")
    e.i("s_branch L_att_start")

    e.label("L_pre_7")
    inatt[0] = False
    e.vm = []
    e.lg = []
    e.i("s_setprio 3")
    e.i(f"s_bitcmp1_b32 s{sCB}, 0")
    e.i("v_lshlrev_b32 v40, 4, v1")
    e.i("s_waitcnt lgkmcnt(0)")
    e.i(f"s_cselect_b64 {S(sWKV,2)}, s[54:55], s[52:53]")
    e.i(f"s_cselect_b32 s{sTILE}, 0, 6")
    e.i(f"s_load_dword s{sTAG}, s[68:69], {hex(WS_EPOCH)}")
    e.i(f"s_mov_b64 {S(sX,2)}, s[48:49]")
    for i in range(4):
        e.i(f"s_mov_b32 m0, {R2 + 4096*i}")
        e.i(f"s_mov_b32 s{sT0}, {4096*i}")
        for k in range(4):
            e.vmem(f"buffer_load_dwordx4 v40, {S(sWKV,4)}, s{sT0} offen offset:{1024*k} lds", "wkv")
    e.i("s_barrier")
    setup()
    e.i("v_lshrrev_b32 v42, 4, v1")
    e.i("v_and_b32 v43, 15, v1")
    e.i(f"s_lshr_b32 s{sT0}, s{sCB}, 2")
    e.i(f"s_mul_i32 s{sT0}, s{sT0}, {XN_RH}")
    e.i(f"s_bfe_u32 s{sT1}, s{sCB}, 0x10001")
    e.i(f"s_lshl_b32 s{sT1}, s{sT1}, 8")
    e.i(f"s_add_u32 s{sT0}, s{sT0}, s{sT1}")
    e.i(f"s_add_u32 s{sT0}, s{sT0}, {R1}")
    e.i("v_mul_u32_u24 v44, 528, v42")
    e.i("v_lshl_add_u32 v44, v43, 4, v44")
    e.i(f"v_add_u32 v44, s{sT0}, v44")
    e.i("v_lshlrev_b32 v45, 8, v42")
    e.i(f"v_lshl_add_u32 v45, v{vR}, 5, v45")
    e.i(f"v_lshl_add_u32 v45, v{vC}, 3, v45")
    e.i(f"v_add_u32 v45, {R2}, v45")
    for r in range(4):
        e.i(f"v_mov_b32 v{20+r}, 0x3f803f80")
    e.i(f"s_lshl_b32 s{sT2}, s{sRB}, 1")
    e.i(f"s_lshr_b32 s{sOFF2}, s{sCB}, 2")
    e.i(f"s_add_u32 s{sT2}, s{sT2}, s{sOFF2}")
    e.i(f"s_lshl_b32 s{sT2}, s{sT2}, 11")
    e.i(f"s_add_u32 s{sT2}, s{sT2}, s{sT1}")
    e.i(f"v_lshlrev_b32 v46, 3, v{vH}")
    e.i("v_lshl_add_u32 v46, v43, 4, v46")
    e.i(f"s_lshl_b32 s{sOFF2}, s{sRB}, 7")
    e.i(f"s_lshl_b32 s{sOFF}, s{sCB}, 3")
    e.i(f"s_add_u32 s{sOFF2}, s{sOFF2}, s{sOFF}")
    e.i(f"v_mov_b32 v18, {hex(WS_KVF)}")
    e.i(f"v_lshrrev_b32 v{vW1}, 2, v1")
    e.i(f"v_lshlrev_b32 v19, 7, v{vW1}")
    e.i(f"v_lshl_add_u32 v19, v{vC}, 4, v19")
    e.i("v_lshlrev_b32 v31, 11, v1")
    e.i(f"v_mul_u32_u24 v{vW1}, 3584, v{vW1}")
    e.i(f"v_lshl_add_u32 v{vW1}, v{vC}, 4, v{vW1}")
    e.i(f"v_lshlrev_b32 v{vT0}, 6, v{vR}")
    e.i(f"v_lshl_add_u32 v{vT0}, v{vCG}, 5, v{vT0}")
    e.i(f"v_lshl_add_u32 v{vT0}, v{vC}, 3, v{vT0}")
    e.i(f"v_lshl_add_u32 v{vT0}, v{vH}, 9, v{vT0}")
    e.i(f"v_add_u32 v{vT0}, s{sRING}, v{vT0}")
    e.i("s_waitcnt lgkmcnt(0)")
    e.i(f"s_mul_i32 s{sTAG}, s{sTAG}, 0x9e3779b1")
    e.i(f"s_add_u32 s{sTAG}, s{sTAG}, 0x7f4a7c15")
    e.i(f"v_mov_b32 v16, s{sTAG}")
    e.lds(f"ds_write_b32 v6, v16 offset:{CTAG}")
    e.wait(vm="wkv")
    stamp(1, "front")
    for ks in range(16):
        e.lds(f"ds_read_b64_tr_b16 {V(128+4*ks,2)}, v45 offset:{ks*1024}")
        e.lds(f"ds_read_b64_tr_b16 {V(130+4*ks,2)}, v45 offset:{ks*1024+128}")
    lds_signal(CXN)
    e.i(f"v_add_u32 v41, {RE}, v{vSP}")
    e.i(f"s_mov_b32 exec_lo, {hex((1 << NE) - 1)}")
    e.i(f"s_mov_b32 exec_hi, {hex((1 << NE) - 1)}")
    e.lds(f"ds_write_b128 v41, {V(vSD,4)} offset:2048")
    e.i("s_mov_b64 exec, -1")
    lds_poll(CRW, 2, sleep=0)
    for ks in range(16):
        e.lds(f"ds_read_b128 {V(64+4*ks,4)}, v44 offset:{ks*2112}", ("k", ks), guard=False)
    lds_signal(CRC)
    e.i(f"s_bitcmp1_b32 s{sCB}, 0")
    e.i("s_cbranch_scc1 L_w7_v")
    lg_save = list(e.lg)
    def kvloop(isV):
        for ks in range(16):
            W, Xf = V(128+4*ks, 4), V(64+4*ks, 4)
            a, b = ("v[20:23]", W) if isV else (W, "v[20:23]")
            e.i(f"{MF16} v[12:15], {a}, {b}, {'0' if ks == 0 else 'v[12:15]'}")
            e.wait(lg=("k", ks))
            a, b = (Xf, W) if isV else (W, Xf)
            e.i(f"{MF16} v[8:11], {a}, {b}, {'0' if ks == 0 else 'v[8:11]'}")
    kvloop(False)
    stamp(8, "front")
    e.i(f"v_lshl_add_u32 v46, v{vCG}, 9, v46")
    e.i("v_lshl_add_u32 v47, v43, 2, v6")
    lds_poll(CST, 2, sleep=0)
    e.i(f"ds_read2_b32 v[24:25], v47 offset0:{STAT//4} offset1:{STAT//4+16}")
    e.wait_all(lg=True)
    for r in range(4):
        e.i(f"v_fmac_f32 v{8+r}, v24, v{12+r}")
    for r in range(4):
        e.i(f"v_mul_f32 v{8+r}, v25, v{8+r}")
    e.i("v_cvt_pk_bf16_f32 v12, v8, v9")
    e.i("v_cvt_pk_bf16_f32 v13, v10, v11")
    e.i(f"buffer_store_dwordx2 v[12:13], v46, {S(sWS,4)}, s{sT2} offen sc1")
    e.i("v_mul_f32 v17, v8, v8")
    for r in range(1, 4):
        e.i(f"v_fmac_f32 v17, v{8+r}, v{8+r}")
    e.i("v_mov_b32 v15, v17")
    e.nop(2)
    e.i("v_permlane32_swap_b32 v17, v15")
    e.i("v_add_f32 v17, v17, v15")
    e.i("v_mov_b32 v15, v17")
    e.nop(2)
    e.i("v_permlane16_swap_b32 v17, v15")
    e.i("v_add_f32 v17, v17, v15")
    for m in ("row_ror:1", "row_ror:2", "row_ror:4", "row_ror:8"):
        e.nop(2)
        e.i(f"v_max_u32_dpp v17, v17, v17 {m} row_mask:0xf bank_mask:0xf")
    e.i("s_branch L_w7_pub")
    e.label("L_w7_v")
    e.lg = lg_save
    kvloop(True)
    stamp(8, "front")
    e.i(f"v_lshlrev_b32 v46, 4, v43")
    e.i(f"v_lshl_add_u32 v46, v{vH}, 8, v46")
    e.i(f"v_lshl_add_u32 v46, v{vCG}, 3, v46")
    e.i(f"s_add_u32 s{sT2}, s{sT2}, s{sT1}")
    e.i(f"s_add_u32 s{sT2}, s{sT2}, 1024")
    e.i("v_lshl_add_u32 v47, v42, 4, v6")
    lds_poll(CST, 2, sleep=0)
    e.i(f"ds_read_b128 v[24:27], v47 offset:{STAT}")
    e.i(f"ds_read_b128 v[32:35], v47 offset:{STAT+64}")
    e.wait_all(lg=True)
    for r in range(4):
        e.i(f"v_fmac_f32 v{8+r}, v{24+r}, v{12+r}")
    for r in range(4):
        e.i(f"v_mul_f32 v{8+r}, v{32+r}, v{8+r}")
    e.i("v_cvt_pk_bf16_f32 v12, v8, v9")
    e.i("v_cvt_pk_bf16_f32 v13, v10, v11")
    e.i(f"buffer_store_dwordx2 v[12:13], v46, {S(sWS,4)}, s{sT2} offen sc1")
    e.i("v_mov_b32 v17, 0")
    e.label("L_w7_pub")
    stamp(2)
    e.i("s_mov_b64 exec, 1")
    e.wait_all(vm=True)
    e.i(f"buffer_store_dwordx2 v[16:17], v18, {S(sWS,4)}, s{sOFF2} offen sc1")
    e.i("s_mov_b64 exec, -1")
    stamp(9)
    e.c("wait for all 256 K/V producers, pass max |k|^2 on through LDS")
    top, done = lbl("kv"), lbl("kvd")
    e.i(f"s_mov_b32 s{sT1}, {hex(WS_KVF)}")
    e.i(f"s_bfe_u32 s{sT2}, s2, 0x40003")
    e.i(f"s_lshl_b32 s{sT2}, s{sT2}, 7")
    if opt.touch == 3:
        e.c("touch 1/8 of the w1 slice -> L2; the first poll queues behind it")
        if opt.twait == 1:
            lds_poll(CWQ, 1, sleep=1)
        if opt.twait == 2:
            lds_poll(CWI, 1, sleep=1)
        touch_setup(sOFF)
        touches(sOFF, 0, opt.ntouch)
    if opt.kvdelay:
        e.i(f"s_sleep {opt.kvdelay}")
    spin_init()
    e.label(top)
    e.i(f"buffer_load_dwordx4 v[32:35], v19, {S(sWS,4)}, s{sT1} offen sc1")
    e.i(f"buffer_load_dwordx4 v[36:39], v19, {S(sWS,4)}, s{sT1} offen offset:2048 sc1")
    e.wait_all(vm=True)
    if opt.fstart == 3:
        lds_signal(CTL)
    e.i("v_xor_b32 v32, v16, v32")
    e.i("v_xor_b32 v34, v16, v34")
    e.i("v_xor_b32 v36, v16, v36")
    e.i("v_xor_b32 v38, v16, v38")
    e.i("v_or3_b32 v32, v32, v34, v36")
    e.i("v_or_b32 v32, v32, v38")
    e.i("v_cmp_ne_u32 vcc, 0, v32")
    e.i("v_max_u32 v30, v33, v37")
    e.i(f"s_cbranch_vccz {done}")
    spin_tail(top, done, opt.kvsleep)
    e.label(done)
    lds_signal(CKV)
    e.c("blocks 0..6 -> early slots in R2")
    e.i(f"s_mov_b32 s{sOFF2}, 0")
    e.i(f"s_mov_b32 s{sT1}, {RE}")
    kv_dma(NE, sOFF2, sT1, 1, 1)
    if opt.kvtouch:
        e.c("touch 64 of the 1024 K/V lines -> L2 (the workgroups of an XCD cover all of them)")
        e.i(f"buffer_load_dword v106, v31, {S(sWS,4)}, s{sT2} offen sc1")
    for m in ("row_ror:1", "row_ror:2", "row_ror:4", "row_ror:8"):
        e.nop(2)
        e.i(f"v_max_u32_dpp v30, v30, v30 {m} row_mask:0xf bank_mask:0xf")
    e.i("v_mov_b32 v29, v30")
    e.nop(2)
    e.i("v_permlane16_swap_b32 v29, v30")
    e.i("v_max_u32 v30, v29, v30")
    e.i("v_mov_b32 v29, v30")
    e.nop(2)
    e.i("v_permlane32_swap_b32 v29, v30")
    e.i("v_max_u32 v30, v29, v30")
    e.lds(f"ds_write_b32 v6, v30 offset:{CKM}")
    lds_signal(CKV)
    stamp(4, "front")
    e.c("blocks 5..36 -> slots 0..31")
    e.i(f"s_mov_b32 s{sT1}, 0")
    lds_poll(CQ, 4, sleep=0)
    e.vm = []
    e.lds(f"ds_write_b128 v{vSP}, {V(vSD,4)} offset:2048")
    kv_dma(opt.g1, sOFF2, sT1, 1, 1)
    e.i(f"s_waitcnt vmcnt({2 * opt.g1 + (1 if opt.kvtouch else 0)})")
    lds_signal(CE7)
    if opt.lowp & 8:
        e.i("s_setprio 0")
    if opt.g1 < 8:
        kv_dma(8 - opt.g1, sOFF2, sT1, 1, 1)
    e.i("s_waitcnt vmcnt(0)")
    lds_signal(CA)
    kv_dma(8, sOFF2, sT1, 1, 1)
    for st in range(2):
        kv_dma(8, sOFF2, sT1, 1, 1)
        e.i("s_waitcnt vmcnt(16)")
        e.vm = []
        lds_signal(CA)
    e.i("s_waitcnt vmcnt(0)")
    lds_signal(CA)
    lds_poll(CG, 4, sleep=1)
    e.c("workgroup 0 renews the epoch word: every producer has read it by now")
    e.i("s_cmp_lg_u32 s2, 0")
    e.i("s_cbranch_scc1 L_ffn")
    e.i(f"v_mov_b32 v29, {hex(WS_EPOCH)}")
    e.i("s_mov_b64 exec, 1")
    e.i(f"buffer_store_dword v16, v29, {S(sWS,4)}, 0 offen sc1")
    e.i("s_mov_b64 exec, -1")

    ACC = 8
    NR = opt.NR
    AF, BF = 72, 88
    e.label("L_ffn")
    e.vm = []
    e.lg = []
    e.i("s_setprio 3")
    e.i(f"s_mul_i32 s{sOFF}, s{sCB}, 448")
    e.i(f"s_lshl_b32 s{sT1}, s{sTILE}, 6")
    e.i(f"s_add_u32 s{sOFF}, s{sOFF}, s{sT1}")
    e.c("k order is rotated by 4*(rb&7) steps: the 8 workgroups of an XCD that share this w1 slice take turns missing")
    e.i(f"s_add_u32 s{sE1}, s{sOFF}, {512*3584}")
    e.i(f"s_and_b32 s{sT1}, s{sRB}, {7 if opt.rot & 2 else 0}")
    e.i(f"s_mul_i32 s{sT0}, s{sT1}, {64*3584}")
    e.i(f"s_add_u32 s{sOFF}, s{sOFF}, s{sT0}")
    for g in range(8):
        e.i(f"s_add_u32 s{sT0}, s{sT1}, {g}")
        e.i(f"s_and_b32 s{sT0}, s{sT0}, 7")
        e.i(f"s_mul_i32 s{sT0}, s{sT0}, {4*1056}")
        e.i(f"v_add_u32 v{232+2*g}, s{sT0}, v{vXN0}")
        e.i(f"v_add_u32 v{233+2*g}, s{sT0}, v{vXN1}")
    e.i(f"s_mul_i32 s{sW2T}, s{sF}, {448*1024}")
    e.i(f"s_lshl_b32 s{sT0}, s{sCB}, 7")
    e.i(f"s_add_u32 s{sW2T}, s{sW2T}, s{sT0}")
    e.i(f"s_and_b32 s{sT0}, s{sRB}, 7")
    e.i(f"s_min_u32 s{sT0}, s{sT0}, 6")
    e.i(f"s_lshl_b32 s{sT0}, s{sT0}, 16")
    e.i(f"s_add_u32 s{sW2T}, s{sW2T}, s{sT0}")
    e.i(f"v_lshrrev_b32 v{vTCH}, 2, v1")
    e.i(f"v_lshlrev_b32 v{vTCH}, 10, v{vTCH}")
    e.i(f"v_lshl_add_u32 v{vTCH}, v{vC}, 8, v{vTCH}")
    if opt.epre:
        e.i(f"s_cmp_eq_u32 s{sWAVE}, 7")
        e.i("s_cbranch_scc1 L_no_epre")
        lds_poll(CRC, 1, sleep=1)
        if opt.epre == 2:
            lds_poll(CWI, 1, sleep=1)
        for ks in range(3):
            for a in range(2):
                e.i(f"s_add_u32 m0, s{sRING}, {ks * 2048 + a * 1024}")
                e.i("s_nop 0")
                e.i(f"buffer_load_dwordx4 v{vW1}, {S(sW1,4)}, s{sOFF} offen lds")
                e.i(f"s_add_u32 s{sOFF}, s{sOFF}, {8*3584}")
        e.c("touch the lines of the fourth step as well")
        e.i("v_mul_u32_u24 v125, 3584, v1")
        e.i("s_mov_b64 exec, 0xffff")
        e.i(f"buffer_load_dword v124, v125, {S(sW1,4)}, s{sOFF} offen")
        e.i("s_mov_b64 exec, -1")
        e.label("L_no_epre")
    lds_poll(CXN, 9, sleep=1)
    e.i(f"ds_read_b32 v4, v6 offset:{CTAG}")
    e.i("v_mov_b64 v[208:209], -1")
    e.i("v_mov_b64 v[210:211], -1")
    if opt.fgo == 2:
        lds_poll(CKV, 1, sleep=1)
    if opt.fgo == 3:
        lds_poll(CE7, 1, sleep=1)
    e.wait_all(lg=True)
    e.i(f"v_readfirstlane_b32 s{sTAG}, v4")
    e.i(f"s_setprio {opt.fprio1}")
    stamp(2, "late")
    e.i(f"s_cmp_eq_u32 s{sWAVE}, 7")
    e.i("s_cbranch_scc1 L_ffn1_w7")

    def paced(n):
        if n == 0:
            e.wait_all(lg=True)
        elif len(e.lg) > n:
            e.i(f"s_waitcnt lgkmcnt({n})")
            del e.lg[: len(e.lg) - n]
    def bread(ks, rh):
        e.lds(f"ds_read_b128 {V(BF+8*(ks%2)+4*rh,4)}, v{232+2*(ks//4)+rh} offset:{(ks%4)*1056}", ("f", ks))
    def wrap1():
        e.i(f"s_cmp_ge_u32 s{sOFF}, s{sE1}")
        e.i(f"s_cselect_b32 s{sT0}, {512*3584}, 0")
        e.i(f"s_sub_u32 s{sOFF}, s{sOFF}, s{sT0}")
    def w2_touch():
        if opt.warm2:
            e.c("touch 1/7 of this wave's w2 slice (8 workgroups of an XCD share it) -> L2")
            e.vmem(f"buffer_load_dword v124, v{vTCH}, {S(sW2,4)}, s{sW2T} offen")
    def marker(hd):
        e.vmem(f"buffer_store_dwordx4 v[208:211], v{vL16}, {S(sWS,4)}, s{sOB} offen offset:{2048*hd} sc1", "clr")
    def e1():
        e.c("waves 4..6: blocks 37..51 -> slots 0..14 once attention has read them")
        lds_poll(CP1, 4, sleep=2)
        e.i(f"s_lshl_b32 s{sU0}, s{sF}, 11")
        e.i(f"s_add_u32 s{sU0}, s{sU0}, {(NE+32)*2048}")
        e.i(f"s_mul_i32 s{sU1}, s{sF}, {KVS}")
        kv_dma(5, sU0, sU1, 3, 3)
    def h_store(tiles):
        lds_signal(CX)
        stamp(3)
        e.i("s_setprio 3")
        e.i(f"s_mul_i32 s{sT0}, s{sRB}, 112")
        e.i(f"s_mul_i32 s{sT1}, s{sCB}, 14")
        e.i(f"s_add_u32 s{sT0}, s{sT0}, s{sT1}")
        e.i(f"s_lshl_b32 s{sT1}, s{sTILE}, 1")
        e.i(f"s_add_u32 s{sT0}, s{sT0}, s{sT1}")
        e.i(f"s_lshl_b32 s{sT0}, s{sT0}, 11")
        e.i(f"s_add_u32 s{sOFF}, s{sT0}, {WS_H}")
        e.i(f"s_add_u32 s{sOFF2}, s{sOFF}, 4096")
        if len(tiles) == 2 and opt.e1pos == 0:
            e1()
        e.c("mark the o fragments of attention wave f as not yet written")
        if not opt.mkearly:
            marker(0); marker(1)
        for ct in tiles:
            for rh in range(2):
                a = ACC + 16 * (rh * 2 + ct)
                for j in range(8):
                    e.i(f"v_cvt_pk_bf16_f32 v{a+j}, v{a+2*j}, v{a+2*j+1}")
                for j in range(8):
                    e.i(f"v_pk_max_i16 v{a+j}, v{a+j}, 0")
                if not (opt.lowp & 1):
                    for s in range(2):
                        e.vmem(f"buffer_store_dwordx4 {V(a+4*s,4)}, v{vL16}, {S(sWS,4)}, s{sOFF2 if ct else sOFF} offen offset:{(2*s+rh)*1024} sc1", "hst")
        if opt.lowp & 1:
            e.i("s_setprio 0")
            for ct in tiles:
                for rh in range(2):
                    a = ACC + 16 * (rh * 2 + ct)
                    for s in range(2):
                        e.vmem(f"buffer_store_dwordx4 {V(a+4*s,4)}, v{vL16}, {S(sWS,4)}, s{sOFF2 if ct else sOFF} offen offset:{(2*s+rh)*1024} sc1", "hst")
    def ring_dma(ks, srd, v, step):
        for a in range(2):
            e.i(f"s_add_u32 m0, s{sRING}, {(ks % NR) * 2048 + a * 1024}")
            e.i("s_nop 0")
            e.vmem(f"buffer_load_dwordx4 v{v}, {S(srd,4)}, s{sOFF} offen lds", ("w", ks))
            e.i(f"s_add_u32 s{sOFF}, s{sOFF}, {step}")
    def tr2(ks, i, tstride):
        ct, t = i >> 1, i & 1
        e.lds(f"ds_read_b64_tr_b16 {V(AF+8*(ks%2)+4*ct+2*t,2)}, v{vT1 if ct else vT0} offset:{(ks%NR)*2048+tstride*t}", ("f", ks))

    e.c("FFN1, waves 4..6: two column tiles x two row halves")
    if opt.fp_n:
        e.i(f"s_setprio {opt.fp_early}")
    A3, B3 = 72, 96
    LA = 1 if opt.la1 else 2
    def dma1(ks, a):
        e.i(f"s_add_u32 m0, s{sRING}, {(ks % 3) * 2048 + a * 1024}")
        e.i("s_nop 0")
        e.vmem(f"buffer_load_dwordx4 v{vW1}, {S(sW1,4)}, s{sOFF} offen lds", ("w", ks))
        e.i(f"s_add_u32 s{sOFF}, s{sOFF}, {8*3584}")
        if a == 1 and ks % 4 == 3:
            wrap1()
    def br3(ks, rh):
        e.lds(f"ds_read_b128 {V(B3+8*(ks%3)+4*rh,4)}, v{232+2*(ks//4)+rh} offset:{(ks%4)*1056}", ("f", ks))
    def tr3(ks, i):
        ct, t = i >> 1, i & 1
        e.lds(f"ds_read_b64_tr_b16 {V(A3+8*(ks%3)+4*ct+2*t,2)}, v{vT1 if ct else vT0} offset:{(ks%3)*2048+512*t}", ("f", ks))
    if opt.epre:
        e.vm = [("w", ks) for ks in range(3) for _ in range(2)] + ["t"]
    else:
        for ks in range(3):
            dma1(ks, 0); dma1(ks, 1)
    for ks in range(LA):
        br3(ks, 0); br3(ks, 1)
        e.wait(vm=("w", ks))
        for i in range(4):
            tr3(ks, i)
    for ks in range(32):
        s = ks % 3
        e.wait(lg=("f", ks))
        n = ks + LA
        dense = ks < opt.dense
        for i in range(4):
            rh, ct = i >> 1, i & 1
            a = ACC + 16 * i
            e.i(f"{MF32} {V(a,16)}, {V(A3+8*s+4*ct,4)}, {V(B3+8*s+4*rh,4)}, {'0' if ks == 0 else V(a,16)}")
            if opt.ord1 == 1:
                if i in (0, 1) and ks + 3 < 32:
                    dma1(ks + 3, i)
                if n < 32:
                    if i in (0, 1):
                        br3(n, i)
                    if i == 2:
                        e.wait(vm=("w", n))
                        for t in range(4):
                            tr3(n, t)
                        paced(2)
                continue
            if i == 0 and ks + 3 < 32:
                dma1(ks + 3, 0)
                dma1(ks + 3, 1)
            if n < 32:
                if i == 0:
                    br3(n, 0); br3(n, 1)
                if i == 1:
                    e.wait(vm=("w", n))
                if dense:
                    if i in (1, 2):
                        tr3(n, 2 * i - 2); tr3(n, 2 * i - 1)
                else:
                    if i == 1:
                        tr3(n, 0); tr3(n, 1)
                    if i >= 2:
                        tr3(n, i)
                    paced(opt.pace1)
        if opt.mkearly and ks in (14, 20):
            marker(ks // 20)
        if opt.mid2 and ks in (0, 4, 8, 12):
            stamp({0: 1, 4: 8, 8: 9, 12: 4}[ks])
        if opt.fp_n and ks == opt.fp_n:
            e.i(f"s_setprio {opt.fprio1}")
        if opt.mid and ks in (0, 4, 8, 12, 16, 20):
            stamp(4 + ks // 4)
    if opt.mid:
        lds_signal(CX)
        stamp(3)
        dump_stamps()
        e.i("s_endpgm")
    h_store([0, 1])
    if opt.e1pos == 1:
        e1()
    e.i("s_branch L_ffn_join")

    e.label("L_ffn1_w7")
    e.vm = []
    e.lg = []
    e.c("FFN1, wave 7: one column tile")
    def dma7(ks):
        e.i(f"s_add_u32 m0, s{sRING}, {(ks % 8) * 1024}")
        e.i("s_nop 0")
        e.vmem(f"buffer_load_dwordx4 v{vW1}, {S(sW1,4)}, s{sOFF} offen lds", ("w", ks))
        e.i(f"s_add_u32 s{sOFF}, s{sOFF}, {16*3584}")
        if ks % 4 == 3:
            wrap1()
    def tr7(ks, t):
        e.lds(f"ds_read_b64_tr_b16 {V(AF+8*(ks%2)+2*t,2)}, v{vT0} offset:{(ks%8)*1024+256*t}", ("f", ks))
    if opt.t7:
        e.i(f"s_lshr_b32 s{sT1}, s2, 3")
        e.i(f"s_and_b32 s{sT2}, s{sCB}, 1")
        e.i(f"s_lshl_b32 s{sT2}, s{sT2}, 7")
        e.i(f"s_mul_i32 s{sU0}, s{sT1}, {56*1024}")
        e.i(f"s_add_u32 s{sU0}, s{sU0}, s{sT2}")
        for i in range(4):
            e.i(f"buffer_load_dword v124, v{vTCH}, {S(sW2,4)}, s{sU0} offen")
            e.i(f"s_add_u32 s{sU0}, s{sU0}, {14*1024}")
    e.i(f"s_setprio {opt.p7}")
    for ks in range(8):
        dma7(ks)
    bread(0, 0); bread(0, 1)
    e.wait(vm=("w", 0))
    tr7(0, 0); tr7(0, 1)
    for ks in range(32):
        s = ks % 2
        e.wait(lg=("f", ks))
        if ks + 8 < 32:
            dma7(ks + 8)
        if ks + 1 < 32:
            e.wait(vm=("w", ks + 1))
        for rh in range(2):
            a = ACC + 32 * rh
            e.i(f"{MF32} {V(a,16)}, {V(AF+8*s,4)}, {V(BF+8*s+4*rh,4)}, {'0' if ks == 0 else V(a,16)}")
            if ks + 1 < 32:
                bread(ks + 1, rh)
                tr7(ks + 1, rh)
                if rh == 0 and ks >= opt.dense:
                    paced(opt.pace1)
        if opt.mkearly and ks in (14, 20):
            marker(ks // 20)
    h_store([0])

    e.label("L_ffn_join")
    e.i("s_setprio 3")
    e.i(f"s_lshl_b32 s{sT2}, s{sCB}, 7")
    e.i(f"s_lshl_b32 s{sT1}, s{sF}, 2")
    e.i(f"s_add_u32 s{sT2}, s{sT2}, s{sT1}")
    e.i(f"s_add_u32 s{sT2}, s{sT2}, s{sFLG}")
    e.i("v_mov_b32 v72, 0")
    e.i(f"v_mov_b32 v73, s{sTAG}")
    e.i(f"v_add_u32 v{vSP}, {R1}, v{vSP}")
    e.i(f"s_lshl_b32 s{sRING}, s{sF}, 14")
    e.i(f"s_add_u32 s{sRING}, s{sRING}, {RB2}")
    e.i(f"v_lshl_add_u32 v{vTR}, v{vH}, 9, v{vTR}")
    e.c("accumulator i holds output tile i ^ f, so that accumulator 0 is this wave's own tile")
    e.i(f"s_and_b32 s{sT1}, s{sF}, 1")
    e.i(f"s_lshl_b32 s{sT1}, s{sT1}, 6")
    e.i(f"v_xor_b32 v{vT0}, s{sT1}, v{vTR}")
    e.i(f"v_add_u32 v{vT0}, s{sRING}, v{vT0}")
    e.i(f"v_xor_b32 v{vT1}, 64, v{vT0}")
    e.i(f"s_lshr_b32 s{sT1}, s{sF}, 1")
    e.i(f"s_lshl_b32 s{sT1}, s{sT1}, 10")
    e.i(f"v_add_u32 v0, s{sT1}, v{vL16}")
    e.i("v_xor_b32 v2, 0x400, v0")
    e.i("v_bfe_u32 v122, v1, 2, 3")
    e.i("v_lshlrev_b32 v122, 7, v122")
    e.i(f"v_lshl_add_u32 v122, v{vC}, 2, v122")
    e.i("v_lshlrev_b32 v123, 9, v1")
    e.i(f"s_mov_b32 s{sW2T}, s{sT2}")
    if opt.lowp & 2:
        e.i("s_setprio 0")
    def flag_out():
        e.i("s_mov_b64 exec, 1")
        e.vmem(f"buffer_store_dword v73, v72, {S(sWS,4)}, s{sW2T} offen sc1")
        e.i("s_mov_b64 exec, -1")
        lds_signal(CL1)
        stamp(4, "late")
    if not opt.prefirst:
        e.wait_all(vm=True)
        flag_out()
    e.i(f"s_mul_i32 s{sOFF}, s{sF}, {448*1024}")
    e.i(f"s_lshl_b32 s{sT0}, s{sCB}, 7")
    e.i(f"s_add_u32 s{sOFF}, s{sOFF}, s{sT0}")
    e.i(f"s_mov_b32 s{sE1}, s{sOFF}")
    e.i(f"s_cmp_eq_u32 s{sWAVE}, 7")
    e.i("s_cbranch_scc1 L_no_e1")
    e.c("touch 1/32 of the w2 / wo lines this XCD needs -> L2 (waves 4,5: w2, wave 6: wo)")
    e.i(f"s_lshr_b32 s{sT1}, s2, 3")
    e.i(f"s_and_b32 s{sT2}, s{sCB}, 1")
    e.i(f"s_lshl_b32 s{sT2}, s{sT2}, 7")
    e.i(f"s_cmp_eq_u32 s{sWAVE}, 6")
    e.i("s_cbranch_scc1 L_t_wo")
    e.i(f"s_lshl_b32 s{sT1}, s{sT1}, 1")
    e.i(f"s_add_u32 s{sT1}, s{sT1}, s{sF}")
    e.i(f"s_mul_i32 s{sT1}, s{sT1}, {28*1024}")
    e.i(f"s_add_u32 s{sT1}, s{sT1}, s{sT2}")
    if not opt.t7:
        e.i(f"buffer_load_dword v124, v{vTCH}, {S(sW2,4)}, s{sT1} offen")
        e.i(f"s_add_u32 s{sT1}, s{sT1}, {12*1024}")
        e.i(f"buffer_load_dword v124, v{vTCH}, {S(sW2,4)}, s{sT1} offen")
    e.i("s_branch L_no_e1")
    e.label("L_t_wo")
    e.i(f"s_lshl_b32 s{sT1}, s{sT1}, 14")
    e.i(f"s_add_u32 s{sT1}, s{sT1}, s{sT2}")
    e.i(f"buffer_load_dword v124, v{vTCH}, {S(sWO,4)}, s{sT1} offen")
    e.label("L_no_e1")
    e.c("blocks 51..63 -> R1 once xn is dead")
    lds_poll(CX, 4, sleep=4)
    e.i(f"s_lshl_b32 s{sOFF2}, s{sF}, 11")
    e.i(f"s_add_u32 s{sOFF2}, s{sOFF2}, {(NE+47)*2048}")
    e.i(f"s_mul_i32 s{sT1}, s{sF}, {KVS}")
    e.i(f"s_add_u32 s{sT1}, s{sT1}, {R1}")
    e.vm = []
    kv_dma(3, sOFF2, sT1, 4, 4)
    e.i("s_mov_b32 exec_lo, 0xfff")
    e.i("s_mov_b32 exec_hi, 0xfff")
    e.lds(f"ds_write_b128 v{vSP}, {V(vSD,4)} offset:2048")
    e.i("s_mov_b64 exec, -1")
    stamp(5)
    if opt.exit_at == 5:
        e.wait_all(vm=True)
        lds_signal(CH2)
    exit_if(5)
    e.i(f"s_lshr_b32 s{sT2}, s{sCB}, 1")
    for c in range(4):
        e.i(f"s_xor_b32 s{sCH+c}, s{sT2}, {c}")
        e.i(f"s_mul_i32 s{sCH+c}, s{sCH+c}, {7*2048}")
    e.i(f"s_mul_i32 s{sT0}, s{sRB}, 112")
    e.i(f"s_mul_i32 s{sT1}, s{sF}, 28")
    e.i(f"s_add_u32 s{sT0}, s{sT0}, s{sT1}")
    e.i(f"s_lshl_b32 s{sT0}, s{sT0}, 11")
    e.i(f"s_add_u32 s{sE2}, s{sT0}, {WS_H}")
    e.i(f"s_lshl_b32 s{sT0}, s{sF}, 3")
    e.i(f"s_and_b32 s{sT1}, s{sCB}, 4")
    e.i(f"s_add_u32 s{sT1}, s{sT1}, s{sT0}")
    e.i(f"s_lshl_b32 s4, 15, s{sT1}")
    e.i(f"s_lshl_b32 s5, 0xff, s{sT0}")
    def set_w(c):
        e.i(f"s_lshl_b32 s{sOFF}, s{sCH+c}, 3")
        e.i(f"s_add_u32 s{sOFF}, s{sOFF}, s{sE1}")
    def set_h(c):
        e.i(f"s_add_u32 s{sOFF2}, s{sCH+c}, s{sE2}")
    set_w(0)
    set_h(0)
    PH = opt.ph
    def wo_dma():
        e.c("wo slice -> R0 by DMA once attention has left it")
        e.i("s_setprio 3")
        lds_poll(CR0, 4, sleep=8)
        if opt.lowp & 4:
            e.i("s_setprio 0")
        e.i(f"s_lshl_b32 s{sU0}, s{sF}, 17")
        e.i(f"s_lshl_b32 s{sU1}, s{sCB}, 7")
        e.i(f"s_add_u32 s{sU0}, s{sU0}, s{sU1}")
        e.i(f"s_lshl_b32 s{sU1}, s{sF}, 14")
        e.i(f"s_lshl_b32 s{sT1}, s{sRB}, {11 if opt.rot & 8 else 14}")
        for i in range(16):
            e.i(f"s_and_b32 s{sT1}, s{sT1}, 0x3fff")
            e.i(f"s_add_u32 m0, s{sU1}, s{sT1}")
            e.i(f"s_lshl_b32 s{sT0}, s{sT1}, 3")
            e.i(f"s_add_u32 s{sT0}, s{sT0}, s{sU0}")
            e.vmem(f"buffer_load_dwordx4 v{vSW}, {S(sWO,4)}, s{sT0} offen lds", "wo")
            e.i(f"s_add_u32 s{sT1}, s{sT1}, 1024")
    def red_addr():
        e.i(f"v_add_u32 v208, s{sRING}, v{vL16}")
        for i in (1, 2, 3):
            e.i(f"s_xor_b32 s{sT0}, s{sF}, {i}")
            e.i(f"s_lshl_b32 s{sT0}, s{sT0}, 14")
            e.i(f"s_add_u32 s{sT0}, s{sT0}, {RB2 + (i-1)*4096}")
            e.i(f"v_add_u32 v{208+i}, s{sT0}, v{vL16}")
        e.i(f"s_lshl_b32 s{sT0}, s{sF}, 2")
        e.i(f"v_add_u32 v212, s{sT0}, v6")
        e.i(f"s_mov_b32 s{sT1}, {hex(f32bits(-math.log2(math.e)))}")
    HR = [96, 104, 112, 232, 240, 248, 192, 200][:PH]
    NP = opt.npre
    def dma2(ks, a):
        e.i(f"s_add_u32 m0, s{sRING}, {(ks % 8) * 2048 + a * 1024}")
        e.i("s_nop 0")
        e.vmem(f"buffer_load_dwordx4 v{vSW}, {S(sW2,4)}, s{sOFF} offen lds", ("w", ks))
        e.i(f"s_add_u32 s{sOFF}, s{sOFF}, 8192")
        if a == 1 and ks % 7 == 6 and ks < 27:
            set_w(ks // 7 + 1)
    def hl2(ks, rh):
        r = HR[ks % PH] + 4 * rh
        e.vmem(f"buffer_load_dwordx4 {V(r,4)}, v{2 if rh else 0}, {S(sWS,4)}, s{sOFF2} offen sc1", ("h", ks))
        if rh:
            e.i(f"s_add_u32 s{sOFF2}, s{sOFF2}, 2048")
            if ks % 7 == 6 and ks < 27:
                set_h(ks // 7 + 1)
    def areg(ks):
        return 128 + 8 * ks if ks < NP else A3 + 8 * (ks % 3)
    def t32(ks, i):
        ct, t = i >> 1, i & 1
        e.lds(f"ds_read_b64_tr_b16 {V(areg(ks)+4*ct+2*t,2)}, v{vT1 if ct else vT0} offset:{(ks%8)*2048+1024*t}", ("f", ks))
    e.c("while h is in flight: w2 stages -> ring -> fragments in registers, ring refilled")
    for ks in range(8):
        dma2(ks, 0); dma2(ks, 1)
    if opt.prefirst:
        e.i(f"s_waitcnt vmcnt({len(e.vm) + opt.pslack})")
        flag_out()
    e.wait(vm=("kv", 2))
    lds_signal(CH2)
    for ks in range(max(NP, 2)):
        e.wait(vm=("w", ks))
        for i in range(4):
            t32(ks, i)
        if 1 <= ks <= NP:
            e.wait(lg=("f", ks - 1))
            dma2(ks + 7, 0); dma2(ks + 7, 1)
    if NP >= 2:
        e.wait(lg=("f", NP - 1))
        dma2(NP + 7, 0); dma2(NP + 7, 1)
    stamp(9, "late")
    top, done = lbl("fp"), lbl("fpd")
    spin_init()
    e.label(top)
    e.i(f"buffer_load_dword v124, v122, {S(sWS,4)}, s{sFLG} offen sc1")
    e.wait_all(vm=True)
    e.i(f"v_cmp_ne_u32 vcc, s{sTAG}, v124")
    e.i(f"s_and_b32 s{sT0}, vcc_lo, s4")
    e.i(f"s_cbranch_scc0 {done}")
    spin_tail(top, done, 4)
    e.label(done)
    stamp(6)
    e.i(f"s_setprio {opt.fprio}")
    for ks in range(PH - 1):
        hl2(ks, 0); hl2(ks, 1)
    for ks in range(28):
        if ks == 12 - PH:
            e.vmem(f"buffer_load_dword v124, v122, {S(sWS,4)}, s{sFLG} offen sc1", "fl")
        if ks == 15 - PH:
            e.c("the second producer must have published before its half is read")
            e.wait(vm="fl")
            e.i("s_setprio 3")
            e.i(f"v_cmp_ne_u32 vcc, s{sTAG}, v124")
            e.i(f"s_and_b32 s{sT0}, vcc_lo, s5")
            e.i("s_cbranch_scc1 L_slow_h")
            e.label("L_back_h")
            e.i(f"s_setprio {opt.fprio}")
        if ks == opt.hold:
            e.c("the operands of the last steps are on chip: run them after attention, under the o hand-off")
            e.i("s_setprio 3")
            e.wait_all(vm=True)
            if opt.wo_at + 3 >= opt.hold:
                lds_signal(CWO)
            red_addr()
            lds_poll(CAD, 4, sleep=1)
            e.i(f"s_setprio {opt.hp}")
        e.wait(lg=("f", ks), vm=("h", ks))
        e.wait(vm=("w", ks + 2))
        for i in range(4):
            rh, ct = i >> 1, i & 1
            a = ACC + 16 * i
            e.i(f"{MF32} {V(a,16)}, {V(areg(ks)+4*ct,4)}, {V(HR[ks%PH]+4*rh,4)}, {'0' if ks == 0 else V(a,16)}")
            if ct == 0:
                if ks >= NP and ks + 8 < 28:
                    dma2(ks + 8, rh)
            elif ks + PH - 1 < 28:
                hl2(ks + PH - 1, rh)
            if max(NP, 2) <= ks + 2 < 28:
                t32(ks + 2, i)
                if opt.dense2 <= ks < min(opt.late2, opt.hold):
                    paced(opt.pace2)
        if ks == opt.wo_at:
            wo_dma()
            e.i(f"s_setprio {opt.fprio}")
        if ks == min(opt.wo_at + 3, 27) and opt.wo_at + 3 < opt.hold:
            e.wait(vm="wo")
            lds_signal(CWO)
    stamp(7)
    exit_if(7)
    e.i("s_setprio 3")
    if opt.wo_at >= 28:
        wo_dma()
    e.c("f partials: accumulators 1..3 -> own ring; wave f^i picks up accumulator i")
    if opt.hold > 27:
        red_addr()
    e.nop(10)
    e.i(f"s_setprio {opt.fprio}")
    for i in (1, 2, 3):
        for q in range(4):
            e.lds(f"ds_write_b128 v208, {V(ACC+16*i+4*q,4)} offset:{(i-1)*4096+q*1024}")
    lds_signal(CF)
    e.i("s_setprio 3")
    stamp(8, "late")
    lds_poll(CF, 4, sleep=0)
    for i in (1, 2, 3):
        for q in range(4):
            e.lds(f"ds_read_b128 {V(ACC+16*i+4*q,4)}, v{208+i} offset:{q*1024}", ("r", i))
    if opt.glate and opt.hold > 27:
        lds_poll(CAD, 4, sleep=4)
    for i in (1, 2, 3):
        e.wait(lg=("r", i))
        for r in range(0, 16, 2):
            e.i(f"v_pk_add_f32 {V(ACC+r,2)}, {V(ACC+r,2)}, {V(ACC+16*i+r,2)}")
    for r in range(16):
        e.i(f"v_mul_f32 v{ACC+16+r}, s{sT1}, v{ACC+r}")
    for r in range(16):
        e.i(f"v_exp_f32 v{ACC+16+r}, v{ACC+16+r}")
    for r in range(16):
        e.i(f"v_add_f32 v{ACC+16+r}, 1.0, v{ACC+16+r}")
    for r in range(16):
        e.i(f"v_rcp_f32 v{ACC+16+r}, v{ACC+16+r}")
    for r in range(16):
        e.i(f"v_mul_f32 v{ACC+r}, v{ACC+r}, v{ACC+16+r}")
    for j in range(8):
        e.i(f"v_cvt_pk_bf16_f32 v{ACC+j}, v{ACC+2*j}, v{ACC+2*j+1}")
    e.lds(f"ds_write_b128 v208, {V(ACC,4)} offset:12288")
    e.lds(f"ds_write_b128 v208, {V(ACC+4,4)} offset:13312")
    lds_signal(CGD, va=212)
    stamp(10)
    dump_stamps()
    e.label("L_end")
    e.i("s_endpgm")
    e.label("L_slow_h")
    spin_init()
    e.label("L_slow_hx")
    e.i(f"buffer_load_dword v124, v122, {S(sWS,4)}, s{sFLG} offen sc1")
    e.i("s_waitcnt vmcnt(0)")
    e.i(f"v_cmp_ne_u32 vcc, s{sTAG}, v124")
    e.i(f"s_and_b32 s{sT0}, vcc_lo, s5")
    e.i("s_cbranch_scc0 L_back_h")
    spin_tail("L_slow_hx", "L_back_h", 4)
    e.label("L_code_end")
    return e

DOC = """;
"""

def wrap(e):
    hdr = open("cdna_kernels/%s.s.ref" % NAME).read().split("\n")
    top = [l for l in hdr if l.startswith(";") and "@launch" not in l]
    out = "\n".join(top) + f"\n; @launch grid=(256,1,1) block=(512,1,1) lds={LDS_BYTES}\n"
    out += DOC
    out += f""".amdgcn_target "amdgcn-amd-amdhsa--gfx950"
.text
.globl {NAME}_kernel
.p2align 8
.type {NAME}_kernel,@function
{NAME}_kernel:
"""
    out += e.text()
    out += f""".section .rodata,"a"
.p2align 6
.amdhsa_kernel {NAME}_kernel
  .amdhsa_next_free_vgpr 256
  .amdhsa_next_free_sgpr 102
  .amdhsa_accum_offset 256
  .amdhsa_group_segment_fixed_size 0
  .amdhsa_kernarg_size 88
  .amdhsa_user_sgpr_count 2
  .amdhsa_user_sgpr_kernarg_segment_ptr 1
  .amdhsa_system_sgpr_workgroup_id_x 1
.end_amdhsa_kernel
"""
    return out

if __name__ == "__main__":
    opt = Opt()
    outp = sys.argv[1]
    for a in sys.argv[2:]:
        k, v = a.split("=")
        assert hasattr(opt, k), k
        setattr(opt, k, type(getattr(opt, k))(eval(v)))
    e = gen(opt)
    bad = check_cfg(e.lines)
    print("hazards:", bad, "lines:", len(e.lines), "lds", LDS_BYTES)
    open(outp, "w").write(wrap(e))
```

```python
import sys, math, struct
from asmlib import *

NAME = "recurrent_scan__grouped_kv_mqa__dense_activation_relu__prompt"
MF32 = "v_mfma_f32_32x32x16_bf16"
MF16 = "v_mfma_f32_16x16x32_bf16"
SMF = "v_smfmac_f32_32x32x32_bf16"

def f32bits(x):
    return struct.unpack("<I", struct.pack("<f", x))[0]

KVS = 2080
R0 = 0
R1 = 32 * KVS
XN_RH = 64 * 528
R2 = R1 + 2 * XN_RH
R4 = R2 + 28928
LDS_BYTES = R4 + 256
(CXN, CST, CWQ, CQ, CKV, CKM, CTAG, CA, CA2, CX, CH2, CR0, CWO, CAD, CF, CE0, CE1, CRW, CRC, CXI, CP1, CL1, CG, CTL, CWI, CGD, CGD1, CGD2, CGD3, CE7, COD, CHN) = [4 * i for i in range(32)]
RE = R2 + 18432
NE = 5
RB2 = R1 + 12 * KVS
assert RB2 % 128 == 0 and RB2 + 65536 <= R4
STAT = 128
assert R2 % 128 == 0
WS_KV = 0
WS_EPOCH = 0x30000
WS_KVF = 0x38000
WS_HF = 0x40000
WS_O = 0x100000
WS_H = 0x400000
WS_STAMP = 0x1000000
sX, sWQ, sWKV, sWO, sW1, sW2, sOUT, sWS = 8, 12, 16, 20, 24, 28, 32, 40
sMASK, sF, sSPIN, sFLG = 44, 45, 46, 47
sWAVE, sRB, sCB, sT0, sT1, sT2, sOFF, sOFF2, sCNT, sSEG = 70, 71, 72, 73, 74, 75, 76, 77, 78, 79
sRG, sOB, sTAG, sTILE, sRING, sW2T, sU0, sU1, sE1, sE2, sXO = 3, 6, 7, 36, 37, 38, 39, 60, 61, 62, 63
sCH = 64
sOA = 52
sSTAMP = 80
vH, vCG, vR, vC, vTR, vXN0, vXN1, vSW, vW1, vL16, vT0, vT1, vSP = 212, 213, 214, 215, 216, 217, 218, 219, 220, 221, 222, 223, 224
vTCH = 225
vSD = 228

class Opt:
    stamps = False
    front = False
    force_fallback = False
    thr = 40.0
    exit_at = 0
    spin = 0x20000
    pace1 = 0
    pace2 = 0
    kvsleep = 1
    kvdelay = 26
    kvtouch = True
    warm2 = True
    touch = 0
    fstart = 2
    twq = True
    wqdepth = 16
    fprio = 0
    outf = ''
    echo = ()
    emul = 1
    NR = 4
    dense = 32
    twait = 1
    nomf2 = False
    nold2 = 0
    ctouch = True
    mid = False
    wo_at = 16
    ntouch = 4
    full = True
    stouch = 0
    late2 = 28
    xr_early = True
    fprio1 = 0
    rot = 14
    la1 = True
    dyn = True
    osleep = 2
    hint = True
    hsleep = 2
    pos = (1, 3, 9)
    fgo = 1
    glate = True
    p7 = 0
    mimic = True
    noatt_tail = False
    jst = False
    e1pos = 1
    t7 = False
    npre = 0
    ph = 8
    pipe = 0
    prefirst = False
    hold = 21
    mkearly = True
    early_poll = 0
    epre = 0
    ln2 = True
    wqsplit = True
    centry = True
    wqafter = 0
    mid2 = False
    fp_early = 0
    fp_n = 0
    wide = True
    ehint = 6
    hp = 3
    lg2 = False
    midpoll = -1
    nobar = 1
    g1 = 8
    win = ()
    ord1 = 0
    rdalt = True
    lowp = 15
    loose = True
    jitter = 0
    tlb = 0
    dry2 = False
    dryq = False
    onep = False
    pslack = 0
    hfl = 'sc1'
    t2at = 99
    wot = True
    dense2 = 0
    htouch = False
    lnclk = False

def gen(opt):
    e = E()
    uid = [0]
    inatt = [True]
    def lbl(p):
        uid[0] += 1
        return f"L_{p}_{uid[0]}"
    def stamp(k, when=None):
        if when == "front" and not opt.front: return
        if when == "late" and opt.mid2 and not inatt[0] and k in (4, 8, 9): return
        if when == "late" and (opt.front or (opt.jst and k in (1, 2, 3) and inatt[0])): return
        if opt.stamps:
            e.i(f"s_memrealtime {S(sSTAMP+2*k,2)}")
    def cstamp(k):
        if opt.stamps:
            e.i(f"s_memtime {S(sSTAMP+2*k,2)}")
    def dump_stamps():
        if not opt.stamps or opt.echo:
            return
        e.wait_all(vm=True, lg=True)
        e.i("v_mov_b32 v2, 0")
        e.i("v_mbcnt_lo_u32_b32 v1, -1, 0")
        e.i("v_mbcnt_hi_u32_b32 v1, -1, v1")
        for k in range(22):
            e.i(f"v_writelane_b32 v2, s{sSTAMP+k}, {k}")
        e.i(f"s_getreg_b32 s{sT0}, hwreg(HW_REG_XCC_ID)")
        e.i(f"v_writelane_b32 v2, s{sT0}, 22")
        e.i(f"s_lshl_b32 s{sT0}, s2, 3")
        e.i(f"s_add_u32 s{sT0}, s{sT0}, s{sWAVE}")
        e.i(f"s_lshl_b32 s{sT0}, s{sT0}, 8")
        e.i(f"s_add_u32 s{sT0}, s{sT0}, {WS_STAMP}")
        e.i("v_lshlrev_b32 v3, 2, v1")
        e.i(f"buffer_store_dword v2, v3, {S(sWS,4)}, s{sT0} offen")
    def exit_if(k):
        if opt.exit_at == k:
            dump_stamps()
            e.i("s_endpgm")
    def spin_init(mult=1):
        e.i(f"s_mov_b32 s{sSPIN}, {hex(opt.spin*mult)}")
    def spin_tail(top, done, sleep):
        e.i(f"s_sub_u32 s{sSPIN}, s{sSPIN}, 1")
        e.i(f"s_cbranch_scc1 {done}")
        if sleep:
            e.i(f"s_sleep {sleep}")
        e.i(f"s_branch {top}")
    jn = [0]
    def jit():
        if not opt.jitter:
            return
        jn[0] += 1
        l = lbl("jit")
        e.i(f"s_mul_i32 s100, s100, 0x41c64e6d")
        e.i(f"s_add_u32 s100, s100, {12345 + 2*jn[0]}")
        e.i(f"s_lshr_b32 s101, s100, 29")
        e.i(f"s_cmp_lg_u32 s101, 0")
        e.i(f"s_cbranch_scc1 {l}")
        e.i(f"s_sleep {opt.jitter}")
        e.label(l)
    def lds_signal(off, va=6):
        jit()
        e.i("s_mov_b64 exec, 1")
        e.lds(f"ds_add_u32 v{va}, v7 offset:{off}")
        e.i("s_mov_b64 exec, -1")
    def lds_poll(off, n, vt=5, sleep=1, va=6):
        top, done = lbl("lp"), lbl("lpd")
        jit()
        spin_init(16)
        e.label(top)
        e.i(f"ds_read_b32 v{vt}, v{va} offset:{off}")
        e.wait_all(lg=True)
        e.i(f"v_readfirstlane_b32 s{sT0}, v{vt}")
        e.i(f"s_cmp_ge_u32 s{sT0}, {n}")
        e.i(f"s_cbranch_scc1 {done}")
        spin_tail(top, done, sleep)
        e.label(done)
    def kv_dma(n, soff, sl, gstep, lstep):
        jit()
        for i in range(n):
            e.i(f"s_mov_b32 m0, s{sl}")
            e.i(f"s_add_u32 s{sl}, s{sl}, {lstep*KVS}")
            for p in range(2):
                e.vmem(f"buffer_load_dwordx4 v{vL16}, {S(sWS,4)}, s{soff} offen offset:{1024*p} sc1 lds", ("kv", i))
            e.i(f"s_add_u32 s{soff}, s{soff}, {gstep*2048}")
    def setup():
        e.i(f"s_mov_b64 {S(sWQ,2)}, s[50:51]")
        e.i(f"s_mov_b64 {S(sWO,2)}, s[56:57]")
        e.i(f"s_mov_b64 {S(sW1,2)}, s[60:61]")
        e.i(f"s_mov_b64 {S(sW2,2)}, s[62:63]")
        e.i(f"s_mov_b64 {S(sOUT,2)}, s[64:65]")
        e.i(f"s_mov_b64 {S(sWS,2)}, s[68:69]")
        e.i(f"s_lshl_b32 s{sFLG}, s{sRB}, 10")
        e.i(f"s_add_u32 s{sFLG}, s{sFLG}, {hex(WS_HF)}")
        e.i(f"s_mul_i32 s{sRING}, s{sF}, 6144")
        e.i(f"s_add_u32 s{sRING}, s{sRING}, {R2}")
        e.i(f"s_lshl_b32 s{sT0}, s{sRB}, 5")
        e.i(f"s_lshl_b32 s{sT1}, s{sCB}, 2")
        e.i(f"s_add_u32 s{sT0}, s{sT0}, s{sT1}")
        e.i(f"s_and_b32 s{sT1}, s{sF}, 1")
        e.i(f"s_lshl_b32 s{sXO}, s{sT1}, 6")
        e.i(f"s_lshl_b32 s{sT1}, s{sT1}, 1")
        e.i(f"s_add_u32 s{sT0}, s{sT0}, s{sT1}")
        e.i(f"s_lshl_b32 s{sT0}, s{sT0}, 1")
        e.i(f"s_lshr_b32 s{sT1}, s{sF}, 1")
        e.i(f"s_add_u32 s{sT0}, s{sT0}, s{sT1}")
        e.i(f"s_lshl_b32 s{sT0}, s{sT0}, 10")
        e.i(f"s_add_u32 s{sOB}, s{sT0}, {WS_O}")
        e.i(f"s_lshl_b32 s{sT0}, s{sRB}, 1")
        e.i(f"s_add_u32 s{sT0}, s{sT0}, s{sT1}")
        e.i(f"s_lshl_b32 s{sT0}, s{sT0}, 15")
        e.i(f"s_add_u32 s{sXO}, s{sXO}, s{sT0}")
        e.i(f"s_lshl_b32 s{sT0}, s{sCB}, 7")
        e.i(f"s_add_u32 s{sXO}, s{sXO}, s{sT0}")
        e.i("v_lshrrev_b32 v5, 2, v1")
        e.i("v_and_b32 v5, 4, v5")
        e.i("v_xor_b32 v5, v5, v3")
        e.i("v_lshlrev_b32 v5, 4, v5")
        e.i(f"v_lshl_add_u32 v{vSW}, v2, 10, v5")
        e.i(f"v_mul_u32_u24 v{vW1}, 3584, v2")
        e.i(f"v_add_u32 v{vW1}, v{vW1}, v5")
        e.i(f"v_lshlrev_b32 v{vL16}, 4, v1")
        e.i(f"v_lshrrev_b32 v{vH}, 5, v1")
        e.i(f"v_bfe_u32 v{vCG}, v1, 4, 1")
        e.i(f"v_bfe_u32 v{vR}, v1, 2, 2")
        e.i(f"v_and_b32 v{vC}, 3, v1")
        e.i(f"v_lshrrev_b32 v4, 1, v{vC}")
        e.i(f"v_lshl_add_u32 v4, v{vCG}, 1, v4")
        e.i(f"v_lshlrev_b32 v5, 1, v{vR}")
        e.i("v_and_b32 v5, 4, v5")
        e.i("v_xor_b32 v4, v4, v5")
        e.i(f"v_lshlrev_b32 v{vTR}, 7, v{vR}")
        e.i(f"v_lshl_add_u32 v{vTR}, v4, 4, v{vTR}")
        e.i(f"v_and_b32 v5, 1, v{vC}")
        e.i(f"v_lshl_add_u32 v{vTR}, v5, 3, v{vTR}")
        e.i("v_and_b32 v5, 31, v1")
        e.i(f"v_mul_u32_u24 v{vXN0}, 528, v{vH}")
        e.i(f"v_lshl_add_u32 v{vXN0}, v5, 4, v{vXN0}")
        e.i(f"v_add_u32 v{vXN0}, {R1}, v{vXN0}")
        e.i(f"v_add_u32 v{vXN1}, {XN_RH}, v{vXN0}")
        e.i("v_lshlrev_b32 v205, 10, v5")
        e.i(f"v_lshl_add_u32 v205, v{vH}, 3, v205")
        e.i(f"v_mul_u32_u24 v{vSP}, {KVS}, v5")
        e.i(f"v_lshl_add_u32 v{vSP}, v{vH}, 4, v{vSP}")
        e.i(f"v_subrev_u32 v{vSD}, 1, v{vH}")
        e.i(f"v_and_b32 v{vSD}, 0x3f803f80, v{vSD}")
        for r in range(1, 4):
            e.i(f"v_mov_b32 v{vSD+r}, v{vSD}")
        e.i("v_and_b32 v4, 15, v1")
        e.i(f"v_lshl_add_u32 v4, v{vH}, 4, v4")
        e.i("v_lshlrev_b32 v203, 4, v4")
        e.i(f"v_lshl_add_u32 v{vT0}, v{vH}, 10, v{vTR}")

    e.i("s_cmp_ge_u32 s2, 256")
    e.i("s_cbranch_scc1 L_end")
    e.i("s_load_dwordx16 s[48:63], s[0:1], 0")
    e.i("s_load_dwordx2 s[64:65], s[0:1], 64")
    e.i("s_load_dwordx2 s[68:69], s[0:1], 80")
    stamp(0)
    e.i("v_lshrrev_b32 v2, 6, v0")
    e.i("v_and_b32 v1, 63, v0")
    e.i(f"v_readfirstlane_b32 s{sWAVE}, v2")
    def ctouch():
        e.c("pull this kernel's code into L2: 16 lines per workgroup, the workgroups of an XCD cover all of it")
        e.i(f"s_getpc_b64 {S(sWKV,2)}")
        e.label("L_pc")
        e.i(f"s_mov_b32 s{sWKV+2}, L_code_end-L_pc")
        e.i(f"s_mov_b32 s{sWKV+3}, 0x20000")
        e.i(f"s_lshr_b32 s{sT0}, s2, 3")
        e.i(f"s_lshl_b32 s{sT0}, s{sT0}, 7")
        e.i("v_lshlrev_b32 v104, 12, v1")
        e.i("s_mov_b64 exec, 0xffff")
        e.i(f"buffer_load_dword v106, v104, {S(sWKV,4)}, s{sT0} offen")
        e.i("s_mov_b64 exec, -1")
    if opt.ctouch and opt.centry:
        e.i(f"s_cmp_lg_u32 s{sWAVE}, 4")
        e.i("s_cbranch_scc1 L_no_ct")
        ctouch()
        e.label("L_no_ct")
    if opt.jitter:
        e.i("s_memrealtime s[100:101]")
        e.i("s_waitcnt lgkmcnt(0)")
        e.i(f"s_lshl_b32 s101, s2, 3")
        e.i(f"s_add_u32 s101, s101, s{sWAVE}")
        e.i(f"s_mul_i32 s101, s101, 0x9e3779b1")
        e.i(f"s_add_u32 s100, s100, s101")
        jit(); jit()
    e.c("workgroup -> (row block rb, column block cb); ids that share id&7 share half of the columns and 1/4 of the rows")
    e.i(f"s_and_b32 s{sT0}, s2, 7")
    e.i(f"s_lshr_b32 s{sT1}, s2, 3")
    e.i(f"s_and_b32 s{sCB}, s{sT1}, 3")
    e.i(f"s_lshl_b32 s{sCB}, s{sCB}, 1")
    e.i(f"s_and_b32 s{sRB}, s{sT0}, 1")
    e.i(f"s_add_u32 s{sCB}, s{sCB}, s{sRB}")
    e.i(f"s_lshr_b32 s{sT1}, s{sT1}, 2")
    e.i(f"s_lshr_b32 s{sRB}, s{sT0}, 1")
    e.i(f"s_lshl_b32 s{sRB}, s{sRB}, 3")
    e.i(f"s_add_u32 s{sRB}, s{sRB}, s{sT1}")
    e.i(f"s_mov_b32 s{sMASK}, 0xffff0000")
    e.i(f"s_and_b32 s{sF}, s{sWAVE}, 3")
    e.c("row group of this wave: (w + 2*rq + 3) & 7 -> waves 5,6 hold the 16 rows of this workgroup's K/V tile")
    e.i(f"s_and_b32 s{sRG}, s{sCB}, 6")
    e.i(f"s_add_u32 s{sRG}, s{sRG}, s{sWAVE}")
    e.i(f"s_add_u32 s{sRG}, s{sRG}, 3")
    e.i(f"s_and_b32 s{sRG}, s{sRG}, 7")
    e.i("v_lshrrev_b32 v2, 3, v1")
    e.i("v_and_b32 v3, 7, v1")
    e.i("v_lshlrev_b32 v4, 10, v2")
    e.i("v_lshl_add_u32 v4, v3, 4, v4")
    e.i(f"s_lshl_b32 s{sOFF}, s{sRB}, 3")
    e.i(f"s_add_u32 s{sOFF}, s{sOFF}, s{sRG}")
    e.i(f"s_lshl_b32 s{sOFF}, s{sOFF}, 13")
    for srd, size in ((sX, 2048*512*2), (sWQ, 512*512*2), (sWKV, 512*16*2), (sWO, 512*512*2), (sW1, 512*1792*2),
                      (sW2, 1792*512*2), (sOUT, 2048*512*2), (sWS, 0x10000000)):
        e.i(f"s_mov_b32 s{srd+2}, {hex(size)}")
        e.i(f"s_mov_b32 s{srd+3}, 0x20000")
    e.i(f"v_mov_b32 v6, {R4}")
    e.i("v_mov_b32 v7, 1")
    e.i("v_mov_b64 v[108:109], 0")
    e.i("v_and_b32 v105, 15, v1")
    e.i("v_lshl_add_u32 v105, v105, 3, v6")
    e.i("ds_write_b64 v105, v[108:109]")
    e.i(f"s_mov_b32 s{sSEG}, 0")
    e.i(f"s_cmp_eq_u32 s{sWAVE}, 7")
    e.i("s_cbranch_scc1 L_pre_7")
    e.i("s_waitcnt lgkmcnt(0)")
    e.i(f"s_mov_b64 {S(sX,2)}, s[48:49]")
    e.i(f"s_cmp_eq_u32 s{sWAVE}, 4")
    e.i("s_cbranch_scc1 L_pre_4")
    if opt.nobar == 1:
        e.i(f"s_cmp_ge_u32 s{sWAVE}, 0")
    elif opt.nobar == 2:
        e.i(f"s_lshr_b32 s{sT0}, 0x69, s{sWAVE}")
        e.i(f"s_bitcmp1_b32 s{sT0}, 0")
    else:
        e.i(f"s_cmp_ge_u32 s{sWAVE}, 5")
    e.i("s_cbranch_scc1 L_pre_first")
    e.i("s_barrier")
    e.label("L_pre_first")
    for i in range(8):
        e.i(f"buffer_load_dwordx4 {V(8+4*i,4)}, v4, {S(sX,4)}, s{sOFF} offen offset:{128*i}")
    e.i("s_cbranch_scc0 L_pre_second")
    e.i("s_barrier")
    e.label("L_pre_second")
    e.i(f"s_cmp_eq_u32 s{sWAVE}, 0")
    e.i("s_cbranch_scc1 L_pre_dbl")
    e.i(f"s_cmp_lg_u32 s{sWAVE}, 3")
    e.i("s_cbranch_scc1 L_pre_n3")
    e.label("L_pre_dbl")
    e.c("waves 0,3 also normalise the rows waves 4,7 would have had (row group ^ 4)")
    e.i(f"s_xor_b32 s{sOFF}, s{sOFF}, 0x8000")
    for i in range(8):
        e.i(f"buffer_load_dwordx4 {V(128+4*i,4)}, v4, {S(sX,4)}, s{sOFF} offen offset:{128*i}")
    e.i(f"s_mov_b32 s{sSEG}, 1")
    e.label("L_pre_n3")
    lds_signal(CXI)
    setup()
    e.i(f"s_cmp_ge_u32 s{sWAVE}, 4")
    e.i("s_cbranch_scc1 L_pre_56")
    S0, S1, P0, P1, OA, OB, NMA, NMB, QA, QB, KB, VB = 32, 48, 64, 72, 80, 96, 112, 128, 144, 148, 152, 168
    vK, vV0, vV1, vVG, vVC = 200, 201, 202, 203, 204
    e.i("s_setprio 1")
    e.i(f"s_and_b32 s{sT1}, s{sWAVE}, 1")
    e.i(f"s_lshl_b32 s{sT2}, s{sT1}, 6")
    e.i(f"v_xor_b32 v{vT0}, s{sT2}, v{vT0}")
    e.i(f"s_lshr_b32 s{sT1}, s{sWAVE}, 1")
    e.i(f"s_mul_i32 s{sT1}, s{sT1}, {XN_RH}")
    e.i(f"v_add_u32 v{vXN0}, s{sT1}, v{vXN0}")
    e.i(f"v_add_u32 v{vK}, {RE}, v{vL16}")
    e.i("v_and_b32 v5, 11, v1")
    e.i("v_cmp_ne_u32 vcc, 0, v5")
    e.i(f"v_mov_b32 v4, {RE+2048}")
    e.i(f"v_mov_b32 v5, {RE+2064}")
    e.i(f"v_add_u32 v{vV0}, {RE+1024}, v{vVG}")
    e.i("v_cndmask_b32 v4, v4, v5, vcc")
    e.i(f"v_cmp_eq_u32 vcc, 0, v{vCG}")
    e.i(f"v_add_u32 v{vV1}, {RE+1536}, v{vVG}")
    e.i("v_mov_b32 v207, 0xdddddddd")
    e.nop(1)
    e.i(f"v_cndmask_b32 v{vV0}, v4, v{vV0}, vcc")
    e.i(f"v_cndmask_b32 v{vV1}, v4, v{vV1}, vcc")
    if opt.stouch:
        e.c("scalar touches of w1 -> L2: wave w takes line column w, rows (rb&7) + 8i")
        e.i(f"s_and_b32 s{sT0}, s{sRB}, 7")
        e.i(f"s_mul_i32 s{sT0}, s{sT0}, 3584")
        e.i(f"s_mul_i32 s{sT1}, s{sCB}, 448")
        e.i(f"s_add_u32 s{sT0}, s{sT0}, s{sT1}")
        e.i(f"s_lshl_b32 s{sT1}, s{sWAVE}, 7")
        e.i(f"s_add_u32 s{sT0}, s{sT0}, s{sT1}")
        e.i(f"s_add_u32 s4, s60, s{sT0}")
        e.i("s_addc_u32 s5, s61, 0")
        for i in range(opt.stouch):
            e.i(f"s_load_dword s{sU0}, s[4:5], {hex(i*8*3584)}")
    if opt.ln2 and opt.dry2:
        e.c("while x is in flight: walk a quarter of the double-pass code with all lanes off (VALU / LDS writes only) to warm the instruction cache")
        e.i("v_mov_b32 v122, 0")
        e.i("s_mov_b64 exec, 0")
        for w in range(3):
            e.i(f"s_cmp_eq_u32 s{sWAVE}, {w}")
            e.i(f"s_cbranch_scc1 L_dry_{w}")
        e.i("s_branch L_dry_3")
        e.label("L_dry_ret")
        e.i("s_mov_b64 exec, -1")
    e.i(f"s_cmp_eq_u32 s{sSEG}, 1")
    e.i("s_cbranch_scc1 L_pre_w8")
    e.i("s_waitcnt vmcnt(0)")
    e.i("s_branch L_ln")
    e.label("L_pre_w8")
    e.i("s_waitcnt vmcnt(8)")
    e.i("s_branch L_ln2" if opt.ln2 else "s_branch L_ln")

    def ffn_setup():
        e.i(f"s_and_b32 s{sTILE}, s{sCB}, 1")
        e.i(f"s_lshl_b32 s{sT1}, s{sF}, 1")
        e.i(f"s_add_u32 s{sTILE}, s{sTILE}, s{sT1}")
        e.i(f"v_add_u32 v{vT0}, s{sRING}, v{vT0}")
        e.i(f"v_xor_b32 v{vT1}, 64, v{vT0}")
    e.label("L_pre_4")
    if opt.ctouch and not opt.centry:
        ctouch()
    e.c("wave 4: loader.  wq slice -> R0 by DMA behind the x loads; touches 1/8 of the w1 slice -> L2")
    setup()
    ffn_setup()
    e.i(f"s_lshl_b32 s{sOFF}, s{sCB}, 7")
    e.i(f"s_mov_b32 s{sT1}, 0")
    if opt.rot & 1:
        e.i(f"s_and_b32 s{sT1}, s{sRB}, 7")
        e.i(f"s_lshl_b32 s{sT0}, s{sT1}, 16")
        e.i(f"s_add_u32 s{sOFF}, s{sOFF}, s{sT0}")
        e.i(f"s_lshl_b32 s{sT1}, s{sT1}, 13")
    e.i(f"s_mov_b32 s{sCNT}, 7")
    def touch_setup(so):
        e.i("v_lshrrev_b32 v105, 2, v1")
        e.i("v_mul_u32_u24 v105, 3584, v105")
        e.i(f"v_lshl_add_u32 v105, v{vC}, 7, v105")
        e.i(f"s_and_b32 s{so}, s{sRB}, 7")
        e.i(f"s_mul_i32 s{so}, s{so}, {16*3584}")
        e.i(f"s_mul_i32 s{sT0}, s{sCB}, 448")
        e.i(f"s_add_u32 s{so}, s{so}, s{sT0}")
    def touches(so=sT2, a=0, b=4):
        for i in range(a, b):
            e.i(f"s_add_u32 s{sU0}, s{so}, {i*128*3584}")
            e.i(f"buffer_load_dword v106, v105, {S(sW1,4)}, s{sU0} offen")
    touch_setup(sT2)
    if opt.twq:
        e.i("v_lshrrev_b32 v104, 2, v1")
        e.i("v_lshlrev_b32 v104, 10, v104")
        e.i(f"v_lshl_add_u32 v104, v{vC}, 8, v104")
        e.i(f"s_lshr_b32 s{sT0}, s2, 3")
        e.i(f"s_lshl_b32 s{sT0}, s{sT0}, 14")
        e.i(f"s_and_b32 s{sU0}, s{sCB}, 1")
        e.i(f"s_lshl_b32 s{sU0}, s{sU0}, 7")
        e.i(f"s_add_u32 s{sT0}, s{sT0}, s{sU0}")
    e.i("s_barrier")
    if opt.twq:
        e.i(f"buffer_load_dword v106, v104, {S(sWQ,4)}, s{sT0} offen")
    if opt.touch == 4:
        touches()
    if opt.tlb:
        e.c("first touch of every page that is used later (address translation only)")
        e.i(f"v_lshlrev_b32 v104, {opt.tlb}, v1")
        e.i("v_add_u32 v104, 0xff80, v104")
        e.i(f"s_mov_b64 exec, {hex((1 << min(32, (12 << 20) >> opt.tlb)) - 1)}")
        e.i(f"buffer_load_dword v106, v104, {S(sWS,4)}, 0 offen")
        e.i("s_mov_b64 exec, 1")
        e.i(f"buffer_load_dword v106, v205, {S(sOUT,4)}, s{sXO} offen")
        for srd in (sW1, sW2, sWO):
            e.i(f"buffer_load_dword v106, v104, {S(srd,4)}, 0 offen")
        e.i("s_mov_b64 exec, -1")
    lds_poll(CXI, 6, sleep=0)
    if opt.wqafter:
        lds_poll(CXN, opt.wqafter, sleep=1)
    e.label("L_wq_loop")
    for i in range(8):
        e.i(f"s_mov_b32 m0, s{sT1}")
        e.i(f"s_add_u32 s{sT1}, s{sT1}, 1024")
        e.i(f"buffer_load_dwordx4 v{vSW}, {S(sWQ,4)}, s{sOFF} offen lds")
        e.i(f"s_add_u32 s{sOFF}, s{sOFF}, 8192")
    e.i(f"s_and_b32 s{sOFF}, s{sOFF}, 0x7ffff")
    e.i(f"s_and_b32 s{sT1}, s{sT1}, 0xffff")
    e.i(f"s_waitcnt vmcnt({opt.wqdepth})")
    e.i(f"s_sub_u32 s{sCNT}, s{sCNT}, 1")
    e.i("s_cbranch_scc0 L_wq_loop")
    lds_signal(CWI)
    stamp(1, "front")
    if opt.touch == 1:
        touches()
    if opt.wqsplit:
        e.i("s_waitcnt vmcnt(24)")
        lds_signal(CWQ)
    e.i("s_waitcnt vmcnt(0)")
    lds_signal(CWQ)
    stamp(8, "front")
    if opt.touch == 2 or (opt.touch == 3 and opt.ntouch < 4):
        lds_poll(CG, 4, sleep=2)
        touches(sT2, opt.ntouch if opt.touch == 3 else opt.stouch // 16, 4)
    e.i("s_branch L_ffn")

    e.label("L_pre_56")
    ffn_setup()
    e.i("s_setprio 3")
    e.i("s_waitcnt vmcnt(0)")

    e.label("L_ln")
    stamp(1, "front")
    if opt.lnclk:
        stamp(6); cstamp(9)
    X = 40
    A = 112
    e.i(f"s_lshr_b32 s{sT0}, s{sRG}, 2")
    e.i(f"s_mul_i32 s{sT0}, s{sT0}, {XN_RH}")
    e.i(f"s_and_b32 s{sT1}, s{sRG}, 3")
    e.i(f"s_lshl_b32 s{sT1}, s{sT1}, 7")
    e.i(f"s_add_u32 s{sT0}, s{sT0}, s{sT1}")
    e.i(f"s_add_u32 s{sT0}, s{sT0}, {R1}")
    e.i("v_mul_u32_u24 v122, 528, v3")
    e.i("v_lshl_add_u32 v122, v2, 4, v122")
    e.i(f"v_add_u32 v122, s{sT0}, v122")
    e.i(f"s_cmp_lt_u32 s{sWAVE}, 5")
    e.i("s_cbranch_scc1 L_ln_a")
    e.c("waves 5,6: raw rows -> LDS for the K/V wave")
    for i in range(8):
        e.i(f"ds_write_b128 v122, {V(8+4*i,4)} offset:{4224*i}")
    lds_signal(CRW)
    e.label("L_ln_a")
    e.i("v_mov_b32 v110, 0x3f803f80")
    e.i("v_mov_b64 v[112:113], 0")
    e.i("v_mov_b32 v108, 0x3f80")
    e.i("v_mov_b32 v109, 0x3f800000")
    for t in range(32):
        e.i(f"v_dot2c_f32_bf16 v{A+(t&1)}, v{8+t}, v110")
    def reduce_lanes():
        for m in ("quad_perm:[1,0,3,2]", "quad_perm:[2,3,0,1]", "row_half_mirror"):
            e.nop(2)
            e.i(f"v_add_f32_dpp v{A}, v{A}, v{A} {m} row_mask:0xf bank_mask:0xf")
    e.nop(3)
    e.i(f"v_add_f32 v{A}, v{A}, v{A+1}")
    reduce_lanes()
    def rnd(d, a):
        e.i(f"v_cvt_pk_bf16_f32 v{d}, v{a}, v{a}")
        e.i(f"v_and_b32 v{d}, s{sMASK}, v{d}")
    if opt.mimic:
        e.c("row statistics are rounded to bf16 where the reference rounds them")
        e.i(f"v_mul_f32 v121, {hex(f32bits(-1.0/512))}, v{A}")
        rnd(120, 121)
        e.i("v_sub_f32 v121, v121, v120")
    else:
        e.i(f"v_mul_f32 v120, {hex(f32bits(-1.0/512))}, v{A}")
    for t in range(32):
        e.i(f"v_dot2_f32_bf16 v{X+2*t}, v{8+t}, v108, v120")
        e.i(f"v_dot2_f32_bf16 v{X+2*t+1}, v{8+t}, v109, v120")
    for t in range(32):
        a = t % 4
        if t < 4:
            e.i(f"v_pk_mul_f32 {V(A+2*a,2)}, {V(X+2*t,2)}, {V(X+2*t,2)}")
        else:
            e.i(f"v_pk_fma_f32 {V(A+2*a,2)}, {V(X+2*t,2)}, {V(X+2*t,2)}, {V(A+2*a,2)}")
    e.i(f"v_pk_add_f32 {V(A,2)}, {V(A,2)}, {V(A+2,2)}")
    e.i(f"v_pk_add_f32 {V(A+4,2)}, {V(A+4,2)}, {V(A+6,2)}")
    e.i(f"v_pk_add_f32 {V(A,2)}, {V(A,2)}, {V(A+4,2)}")
    e.i(f"v_add_f32 v{A}, v{A}, v{A+1}")
    reduce_lanes()
    if opt.mimic:
        e.i(f"v_mul_f32 v119, {hex(f32bits(1.0/512))}, v{A}")
        e.i("v_fma_f32 v119, -v121, v121, v119")
        e.i("v_max_f32 v119, 0, v119")
        rnd(119, 119)
        e.i(f"v_add_f32 v119, {hex(f32bits(1e-5))}, v119")
        rnd(119, 119)
        e.i("v_sqrt_f32 v119, v119")
        e.nop(1)
        rnd(119, 119)
        e.i("v_rcp_f32 v118, v119")
    else:
        e.i(f"v_mov_b32 v119, {hex(f32bits(1e-5))}")
        e.i(f"v_fmac_f32 v119, {hex(f32bits(1.0/512))}, v{A}")
        e.i("v_rsq_f32 v118, v119")
    e.i(f"s_cmp_lt_u32 s{sWAVE}, 5")
    e.i("s_cbranch_scc1 L_ln_b")
    e.c("waves 5,6: hand the row statistics to the K/V wave")
    e.i(f"s_lshl_b32 s{sT0}, s{sWAVE}, 5")
    e.i(f"s_add_u32 s{sT0}, s{sT0}, {R4 + STAT - 160}")
    e.i(f"v_lshl_add_u32 v111, v2, 2, s{sT0}")
    e.i("ds_write2_b32 v111, v120, v118 offset1:16")
    lds_signal(CST)
    lds_poll(CRC, 1, sleep=0)
    e.label("L_ln_b")
    e.lg = []
    for i in range(8):
        for t in range(4*i, 4*i+4):
            e.i(f"v_pk_mul_f32 {V(X+2*t,2)}, {V(X+2*t,2)}, v[118:119] op_sel_hi:[1,0]")
        for t in range(4*i, 4*i+4):
            e.i(f"v_cvt_pk_bf16_f32 v{8+t}, v{X+2*t}, v{X+2*t+1}")
        e.lds(f"ds_write_b128 v122, {V(8+4*i,4)} offset:{4224*i}")
    lds_signal(CXN)
    e.i(f"s_cmp_eq_u32 s{sSEG}, 0")
    e.i("s_cbranch_scc1 L_ln_done")
    e.i(f"s_mov_b32 s{sSEG}, 0")
    e.i(f"s_xor_b32 s{sRG}, s{sRG}, 4")
    e.i("s_waitcnt vmcnt(0)")
    for t in range(0, 32, 2):
        e.i(f"v_mov_b64 {V(8+t,2)}, {V(128+t,2)}")
    e.i("s_branch L_ln")
    e.label("L_ln_done")
    stamp(8, "front")
    if opt.lnclk:
        stamp(7); cstamp(10)
    if opt.dryq:
        e.i(f"s_cmp_eq_u32 s{sWAVE}, 6")
        e.i("s_cbranch_scc1 L_dryq")
    e.i(f"s_cmp_ge_u32 s{sWAVE}, 4")
    e.i("s_cbranch_scc1 L_ffn")

    if opt.ln2:
        keep = e.lines
        e.lines = []
        class G: pass
        def phases(raw, xs, acc, nm, dl, ad):
            p = G()
            a0 = acc[0]
            p.sum = [f"v_dot2c_f32_bf16 v{a0+(t&1)}, v{raw+t}, v110" for t in range(32)]
            dpp = [f"v_add_f32_dpp v{a0}, v{a0}, v{a0} {m} row_mask:0xf bank_mask:0xf" for m in ("quad_perm:[1,0,3,2]", "quad_perm:[2,3,0,1]", "row_half_mirror")]
            rn = lambda d, a: [f"v_cvt_pk_bf16_f32 v{d}, v{a}, v{a}", f"v_and_b32 v{d}, s{sMASK}, v{d}"]
            p.r1 = [f"v_add_f32 v{a0}, v{a0}, v{a0+1}"] + dpp + [f"v_mul_f32 v{dl}, {hex(f32bits(-1.0/512))}, v{a0}"] + rn(nm, dl) + [f"v_sub_f32 v{dl}, v{dl}, v{nm}"]
            p.cen = []
            for t in range(32):
                p.cen += [f"v_dot2_f32_bf16 v{xs[t]}, v{raw+t}, v108, v{nm}", f"v_dot2_f32_bf16 v{xs[t]+1}, v{raw+t}, v109, v{nm}"]
            p.sq = [f"v_pk_mul_f32 {V(acc[t],2)}, {V(xs[t],2)}, {V(xs[t],2)}" if t < 4 else
                    f"v_pk_fma_f32 {V(acc[t%4],2)}, {V(xs[t],2)}, {V(xs[t],2)}, {V(acc[t%4],2)}" for t in range(32)]
            r, q = acc[3], acc[3] + 1
            p.r2 = [f"v_pk_add_f32 {V(acc[0],2)}, {V(acc[0],2)}, {V(acc[1],2)}", f"v_pk_add_f32 {V(acc[2],2)}, {V(acc[2],2)}, {V(acc[3],2)}",
                    f"v_pk_add_f32 {V(acc[0],2)}, {V(acc[0],2)}, {V(acc[2],2)}", f"v_add_f32 v{a0}, v{a0}, v{a0+1}"] + dpp + \
                   [f"v_mul_f32 v{q}, {hex(f32bits(1.0/512))}, v{a0}", f"v_fma_f32 v{q}, -v{dl}, v{dl}, v{q}", f"v_max_f32 v{q}, 0, v{q}"] + rn(q, q) + \
                   [f"v_add_f32 v{q}, {hex(f32bits(1e-5))}, v{q}"] + rn(q, q) + [f"v_sqrt_f32 v{q}, v{q}"] + rn(q, q) + [f"v_rcp_f32 v{r}, v{q}"]
            p.norm = []
            for i in range(8):
                p.norm += [f"v_pk_mul_f32 {V(xs[t],2)}, {V(xs[t],2)}, {V(r,2)} op_sel_hi:[1,0]" for t in range(4*i, 4*i+4)]
                p.norm += [f"v_cvt_pk_bf16_f32 v{raw+t}, v{xs[t]}, v{xs[t]+1}" for t in range(4*i, 4*i+4)]
                p.norm += [f"ds_write_b128 v{ad}, {V(raw+4*i,4)} offset:{4224*i}"]
            return p
        def merge(ser, bulk, k):
            out, b = [], list(bulk)
            for x in ser:
                out += b[:k]; b = b[k:]
                out.append(x)
            return out + b
        PA = phases(8, [40+2*t for t in range(32)], [112, 114, 116, 118], 120, 121, 122)
        PB = phases(128, [160+2*t for t in range(20)] + [232+2*t for t in range(12)], [104, 106, 124, 126], 111, 123, 5)
        e.label("L_ln2")
        e.c("waves 0,3: two row groups (rg and rg^4) in one interleaved pass")
        stamp(1, "front")
        e.i(f"s_lshr_b32 s{sT0}, s{sRG}, 2")
        e.i(f"s_mul_i32 s{sT0}, s{sT0}, {XN_RH}")
        e.i(f"s_and_b32 s{sT1}, s{sRG}, 3")
        e.i(f"s_lshl_b32 s{sT1}, s{sT1}, 7")
        e.i(f"s_add_u32 s{sT1}, s{sT1}, {R1}")
        e.i(f"s_add_u32 s{sT2}, s{sT1}, {XN_RH}")
        e.i(f"s_sub_u32 s{sT2}, s{sT2}, s{sT0}")
        e.i(f"s_add_u32 s{sT0}, s{sT0}, s{sT1}")
        e.i("v_mul_u32_u24 v122, 528, v3")
        e.i("v_lshl_add_u32 v122, v2, 4, v122")
        e.i(f"v_add_u32 v5, s{sT2}, v122")
        e.i(f"v_add_u32 v122, s{sT0}, v122")
        e.i("v_mov_b32 v110, 0x3f803f80")
        e.i("v_mov_b64 v[112:113], 0")
        e.i("v_mov_b64 v[104:105], 0")
        e.i("v_mov_b32 v108, 0x3f80")
        e.i("v_mov_b32 v109, 0x3f800000")
        def zipn(x, y):
            out = []
            for p, q in zip(x, y):
                out += [p, q] + (["s_nop 0"] if "dpp" in p or "v_add_f32 " in p else [])
            return out
        def solo(x):
            out = []
            for p in x:
                if "dpp" in p: out.append("s_nop 1")
                out.append(p)
                if "v_sqrt" in p: out.append("s_nop 0")
            return out
        seq = PA.sum + ["s_nop 2"] + solo(PA.r1) + PA.cen + PA.sq + solo(PA.r2) + ["s_nop 0"] + PA.norm[:9] + ["s_waitcnt vmcnt(0)"]
        if opt.stamps and opt.front:
            seq += [f"s_memrealtime {S(sSTAMP+18,2)}"]
        seq += PB.sum[:16] + PA.norm[9:18] + PB.sum[16:] + merge(PB.r1, PA.norm[18:36], 3)
        rest = PB.cen + PB.sq
        for i in range(4):
            seq += rest[24*i:24*i+24] + PA.norm[36+9*i:45+9*i]
        seq += solo(PB.r2) + ["s_nop 0"]
        k0 = seq.index("s_waitcnt vmcnt(0)") + 1
        n3 = (len(seq) - k0) // 3
        for k, t in enumerate(seq):
            if opt.dry2 and k in (k0 + n3, k0 + 2 * n3):
                e.i("s_cbranch_execz L_dry_ret")
            if opt.dry2 and k in (k0, k0 + n3, k0 + 2 * n3):
                e.label(f"L_dry_{(k - k0) // n3}")
            e.i(t)
        if opt.dry2:
            e.i("s_cbranch_execz L_dry_ret")
        lds_signal(CXN)
        e.label("L_dry_3")
        for t in PB.norm: e.i(t)
        if opt.dry2:
            e.i("s_cbranch_execz L_dry_ret")
        lds_signal(CXN)
        e.i("s_branch L_ln_done")
        ln2_lines = e.lines
        e.lines = keep
    e.vm = []
    for r in range(0, 32, 2):
        e.i(f"v_mov_b64 {V(OA+r,2)}, 0")
    lds_poll(CWQ, 1, sleep=0)
    for q in range(4):
        e.i(f"buffer_load_dwordx2 {V(232+2*q,2)}, v205, {S(sX,4)}, s{sXO} offen offset:{16*q}")
    lds_poll(CXN, 9, sleep=0)
    stamp(2, "front")
    e.label("L_q")
    fill = []
    e.c("Q projection: wave w -> head pair hp=w&1, row half rh=w>>1")
    def qreads(ks):
        s = ks % 4
        if ks == 20 and opt.wqsplit:
            e.i(f"v_readfirstlane_b32 s{sT0}, v5")
            e.i(f"s_cmp_ge_u32 s{sT0}, 2")
            e.i("s_cbranch_scc0 L_slow_wq")
            e.label("L_back_wq")
        if ks == 16 and opt.wqsplit:
            e.lds(f"ds_read_b32 v5, v6 offset:{CWQ}")
        e.lds(f"ds_read_b64_tr_b16 {V(32+8*s,2)}, v{vT0} offset:{ks*2048}", ("q", ks))
        e.lds(f"ds_read_b64_tr_b16 {V(34+8*s,2)}, v{vT0} offset:{ks*2048+512}", ("q", ks))
        e.lds(f"ds_read_b128 {V(36+8*s,4)}, v{vXN0} offset:{ks*1056}", ("q", ks))
    for ks in range(4):
        qreads(ks)
    for ks in range(32):
        s = ks % 4
        e.wait(lg=("q", ks))
        e.i(f"{MF32} v[8:23], {V(32+8*s,4)}, {V(36+8*s,4)}, {'0' if ks == 0 else 'v[8:23]'}")
        if ks + 4 < 32:
            qreads(ks + 4)
        if ks == 27:
            lds_signal(CQ)
        if fill:
            e.i(fill.pop(0))
    e.i(f"v_mov_b32 v28, {hex(f32bits(0.25*math.log2(math.e)))}")
    e.nop(11)
    for r in range(0, 16, 2):
        e.i(f"v_pk_mul_f32 {V(8+r,2)}, {V(8+r,2)}, v[28:29] op_sel_hi:[1,0]")
    for k in range(4):
        for hd in range(2):
            b = 8 + 8*hd + 2*k
            if k == 0:
                e.i(f"v_pk_mul_f32 {V(30+2*hd,2)}, {V(b,2)}, {V(b,2)}")
            else:
                e.i(f"v_pk_fma_f32 {V(30+2*hd,2)}, {V(b,2)}, {V(b,2)}, {V(30+2*hd,2)}")
    e.i("v_add_f32 v24, v30, v31")
    e.i("v_add_f32 v25, v32, v33")
    e.i("v_mov_b32 v26, v24")
    e.i("v_mov_b32 v27, v25")
    for hd in range(2):
        for j in range(4):
            e.i(f"v_cvt_pk_bf16_f32 v{QA+4*hd+j}, v{8+8*hd+2*j}, v{8+8*hd+2*j+1}")
    e.i("v_permlane32_swap_b32 v24, v26")
    e.i("v_permlane32_swap_b32 v25, v27")
    e.i("v_add_f32 v24, v24, v26")
    e.i("v_add_f32 v25, v25, v27")
    if opt.dryq:
        e.i(f"s_cmp_eq_u32 s{sWAVE}, 6")
        e.i("s_cbranch_scc1 L_dryq_ret")
    stamp(3, "front")
    lds_poll(CKV, 2, sleep=0)
    stamp(4)
    e.lds(f"ds_read_b32 v206, v6 offset:{CTAG}")
    e.lds(f"ds_read_b32 v30, v6 offset:{CKM}")
    e.wait_all(lg=True)
    e.c("stand-in for the row max: |q| * max|k| >= max_k q.k ; used only while it cannot be far above the true max")
    e.i("v_mul_f32 v24, v24, v30")
    e.i("v_mul_f32 v25, v25, v30")
    e.i("v_sqrt_f32 v24, v24")
    e.i("v_sqrt_f32 v25, v25")
    e.i(f"s_mov_b32 s{sT1}, {hex(f32bits(opt.thr))}")
    e.i("v_max_f32 v26, v24, v25")
    e.i(f"v_cmp_nge_f32 vcc, s{sT1}, v26")
    e.i("v_cmp_u_f32 s[4:5], v24, v25")
    e.i("s_or_b64 s[4:5], s[4:5], vcc")
    if opt.force_fallback:
        e.i("s_branch L_fallback")
    else:
        e.i("s_cbranch_scc1 L_fallback")
    e.label("L_att_start")
    e.i(f"v_sub_f32 v{NMA}, 0, v24")
    e.i(f"v_sub_f32 v{NMA+1}, 0, v24")
    e.i(f"v_sub_f32 v{NMB}, 0, v25")
    e.i(f"v_sub_f32 v{NMB+1}, 0, v25")
    for r in range(2, 16, 2):
        e.i(f"v_mov_b64 {V(NMA+r,2)}, {V(NMA,2)}")
        e.i(f"v_mov_b64 {V(NMB+r,2)}, {V(NMB,2)}")
    e.i(f"s_lshl_b32 s{sT0}, s{sCB}, 7")
    e.i(f"s_lshl_b32 s{sT1}, s{sF}, 2")
    e.i(f"s_add_u32 s{sT0}, s{sT0}, s{sT1}")
    e.i(f"s_add_u32 s{sE1}, s{sFLG}, 0x10000")
    e.i(f"s_add_u32 s{sE2}, s{sT0}, s{sE1}")
    lds_poll(CE7, 1, sleep=0)
    for j in range(3):
        e.lds(f"ds_read_b128 {V(KB+4*j,4)}, v{vK} offset:{j*KVS}", ("a", j))
        e.lds(f"ds_read_b128 {V(VB+8*j,4)}, v{vV0} offset:{j*KVS}")
        e.lds(f"ds_read_b128 {V(VB+8*j+4,4)}, v{vV1} offset:{j*KVS}")
    e.wait(lg=("a", 0))
    e.i(f"{MF32} {V(S0,16)}, {V(KB,4)}, {V(QA,4)}, {V(NMA,16)}")
    e.nop(11)
    e.wait_all(lg=True)
    stamp(5)
    def em(t):
        if t.endswith(":"): e.raw(t)
        else: e.i(t)
    def step(cur, oth, K, Q, NM, O, V0, Op, V1p, after, noqk=False, nopv=False):
        for i in range(16):
            e.i(f"v_exp_f32 v{cur+i}, v{cur+i}")
            if i == opt.pos[0]:
                if not nopv:
                    e.i(f"{SMF} {V(Op,16)}, {V(V1p,4)}, {V(oth+8,8)}, v207")
                for t in after[0]: em(t)
            if i == opt.pos[1]:
                if not noqk:
                    e.i(f"{MF32} {V(oth,16)}, {V(K,4)}, {V(Q,4)}, {V(NM,16)}")
                for t in after[1]: em(t)
            if i == opt.pos[2]:
                e.i(f"{SMF} {V(O,16)}, {V(V0,4)}, {V(cur,8)}, v207")
                for t in after[2]: em(t)
    def shift(d):
        return [f"v_add_u32 v{v}, {hex(d & 0xffffffff)}, v{v}" for v in (vK, vV0, vV1)]
    if opt.full:
        slow = [("wq", CWQ, 2)] if opt.wqsplit else []
        SIG = lambda off: ["s_mov_b64 exec, 1", f"ds_add_u32 v6, v7 offset:{off}", "s_mov_b64 exec, -1"]
        def CHK(name, off, n):
            slow.append((name, off, n))
            return [f"v_readfirstlane_b32 s{sT0}, v5", f"s_cmp_ge_u32 s{sT0}, {n}", f"s_cbranch_scc0 L_slow_{name}", f"L_back_{name}:"]
        PRE = lambda off: [f"ds_read_b32 v5, v6 offset:{off}"]
        HINT = ["s_mov_b64 exec, 1", f"buffer_store_dword v206, v{vL16}, {S(sWS,4)}, s{sE2} offen sc1", "s_mov_b64 exec, -1"]
        J0 = NE - 3
        for j in range(64):
            b3 = (j + 3) % 4
            slot = j + 3 if j < J0 else (j - J0 if j < J0 + 32 else (j - J0 - 32 if j < J0 + 47 else j - J0 - 47))
            off = slot * KVS
            rd = j + 3 < 64
            A = [[], [f"ds_read_b128 {V(KB+4*b3,4)}, v{vK} offset:{off}"] if rd else [], []]
            Bq = [[f"ds_read_b128 {V(VB+8*b3,4)}, v{vV0} offset:{off}"] if rd else [],
                  [f"ds_read_b128 {V(VB+8*b3+4,4)}, v{vV1} offset:{off}"] if rd else [],
                  [f"s_waitcnt lgkmcnt({2 if rd else 0})"] if j % 2 == 1 and j < 62 else []]
            if opt.loose:
                chkj = (J0 - 1, J0 + 7, J0 + 15, J0 + 23, J0 + 31, J0 + 45)
                n = 2 if j in chkj else (5 if j <= 60 else (2 if j == 61 else 0))
                Bq[2] = [f"s_waitcnt lgkmcnt({n})"] if j < 63 else []
            assert J0 % 2 == 0
            if j == J0 - 1:
                A[2] += PRE(CA)
                Bq[2] += CHK("a", CA, 1) + SIG(CG) + shift(-RE)
            if j in (J0 + 7, J0 + 15, J0 + 23):
                A[2] += PRE(CA)
                Bq[2] += CHK(f"a{j}", CA, (j - J0 + 1) // 8 + 1)
            if j == J0 + 15:
                Bq[2] += SIG(CP1)
            if opt.win and j == opt.win[0]:
                Bq[2] += [f"s_memrealtime {S(sSTAMP+12,2)}", f"s_memtime {S(sSTAMP+18,2)}"]
            if opt.win and j == opt.win[1]:
                Bq[2] += [f"s_memrealtime {S(sSTAMP+14,2)}", f"s_memtime {S(sSTAMP+20,2)}"]
            if j == 31 and opt.stamps and not opt.lnclk and not opt.win:
                Bq[2] += [f"s_memrealtime {S(sSTAMP+12,2)}"] + ([] if opt.front else [f"s_memtime {S(sSTAMP+18,2)}"])
            if j == J0 + 31:
                A[2] += PRE(CL1)
                Bq[2] += CHK("l1", CL1, 4)
            if j == J0 + 45:
                A[2] += PRE(CH2)
                Bq[2] += CHK("h2", CH2, 4)
            if j == J0 + 46:
                Bq[2] += SIG(CR0) + shift(R1)
            if opt.jst and j in (1, 9, 17, 25):
                Bq[2] += [f"s_memrealtime {S(sSTAMP+2*{1:1,9:2,17:3,25:4}[j],2)}"]
            if j == 56:
                A[0] += ["s_waitcnt vmcnt(0)"]
            if opt.ehint and 2 * j == 128 - opt.ehint:
                A[0] += HINT
            if opt.ehint and 2 * j + 1 == 128 - opt.ehint:
                Bq[0] += HINT
            if opt.rdalt:
                kr = [t for t in A[1] if t.startswith("ds_read_b128")]
                A = [kr + A[0], [t for t in A[1] if t not in kr] + A[2], [t for t in Bq[0] if t.startswith("ds_read_b128")]]
                Bq = [Bq[1] + [t for t in Bq[0] if not t.startswith("ds_read_b128")], [], Bq[2]]
            if opt.jitter and j % 3 == 0:
                jit()
            step(S0, S1, KB+4*(j % 4), QB, NMB, OA, VB+8*(j % 4), OB, VB+8*((j-1) % 4)+4, A, nopv=(j == 0))
            step(S1, S0, KB+4*((j+1) % 4), QA, NMA, OB, VB+8*(j % 4), OA, VB+8*(j % 4)+4, Bq, noqk=(j == 63))
    e.label("L_att_done")
    if not opt.lnclk and not opt.win:
        stamp(7)
        cstamp(10)
    e.i(f"v_rcp_f32 v24, v{OA+8}")
    e.i("s_nop 0")
    e.i(f"{SMF} {V(OB,16)}, {V(VB+28,4)}, {V(S1+8,8)}, v207")
    e.lg = []
    lds_signal(CAD)
    for hd, O in enumerate((OA, OB)):
        if hd == 1:
            e.i(f"v_rcp_f32 v24, v{OB+8}")
            e.nop(1)
        for r in range(8):
            e.i(f"v_mul_f32 v{O+r}, v{O+r}, v24")
        for j in range(4):
            e.i(f"v_cvt_pk_bf16_f32 v{8+4*hd+j}, v{O+2*j}, v{O+2*j+1}")
        for j in range(4):
            e.i(f"v_min_u32 v{8+4*hd+j}, -2, v{8+4*hd+j}")
        e.vmem(f"buffer_store_dwordx4 {V(8+4*hd,4)}, v{vL16}, {S(sWS,4)}, s{sOB} offen offset:{2048*hd} sc1")
    if opt.hint:
        e.c("hint for the readers (the data itself is checked against the marker)")
        if not opt.ehint:
            for t in HINT: e.i(t)
        e.i(f"s_mov_b32 s{sFLG}, s{sE1}")
        e.i(f"v_readfirstlane_b32 s{sTAG}, v206")
        e.i(f"v_lshlrev_b32 v16, 7, v{vC}")
        e.i("v_and_b32 v17, 4, v1")
        e.i("v_add_u32 v16, v16, v17")
        e.i(f"s_and_b32 s{sT0}, s{sF}, 1")
        e.i(f"s_lshl_b32 s{sT0}, s{sT0}, 9")
        e.i(f"s_add_u32 s{sFLG}, s{sFLG}, s{sT0}")
        e.i(f"s_and_b32 s{sT0}, s{sF}, 2")
        e.i(f"s_lshl_b32 s{sT0}, s{sT0}, 2")
        e.i(f"s_add_u32 s{sFLG}, s{sFLG}, s{sT0}")
    if opt.early_poll:
        e.c("the own workgroup's line is not read: its stores are known drained through LDS (read a neighbour twice instead)")
        e.i(f"s_and_b32 s{sT0}, s{sF}, 1")
        e.i(f"s_lshl_b32 s{sT0}, s{sT0}, 2")
        e.i(f"s_sub_u32 s{sT0}, s{sCB}, s{sT0}")
        e.i(f"v_cmp_eq_u32 vcc, s{sT0}, v{vC}")
        e.i("v_xor_b32 v17, 0x80, v16")
        e.i("s_mov_b64 s[4:5], -1")
        e.i("v_cndmask_b32 v16, v16, v17, vcc")
        if opt.early_poll == 1:
            e.i(f"buffer_load_dword v17, v16, {S(sWS,4)}, s{sFLG} offen sc1")
    stamp(8, "late")
    if opt.noatt_tail:
        dump_stamps()
        e.i("s_endpgm")
    e.c("output projection: wave w -> row half w>>1, K half w&1, both column tiles (own tile first)")
    G, XR, OF = 104, 120, 40
    e.i(f"v_mov_b32 v0, v{vL16}")
    e.i("v_mov_b32 v3, v205")
    if opt.wide:
        e.i(f"v_lshl_add_u32 v3, v{vH}, 3, v3")
    e.i(f"s_and_b32 s{sT1}, s{sF}, 1")
    e.i(f"s_lshr_b32 s{sT2}, s{sF}, 1")
    e.i(f"s_lshl_b32 s{sT0}, s{sRB}, 6")
    e.i(f"s_add_u32 s{sT0}, s{sT0}, s{sT2}")
    e.i(f"s_lshl_b32 s{sT2}, s{sT1}, 5")
    e.i(f"s_add_u32 s{sT0}, s{sT0}, s{sT2}")
    e.i(f"s_lshl_b32 s{sT0}, s{sT0}, 10")
    e.i(f"s_add_u32 s{sOFF}, s{sT0}, {WS_O}")
    for g in range(4):
        e.i(f"s_add_u32 s{sCH+g}, s{sCB}, {1+g}")
        e.i(f"s_and_b32 s{sCH+g}, s{sCH+g}, 3")
        e.i(f"s_lshl_b32 s{sCH+g}, s{sCH+g}, 13")
        e.i(f"s_add_u32 s{sOA+2*g}, s{sOFF}, s{sCH+g}")
        e.i(f"s_add_u32 s{sOA+2*g+1}, s{sOA+2*g}, 4096")
    if opt.echo: stamp(9)
    lds_poll(CWO, 4, sleep=1)
    if opt.echo: stamp(10)
    def oloads(g):
        for i in range(4):
            e.i(f"buffer_load_dwordx4 {V(OF+16*g+4*i,4)}, v0, {S(sWS,4)}, s{sOA+2*g+(i>>1)} offen offset:{2048*(i&1)} sc1")
    if not opt.hint:
        for g in range(3):
            oloads(g)
    e.i(f"s_mul_i32 s{sT0}, s{sT1}, {32768+64}")
    e.i(f"v_lshl_add_u32 v2, v{vH}, 9, v{vTR}")
    e.i(f"v_xor_b32 v2, s{sT0}, v2")
    for g in range(4):
        e.i(f"v_add_u32 v{G+2*g}, s{sCH+g}, v2")
        e.i(f"v_xor_b32 v{G+2*g+1}, 64, v{G+2*g}")
    for q in range(4):
        e.i(f"v_mov_b64 {V(XR+2*q,2)}, {V(232+2*q,2)}")
    if opt.early_poll == 3:
        e.i(f"buffer_load_dword v17, v16, {S(sWS,4)}, s{sFLG} offen sc1")
    for i in range(16):
        if i == opt.midpoll:
            e.i(f"buffer_load_dword v17, v16, {S(sWS,4)}, s{sFLG} offen sc1")
        for c2 in range(2):
            for t in range(2):
                if opt.lg2:
                    e.i(f"ds_read_b64_tr_b16 {V(128+8*i+4*c2+2*t,2)}, v{G+2*(i//4)+c2} offset:{(i%4)*2048+1024*t}")
                else:
                    e.lds(f"ds_read_b64_tr_b16 {V(128+8*i+4*c2+2*t,2)}, v{G+2*(i//4)+c2} offset:{(i%4)*2048+1024*t}")
        if opt.lg2 and i >= 2:
            e.i("s_waitcnt lgkmcnt(11)")
    e.i(f"s_lshl_b32 s{sT2}, s{sF}, 12")
    e.i(f"s_add_u32 s{sT1}, s{sT2}, {R1}")
    e.i(f"v_add_u32 v1, s{sT1}, v0")
    e.i(f"s_xor_b32 s{sT2}, s{sT2}, 4096")
    e.i(f"s_add_u32 s{sT2}, s{sT2}, {R1}")
    e.i(f"v_add_u32 v2, s{sT2}, v0")
    e.i(f"s_and_b32 s{sT2}, s{sF}, 2")
    e.i(f"s_lshl_b32 s{sT2}, s{sT2}, 1")
    e.i(f"v_add_u32 v4, s{sT2}, v6")
    e.i(f"s_mov_b32 s{sSEG}, 0")
    e.i(f"s_mov_b32 s{sCNT}, {hex(opt.spin)}")
    if opt.early_poll:
        e.i("s_waitcnt vmcnt(0)")
        lds_signal(COD)
        lds_poll(COD, 4, sleep=0)
    else:
        lds_poll(CAD, 4, sleep=0)
    if opt.hint and opt.onep:
        e.i(f"s_cmp_lg_u32 s{sWAVE}, 0")
        e.i("s_cbranch_scc1 L_hint_other")
        e.i("v_mbcnt_lo_u32_b32 v17, -1, 0")
        e.i("v_bfe_u32 v18, v17, 2, 3")
        e.i(f"v_cmp_eq_u32 vcc, s{sCB}, v18")
        e.i("v_xor_b32 v19, 1, v18")
        e.i("v_and_b32 v17, 3, v17")
        e.i("v_cndmask_b32 v18, v18, v19, vcc")
        e.i("v_lshlrev_b32 v18, 7, v18")
        e.i("v_lshl_add_u32 v16, v17, 2, v18")
        top, done = lbl("hp"), lbl("hpd")
        spin_init()
        e.label(top)
        e.i(f"buffer_load_dword v17, v16, {S(sWS,4)}, s{sFLG} offen sc1")
        e.i("s_waitcnt vmcnt(0)")
        e.i(f"v_cmp_ne_u32 vcc, s{sTAG}, v17")
        e.i(f"s_cbranch_vccz {done}")
        spin_tail(top, done, opt.hsleep)
        e.label(done)
        lds_signal(CHN)
        e.label("L_hint_other")
        lds_poll(CHN, 1, sleep=0)
        stamp(1, "late")
        for g in range(4):
            oloads(g)
    elif opt.hint:
        top, done = lbl("hp"), lbl("hpd")
        spin_init()
        n = opt.pipe
        def chk(r):
            e.i(f"v_cmp_ne_u32 vcc, s{sTAG}, v{r}")
            if opt.early_poll:
                e.i("s_and_b64 vcc, vcc, s[4:5]")
                e.i(f"s_cbranch_scc0 {done}")
            else:
                e.i(f"s_cbranch_vccz {done}")
        if opt.midpoll >= 0:
            e.i("s_waitcnt vmcnt(0)")
        if opt.early_poll in (1, 3) or opt.midpoll >= 0:
            chk(17)
        for k in range(n):
            e.i(f"buffer_load_dword v{17+k}, v16, {S(sWS,4)}, s{sFLG} offen sc1")
            e.i(f"s_sleep {6 // n}")
        e.label(top)
        for k in range(n + 1):
            e.i(f"buffer_load_dword v{17+(n+k)%(n+1)}, v16, {S(sWS,4)}, s{sFLG} offen sc1")
            e.i(f"s_waitcnt vmcnt({n})")
            chk(17 + k)
        spin_tail(top, done, 0 if n else opt.hsleep)
        e.label(done)
        stamp(1, "late")
        for g in range(4):
            oloads(g)
    else:
        e.i("s_waitcnt vmcnt(12)")
        stamp(1, "late")
        oloads(3)
    e.c("o fragments: check that every dword was written; if not, re-read that group until it is, then refresh the rest")
    def ocheck(g):
        b = OF + 16 * g
        e.i(f"v_max3_u32 v5, v{b}, v{b+1}, v{b+2}")
        for k in range(3, 15, 2):
            e.i(f"v_max3_u32 v5, v5, v{b+k}, v{b+k+1}")
        e.i(f"v_max_u32 v5, v5, v{b+15}")
        e.i("v_cmp_eq_u32 vcc, -1, v5")
    for g in range(4):
        e.i(f"s_waitcnt vmcnt({12-4*g})")
        b = OF + 16 * g
        ocheck(g)
        e.i(f"s_cbranch_vccnz L_oretry_{g}")
        e.label(f"L_ogo_{g}")
        for i in range(4):
            for c2 in (1, 0):
                a = 8 + 16 * c2
                k = 4 * g + i
                e.i(f"{MF32} {V(a,16)}, {V(128+8*k+4*c2,4)}, {V(b+4*i,4)}, {'0' if k == 0 else V(a,16)}")
    stamp(2, "late")
    for t in range(8):
        e.i(f"v_lshlrev_b32 v{128+2*t}, 16, v{XR+t}")
        e.i(f"v_and_b32 v{129+2*t}, s{sMASK}, v{XR+t}")
    e.lg = []
    for q in range(4):
        e.lds(f"ds_write_b128 v1, {V(24+4*q,4)} offset:{q*1024}")
    lds_signal(CE0, va=4)
    e.i(f"s_lshl_b32 s{sT1}, s{sF}, 2")
    e.i(f"v_add_u32 v1, s{sT1}, v6")
    e.i(f"s_lshl_b32 s{sT1}, s{sF}, 14")
    e.i(f"s_add_u32 s{sT1}, s{sT1}, {RB2 + 12288}")
    e.i(f"v_add_u32 v0, s{sT1}, v0")
    lds_poll(CGD, 1, sleep=0, va=1)
    if opt.echo: stamp(4)
    e.lds("ds_read_b128 v[40:43], v0")
    e.lds("ds_read_b128 v[44:47], v0 offset:1024")
    lds_poll(CE0, 2, sleep=0, va=4)
    for q in range(4):
        e.lds(f"ds_read_b128 {V(24+4*q,4)}, v2 offset:{q*1024}", ("e", q))
    for t in range(8):
        e.i(f"v_lshlrev_b32 v{G+2*t}, 16, v{40+t}")
        e.i(f"v_and_b32 v{G+1+2*t}, s{sMASK}, v{40+t}")
    for q in range(4):
        e.wait(lg=("e", q))
        for r in range(4*q, 4*q+4):
            e.i(f"v_add_f32 v{8+r}, v{8+r}, v{24+r}")
        for r in range(4*q, 4*q+4):
            e.i(f"v_fmac_f32 v{128+r}, v{8+r}, v{G+r}")
        for j in range(2):
            e.i(f"v_cvt_pk_bf16_f32 v{XR+2*q+j}, v{128+4*q+2*j}, v{128+4*q+2*j+1}")
        if not opt.wide:
            e.vmem(f"buffer_store_dwordx2 {V(XR+2*q,2)}, v3, {S(sOUT,4)}, s{sXO} offen offset:{16*q} {opt.outf}")
        elif q % 2 == 1:
            e.nop(2)
            e.i(f"v_permlane32_swap_b32 v{XR+2*q-2}, v{XR+2*q}")
            e.i(f"v_permlane32_swap_b32 v{XR+2*q-1}, v{XR+2*q+1}")
            e.vmem(f"buffer_store_dwordx4 {V(XR+2*q-2,4)}, v3, {S(sOUT,4)}, s{sXO} offen offset:{16*(q-1)} {opt.outf}")
    if opt.stamps:
        e.wait_all(vm=True)
        stamp(3, "late")
    if opt.echo:
        a, b = opt.echo
        e.i("s_waitcnt lgkmcnt(0)")
        e.i(f"s_sub_u32 s{sT0}, s{sSTAMP+2*b}, s{sSTAMP+2*a}")
        e.i(f"s_mul_i32 s{sT0}, s{sT0}, {opt.emul}")
        e.i(f"s_min_u32 s{sT0}, s{sT0}, 10000")
        e.i(f"s_add_u32 s{sT0}, s{sT0}, s{sSTAMP+6}")
        e.label("L_echo")
        e.i("s_memrealtime s[4:5]")
        e.i("s_waitcnt lgkmcnt(0)")
        e.i(f"s_sub_u32 s{sT1}, s4, s{sT0}")
        e.i(f"s_cmp_lt_i32 s{sT1}, 0")
        e.i("s_cbranch_scc1 L_echo")
    dump_stamps()
    e.i("s_endpgm")
    for g in range(4):
        e.label(f"L_oretry_{g}")
        e.i(f"s_sub_u32 s{sCNT}, s{sCNT}, 1")
        e.i(f"s_cbranch_scc1 L_odone_{g}")
        if opt.osleep:
            e.i(f"s_sleep {opt.osleep}")
        oloads(g)
        e.i("s_waitcnt vmcnt(0)")
        ocheck(g)
        e.i(f"s_cbranch_vccnz L_oretry_{g}")
        e.label(f"L_odone_{g}")
        for g2 in range(g + 1, 4):
            oloads(g2)
        e.i(f"s_branch L_ogo_{g}")
    if opt.full:
        for name, off, n in slow:
            e.label(f"L_slow_{name}")
            lds_poll(off, n, sleep=0)
            e.i(f"s_branch L_back_{name}")

    if opt.ln2:
        e.lines += ln2_lines
    if opt.dryq:
        e.label("L_dryq")
        e.c("wave 6 runs the Q projection code once on whatever LDS holds (its signal adds 0) to warm the instruction cache")
        e.i("s_setprio 0")
        e.i("s_waitcnt lgkmcnt(0)")
        e.i("v_mov_b32 v7, 0")
        e.i("s_branch L_q")
        e.label("L_dryq_ret")
        e.i("s_waitcnt lgkmcnt(0)")
        e.i("v_mov_b32 v7, 1")
        e.i("s_branch L_ffn")
    e.label("L_fallback")
    e.i("v_mov_b32 v24, 0xff800000")
    e.i("v_mov_b32 v25, 0xff800000")
    e.i(f"s_mov_b32 s{sT1}, 0")
    e.i(f"s_mov_b32 s{sCNT}, 31")
    e.label("L_fb_loop")
    e.i(f"buffer_load_dwordx4 v[8:11], v{vL16}, {S(sWS,4)}, s{sT1} offen sc1")
    e.i(f"buffer_load_dwordx4 v[12:15], v{vL16}, {S(sWS,4)}, s{sT1} offen offset:2048 sc1")
    e.i(f"s_add_u32 s{sT1}, s{sT1}, 4096")
    e.i("s_waitcnt vmcnt(0)")
    for k in range(2):
        e.i(f"{MF32} {V(NMA,16)}, {V(8+4*k,4)}, {V(QA,4)}, 0")
        e.i(f"{MF32} {V(NMB,16)}, {V(8+4*k,4)}, {V(QB,4)}, 0")
        e.nop(12)
        for r in range(0, 16, 2):
            e.i(f"v_max3_f32 v24, v24, v{NMA+r}, v{NMA+r+1}")
        for r in range(0, 16, 2):
            e.i(f"v_max3_f32 v25, v25, v{NMB+r}, v{NMB+r+1}")
    e.i(f"s_sub_u32 s{sCNT}, s{sCNT}, 1")
    e.i("s_cbranch_scc0 L_fb_loop")
    e.i("v_mov_b32 v26, v24")
    e.i("v_mov_b32 v27, v25")
    e.nop(2)
    e.i("v_permlane32_swap_b32 v24, v26")
    e.i("v_permlane32_swap_b32 v25, v27")
    e.i("v_max_f32 v24, v24, v26")
    e.i("v_max_f32 v25, v25, v27")
    e.i("s_branch L_att_start")

    e.label("L_pre_7")
    inatt[0] = False
    e.vm = []
    e.lg = []
    e.i("s_setprio 3")
    e.i(f"s_bitcmp1_b32 s{sCB}, 0")
    e.i("v_lshlrev_b32 v40, 4, v1")
    e.i("s_waitcnt lgkmcnt(0)")
    e.i(f"s_cselect_b64 {S(sWKV,2)}, s[54:55], s[52:53]")
    e.i(f"s_cselect_b32 s{sTILE}, 0, 6")
    e.i(f"s_load_dword s{sTAG}, s[68:69], {hex(WS_EPOCH)}")
    e.i(f"s_mov_b64 {S(sX,2)}, s[48:49]")
    for i in range(4):
        e.i(f"s_mov_b32 m0, {R2 + 4096*i}")
        e.i(f"s_mov_b32 s{sT0}, {4096*i}")
        for k in range(4):
            e.vmem(f"buffer_load_dwordx4 v40, {S(sWKV,4)}, s{sT0} offen offset:{1024*k} lds", "wkv")
    e.i("s_barrier")
    setup()
    e.i("v_lshrrev_b32 v42, 4, v1")
    e.i("v_and_b32 v43, 15, v1")
    e.i(f"s_lshr_b32 s{sT0}, s{sCB}, 2")
    e.i(f"s_mul_i32 s{sT0}, s{sT0}, {XN_RH}")
    e.i(f"s_bfe_u32 s{sT1}, s{sCB}, 0x10001")
    e.i(f"s_lshl_b32 s{sT1}, s{sT1}, 8")
    e.i(f"s_add_u32 s{sT0}, s{sT0}, s{sT1}")
    e.i(f"s_add_u32 s{sT0}, s{sT0}, {R1}")
    e.i("v_mul_u32_u24 v44, 528, v42")
    e.i("v_lshl_add_u32 v44, v43, 4, v44")
    e.i(f"v_add_u32 v44, s{sT0}, v44")
    e.i("v_lshlrev_b32 v45, 8, v42")
    e.i(f"v_lshl_add_u32 v45, v{vR}, 5, v45")
    e.i(f"v_lshl_add_u32 v45, v{vC}, 3, v45")
    e.i(f"v_add_u32 v45, {R2}, v45")
    for r in range(4):
        e.i(f"v_mov_b32 v{20+r}, 0x3f803f80")
    e.i(f"s_lshl_b32 s{sT2}, s{sRB}, 1")
    e.i(f"s_lshr_b32 s{sOFF2}, s{sCB}, 2")
    e.i(f"s_add_u32 s{sT2}, s{sT2}, s{sOFF2}")
    e.i(f"s_lshl_b32 s{sT2}, s{sT2}, 11")
    e.i(f"s_add_u32 s{sT2}, s{sT2}, s{sT1}")
    e.i(f"v_lshlrev_b32 v46, 3, v{vH}")
    e.i("v_lshl_add_u32 v46, v43, 4, v46")
    e.i(f"s_lshl_b32 s{sOFF2}, s{sRB}, 7")
    e.i(f"s_lshl_b32 s{sOFF}, s{sCB}, 3")
    e.i(f"s_add_u32 s{sOFF2}, s{sOFF2}, s{sOFF}")
    e.i(f"v_mov_b32 v18, {hex(WS_KVF)}")
    e.i(f"v_lshrrev_b32 v{vW1}, 2, v1")
    e.i(f"v_lshlrev_b32 v19, 7, v{vW1}")
    e.i(f"v_lshl_add_u32 v19, v{vC}, 4, v19")
    e.i("v_lshlrev_b32 v31, 11, v1")
    e.i(f"v_mul_u32_u24 v{vW1}, 3584, v{vW1}")
    e.i(f"v_lshl_add_u32 v{vW1}, v{vC}, 4, v{vW1}")
    e.i(f"v_lshlrev_b32 v{vT0}, 6, v{vR}")
    e.i(f"v_lshl_add_u32 v{vT0}, v{vCG}, 5, v{vT0}")
    e.i(f"v_lshl_add_u32 v{vT0}, v{vC}, 3, v{vT0}")
    e.i(f"v_lshl_add_u32 v{vT0}, v{vH}, 9, v{vT0}")
    e.i(f"v_add_u32 v{vT0}, s{sRING}, v{vT0}")
    e.i("s_waitcnt lgkmcnt(0)")
    e.i(f"s_mul_i32 s{sTAG}, s{sTAG}, 0x9e3779b1")
    e.i(f"s_add_u32 s{sTAG}, s{sTAG}, 0x7f4a7c15")
    e.i(f"v_mov_b32 v16, s{sTAG}")
    e.lds(f"ds_write_b32 v6, v16 offset:{CTAG}")
    e.wait(vm="wkv")
    stamp(1, "front")
    for ks in range(16):
        e.lds(f"ds_read_b64_tr_b16 {V(128+4*ks,2)}, v45 offset:{ks*1024}")
        e.lds(f"ds_read_b64_tr_b16 {V(130+4*ks,2)}, v45 offset:{ks*1024+128}")
    lds_signal(CXN)
    e.i(f"v_add_u32 v41, {RE}, v{vSP}")
    e.i(f"s_mov_b32 exec_lo, {hex((1 << NE) - 1)}")
    e.i(f"s_mov_b32 exec_hi, {hex((1 << NE) - 1)}")
    e.lds(f"ds_write_b128 v41, {V(vSD,4)} offset:2048")
    e.i("s_mov_b64 exec, -1")
    lds_poll(CRW, 2, sleep=0)
    for ks in range(16):
        e.lds(f"ds_read_b128 {V(64+4*ks,4)}, v44 offset:{ks*2112}", ("k", ks), guard=False)
    lds_signal(CRC)
    e.i(f"s_bitcmp1_b32 s{sCB}, 0")
    e.i("s_cbranch_scc1 L_w7_v")
    lg_save = list(e.lg)
    def kvloop(isV):
        for ks in range(16):
            W, Xf = V(128+4*ks, 4), V(64+4*ks, 4)
            a, b = ("v[20:23]", W) if isV else (W, "v[20:23]")
            e.i(f"{MF16} v[12:15], {a}, {b}, {'0' if ks == 0 else 'v[12:15]'}")
            e.wait(lg=("k", ks))
            a, b = (Xf, W) if isV else (W, Xf)
            e.i(f"{MF16} v[8:11], {a}, {b}, {'0' if ks == 0 else 'v[8:11]'}")
    kvloop(False)
    stamp(8, "front")
    e.i(f"v_lshl_add_u32 v46, v{vCG}, 9, v46")
    e.i("v_lshl_add_u32 v47, v43, 2, v6")
    lds_poll(CST, 2, sleep=0)
    e.i(f"ds_read2_b32 v[24:25], v47 offset0:{STAT//4} offset1:{STAT//4+16}")
    e.wait_all(lg=True)
    for r in range(4):
        e.i(f"v_fmac_f32 v{8+r}, v24, v{12+r}")
    for r in range(4):
        e.i(f"v_mul_f32 v{8+r}, v25, v{8+r}")
    e.i("v_cvt_pk_bf16_f32 v12, v8, v9")
    e.i("v_cvt_pk_bf16_f32 v13, v10, v11")
    e.i(f"buffer_store_dwordx2 v[12:13], v46, {S(sWS,4)}, s{sT2} offen sc1")
    e.i("v_mul_f32 v17, v8, v8")
    for r in range(1, 4):
        e.i(f"v_fmac_f32 v17, v{8+r}, v{8+r}")
    e.i("v_mov_b32 v15, v17")
    e.nop(2)
    e.i("v_permlane32_swap_b32 v17, v15")
    e.i("v_add_f32 v17, v17, v15")
    e.i("v_mov_b32 v15, v17")
    e.nop(2)
    e.i("v_permlane16_swap_b32 v17, v15")
    e.i("v_add_f32 v17, v17, v15")
    for m in ("row_ror:1", "row_ror:2", "row_ror:4", "row_ror:8"):
        e.nop(2)
        e.i(f"v_max_u32_dpp v17, v17, v17 {m} row_mask:0xf bank_mask:0xf")
    e.i("s_branch L_w7_pub")
    e.label("L_w7_v")
    e.lg = lg_save
    kvloop(True)
    stamp(8, "front")
    e.i(f"v_lshlrev_b32 v46, 4, v43")
    e.i(f"v_lshl_add_u32 v46, v{vH}, 8, v46")
    e.i(f"v_lshl_add_u32 v46, v{vCG}, 3, v46")
    e.i(f"s_add_u32 s{sT2}, s{sT2}, s{sT1}")
    e.i(f"s_add_u32 s{sT2}, s{sT2}, 1024")
    e.i("v_lshl_add_u32 v47, v42, 4, v6")
    lds_poll(CST, 2, sleep=0)
    e.i(f"ds_read_b128 v[24:27], v47 offset:{STAT}")
    e.i(f"ds_read_b128 v[32:35], v47 offset:{STAT+64}")
    e.wait_all(lg=True)
    for r in range(4):
        e.i(f"v_fmac_f32 v{8+r}, v{24+r}, v{12+r}")
    for r in range(4):
        e.i(f"v_mul_f32 v{8+r}, v{32+r}, v{8+r}")
    e.i("v_cvt_pk_bf16_f32 v12, v8, v9")
    e.i("v_cvt_pk_bf16_f32 v13, v10, v11")
    e.i(f"buffer_store_dwordx2 v[12:13], v46, {S(sWS,4)}, s{sT2} offen sc1")
    e.i("v_mov_b32 v17, 0")
    e.label("L_w7_pub")
    stamp(2)
    e.i("s_mov_b64 exec, 1")
    e.wait_all(vm=True)
    e.i(f"buffer_store_dwordx2 v[16:17], v18, {S(sWS,4)}, s{sOFF2} offen sc1")
    e.i("s_mov_b64 exec, -1")
    stamp(9)
    e.c("wait for all 256 K/V producers, pass max |k|^2 on through LDS")
    top, done = lbl("kv"), lbl("kvd")
    e.i(f"s_mov_b32 s{sT1}, {hex(WS_KVF)}")
    e.i(f"s_bfe_u32 s{sT2}, s2, 0x40003")
    e.i(f"s_lshl_b32 s{sT2}, s{sT2}, 7")
    if opt.touch == 3:
        e.c("touch 1/8 of the w1 slice -> L2; the first poll queues behind it")
        if opt.twait == 1:
            lds_poll(CWQ, 1, sleep=1)
        if opt.twait == 2:
            lds_poll(CWI, 1, sleep=1)
        touch_setup(sOFF)
        touches(sOFF, 0, opt.ntouch)
    if opt.kvdelay:
        e.c("back off before the first poll: readers of a flag line slow its remaining writers down")
        e.i(f"s_sleep {opt.kvdelay}")
    spin_init()
    e.label(top)
    e.i(f"buffer_load_dwordx4 v[32:35], v19, {S(sWS,4)}, s{sT1} offen sc1")
    e.i(f"buffer_load_dwordx4 v[36:39], v19, {S(sWS,4)}, s{sT1} offen offset:2048 sc1")
    e.wait_all(vm=True)
    if opt.fstart == 3:
        lds_signal(CTL)
    e.i("v_xor_b32 v32, v16, v32")
    e.i("v_xor_b32 v34, v16, v34")
    e.i("v_xor_b32 v36, v16, v36")
    e.i("v_xor_b32 v38, v16, v38")
    e.i("v_or3_b32 v32, v32, v34, v36")
    e.i("v_or_b32 v32, v32, v38")
    e.i("v_cmp_ne_u32 vcc, 0, v32")
    e.i("v_max_u32 v30, v33, v37")
    e.i(f"s_cbranch_vccz {done}")
    spin_tail(top, done, opt.kvsleep)
    e.label(done)
    lds_signal(CKV)
    e.c("blocks 0..6 -> early slots in R2")
    e.i(f"s_mov_b32 s{sOFF2}, 0")
    e.i(f"s_mov_b32 s{sT1}, {RE}")
    kv_dma(NE, sOFF2, sT1, 1, 1)
    if opt.kvtouch:
        e.c("touch 64 of the 1024 K/V lines -> L2 (the workgroups of an XCD cover all of them)")
        e.i(f"buffer_load_dword v106, v31, {S(sWS,4)}, s{sT2} offen sc1")
    for m in ("row_ror:1", "row_ror:2", "row_ror:4", "row_ror:8"):
        e.nop(2)
        e.i(f"v_max_u32_dpp v30, v30, v30 {m} row_mask:0xf bank_mask:0xf")
    e.i("v_mov_b32 v29, v30")
    e.nop(2)
    e.i("v_permlane16_swap_b32 v29, v30")
    e.i("v_max_u32 v30, v29, v30")
    e.i("v_mov_b32 v29, v30")
    e.nop(2)
    e.i("v_permlane32_swap_b32 v29, v30")
    e.i("v_max_u32 v30, v29, v30")
    e.lds(f"ds_write_b32 v6, v30 offset:{CKM}")
    lds_signal(CKV)
    stamp(4, "front")
    e.c("blocks 5..36 -> slots 0..31")
    e.i(f"s_mov_b32 s{sT1}, 0")
    lds_poll(CQ, 4, sleep=0)
    e.vm = []
    e.lds(f"ds_write_b128 v{vSP}, {V(vSD,4)} offset:2048")
    kv_dma(opt.g1, sOFF2, sT1, 1, 1)
    e.i(f"s_waitcnt vmcnt({2 * opt.g1 + (1 if opt.kvtouch else 0)})")
    lds_signal(CE7)
    if opt.lowp & 8:
        e.i("s_setprio 0")
    if opt.g1 < 8:
        kv_dma(8 - opt.g1, sOFF2, sT1, 1, 1)
    e.i("s_waitcnt vmcnt(0)")
    lds_signal(CA)
    kv_dma(8, sOFF2, sT1, 1, 1)
    for st in range(2):
        kv_dma(8, sOFF2, sT1, 1, 1)
        e.i("s_waitcnt vmcnt(16)")
        e.vm = []
        lds_signal(CA)
    e.i("s_waitcnt vmcnt(0)")
    lds_signal(CA)
    lds_poll(CG, 4, sleep=1)
    e.c("workgroup 0 renews the epoch word: every producer has read it by now")
    e.i("s_cmp_lg_u32 s2, 0")
    e.i("s_cbranch_scc1 L_ffn")
    e.i(f"v_mov_b32 v29, {hex(WS_EPOCH)}")
    e.i("s_mov_b64 exec, 1")
    e.i(f"buffer_store_dword v16, v29, {S(sWS,4)}, 0 offen sc1")
    e.i("s_mov_b64 exec, -1")

    ACC = 8
    NR = opt.NR
    AF, BF = 72, 88
    e.label("L_ffn")
    e.vm = []
    e.lg = []
    e.i("s_setprio 3")
    e.i(f"s_mul_i32 s{sOFF}, s{sCB}, 448")
    e.i(f"s_lshl_b32 s{sT1}, s{sTILE}, 6")
    e.i(f"s_add_u32 s{sOFF}, s{sOFF}, s{sT1}")
    e.c("k order is rotated by 4*(rb&7) steps: the 8 workgroups of an XCD that share this w1 slice take turns missing")
    e.i(f"s_add_u32 s{sE1}, s{sOFF}, {512*3584}")
    e.i(f"s_and_b32 s{sT1}, s{sRB}, {7 if opt.rot & 2 else 0}")
    e.i(f"s_mul_i32 s{sT0}, s{sT1}, {64*3584}")
    e.i(f"s_add_u32 s{sOFF}, s{sOFF}, s{sT0}")
    for g in range(8):
        e.i(f"s_add_u32 s{sT0}, s{sT1}, {g}")
        e.i(f"s_and_b32 s{sT0}, s{sT0}, 7")
        e.i(f"s_mul_i32 s{sT0}, s{sT0}, {4*1056}")
        e.i(f"v_add_u32 v{232+2*g}, s{sT0}, v{vXN0}")
        e.i(f"v_add_u32 v{233+2*g}, s{sT0}, v{vXN1}")
    e.i(f"s_mul_i32 s{sW2T}, s{sF}, {448*1024}")
    e.i(f"s_lshl_b32 s{sT0}, s{sCB}, 7")
    e.i(f"s_add_u32 s{sW2T}, s{sW2T}, s{sT0}")
    e.i(f"s_and_b32 s{sT0}, s{sRB}, 7")
    e.i(f"s_min_u32 s{sT0}, s{sT0}, 6")
    e.i(f"s_lshl_b32 s{sT0}, s{sT0}, 16")
    e.i(f"s_add_u32 s{sW2T}, s{sW2T}, s{sT0}")
    e.i(f"v_lshrrev_b32 v{vTCH}, 2, v1")
    e.i(f"v_lshlrev_b32 v{vTCH}, 10, v{vTCH}")
    e.i(f"v_lshl_add_u32 v{vTCH}, v{vC}, 8, v{vTCH}")
    if opt.epre:
        e.i(f"s_cmp_eq_u32 s{sWAVE}, 7")
        e.i("s_cbranch_scc1 L_no_epre")
        lds_poll(CRC, 1, sleep=1)
        if opt.epre == 2:
            lds_poll(CWI, 1, sleep=1)
        for ks in range(3):
            for a in range(2):
                e.i(f"s_add_u32 m0, s{sRING}, {ks * 2048 + a * 1024}")
                e.i("s_nop 0")
                e.i(f"buffer_load_dwordx4 v{vW1}, {S(sW1,4)}, s{sOFF} offen lds")
                e.i(f"s_add_u32 s{sOFF}, s{sOFF}, {8*3584}")
        e.c("touch the lines of the fourth step as well")
        e.i("v_mul_u32_u24 v125, 3584, v1")
        e.i("s_mov_b64 exec, 0xffff")
        e.i(f"buffer_load_dword v124, v125, {S(sW1,4)}, s{sOFF} offen")
        e.i("s_mov_b64 exec, -1")
        e.label("L_no_epre")
    lds_poll(CXN, 9, sleep=1)
    e.i(f"ds_read_b32 v4, v6 offset:{CTAG}")
    e.i("v_mov_b64 v[208:209], -1")
    e.i("v_mov_b64 v[210:211], -1")
    if opt.fgo == 2:
        lds_poll(CKV, 1, sleep=1)
    if opt.fgo == 3:
        lds_poll(CE7, 1, sleep=1)
    e.wait_all(lg=True)
    e.i(f"v_readfirstlane_b32 s{sTAG}, v4")
    e.i(f"s_setprio {opt.fprio1}")
    stamp(2, "late")
    e.i(f"s_cmp_eq_u32 s{sWAVE}, 7")
    e.i("s_cbranch_scc1 L_ffn1_w7")

    def paced(n):
        if n == 0:
            e.wait_all(lg=True)
        elif len(e.lg) > n:
            e.i(f"s_waitcnt lgkmcnt({n})")
            del e.lg[: len(e.lg) - n]
    def bread(ks, rh):
        e.lds(f"ds_read_b128 {V(BF+8*(ks%2)+4*rh,4)}, v{232+2*(ks//4)+rh} offset:{(ks%4)*1056}", ("f", ks))
    def wrap1():
        e.i(f"s_cmp_ge_u32 s{sOFF}, s{sE1}")
        e.i(f"s_cselect_b32 s{sT0}, {512*3584}, 0")
        e.i(f"s_sub_u32 s{sOFF}, s{sOFF}, s{sT0}")
    def w2_touch():
        if opt.warm2:
            e.c("touch 1/7 of this wave's w2 slice (8 workgroups of an XCD share it) -> L2")
            e.vmem(f"buffer_load_dword v124, v{vTCH}, {S(sW2,4)}, s{sW2T} offen")
    def marker(hd):
        e.vmem(f"buffer_store_dwordx4 v[208:211], v{vL16}, {S(sWS,4)}, s{sOB} offen offset:{2048*hd} sc1", "clr")
    def e1():
        e.c("waves 4..6: blocks 37..51 -> slots 0..14 once attention has read them")
        lds_poll(CP1, 4, sleep=2)
        e.i(f"s_lshl_b32 s{sU0}, s{sF}, 11")
        e.i(f"s_add_u32 s{sU0}, s{sU0}, {(NE+32)*2048}")
        e.i(f"s_mul_i32 s{sU1}, s{sF}, {KVS}")
        kv_dma(5, sU0, sU1, 3, 3)
    def h_store(tiles):
        lds_signal(CX)
        stamp(3)
        e.i("s_setprio 3")
        e.i(f"s_mul_i32 s{sT0}, s{sRB}, 112")
        e.i(f"s_mul_i32 s{sT1}, s{sCB}, 14")
        e.i(f"s_add_u32 s{sT0}, s{sT0}, s{sT1}")
        e.i(f"s_lshl_b32 s{sT1}, s{sTILE}, 1")
        e.i(f"s_add_u32 s{sT0}, s{sT0}, s{sT1}")
        e.i(f"s_lshl_b32 s{sT0}, s{sT0}, 11")
        e.i(f"s_add_u32 s{sOFF}, s{sT0}, {WS_H}")
        e.i(f"s_add_u32 s{sOFF2}, s{sOFF}, 4096")
        if len(tiles) == 2 and opt.e1pos == 0:
            e1()
        e.c("mark the o fragments of attention wave f as not yet written")
        if not opt.mkearly:
            marker(0); marker(1)
        for ct in tiles:
            for rh in range(2):
                a = ACC + 16 * (rh * 2 + ct)
                for j in range(8):
                    e.i(f"v_cvt_pk_bf16_f32 v{a+j}, v{a+2*j}, v{a+2*j+1}")
                for j in range(8):
                    e.i(f"v_pk_max_i16 v{a+j}, v{a+j}, 0")
                if not (opt.lowp & 1):
                    for s in range(2):
                        e.vmem(f"buffer_store_dwordx4 {V(a+4*s,4)}, v{vL16}, {S(sWS,4)}, s{sOFF2 if ct else sOFF} offen offset:{(2*s+rh)*1024} sc1", "hst")
        if opt.lowp & 1:
            e.i("s_setprio 0")
            for ct in tiles:
                for rh in range(2):
                    a = ACC + 16 * (rh * 2 + ct)
                    for s in range(2):
                        e.vmem(f"buffer_store_dwordx4 {V(a+4*s,4)}, v{vL16}, {S(sWS,4)}, s{sOFF2 if ct else sOFF} offen offset:{(2*s+rh)*1024} sc1", "hst")
    def ring_dma(ks, srd, v, step):
        for a in range(2):
            e.i(f"s_add_u32 m0, s{sRING}, {(ks % NR) * 2048 + a * 1024}")
            e.i("s_nop 0")
            e.vmem(f"buffer_load_dwordx4 v{v}, {S(srd,4)}, s{sOFF} offen lds", ("w", ks))
            e.i(f"s_add_u32 s{sOFF}, s{sOFF}, {step}")
    def tr2(ks, i, tstride):
        ct, t = i >> 1, i & 1
        e.lds(f"ds_read_b64_tr_b16 {V(AF+8*(ks%2)+4*ct+2*t,2)}, v{vT1 if ct else vT0} offset:{(ks%NR)*2048+tstride*t}", ("f", ks))

    e.c("FFN1, waves 4..6: two column tiles x two row halves")
    if opt.fp_n:
        e.i(f"s_setprio {opt.fp_early}")
    A3, B3 = 72, 96
    LA = 1 if opt.la1 else 2
    def dma1(ks, a):
        e.i(f"s_add_u32 m0, s{sRING}, {(ks % 3) * 2048 + a * 1024}")
        e.i("s_nop 0")
        e.vmem(f"buffer_load_dwordx4 v{vW1}, {S(sW1,4)}, s{sOFF} offen lds", ("w", ks))
        e.i(f"s_add_u32 s{sOFF}, s{sOFF}, {8*3584}")
        if a == 1 and ks % 4 == 3:
            wrap1()
    def br3(ks, rh):
        e.lds(f"ds_read_b128 {V(B3+8*(ks%3)+4*rh,4)}, v{232+2*(ks//4)+rh} offset:{(ks%4)*1056}", ("f", ks))
    def tr3(ks, i):
        ct, t = i >> 1, i & 1
        e.lds(f"ds_read_b64_tr_b16 {V(A3+8*(ks%3)+4*ct+2*t,2)}, v{vT1 if ct else vT0} offset:{(ks%3)*2048+512*t}", ("f", ks))
    if opt.epre:
        e.vm = [("w", ks) for ks in range(3) for _ in range(2)] + ["t"]
    else:
        for ks in range(3):
            dma1(ks, 0); dma1(ks, 1)
    for ks in range(LA):
        br3(ks, 0); br3(ks, 1)
        e.wait(vm=("w", ks))
        for i in range(4):
            tr3(ks, i)
    for ks in range(32):
        s = ks % 3
        e.wait(lg=("f", ks))
        n = ks + LA
        jit()
        dense = ks < opt.dense
        for i in range(4):
            rh, ct = i >> 1, i & 1
            a = ACC + 16 * i
            e.i(f"{MF32} {V(a,16)}, {V(A3+8*s+4*ct,4)}, {V(B3+8*s+4*rh,4)}, {'0' if ks == 0 else V(a,16)}")
            if opt.ord1 == 1:
                if i in (0, 1) and ks + 3 < 32:
                    dma1(ks + 3, i)
                if n < 32:
                    if i in (0, 1):
                        br3(n, i)
                    if i == 2:
                        e.wait(vm=("w", n))
                        for t in range(4):
                            tr3(n, t)
                        paced(2)
                continue
            if i == 0 and ks + 3 < 32:
                dma1(ks + 3, 0)
                dma1(ks + 3, 1)
            if n < 32:
                if i == 0:
                    br3(n, 0); br3(n, 1)
                if i == 1:
                    e.wait(vm=("w", n))
                if dense:
                    if i in (1, 2):
                        tr3(n, 2 * i - 2); tr3(n, 2 * i - 1)
                else:
                    if i == 1:
                        tr3(n, 0); tr3(n, 1)
                    if i >= 2:
                        tr3(n, i)
                    paced(opt.pace1)
        if opt.mkearly and ks in (14, 20):
            marker(ks // 20)
        if opt.mid2 and ks in (0, 4, 8, 12):
            stamp({0: 1, 4: 8, 8: 9, 12: 4}[ks])
        if opt.fp_n and ks == opt.fp_n:
            e.i(f"s_setprio {opt.fprio1}")
        if opt.mid and ks in (0, 4, 8, 12, 16, 20):
            stamp(4 + ks // 4)
    if opt.mid:
        lds_signal(CX)
        stamp(3)
        dump_stamps()
        e.i("s_endpgm")
    h_store([0, 1])
    if opt.e1pos == 1:
        e1()
    e.i("s_branch L_ffn_join")

    e.label("L_ffn1_w7")
    e.vm = []
    e.lg = []
    e.c("FFN1, wave 7: one column tile")
    def dma7(ks):
        e.i(f"s_add_u32 m0, s{sRING}, {(ks % 8) * 1024}")
        e.i("s_nop 0")
        e.vmem(f"buffer_load_dwordx4 v{vW1}, {S(sW1,4)}, s{sOFF} offen lds", ("w", ks))
        e.i(f"s_add_u32 s{sOFF}, s{sOFF}, {16*3584}")
        if ks % 4 == 3:
            wrap1()
    def tr7(ks, t):
        e.lds(f"ds_read_b64_tr_b16 {V(AF+8*(ks%2)+2*t,2)}, v{vT0} offset:{(ks%8)*1024+256*t}", ("f", ks))
    if opt.t7:
        e.i(f"s_lshr_b32 s{sT1}, s2, 3")
        e.i(f"s_and_b32 s{sT2}, s{sCB}, 1")
        e.i(f"s_lshl_b32 s{sT2}, s{sT2}, 7")
        e.i(f"s_mul_i32 s{sU0}, s{sT1}, {56*1024}")
        e.i(f"s_add_u32 s{sU0}, s{sU0}, s{sT2}")
        for i in range(4):
            e.i(f"buffer_load_dword v124, v{vTCH}, {S(sW2,4)}, s{sU0} offen")
            e.i(f"s_add_u32 s{sU0}, s{sU0}, {14*1024}")
    e.i(f"s_setprio {opt.p7}")
    for ks in range(8):
        dma7(ks)
    bread(0, 0); bread(0, 1)
    e.wait(vm=("w", 0))
    tr7(0, 0); tr7(0, 1)
    for ks in range(32):
        s = ks % 2
        e.wait(lg=("f", ks))
        if ks + 8 < 32:
            dma7(ks + 8)
        if ks + 1 < 32:
            e.wait(vm=("w", ks + 1))
        for rh in range(2):
            a = ACC + 32 * rh
            e.i(f"{MF32} {V(a,16)}, {V(AF+8*s,4)}, {V(BF+8*s+4*rh,4)}, {'0' if ks == 0 else V(a,16)}")
            if ks + 1 < 32:
                bread(ks + 1, rh)
                tr7(ks + 1, rh)
                if rh == 0 and ks >= opt.dense:
                    paced(opt.pace1)
        if opt.mkearly and ks in (14, 20):
            marker(ks // 20)
    h_store([0])

    e.label("L_ffn_join")
    e.i("s_setprio 3")
    e.i(f"s_lshl_b32 s{sT2}, s{sCB}, 7")
    e.i(f"s_lshl_b32 s{sT1}, s{sF}, 2")
    e.i(f"s_add_u32 s{sT2}, s{sT2}, s{sT1}")
    e.i(f"s_add_u32 s{sT2}, s{sT2}, s{sFLG}")
    e.i("v_mov_b32 v72, 0")
    e.i(f"v_mov_b32 v73, s{sTAG}")
    e.i(f"v_add_u32 v{vSP}, {R1}, v{vSP}")
    e.i(f"s_lshl_b32 s{sRING}, s{sF}, 14")
    e.i(f"s_add_u32 s{sRING}, s{sRING}, {RB2}")
    e.i(f"v_lshl_add_u32 v{vTR}, v{vH}, 9, v{vTR}")
    e.c("accumulator i holds output tile i ^ f, so that accumulator 0 is this wave's own tile")
    e.i(f"s_and_b32 s{sT1}, s{sF}, 1")
    e.i(f"s_lshl_b32 s{sT1}, s{sT1}, 6")
    e.i(f"v_xor_b32 v{vT0}, s{sT1}, v{vTR}")
    e.i(f"v_add_u32 v{vT0}, s{sRING}, v{vT0}")
    e.i(f"v_xor_b32 v{vT1}, 64, v{vT0}")
    e.i(f"s_lshr_b32 s{sT1}, s{sF}, 1")
    e.i(f"s_lshl_b32 s{sT1}, s{sT1}, 10")
    e.i(f"v_add_u32 v0, s{sT1}, v{vL16}")
    e.i("v_xor_b32 v2, 0x400, v0")
    e.i("v_bfe_u32 v122, v1, 2, 3")
    e.i("v_lshlrev_b32 v122, 7, v122")
    e.i(f"v_lshl_add_u32 v122, v{vC}, 2, v122")
    e.i("v_lshlrev_b32 v123, 9, v1")
    e.i(f"s_mov_b32 s{sW2T}, s{sT2}")
    if opt.lowp & 2:
        e.i("s_setprio 0")
    def flag_out():
        e.i("s_mov_b64 exec, 1")
        e.vmem(f"buffer_store_dword v73, v72, {S(sWS,4)}, s{sW2T} offen sc1")
        e.i("s_mov_b64 exec, -1")
        lds_signal(CL1)
        stamp(4, "late")
    if not opt.prefirst:
        e.wait_all(vm=True)
        flag_out()
    e.i(f"s_mul_i32 s{sOFF}, s{sF}, {448*1024}")
    e.i(f"s_lshl_b32 s{sT0}, s{sCB}, 7")
    e.i(f"s_add_u32 s{sOFF}, s{sOFF}, s{sT0}")
    e.i(f"s_mov_b32 s{sE1}, s{sOFF}")
    e.i(f"s_cmp_eq_u32 s{sWAVE}, 7")
    e.i("s_cbranch_scc1 L_no_e1")
    e.c("touch 1/32 of the w2 / wo lines this XCD needs -> L2 (waves 4,5: w2, wave 6: wo)")
    e.i(f"s_lshr_b32 s{sT1}, s2, 3")
    e.i(f"s_and_b32 s{sT2}, s{sCB}, 1")
    e.i(f"s_lshl_b32 s{sT2}, s{sT2}, 7")
    e.i(f"s_cmp_eq_u32 s{sWAVE}, 6")
    e.i("s_cbranch_scc1 L_t_wo")
    e.i(f"s_lshl_b32 s{sT1}, s{sT1}, 1")
    e.i(f"s_add_u32 s{sT1}, s{sT1}, s{sF}")
    e.i(f"s_mul_i32 s{sT1}, s{sT1}, {28*1024}")
    e.i(f"s_add_u32 s{sT1}, s{sT1}, s{sT2}")
    if not opt.t7:
        e.i(f"buffer_load_dword v124, v{vTCH}, {S(sW2,4)}, s{sT1} offen")
        e.i(f"s_add_u32 s{sT1}, s{sT1}, {12*1024}")
        e.i(f"buffer_load_dword v124, v{vTCH}, {S(sW2,4)}, s{sT1} offen")
    e.i("s_branch L_no_e1")
    e.label("L_t_wo")
    e.i(f"s_lshl_b32 s{sT1}, s{sT1}, 14")
    e.i(f"s_add_u32 s{sT1}, s{sT1}, s{sT2}")
    e.i(f"buffer_load_dword v124, v{vTCH}, {S(sWO,4)}, s{sT1} offen")
    e.label("L_no_e1")
    e.c("blocks 51..63 -> R1 once xn is dead")
    lds_poll(CX, 4, sleep=4)
    e.i(f"s_lshl_b32 s{sOFF2}, s{sF}, 11")
    e.i(f"s_add_u32 s{sOFF2}, s{sOFF2}, {(NE+47)*2048}")
    e.i(f"s_mul_i32 s{sT1}, s{sF}, {KVS}")
    e.i(f"s_add_u32 s{sT1}, s{sT1}, {R1}")
    e.vm = []
    kv_dma(3, sOFF2, sT1, 4, 4)
    e.i("s_mov_b32 exec_lo, 0xfff")
    e.i("s_mov_b32 exec_hi, 0xfff")
    e.lds(f"ds_write_b128 v{vSP}, {V(vSD,4)} offset:2048")
    e.i("s_mov_b64 exec, -1")
    stamp(5)
    if opt.exit_at == 5:
        e.wait_all(vm=True)
        lds_signal(CH2)
    exit_if(5)
    e.i(f"s_lshr_b32 s{sT2}, s{sCB}, 1")
    for c in range(4):
        e.i(f"s_xor_b32 s{sCH+c}, s{sT2}, {c}")
        e.i(f"s_mul_i32 s{sCH+c}, s{sCH+c}, {7*2048}")
    e.i(f"s_mul_i32 s{sT0}, s{sRB}, 112")
    e.i(f"s_mul_i32 s{sT1}, s{sF}, 28")
    e.i(f"s_add_u32 s{sT0}, s{sT0}, s{sT1}")
    e.i(f"s_lshl_b32 s{sT0}, s{sT0}, 11")
    e.i(f"s_add_u32 s{sE2}, s{sT0}, {WS_H}")
    e.i(f"s_lshl_b32 s{sT0}, s{sF}, 3")
    e.i(f"s_and_b32 s{sT1}, s{sCB}, 4")
    e.i(f"s_add_u32 s{sT1}, s{sT1}, s{sT0}")
    e.i(f"s_lshl_b32 s4, 15, s{sT1}")
    e.i(f"s_lshl_b32 s5, 0xff, s{sT0}")
    def set_w(c):
        e.i(f"s_lshl_b32 s{sOFF}, s{sCH+c}, 3")
        e.i(f"s_add_u32 s{sOFF}, s{sOFF}, s{sE1}")
    def set_h(c):
        e.i(f"s_add_u32 s{sOFF2}, s{sCH+c}, s{sE2}")
    set_w(0)
    set_h(0)
    PH = opt.ph
    def wo_dma():
        e.c("wo slice -> R0 by DMA once attention has left it")
        e.i("s_setprio 3")
        lds_poll(CR0, 4, sleep=8)
        if opt.lowp & 4:
            e.i("s_setprio 0")
        e.i(f"s_lshl_b32 s{sU0}, s{sF}, 17")
        e.i(f"s_lshl_b32 s{sU1}, s{sCB}, 7")
        e.i(f"s_add_u32 s{sU0}, s{sU0}, s{sU1}")
        e.i(f"s_lshl_b32 s{sU1}, s{sF}, 14")
        e.i(f"s_lshl_b32 s{sT1}, s{sRB}, {11 if opt.rot & 8 else 14}")
        for i in range(16):
            e.i(f"s_and_b32 s{sT1}, s{sT1}, 0x3fff")
            e.i(f"s_add_u32 m0, s{sU1}, s{sT1}")
            e.i(f"s_lshl_b32 s{sT0}, s{sT1}, 3")
            e.i(f"s_add_u32 s{sT0}, s{sT0}, s{sU0}")
            e.vmem(f"buffer_load_dwordx4 v{vSW}, {S(sWO,4)}, s{sT0} offen lds", "wo")
            e.i(f"s_add_u32 s{sT1}, s{sT1}, 1024")
    def red_addr():
        e.i(f"v_add_u32 v208, s{sRING}, v{vL16}")
        for i in (1, 2, 3):
            e.i(f"s_xor_b32 s{sT0}, s{sF}, {i}")
            e.i(f"s_lshl_b32 s{sT0}, s{sT0}, 14")
            e.i(f"s_add_u32 s{sT0}, s{sT0}, {RB2 + (i-1)*4096}")
            e.i(f"v_add_u32 v{208+i}, s{sT0}, v{vL16}")
        e.i(f"s_lshl_b32 s{sT0}, s{sF}, 2")
        e.i(f"v_add_u32 v212, s{sT0}, v6")
        e.i(f"s_mov_b32 s{sT1}, {hex(f32bits(-math.log2(math.e)))}")
    HR = [96, 104, 112, 232, 240, 248, 192, 200, 184, 176, 168, 160][:PH]
    NP = opt.npre
    def dma2(ks, a):
        e.i(f"s_add_u32 m0, s{sRING}, {(ks % 8) * 2048 + a * 1024}")
        e.i("s_nop 0")
        e.vmem(f"buffer_load_dwordx4 v{vSW}, {S(sW2,4)}, s{sOFF} offen lds", ("w", ks))
        e.i(f"s_add_u32 s{sOFF}, s{sOFF}, 8192")
        if a == 1 and ks % 7 == 6 and ks < 27:
            set_w(ks // 7 + 1)
    def hl2(ks, rh):
        r = HR[ks % PH] + 4 * rh
        e.vmem(f"buffer_load_dwordx4 {V(r,4)}, v{2 if rh else 0}, {S(sWS,4)}, s{sOFF2} offen sc1", ("h", ks))
        if rh:
            e.i(f"s_add_u32 s{sOFF2}, s{sOFF2}, 2048")
            if ks % 7 == 6 and ks < 27:
                set_h(ks // 7 + 1)
    def areg(ks):
        return 128 + 8 * ks if ks < NP else A3 + 8 * (ks % 3)
    def t32(ks, i):
        ct, t = i >> 1, i & 1
        e.lds(f"ds_read_b64_tr_b16 {V(areg(ks)+4*ct+2*t,2)}, v{vT1 if ct else vT0} offset:{(ks%8)*2048+1024*t}", ("f", ks))
    e.c("while h is in flight: w2 stages -> ring -> fragments in registers, ring refilled")
    for ks in range(8):
        dma2(ks, 0); dma2(ks, 1)
    if opt.prefirst:
        e.i(f"s_waitcnt vmcnt({len(e.vm) + opt.pslack})")
        flag_out()
    e.wait(vm=("kv", 2))
    lds_signal(CH2)
    for ks in range(max(NP, 2)):
        e.wait(vm=("w", ks))
        for i in range(4):
            t32(ks, i)
        if 1 <= ks <= NP:
            e.wait(lg=("f", ks - 1))
            dma2(ks + 7, 0); dma2(ks + 7, 1)
    if NP >= 2:
        e.wait(lg=("f", NP - 1))
        dma2(NP + 7, 0); dma2(NP + 7, 1)
    stamp(9, "late")
    top, done = lbl("fp"), lbl("fpd")
    spin_init()
    e.label(top)
    e.i(f"buffer_load_dword v124, v122, {S(sWS,4)}, s{sFLG} offen sc1")
    e.wait_all(vm=True)
    e.i(f"v_cmp_ne_u32 vcc, s{sTAG}, v124")
    e.i(f"s_and_b32 s{sT0}, vcc_lo, s4")
    e.i(f"s_cbranch_scc0 {done}")
    spin_tail(top, done, 4)
    e.label(done)
    stamp(6)
    e.i(f"s_setprio {opt.fprio}")
    for ks in range(PH - 1):
        hl2(ks, 0); hl2(ks, 1)
    for ks in range(28):
        if ks == 12 - PH:
            e.vmem(f"buffer_load_dword v124, v122, {S(sWS,4)}, s{sFLG} offen sc1", "fl")
        if ks == 15 - PH:
            e.c("the second producer must have published before its half is read")
            e.wait(vm="fl")
            e.i("s_setprio 3")
            e.i(f"v_cmp_ne_u32 vcc, s{sTAG}, v124")
            e.i(f"s_and_b32 s{sT0}, vcc_lo, s5")
            e.i("s_cbranch_scc1 L_slow_h")
            e.label("L_back_h")
            e.i(f"s_setprio {opt.fprio}")
        if ks == opt.hold:
            e.c("the operands of the last steps are on chip: run them after attention, under the o hand-off")
            e.wait_all(lg=True)
            for k in (ks + 8, ks + 9):
                if k < 28:
                    dma2(k, 0); dma2(k, 1)
            e.i("s_setprio 3")
            e.wait_all(vm=True)
            if opt.wo_at + 3 >= opt.hold:
                lds_signal(CWO)
            red_addr()
            lds_poll(CAD, 4, sleep=1)
            e.i(f"s_setprio {opt.hp}")
        jit()
        e.wait(lg=("f", ks), vm=("h", ks))
        e.wait(vm=("w", ks + 2))
        for i in range(4):
            rh, ct = i >> 1, i & 1
            a = ACC + 16 * i
            e.i(f"{MF32} {V(a,16)}, {V(areg(ks)+4*ct,4)}, {V(HR[ks%PH]+4*rh,4)}, {'0' if ks == 0 else V(a,16)}")
            if ct == 0:
                if ks >= NP and ks + 8 < 28 and ks not in (opt.hold, opt.hold + 1):
                    dma2(ks + 8, rh)
            elif ks + PH - 1 < 28:
                hl2(ks + PH - 1, rh)
            if max(NP, 2) <= ks + 2 < 28:
                t32(ks + 2, i)
                if opt.dense2 <= ks < min(opt.late2, opt.hold):
                    paced(opt.pace2)
        if ks == opt.wo_at:
            wo_dma()
            e.i(f"s_setprio {opt.fprio}")
        if ks == min(opt.wo_at + 3, 27) and opt.wo_at + 3 < opt.hold:
            e.wait(vm="wo")
            lds_signal(CWO)
    stamp(7)
    exit_if(7)
    e.i("s_setprio 3")
    if opt.wo_at >= 28:
        wo_dma()
    e.c("f partials: accumulators 1..3 -> own ring; wave f^i picks up accumulator i")
    if opt.hold > 27:
        red_addr()
    e.nop(10)
    e.i(f"s_setprio {opt.fprio}")
    for i in (1, 2, 3):
        for q in range(4):
            e.lds(f"ds_write_b128 v208, {V(ACC+16*i+4*q,4)} offset:{(i-1)*4096+q*1024}")
    lds_signal(CF)
    e.i("s_setprio 3")
    stamp(8, "late")
    lds_poll(CF, 4, sleep=0)
    for i in (1, 2, 3):
        for q in range(4):
            e.lds(f"ds_read_b128 {V(ACC+16*i+4*q,4)}, v{208+i} offset:{q*1024}", ("r", i))
    if opt.glate and opt.hold > 27:
        lds_poll(CAD, 4, sleep=4)
    for i in (1, 2, 3):
        e.wait(lg=("r", i))
        for r in range(0, 16, 2):
            e.i(f"v_pk_add_f32 {V(ACC+r,2)}, {V(ACC+r,2)}, {V(ACC+16*i+r,2)}")
    for r in range(16):
        e.i(f"v_mul_f32 v{ACC+16+r}, s{sT1}, v{ACC+r}")
    for r in range(16):
        e.i(f"v_exp_f32 v{ACC+16+r}, v{ACC+16+r}")
    for r in range(16):
        e.i(f"v_add_f32 v{ACC+16+r}, 1.0, v{ACC+16+r}")
    for r in range(16):
        e.i(f"v_rcp_f32 v{ACC+16+r}, v{ACC+16+r}")
    for r in range(16):
        e.i(f"v_mul_f32 v{ACC+r}, v{ACC+r}, v{ACC+16+r}")
    for j in range(8):
        e.i(f"v_cvt_pk_bf16_f32 v{ACC+j}, v{ACC+2*j}, v{ACC+2*j+1}")
    e.lds(f"ds_write_b128 v208, {V(ACC,4)} offset:12288")
    e.lds(f"ds_write_b128 v208, {V(ACC+4,4)} offset:13312")
    lds_signal(CGD, va=212)
    stamp(10)
    dump_stamps()
    e.label("L_end")
    e.i("s_endpgm")
    e.label("L_slow_h")
    spin_init()
    e.label("L_slow_hx")
    e.i(f"buffer_load_dword v124, v122, {S(sWS,4)}, s{sFLG} offen sc1")
    e.i("s_waitcnt vmcnt(0)")
    e.i(f"v_cmp_ne_u32 vcc, s{sTAG}, v124")
    e.i(f"s_and_b32 s{sT0}, vcc_lo, s5")
    e.i("s_cbranch_scc0 L_back_h")
    spin_tail("L_slow_hx", "L_back_h", 4)
    e.label("L_code_end")
    return e

DOC = """;
"""

def wrap(e):
    hdr = open("cdna_kernels/%s.s.ref" % NAME).read().split("\n")
    top = [l for l in hdr if l.startswith(";") and "@launch" not in l]
    out = "\n".join(top) + f"\n; @launch grid=(256,1,1) block=(512,1,1) lds={LDS_BYTES}\n"
    out += DOC
    out += f""".amdgcn_target "amdgcn-amd-amdhsa--gfx950"
.text
.globl {NAME}_kernel
.p2align 8
.type {NAME}_kernel,@function
{NAME}_kernel:
"""
    out += e.text()
    out += f""".section .rodata,"a"
.p2align 6
.amdhsa_kernel {NAME}_kernel
  .amdhsa_next_free_vgpr 256
  .amdhsa_next_free_sgpr 102
  .amdhsa_accum_offset 256
  .amdhsa_group_segment_fixed_size 0
  .amdhsa_kernarg_size 88
  .amdhsa_user_sgpr_count 2
  .amdhsa_user_sgpr_kernarg_segment_ptr 1
  .amdhsa_system_sgpr_workgroup_id_x 1
.end_amdhsa_kernel
"""
    return out

if __name__ == "__main__":
    opt = Opt()
    outp = sys.argv[1]
    for a in sys.argv[2:]:
        k, v = a.split("=")
        assert hasattr(opt, k), k
        setattr(opt, k, type(getattr(opt, k))(eval(v)))
    e = gen(opt)
    bad = check_cfg(e.lines)
    print("hazards:", bad, "lines:", len(e.lines), "lds", LDS_BYTES)
    open(outp, "w").write(wrap(e))
```
